```python
import torch

def _softmax(x, axis=-1):
    return torch.softmax(x, dim=axis)
def _gelu(x):
    return torch.nn.functional.gelu(x, approximate="tanh")
def _silu(x):
    return torch.nn.functional.silu(x)
def _sigmoid(x):
    return torch.sigmoid(x)
def _layernorm(x, axis=-1, eps=1e-5):
    m = x.mean(dim=axis, keepdim=True)
    v = x.var(dim=axis, keepdim=True, unbiased=False)
    return (x - m) / torch.sqrt(v + eps)
def _scatter_add(tgt, idx, src, axis=0):
    return tgt.clone().index_add_(axis, idx, src)
def _segment_sum(src, seg, n):
    out = torch.zeros((n,) + src.shape[1:], dtype=src.dtype)
    return out.index_add_(0, seg, src)
def _pad(x, pw):
    flat = tuple(v for pair in reversed(pw) for v in pair)
    return torch.nn.functional.pad(x, flat)

kernel_name = 'parallel_sum__softmax_full_mha__dense_activation_relu__prompt'

def setup_inputs():

    _w = (lambda a: (lambda t: t.to(torch.bfloat16) if t.is_floating_point() else t)(torch.as_tensor(a)))
    def _A_setup():
        B, S, D = 1, 2048, 640
        return {
            "x": _w((lambda *s: torch.randn(*s, dtype=torch.bfloat16) * 0.05)(B, S, D)),
            "wqkv": _w((lambda *s: torch.randn(*s, dtype=torch.bfloat16) * 0.2)(D, 3 * D)),
            "wo": _w((lambda *s: torch.randn(*s, dtype=torch.bfloat16) * 0.1)(D, D)),
        }
    _A_in = _A_setup()

    def _B_setup():
        B, S, D, Dff = 1, 2048, 640, 1728
        return {
            "x": _w((lambda *s: torch.randn(*s, dtype=torch.bfloat16) * 0.05)(B, S, D)),
            "w1": _w((lambda *s: torch.randn(*s, dtype=torch.bfloat16) * 0.2)(D, Dff)),
            "w2": _w((lambda *s: torch.randn(*s, dtype=torch.bfloat16) * 0.2)(Dff, D)),
        }
    _B_in = _B_setup()

    return {
        "A_x": _A_in["x"],
        "A_wqkv": _A_in["wqkv"],
        "A_wo": _A_in["wo"],
        "B_x": _B_in["x"],
        "B_w1": _B_in["w1"],
        "B_w2": _B_in["w2"],
    }

def reference(A_x, A_wqkv, A_wo, B_x, B_w1, B_w2):
    def _A_ref(x, wqkv, wo):
        B, S, D = x.shape
        H = 32; Dh = D // H
        qkv = (lambda x, *d: x.permute(*d))((x @ wqkv).reshape(B, S, 3, H, Dh), 2, 0, 3, 1, 4)
        q, k, v = qkv[0], qkv[1], qkv[2]
        scale = Dh ** -0.5
        scores = torch.einsum("bhqd,bhkd->bhqk", q, k) * scale
        p = _softmax(scores, axis=-1)
        o = torch.einsum("bhqk,bhkd->bhqd", p, v)
        return (lambda x, *d: x.permute(*d))(o, 0, 2, 1, 3).reshape(B, S, D) @ wo

    def _B_ref(x, w1, w2):
        h = torch.einsum("bsd,df->bsf", x, w1)
        zero = torch.zeros_like(h)
        h = torch.maximum(h, zero)
        return torch.einsum("bsf,fd->bsd", h, w2)

    x = A_x
    xn = _layernorm(x, axis=-1)
    return x + _A_ref(xn, A_wqkv, A_wo) + _B_ref(xn, B_w1, B_w2)
```

```python
import re

class Asm:
    def __init__(self):
        self.lines = []
    def __call__(self, s=""):
        for ln in s.split("\n"):
            ln = ln.strip()
            if not ln: continue
            if ln.endswith(":") or ln.startswith(".") or ln.startswith(";"):
                self.lines.append(ln)
            else:
                self.lines.append("    " + ln)
    def label(self, l): self.lines.append(l + ":")
    def begin(self, name):
        self(f".text\n.globl {name}\n.p2align 8\n.type {name},@function\n{name}:")
    def end(self, name, vgpr, sgpr=102, accum=None):
        accum = accum or ((vgpr + 3) // 4 * 4)
        self(f"""
.section .rodata,"a"
.p2align 6
.amdhsa_kernel {name}
.amdhsa_next_free_vgpr {vgpr}
.amdhsa_next_free_sgpr {sgpr}
.amdhsa_accum_offset {accum}
.amdhsa_group_segment_fixed_size 0
.amdhsa_kernarg_size 72
.amdhsa_user_sgpr_count 2
.amdhsa_user_sgpr_kernarg_segment_ptr 1
.amdhsa_system_sgpr_workgroup_id_x 1
.amdhsa_float_denorm_mode_32 3
.end_amdhsa_kernel
""")
    def text(self, fix=True):
        lines = fix_hazards(self.lines) if fix else self.lines
        return "\n".join(lines) + "\n"

def vr(a, n=1): return f"v{a}" if n == 1 else f"v[{a}:{a+n-1}]"
def sr(a, n=1): return f"s{a}" if n == 1 else f"s[{a}:{a+n-1}]"
HEADER = '.amdgcn_target "amdgcn-amd-amdhsa--gfx950"\n'

_reg = re.compile(r"^(-|\|)?(abs\()?([vs])(?:(\d+)|\[(\d+):(\d+)\])\)?\|?$")
def regs_of(op):
    op = op.strip()
    if op in ("vcc",): return {("s", 106), ("s", 107)}
    if op == "vcc_lo": return {("s", 106)}
    if op == "vcc_hi": return {("s", 107)}
    if op == "m0": return {("s", 124)}
    if op == "exec": return {("s", 126), ("s", 127)}
    m = _reg.match(op)
    if not m: return set()
    k = m.group(3)
    if m.group(4) is not None: return {(k, int(m.group(4)))}
    return {(k, i) for i in range(int(m.group(5)), int(m.group(6)) + 1)}

TRANS = ("v_exp_", "v_log_", "v_rcp_", "v_rsq_", "v_sqrt_", "v_sin_", "v_cos_")
class Ins:
    __slots__ = ("txt", "op", "cls", "wr", "rd", "A", "B", "C", "passes", "states", "wide_store", "lds_dma", "target", "dpp")
    def __init__(s, txt):
        s.txt = txt
        t = txt.split(";")[0].strip()
        parts = t.split(None, 1)
        s.op = op = parts[0]
        rest = parts[1] if len(parts) > 1 else ""
        ops = []; cur = ""; d = 0
        for ch in rest:
            if ch == "[": d += 1
            if ch == "]": d -= 1
            if ch == "," and d == 0: ops.append(cur.strip()); cur = ""
            else: cur += ch
        if cur.strip(): ops.append(cur.strip())
        mods = ""
        if ops:
            l = ops[-1].split(None, 1)
            ops[-1] = l[0]
            mods = l[1] if len(l) > 1 else ""
        R = [regs_of(o) for o in ops]
        s.wr = set(); s.rd = set(); s.A = s.B = s.C = set(); s.passes = 0; s.states = 1
        s.wide_store = False; s.lds_dma = False; s.target = None; s.dpp = ("_dpp" in op or "row_" in mods or "quad_perm" in mods)
        allr = lambda a: set().union(*a) if a else set()
        if op.startswith("v_mfma"):
            s.cls = "mfma"; s.wr = R[0]; s.A, s.B, s.C = R[1], R[2], R[3]; s.rd = s.A | s.B | s.C
            s.passes = 8 if "32x32" in op else 4
        elif op.startswith("v_"):
            s.cls = "dot" if op.startswith("v_dot") else ("trans" if op.startswith(TRANS) else "valu")
            if op.startswith("v_permlane"):
                s.wr = R[0] | R[1]; s.rd = R[0] | R[1]
            elif op == "v_nop": pass
            else:
                s.wr = R[0]; s.rd = allr(R[1:])
                if op.startswith(("v_fmac", "v_pk_fmac", "v_dot2c", "v_writelane")): s.rd |= R[0]
                if op.startswith("v_cndmask") and len(ops) == 3: s.rd |= regs_of("vcc")
                if s.cls == "dot": s.A, s.B, s.C = R[1], R[2], (R[3] if len(R) > 3 else R[0])
                if "dst_unused:UNUSED_PRESERVE" in mods or s.dpp: s.rd |= R[0]
        elif op.startswith(("buffer_", "global_")):
            s.cls = "vmem"
            islds = re.search(r"\blds\b", mods) is not None or "_lds_" in op
            if op in ("buffer_inv", "buffer_wbl2"): pass
            elif islds: s.lds_dma = True; s.rd = allr(R) | regs_of("m0")
            elif "_load" in op: s.wr = R[0]; s.rd = allr(R[1:])
            elif "_store" in op:
                s.rd = allr(R)
                if op.endswith(("x3", "x4")):
                    s.wide_store = True
                    s.C = R[0] if op.startswith("buffer_") else R[1]
            else: s.rd = allr(R)
        elif op.startswith("ds_"):
            s.cls = "ds"
            if op.startswith(("ds_read", "ds_bpermute", "ds_permute", "ds_swizzle")): s.wr = R[0]; s.rd = allr(R[1:])
            else: s.rd = allr(R)
        elif op.startswith("s_"):
            s.cls = "salu"
            if op == "s_nop": s.states = int(ops[0], 0) + 1
            elif op.startswith(("s_cbranch", "s_branch")): s.target = ops[0]
            elif op.startswith(("s_cmp", "s_bitcmp", "s_waitcnt", "s_barrier", "s_setprio", "s_endpgm", "s_sleep")): s.rd = allr(R)
            else:
                s.wr = R[0] if R else set(); s.rd = allr(R[1:])
                if "saveexec" in op: s.wr = s.wr | regs_of("exec")
        else:
            raise ValueError("unknown op " + txt)

def need(p, c):
    n = 0
    pv = p.cls in ("valu", "trans", "dot")
    cv = c.cls in ("valu", "trans", "dot")
    V = lambda S: {r for r in S if r[0] == "v"}
    S_ = lambda S: {r for r in S if r[0] == "s"}
    if pv:
        w = V(p.wr)
        if c.cls == "mfma" and w & c.rd: n = max(n, 2)
        if p.cls == "trans" and cv and c.cls != "trans" and w & c.rd: n = max(n, 1)
        if c.op.startswith("v_permlane") and w & c.rd: n = max(n, 2)
        if c.dpp and w & c.rd: n = max(n, 2)
        if c.op.startswith(("v_readfirstlane", "v_readlane")) and w & c.rd: n = max(n, 1)
        if p.cls == "dot":
            if c.op == p.op:
                if w & (c.A | c.B): n = max(n, 3)
            elif w & (c.rd | c.wr): n = max(n, 3)
        ws = S_(p.wr)
        if ws:
            if cv and ws & c.rd: n = max(n, 2)
            if c.cls == "vmem" and ws & c.rd: n = max(n, 5)
    if p.cls == "mfma":
        big = p.passes == 8
        if c.cls == "mfma":
            if p.wr & c.C:
                if not (p.wr == c.C and p.passes == c.passes): n = max(n, 10 if big else 6)
            elif p.wr & c.wr: n = max(n, 10 if big else 6)
            if p.wr & (c.A | c.B): n = max(n, 12 if big else 8)
        elif c.cls != "salu":
            if p.wr & (c.rd | c.wr): n = max(n, 12 if big else 8)
            if cv and p.C & c.wr: n = max(n, 7 if big else 3)
    if p.wide_store and p.C & c.wr:
        n = max(n, 2 if cv else 1)
    if p.cls == "salu" and ("s", 124) in p.wr and c.lds_dma: n = max(n, 1)
    return n

WIN = 14
def _required(hist, c):
    dist = 0; extra = 0
    for p in reversed(hist):
        if dist >= WIN: break
        r = need(p, c)
        if r > dist: extra = max(extra, r - dist)
        dist += p.states
    return extra

def fix_hazards(lines):
    items = []
    for ln in lines:
        t = ln.strip()
        if t.endswith(":") and not t.startswith(";"): items.append(("L", t[:-1], ln))
        elif t.startswith(".") or t.startswith(";"): items.append(("D", None, ln))
        else: items.append(("I", Ins(t), ln))
    def nop(n): return ("I", Ins(f"s_nop {n-1}"), f"    s_nop {n-1}")
    changed = True; rounds = 0
    while changed:
        changed = False; rounds += 1
        out = []; hist = []
        for k, p, ln in items:
            if k == "I":
                e = _required(hist, p)
                if e:
                    it = nop(e); out.append(it); hist.append(it[1]); changed = True
                hist.append(p); hist = hist[-40:]
                if p.op in ("s_branch", "s_endpgm"): pass
            out.append((k, p, ln))
            if k == "I" and p.op in ("s_branch", "s_endpgm"): hist = []
        items = out
        pos = {p: i for i, (k, p, ln) in enumerate(items) if k == "L"}
        ins_at = {}
        hist = []
        for i, (k, p, ln) in enumerate(items):
            if k != "I": continue
            hist.append(p); hist = hist[-40:]
            if p.target is not None and p.target in pos:
                h = list(hist); j = pos[p.target]; dist = 0; worst = 0
                while j < len(items) and dist < WIN:
                    kk, q, _ = items[j]; j += 1
                    if kk != "I": continue
                    worst = max(worst, _required(h, q))
                    h.append(q); dist += q.states
                    if q.op in ("s_branch", "s_endpgm"): break
                if worst: ins_at[i] = worst
            if p.op in ("s_branch", "s_endpgm"): hist = []
        if ins_at:
            changed = True
            out = []
            for i, it in enumerate(items):
                if i in ins_at: out.append(nop(ins_at[i]))
                out.append(it)
            items = out
        assert rounds < 20
    return [ln for k, p, ln in items]
```

```python
from asmlib import *
from layout import *

def gen_k1(A, name="k1_kernel"):
    A.begin(name)
    E = f"L_{name}"
    A(f"""
s_cmp_ge_u32 s2, 256
s_cbranch_scc1 {E}_end
s_load_dwordx4 s[4:7], s[0:1], 0
s_load_dwordx4 s[8:11], s[0:1], 32
s_load_dwordx2 s[12:13], s[0:1], 64
s_and_b32 s40, s2, 7
s_lshr_b32 s41, s2, 3
s_and_b32 s14, s40, 1
s_lshl_b32 s14, s14, 3
s_and_b32 s15, s41, 7
s_add_u32 s14, s14, s15
s_lshr_b32 s15, s40, 1
s_lshl_b32 s15, s15, 2
s_lshr_b32 s16, s41, 3
s_add_u32 s15, s15, s16
s_and_b32 s16, s15, 7
s_lshl_b32 s17, s16, 2
s_mul_i32 s18, s16, 3
s_cmp_lt_u32 s15, 8
s_cselect_b32 s19, 6, 3
s_add_u32 s18, s18, s19
s_min_u32 s17, s17, s18
s_cmp_lt_u32 s16, s19
s_cselect_b32 s18, 4, 3
v_lshrrev_b32 v1, 6, v0
v_and_b32 v2, 63, v0
s_mov_b32 s22, 2621440
v_readfirstlane_b32 s29, v1
s_mov_b32 s23, 0x20000
s_mov_b32 s27, 0x20000
s_cmp_lt_u32 s15, 8
s_mov_b32 s26, 2211840
s_cselect_b32 s26, 2457600, s26
s_mov_b32 s28, 3456
s_cselect_b32 s28, 3840, s28
v_lshrrev_b32 v3, 3, v2
s_lshl_b32 s30, s29, 4
s_lshl_b32 s31, s14, 7
s_add_u32 s30, s30, s31
v_add_u32 v3, s30, v3
v_lshrrev_b32 v4, 4, v2
v_and_b32 v5, 7, v2
v_xor_b32 v6, v5, v4
v_xor_b32 v7, 4, v6
s_movk_i32 s32, 1280
v_mul_lo_u32 v3, v3, s32
v_lshl_add_u32 v10, v6, 4, v3
v_lshl_add_u32 v11, v7, 4, v3
v_add_u32 v11, 10240, v11
v_lshrrev_b32 v3, 5, v2
v_and_b32 v4, 31, v2
v_lshlrev_b32 v5, 2, v3
v_xor_b32 v5, v4, v5
v_xor_b32 v6, 8, v5
s_lshl_b32 s30, s29, 3
v_add_u32 v3, s30, v3
v_mul_lo_u32 v3, v3, s28
s_lshl_b32 s31, s17, 7
v_add_u32 v3, s31, v3
v_lshl_add_u32 v12, v5, 4, v3
v_lshl_add_u32 v13, v6, 4, v3
s_lshl_b32 s33, s28, 1
v_add_u32 v13, s33, v13
s_lshl_b32 s33, s28, 2
v_add_u32 v14, s33, v12
v_add_u32 v15, s33, v13
s_lshl_b32 s33, s18, 3
v_mov_b32 v8, 0x7fffffff
v_cmp_gt_u32 vcc, s33, v5
v_cmp_gt_u32 s[42:43], s33, v6
s_lshl_b32 s34, s28, 6
s_mov_b32 s35, 0
v_cndmask_b32 v12, v8, v12, vcc
v_cndmask_b32 v14, v8, v14, vcc
v_cndmask_b32 v13, v8, v13, s[42:43]
v_cndmask_b32 v15, v8, v15, s[42:43]
s_mov_b32 s36, 0
s_lshl_b32 s37, s29, 11
s_lshl_b32 s38, s29, 12
s_add_u32 s38, s38, 16384
s_cmp_lt_u32 s15, 8
s_waitcnt lgkmcnt(0)
s_mov_b32 s20, s4
s_mov_b32 s21, s5
s_cselect_b32 s24, s6, s8
s_cselect_b32 s25, s7, s9
""")
    def issue(slot):
        base = slot * 49152
        for j in range(2):
            A(f"s_add_u32 m0, s37, {base + j*1024}\nbuffer_load_dwordx4 v{10+j}, s[20:23], s35 offen lds")
        for j in range(4):
            A(f"s_add_u32 m0, s38, {base + j*1024}\nbuffer_load_dwordx4 v{12+j}, s[24:27], s36 offen lds")
        A("s_add_u32 s35, s35, 128\ns_add_u32 s36, s36, s34")
    for s in range(3): issue(s)
    A(f"""
s_mov_b32 s44, s12
s_mov_b32 s45, s13
s_mov_b32 s46, {WS_BYTES}
s_mov_b32 s47, 0x20000
s_mov_b32 s48, s10
s_mov_b32 s49, s11
s_mov_b32 s50, 2211840
s_mov_b32 s51, 0x20000
s_mul_i32 s57, s2, 5
s_add_u32 s57, s57, s29
s_cmp_lt_u32 s29, 5
s_cselect_b32 s58, s57, 2000
s_min_u32 s57, s57, 1079
s_mul_i32 s59, s57, 6554
s_lshr_b32 s59, s59, 16
s_mul_i32 s60, s59, 10
s_sub_u32 s60, s57, s60
s_mul_i32 s61, s59, 20480
s_lshl_b32 s62, s60, 7
s_add_u32 s62, s62, s61
s_add_u32 s63, s62, 10240
v_lshrrev_b32 v3, 5, v2
v_and_b32 v4, 31, v2
v_mul_u32_u24 v5, 5120, v3
v_lshl_add_u32 v5, v4, 2, v5
""")
    for j in range(8):
        A(f"buffer_load_dword v{40+j}, v5, s[48:51], s{62 + (j >> 2)} offen offset:{(j & 3) * 1280}")
    A("""
s_and_b32 s52, s29, 1
s_lshr_b32 s53, s29, 1
s_lshl_b32 s30, s52, 1
s_xor_b32 s30, s30, s53
s_add_u32 s54, s17, s53
s_mov_b32 s56, 0x3f803f80
s_lshl_b32 s31, s30, 1
v_bfe_u32 v5, v2, 1, 3
v_xor_b32 v5, v5, v3
v_xor_b32 v5, s31, v5
s_lshl_b32 s31, s52, 13
v_lshlrev_b32 v6, 7, v4
v_add_u32 v6, s31, v6
""")
    for pos in range(4):
        A(f"v_xor_b32 v7, {2*pos}, v5\nv_lshl_add_u32 v{16+pos}, v7, 4, v6\nv_add_u32 v{20+pos}, 98304, v{16+pos}")
    A("""
v_bfe_u32 v5, v2, 2, 2
v_lshl_add_u32 v6, v3, 3, v5
v_lshlrev_b32 v6, 9, v6
v_and_b32 v7, 1, v2
v_lshl_add_u32 v6, v7, 3, v6
v_add_u32 v6, 16384, v6
v_bfe_u32 v7, v2, 4, 1
v_bfe_u32 v8, v2, 1, 1
v_lshl_add_u32 v7, v7, 1, v8
s_lshl_b32 s31, s53, 3
v_add_u32 v7, s31, v7
v_lshlrev_b32 v5, 2, v5
v_xor_b32 v7, v7, v5
v_lshl_add_u32 v6, v7, 4, v6
v_xor_b32 v7, 64, v6
""")
    for pos in range(4):
        A(f"s_xor_b32 s31, s30, {pos}\ns_lshl_b32 s31, s31, 13")
        for t in range(2):
            A(f"v_add_u32 v{24+pos*2+t}, s31, v{6+t}\nv_add_u32 v{32+pos*2+t}, 98304, v{24+pos*2+t}")
    for i in range(48, 54): A(f"v_mov_b32 v{i}, 0")
    A(f"""
s_cmp_lt_u32 s15, 8
s_cselect_b32 s55, s54, 0
s_cmp_ge_u32 s55, 20
s_cbranch_scc1 {E}_vloop
""")
    FB = [56, 72]
    def acc(ct, tt): return 96 + (ct * 2 + tt) * 16
    XS = 49152; CS = 49152 + 4096; RB = 49152 + 8192
    def reads(p):
        s, pos = p >> 2, p & 3
        slot = s % 3; b = FB[p & 1]
        xa = (20 if slot == 2 else 16) + pos
        wa = (32 if slot == 2 else 24) + pos * 2
        off = 49152 if slot == 1 else 0
        A(f"ds_read_b128 v[{b}:{b+3}], v{xa} offset:{off}")
        A(f"ds_read_b64_tr_b16 v[{b+8}:{b+9}], v{wa} offset:{off}")
        A(f"ds_read_b64_tr_b16 v[{b+10}:{b+11}], v{wa} offset:{off+2048}")
        A(f"ds_read_b128 v[{b+4}:{b+7}], v{xa} offset:{off+4096}")
        A(f"ds_read_b64_tr_b16 v[{b+12}:{b+13}], v{wa+1} offset:{off}")
        A(f"ds_read_b64_tr_b16 v[{b+14}:{b+15}], v{wa+1} offset:{off+2048}")
    def loop(vmode):
        A("s_waitcnt vmcnt(20)\ns_barrier")
        reads(0)
        for p in range(40):
            s, pos = p >> 2, p & 3
            b = FB[p & 1]
            if pos == 3 and s < 9:
                n = 14 if s < 2 else (6 if s < 8 else 0)
                A(f"s_waitcnt vmcnt({n}) lgkmcnt(0)\ns_barrier")
                reads(p + 1)
                if s + 3 < 10: issue(s % 3)
            elif p == 38:
                reads(p + 1)
                A("s_waitcnt lgkmcnt(6)\ns_barrier")
                for c in range(4): A(f"ds_read_b64 v[{160+2*c}:{161+2*c}], v9 offset:{XS + c*512}")
                A(f"ds_read_b64 v[168:169], v8 offset:{CS}")
            elif p == 39:
                A("s_waitcnt lgkmcnt(5)")
            else:
                reads(p + 1)
                A("s_waitcnt lgkmcnt(6)")
            dots = []
            if pos == 0:
                for i in range(4):
                    for tt in range(2):
                        x = b + 4 * tt + i
                        dots.append(f"v_dot2_f32_bf16 v{48+2*tt}, v{x}, s56, v{48+2*tt}")
                        dots.append(f"v_dot2_f32_bf16 v{49+2*tt}, v{x}, v{x}, v{49+2*tt}")
                    for ct in range(2):
                        dots.append(f"v_dot2_f32_bf16 v{52+ct}, v{b+8+4*ct+i}, s56, v{52+ct}")
            elif pos == 1:
                for i in range(4):
                    for ct in range(2):
                        dots.append(f"v_dot2_f32_bf16 v{52+ct}, v{b+8+4*ct+i}, s56, v{52+ct}")
            k = 0
            per = (len(dots) + 3) // 4
            for (ct, tt) in ((0, 0), (0, 1), (1, 1), (1, 0)):
                a = acc(ct, tt)
                c = "0" if p == 0 else vr(a, 16)
                w, x = vr(b + 8 + 4 * ct, 4), vr(b + 4 * tt, 4)
                if vmode: A(f"v_mfma_f32_32x32x16_bf16 {vr(a,16)}, {x}, {w}, {c}")
                else: A(f"v_mfma_f32_32x32x16_bf16 {vr(a,16)}, {w}, {x}, {c}")
                for d in dots[k:k + per]: A(d)
                k += per
            if p == 37:
                A(f"""
s_lshl_b32 s31, s52, 11
s_lshl_b32 s33, s53, 9
s_add_u32 s33, s33, s31
v_lshlrev_b32 v5, 3, v2
v_add_u32 v9, s31, v5
v_add_u32 v6, s33, v5
s_lshl_b32 s31, s53, 10
s_lshl_b32 s33, s52, 9
s_add_u32 s33, s33, s31
v_add_u32 v7, s33, v5
v_xor_b32 v8, 512, v7
v_permlane32_swap_b32 v48, v49
v_permlane32_swap_b32 v50, v51
v_add_f32 v48, v48, v49
v_add_f32 v49, v50, v51
ds_write_b64 v7, v[52:53] offset:{CS}
ds_write_b64 v6, v[48:49] offset:{XS}
""")
    def stats(vmode):
        A("""
s_waitcnt lgkmcnt(0)
v_pk_add_f32 v[160:161], v[160:161], v[162:163]
v_pk_add_f32 v[164:165], v[164:165], v[166:167]
v_pk_add_f32 v[52:53], v[52:53], v[168:169]
v_pk_add_f32 v[160:161], v[160:161], v[164:165]
v_mov_b32 v162, v160
v_mov_b32 v163, v161
s_mov_b32 s30, 0x3acccccd
s_mov_b32 s31, 0x3727c5ac
v_permlane32_swap_b32 v160, v162
v_permlane32_swap_b32 v161, v163
""")
        for t in range(2):
            c = 52 + t; h = 170 + 4 * t
            A(f"""
v_mul_f32 v{160+t}, s30, v{160+t}
v_cvt_pk_bf16_f32 v{h+2}, 0, v{c}
v_mul_f32 v{164+t}, v{160+t}, v{160+t}
v_sub_f32 v{h+2}, v{c}, v{h+2}
v_fma_f32 v{162+t}, v{162+t}, s30, -v{164+t}
v_cvt_pk_bf16_f32 v{h+3}, 0, v{h+2}
v_max_f32 v{162+t}, 0, v{162+t}
v_sub_f32 v{h+3}, v{h+2}, v{h+3}
v_cvt_pk_bf16_f32 v{162+t}, 0, v{162+t}
v_cvt_pk_bf16_f32 v{h}, v{c}, v{h+2}
v_add_f32 v{162+t}, s31, v{162+t}
v_cvt_pk_bf16_f32 v{h+1}, v{h+3}, 0
v_cvt_pk_bf16_f32 v{162+t}, 0, v{162+t}
v_cvt_pk_bf16_f32 v{178+2*t}, -v{160+t}, -v{160+t}
v_sqrt_f32 v{162+t}, v{162+t}
v_cvt_pk_bf16_f32 v{179+2*t}, -v{160+t}, 0
""")
        for (ct, tt) in ((0, 0), (0, 1), (1, 1), (1, 0)):
            a = acc(ct, tt); w, x = vr(170 + 4 * ct, 2), vr(178 + 2 * tt, 2)
            if vmode: A(f"v_mfma_f32_32x32x8_bf16 {vr(a,16)}, {x}, {w}, {vr(a,16)}")
            else: A(f"v_mfma_f32_32x32x8_bf16 {vr(a,16)}, {w}, {x}, {vr(a,16)}")
        A("""
v_cvt_pk_bf16_f32 v162, 0, v162
v_cvt_pk_bf16_f32 v163, 0, v163
v_rcp_f32 v162, v162
v_rcp_f32 v163, v163
v_cmp_lt_u32 vcc, 31, v2
s_lshl_b32 s39, s14, 2
s_lshl_b32 s31, s52, 1
s_add_u32 s39, s39, s31
v_cndmask_b32 v164, v162, v163, vcc
""")
    order = ((0, 0), (0, 1), (1, 1), (1, 0))
    loop(False); stats(False)
    A(f"""
s_cmp_ge_u32 s53, s18
s_cbranch_scc1 {E}_w2
v_lshlrev_b32 v5, 4, v2
s_cmp_lt_u32 s15, 8
s_cbranch_scc1 {E}_qk
""")
    A(f"""
s_mul_i32 s30, s39, 108
s_lshl_b32 s31, s54, 2
s_add_u32 s30, s30, s31
s_lshl_b32 s30, s30, 10
s_add_u32 s30, s30, {HF}
s_add_u32 s31, s30, {108*1024}
""")
    for (ct, tt) in order:
        a = acc(ct, tt)
        for k in range(8): A(f"v_cvt_pk_bf16_f32 v{a+k}, v{a+2*k}, v{a+2*k+1}")
        for k in range(8): A(f"v_pk_max_i16 v{a+k}, v{a+k}, 0")
        for j in range(2): A(f"buffer_store_dwordx4 {vr(a+4*j,4)}, v5, s[44:47], s{30+tt} offen offset:{(ct*2+j)*1024}")
    A(f"""
s_cmp_lg_u32 s54, 0
s_cbranch_scc1 {E}_w2
s_lshl_b32 s30, s39, 7
s_add_u32 s30, s30, {RS}
v_lshlrev_b32 v5, 2, v2
buffer_store_dword v164, v5, s[44:47], s30 offen
s_branch {E}_w2
""")
    A(f"""
{E}_qk:
s_cmp_lt_u32 s54, 10
s_cselect_b32 s30, {f32bits(QSCALE)}, 1.0
s_cselect_b32 s31, 0, {KVF - QF}
s_cselect_b32 s33, 0, 10
s_sub_u32 s33, s54, s33
v_mul_f32 v162, s30, v162
v_mul_f32 v163, s30, v163
s_lshl_b32 s33, s33, 3
s_mul_i32 s40, s33, 205
s_lshr_b32 s40, s40, 10
s_mul_i32 s41, s40, 5
s_sub_u32 s41, s33, s41
s_mul_i32 s40, s40, {2*HSTRIDE}
s_add_u32 s31, s31, s40
s_mul_i32 s40, s39, 2560
s_add_u32 s64, s31, s40
v_mul_u32_u24 v6, {HSTRIDE}, v3
v_lshl_add_u32 v6, v4, 3, v6
v_add_u32 v6, 1024, v6
""")
    for i in range(1, 6): A(f"s_add_u32 s{64+i}, s{63+i}, {HSTRIDE}")
    P = [56, 72]
    for (ct, tt) in order:
        a = acc(ct, tt)
        sel = "op_sel_hi:[1,0]" if tt == 0 else "op_sel:[0,1] op_sel_hi:[1,1]"
        for k in range(8): A(f"v_pk_mul_f32 {vr(a+2*k,2)}, {vr(a+2*k,2)}, v[162:163] {sel}")
        for k in range(8): A(f"v_cvt_pk_bf16_f32 v{P[tt]+8*ct+k}, v{a+2*k}, v{a+2*k+1}")
    for ph in range(5):
        if ph < 4: A(f"s_cmp_lg_u32 s41, {ph}\ns_cbranch_scc1 {E}_ph{ph+1}")
        for tt in range(2):
            i = 0
            while i < 8:
                ig = ph + i; mm, f = divmod(ig, 5)
                r = P[tt] + 2 * i
                if f == 2:
                    A(f"buffer_store_dwordx2 {vr(r,2)}, v6, s[44:47], s{64+2*mm} offen offset:{tt*2560}"); i += 1
                else:
                    hd = 2 * mm + (1 if f >= 3 else 0); sub = f % 3
                    if sub == 0 and i < 7:
                        A(f"buffer_store_dwordx4 {vr(r,4)}, v5, s[44:47], s{64+hd} offen offset:{tt*2560}"); i += 2
                    else:
                        A(f"buffer_store_dwordx2 {vr(r,2)}, v5, s[44:47], s{64+hd} offen offset:{tt*2560+8*sub}"); i += 1
        A(f"s_branch {E}_w2")
        if ph < 4: A(f"{E}_ph{ph+1}:")
    A(f"{E}_vloop:")
    loop(True); stats(True)
    A(f"""
s_cmp_ge_u32 s53, s18
s_cbranch_scc1 {E}_w2
s_lshl_b32 s30, s29, 8
v_lshl_add_u32 v5, v2, 2, s30
v_lshl_add_u32 v6, v3, 4, s30
ds_write_b32 v5, v164 offset:{RB}
""")
    for tt in range(2):
        for q in range(4):
            A(f"ds_read_b128 {vr(56+16*tt+4*q,4)}, v6 offset:{RB + tt*128 + q*32}")
    A(f"""
s_sub_u32 s30, s54, 20
s_lshl_b32 s30, s30, 6
v_mul_u32_u24 v9, 320, v3
s_mul_i32 s31, s39, 2560
s_add_u32 s31, s31, {KVF + 1280}
""")
    for ct in range(2):
        A(f"""
v_add_u32 v5, s30, v4
v_add_u32 v5, {32*ct}, v5
v_mul_u32_u24 v7, 3277, v5
v_lshrrev_b32 v7, 16, v7
v_mul_u32_u24 v8, 20, v7
v_sub_u32 v5, v5, v8
v_mul_u32_u24 v7, {HSTRIDE}, v7
v_lshl_add_u32 v5, v5, 4, v9
v_add_u32 v{16+ct}, v5, v7
""")
    A("s_waitcnt lgkmcnt(0)")
    for (ct, tt) in order:
        a = acc(ct, tt)
        for k in range(8): A(f"v_pk_mul_f32 {vr(a+2*k,2)}, {vr(a+2*k,2)}, {vr(56+16*tt+2*k,2)}")
        for k in range(8): A(f"v_cvt_pk_bf16_f32 v{a+k}, v{a+2*k}, v{a+2*k+1}")
        for j in range(2): A(f"buffer_store_dwordx4 {vr(a+4*j,4)}, v{16+ct}, s[44:47], s31 offen offset:{tt*2560+j*640}")
    A(f"""
{E}_w2:
s_cmp_ge_u32 s58, 1080
s_cbranch_scc1 {E}_end
s_mov_b32 s30, 0x05040100
s_mov_b32 s31, 0x07060302
v_bfe_u32 v5, v2, 4, 1
v_and_b32 v6, 15, v2
v_lshlrev_b32 v5, 10, v5
v_lshl_add_u32 v5, v6, 5, v5
v_lshl_add_u32 v5, v3, 9, v5
s_lshl_b32 s33, s60, 11
s_add_u32 s33, s33, s61
s_add_u32 s33, s33, {W2F}
""")
    for k in range(4): A(f"v_perm_b32 v{172+k}, v{41+2*k}, v{40+2*k}, s30")
    for k in range(4): A(f"v_perm_b32 v{176+k}, v{41+2*k}, v{40+2*k}, s31")
    A(f"""
buffer_store_dwordx4 v[172:175], v5, s[44:47], s33 offen
buffer_store_dwordx4 v[176:179], v5, s[44:47], s33 offen offset:16
{E}_end:
s_endpgm
""")
    A.end(name, 184, 80)
```

```python
from asmlib import *
from layout import *

NP = 4
OFFS = 96.0
B2T, B3T = 3, 11
T1, T2 = 40, 44
FB2, FB3 = 2, 6

def gen_k2(A, name="k2_kernel", P=None):
    P = dict(dict(B2T=B2T, B3T=B3T, T1=T1, T2=T2, FB2=FB2, FB3=FB3, prio_ffn=3, prio_a=0, prio_b=0, offs=OFFS), **(P or {}))
    A.begin(name)
    E = f"L_{name}"
    A(f"""
s_cmp_ge_u32 s2, 256
s_cbranch_scc1 {E}_end
s_load_dwordx2 s[12:13], s[0:1], 64
v_lshrrev_b32 v1, 6, v0
v_and_b32 v2, 63, v0
s_and_b32 s40, s2, 7
s_lshr_b32 s41, s2, 3
v_readfirstlane_b32 s29, v1
v_lshlrev_b32 v5, 4, v2
v_lshrrev_b32 v3, 5, v2
v_and_b32 v4, 31, v2
s_mov_b32 s46, {WS_BYTES}
s_mov_b32 s47, 0x20000
s_cmp_ge_u32 s29, 8
s_cbranch_scc1 {E}_ffn
s_lshl_b32 s14, s40, 2
s_lshr_b32 s15, s41, 3
s_add_u32 s14, s14, s15
s_and_b32 s15, s41, 7
s_lshl_b32 s15, s15, 3
s_add_u32 s15, s15, s29
s_mul_i32 s16, s14, {HSTRIDE}
s_lshl_b32 s17, s29, 10
s_add_u32 s18, s16, {KVF}
s_add_u32 s19, s18, s17
s_mul_i32 s20, s15, 2560
s_add_u32 s20, s20, s16
s_add_u32 s20, s20, {QF}
v_lshlrev_b32 v6, 3, v4
s_waitcnt lgkmcnt(0)
s_mov_b32 s44, s12
s_mov_b32 s45, s13
""")
    def dma(i):
        A(f"s_add_u32 m0, s17, {i*8192}\ns_add_u32 s21, s19, {i*8192}\nbuffer_load_dwordx4 v5, s[44:47], s21 offen lds")
    QM, QR, KM, KR, V0, V1 = 8, 12, 16, 20, 24, 28
    S = [32, 48]; O = 64; CB = 80
    dma(0); dma(1)
    A(f"buffer_load_dwordx4 {vr(QM,4)}, v5, s[44:47], s20 offen")
    A(f"buffer_load_dwordx2 {vr(QR,2)}, v6, s[44:47], s20 offen offset:1024")
    for i in range(2, 20): dma(i)
    A(f"""
v_mul_u32_u24 v7, 320, v3
v_lshl_add_u32 v7, v4, 4, v7
v_add_u32 v7, 1280, v7
v_add_u32 v6, 1024, v6
v_mov_b32 v1, 0x3f803f80
v_cmp_eq_u32 vcc, 20, v4
v_cmp_gt_u32 s[22:23], 20, v4
v_cmp_gt_u32 s[24:25], 32, v2
""")
    for i in range(8): A(f"v_cndmask_b32 v{V0+i}, 0, v1, vcc")
    if P["prio_a"] or P["prio_b"]:
        A(f"s_cmp_ge_u32 s29, 4\ns_cbranch_scc1 {E}_pb\ns_setprio {P['prio_a']}\ns_branch {E}_pc\n{E}_pb:\ns_setprio {P['prio_b']}\n{E}_pc:")
    A("s_waitcnt vmcnt(18)\ns_barrier")
    A(f"v_cndmask_b32 v{QR}, 0, v{QR}, s[24:25]\nv_cndmask_b32 v{QR+1}, 0, v{QR+1}, s[24:25]")
    base = [0]
    def off(t, extra=0):
        o = (t - base[0]) * 2560 + extra
        assert 0 <= o < 65536
        return o
    def kread(t, km=KM, kr=KR):
        A(f"ds_read_b128 {vr(km,4)}, v5 offset:{off(t)}\nds_read_b64 {vr(kr,2)}, v6 offset:{off(t)}")
    def vread(t):
        A(f"s_mov_b64 exec, s[22:23]\nds_read_b128 {vr(V0,4)}, v7 offset:{off(t)}\nds_read_b128 {vr(V1,4)}, v7 offset:{off(t,640)}\ns_mov_b64 exec, -1")
    for t in range(NP): kread(t, CB + 4 * t, 96 + 2 * t)
    for t in range(NP):
        A(f"s_waitcnt lgkmcnt({2*(NP-1-t)})")
        dst = [S[0], S[1], O, 104][t]
        A(f"v_mfma_f32_32x32x16_bf16 {vr(dst,16)}, {vr(CB+4*t,4)}, {vr(QM,4)}, 0")
        A(f"v_mfma_f32_32x32x8_bf16 {vr(dst,16)}, {vr(96+2*t,2)}, {vr(QR,2)}, {vr(dst,16)}")
    kread(0)
    for t in range(NP):
        dst = [S[0], S[1], O, 104][t]
        for k in range(8):
            if t == 0 and k == 0: A(f"v_max_f32 v1, v{dst}, v{dst+1}")
            else: A(f"v_max3_f32 v1, v1, v{dst+2*k}, v{dst+2*k+1}")
    A(f"""
v_mov_b32 v14, v1
s_mov_b32 s26, {f32bits(P['offs'])}
v_permlane32_swap_b32 v1, v14
v_max_f32 v1, v1, v14
v_add_f32 v1, s26, v1
""")
    for i in range(16): A(f"v_sub_f32 v{CB+i}, 0, v1")
    def M1(t): A(f"v_mfma_f32_32x32x16_bf16 {vr(S[t&1],16)}, {vr(KM,4)}, {vr(QM,4)}, {vr(CB,16)}")
    def M2(t): A(f"v_mfma_f32_32x32x8_bf16 {vr(S[t&1],16)}, {vr(KR,2)}, {vr(QR,2)}, {vr(S[t&1],16)}")
    def Ex(t, *idx):
        for i in idx: A(f"v_exp_f32 v{S[t&1]+i}, v{S[t&1]+i}")
    def Cv(t, *idx):
        for k in idx:
            d = S[t & 1] + (k & 3) + 8 * (k >> 2)
            A(f"v_cvt_pk_bf16_f32 v{d}, v{S[t&1]+2*k}, v{S[t&1]+2*k+1}")
    def sync_for(t):
        if t == P["B2T"] + 2: A("s_waitcnt vmcnt(14)\ns_barrier")
        if t == P["B3T"] + 2: A("s_waitcnt vmcnt(0)\ns_barrier")
    A("s_waitcnt lgkmcnt(0)")
    M1(0); M2(0); kread(1); vread(0)
    Ex(0, 0, 1, 2, 3)
    NT = 64
    for t in range(NT):
        last = t == NT - 1
        if t in (P["T1"], P["T2"]): A("s_barrier")
        if not last:
            A("s_waitcnt lgkmcnt(2)"); M1(t + 1)
        Ex(t, 4, 5); Cv(t, 0, 1); Ex(t, 6, 7)
        if not last:
            M2(t + 1)
            if t + 2 < NT:
                if (t + 2 - base[0]) * 2560 + 1920 >= 65536:
                    d = (t + 1 - base[0]) * 2560
                    A(f"v_add_u32 v5, {d}, v5\nv_add_u32 v6, {d}, v6\nv_add_u32 v7, {d}, v7")
                    base[0] = t + 1
                sync_for(t + 2)
                kread(t + 2)
        Cv(t, 2, 3); Ex(t, 8, 9, 10, 11)
        A(f"s_waitcnt lgkmcnt({2 if t + 2 < NT else 0})")
        c = "0" if t == 0 else vr(O, 16)
        A(f"v_mfma_f32_32x32x16_bf16 {vr(O,16)}, {vr(V0,4)}, {vr(S[t&1],4)}, {c}")
        Ex(t, 12, 13); Cv(t, 4); Ex(t, 14, 15); Cv(t, 5, 6, 7)
        if not last: Ex(t + 1, 0, 1)
        A(f"v_mfma_f32_32x32x16_bf16 {vr(O,16)}, {vr(V1,4)}, {vr(S[t&1]+8,4)}, {vr(O,16)}")
        if not last:
            vread(t + 1)
            Ex(t + 1, 2, 3)
    A("v_mov_b32 v1, 0\ns_movk_i32 s26, 0x207")
    for i in range(12): A(f"v_fma_f32 v1, v{O+i}, 0, v1")
    A(f"""
v_cmp_class_f32 vcc, v1, s26
s_cbranch_vccnz {E}_fb
{E}_epi:
v_mov_b32 v14, v{O+8}
v_mov_b32 v15, v{O+8}
s_mul_i32 s26, s14, 5
v_add_u32 v16, s26, v3
v_permlane32_swap_b32 v14, v15
v_rcp_f32 v14, v15
v_lshrrev_b32 v17, 4, v4
v_mul_u32_u24 v17, 20480, v17
v_and_b32 v18, 15, v4
v_lshl_add_u32 v17, v18, 4, v17
s_mul_i32 s26, s15, 40960
s_add_u32 s26, s26, {OF}
""")
    for a in range(3):
        for k in range(2): A(f"v_pk_mul_f32 {vr(O+4*a+2*k,2)}, {vr(O+4*a+2*k,2)}, v[14:15] op_sel_hi:[1,0]")
        A(f"""
v_add_u32 v18, {2*a}, v16
v_lshrrev_b32 v19, 3, v18
v_lshl_add_u32 v19, v19, 10, v17
v_and_b32 v20, 3, v18
v_lshl_add_u32 v19, v20, 8, v19
v_bfe_u32 v20, v18, 2, 1
v_lshl_add_u32 v{24+a}, v20, 3, v19
v_cvt_pk_bf16_f32 v{O+4*a}, v{O+4*a}, v{O+4*a+1}
v_cvt_pk_bf16_f32 v{O+4*a+1}, v{O+4*a+2}, v{O+4*a+3}
""")
        if a == 2: A("s_mov_b64 exec, s[24:25]")
        A(f"buffer_store_dwordx2 {vr(O+4*a,2)}, v{24+a}, s[44:47], s26 offen")
    A("s_endpgm")
    A(f"""
{E}_fb:
v_lshlrev_b32 v5, 4, v2
v_lshlrev_b32 v6, 3, v4
v_mul_u32_u24 v7, 320, v3
v_lshl_add_u32 v7, v4, 4, v7
v_mov_b32 v1, 0xff800000
s_mov_b32 s26, s18
s_mov_b32 s27, 64
{E}_fb1:
buffer_load_dwordx4 {vr(KM,4)}, v5, s[44:47], s26 offen
buffer_load_dwordx2 {vr(KR,2)}, v6, s[44:47], s26 offen offset:1024
s_waitcnt vmcnt(0)
v_mfma_f32_32x32x16_bf16 {vr(S[0],16)}, {vr(KM,4)}, {vr(QM,4)}, 0
v_mfma_f32_32x32x8_bf16 {vr(S[0],16)}, {vr(KR,2)}, {vr(QR,2)}, {vr(S[0],16)}
""")
    for k in range(8): A(f"v_max3_f32 v1, v1, v{S[0]+2*k}, v{S[0]+2*k+1}")
    A(f"""
s_add_u32 s26, s26, 2560
s_sub_u32 s27, s27, 1
s_cmp_lg_u32 s27, 0
s_cbranch_scc1 {E}_fb1
v_mov_b32 v14, v1
v_permlane32_swap_b32 v1, v14
v_max_f32 v1, v1, v14
""")
    for i in range(16): A(f"v_sub_f32 v{CB+i}, 0, v1\nv_mov_b32 v{O+i}, 0")
    A(f"""
s_mov_b32 s26, s18
s_mov_b32 s27, 64
{E}_fb2:
buffer_load_dwordx4 {vr(KM,4)}, v5, s[44:47], s26 offen
buffer_load_dwordx2 {vr(KR,2)}, v6, s[44:47], s26 offen offset:1024
s_mov_b64 exec, s[22:23]
buffer_load_dwordx4 {vr(V0,4)}, v7, s[44:47], s26 offen offset:1280
buffer_load_dwordx4 {vr(V1,4)}, v7, s[44:47], s26 offen offset:1920
s_mov_b64 exec, -1
s_waitcnt vmcnt(0)
""")
    M1(0); M2(0)
    Ex(0, *range(16)); Cv(0, *range(8))
    A(f"""
v_mfma_f32_32x32x16_bf16 {vr(O,16)}, {vr(V0,4)}, {vr(S[0],4)}, {vr(O,16)}
v_mfma_f32_32x32x16_bf16 {vr(O,16)}, {vr(V1,4)}, {vr(S[0]+8,4)}, {vr(O,16)}
s_add_u32 s26, s26, 2560
s_sub_u32 s27, s27, 1
s_cmp_lg_u32 s27, 0
s_cbranch_scc1 {E}_fb2
s_nop 15
s_branch {E}_epi
""")
    A(f"""
{E}_ffn:
s_setprio {P['prio_ffn']}
s_sub_u32 s29, s29, 8
s_lshr_b32 s14, s40, 1
s_lshl_b32 s14, s14, 4
s_and_b32 s15, s41, 15
s_add_u32 s14, s14, s15
s_and_b32 s15, s40, 1
s_lshl_b32 s15, s15, 1
s_lshr_b32 s16, s41, 4
s_add_u32 s15, s15, s16
s_mul_i32 s16, s14, 108
s_add_u32 s16, s16, s29
s_lshl_b32 s16, s16, 10
s_add_u32 s16, s16, {HF}
s_mul_i32 s17, s29, 20
s_mul_i32 s18, s15, 5
s_add_u32 s17, s17, s18
s_lshl_b32 s17, s17, 10
s_add_u32 s17, s17, {W2F}
v_add_u32 v6, 4096, v5
s_lshl_b32 s18, s14, 7
s_add_u32 s18, s18, {RS}
v_lshlrev_b32 v7, 2, v4
s_waitcnt lgkmcnt(0)
s_mov_b32 s44, s12
s_mov_b32 s45, s13
buffer_load_dword v8, v7, s[44:47], s18 offen
""")
    ACC = 88
    def fload(i):
        b = 16 + 24 * (i % 3)
        A(f"buffer_load_dwordx4 {vr(b,4)}, v5, s[44:47], s16 offen")
        for t in range(4): A(f"buffer_load_dwordx4 {vr(b+4+4*t,4)}, v5, s[44:47], s17 offen offset:{t*1024}")
        A(f"buffer_load_dwordx4 {vr(b+20,4)}, v6, s[44:47], s17 offen")
        A("s_add_u32 s16, s16, 4096\ns_add_u32 s17, s17, 81920")
    for i in range(3): fload(i)
    A("s_barrier")
    for i in range(27):
        if i in (P["FB2"], P["FB3"]): A("s_barrier")
        b = 16 + 24 * (i % 3)
        A(f"s_waitcnt vmcnt({6 * min(2, 26 - i)})")
        for t in range(5):
            c = "0" if i == 0 else vr(ACC + 16 * t, 16)
            A(f"v_mfma_f32_32x32x16_bf16 {vr(ACC+16*t,16)}, {vr(b+4+4*t,4)}, {vr(b,4)}, {c}")
        if i + 3 < 27: fload(i + 3)
    A(f"""
s_mul_i32 s16, s29, 20480
s_lshl_b32 s17, s29, 10
v_add_u32 v6, s16, v5
v_add_u32 v9, s17, v5
v_add_u32 v10, 40960, v9
s_barrier
""")
    for t in range(5):
        for q in range(4): A(f"ds_write_b128 v6, {vr(ACC+16*t+4*q,4)} offset:{(t*4+q)*1024}")
    A("s_waitcnt lgkmcnt(0)\ns_barrier")
    A(f"""
v_mul_u32_u24 v11, 1280, v4
v_lshl_add_u32 v11, v3, 3, v11
s_mul_i32 s16, s14, 40960
s_mul_i32 s17, s15, 320
s_add_u32 s16, s16, s17
s_lshl_b32 s17, s29, 4
s_add_u32 s16, s16, s17
s_add_u32 s16, s16, {FF}
""")
    def rr(t):
        for jj in range(4):
            A(f"ds_read_b128 {vr(16+16*t+4*jj,4)}, v{9 + (jj >> 1)} offset:{(jj & 1) * 20480 + t * 4096}")
    rr(0); rr(1); rr(2)
    for t in range(5):
        b = 16 + 16 * t
        A(f"s_waitcnt lgkmcnt({4 * min(2, 4 - t)})")
        if t + 3 < 5: pass
        for k in range(2):
            A(f"v_pk_add_f32 {vr(b+2*k,2)}, {vr(b+2*k,2)}, {vr(b+4+2*k,2)}")
            A(f"v_pk_add_f32 {vr(b+8+2*k,2)}, {vr(b+8+2*k,2)}, {vr(b+12+2*k,2)}")
        if t + 3 < 5: rr(t + 3)
        for k in range(2): A(f"v_pk_add_f32 {vr(b+2*k,2)}, {vr(b+2*k,2)}, {vr(b+8+2*k,2)}")
        for k in range(2): A(f"v_pk_mul_f32 {vr(b+2*k,2)}, {vr(b+2*k,2)}, v[8:9] op_sel_hi:[1,0]")
        A(f"v_cvt_pk_bf16_f32 v{b}, v{b}, v{b+1}\nv_cvt_pk_bf16_f32 v{b+1}, v{b+2}, v{b+3}")
        A(f"buffer_store_dwordx2 {vr(b,2)}, v11, s[44:47], s16 offen offset:{t*64}")
    A(f"{E}_end:\ns_endpgm")
    A.end(name, 168, 64)
```

```python
from asmlib import *
from layout import *

def gen_k3(A, name="k3_kernel"):
    A.begin(name)
    E = f"L_{name}"
    A(f"""
s_cmp_ge_u32 s2, 256
s_cbranch_scc1 {E}_end
s_load_dwordx2 s[4:5], s[0:1], 0
s_load_dwordx2 s[6:7], s[0:1], 16
s_load_dwordx2 s[8:9], s[0:1], 48
s_load_dwordx2 s[12:13], s[0:1], 64
v_lshrrev_b32 v1, 6, v0
v_and_b32 v2, 63, v0
s_and_b32 s40, s2, 7
s_lshr_b32 s41, s2, 3
v_readfirstlane_b32 s29, v1
s_lshr_b32 s14, s40, 1
s_lshl_b32 s14, s14, 3
s_and_b32 s15, s41, 7
s_add_u32 s14, s14, s15
s_and_b32 s15, s40, 1
s_lshl_b32 s15, s15, 2
s_lshr_b32 s16, s41, 3
s_add_u32 s15, s15, s16
s_mov_b32 s22, 819200
s_mov_b32 s23, 0x20000
s_mov_b32 s46, {WS_BYTES}
s_mov_b32 s47, 0x20000
s_mov_b32 s26, 2621440
s_mov_b32 s27, 0x20000
s_mov_b32 s50, 2621440
s_mov_b32 s51, 0x20000
""")
    for c in range(5):
        A(f"""
v_add_u32 v3, {64*c}, v2
v_mul_u32_u24 v4, 6554, v3
v_lshrrev_b32 v4, 16, v4
v_mul_u32_u24 v5, 10, v4
v_sub_u32 v3, v3, v5
v_mul_u32_u24 v4, 1280, v4
v_lshl_add_u32 v{10+c}, v3, 4, v4
""")
    A(f"""
s_mul_i32 s16, s29, 40960
s_mul_i32 s17, s15, 160
s_add_u32 s16, s16, s17
s_mul_i32 s18, s29, 5120
s_lshl_b32 s19, s14, 2
s_add_u32 s19, s19, s29
s_mul_i32 s30, s19, 20480
s_add_u32 s31, s30, {OF}
s_add_u32 s30, s30, s17
s_add_u32 s32, s30, {FF}
v_lshlrev_b32 v15, 4, v2
s_waitcnt lgkmcnt(0)
s_mov_b32 s20, s6
s_mov_b32 s21, s7
s_mov_b32 s44, s12
s_mov_b32 s45, s13
s_mov_b32 s24, s4
s_mov_b32 s25, s5
s_mov_b32 s48, s8
s_mov_b32 s49, s9
""")
    OB = 80
    for r in range(5):
        for c in range(5):
            A(f"s_add_u32 m0, s18, {r*20480 + c*1024}\nbuffer_load_dwordx4 v{10+c}, s[20:23], s16 offen lds")
        for k in range(4):
            A(f"buffer_load_dwordx4 {vr(OB+16*r+4*k,4)}, v15, s[44:47], s31 offen offset:{k*1024}")
        if r < 4: A("s_add_u32 s16, s16, 163840\ns_add_u32 s31, s31, 4096")
    A("""
v_and_b32 v3, 15, v2
v_lshrrev_b32 v4, 4, v2
v_mul_u32_u24 v5, 1280, v3
v_lshl_add_u32 v9, v4, 3, v5
""")
    for t in range(5): A(f"buffer_load_dwordx2 {vr(160+2*t,2)}, v9, s[24:27], s30 offen offset:{t*32}")
    for t in range(5): A(f"buffer_load_dwordx2 {vr(170+2*t,2)}, v9, s[44:47], s32 offen offset:{t*32}")
    A("""
v_lshrrev_b32 v5, 2, v2
v_mul_u32_u24 v5, 160, v5
v_and_b32 v6, 3, v2
v_lshl_add_u32 v7, v6, 3, v5
v_add_u32 v8, 51200, v7
""")
    AB = [16, 36]; ACC = 56
    def reads(ks, lo=0, hi=5):
        a = 7 if ks < 10 else 8
        o = (ks % 10) * 5120
        b = AB[ks & 1]
        for t in range(lo, hi):
            A(f"ds_read_b64_tr_b16 {vr(b+4*t,2)}, v{a} offset:{o+t*32}")
            A(f"ds_read_b64_tr_b16 {vr(b+4*t+2,2)}, v{a} offset:{o+t*32+2560}")
    A("s_waitcnt vmcnt(46)\ns_barrier")
    reads(0)
    for ks in range(20):
        b = AB[ks & 1]
        nxt = ks + 1 < 20
        if nxt and (ks + 1) % 4 == 0:
            r = (ks + 1) // 4
            A(f"s_waitcnt vmcnt({9*(4-r)+10})\ns_barrier")
        A("s_waitcnt lgkmcnt(4)")
        for t in range(5):
            if t == 3: A(f"s_waitcnt lgkmcnt({6 if nxt else 0})")
            c = "0" if ks == 0 else vr(ACC + 4 * t, 4)
            A(f"v_mfma_f32_16x16x32_bf16 {vr(ACC+4*t,4)}, {vr(b+4*t,4)}, {vr(OB+4*ks,4)}, {c}")
            if nxt and t == 0: reads(ks + 1, 0, 3)
            if nxt and t == 3: reads(ks + 1, 3, 5)
    A("s_waitcnt vmcnt(0)\ns_mov_b32 s33, 0xffff0000")
    for t in range(5):
        a = ACC + 4 * t; x = 160 + 2 * t; f = 170 + 2 * t; u = 16 + 8 * t
        for i in range(4): A(f"v_cvt_pk_bf16_f32 v{a+i}, 0, v{a+i}")
        for k in range(2):
            A(f"v_lshlrev_b32 v{u+2*k}, 16, v{x+k}\nv_and_b32 v{u+2*k+1}, s33, v{x+k}")
            A(f"v_lshlrev_b32 v{u+4+2*k}, 16, v{f+k}\nv_and_b32 v{u+4+2*k+1}, s33, v{f+k}")
        for k in range(2): A(f"v_pk_add_f32 {vr(a+2*k,2)}, {vr(a+2*k,2)}, {vr(u+2*k,2)}")
        for i in range(4): A(f"v_cvt_pk_bf16_f32 v{a+i}, 0, v{a+i}")
        for k in range(2): A(f"v_pk_add_f32 {vr(a+2*k,2)}, {vr(a+2*k,2)}, {vr(u+4+2*k,2)}")
        A(f"v_cvt_pk_bf16_f32 v{a}, v{a}, v{a+1}\nv_cvt_pk_bf16_f32 v{a+1}, v{a+2}, v{a+3}")
        A(f"buffer_store_dwordx2 {vr(a,2)}, v9, s[48:51], s30 offen offset:{t*32}")
    A(f"{E}_end:\ns_endpgm")
    A.end(name, 180, 64)
```

```python
import struct, math
HSTRIDE = 163840
QF  = 0
KVF = 0x500000
HF  = 0xA00000
W2F = 0x1100000
OF  = 0x1400000
FF  = 0x1700000
RS  = 0x1A00000
WS_BYTES = 0x1B00000
QSCALE = 20 ** -0.5 * math.log2(math.e)
def f32bits(x): return hex(struct.unpack("<I", struct.pack("<f", x))[0])
```

```python
import sys, json
from asmlib import *
from k1 import gen_k1
from k2 import gen_k2
from k3 import gen_k3
NAME = "parallel_sum__softmax_full_mha__dense_activation_relu__prompt"
def build(path, P2=None, extra=""):
    A = Asm()
    hdr = """; LN + MHA + ReLU-FFN parallel block, three launches (generated by a hand-written python emitter)
; @launch kernel=k1_kernel grid=(256,1,1) block=(512,1,1) lds=147456
; @launch kernel=k2_kernel grid=(256,1,1) block=(768,1,1) lds=163840
; @launch kernel=k3_kernel grid=(256,1,1) block=(256,1,1) lds=102400
""" + extra
    gen_k1(A); gen_k2(A, P=P2); gen_k3(A)
    open(path, "w").write(hdr + HEADER + A.text())
if __name__ == "__main__":
    build(sys.argv[1] if len(sys.argv) > 1 else f"cdna_kernels/{NAME}.s")
```

```python
import sys, json
from asmlib import *
from k1 import gen_k1
from k2 import gen_k2
from k3 import gen_k3
NAME = "parallel_sum__softmax_full_mha__dense_activation_relu__prompt"
PROF = 0x2000000
def add_prof(lines):
    out = []; k = -1; name = None
    for ln in lines:
        t = ln.strip()
        if t.endswith("_kernel:"):
            k += 1; name = t[:-1]
            out += [ln, "    s_memrealtime s[88:89]", "    s_memtime s[90:91]", "    v_lshrrev_b32 v1, 6, v0", "    s_nop 1", "    v_readfirstlane_b32 s98, v1"]
        elif t == "s_endpgm":
            out.append(f"    s_branch L_prof_{name}")
        elif t.startswith("; MARK"):
            i = int(t.split()[2])
            out += [f"    s_memtime s[{80+2*i}:{81+2*i}]", "    s_waitcnt lgkmcnt(0)"]
        elif t.startswith(".section .rodata"):
            out += [f"L_prof_{name}:"] + ["    " + x for x in f"""s_mov_b64 exec, -1
s_memrealtime s[92:93]
s_memtime s[94:95]
s_load_dwordx2 s[96:97], s[0:1], 64
s_lshl_b32 s99, s2, 4
s_add_u32 s99, s99, s98
s_add_u32 s99, s99, {k*8192}
s_lshl_b32 s99, s99, 5
s_add_u32 s99, s99, {PROF}
s_waitcnt lgkmcnt(0)
v_mov_b32 v1, s99
v_mov_b32 v4, s88
v_mov_b32 v5, s92
v_mov_b32 v6, s90
v_mov_b32 v7, s94
v_mov_b32 v8, s80
v_mov_b32 v9, s82
v_mov_b32 v10, s84
v_mov_b32 v11, s86
v_cmp_eq_u32 vcc, 0, v2
s_and_b64 exec, exec, vcc
s_cmp_ge_u32 s2, 256
s_cbranch_scc1 L_profe_{name}
global_store_dwordx4 v1, v[4:7], s[96:97]
global_store_dwordx4 v1, v[8:11], s[96:97] offset:16
s_and_b32 s99, s2, 0x1f
s_lshr_b32 s100, s2, 5
s_cmp_lg_u32 s99, s100
s_cbranch_scc1 L_profe_{name}
s_cmp_lg_u32 s98, {[7,7,3][k]}
s_cbranch_scc1 L_profe_{name}
s_load_dwordx2 s[96:97], s[0:1], 56
v_mov_b32 v1, 0
v_not_b32 v4, v4
v_sub_u32 v7, v7, v6
v_sub_u32 v8, v8, v6
v_sub_u32 v9, v9, v6
v_sub_u32 v10, v10, v6
v_sub_u32 v11, v11, v6
s_waitcnt lgkmcnt(0)
global_atomic_umax v1, v4, s[96:97]
global_atomic_umax v1, v5, s[96:97] offset:4
global_atomic_umax v1, v7, s[96:97] offset:8
global_atomic_umax v1, v8, s[96:97] offset:12
global_atomic_umax v1, v9, s[96:97] offset:16
global_atomic_umax v1, v10, s[96:97] offset:20
global_atomic_umax v1, v11, s[96:97] offset:24
s_cmp_lg_u32 s2, {0 if k == 2 else 999}
s_cbranch_scc1 L_profe_{name}
global_load_dwordx4 v[4:7], v1, s[96:97] offset:-1024
global_load_dwordx4 v[8:11], v1, s[96:97] offset:-512
global_load_dword v7, v1, s[96:97] offset:-1008
s_waitcnt vmcnt(0)
global_store_dwordx4 v1, v[4:7], s[96:97] offset:32
global_store_dwordx4 v1, v[8:11], s[96:97] offset:48
L_profe_{name}:
s_endpgm""".split("\n")] + [ln]
        elif t.startswith(".amdhsa_next_free_sgpr"):
            out.append(".amdhsa_next_free_sgpr 102")
        else: out.append(ln)
    return out
def build(path, P1=None, P2=None, P3=None, extra="", prof=False):
    A = Asm()
    hdr = """; LN + MHA + ReLU-FFN parallel block, three launches (generated by a hand-written python emitter)
; @launch kernel=k1_kernel grid=(256,1,1) block=(512,1,1) lds=147456
; @launch kernel=k2_kernel grid=(256,1,1) block=(768,1,1) lds=163840
; @launch kernel=k3_kernel grid=(256,1,1) block=(256,1,1) lds=102400
""" + extra
    gen_k1(A, P=P1); gen_k2(A, P=P2); gen_k3(A, P=P3)
    if prof: A.lines = add_prof(A.lines)
    open(path, "w").write(hdr + HEADER + A.text())
if __name__ == "__main__":
    build(f"cdna_kernels/{NAME}.s")
    build("cur.s")
    build("prof.s", prof=True)
```

```python
from asmlib import *
from layout import *

def gen_k1(A, name="k1_kernel", P=None):
    P = dict(dict(rot=1, st="", bar0=1, w2at=3), **(P or {}))
    ST = P["st"]
    A.begin(name)
    E = f"L_{name}"
    A(f"""
s_cmp_ge_u32 s2, 256
s_cbranch_scc1 {E}_end
s_load_dwordx4 s[4:7], s[0:1], 0
s_load_dwordx4 s[8:11], s[0:1], 32
s_load_dwordx2 s[12:13], s[0:1], 64
s_and_b32 s40, s2, 7
s_lshr_b32 s41, s2, 3
s_and_b32 s14, s40, 1
s_lshl_b32 s14, s14, 3
s_and_b32 s15, s41, 7
s_add_u32 s14, s14, s15
s_lshr_b32 s15, s40, 1
s_lshl_b32 s15, s15, 2
s_lshr_b32 s16, s41, 3
s_add_u32 s15, s15, s16
s_and_b32 s16, s15, 7
s_lshl_b32 s17, s16, 2
s_mul_i32 s18, s16, 3
s_cmp_lt_u32 s15, 8
s_cselect_b32 s19, 6, 3
s_add_u32 s18, s18, s19
s_min_u32 s17, s17, s18
s_cmp_lt_u32 s16, s19
s_cselect_b32 s18, 4, 3
v_lshrrev_b32 v1, 6, v0
v_and_b32 v2, 63, v0
s_mov_b32 s22, 2621440
v_readfirstlane_b32 s29, v1
s_mov_b32 s23, 0x20000
s_mov_b32 s27, 0x20000
s_cmp_lt_u32 s15, 8
s_mov_b32 s26, 2211840
s_cselect_b32 s26, 2457600, s26
s_mov_b32 s28, 3456
s_cselect_b32 s28, 3840, s28
v_lshrrev_b32 v3, 3, v2
s_lshl_b32 s30, s29, 4
s_lshl_b32 s31, s14, 7
s_add_u32 s30, s30, s31
v_add_u32 v3, s30, v3
v_lshrrev_b32 v4, 4, v2
v_and_b32 v5, 7, v2
v_xor_b32 v6, v5, v4
v_xor_b32 v7, 4, v6
s_movk_i32 s32, 1280
v_mul_lo_u32 v3, v3, s32
v_lshl_add_u32 v10, v6, 4, v3
v_lshl_add_u32 v11, v7, 4, v3
v_add_u32 v11, 10240, v11
v_lshrrev_b32 v3, 5, v2
v_and_b32 v4, 31, v2
v_lshlrev_b32 v5, 2, v3
v_xor_b32 v5, v4, v5
v_xor_b32 v6, 8, v5
s_lshl_b32 s30, s29, 3
v_add_u32 v3, s30, v3
v_mul_lo_u32 v3, v3, s28
s_lshl_b32 s31, s17, 7
v_add_u32 v3, s31, v3
v_lshl_add_u32 v12, v5, 4, v3
v_lshl_add_u32 v13, v6, 4, v3
s_lshl_b32 s33, s28, 1
v_add_u32 v13, s33, v13
s_lshl_b32 s33, s28, 2
v_add_u32 v14, s33, v12
v_add_u32 v15, s33, v13
s_lshl_b32 s33, s18, 3
v_mov_b32 v8, 0x7fffffff
v_cmp_gt_u32 vcc, s33, v5
v_cmp_gt_u32 s[42:43], s33, v6
s_lshl_b32 s34, s28, 6
s_and_b32 s35, s41, 7
s_lshr_b32 s36, s41, 3
s_mul_i32 s36, s36, 3
s_add_u32 s35, s35, s36
s_cmp_ge_u32 s35, 10
s_cselect_b32 s36, 10, 0
s_sub_u32 s35, s35, s36
s_mul_i32 s35, s35, %d
v_cndmask_b32 v12, v8, v12, vcc
v_cndmask_b32 v14, v8, v14, vcc
v_cndmask_b32 v13, v8, v13, s[42:43]
v_cndmask_b32 v15, v8, v15, s[42:43]
s_mul_i32 s36, s35, s34
s_lshl_b32 s35, s35, 7
s_lshl_b32 s37, s29, 11
s_lshl_b32 s38, s29, 12
s_add_u32 s38, s38, 16384
s_cmp_lt_u32 s15, 8
s_waitcnt lgkmcnt(0)
s_mov_b32 s20, s4
s_mov_b32 s21, s5
s_cselect_b32 s24, s6, s8
s_cselect_b32 s25, s7, s9
""" % P["rot"])
    def issue(slot):
        base = slot * 49152
        for j in range(2):
            A(f"s_add_u32 m0, s37, {base + j*1024}\nbuffer_load_dwordx4 v{10+j}, s[20:23], s35 offen lds")
        for j in range(4):
            A(f"s_add_u32 m0, s38, {base + j*1024}\nbuffer_load_dwordx4 v{12+j}, s[24:27], s36 offen lds")
        A("s_add_u32 s35, s35, 128\ns_add_u32 s36, s36, s34\ns_cmp_eq_u32 s35, 1280\ns_cselect_b32 s35, 0, s35\ns_cselect_b32 s36, 0, s36")
    issue(0)
    if P["bar0"]: A("s_barrier")
    issue(1); issue(2)
    A(f"""
s_mov_b32 s44, s12
s_mov_b32 s45, s13
s_mov_b32 s46, {WS_BYTES}
s_mov_b32 s47, 0x20000
s_mov_b32 s48, s10
s_mov_b32 s49, s11
s_mov_b32 s50, 2211840
s_mov_b32 s51, 0x20000
s_mul_i32 s57, s2, 5
s_add_u32 s57, s57, s29
s_cmp_lt_u32 s29, 5
s_cselect_b32 s58, s57, 2000
s_min_u32 s57, s57, 1079
s_mul_i32 s59, s57, 6554
s_lshr_b32 s59, s59, 16
s_mul_i32 s60, s59, 10
s_sub_u32 s60, s57, s60
s_mul_i32 s61, s59, 20480
s_lshl_b32 s62, s60, 7
s_add_u32 s62, s62, s61
s_add_u32 s63, s62, 10240
v_lshrrev_b32 v3, 5, v2
v_and_b32 v4, 31, v2
v_mul_u32_u24 v5, 5120, v3
v_lshl_add_u32 v54, v4, 2, v5
""")
    def w2loads():
        for j in range(8):
            A(f"buffer_load_dword v{40+j}, v54, s[48:51], s{62 + (j >> 2)} offen offset:{(j & 3) * 1280}")
    A("""
s_and_b32 s52, s29, 1
s_lshr_b32 s53, s29, 1
s_lshl_b32 s30, s52, 1
s_xor_b32 s30, s30, s53
s_add_u32 s54, s17, s53
s_mov_b32 s56, 0x3f803f80
s_lshl_b32 s31, s30, 1
v_bfe_u32 v5, v2, 1, 3
v_xor_b32 v5, v5, v3
v_xor_b32 v5, s31, v5
s_lshl_b32 s31, s52, 13
v_lshlrev_b32 v6, 7, v4
v_add_u32 v6, s31, v6
""")
    for pos in range(4):
        A(f"v_xor_b32 v7, {2*pos}, v5\nv_lshl_add_u32 v{16+pos}, v7, 4, v6\nv_add_u32 v{20+pos}, 98304, v{16+pos}")
    A("""
v_bfe_u32 v5, v2, 2, 2
v_lshl_add_u32 v6, v3, 3, v5
v_lshlrev_b32 v6, 9, v6
v_and_b32 v7, 1, v2
v_lshl_add_u32 v6, v7, 3, v6
v_add_u32 v6, 16384, v6
v_bfe_u32 v7, v2, 4, 1
v_bfe_u32 v8, v2, 1, 1
v_lshl_add_u32 v7, v7, 1, v8
s_lshl_b32 s31, s53, 3
v_add_u32 v7, s31, v7
v_lshlrev_b32 v5, 2, v5
v_xor_b32 v7, v7, v5
v_lshl_add_u32 v6, v7, 4, v6
v_xor_b32 v7, 64, v6
""")
    for pos in range(4):
        A(f"s_xor_b32 s31, s30, {pos}\ns_lshl_b32 s31, s31, 13")
        for t in range(2):
            A(f"v_add_u32 v{24+pos*2+t}, s31, v{6+t}\nv_add_u32 v{32+pos*2+t}, 98304, v{24+pos*2+t}")
    for i in range(48, 52): A(f"v_mov_b32 v{i}, 0")
    A("""
v_and_b32 v5, 15, v2
v_bfe_u32 v6, v2, 4, 1
v_cmp_eq_u32 vcc, v5, v6
v_mov_b32 v5, s56
s_mov_b32 s56, 0xffff0000
""")
    for i in range(4): A(f"v_cndmask_b32 v{88+i}, 0, v5, vcc")
    A(f"""
s_cmp_lt_u32 s15, 8
s_cselect_b32 s55, s54, 0
s_cmp_ge_u32 s55, 20
s_cbranch_scc1 {E}_vloop
""")
    FB = [56, 72]
    def acc(ct, tt): return 96 + (ct * 2 + tt) * 16
    XS = 49152; RB = 49152 + 4096; CS = 49152 + 8192
    def reads(p):
        s, pos = p >> 2, p & 3
        slot = s % 3; b = FB[p & 1]
        xa = (20 if slot == 2 else 16) + pos
        wa = (32 if slot == 2 else 24) + pos * 2
        off = 49152 if slot == 1 else 0
        A(f"ds_read_b128 v[{b}:{b+3}], v{xa} offset:{off}")
        A(f"ds_read_b64_tr_b16 v[{b+8}:{b+9}], v{wa} offset:{off}")
        A(f"ds_read_b64_tr_b16 v[{b+10}:{b+11}], v{wa} offset:{off+2048}")
        A(f"ds_read_b128 v[{b+4}:{b+7}], v{xa} offset:{off+4096}")
        A(f"ds_read_b64_tr_b16 v[{b+12}:{b+13}], v{wa+1} offset:{off}")
        A(f"ds_read_b64_tr_b16 v[{b+14}:{b+15}], v{wa+1} offset:{off+2048}")
    def loop(vmode):
        A("; MARK 0\ns_waitcnt vmcnt(12)\ns_barrier\n; MARK 1")
        reads(0)
        for p in range(40):
            s, pos = p >> 2, p & 3
            b = FB[p & 1]
            if pos == 3 and s < 9:
                n = 14 if s in (P["w2at"] + 1, P["w2at"] + 2) else (6 if s < 8 else 0)
                A(f"s_waitcnt vmcnt({n}) lgkmcnt(0)\ns_barrier")
                reads(p + 1)
                if s + 3 < 10: issue(s % 3)
                if s == P["w2at"]: w2loads()
            elif p == 38:
                reads(p + 1)
                A("s_waitcnt lgkmcnt(6)\ns_barrier")
                for c in range(4): A(f"ds_read_b64 v[{160+2*c}:{161+2*c}], v9 offset:{XS + c*512}")
                A(f"ds_read_b32 v52, v8 offset:{CS}\nds_read_b32 v53, v8 offset:{CS + 1024}")
            elif p == 39:
                A("s_waitcnt lgkmcnt(6)")
            else:
                reads(p + 1)
                A("s_waitcnt lgkmcnt(6)")
            dots = []
            if pos == 0:
                for i in range(4):
                    for tt in range(2):
                        x = b + 4 * tt + i; u = 180 + 2 * tt
                        dots.append(f"v_lshlrev_b32 v{u}, 16, v{x}")
                        dots.append(f"v_and_b32 v{u+1}, s56, v{x}")
                    for tt in range(2):
                        u = 180 + 2 * tt
                        for e in range(2):
                            dots.append(f"v_add_f32 v{48+2*tt}, v{48+2*tt}, v{u+e}")
                            dots.append(f"v_fmac_f32 v{49+2*tt}, v{u+e}, v{u+e}")
            extra = []
            if pos < 2:
                for ct in range(2):
                    c = "0" if p == 0 else vr(184 + 4 * ct, 4)
                    extra.append(f"v_mfma_f32_16x16x32_bf16 {vr(184+4*ct,4)}, {vr(b+8+4*ct,4)}, v[88:91], {c}")
            k = 0
            per = (len(dots) + 3) // 4
            for (ct, tt) in ((0, 0), (0, 1), (1, 1), (1, 0)):
                a = acc(ct, tt)
                c = "0" if p == 0 else vr(a, 16)
                w, x = vr(b + 8 + 4 * ct, 4), vr(b + 4 * tt, 4)
                if vmode: A(f"v_mfma_f32_32x32x16_bf16 {vr(a,16)}, {x}, {w}, {c}")
                else: A(f"v_mfma_f32_32x32x16_bf16 {vr(a,16)}, {w}, {x}, {c}")
                for d in dots[k:k + per]: A(d)
                k += per
            for d in extra: A(d)
            if p == 37:
                A(f"""
s_lshl_b32 s31, s52, 11
s_lshl_b32 s33, s53, 9
s_add_u32 s33, s33, s31
v_lshlrev_b32 v5, 3, v2
v_add_u32 v9, s31, v5
v_add_u32 v6, s33, v5
s_lshl_b32 s33, s29, 11
v_lshl_add_u32 v7, v2, 4, s33
s_lshl_b32 s33, s53, 12
v_lshl_add_u32 v8, v3, 11, s33
v_bfe_u32 v5, v2, 4, 1
v_lshl_add_u32 v8, v5, 4, v8
v_bfe_u32 v5, v2, 2, 2
v_lshl_add_u32 v8, v5, 8, v8
v_and_b32 v5, 3, v2
v_lshl_add_u32 v8, v5, 2, v8
v_permlane32_swap_b32 v48, v49
v_permlane32_swap_b32 v50, v51
v_add_f32 v48, v48, v49
v_add_f32 v49, v50, v51
ds_write_b128 v7, v[184:187] offset:{CS}
ds_write_b128 v7, v[188:191] offset:{CS + 1024}
ds_write_b64 v6, v[48:49] offset:{XS}
""")
    def stats(vmode):
        A("""
; MARK 2
s_waitcnt lgkmcnt(0)
v_pk_add_f32 v[160:161], v[160:161], v[162:163]
v_pk_add_f32 v[164:165], v[164:165], v[166:167]
v_pk_add_f32 v[160:161], v[160:161], v[164:165]
v_mov_b32 v162, v160
v_mov_b32 v163, v161
s_mov_b32 s30, 0x3acccccd
s_mov_b32 s31, 0x3727c5ac
v_permlane32_swap_b32 v160, v162
v_permlane32_swap_b32 v161, v163
""")
        for t in range(2):
            c = 52 + t; h = 170 + 4 * t
            A(f"""
v_mul_f32 v{160+t}, s30, v{160+t}
v_cvt_pk_bf16_f32 v{h+2}, 0, v{c}
v_mul_f32 v{164+t}, v{160+t}, v{160+t}
v_sub_f32 v{h+2}, v{c}, v{h+2}
v_fma_f32 v{162+t}, v{162+t}, s30, -v{164+t}
v_cvt_pk_bf16_f32 v{h+3}, 0, v{h+2}
v_max_f32 v{162+t}, 0, v{162+t}
v_sub_f32 v{h+3}, v{h+2}, v{h+3}
v_cvt_pk_bf16_f32 v{162+t}, 0, v{162+t}
v_cvt_pk_bf16_f32 v{h}, v{c}, v{h+2}
v_add_f32 v{162+t}, s31, v{162+t}
v_cvt_pk_bf16_f32 v{h+1}, v{h+3}, 0
v_cvt_pk_bf16_f32 v{162+t}, 0, v{162+t}
v_cvt_pk_bf16_f32 v{178+2*t}, -v{160+t}, -v{160+t}
v_sqrt_f32 v{162+t}, v{162+t}
v_cvt_pk_bf16_f32 v{179+2*t}, -v{160+t}, 0
""")
        for (ct, tt) in ((0, 0), (0, 1), (1, 1), (1, 0)):
            a = acc(ct, tt); w, x = vr(170 + 4 * ct, 2), vr(178 + 2 * tt, 2)
            if vmode: A(f"v_mfma_f32_32x32x8_bf16 {vr(a,16)}, {x}, {w}, {vr(a,16)}")
            else: A(f"v_mfma_f32_32x32x8_bf16 {vr(a,16)}, {w}, {x}, {vr(a,16)}")
        A("""
v_cvt_pk_bf16_f32 v162, 0, v162
v_cvt_pk_bf16_f32 v163, 0, v163
v_rcp_f32 v162, v162
v_rcp_f32 v163, v163
v_cmp_lt_u32 vcc, 31, v2
s_lshl_b32 s39, s14, 2
s_lshl_b32 s31, s52, 1
s_add_u32 s39, s39, s31
v_cndmask_b32 v164, v162, v163, vcc
""")
    order = ((0, 0), (0, 1), (1, 1), (1, 0))
    loop(False); stats(False)
    A(f"""
s_cmp_ge_u32 s53, s18
s_cbranch_scc1 {E}_w2
v_lshlrev_b32 v5, 4, v2
s_cmp_lt_u32 s15, 8
s_cbranch_scc1 {E}_qk
""")
    A(f"""
s_mul_i32 s30, s39, 108
s_lshl_b32 s31, s54, 2
s_add_u32 s30, s30, s31
s_lshl_b32 s30, s30, 10
s_add_u32 s30, s30, {HF}
s_add_u32 s31, s30, {108*1024}
""")
    for (ct, tt) in order:
        a = acc(ct, tt)
        for k in range(8): A(f"v_cvt_pk_bf16_f32 v{a+k}, v{a+2*k}, v{a+2*k+1}")
        for k in range(8): A(f"v_pk_max_i16 v{a+k}, v{a+k}, 0")
        for j in range(2): A(f"buffer_store_dwordx4 {vr(a+4*j,4)}, v5, s[44:47], s{30+tt} offen offset:{(ct*2+j)*1024}{ST}")
    A(f"""
s_cmp_lg_u32 s54, 0
s_cbranch_scc1 {E}_w2
s_lshl_b32 s30, s39, 7
s_add_u32 s30, s30, {RS}
v_lshlrev_b32 v5, 2, v2
buffer_store_dword v164, v5, s[44:47], s30 offen{ST}
s_branch {E}_w2
""")
    A(f"""
{E}_qk:
s_cmp_lt_u32 s54, 10
s_cselect_b32 s30, {f32bits(QSCALE)}, 1.0
s_cselect_b32 s31, 0, {KVF - QF}
s_cselect_b32 s33, 0, 10
s_sub_u32 s33, s54, s33
v_mul_f32 v162, s30, v162
v_mul_f32 v163, s30, v163
s_lshl_b32 s33, s33, 3
s_mul_i32 s40, s33, 205
s_lshr_b32 s40, s40, 10
s_mul_i32 s41, s40, 5
s_sub_u32 s41, s33, s41
s_mul_i32 s40, s40, {2*HSTRIDE}
s_add_u32 s31, s31, s40
s_mul_i32 s40, s39, 2560
s_add_u32 s64, s31, s40
v_mul_u32_u24 v6, {HSTRIDE}, v3
v_lshl_add_u32 v6, v4, 3, v6
v_add_u32 v6, 1024, v6
""")
    for i in range(1, 6): A(f"s_add_u32 s{64+i}, s{63+i}, {HSTRIDE}")
    PK = [56, 72]
    for (ct, tt) in order:
        a = acc(ct, tt)
        sel = "op_sel_hi:[1,0]" if tt == 0 else "op_sel:[0,1] op_sel_hi:[1,1]"
        for k in range(8): A(f"v_pk_mul_f32 {vr(a+2*k,2)}, {vr(a+2*k,2)}, v[162:163] {sel}")
        for k in range(8): A(f"v_cvt_pk_bf16_f32 v{PK[tt]+8*ct+k}, v{a+2*k}, v{a+2*k+1}")
    for ph in range(5):
        if ph < 4: A(f"s_cmp_lg_u32 s41, {ph}\ns_cbranch_scc1 {E}_ph{ph+1}")
        for tt in range(2):
            i = 0
            while i < 8:
                ig = ph + i; mm, f = divmod(ig, 5)
                r = PK[tt] + 2 * i
                if f == 2:
                    A(f"buffer_store_dwordx2 {vr(r,2)}, v6, s[44:47], s{64+2*mm} offen offset:{tt*2560}{ST}"); i += 1
                else:
                    hd = 2 * mm + (1 if f >= 3 else 0); sub = f % 3
                    if sub == 0 and i < 7:
                        A(f"buffer_store_dwordx4 {vr(r,4)}, v5, s[44:47], s{64+hd} offen offset:{tt*2560}{ST}"); i += 2
                    else:
                        A(f"buffer_store_dwordx2 {vr(r,2)}, v5, s[44:47], s{64+hd} offen offset:{tt*2560+8*sub}{ST}"); i += 1
        A(f"s_branch {E}_w2")
        if ph < 4: A(f"{E}_ph{ph+1}:")
    A(f"{E}_vloop:")
    loop(True); stats(True)
    A(f"""
s_cmp_ge_u32 s53, s18
s_cbranch_scc1 {E}_w2
s_lshl_b32 s30, s29, 8
v_lshl_add_u32 v5, v2, 2, s30
v_lshl_add_u32 v6, v3, 4, s30
ds_write_b32 v5, v164 offset:{RB}
""")
    for tt in range(2):
        for q in range(4):
            A(f"ds_read_b128 {vr(56+16*tt+4*q,4)}, v6 offset:{RB + tt*128 + q*32}")
    A(f"""
s_sub_u32 s30, s54, 20
s_lshl_b32 s30, s30, 6
v_mul_u32_u24 v9, 320, v3
s_mul_i32 s31, s39, 2560
s_add_u32 s31, s31, {KVF + 1280}
""")
    for ct in range(2):
        A(f"""
v_add_u32 v5, s30, v4
v_add_u32 v5, {32*ct}, v5
v_mul_u32_u24 v7, 3277, v5
v_lshrrev_b32 v7, 16, v7
v_mul_u32_u24 v8, 20, v7
v_sub_u32 v5, v5, v8
v_mul_u32_u24 v7, {HSTRIDE}, v7
v_lshl_add_u32 v5, v5, 4, v9
v_add_u32 v{16+ct}, v5, v7
""")
    A("s_waitcnt lgkmcnt(0)")
    for (ct, tt) in order:
        a = acc(ct, tt)
        for k in range(8): A(f"v_pk_mul_f32 {vr(a+2*k,2)}, {vr(a+2*k,2)}, {vr(56+16*tt+2*k,2)}")
        for k in range(8): A(f"v_cvt_pk_bf16_f32 v{a+k}, v{a+2*k}, v{a+2*k+1}")
        for j in range(2): A(f"buffer_store_dwordx4 {vr(a+4*j,4)}, v{16+ct}, s[44:47], s31 offen offset:{tt*2560+j*640}{ST}")
    A(f"""
{E}_w2:
; MARK 3
s_cmp_ge_u32 s58, 1080
s_cbranch_scc1 {E}_end
s_mov_b32 s30, 0x05040100
s_mov_b32 s31, 0x07060302
v_bfe_u32 v5, v2, 4, 1
v_and_b32 v6, 15, v2
v_lshlrev_b32 v5, 10, v5
v_lshl_add_u32 v5, v6, 5, v5
v_lshl_add_u32 v5, v3, 9, v5
s_lshl_b32 s33, s60, 11
s_add_u32 s33, s33, s61
s_add_u32 s33, s33, {W2F}
""")
    for k in range(4): A(f"v_perm_b32 v{172+k}, v{41+2*k}, v{40+2*k}, s30")
    for k in range(4): A(f"v_perm_b32 v{176+k}, v{41+2*k}, v{40+2*k}, s31")
    A(f"""
buffer_store_dwordx4 v[172:175], v5, s[44:47], s33 offen{ST}
buffer_store_dwordx4 v[176:179], v5, s[44:47], s33 offen offset:16{ST}
{E}_end:
s_endpgm
""")
    A.end(name, 192, 80)
```

```python
from asmlib import *
from layout import *

NP = 4
DEF = dict(offs=96.0, T1=5, T2=6, FB2=3, FB3=8, prio_ffn=3, prios=(2, 1, 1, 0), noffn=0, rot=1, frot=1, st="",
           order="M1 E8 E9 C0 C1 E10 E11 M2 K C2 C3 E12 E13 E14 E15 M3 C4 C5 N0 N1 C6 C7 N2 N3 M4 V N4 N5 N6 N7", npre=8)

def gen_k2(A, name="k2_kernel", P=None):
    P = dict(DEF, **(P or {}))
    ST = P["st"]
    A.begin(name)
    E = f"L_{name}"
    A(f"""
s_cmp_ge_u32 s2, 256
s_cbranch_scc1 {E}_end
s_load_dwordx2 s[12:13], s[0:1], 64
v_lshrrev_b32 v1, 6, v0
v_and_b32 v2, 63, v0
s_and_b32 s40, s2, 7
s_lshr_b32 s41, s2, 3
v_readfirstlane_b32 s29, v1
v_lshlrev_b32 v5, 4, v2
v_lshrrev_b32 v3, 5, v2
v_and_b32 v4, 31, v2
s_mov_b32 s46, {WS_BYTES}
s_mov_b32 s47, 0x20000
s_cmp_ge_u32 s29, 8
s_cbranch_scc1 {E}_ffn
s_lshl_b32 s14, s40, 2
s_lshr_b32 s15, s41, 3
s_add_u32 s14, s14, s15
s_and_b32 s19, s41, 7
s_lshl_b32 s15, s19, 3
s_add_u32 s15, s15, s29
s_mul_i32 s16, s14, {HSTRIDE}
s_lshl_b32 s17, s29, 10
s_add_u32 s18, s16, {KVF}
s_mul_i32 s19, s19, {20480 * P['rot']}
s_add_u32 s19, s19, s17
s_mul_i32 s20, s15, 2560
s_add_u32 s20, s20, s16
s_add_u32 s20, s20, {QF}
v_lshlrev_b32 v6, 3, v4
v_add_u32 v15, s18, v5
s_waitcnt lgkmcnt(0)
s_mov_b32 s44, s12
s_mov_b32 s45, s13
""")
    def dma(i):
        A(f"s_add_u32 m0, s17, {i*8192}\nbuffer_load_dwordx4 v15, s[44:47], s19 offen lds")
        if i < 19: A(f"s_add_u32 s19, s19, 8192\ns_cmp_ge_u32 s19, {HSTRIDE}\ns_cselect_b32 s21, {HSTRIDE}, 0\ns_sub_u32 s19, s19, s21")
    QM, QR, KM, KR, V0, V1 = 8, 12, 16, 20, 24, 28
    S = [32, 48]; O = 64; CB = 80
    dma(0)
    A(f"buffer_load_dwordx4 {vr(QM,4)}, v5, s[44:47], s20 offen")
    A(f"buffer_load_dwordx2 {vr(QR,2)}, v6, s[44:47], s20 offen offset:1024")
    dma(1)
    A(f"""
v_mul_u32_u24 v7, 320, v3
v_lshl_add_u32 v7, v4, 4, v7
v_add_u32 v7, 1280, v7
v_add_u32 v6, 1024, v6
v_mov_b32 v1, 0x3f803f80
v_cmp_eq_u32 vcc, 20, v4
v_cmp_gt_u32 s[22:23], 20, v4
v_cmp_gt_u32 s[24:25], 32, v2
""")
    for i in range(8): A(f"v_cndmask_b32 v{V0+i}, 0, v1, vcc")
    A("s_waitcnt vmcnt(0)\ns_barrier\n; MARK 0")
    def kread(o, km=KM, kr=KR):
        A(f"ds_read_b128 {vr(km,4)}, v5 offset:{o*2560}\nds_read_b64 {vr(kr,2)}, v6 offset:{o*2560}")
    def vread(o):
        A(f"s_mov_b64 exec, s[22:23]\nds_read_b128 {vr(V0,4)}, v7 offset:{o*2560}\nds_read_b128 {vr(V1,4)}, v7 offset:{o*2560+640}\ns_mov_b64 exec, -1")
    for t in range(NP): kread(t, CB + 4 * t, 96 + 2 * t)
    A(f"v_cndmask_b32 v{QR}, 0, v{QR}, s[24:25]\nv_cndmask_b32 v{QR+1}, 0, v{QR+1}, s[24:25]")
    dma(2); dma(3)
    for t in range(NP):
        A(f"s_waitcnt lgkmcnt({2*(NP-1-t)})")
        dst = [S[0], S[1], O, 104][t]
        A(f"v_mfma_f32_32x32x16_bf16 {vr(dst,16)}, {vr(CB+4*t,4)}, {vr(QM,4)}, 0")
        A(f"v_mfma_f32_32x32x8_bf16 {vr(dst,16)}, {vr(96+2*t,2)}, {vr(QR,2)}, {vr(dst,16)}")
    kread(0)
    dma(4); dma(5)
    for t in range(NP):
        dst = [S[0], S[1], O, 104][t]
        for k in range(8):
            if t == 0 and k == 0: A(f"v_max_f32 v1, v{dst}, v{dst+1}")
            else: A(f"v_max3_f32 v1, v1, v{dst+2*k}, v{dst+2*k+1}")
    A(f"""
v_mov_b32 v14, v1
s_mov_b32 s26, {f32bits(P['offs'])}
v_permlane32_swap_b32 v1, v14
v_max_f32 v1, v1, v14
v_add_f32 v1, s26, v1
""")
    for i in range(16): A(f"v_sub_f32 v{CB+i}, 0, v1")
    for i in range(16): A(f"v_mov_b32 v{O+i}, 0")
    def M1(t): A(f"v_mfma_f32_32x32x16_bf16 {vr(S[t&1],16)}, {vr(KM,4)}, {vr(QM,4)}, {vr(CB,16)}")
    def M2(t): A(f"v_mfma_f32_32x32x8_bf16 {vr(S[t&1],16)}, {vr(KR,2)}, {vr(QR,2)}, {vr(S[t&1],16)}")
    def Ex(t, *idx):
        for i in idx: A(f"v_exp_f32 v{S[t&1]+i}, v{S[t&1]+i}")
    def Cv(t, *idx):
        for k in idx:
            d = S[t & 1] + (k & 3) + 8 * (k >> 2)
            A(f"v_cvt_pk_bf16_f32 v{d}, v{S[t&1]+2*k}, v{S[t&1]+2*k+1}")
    A("; MARK 1\ns_waitcnt lgkmcnt(0)")
    M1(0); M2(0); kread(1); vread(0)
    Ex(0, *range(P["npre"]))
    def tile(t, hook=None):
        pr = P["prios"]
        if pr and (t == 0 or pr[t % len(pr)] != pr[(t - 1) % len(pr)]): A(f"s_setprio {pr[t % len(pr)]}")
        for tok in P["order"].split():
            if tok == "M1": A("s_waitcnt lgkmcnt(2)"); M1(t + 1)
            elif tok == "M2": M2(t + 1)
            elif tok == "M3": A(f"s_waitcnt lgkmcnt(2)\nv_mfma_f32_32x32x16_bf16 {vr(O,16)}, {vr(V0,4)}, {vr(S[t&1],4)}, {vr(O,16)}")
            elif tok == "M4": A(f"v_mfma_f32_32x32x16_bf16 {vr(O,16)}, {vr(V1,4)}, {vr(S[t&1]+8,4)}, {vr(O,16)}")
            elif tok == "K":
                kread(t + 2)
                if hook: hook(t)
            elif tok == "V": vread(t + 1)
            elif tok[0] == "E": Ex(t, int(tok[1:]))
            elif tok[0] == "N": Ex(t + 1, int(tok[1:]))
            elif tok[0] == "C": Cv(t, int(tok[1:]))
            else: raise ValueError(tok)
    adv = "v_add_u32 v5, 20480, v5\nv_add_u32 v6, 20480, v6\nv_add_u32 v7, 20480, v7"
    def hook0(t):
        dma(6 + t)
        if t == 3: A("s_waitcnt vmcnt(4)\ns_barrier")
    for t in range(8): tile(t, hook0)
    A(adv)
    def hook1(t):
        if t < 6: dma(14 + t)
        if t == 7: A("s_waitcnt vmcnt(6)\ns_barrier")
    for t in range(8): tile(t, hook1)
    A(adv)
    A(f"s_mov_b32 s27, 2\n{E}_loop:")
    A(f"""
s_cmp_eq_u32 s27, 4
s_cbranch_scc0 {E}_nm
; MARK 2
{E}_nm:
s_cmp_lt_u32 s27, {P['T1']}
s_cbranch_scc1 {E}_nb
s_cmp_gt_u32 s27, {P['T2']}
s_cbranch_scc1 {E}_nb
s_waitcnt vmcnt(0)
s_barrier
{E}_nb:
""")
    assert P["T2"] == P["T1"] + 1 and P["T1"] in (4, 5)
    for t in range(8): tile(t)
    A(adv)
    A(f"s_add_u32 s27, s27, 1\ns_cmp_lt_u32 s27, 8\ns_cbranch_scc1 {E}_loop")
    A("; MARK 3\ns_setprio 0\nv_mov_b32 v1, 0\ns_movk_i32 s26, 0x207\ns_waitcnt lgkmcnt(0)")
    for i in range(12): A(f"v_fma_f32 v1, v{O+i}, 0, v1")
    A(f"""
v_cmp_class_f32 vcc, v1, s26
s_cbranch_vccnz {E}_fb
{E}_epi:
v_mov_b32 v14, v{O+8}
v_mov_b32 v15, v{O+8}
s_mul_i32 s26, s14, 5
v_add_u32 v16, s26, v3
v_permlane32_swap_b32 v14, v15
v_rcp_f32 v14, v15
v_lshrrev_b32 v17, 4, v4
v_mul_u32_u24 v17, 20480, v17
v_and_b32 v18, 15, v4
v_lshl_add_u32 v17, v18, 4, v17
s_mul_i32 s26, s15, 40960
s_add_u32 s26, s26, {OF}
""")
    for a in range(3):
        for k in range(2): A(f"v_pk_mul_f32 {vr(O+4*a+2*k,2)}, {vr(O+4*a+2*k,2)}, v[14:15] op_sel_hi:[1,0]")
        A(f"""
v_add_u32 v18, {2*a}, v16
v_lshrrev_b32 v19, 3, v18
v_lshl_add_u32 v19, v19, 10, v17
v_and_b32 v20, 3, v18
v_lshl_add_u32 v19, v20, 8, v19
v_bfe_u32 v20, v18, 2, 1
v_lshl_add_u32 v{100+a}, v20, 3, v19
v_cvt_pk_bf16_f32 v{O+4*a}, v{O+4*a}, v{O+4*a+1}
v_cvt_pk_bf16_f32 v{O+4*a+1}, v{O+4*a+2}, v{O+4*a+3}
""")
        if a == 2: A("s_mov_b64 exec, s[24:25]")
        A(f"buffer_store_dwordx2 {vr(O+4*a,2)}, v{100+a}, s[44:47], s26 offen{ST}")
    A("s_endpgm")
    A(f"""
{E}_fb:
s_waitcnt lgkmcnt(0)
v_lshlrev_b32 v5, 4, v2
v_lshlrev_b32 v6, 3, v4
v_mul_u32_u24 v7, 320, v3
v_lshl_add_u32 v7, v4, 4, v7
v_mov_b32 v1, 0xff800000
s_mov_b32 s26, s18
s_mov_b32 s27, 64
{E}_fb1:
buffer_load_dwordx4 {vr(KM,4)}, v5, s[44:47], s26 offen
buffer_load_dwordx2 {vr(KR,2)}, v6, s[44:47], s26 offen offset:1024
s_waitcnt vmcnt(0)
v_mfma_f32_32x32x16_bf16 {vr(S[0],16)}, {vr(KM,4)}, {vr(QM,4)}, 0
v_mfma_f32_32x32x8_bf16 {vr(S[0],16)}, {vr(KR,2)}, {vr(QR,2)}, {vr(S[0],16)}
""")
    for k in range(8): A(f"v_max3_f32 v1, v1, v{S[0]+2*k}, v{S[0]+2*k+1}")
    A(f"""
s_add_u32 s26, s26, 2560
s_sub_u32 s27, s27, 1
s_cmp_lg_u32 s27, 0
s_cbranch_scc1 {E}_fb1
v_mov_b32 v14, v1
v_permlane32_swap_b32 v1, v14
v_max_f32 v1, v1, v14
""")
    for i in range(16): A(f"v_sub_f32 v{CB+i}, 0, v1\nv_mov_b32 v{O+i}, 0")
    A(f"""
s_mov_b32 s26, s18
s_mov_b32 s27, 64
{E}_fb2:
buffer_load_dwordx4 {vr(KM,4)}, v5, s[44:47], s26 offen
buffer_load_dwordx2 {vr(KR,2)}, v6, s[44:47], s26 offen offset:1024
s_mov_b64 exec, s[22:23]
buffer_load_dwordx4 {vr(V0,4)}, v7, s[44:47], s26 offen offset:1280
buffer_load_dwordx4 {vr(V1,4)}, v7, s[44:47], s26 offen offset:1920
s_mov_b64 exec, -1
s_waitcnt vmcnt(0)
""")
    M1(0); M2(0)
    Ex(0, *range(16)); Cv(0, *range(8))
    A(f"""
v_mfma_f32_32x32x16_bf16 {vr(O,16)}, {vr(V0,4)}, {vr(S[0],4)}, {vr(O,16)}
v_mfma_f32_32x32x16_bf16 {vr(O,16)}, {vr(V1,4)}, {vr(S[0]+8,4)}, {vr(O,16)}
s_add_u32 s26, s26, 2560
s_sub_u32 s27, s27, 1
s_cmp_lg_u32 s27, 0
s_cbranch_scc1 {E}_fb2
s_nop 15
s_branch {E}_epi
""")
    A(f"""
{E}_ffn:
s_setprio {P['prio_ffn']}
s_sub_u32 s29, s29, 8
s_lshr_b32 s14, s40, 1
s_lshl_b32 s14, s14, 4
s_and_b32 s19, s41, 15
s_add_u32 s14, s14, s19
s_and_b32 s15, s40, 1
s_lshl_b32 s15, s15, 1
s_lshr_b32 s16, s41, 4
s_add_u32 s15, s15, s16
s_mul_i32 s19, s19, 27
s_lshr_b32 s19, s19, 4
s_mul_i32 s19, s19, {P['frot']}
s_mul_i32 s20, s14, 108
s_add_u32 s20, s20, s29
s_lshl_b32 s20, s20, 10
s_add_u32 s20, s20, {HF}
s_mul_i32 s21, s29, 20
s_mul_i32 s18, s15, 5
s_add_u32 s21, s21, s18
s_lshl_b32 s21, s21, 10
s_add_u32 s21, s21, {W2F}
s_add_u32 s22, s20, {27*4096}
s_lshl_b32 s16, s19, 12
s_add_u32 s16, s16, s20
s_mul_i32 s17, s19, 81920
s_add_u32 s17, s17, s21
v_add_u32 v6, 4096, v5
s_lshl_b32 s18, s14, 7
s_add_u32 s18, s18, {RS}
v_lshlrev_b32 v7, 2, v4
s_waitcnt lgkmcnt(0)
s_mov_b32 s44, s12
s_mov_b32 s45, s13
s_barrier
; MARK 0
buffer_load_dword v8, v7, s[44:47], s18 offen
""")
    ACC = 88
    def fload(i):
        b = 16 + 24 * (i % 3)
        A(f"buffer_load_dwordx4 {vr(b,4)}, v5, s[44:47], s16 offen")
        for t in range(4): A(f"buffer_load_dwordx4 {vr(b+4+4*t,4)}, v5, s[44:47], s17 offen offset:{t*1024}")
        A(f"buffer_load_dwordx4 {vr(b+20,4)}, v6, s[44:47], s17 offen")
        A("s_add_u32 s16, s16, 4096\ns_add_u32 s17, s17, 81920\ns_cmp_eq_u32 s16, s22\ns_cselect_b32 s16, s20, s16\ns_cselect_b32 s17, s21, s17")
    for i in range(3): fload(i)
    for i in range(27):
        if i in (P["FB2"], P["FB3"]): A("s_barrier")
        if P["noffn"]: continue
        b = 16 + 24 * (i % 3)
        A(f"s_waitcnt vmcnt({6 * min(2, 26 - i)})")
        for t in range(5):
            c = "0" if i == 0 else vr(ACC + 16 * t, 16)
            A(f"v_mfma_f32_32x32x16_bf16 {vr(ACC+16*t,16)}, {vr(b+4+4*t,4)}, {vr(b,4)}, {c}")
        if i + 3 < 27: fload(i + 3)
        if i == 13: A("; MARK 1")
    A(f"""
s_mul_i32 s16, s29, 20480
s_lshl_b32 s17, s29, 10
v_add_u32 v6, s16, v5
v_add_u32 v9, s17, v5
v_add_u32 v10, 40960, v9
; MARK 2
s_barrier
""")
    for t in range(5):
        for q in range(4): A(f"ds_write_b128 v6, {vr(ACC+16*t+4*q,4)} offset:{(t*4+q)*1024}")
    A("s_waitcnt lgkmcnt(0)\ns_barrier\n; MARK 3")
    A(f"""
v_mul_u32_u24 v11, 1280, v4
v_lshl_add_u32 v11, v3, 3, v11
s_mul_i32 s16, s14, 40960
s_mul_i32 s17, s15, 320
s_add_u32 s16, s16, s17
s_lshl_b32 s17, s29, 4
s_add_u32 s16, s16, s17
s_add_u32 s16, s16, {FF}
""")
    def rr(t):
        for jj in range(4):
            A(f"ds_read_b128 {vr(16+16*t+4*jj,4)}, v{9 + (jj >> 1)} offset:{(jj & 1) * 20480 + t * 4096}")
    rr(0); rr(1); rr(2)
    for t in range(5):
        b = 16 + 16 * t
        A(f"s_waitcnt lgkmcnt({4 * min(2, 4 - t)})")
        for k in range(2):
            A(f"v_pk_add_f32 {vr(b+2*k,2)}, {vr(b+2*k,2)}, {vr(b+4+2*k,2)}")
            A(f"v_pk_add_f32 {vr(b+8+2*k,2)}, {vr(b+8+2*k,2)}, {vr(b+12+2*k,2)}")
        if t + 3 < 5: rr(t + 3)
        for k in range(2): A(f"v_pk_add_f32 {vr(b+2*k,2)}, {vr(b+2*k,2)}, {vr(b+8+2*k,2)}")
        for k in range(2): A(f"v_pk_mul_f32 {vr(b+2*k,2)}, {vr(b+2*k,2)}, v[8:9] op_sel_hi:[1,0]")
        A(f"v_cvt_pk_bf16_f32 v{b}, v{b}, v{b+1}\nv_cvt_pk_bf16_f32 v{b+1}, v{b+2}, v{b+3}")
        A(f"buffer_store_dwordx2 {vr(b,2)}, v11, s[44:47], s16 offen offset:{t*64}{ST}")
    A(f"{E}_end:\ns_endpgm")
    A.end(name, 168, 64)
```

```python
from asmlib import *
from layout import *

def gen_k3(A, name="k3_kernel", P=None):
    P = dict(dict(rot=1, st="", ahead=2), **(P or {}))
    ST = P["st"]
    A.begin(name)
    E = f"L_{name}"
    A(f"""
s_cmp_ge_u32 s2, 256
s_cbranch_scc1 {E}_end
s_load_dwordx2 s[4:5], s[0:1], 0
s_load_dwordx2 s[6:7], s[0:1], 16
s_load_dwordx2 s[8:9], s[0:1], 48
s_load_dwordx2 s[12:13], s[0:1], 64
v_lshrrev_b32 v1, 6, v0
v_and_b32 v2, 63, v0
s_and_b32 s40, s2, 7
s_lshr_b32 s41, s2, 3
v_readfirstlane_b32 s29, v1
s_lshr_b32 s14, s40, 1
s_lshl_b32 s14, s14, 3
s_and_b32 s34, s41, 7
s_add_u32 s14, s14, s34
s_and_b32 s15, s40, 1
s_lshl_b32 s15, s15, 2
s_lshr_b32 s16, s41, 3
s_add_u32 s15, s15, s16
s_add_u32 s34, s34, s16
s_mul_i32 s35, s34, 13
s_lshr_b32 s35, s35, 6
s_mul_i32 s35, s35, 5
s_sub_u32 s34, s34, s35
s_mul_i32 s34, s34, {P['rot']}
s_mov_b32 s22, 819200
s_mov_b32 s23, 0x20000
s_mov_b32 s46, {WS_BYTES}
s_mov_b32 s47, 0x20000
s_mov_b32 s26, 2621440
s_mov_b32 s27, 0x20000
s_mov_b32 s50, 2621440
s_mov_b32 s51, 0x20000
""")
    for c in range(5):
        A(f"""
v_add_u32 v3, {64*c}, v2
v_mul_u32_u24 v4, 6554, v3
v_lshrrev_b32 v4, 16, v4
v_mul_u32_u24 v5, 10, v4
v_sub_u32 v3, v3, v5
v_mul_u32_u24 v4, 1280, v4
v_lshl_add_u32 v{10+c}, v3, 4, v4
""")
    A(f"""
s_mul_i32 s36, s29, 40960
s_mul_i32 s17, s15, 160
s_add_u32 s36, s36, s17
s_mul_i32 s18, s29, 5120
s_lshl_b32 s19, s14, 2
s_add_u32 s19, s19, s29
s_mul_i32 s30, s19, 20480
s_add_u32 s37, s30, {OF}
s_add_u32 s30, s30, s17
s_add_u32 s32, s30, {FF}
s_add_u32 s38, s37, 20480
s_mul_i32 s16, s34, 163840
s_add_u32 s16, s16, s36
s_lshl_b32 s31, s34, 12
s_add_u32 s31, s31, s37
v_lshlrev_b32 v15, 4, v2
s_waitcnt lgkmcnt(0)
s_mov_b32 s20, s6
s_mov_b32 s21, s7
s_mov_b32 s44, s12
s_mov_b32 s45, s13
s_mov_b32 s24, s4
s_mov_b32 s25, s5
s_mov_b32 s48, s8
s_mov_b32 s49, s9
""")
    OB = 80
    def rnd(r):
        for c in range(5):
            A(f"s_add_u32 m0, s18, {r*20480 + c*1024}\nbuffer_load_dwordx4 v{10+c}, s[20:23], s16 offen lds")
        for k in range(4):
            A(f"buffer_load_dwordx4 {vr(OB+16*r+4*k,4)}, v15, s[44:47], s31 offen offset:{k*1024}")
        if r < 4: A("s_add_u32 s16, s16, 163840\ns_add_u32 s31, s31, 4096\ns_cmp_eq_u32 s31, s38\ns_cselect_b32 s16, s36, s16\ns_cselect_b32 s31, s37, s31")
    def xf():
        for t in range(5): A(f"buffer_load_dwordx2 {vr(160+2*t,2)}, v9, s[24:27], s30 offen offset:{t*32}")
        for t in range(5): A(f"buffer_load_dwordx2 {vr(170+2*t,2)}, v9, s[44:47], s32 offen offset:{t*32}")
    AH = P["ahead"]
    rnd(0)
    A("""
s_barrier
v_and_b32 v3, 15, v2
v_lshrrev_b32 v4, 4, v2
v_mul_u32_u24 v5, 1280, v3
v_lshl_add_u32 v9, v4, 3, v5
v_lshrrev_b32 v5, 2, v2
v_mul_u32_u24 v5, 160, v5
v_and_b32 v6, 3, v2
v_lshl_add_u32 v7, v6, 3, v5
v_add_u32 v8, 51200, v7
""")
    for r in range(1, AH): rnd(r)
    issued = [AH]
    cnt = lambda upto: sum(9 if i < 5 else 10 for i in range(upto))
    def more():
        if issued[0] < 5: rnd(issued[0])
        elif issued[0] == 5: xf()
        else: return
        issued[0] += 1
    AB = [16, 36]; ACC = 56
    def reads(ks, lo=0, hi=5):
        a = 7 if ks < 10 else 8
        o = (ks % 10) * 5120
        b = AB[ks & 1]
        for t in range(lo, hi):
            A(f"ds_read_b64_tr_b16 {vr(b+4*t,2)}, v{a} offset:{o+t*32}")
            A(f"ds_read_b64_tr_b16 {vr(b+4*t+2,2)}, v{a} offset:{o+t*32+2560}")
    A(f"; MARK 0\ns_waitcnt vmcnt({cnt(issued[0]) - 9})\ns_barrier\n; MARK 1")
    reads(0)
    more()
    for ks in range(20):
        b = AB[ks & 1]
        nxt = ks + 1 < 20
        if nxt and (ks + 1) % 4 == 0:
            r = (ks + 1) // 4
            A(f"s_waitcnt vmcnt({cnt(issued[0]) - 9 * (r + 1)})\ns_barrier")
        A("s_waitcnt lgkmcnt(4)")
        for t in range(5):
            if t == 3: A(f"s_waitcnt lgkmcnt({6 if nxt else 0})")
            c = "0" if ks == 0 else vr(ACC + 4 * t, 4)
            A(f"v_mfma_f32_16x16x32_bf16 {vr(ACC+4*t,4)}, {vr(b+4*t,4)}, {vr(OB+4*ks,4)}, {c}")
            if nxt and t == 0: reads(ks + 1, 0, 3)
            if nxt and t == 3: reads(ks + 1, 3, 5)
        if nxt and (ks + 1) % 4 == 0: more()
    while issued[0] < 6: more()
    A("; MARK 2\ns_waitcnt vmcnt(0)\n; MARK 3\ns_mov_b32 s33, 0xffff0000")
    for t in range(5):
        a = ACC + 4 * t; x = 160 + 2 * t; f = 170 + 2 * t; u = 16 + 8 * t
        for i in range(4): A(f"v_cvt_pk_bf16_f32 v{a+i}, 0, v{a+i}")
        for k in range(2):
            A(f"v_lshlrev_b32 v{u+2*k}, 16, v{x+k}\nv_and_b32 v{u+2*k+1}, s33, v{x+k}")
            A(f"v_lshlrev_b32 v{u+4+2*k}, 16, v{f+k}\nv_and_b32 v{u+4+2*k+1}, s33, v{f+k}")
        for k in range(2): A(f"v_pk_add_f32 {vr(a+2*k,2)}, {vr(a+2*k,2)}, {vr(u+2*k,2)}")
        for i in range(4): A(f"v_cvt_pk_bf16_f32 v{a+i}, 0, v{a+i}")
        for k in range(2): A(f"v_pk_add_f32 {vr(a+2*k,2)}, {vr(a+2*k,2)}, {vr(u+4+2*k,2)}")
        A(f"v_cvt_pk_bf16_f32 v{a}, v{a}, v{a+1}\nv_cvt_pk_bf16_f32 v{a+1}, v{a+2}, v{a+3}")
        A(f"buffer_store_dwordx2 {vr(a,2)}, v9, s[48:51], s30 offen offset:{t*32}{ST}")
    A(f"{E}_end:\ns_endpgm")
    A.end(name, 180, 64)
```

```python
from gen import *
build("p_a.s", prof=True)
build("p_b.s", P1=dict(st=" sc0 sc1"), P2=dict(st=" sc0 sc1", FB2=2, FB3=6), P3=dict(ahead=3), prof=True)
build("p_c.s", P1=dict(st=" nt", rot=0), P2=dict(st=" nt", frot=0, rot=0), P3=dict(rot=0), prof=True)
```

```python
from asmlib import *
from layout import *

def gen_k1(A, name="k1_kernel", P=None):
    P = dict(dict(rot=(1,4), st="", lprio=3, lmod="", xs="valu", cs="mfma", sprio=None, bpos=0, il=1, pf=0), **(P or {}))
    XS = 49152; RB = 49152 + 4096; CS = 49152 + 8192
    ST = P["st"]; STH = P.get("sth", ST); STW = P.get("stw", ST); STV = P.get("stv", ST)
    A.begin(name)
    E = f"L_{name}"
    A(f"""
s_cmp_ge_u32 s2, 256
s_cbranch_scc1 {E}_end
s_load_dwordx4 s[4:7], s[0:1], 0
s_load_dwordx4 s[8:11], s[0:1], 32
s_load_dwordx2 s[12:13], s[0:1], 64
v_lshrrev_b32 v1, 6, v0
v_and_b32 v2, 63, v0
s_and_b32 s40, s2, 7
s_lshr_b32 s41, s2, 3
v_readfirstlane_b32 s29, v1
s_and_b32 s14, s40, 1
s_lshl_b32 s14, s14, 3
s_and_b32 s15, s41, 7
s_add_u32 s14, s14, s15
s_lshr_b32 s15, s40, 1
s_lshl_b32 s15, s15, 2
s_lshr_b32 s16, s41, 3
s_add_u32 s15, s15, s16
s_and_b32 s16, s15, 7
s_lshl_b32 s17, s16, 2
s_mul_i32 s18, s16, 3
s_cmp_lt_u32 s15, 8
s_cselect_b32 s19, 6, 3
s_add_u32 s18, s18, s19
s_min_u32 s17, s17, s18
s_cmp_lt_u32 s16, s19
s_cselect_b32 s18, 4, 3
s_mov_b32 s46, {WS_BYTES}
s_mov_b32 s47, 0x20000
s_cmp_lt_u32 s29, 8
s_cbranch_scc1 {E}_comp
""")
    if P["rot"] == 1:
        ROT = """s_and_b32 s35, s41, 7
s_lshr_b32 s36, s41, 3
s_mul_i32 s36, s36, 3
s_add_u32 s35, s35, s36
s_cmp_ge_u32 s35, 10
s_cselect_b32 s36, 10, 0
s_sub_u32 s35, s35, s36
"""
    elif P["rot"] == 0: ROT = "s_mov_b32 s35, 0"
    else:
        ra, rb = P["rot"]
        ROT = f"""s_lshr_b32 s35, s40, 1
s_mul_i32 s35, s35, {ra}
s_and_b32 s36, s40, 1
s_mul_i32 s36, s36, {rb}
s_add_u32 s35, s35, s36
s_cmp_ge_u32 s35, 10
s_cselect_b32 s36, 10, 0
s_sub_u32 s35, s35, s36"""
    A(f"""
s_setprio {P['lprio']}
s_sub_u32 s29, s29, 8
s_mov_b32 s22, 2621440
s_mov_b32 s23, 0x20000
s_mov_b32 s27, 0x20000
s_cmp_lt_u32 s15, 8
s_mov_b32 s26, 2211840
s_cselect_b32 s26, 2457600, s26
s_mov_b32 s28, 3456
s_cselect_b32 s28, 3840, s28
v_lshrrev_b32 v3, 3, v2
s_lshl_b32 s30, s29, 5
s_lshl_b32 s31, s14, 7
s_add_u32 s30, s30, s31
v_add_u32 v3, s30, v3
v_lshrrev_b32 v4, 4, v2
v_and_b32 v5, 7, v2
v_xor_b32 v6, v5, v4
v_xor_b32 v7, 4, v6
s_movk_i32 s32, 1280
v_mul_lo_u32 v3, v3, s32
v_lshl_add_u32 v10, v6, 4, v3
v_lshl_add_u32 v11, v7, 4, v3
v_add_u32 v11, 10240, v11
v_lshrrev_b32 v3, 5, v2
v_and_b32 v4, 31, v2
v_lshlrev_b32 v5, 2, v3
v_xor_b32 v5, v4, v5
v_xor_b32 v6, 8, v5
s_lshl_b32 s30, s29, 4
v_add_u32 v3, s30, v3
v_mul_lo_u32 v3, v3, s28
s_lshl_b32 s31, s17, 7
v_add_u32 v3, s31, v3
v_lshl_add_u32 v12, v5, 4, v3
v_lshl_add_u32 v13, v6, 4, v3
s_lshl_b32 s33, s28, 1
v_add_u32 v13, s33, v13
s_lshl_b32 s33, s28, 2
v_add_u32 v14, s33, v12
v_add_u32 v15, s33, v13
s_lshl_b32 s33, s18, 3
v_mov_b32 v8, 0x7fffffff
v_cmp_gt_u32 vcc, s33, v5
v_cmp_gt_u32 s[42:43], s33, v6
s_lshl_b32 s34, s28, 6
s_lshl_b32 s39, s28, 3
{ROT}
v_cndmask_b32 v12, v8, v12, vcc
v_cndmask_b32 v14, v8, v14, vcc
v_cndmask_b32 v13, v8, v13, s[42:43]
v_cndmask_b32 v15, v8, v15, s[42:43]
s_mul_i32 s36, s35, s34
s_lshl_b32 s35, s35, 7
s_lshl_b32 s37, s29, 12
s_lshl_b32 s38, s29, 13
s_add_u32 s38, s38, 16384
s_cmp_lt_u32 s15, 8
s_waitcnt lgkmcnt(0)
s_mov_b32 s20, s4
s_mov_b32 s21, s5
s_cselect_b32 s24, s6, s8
s_cselect_b32 s25, s7, s9
""")
    LM = P["lmod"]
    def issue(slot, fill=()):
        base = slot * 49152
        fill = list(fill); per = (len(fill) + 10) // 11
        def fl(k):
            if fill and k == 0: A("s_waitcnt lgkmcnt(0)")
            if k < 11:
                for o in fill[k * per:(k + 1) * per]: A(o)
        A("s_add_u32 s30, s35, 20480\ns_add_u32 s31, s36, s39")
        for j in range(4):
            A(f"s_add_u32 m0, s37, {base + j*1024}\nbuffer_load_dwordx4 v{10+(j&1)}, s[20:23], s{35 if j < 2 else 30} offen{LM} lds")
            if j: fl(j - 1)
        for j in range(8):
            A(f"s_add_u32 m0, s38, {base + j*1024}\nbuffer_load_dwordx4 v{12+(j&3)}, s[24:27], s{36 if j < 4 else 31} offen{LM} lds")
            fl(3 + j)
        A("s_add_u32 s35, s35, 128\ns_add_u32 s36, s36, s34\ns_cmp_eq_u32 s35, 1280\ns_cselect_b32 s35, 0, s35\ns_cselect_b32 s36, 0, s36")
    CSL = P["cs"] in ("dot", "valu")
    A("; MARK 12")
    issue(0); A("; MARK 0"); issue(1)
    PF = P["pf"]
    if PF:
        A(f"""
s_lshl_b32 s30, s14, 7
s_lshr_b32 s31, s41, 3
s_lshl_b32 s31, s31, 5
s_add_u32 s30, s30, s31
v_lshrrev_b32 v3, 1, v2
v_add_u32 v3, s30, v3
v_mul_lo_u32 v3, v3, s32
v_and_b32 v4, 1, v2
v_lshl_add_u32 v3, v4, 6, v3
s_and_b32 s30, s41, 7
s_lshl_b32 s30, s30, 3
v_lshrrev_b32 v4, 3, v2
v_add_u32 v4, s30, v4
v_mul_lo_u32 v4, v4, s28
v_and_b32 v5, 7, v2
v_lshl_add_u32 v4, v5, 6, v4
s_lshl_b32 s30, s17, 7
v_add_u32 v4, s30, v4
s_lshl_b32 s30, s18, 1
v_cmp_gt_u32 vcc, s30, v5
s_cmp_eq_u32 s29, 0
s_cselect_b32 s64, s20, s24
s_cselect_b32 s65, s21, s25
s_cselect_b32 s66, s22, s26
s_cselect_b32 s68, 128, s34
s_cselect_b64 s[30:31], -1, 0
s_mov_b32 s67, 0x20000
s_cmp_lt_u32 s29, 2
s_cselect_b32 s66, s66, 0
s_lshl_b32 s69, s68, 1
v_cndmask_b32 v4, v8, v4, vcc
v_cndmask_b32 v99, v4, v3, s[30:31]
""")
    def pref(st):
        if PF and st < 10:
            A("buffer_load_dword v120, v99, s[64:67], s69 offen\ns_add_u32 s69, s69, s68")
            return 1
        return 0
    npf = {}
    for st in range(2, PF): pref(st)
    A(f"""
s_lshl_b32 s30, s29, 12
v_lshl_add_u32 v96, v2, 4, s30
v_add_u32 v97, 98304, v96
s_mov_b32 s56, 0xffff0000
s_mov_b32 s55, 0x3f803f80
""")
    for i in list(range(32, 40)) + list(range(76, 80)): A(f"v_mov_b32 v{i}, 0")
    if CSL:
        A("""
v_lshrrev_b32 v3, 5, v2
v_bfe_u32 v5, v2, 2, 2
v_lshl_add_u32 v6, v3, 3, v5
v_lshlrev_b32 v6, 9, v6
v_and_b32 v7, 1, v2
v_lshl_add_u32 v6, v7, 3, v6
v_add_u32 v6, 16384, v6
v_bfe_u32 v7, v2, 4, 1
v_bfe_u32 v8, v2, 1, 1
v_lshl_add_u32 v7, v7, 1, v8
s_lshl_b32 s31, s29, 3
v_add_u32 v7, s31, v7
v_lshlrev_b32 v5, 2, v5
v_xor_b32 v7, v7, v5
v_lshl_add_u32 v6, v7, 4, v6
v_xor_b32 v7, 64, v6
""")
        for pos in range(4):
            for t in range(2): A(f"v_add_u32 v{80+pos*2+t}, {pos*8192}, v{6+t}\nv_add_u32 v{88+pos*2+t}, 98304, v{80+pos*2+t}")
    def sreads(st):
        slot = st % 3; off = 49152 if slot == 1 else 0
        for j in range(4): A(f"ds_read_b128 {vr(16+4*j,4)}, v{97 if slot == 2 else 96} offset:{off + j*1024}")
        if CSL:
            for pos in range(4):
                for t in range(2):
                    for q in range(2):
                        A(f"ds_read_b64_tr_b16 {vr(44+pos*8+t*4+q*2,2)}, v{(88 if slot == 2 else 80)+pos*2+t} offset:{off + q*2048}")
    def sops():
        ops = []
        for i in range(4 if P["xs"] != "none" else 0):
            for jp in range(2):
                if P["xs"] == "dot":
                    for j in (2*jp, 2*jp+1):
                        x = 16 + 4*j + i
                        ops += [f"v_dot2_f32_bf16 v{32+2*j}, v{x}, s55, v{32+2*j}", f"v_dot2_f32_bf16 v{33+2*j}, v{x}, v{x}, v{33+2*j}"]
                else:
                    for e, j in enumerate((2*jp, 2*jp+1)):
                        x = 16 + 4*j + i
                        ops += [f"v_lshlrev_b32 v{40+2*e}, 16, v{x}", f"v_and_b32 v{41+2*e}, s56, v{x}"]
                    for q in range(2):
                        for e, j in enumerate((2*jp, 2*jp+1)):
                            u = 40 + 2*e + q
                            ops += [f"v_add_f32 v{32+2*j}, v{32+2*j}, v{u}", f"v_fmac_f32 v{33+2*j}, v{u}, v{u}"]
        if CSL:
            for pos in range(4):
                for i in range(4):
                    if P["cs"] == "dot":
                        for t in range(2): ops.append(f"v_dot2_f32_bf16 v{76+2*t+(i&1)}, v{44+pos*8+t*4+i}, s55, v{76+2*t+(i&1)}")
                    else:
                        for t in range(2):
                            x = 44 + pos*8 + t*4 + i
                            ops += [f"v_lshlrev_b32 v{40+2*t}, 16, v{x}", f"v_and_b32 v{41+2*t}, s56, v{x}"]
                        for k in range(4): ops.append(f"v_add_f32 v{76+k}, v{76+k}, v{40+k}")
        return ops
    def stat_phase():
        if P["sprio"] is not None: A(f"s_setprio {P['sprio']}")
        A("s_waitcnt lgkmcnt(0)")
        for o in sops(): A(o)
        if P["sprio"] is not None: A(f"s_setprio {P['lprio']}")
    A(f"s_waitcnt vmcnt({12 + max(PF - 2, 0)})\n; MARK 1\ns_barrier")
    prev = max(PF - 2, 0)
    for s_ in range(8):
        sreads(s_)
        issue((s_ + 2) % 3, sops() if P["il"] else ())
        A(f"; MARK {4+s_}")
        if not P["il"]: stat_phase()
        cur = pref(s_ + PF)
        A(f"s_waitcnt vmcnt({12 + prev + cur})\ns_barrier")
        prev = cur
    sreads(8)
    A(f"""
; MARK 2
s_mov_b32 s44, s12
s_mov_b32 s45, s13
s_mov_b32 s48, s10
s_mov_b32 s49, s11
s_mov_b32 s50, 2211840
s_mov_b32 s51, 0x20000
s_lshl_b32 s57, s29, 8
s_add_u32 s58, s57, s2
s_min_u32 s57, s58, 539
s_mul_i32 s59, s57, 13108
s_lshr_b32 s59, s59, 16
s_mul_i32 s60, s59, 5
s_sub_u32 s60, s57, s60
s_mul_i32 s61, s59, 20480
s_lshl_b32 s62, s60, 8
s_add_u32 s62, s62, s61
s_add_u32 s63, s62, 10240
v_lshrrev_b32 v3, 5, v2
v_and_b32 v4, 31, v2
v_mul_u32_u24 v5, 5120, v3
v_lshl_add_u32 v98, v4, 3, v5
s_cmp_ge_u32 s58, 540
s_cselect_b32 s50, 0, s50
""")
    W2R = 100
    for j in range(8):
        A(f"buffer_load_dwordx2 {vr(W2R+2*j,2)}, v98, s[48:51], s{62 + (j >> 2)} offen offset:{(j & 3) * 1280}")
    stat_phase()
    A("s_waitcnt vmcnt(8)\ns_barrier")
    sreads(9)
    A(f"""
v_and_b32 v5, 3, v2
v_lshrrev_b32 v6, 3, v2
v_lshl_add_u32 v6, v5, 3, v6
s_lshl_b32 s30, s29, 5
v_add_u32 v6, s30, v6
v_lshlrev_b32 v6, 2, v6
s_lshl_b32 s30, s29, 9
v_lshl_add_u32 v7, v2, 2, s30
v_cmp_eq_u32 s[30:31], 1, v5
v_cmp_eq_u32 s[32:33], 2, v5
v_cmp_eq_u32 s[34:35], 3, v5
s_mov_b32 s36, 0x3acccccd
s_mov_b32 s37, 0x3727c5ac
s_waitcnt lgkmcnt(0)
""")
    for o in sops(): A(o)
    if CSL:
        A(f"v_add_f32 v76, v76, v77\nv_add_f32 v78, v78, v79\nds_write_b32 v7, v76 offset:{CS}\nds_write_b32 v7, v78 offset:{CS+256}")
    for m in ("quad_perm:[1,0,3,2]", "quad_perm:[2,3,0,1]", "row_half_mirror"):
        for i in range(8): A(f"v_add_f32_dpp v{32+i}, v{32+i}, v{32+i} {m} row_mask:0xf bank_mask:0xf")
    for j in range(1, 4):
        A(f"v_cndmask_b32 v32, v32, v{32+2*j}, s[{28+2*j}:{29+2*j}]\nv_cndmask_b32 v33, v33, v{33+2*j}, s[{28+2*j}:{29+2*j}]")
    A(f"""
v_mul_f32 v32, s36, v32
v_mul_f32 v34, v32, v32
v_fma_f32 v33, v33, s36, -v34
v_max_f32 v33, 0, v33
v_cvt_pk_bf16_f32 v33, 0, v33
v_add_f32 v33, s37, v33
v_cvt_pk_bf16_f32 v33, 0, v33
v_sqrt_f32 v33, v33
ds_write_b32 v6, v32 offset:{XS}
s_lshl_b32 s30, s14, 9
s_add_u32 s30, s30, {RS}
v_cvt_pk_bf16_f32 v33, 0, v33
v_rcp_f32 v33, v33
s_cmp_eq_u32 s15, 8
s_cselect_b32 s46, s46, 0
s_nop 0
ds_write_b32 v6, v33 offset:{RB}
s_waitcnt lgkmcnt(0)
s_barrier
; MARK 3
buffer_store_dword v33, v6, s[44:47], s30 offen{ST}
s_cmp_ge_u32 s58, 540
s_cbranch_scc1 {E}_end
s_mov_b32 s46, {WS_BYTES}
s_mov_b32 s30, 0x05040100
s_mov_b32 s31, 0x07060302
v_lshrrev_b32 v5, 3, v4
v_and_b32 v6, 7, v2
v_lshlrev_b32 v5, 10, v5
v_lshl_add_u32 v5, v6, 6, v5
v_lshl_add_u32 v5, v3, 9, v5
s_lshl_b32 s33, s60, 12
s_add_u32 s33, s33, s61
s_add_u32 s33, s33, {W2F}
s_waitcnt vmcnt(1)
""")
    for c in range(4):
        for k in range(4): A(f"v_perm_b32 v{40+4*c+k}, v{W2R+2+4*k+(c>>1)}, v{W2R+4*k+(c>>1)}, s{30+(c&1)}")
    for c in range(4): A(f"buffer_store_dwordx4 {vr(40+4*c,4)}, v5, s[44:47], s33 offen offset:{16*c}{STW}")
    A("s_endpgm")
    A(f"""
{E}_comp:
v_lshrrev_b32 v3, 5, v2
v_and_b32 v4, 31, v2
""")
    A("""
s_and_b32 s52, s29, 1
s_lshr_b32 s53, s29, 1
s_lshl_b32 s30, s52, 1
s_xor_b32 s30, s30, s53
s_add_u32 s54, s17, s53
s_mov_b32 s56, 0x3f803f80
s_lshl_b32 s31, s30, 1
v_bfe_u32 v5, v2, 1, 3
v_xor_b32 v5, v5, v3
v_xor_b32 v5, s31, v5
s_lshl_b32 s31, s52, 13
v_lshlrev_b32 v6, 7, v4
v_add_u32 v6, s31, v6
""")
    for pos in range(4):
        A(f"v_xor_b32 v7, {2*pos}, v5\nv_lshl_add_u32 v{16+pos}, v7, 4, v6\nv_add_u32 v{20+pos}, 98304, v{16+pos}")
    A("""
v_bfe_u32 v5, v2, 2, 2
v_lshl_add_u32 v6, v3, 3, v5
v_lshlrev_b32 v6, 9, v6
v_and_b32 v7, 1, v2
v_lshl_add_u32 v6, v7, 3, v6
v_add_u32 v6, 16384, v6
v_bfe_u32 v7, v2, 4, 1
v_bfe_u32 v8, v2, 1, 1
v_lshl_add_u32 v7, v7, 1, v8
s_lshl_b32 s31, s53, 3
v_add_u32 v7, s31, v7
v_lshlrev_b32 v5, 2, v5
v_xor_b32 v7, v7, v5
v_lshl_add_u32 v6, v7, 4, v6
v_xor_b32 v7, 64, v6
""")
    for pos in range(4):
        A(f"s_xor_b32 s31, s30, {pos}\ns_lshl_b32 s31, s31, 13")
        for t in range(2):
            A(f"v_add_u32 v{24+pos*2+t}, s31, v{6+t}\nv_add_u32 v{32+pos*2+t}, 98304, v{24+pos*2+t}")
    A("""
v_and_b32 v5, 15, v2
v_bfe_u32 v6, v2, 4, 1
v_cmp_eq_u32 vcc, v5, v6
v_mov_b32 v5, s56
s_mov_b32 s56, 0xffff0000
""")
    for i in range(4): A(f"v_cndmask_b32 v{88+i}, 0, v5, vcc")
    A(f"""
s_lshl_b32 s31, s52, 8
s_add_u32 s31, s31, {XS}
v_lshl_add_u32 v9, v4, 2, s31
v_add_u32 v12, {RB - XS}, v9
""")
    if CSL:
        A("s_lshl_b32 s33, s53, 9\nv_lshl_add_u32 v8, v2, 2, s33")
    else:
        A(f"""
s_lshl_b32 s33, s29, 11
v_lshl_add_u32 v7, v2, 4, s33
s_lshl_b32 s33, s53, 12
v_lshl_add_u32 v8, v3, 11, s33
v_bfe_u32 v5, v2, 4, 1
v_lshl_add_u32 v8, v5, 4, v8
v_bfe_u32 v5, v2, 2, 2
v_lshl_add_u32 v8, v5, 8, v8
v_and_b32 v5, 3, v2
v_lshl_add_u32 v8, v5, 2, v8
""")
    A(f"""
s_cmp_lt_u32 s15, 8
s_cselect_b32 s55, s54, 0
s_cmp_ge_u32 s55, 20
s_cbranch_scc1 {E}_vloop
""")
    FB = [56, 72]
    def acc(ct, tt): return 96 + (ct * 2 + tt) * 16
    class Q:
        def __init__(s): s.q = []
        def op(s, tag, txt): A(txt); s.q.append(tag)
        def need(s, *tags):
            idx = max([i for i, t in enumerate(s.q) if t in tags], default=-1)
            if idx >= 0:
                A(f"s_waitcnt lgkmcnt({len(s.q) - 1 - idx})"); s.q = s.q[idx + 1:]
    def rd(L, p, i):
        s, pos = p >> 2, p & 3
        slot = s % 3; b = FB[p & 1]
        xa = (20 if slot == 2 else 16) + pos
        wa = (32 if slot == 2 else 24) + pos * 2
        off = 49152 if slot == 1 else 0
        L.op((p, i), [f"ds_read_b128 v[{b}:{b+3}], v{xa} offset:{off}",
                      f"ds_read_b64_tr_b16 v[{b+8}:{b+9}], v{wa} offset:{off}",
                      f"ds_read_b64_tr_b16 v[{b+10}:{b+11}], v{wa} offset:{off+2048}",
                      f"ds_read_b128 v[{b+4}:{b+7}], v{xa} offset:{off+4096}",
                      f"ds_read_b64_tr_b16 v[{b+12}:{b+13}], v{wa+1} offset:{off}",
                      f"ds_read_b64_tr_b16 v[{b+14}:{b+15}], v{wa+1} offset:{off+2048}"][i])
    def prep():
        o = []
        for t in range(2):
            c = 10 + t; h = 56 + 4 * t
            o += f"""v_cvt_pk_bf16_f32 v{h+2}, 0, v{c}
v_cvt_pk_bf16_f32 v{64+2*t}, -v{160+t}, -v{160+t}
v_sub_f32 v{h+2}, v{c}, v{h+2}
v_cvt_pk_bf16_f32 v{65+2*t}, -v{160+t}, 0
v_cvt_pk_bf16_f32 v{h+3}, 0, v{h+2}
v_cvt_pk_bf16_f32 v{h}, v{c}, v{h+2}
v_sub_f32 v{h+3}, v{h+2}, v{h+3}
v_cvt_pk_bf16_f32 v{h+1}, v{h+3}, 0""".split("\n")
        return o
    BP = P["bpos"]
    def loop(vmode):
        L = Q()
        A("; MARK 0\ns_waitcnt lgkmcnt(0)\ns_mov_b32 s44, s12\ns_mov_b32 s45, s13\ns_barrier\n; MARK 1")
        for i in range(6): rd(L, 0, i)
        for p in range(40):
            s, pos = p >> 2, p & 3
            b = FB[p & 1]
            bar = pos == 3 and s < 9
            if p == 39: sched = [[], [], [], []]
            elif bar: sched = {0: [[0, 1], [2, 3], [4, 5], []], 1: [[0, 1, 2], [3, 4, 5], [], []], 2: [[], [0, 1, 2], [3, 4, 5], []], 3: [[], [], [0, 1, 2, 3, 4, 5], []]}[BP]
            else: sched = [[0, 1], [2, 3], [4, 5], []]
            if bar:
                L.need(*[(p, i) for i in range(6)])
                if BP == 0: A(f"s_barrier\n; MARK {4+s}")
            for j, (ct, tt) in enumerate(((0, 0), (0, 1), (1, 1), (1, 0))):
                L.need(*[(p, i) for i in ([0, 1, 2], [3], [4, 5], [])[j]])
                a = acc(ct, tt)
                c = "0" if p == 0 else vr(a, 16)
                w, x = vr(b + 8 + 4 * ct, 4), vr(b + 4 * tt, 4)
                if vmode: A(f"v_mfma_f32_32x32x16_bf16 {vr(a,16)}, {x}, {w}, {c}")
                else: A(f"v_mfma_f32_32x32x16_bf16 {vr(a,16)}, {w}, {x}, {c}")
                if bar and BP == j + 1: A(f"s_barrier\n; MARK {4+s}")
                for i in sched[j]: rd(L, p + 1, i)
                if pos < 2 and P["cs"] == "mfma" and j in (1, 3):
                    ct2 = j >> 1
                    c = "0" if p == 0 else vr(40 + 4 * ct2, 4)
                    A(f"v_mfma_f32_16x16x32_bf16 {vr(40+4*ct2,4)}, {vr(b+8+4*ct2,4)}, v[88:91], {c}")
                if p == 38 and j == 0 and not CSL:
                    L.op("csw", f"ds_write_b128 v7, v[40:43] offset:{CS}"); L.op("csw", f"ds_write_b128 v7, v[44:47] offset:{CS + 1024}")
                if p == 38 and j == 3:
                    L.need("csw"); A("s_barrier")
                    L.op("st", f"ds_read_b32 v10, v8 offset:{CS}"); L.op("st", f"ds_read_b32 v11, v8 offset:{CS + (256 if CSL else 1024)}")
                    L.op("st", "ds_read2_b32 v[160:161], v9 offset0:0 offset1:32"); L.op("st", "ds_read2_b32 v[162:163], v12 offset0:0 offset1:32")
                if p == 39 and j == 1: L.need("st")
                if p == 39 and j in (1, 2):
                    for o in prep()[8 * (j - 1): 8 * j]: A(o)
    def stats(vmode):
        A("; MARK 2")
        for (ct, tt) in ((0, 0), (0, 1), (1, 1), (1, 0)):
            a = acc(ct, tt); w, x = vr(56 + 4 * ct, 2), vr(64 + 2 * tt, 2)
            if vmode: A(f"v_mfma_f32_32x32x8_bf16 {vr(a,16)}, {x}, {w}, {vr(a,16)}")
            else: A(f"v_mfma_f32_32x32x8_bf16 {vr(a,16)}, {w}, {x}, {vr(a,16)}")
        A("""
s_lshl_b32 s39, s14, 2
s_lshl_b32 s31, s52, 1
s_add_u32 s39, s39, s31
""")
    order = ((0, 0), (0, 1), (1, 1), (1, 0))
    loop(False); stats(False)
    A(f"""
s_cmp_ge_u32 s53, s18
s_cbranch_scc1 {E}_w2
v_lshlrev_b32 v5, 4, v2
s_cmp_lt_u32 s15, 8
s_cbranch_scc1 {E}_qk
""")
    A(f"""
s_mul_i32 s30, s39, 108
s_lshl_b32 s31, s54, 2
s_add_u32 s30, s30, s31
s_lshl_b32 s30, s30, 10
s_add_u32 s30, s30, {HF}
s_add_u32 s31, s30, {108*1024}
""")
    for (ct, tt) in order:
        a = acc(ct, tt)
        for k in range(8): A(f"v_cvt_pk_bf16_f32 v{a+k}, v{a+2*k}, v{a+2*k+1}")
        for k in range(8): A(f"v_pk_max_i16 v{a+k}, v{a+k}, 0")
        for j in range(2): A(f"buffer_store_dwordx4 {vr(a+4*j,4)}, v5, s[44:47], s{30+tt} offen offset:{(ct*2+j)*1024}{STH}")
    A(f"s_branch {E}_w2")
    A(f"""
{E}_qk:
s_cmp_lt_u32 s54, 10
s_cselect_b32 s30, {f32bits(QSCALE)}, 1.0
s_cselect_b32 s31, 0, {KVF - QF}
s_cselect_b32 s33, 0, 10
s_sub_u32 s33, s54, s33
v_mul_f32 v162, s30, v162
v_mul_f32 v163, s30, v163
s_lshl_b32 s33, s33, 3
s_mul_i32 s40, s33, 205
s_lshr_b32 s40, s40, 10
s_mul_i32 s41, s40, 5
s_sub_u32 s41, s33, s41
s_mul_i32 s40, s40, {2*HSTRIDE}
s_add_u32 s31, s31, s40
s_mul_i32 s40, s39, 2560
s_add_u32 s64, s31, s40
v_mul_u32_u24 v6, {HSTRIDE}, v3
v_lshl_add_u32 v6, v4, 3, v6
v_add_u32 v6, 1024, v6
""")
    for i in range(1, 6): A(f"s_add_u32 s{64+i}, s{63+i}, {HSTRIDE}")
    PK = [56, 72]
    for (ct, tt) in order:
        a = acc(ct, tt)
        sel = "op_sel_hi:[1,0]" if tt == 0 else "op_sel:[0,1] op_sel_hi:[1,1]"
        for k in range(8): A(f"v_pk_mul_f32 {vr(a+2*k,2)}, {vr(a+2*k,2)}, v[162:163] {sel}")
        for k in range(8): A(f"v_cvt_pk_bf16_f32 v{PK[tt]+8*ct+k}, v{a+2*k}, v{a+2*k+1}")
    for ph in range(5):
        if ph < 4: A(f"s_cmp_lg_u32 s41, {ph}\ns_cbranch_scc1 {E}_ph{ph+1}")
        for tt in range(2):
            i = 0
            while i < 8:
                ig = ph + i; mm, f = divmod(ig, 5)
                r = PK[tt] + 2 * i
                if f == 2:
                    A(f"buffer_store_dwordx2 {vr(r,2)}, v6, s[44:47], s{64+2*mm} offen offset:{tt*2560}{ST}"); i += 1
                else:
                    hd = 2 * mm + (1 if f >= 3 else 0); sub = f % 3
                    if sub == 0 and i < 7:
                        A(f"buffer_store_dwordx4 {vr(r,4)}, v5, s[44:47], s{64+hd} offen offset:{tt*2560}{ST}"); i += 2
                    else:
                        A(f"buffer_store_dwordx2 {vr(r,2)}, v5, s[44:47], s{64+hd} offen offset:{tt*2560+8*sub}{ST}"); i += 1
        A(f"s_branch {E}_w2")
        if ph < 4: A(f"{E}_ph{ph+1}:")
    A(f"{E}_vloop:")
    loop(True); stats(True)
    A(f"""
s_cmp_ge_u32 s53, s18
s_cbranch_scc1 {E}_w2
s_lshl_b32 s30, s52, 8
v_lshl_add_u32 v6, v3, 4, s30
""")
    for tt in range(2):
        for q in range(4):
            A(f"ds_read_b128 {vr(56+16*tt+4*q,4)}, v6 offset:{RB + tt*128 + q*32}")
    A(f"""
s_sub_u32 s30, s54, 20
s_lshl_b32 s30, s30, 6
v_mul_u32_u24 v9, 320, v3
s_mul_i32 s31, s39, 2560
s_add_u32 s31, s31, {KVF + 1280}
""")
    for ct in range(2):
        A(f"""
v_add_u32 v5, s30, v4
v_add_u32 v5, {32*ct}, v5
v_mul_u32_u24 v7, 3277, v5
v_lshrrev_b32 v7, 16, v7
v_mul_u32_u24 v8, 20, v7
v_sub_u32 v5, v5, v8
v_mul_u32_u24 v7, {HSTRIDE}, v7
v_lshl_add_u32 v5, v5, 4, v9
v_add_u32 v{16+ct}, v5, v7
""")
    A("s_waitcnt lgkmcnt(0)")
    for (ct, tt) in order:
        a = acc(ct, tt)
        for k in range(8): A(f"v_pk_mul_f32 {vr(a+2*k,2)}, {vr(a+2*k,2)}, {vr(56+16*tt+2*k,2)}")
        for k in range(8): A(f"v_cvt_pk_bf16_f32 v{a+k}, v{a+2*k}, v{a+2*k+1}")
        for j in range(2): A(f"buffer_store_dwordx4 {vr(a+4*j,4)}, v{16+ct}, s[44:47], s31 offen offset:{tt*2560+j*640}{STV}")
    A(f"""
{E}_w2:
; MARK 3
{E}_end:
s_endpgm
""")
    A.end(name, 168, 80)
```

```python
from asmlib import *
from layout import *

NP = 4
DEF = dict(offs=96.0, T1=4, wb=0, prio_ffn=0, prio_red=0, c1=12, db=1, prios=(3, 2, 1, 0), noffn=0, rot=1, frot=1, st="",
           order="M1 E8 E9 C0 C1 E10 E11 M2 K C2 C3 E12 E13 E14 E15 M3 C4 C5 N0 N1 C6 C7 N2 N3 M4 V N4 N5 N6 N7", npre=8)

def gen_k2(A, name="k2_kernel", P=None):
    P = dict(DEF, **(P or {}))
    ST = P["st"]
    A.begin(name)
    E = f"L_{name}"
    A(f"""
s_cmp_ge_u32 s2, 256
s_cbranch_scc1 {E}_end
s_load_dwordx2 s[12:13], s[0:1], 64
v_lshrrev_b32 v1, 6, v0
v_and_b32 v2, 63, v0
s_and_b32 s40, s2, 7
s_lshr_b32 s41, s2, 3
v_readfirstlane_b32 s29, v1
v_lshlrev_b32 v5, 4, v2
v_lshrrev_b32 v3, 5, v2
v_and_b32 v4, 31, v2
s_mov_b32 s46, {WS_BYTES}
s_mov_b32 s47, 0x20000
s_lshl_b32 s14, s40, 2
s_lshr_b32 s15, s41, 3
s_add_u32 s14, s14, s15
s_and_b32 s19, s41, 7
s_mul_i32 s16, s14, {HSTRIDE}
s_add_u32 s18, s16, {KVF}
s_lshl_b32 s15, s19, 3
s_mul_i32 s19, s19, {20480 * P['rot']}
s_cmp_ge_u32 s29, 8
s_cbranch_scc1 {E}_ffn
s_add_u32 s15, s15, s29
s_mul_i32 s20, s15, 2560
s_add_u32 s20, s20, s16
s_add_u32 s20, s20, {QF}
s_add_u32 s21, s18, s19
v_lshlrev_b32 v6, 3, v4
s_waitcnt lgkmcnt(0)
s_mov_b32 s44, s12
s_mov_b32 s45, s13
""")
    QM, QR, KM, KR, V0, V1 = 8, 12, 16, 20, 24, 28
    S = [32, 48]; O = 64; CB = 80
    FL = 120
    A(f"buffer_load_dwordx4 {vr(QM,4)}, v5, s[44:47], s20 offen")
    A(f"buffer_load_dwordx2 {vr(QR,2)}, v6, s[44:47], s20 offen offset:1024")
    A(f"buffer_load_dwordx4 {vr(KM,4)}, v5, s[44:47], s21 offen")
    A(f"""
v_and_b32 v{FL+1}, 3, v2
v_lshlrev_b32 v{FL+1}, 2, v{FL+1}
s_lshl_b32 s21, s29, 2
s_add_u32 s21, s21, 64
v_mov_b32 v{FL+2}, s21
""")
    A(f"""
v_mul_u32_u24 v7, 320, v3
v_lshl_add_u32 v7, v4, 4, v7
v_add_u32 v7, 1280, v7
v_add_u32 v6, 1024, v6
v_mov_b32 v1, 0x3f803f80
v_cmp_eq_u32 vcc, 20, v4
v_cmp_gt_u32 s[22:23], 20, v4
v_cmp_gt_u32 s[24:25], 32, v2
""")
    DB = P["db"]
    KB = [(KM, KR), (124, 128) if DB else (KM, KR)]; VB = [V0, 132 if DB else V0]
    for i in range(8): A(f"v_cndmask_b32 v{V0+i}, 0, v1, vcc")
    if DB:
        for i in range(8): A(f"v_cndmask_b32 v{VB[1]+i}, 0, v1, vcc")
    A("s_waitcnt vmcnt(0)\ns_barrier\n; MARK 0")
    def kread(o, km=None, kr=None):
        if km is None: km, kr = KB[o & 1]
        A(f"ds_read_b128 {vr(km,4)}, v5 offset:{o*2560}\nds_read_b64 {vr(kr,2)}, v6 offset:{o*2560}")
    def vread(o):
        A(f"s_mov_b64 exec, s[22:23]\nds_read_b128 {vr(VB[o&1],4)}, v7 offset:{o*2560}\nds_read_b128 {vr(VB[o&1]+4,4)}, v7 offset:{o*2560+640}\ns_mov_b64 exec, -1")
    A(f"ds_read_b64 {vr(KR,2)}, v6")
    for t in range(1, NP): kread(t, CB + 4 * t, 96 + 2 * t)
    A(f"v_cndmask_b32 v{QR}, 0, v{QR}, s[24:25]\nv_cndmask_b32 v{QR+1}, 0, v{QR+1}, s[24:25]")
    for t in range(NP):
        A(f"s_waitcnt lgkmcnt({2*(NP-1-t)})")
        dst = [S[0], S[1], O, 104][t]
        km, kr = (KM, KR) if t == 0 else (CB + 4 * t, 96 + 2 * t)
        A(f"v_mfma_f32_32x32x16_bf16 {vr(dst,16)}, {vr(km,4)}, {vr(QM,4)}, 0")
        A(f"v_mfma_f32_32x32x8_bf16 {vr(dst,16)}, {vr(kr,2)}, {vr(QR,2)}, {vr(dst,16)}")
    for t in range(NP):
        dst = [S[0], S[1], O, 104][t]
        for k in range(8):
            if t == 0 and k == 0: A(f"v_max_f32 v1, v{dst}, v{dst+1}")
            else: A(f"v_max3_f32 v1, v1, v{dst+2*k}, v{dst+2*k+1}")
    A(f"""
v_mov_b32 v14, v1
s_mov_b32 s26, {f32bits(P['offs'])}
v_permlane32_swap_b32 v1, v14
v_max_f32 v1, v1, v14
v_add_f32 v1, s26, v1
""")
    for i in range(16): A(f"v_sub_f32 v{CB+i}, 0, v1")
    for i in range(16): A(f"v_mov_b32 v{O+i}, 0")
    def M1(t): A(f"v_mfma_f32_32x32x16_bf16 {vr(S[t&1],16)}, {vr(KB[t&1][0],4)}, {vr(QM,4)}, {vr(CB,16)}")
    def M2(t): A(f"v_mfma_f32_32x32x8_bf16 {vr(S[t&1],16)}, {vr(KB[t&1][1],2)}, {vr(QR,2)}, {vr(S[t&1],16)}")
    def Ex(t, *idx):
        for i in idx: A(f"v_exp_f32 v{S[t&1]+i}, v{S[t&1]+i}")
    def Cv(t, *idx):
        for k in idx:
            d = S[t & 1] + (k & 3) + 8 * (k >> 2)
            A(f"v_cvt_pk_bf16_f32 v{d}, v{S[t&1]+2*k}, v{S[t&1]+2*k+1}")
    A("; MARK 1\ns_waitcnt lgkmcnt(0)")
    if DB:
        kread(1); vread(0); M1(0); M2(0); kread(2); vread(1)
    else:
        M1(0); M2(0); kread(1); vread(0)
    W = 6 if DB else 2
    Ex(0, *range(P["npre"]))
    def tile(t, hook=None):
        pr = P["prios"]
        if pr and (t == 0 or pr[t % len(pr)] != pr[(t - 1) % len(pr)]): A(f"s_setprio {pr[t % len(pr)]}")
        for tok in P["order"].split():
            if tok == "M1": A(f"s_waitcnt lgkmcnt({W})"); M1(t + 1)
            elif tok == "M2": M2(t + 1)
            elif tok == "M3": A(f"s_waitcnt lgkmcnt({W})\nv_mfma_f32_32x32x16_bf16 {vr(O,16)}, {vr(VB[t&1],4)}, {vr(S[t&1],4)}, {vr(O,16)}")
            elif tok == "M4": A(f"v_mfma_f32_32x32x16_bf16 {vr(O,16)}, {vr(VB[t&1]+4,4)}, {vr(S[t&1]+8,4)}, {vr(O,16)}")
            elif tok == "K":
                if hook: hook(t, 0)
                kread(t + 2 + DB)
                if hook: hook(t, 1)
            elif tok == "V": vread(t + 1 + DB)
            elif tok[0] == "E": Ex(t, int(tok[1:]))
            elif tok[0] == "N": Ex(t + 1, int(tok[1:]))
            elif tok[0] == "C": Cv(t, int(tok[1:]))
            else: raise ValueError(tok)
    adv = "v_add_u32 v5, 20480, v5\nv_add_u32 v6, 20480, v6\nv_add_u32 v7, 20480, v7"
    npoll = [0]
    def check(thr):
        k = npoll[0]; npoll[0] += 1
        A(f"""
s_waitcnt lgkmcnt(2)
v_cmp_gt_u32 vcc, {thr}, v{FL}
s_cbranch_vccz {E}_ok{k}
{E}_poll{k}:
s_sleep 1
ds_read_b32 v{FL}, v{FL+1}
s_waitcnt lgkmcnt(0)
v_cmp_gt_u32 vcc, {thr}, v{FL}
s_cbranch_vccnz {E}_poll{k}
{E}_ok{k}:
""")
    rdflag = f"ds_read_b32 v{FL}, v{FL+1}"
    def hook0(t, ph):
        if ph == 1 and t in (3 - DB, 7): A(rdflag)
        if ph == 0 and t == 4 - DB: check(1)
    for t in range(8): tile(t, hook0)
    A(adv)
    A(f"s_mov_b32 s27, 1\ns_mov_b32 s28, 0\n{E}_loop:")
    A(f"""
s_cmp_eq_u32 s27, 4
s_cbranch_scc0 {E}_nm
; MARK 2
{E}_nm:
""")
    def hook1(t, ph):
        if ph == 0 and t == 0: check("s28")
        if ph == 1 and t == 0: A(f"s_mov_b32 s28, 2\nv_mov_b32 v{FL+3}, s27\nds_write_b32 v{FL+2}, v{FL+3}")
        if ph == 1 and t == 7: A(rdflag)
    for t in range(8): tile(t, hook1)
    A(adv)
    A(f"s_add_u32 s27, s27, 1\ns_cmp_lt_u32 s27, 8\ns_cbranch_scc1 {E}_loop")
    A("; MARK 3\ns_setprio 0\nv_mov_b32 v1, 0\ns_movk_i32 s26, 0x207\ns_waitcnt lgkmcnt(0)")
    for i in range(12): A(f"v_fma_f32 v1, v{O+i}, 0, v1")
    A(f"""
v_cmp_class_f32 vcc, v1, s26
s_cbranch_vccnz {E}_fb
{E}_epi:
v_mov_b32 v14, v{O+8}
v_mov_b32 v15, v{O+8}
s_mul_i32 s26, s14, 5
v_add_u32 v16, s26, v3
v_permlane32_swap_b32 v14, v15
v_rcp_f32 v14, v15
v_lshrrev_b32 v17, 4, v4
v_mul_u32_u24 v17, 20480, v17
v_and_b32 v18, 15, v4
v_lshl_add_u32 v17, v18, 4, v17
s_mul_i32 s26, s15, 40960
s_add_u32 s26, s26, {OF}
""")
    for a in range(3):
        for k in range(2): A(f"v_pk_mul_f32 {vr(O+4*a+2*k,2)}, {vr(O+4*a+2*k,2)}, v[14:15] op_sel_hi:[1,0]")
        A(f"""
v_add_u32 v18, {2*a}, v16
v_lshrrev_b32 v19, 3, v18
v_lshl_add_u32 v19, v19, 10, v17
v_and_b32 v20, 3, v18
v_lshl_add_u32 v19, v20, 8, v19
v_bfe_u32 v20, v18, 2, 1
v_lshl_add_u32 v{100+a}, v20, 3, v19
v_cvt_pk_bf16_f32 v{O+4*a}, v{O+4*a}, v{O+4*a+1}
v_cvt_pk_bf16_f32 v{O+4*a+1}, v{O+4*a+2}, v{O+4*a+3}
""")
        if a == 2: A("s_mov_b64 exec, s[24:25]")
        A(f"buffer_store_dwordx2 {vr(O+4*a,2)}, v{100+a}, s[44:47], s26 offen{ST}")
    A("s_endpgm")
    A(f"""
{E}_fb:
s_waitcnt lgkmcnt(0)
v_lshlrev_b32 v5, 4, v2
v_lshlrev_b32 v6, 3, v4
v_mul_u32_u24 v7, 320, v3
v_lshl_add_u32 v7, v4, 4, v7
v_mov_b32 v1, 0xff800000
s_mov_b32 s26, s18
s_mov_b32 s27, 64
{E}_fb1:
buffer_load_dwordx4 {vr(KM,4)}, v5, s[44:47], s26 offen
buffer_load_dwordx2 {vr(KR,2)}, v6, s[44:47], s26 offen offset:1024
s_waitcnt vmcnt(0)
v_mfma_f32_32x32x16_bf16 {vr(S[0],16)}, {vr(KM,4)}, {vr(QM,4)}, 0
v_mfma_f32_32x32x8_bf16 {vr(S[0],16)}, {vr(KR,2)}, {vr(QR,2)}, {vr(S[0],16)}
""")
    for k in range(8): A(f"v_max3_f32 v1, v1, v{S[0]+2*k}, v{S[0]+2*k+1}")
    A(f"""
s_add_u32 s26, s26, 2560
s_sub_u32 s27, s27, 1
s_cmp_lg_u32 s27, 0
s_cbranch_scc1 {E}_fb1
v_mov_b32 v14, v1
v_permlane32_swap_b32 v1, v14
v_max_f32 v1, v1, v14
""")
    for i in range(16): A(f"v_sub_f32 v{CB+i}, 0, v1\nv_mov_b32 v{O+i}, 0")
    A(f"""
s_mov_b32 s26, s18
s_mov_b32 s27, 64
{E}_fb2:
buffer_load_dwordx4 {vr(KM,4)}, v5, s[44:47], s26 offen
buffer_load_dwordx2 {vr(KR,2)}, v6, s[44:47], s26 offen offset:1024
s_mov_b64 exec, s[22:23]
buffer_load_dwordx4 {vr(V0,4)}, v7, s[44:47], s26 offen offset:1280
buffer_load_dwordx4 {vr(V1,4)}, v7, s[44:47], s26 offen offset:1920
s_mov_b64 exec, -1
s_waitcnt vmcnt(0)
""")
    M1(0); M2(0)
    Ex(0, *range(16)); Cv(0, *range(8))
    A(f"""
v_mfma_f32_32x32x16_bf16 {vr(O,16)}, {vr(V0,4)}, {vr(S[0],4)}, {vr(O,16)}
v_mfma_f32_32x32x16_bf16 {vr(O,16)}, {vr(V1,4)}, {vr(S[0]+8,4)}, {vr(O,16)}
s_add_u32 s26, s26, 2560
s_sub_u32 s27, s27, 1
s_cmp_lg_u32 s27, 0
s_cbranch_scc1 {E}_fb2
s_nop 15
s_branch {E}_epi
""")
    A(f"""
{E}_ffn:
s_setprio 3
s_sub_u32 s29, s29, 8
s_lshl_b32 s17, s29, 10
s_add_u32 s19, s19, s17
v_add_u32 v15, s18, v5
v_mov_b32 v1, 0
v_lshlrev_b32 v7, 2, v2
s_waitcnt lgkmcnt(0)
s_mov_b32 s44, s12
s_mov_b32 s45, s13
""")
    def dma(i):
        if i == 0: A(f"s_cmp_eq_u32 s29, 0\ns_cbranch_scc1 {E}_d0")
        A(f"s_add_u32 m0, s17, {i*4096}\nbuffer_load_dwordx4 v15, s[44:47], s19 offen lds")
        if i == 0: A(f"{E}_d0:")
        if i < 39: A(f"s_add_u32 s19, s19, 4096\ns_cmp_ge_u32 s19, {HSTRIDE}\ns_cselect_b32 s21, {HSTRIDE}, 0\ns_sub_u32 s19, s19, s21")
    for i in range(4): dma(i)
    A("ds_write_b32 v7, v1")
    A(f"""
s_lshr_b32 s14, s40, 1
s_lshl_b32 s14, s14, 3
s_and_b32 s24, s41, 7
s_add_u32 s14, s14, s24
s_lshl_b32 s14, s14, 1
s_bfe_u32 s25, s41, 0x10003
s_xor_b32 s15, s25, 1
s_add_u32 s15, s15, s14
s_add_u32 s14, s14, s25
s_and_b32 s27, s40, 1
s_lshl_b32 s27, s27, 1
s_lshr_b32 s16, s41, 4
s_add_u32 s27, s27, s16
s_and_b32 s24, s41, 15
s_mul_i32 s24, s24, 27
s_lshr_b32 s24, s24, 4
s_mul_i32 s24, s24, {P['frot']}
s_add_u32 s20, s17, {HF}
s_mul_i32 s23, s29, 20480
s_mul_i32 s28, s27, 5120
s_add_u32 s23, s23, s28
s_add_u32 s23, s23, {W2F}
s_add_u32 s22, s20, {27*4096}
s_lshl_b32 s16, s24, 12
s_add_u32 s16, s16, s20
s_mul_i32 s26, s24, 81920
s_add_u32 s26, s26, s23
s_mul_i32 s30, s14, {108*1024}
s_mul_i32 s31, s15, {108*1024}
v_add_u32 v8, s30, v5
v_add_u32 v9, s31, v5
s_lshl_b32 s30, s25, 12
s_lshl_b32 s31, s25, 11
s_add_u32 s31, s31, 1024
v_add_u32 v10, s30, v5
v_add_u32 v11, s31, v5
v_add_u32 v12, 2048, v5
s_lshl_b32 s30, s14, 7
s_lshl_b32 s31, s15, 7
s_add_u32 s30, s30, {RS}
s_add_u32 s31, s31, {RS}
v_lshlrev_b32 v6, 2, v4
v_mov_b32 v7, s29
v_lshlrev_b32 v7, 2, v7
s_waitcnt vmcnt(0) lgkmcnt(0)
s_barrier
; MARK 0
""")
    C1 = P["c1"]
    for i in range(4, 16 + C1): dma(i)
    A(f"v_mov_b32 v1, 1\ns_waitcnt vmcnt({C1})\nds_write_b32 v7, v1\n; MARK 4")
    for i in range(16 + C1, 40): dma(i)
    A("buffer_load_dword v13, v6, s[44:47], s30 offen\nbuffer_load_dword v14, v6, s[44:47], s31 offen")
    ACC = 88
    class Q:
        def __init__(s): s.q = []
        def op(s, tag, txt): A(txt); s.q.append(tag)
        def need(s, *tags):
            idx = max([i for i, t in enumerate(s.q) if t in tags], default=-1)
            if idx >= 0:
                A(f"s_waitcnt vmcnt({len(s.q) - 1 - idx})"); s.q = s.q[idx + 1:]
    VQ = Q()
    addr = {0: (9, 16), 1: (10, 26), 2: (11, 26), 3: (12, 26), 4: (8, 16)}
    def fl(i, j):
        b = 16 + 20 * (i % 3)
        VQ.op((i, j), f"buffer_load_dwordx4 {vr(b+4*j,4)}, v{addr[j][0]}, s[44:47], s{addr[j][1]} offen")
        if j == 4: A("s_add_u32 s16, s16, 4096\ns_add_u32 s26, s26, 81920\ns_cmp_eq_u32 s16, s22\ns_cselect_b32 s16, s20, s16\ns_cselect_b32 s26, s23, s26")
    for i in range(3):
        for j in range(5): fl(i, j)
    A(f"v_mov_b32 v1, 2\ns_waitcnt vmcnt(17)\nds_write_b32 v7, v1\n; MARK 5\ns_setprio {P['prio_ffn']}")
    blk = [(0, 1), (0, 2), (4, 1), (4, 2), (4, 3)]
    after = {1: [0], 2: [1], 3: [2], 4: [3, 4]}
    for i in range(27):
        if P["noffn"]: continue
        b = 16 + 20 * (i % 3)
        for t, (hj, wj) in enumerate(blk):
            VQ.need((i, hj), (i, wj))
            c = "0" if i == 0 else vr(ACC + 16 * t, 16)
            A(f"v_mfma_f32_32x32x16_bf16 {vr(ACC+16*t,16)}, {vr(b+4*wj,4)}, {vr(b+4*hj,4)}, {c}")
            if i + 3 < 27:
                for j in after.get(t, []): fl(i + 3, j)
        if i == 13: A("; MARK 1")
    RED = 2560
    A(f"""
; MARK 2
s_setprio {P['prio_red']}
v_and_b32 v1, 7, v2
v_lshlrev_b32 v1, 2, v1
""")
    for q in range(4):
        A(f"s_sub_u32 s16, s29, {q+1}\ns_and_b32 s16, s16, 3\ns_mul_i32 s16, s16, 5120\ns_add_u32 s16, s16, {RED + q*15360}\nv_add_u32 v{8+q}, s16, v5")
    A(f"""
{E}_w1:
ds_read_b32 v16, v1 offset:64
s_waitcnt lgkmcnt(0)
v_cmp_gt_u32 vcc, {P['T1']}, v16
s_cbranch_vccz {E}_w1d
s_sleep 4
s_branch {E}_w1
{E}_w1d:
; MARK 6
""")
    OWN = 60
    for q in range(4):
        A(f"s_cmp_eq_u32 s29, {q}\ns_cbranch_scc1 {E}_own{q}")
        for t in range(5): A(f"ds_write_b128 v{8+q}, {vr(ACC+16*t+4*q,4)} offset:{t*1024}")
        A(f"s_branch {E}_nx{q}\n{E}_own{q}:")
        for t in range(5):
            for k in range(4): A(f"v_mov_b32 v{OWN+4*t+k}, v{ACC+16*t+4*q+k}")
        A(f"{E}_nx{q}:")
    A(f"""
v_mov_b32 v16, 3
ds_write_b32 v7, v16
s_mul_i32 s17, s29, 15360
s_add_u32 s17, s17, {RED}
v_add_u32 v9, s17, v5
v_and_b32 v1, 12, v1
v_mul_u32_u24 v11, 1280, v4
v_lshl_add_u32 v11, v3, 3, v11
s_mul_i32 s17, s27, 320
s_lshl_b32 s16, s29, 4
s_add_u32 s17, s17, s16
s_add_u32 s17, s17, {FF}
s_mul_i32 s18, s14, 40960
s_mul_i32 s19, s15, 40960
s_add_u32 s18, s18, s17
s_add_u32 s19, s19, s17
s_lshl_b32 s20, s25, 8
s_lshl_b32 s21, s25, 7
s_add_u32 s21, s21, 64
s_add_u32 s30, s19, s20
s_add_u32 s31, s19, s21
s_add_u32 s32, s18, s20
s_add_u32 s33, s18, s21
s_add_u32 s34, s18, 128
{E}_w2:
ds_read_b32 v16, v1
s_waitcnt lgkmcnt(0)
v_cmp_gt_u32 vcc, 3, v16
s_cbranch_vccz {E}_w2d
s_sleep 1
s_branch {E}_w2
{E}_w2d:
; MARK 3
""")
    for t in range(5):
        for jj in range(3):
            A(f"ds_read_b128 {vr(88+12*t+4*jj,4)}, v9 offset:{jj * 5120 + t * 1024}")
    for t in range(5):
        b = 88 + 12 * t; o = OWN + 4 * t
        rreg = 14 if t < 2 else 13
        A(f"s_waitcnt lgkmcnt({3 * (4 - t)})")
        for k in range(4):
            A(f"v_add_f32 v{o+k}, v{o+k}, v{b+k}")
            A(f"v_add_f32 v{b+4+k}, v{b+4+k}, v{b+8+k}")
        for k in range(4): A(f"v_add_f32 v{o+k}, v{o+k}, v{b+4+k}")
        for k in range(4): A(f"v_mul_f32 v{o+k}, v{o+k}, v{rreg}")
        A(f"v_cvt_pk_bf16_f32 v{o}, v{o}, v{o+1}\nv_cvt_pk_bf16_f32 v{o+1}, v{o+2}, v{o+3}")
        A(f"buffer_store_dwordx2 {vr(o,2)}, v11, s[44:47], s{30+t} offen{ST}")
    if P["wb"]:
        A(f"s_cmp_lg_u32 s29, 3\ns_cbranch_scc1 {E}_end\ns_and_b32 s16, s41, {P['wb'] - 1}\ns_cmp_lg_u32 s16, 0\ns_cbranch_scc1 {E}_end\ns_waitcnt vmcnt(0)\ns_sleep 8\nbuffer_wbl2 sc1\ns_waitcnt vmcnt(0)")
    A(f"{E}_end:\ns_endpgm")
    A.end(name, 168, 64)
```

```python
import sys, json
from asmlib import *
from k1 import gen_k1
from k2 import gen_k2
from k3 import gen_k3
NAME = "parallel_sum__softmax_full_mha__dense_activation_relu__prompt"
PROF = 0x2000000
def add_prof(lines):
    out = []; k = -1; name = None
    for ln in lines:
        t = ln.strip()
        if t.endswith("_kernel:"):
            k += 1; name = t[:-1]
            out += [ln, "    s_memrealtime s[88:89]", "    s_memtime s[90:91]", "    v_lshrrev_b32 v1, 6, v0", "    s_nop 1", "    v_readfirstlane_b32 s98, v1", "    s_waitcnt lgkmcnt(0)"] + [f"    s_mov_b32 s{r}, s90" for r in list(range(70, 80)) + [80, 82, 84, 86]]
        elif t == "s_endpgm":
            out.append(f"    s_branch L_prof_{name}")
        elif t.startswith("; MARK"):
            i = int(t.split()[2])
            if i < 4: out += [f"    s_memtime s[{80+2*i}:{81+2*i}]", "    s_waitcnt lgkmcnt(0)"]
            else: out += ["    s_memtime s[96:97]", "    s_waitcnt lgkmcnt(0)", f"    s_mov_b32 s{70+i-4}, s96"]
        elif t.startswith(".section .rodata"):
            out += [f"L_prof_{name}:"] + ["    " + x for x in f"""s_mov_b64 exec, -1
s_memrealtime s[92:93]
s_memtime s[94:95]
s_load_dwordx2 s[96:97], s[0:1], 64
s_lshl_b32 s99, s2, 4
s_add_u32 s99, s99, s98
s_add_u32 s99, s99, {k*8192}
s_lshl_b32 s99, s99, 7
s_add_u32 s99, s99, {PROF}
s_waitcnt lgkmcnt(0)
v_mov_b32 v1, s99
v_mov_b32 v4, s88
v_mov_b32 v5, s92
v_mov_b32 v6, s90
v_mov_b32 v7, s94
v_mov_b32 v8, s80
v_mov_b32 v9, s82
v_mov_b32 v10, s84
v_mov_b32 v11, s86
v_cmp_eq_u32 vcc, 0, v2
s_and_b64 exec, exec, vcc
s_cmp_ge_u32 s2, 256
s_cbranch_scc1 L_profe_{name}
global_store_dwordx4 v1, v[4:7], s[96:97]
global_store_dwordx4 v1, v[8:11], s[96:97] offset:16
v_mov_b32 v12, s70
v_mov_b32 v13, s71
v_mov_b32 v14, s72
v_mov_b32 v15, s73
v_mov_b32 v16, s74
v_mov_b32 v17, s75
v_mov_b32 v18, s76
v_mov_b32 v19, s77
v_mov_b32 v20, s78
v_mov_b32 v21, s79
global_store_dwordx4 v1, v[12:15], s[96:97] offset:32
global_store_dwordx4 v1, v[16:19], s[96:97] offset:48
global_store_dwordx2 v1, v[20:21], s[96:97] offset:64
s_and_b32 s99, s2, 0x1f
s_lshr_b32 s100, s2, 5
s_cmp_lg_u32 s99, s100
s_cbranch_scc1 L_profe_{name}
s_cmp_lg_u32 s98, {[7,7,3][k]}
s_cbranch_scc1 L_profe_{name}
s_load_dwordx2 s[96:97], s[0:1], 56
v_mov_b32 v1, 0
v_not_b32 v4, v4
v_sub_u32 v7, v7, v6
v_sub_u32 v8, v8, v6
v_sub_u32 v9, v9, v6
v_sub_u32 v10, v10, v6
v_sub_u32 v11, v11, v6
s_waitcnt lgkmcnt(0)
global_atomic_umax v1, v4, s[96:97]
global_atomic_umax v1, v5, s[96:97] offset:4
global_atomic_umax v1, v7, s[96:97] offset:8
global_atomic_umax v1, v8, s[96:97] offset:12
global_atomic_umax v1, v9, s[96:97] offset:16
global_atomic_umax v1, v10, s[96:97] offset:20
global_atomic_umax v1, v11, s[96:97] offset:24
s_cmp_lg_u32 s2, {0 if k == 2 else 999}
s_cbranch_scc1 L_profe_{name}
global_load_dwordx4 v[4:7], v1, s[96:97] offset:-1024
global_load_dwordx4 v[8:11], v1, s[96:97] offset:-512
global_load_dword v7, v1, s[96:97] offset:-1008
s_waitcnt vmcnt(0)
global_store_dwordx4 v1, v[4:7], s[96:97] offset:32
global_store_dwordx4 v1, v[8:11], s[96:97] offset:48
L_profe_{name}:
s_endpgm""".split("\n")] + [ln]
        elif t.startswith(".amdhsa_next_free_sgpr"):
            out.append(".amdhsa_next_free_sgpr 102")
        else: out.append(ln)
    return out
def build(path, P1=None, P2=None, P3=None, extra="", prof=False):
    A = Asm()
    hdr = """; LN + MHA + ReLU-FFN parallel block, three launches (generated by a hand-written python emitter)
; @launch kernel=k1_kernel grid=(256,1,1) block=(768,1,1) lds=147456
; @launch kernel=k2_kernel grid=(256,1,1) block=(768,1,1) lds=163840
; @launch kernel=k3_kernel grid=(256,1,1) block=(256,1,1) lds=102400
""" + extra
    gen_k1(A, P=P1); gen_k2(A, P=P2); gen_k3(A, P=P3)
    if prof: A.lines = add_prof(A.lines)
    open(path, "w").write(hdr + HEADER + A.text())
if __name__ == "__main__":
    build(f"cdna_kernels/{NAME}.s")
    build("cur.s")
    build("prof.s", prof=True)
```

```python
from asmlib import *
from layout import *

def gen_k1(A, name="k1_kernel", P=None):
    P = dict(dict(rot=(1,4), st="", lprio=3, lmod="", xs="valu", cs="mfma", sprio=None, bpos=0, il=1, pf=0), **(P or {}))
    XS = 49152; RB = 49152 + 4096; CS = 49152 + 8192
    ST = P["st"]; STH = P.get("sth", ST); STW = P.get("stw", ST); STV = P.get("stv", ST)
    A.begin(name)
    E = f"L_{name}"
    A(f"""
s_cmp_ge_u32 s2, 256
s_cbranch_scc1 {E}_end
s_load_dwordx4 s[4:7], s[0:1], 0
s_load_dwordx4 s[8:11], s[0:1], 32
s_load_dwordx2 s[12:13], s[0:1], 64
v_lshrrev_b32 v1, 6, v0
v_and_b32 v2, 63, v0
s_and_b32 s40, s2, 7
s_lshr_b32 s41, s2, 3
v_readfirstlane_b32 s29, v1
s_and_b32 s14, s40, 1
s_lshl_b32 s14, s14, 3
s_and_b32 s15, s41, 7
s_add_u32 s14, s14, s15
s_lshr_b32 s15, s40, 1
s_lshl_b32 s15, s15, 2
s_lshr_b32 s16, s41, 3
s_add_u32 s15, s15, s16
s_and_b32 s16, s15, 7
s_lshl_b32 s17, s16, 2
s_mul_i32 s18, s16, 3
s_cmp_lt_u32 s15, 8
s_cselect_b32 s19, 6, 3
s_add_u32 s18, s18, s19
s_min_u32 s17, s17, s18
s_cmp_lt_u32 s16, s19
s_cselect_b32 s18, 4, 3
s_mov_b32 s46, {WS_BYTES}
s_mov_b32 s47, 0x20000
s_cmp_lt_u32 s29, 8
s_cbranch_scc1 {E}_comp
""")
    if P["rot"] == 1:
        ROT = """s_and_b32 s35, s41, 7
s_lshr_b32 s36, s41, 3
s_mul_i32 s36, s36, 3
s_add_u32 s35, s35, s36
s_cmp_ge_u32 s35, 10
s_cselect_b32 s36, 10, 0
s_sub_u32 s35, s35, s36
"""
    elif P["rot"] == 0: ROT = "s_mov_b32 s35, 0"
    else:
        ra, rb = P["rot"]
        ROT = f"""s_lshr_b32 s35, s40, 1
s_mul_i32 s35, s35, {ra}
s_and_b32 s36, s40, 1
s_mul_i32 s36, s36, {rb}
s_add_u32 s35, s35, s36
s_cmp_ge_u32 s35, 10
s_cselect_b32 s36, 10, 0
s_sub_u32 s35, s35, s36"""
    A(f"""
s_setprio {P['lprio']}
s_sub_u32 s29, s29, 8
s_mov_b32 s22, 2621440
s_mov_b32 s23, 0x20000
s_mov_b32 s27, 0x20000
s_cmp_lt_u32 s15, 8
s_mov_b32 s26, 2211840
s_cselect_b32 s26, 2457600, s26
s_mov_b32 s28, 3456
s_cselect_b32 s28, 3840, s28
v_lshrrev_b32 v3, 3, v2
s_lshl_b32 s30, s29, 5
s_lshl_b32 s31, s14, 7
s_add_u32 s30, s30, s31
v_add_u32 v3, s30, v3
v_lshrrev_b32 v4, 4, v2
v_and_b32 v5, 7, v2
v_xor_b32 v6, v5, v4
v_xor_b32 v7, 4, v6
s_movk_i32 s32, 1280
v_mul_lo_u32 v3, v3, s32
v_lshl_add_u32 v10, v6, 4, v3
v_lshl_add_u32 v11, v7, 4, v3
v_add_u32 v11, 10240, v11
v_lshrrev_b32 v3, 5, v2
v_and_b32 v4, 31, v2
v_lshlrev_b32 v5, 2, v3
v_xor_b32 v5, v4, v5
v_xor_b32 v6, 8, v5
s_lshl_b32 s30, s29, 4
v_add_u32 v3, s30, v3
v_mul_lo_u32 v3, v3, s28
s_lshl_b32 s31, s17, 7
v_add_u32 v3, s31, v3
v_lshl_add_u32 v12, v5, 4, v3
v_lshl_add_u32 v13, v6, 4, v3
s_lshl_b32 s33, s28, 1
v_add_u32 v13, s33, v13
s_lshl_b32 s33, s28, 2
v_add_u32 v14, s33, v12
v_add_u32 v15, s33, v13
s_lshl_b32 s33, s18, 3
v_mov_b32 v8, 0x7fffffff
v_cmp_gt_u32 vcc, s33, v5
v_cmp_gt_u32 s[42:43], s33, v6
s_lshl_b32 s34, s28, 6
s_lshl_b32 s39, s28, 3
{ROT}
v_cndmask_b32 v12, v8, v12, vcc
v_cndmask_b32 v14, v8, v14, vcc
v_cndmask_b32 v13, v8, v13, s[42:43]
v_cndmask_b32 v15, v8, v15, s[42:43]
s_mul_i32 s36, s35, s34
s_lshl_b32 s35, s35, 7
s_lshl_b32 s37, s29, 12
s_lshl_b32 s38, s29, 13
s_add_u32 s38, s38, 16384
s_cmp_lt_u32 s15, 8
s_waitcnt lgkmcnt(0)
s_mov_b32 s20, s4
s_mov_b32 s21, s5
s_cselect_b32 s24, s6, s8
s_cselect_b32 s25, s7, s9
""")
    LM = P["lmod"]
    def issue(slot, fill=()):
        base = slot * 49152
        fill = list(fill); per = (len(fill) + 10) // 11
        def fl(k):
            if fill and k == 0: A("s_waitcnt lgkmcnt(0)")
            if k < 11:
                for o in fill[k * per:(k + 1) * per]: A(o)
        A("s_add_u32 s30, s35, 20480\ns_add_u32 s31, s36, s39")
        for j in range(4):
            A(f"s_add_u32 m0, s37, {base + j*1024}\nbuffer_load_dwordx4 v{10+(j&1)}, s[20:23], s{35 if j < 2 else 30} offen{LM} lds")
            if j: fl(j - 1)
        for j in range(8):
            A(f"s_add_u32 m0, s38, {base + j*1024}\nbuffer_load_dwordx4 v{12+(j&3)}, s[24:27], s{36 if j < 4 else 31} offen{LM} lds")
            fl(3 + j)
        A("s_add_u32 s35, s35, 128\ns_add_u32 s36, s36, s34\ns_cmp_eq_u32 s35, 1280\ns_cselect_b32 s35, 0, s35\ns_cselect_b32 s36, 0, s36")
    CSL = P["cs"] in ("dot", "valu")
    A("; MARK 12")
    issue(0); A("; MARK 0"); issue(1)
    PF = P["pf"]
    if PF:
        A(f"""
s_lshl_b32 s30, s14, 7
s_lshr_b32 s31, s41, 3
s_lshl_b32 s31, s31, 5
s_add_u32 s30, s30, s31
v_lshrrev_b32 v3, 1, v2
v_add_u32 v3, s30, v3
v_mul_lo_u32 v3, v3, s32
v_and_b32 v4, 1, v2
v_lshl_add_u32 v3, v4, 6, v3
s_and_b32 s30, s41, 7
s_lshl_b32 s30, s30, 3
v_lshrrev_b32 v4, 3, v2
v_add_u32 v4, s30, v4
v_mul_lo_u32 v4, v4, s28
v_and_b32 v5, 7, v2
v_lshl_add_u32 v4, v5, 6, v4
s_lshl_b32 s30, s17, 7
v_add_u32 v4, s30, v4
s_lshl_b32 s30, s18, 1
v_cmp_gt_u32 vcc, s30, v5
s_cmp_eq_u32 s29, 0
s_cselect_b32 s64, s20, s24
s_cselect_b32 s65, s21, s25
s_cselect_b32 s66, s22, s26
s_cselect_b32 s68, 128, s34
s_cselect_b64 s[30:31], -1, 0
s_mov_b32 s67, 0x20000
s_cmp_lt_u32 s29, 2
s_cselect_b32 s66, s66, 0
s_lshl_b32 s69, s68, 1
v_cndmask_b32 v4, v8, v4, vcc
v_cndmask_b32 v99, v4, v3, s[30:31]
""")
    def pref(st):
        if PF and st < 10:
            A("buffer_load_dword v120, v99, s[64:67], s69 offen\ns_add_u32 s69, s69, s68")
            return 1
        return 0
    npf = {}
    for st in range(2, PF): pref(st)
    A(f"""
s_lshl_b32 s30, s29, 12
v_lshl_add_u32 v96, v2, 4, s30
v_add_u32 v97, 98304, v96
s_mov_b32 s56, 0xffff0000
s_mov_b32 s55, 0x3f803f80
""")
    for i in list(range(32, 40)) + list(range(76, 80)): A(f"v_mov_b32 v{i}, 0")
    if CSL:
        A("""
v_lshrrev_b32 v3, 5, v2
v_bfe_u32 v5, v2, 2, 2
v_lshl_add_u32 v6, v3, 3, v5
v_lshlrev_b32 v6, 9, v6
v_and_b32 v7, 1, v2
v_lshl_add_u32 v6, v7, 3, v6
v_add_u32 v6, 16384, v6
v_bfe_u32 v7, v2, 4, 1
v_bfe_u32 v8, v2, 1, 1
v_lshl_add_u32 v7, v7, 1, v8
s_lshl_b32 s31, s29, 3
v_add_u32 v7, s31, v7
v_lshlrev_b32 v5, 2, v5
v_xor_b32 v7, v7, v5
v_lshl_add_u32 v6, v7, 4, v6
v_xor_b32 v7, 64, v6
""")
        for pos in range(4):
            for t in range(2): A(f"v_add_u32 v{80+pos*2+t}, {pos*8192}, v{6+t}\nv_add_u32 v{88+pos*2+t}, 98304, v{80+pos*2+t}")
    def sreads(st):
        slot = st % 3; off = 49152 if slot == 1 else 0
        for j in range(4): A(f"ds_read_b128 {vr(16+4*j,4)}, v{97 if slot == 2 else 96} offset:{off + j*1024}")
        if CSL:
            for pos in range(4):
                for t in range(2):
                    for q in range(2):
                        A(f"ds_read_b64_tr_b16 {vr(44+pos*8+t*4+q*2,2)}, v{(88 if slot == 2 else 80)+pos*2+t} offset:{off + q*2048}")
    def sops():
        ops = []
        for i in range(4 if P["xs"] != "none" else 0):
            for jp in range(2):
                if P["xs"] == "dot":
                    for j in (2*jp, 2*jp+1):
                        x = 16 + 4*j + i
                        ops += [f"v_dot2_f32_bf16 v{32+2*j}, v{x}, s55, v{32+2*j}", f"v_dot2_f32_bf16 v{33+2*j}, v{x}, v{x}, v{33+2*j}"]
                else:
                    for e, j in enumerate((2*jp, 2*jp+1)):
                        x = 16 + 4*j + i
                        ops += [f"v_lshlrev_b32 v{40+2*e}, 16, v{x}", f"v_and_b32 v{41+2*e}, s56, v{x}"]
                    for q in range(2):
                        for e, j in enumerate((2*jp, 2*jp+1)):
                            u = 40 + 2*e + q
                            ops += [f"v_add_f32 v{32+2*j}, v{32+2*j}, v{u}", f"v_fmac_f32 v{33+2*j}, v{u}, v{u}"]
        if CSL:
            for pos in range(4):
                for i in range(4):
                    if P["cs"] == "dot":
                        for t in range(2): ops.append(f"v_dot2_f32_bf16 v{76+2*t+(i&1)}, v{44+pos*8+t*4+i}, s55, v{76+2*t+(i&1)}")
                    else:
                        for t in range(2):
                            x = 44 + pos*8 + t*4 + i
                            ops += [f"v_lshlrev_b32 v{40+2*t}, 16, v{x}", f"v_and_b32 v{41+2*t}, s56, v{x}"]
                        for k in range(4): ops.append(f"v_add_f32 v{76+k}, v{76+k}, v{40+k}")
        return ops
    def stat_phase():
        if P["sprio"] is not None: A(f"s_setprio {P['sprio']}")
        A("s_waitcnt lgkmcnt(0)")
        for o in sops(): A(o)
        if P["sprio"] is not None: A(f"s_setprio {P['lprio']}")
    A(f"s_waitcnt vmcnt({12 + max(PF - 2, 0)})\n; MARK 1\ns_barrier")
    prev = max(PF - 2, 0)
    for s_ in range(8):
        sreads(s_)
        issue((s_ + 2) % 3, sops() if P["il"] else ())
        A(f"; MARK {4+s_}")
        if not P["il"]: stat_phase()
        cur = pref(s_ + PF)
        A(f"s_waitcnt vmcnt({12 + prev + cur})\ns_barrier")
        prev = cur
    sreads(8)
    A(f"""
; MARK 2
s_mov_b32 s44, s12
s_mov_b32 s45, s13
s_mov_b32 s48, s10
s_mov_b32 s49, s11
s_mov_b32 s50, 2211840
s_mov_b32 s51, 0x20000
s_lshl_b32 s57, s29, 8
s_add_u32 s58, s57, s2
s_min_u32 s57, s58, 539
s_mul_i32 s59, s57, 13108
s_lshr_b32 s59, s59, 16
s_mul_i32 s60, s59, 5
s_sub_u32 s60, s57, s60
s_mul_i32 s61, s59, 20480
s_lshl_b32 s62, s60, 8
s_add_u32 s62, s62, s61
s_add_u32 s63, s62, 10240
v_lshrrev_b32 v3, 5, v2
v_and_b32 v4, 31, v2
v_mul_u32_u24 v5, 5120, v3
v_lshl_add_u32 v98, v4, 3, v5
s_cmp_ge_u32 s58, 540
s_cselect_b32 s50, 0, s50
""")
    W2R = 100
    for j in range(8):
        A(f"buffer_load_dwordx2 {vr(W2R+2*j,2)}, v98, s[48:51], s{62 + (j >> 2)} offen offset:{(j & 3) * 1280}")
    stat_phase()
    A("s_waitcnt vmcnt(8)\ns_barrier")
    sreads(9)
    A(f"""
v_and_b32 v5, 3, v2
v_lshrrev_b32 v6, 3, v2
v_lshl_add_u32 v6, v5, 3, v6
s_lshl_b32 s30, s29, 5
v_add_u32 v6, s30, v6
v_lshlrev_b32 v6, 2, v6
s_lshl_b32 s30, s29, 9
v_lshl_add_u32 v7, v2, 2, s30
v_cmp_eq_u32 s[30:31], 1, v5
v_cmp_eq_u32 s[32:33], 2, v5
v_cmp_eq_u32 s[34:35], 3, v5
s_mov_b32 s36, 0x3acccccd
s_mov_b32 s37, 0x3727c5ac
s_waitcnt lgkmcnt(0)
""")
    for o in sops(): A(o)
    if CSL:
        A(f"v_add_f32 v76, v76, v77\nv_add_f32 v78, v78, v79\nds_write_b32 v7, v76 offset:{CS}\nds_write_b32 v7, v78 offset:{CS+256}")
    for m in ("quad_perm:[1,0,3,2]", "quad_perm:[2,3,0,1]", "row_half_mirror"):
        for i in range(8): A(f"v_add_f32_dpp v{32+i}, v{32+i}, v{32+i} {m} row_mask:0xf bank_mask:0xf")
    for j in range(1, 4):
        A(f"v_cndmask_b32 v32, v32, v{32+2*j}, s[{28+2*j}:{29+2*j}]\nv_cndmask_b32 v33, v33, v{33+2*j}, s[{28+2*j}:{29+2*j}]")
    A(f"""
v_mul_f32 v32, s36, v32
v_mul_f32 v34, v32, v32
v_fma_f32 v33, v33, s36, -v34
v_max_f32 v33, 0, v33
v_cvt_pk_bf16_f32 v33, 0, v33
v_add_f32 v33, s37, v33
v_cvt_pk_bf16_f32 v33, 0, v33
v_sqrt_f32 v33, v33
ds_write_b32 v6, v32 offset:{XS}
s_lshl_b32 s30, s14, 9
s_add_u32 s30, s30, {RS}
v_cvt_pk_bf16_f32 v33, 0, v33
v_rcp_f32 v33, v33
s_cmp_eq_u32 s15, 8
s_cselect_b32 s46, s46, 0
s_nop 0
ds_write_b32 v6, v33 offset:{RB}
s_waitcnt lgkmcnt(0)
s_barrier
; MARK 3
buffer_store_dword v33, v6, s[44:47], s30 offen{ST}
s_cmp_lt_u32 s58, 8
s_cselect_b32 s46, {WS_BYTES}, 0
s_lshl_b32 s30, s58, 10
s_add_u32 s30, s30, {FL2}
v_lshlrev_b32 v5, 4, v2
v_mov_b32 v36, 0
v_mov_b32 v37, 0
v_mov_b32 v38, 0
v_mov_b32 v39, 0
buffer_store_dwordx4 v[36:39], v5, s[44:47], s30 offen
s_cmp_ge_u32 s58, 540
s_cbranch_scc1 {E}_end
s_mov_b32 s46, {WS_BYTES}
s_mov_b32 s30, 0x05040100
s_mov_b32 s31, 0x07060302
v_lshrrev_b32 v5, 3, v4
v_and_b32 v6, 7, v2
v_lshlrev_b32 v5, 10, v5
v_lshl_add_u32 v5, v6, 6, v5
v_lshl_add_u32 v5, v3, 9, v5
s_lshl_b32 s33, s60, 12
s_add_u32 s33, s33, s61
s_add_u32 s33, s33, {W2F}
s_waitcnt vmcnt(2)
""")
    for c in range(4):
        for k in range(4): A(f"v_perm_b32 v{40+4*c+k}, v{W2R+2+4*k+(c>>1)}, v{W2R+4*k+(c>>1)}, s{30+(c&1)}")
    for c in range(4): A(f"buffer_store_dwordx4 {vr(40+4*c,4)}, v5, s[44:47], s33 offen offset:{16*c}{STW}")
    A("s_endpgm")
    A(f"""
{E}_comp:
v_lshrrev_b32 v3, 5, v2
v_and_b32 v4, 31, v2
""")
    A("""
s_and_b32 s52, s29, 1
s_lshr_b32 s53, s29, 1
s_lshl_b32 s30, s52, 1
s_xor_b32 s30, s30, s53
s_add_u32 s54, s17, s53
s_mov_b32 s56, 0x3f803f80
s_lshl_b32 s31, s30, 1
v_bfe_u32 v5, v2, 1, 3
v_xor_b32 v5, v5, v3
v_xor_b32 v5, s31, v5
s_lshl_b32 s31, s52, 13
v_lshlrev_b32 v6, 7, v4
v_add_u32 v6, s31, v6
""")
    for pos in range(4):
        A(f"v_xor_b32 v7, {2*pos}, v5\nv_lshl_add_u32 v{16+pos}, v7, 4, v6\nv_add_u32 v{20+pos}, 98304, v{16+pos}")
    A("""
v_bfe_u32 v5, v2, 2, 2
v_lshl_add_u32 v6, v3, 3, v5
v_lshlrev_b32 v6, 9, v6
v_and_b32 v7, 1, v2
v_lshl_add_u32 v6, v7, 3, v6
v_add_u32 v6, 16384, v6
v_bfe_u32 v7, v2, 4, 1
v_bfe_u32 v8, v2, 1, 1
v_lshl_add_u32 v7, v7, 1, v8
s_lshl_b32 s31, s53, 3
v_add_u32 v7, s31, v7
v_lshlrev_b32 v5, 2, v5
v_xor_b32 v7, v7, v5
v_lshl_add_u32 v6, v7, 4, v6
v_xor_b32 v7, 64, v6
""")
    for pos in range(4):
        A(f"s_xor_b32 s31, s30, {pos}\ns_lshl_b32 s31, s31, 13")
        for t in range(2):
            A(f"v_add_u32 v{24+pos*2+t}, s31, v{6+t}\nv_add_u32 v{32+pos*2+t}, 98304, v{24+pos*2+t}")
    A("""
v_and_b32 v5, 15, v2
v_bfe_u32 v6, v2, 4, 1
v_cmp_eq_u32 vcc, v5, v6
v_mov_b32 v5, s56
s_mov_b32 s56, 0xffff0000
""")
    for i in range(4): A(f"v_cndmask_b32 v{88+i}, 0, v5, vcc")
    A(f"""
s_lshl_b32 s31, s52, 8
s_add_u32 s31, s31, {XS}
v_lshl_add_u32 v9, v4, 2, s31
v_add_u32 v12, {RB - XS}, v9
""")
    if CSL:
        A("s_lshl_b32 s33, s53, 9\nv_lshl_add_u32 v8, v2, 2, s33")
    else:
        A(f"""
s_lshl_b32 s33, s29, 11
v_lshl_add_u32 v7, v2, 4, s33
s_lshl_b32 s33, s53, 12
v_lshl_add_u32 v8, v3, 11, s33
v_bfe_u32 v5, v2, 4, 1
v_lshl_add_u32 v8, v5, 4, v8
v_bfe_u32 v5, v2, 2, 2
v_lshl_add_u32 v8, v5, 8, v8
v_and_b32 v5, 3, v2
v_lshl_add_u32 v8, v5, 2, v8
""")
    A(f"""
s_cmp_lt_u32 s15, 8
s_cselect_b32 s55, s54, 0
s_cmp_ge_u32 s55, 20
s_cbranch_scc1 {E}_vloop
""")
    FB = [56, 72]
    def acc(ct, tt): return 96 + (ct * 2 + tt) * 16
    class Q:
        def __init__(s): s.q = []
        def op(s, tag, txt): A(txt); s.q.append(tag)
        def need(s, *tags):
            idx = max([i for i, t in enumerate(s.q) if t in tags], default=-1)
            if idx >= 0:
                A(f"s_waitcnt lgkmcnt({len(s.q) - 1 - idx})"); s.q = s.q[idx + 1:]
    def rd(L, p, i):
        s, pos = p >> 2, p & 3
        slot = s % 3; b = FB[p & 1]
        xa = (20 if slot == 2 else 16) + pos
        wa = (32 if slot == 2 else 24) + pos * 2
        off = 49152 if slot == 1 else 0
        L.op((p, i), [f"ds_read_b128 v[{b}:{b+3}], v{xa} offset:{off}",
                      f"ds_read_b64_tr_b16 v[{b+8}:{b+9}], v{wa} offset:{off}",
                      f"ds_read_b64_tr_b16 v[{b+10}:{b+11}], v{wa} offset:{off+2048}",
                      f"ds_read_b128 v[{b+4}:{b+7}], v{xa} offset:{off+4096}",
                      f"ds_read_b64_tr_b16 v[{b+12}:{b+13}], v{wa+1} offset:{off}",
                      f"ds_read_b64_tr_b16 v[{b+14}:{b+15}], v{wa+1} offset:{off+2048}"][i])
    def prep():
        o = []
        for t in range(2):
            c = 10 + t; h = 56 + 4 * t
            o += f"""v_cvt_pk_bf16_f32 v{h+2}, 0, v{c}
v_cvt_pk_bf16_f32 v{64+2*t}, -v{160+t}, -v{160+t}
v_sub_f32 v{h+2}, v{c}, v{h+2}
v_cvt_pk_bf16_f32 v{65+2*t}, -v{160+t}, 0
v_cvt_pk_bf16_f32 v{h+3}, 0, v{h+2}
v_cvt_pk_bf16_f32 v{h}, v{c}, v{h+2}
v_sub_f32 v{h+3}, v{h+2}, v{h+3}
v_cvt_pk_bf16_f32 v{h+1}, v{h+3}, 0""".split("\n")
        return o
    BP = P["bpos"]
    def loop(vmode):
        L = Q()
        A("; MARK 0\ns_waitcnt lgkmcnt(0)\ns_mov_b32 s44, s12\ns_mov_b32 s45, s13\ns_barrier\n; MARK 1")
        for i in range(6): rd(L, 0, i)
        for p in range(40):
            s, pos = p >> 2, p & 3
            b = FB[p & 1]
            bar = pos == 3 and s < 9
            if p == 39: sched = [[], [], [], []]
            elif bar: sched = {0: [[0, 1], [2, 3], [4, 5], []], 1: [[0, 1, 2], [3, 4, 5], [], []], 2: [[], [0, 1, 2], [3, 4, 5], []], 3: [[], [], [0, 1, 2, 3, 4, 5], []]}[BP]
            else: sched = [[0, 1], [2, 3], [4, 5], []]
            if bar:
                L.need(*[(p, i) for i in range(6)])
                if BP == 0: A(f"s_barrier\n; MARK {4+s}")
            for j, (ct, tt) in enumerate(((0, 0), (0, 1), (1, 1), (1, 0))):
                L.need(*[(p, i) for i in ([0, 1, 2], [3], [4, 5], [])[j]])
                a = acc(ct, tt)
                c = "0" if p == 0 else vr(a, 16)
                w, x = vr(b + 8 + 4 * ct, 4), vr(b + 4 * tt, 4)
                if vmode: A(f"v_mfma_f32_32x32x16_bf16 {vr(a,16)}, {x}, {w}, {c}")
                else: A(f"v_mfma_f32_32x32x16_bf16 {vr(a,16)}, {w}, {x}, {c}")
                if bar and BP == j + 1: A(f"s_barrier\n; MARK {4+s}")
                for i in sched[j]: rd(L, p + 1, i)
                if pos < 2 and P["cs"] == "mfma" and j in (1, 3):
                    ct2 = j >> 1
                    c = "0" if p == 0 else vr(40 + 4 * ct2, 4)
                    A(f"v_mfma_f32_16x16x32_bf16 {vr(40+4*ct2,4)}, {vr(b+8+4*ct2,4)}, v[88:91], {c}")
                if p == 38 and j == 0 and not CSL:
                    L.op("csw", f"ds_write_b128 v7, v[40:43] offset:{CS}"); L.op("csw", f"ds_write_b128 v7, v[44:47] offset:{CS + 1024}")
                if p == 38 and j == 3:
                    L.need("csw"); A("s_barrier")
                    L.op("st", f"ds_read_b32 v10, v8 offset:{CS}"); L.op("st", f"ds_read_b32 v11, v8 offset:{CS + (256 if CSL else 1024)}")
                    L.op("st", "ds_read2_b32 v[160:161], v9 offset0:0 offset1:32"); L.op("st", "ds_read2_b32 v[162:163], v12 offset0:0 offset1:32")
                if p == 39 and j == 1: L.need("st")
                if p == 39 and j in (1, 2):
                    for o in prep()[8 * (j - 1): 8 * j]: A(o)
    def stats(vmode):
        A("; MARK 2")
        for (ct, tt) in ((0, 0), (0, 1), (1, 1), (1, 0)):
            a = acc(ct, tt); w, x = vr(56 + 4 * ct, 2), vr(64 + 2 * tt, 2)
            if vmode: A(f"v_mfma_f32_32x32x8_bf16 {vr(a,16)}, {x}, {w}, {vr(a,16)}")
            else: A(f"v_mfma_f32_32x32x8_bf16 {vr(a,16)}, {w}, {x}, {vr(a,16)}")
        A("""
s_lshl_b32 s39, s14, 2
s_lshl_b32 s31, s52, 1
s_add_u32 s39, s39, s31
""")
    order = ((0, 0), (0, 1), (1, 1), (1, 0))
    loop(False); stats(False)
    A(f"""
s_cmp_ge_u32 s53, s18
s_cbranch_scc1 {E}_w2
v_lshlrev_b32 v5, 4, v2
s_cmp_lt_u32 s15, 8
s_cbranch_scc1 {E}_qk
""")
    A(f"""
s_mul_i32 s30, s39, 108
s_lshl_b32 s31, s54, 2
s_add_u32 s30, s30, s31
s_lshl_b32 s30, s30, 10
s_add_u32 s30, s30, {HF}
s_add_u32 s31, s30, {108*1024}
""")
    for (ct, tt) in order:
        a = acc(ct, tt)
        for k in range(8): A(f"v_cvt_pk_bf16_f32 v{a+k}, v{a+2*k}, v{a+2*k+1}")
        for k in range(8): A(f"v_pk_max_i16 v{a+k}, v{a+k}, 0")
        for j in range(2): A(f"buffer_store_dwordx4 {vr(a+4*j,4)}, v5, s[44:47], s{30+tt} offen offset:{(ct*2+j)*1024}{STH}")
    A(f"s_branch {E}_w2")
    A(f"""
{E}_qk:
s_cmp_lt_u32 s54, 10
s_cselect_b32 s30, {f32bits(QSCALE)}, 1.0
s_cselect_b32 s31, 0, {KVF - QF}
s_cselect_b32 s33, 0, 10
s_sub_u32 s33, s54, s33
v_mul_f32 v162, s30, v162
v_mul_f32 v163, s30, v163
s_lshl_b32 s33, s33, 3
s_mul_i32 s40, s33, 205
s_lshr_b32 s40, s40, 10
s_mul_i32 s41, s40, 5
s_sub_u32 s41, s33, s41
s_mul_i32 s40, s40, {2*HSTRIDE}
s_add_u32 s31, s31, s40
s_mul_i32 s40, s39, 2560
s_add_u32 s64, s31, s40
v_mul_u32_u24 v6, {HSTRIDE}, v3
v_lshl_add_u32 v6, v4, 3, v6
v_add_u32 v6, 1024, v6
""")
    for i in range(1, 6): A(f"s_add_u32 s{64+i}, s{63+i}, {HSTRIDE}")
    PK = [56, 72]
    for (ct, tt) in order:
        a = acc(ct, tt)
        sel = "op_sel_hi:[1,0]" if tt == 0 else "op_sel:[0,1] op_sel_hi:[1,1]"
        for k in range(8): A(f"v_pk_mul_f32 {vr(a+2*k,2)}, {vr(a+2*k,2)}, v[162:163] {sel}")
        for k in range(8): A(f"v_cvt_pk_bf16_f32 v{PK[tt]+8*ct+k}, v{a+2*k}, v{a+2*k+1}")
    for ph in range(5):
        if ph < 4: A(f"s_cmp_lg_u32 s41, {ph}\ns_cbranch_scc1 {E}_ph{ph+1}")
        for tt in range(2):
            i = 0
            while i < 8:
                ig = ph + i; mm, f = divmod(ig, 5)
                r = PK[tt] + 2 * i
                if f == 2:
                    A(f"buffer_store_dwordx2 {vr(r,2)}, v6, s[44:47], s{64+2*mm} offen offset:{tt*2560}{ST}"); i += 1
                else:
                    hd = 2 * mm + (1 if f >= 3 else 0); sub = f % 3
                    if sub == 0 and i < 7:
                        A(f"buffer_store_dwordx4 {vr(r,4)}, v5, s[44:47], s{64+hd} offen offset:{tt*2560}{ST}"); i += 2
                    else:
                        A(f"buffer_store_dwordx2 {vr(r,2)}, v5, s[44:47], s{64+hd} offen offset:{tt*2560+8*sub}{ST}"); i += 1
        A(f"s_branch {E}_w2")
        if ph < 4: A(f"{E}_ph{ph+1}:")
    A(f"{E}_vloop:")
    loop(True); stats(True)
    A(f"""
s_cmp_ge_u32 s53, s18
s_cbranch_scc1 {E}_w2
s_lshl_b32 s30, s52, 8
v_lshl_add_u32 v6, v3, 4, s30
""")
    for tt in range(2):
        for q in range(4):
            A(f"ds_read_b128 {vr(56+16*tt+4*q,4)}, v6 offset:{RB + tt*128 + q*32}")
    A(f"""
s_sub_u32 s30, s54, 20
s_lshl_b32 s30, s30, 6
v_mul_u32_u24 v9, 320, v3
s_mul_i32 s31, s39, 2560
s_add_u32 s31, s31, {KVF + 1280}
""")
    for ct in range(2):
        A(f"""
v_add_u32 v5, s30, v4
v_add_u32 v5, {32*ct}, v5
v_mul_u32_u24 v7, 3277, v5
v_lshrrev_b32 v7, 16, v7
v_mul_u32_u24 v8, 20, v7
v_sub_u32 v5, v5, v8
v_mul_u32_u24 v7, {HSTRIDE}, v7
v_lshl_add_u32 v5, v5, 4, v9
v_add_u32 v{16+ct}, v5, v7
""")
    A("s_waitcnt lgkmcnt(0)")
    for (ct, tt) in order:
        a = acc(ct, tt)
        for k in range(8): A(f"v_pk_mul_f32 {vr(a+2*k,2)}, {vr(a+2*k,2)}, {vr(56+16*tt+2*k,2)}")
        for k in range(8): A(f"v_cvt_pk_bf16_f32 v{a+k}, v{a+2*k}, v{a+2*k+1}")
        for j in range(2): A(f"buffer_store_dwordx4 {vr(a+4*j,4)}, v{16+ct}, s[44:47], s31 offen offset:{tt*2560+j*640}{STV}")
    A(f"""
{E}_w2:
; MARK 3
{E}_end:
s_endpgm
""")
    A.end(name, 168, 80)
```

```python
from asmlib import *
from layout import *

def gen_k1(A, name="k1_kernel", P=None):
    P = dict(dict(rot=(1,4), st=" sc1", lprio=3, lmod="", xs="valu", cs="mfma", sprio=None, bpos=0, il=1, pf=0), **(P or {}))
    XS = 49152; RB = 49152 + 4096; CS = 49152 + 8192
    ST = P["st"]; STH = P.get("sth", ST); STW = P.get("stw", ST); STV = P.get("stv", ST)
    A.begin(name)
    E = f"L_{name}"
    A(f"""
s_cmp_ge_u32 s2, 256
s_cbranch_scc1 {E}_end
s_load_dwordx4 s[4:7], s[0:1], 0
s_load_dwordx4 s[8:11], s[0:1], 32
s_load_dwordx2 s[12:13], s[0:1], 64
v_lshrrev_b32 v1, 6, v0
v_and_b32 v2, 63, v0
s_and_b32 s40, s2, 7
s_lshr_b32 s41, s2, 3
v_readfirstlane_b32 s29, v1
s_and_b32 s14, s40, 1
s_lshl_b32 s14, s14, 3
s_and_b32 s15, s41, 7
s_add_u32 s14, s14, s15
s_lshr_b32 s15, s40, 1
s_lshl_b32 s15, s15, 2
s_lshr_b32 s16, s41, 3
s_add_u32 s15, s15, s16
s_and_b32 s16, s15, 7
s_lshl_b32 s17, s16, 2
s_mul_i32 s18, s16, 3
s_cmp_lt_u32 s15, 8
s_cselect_b32 s19, 6, 3
s_add_u32 s18, s18, s19
s_min_u32 s17, s17, s18
s_cmp_lt_u32 s16, s19
s_cselect_b32 s18, 4, 3
s_mov_b32 s46, {WS_BYTES}
s_mov_b32 s47, 0x20000
s_cmp_lt_u32 s29, 8
s_cbranch_scc1 {E}_comp
""")
    if P["rot"] == 1:
        ROT = """s_and_b32 s35, s41, 7
s_lshr_b32 s36, s41, 3
s_mul_i32 s36, s36, 3
s_add_u32 s35, s35, s36
s_cmp_ge_u32 s35, 10
s_cselect_b32 s36, 10, 0
s_sub_u32 s35, s35, s36
"""
    elif P["rot"] == 0: ROT = "s_mov_b32 s35, 0"
    else:
        ra, rb = P["rot"]
        ROT = f"""s_lshr_b32 s35, s40, 1
s_mul_i32 s35, s35, {ra}
s_and_b32 s36, s40, 1
s_mul_i32 s36, s36, {rb}
s_add_u32 s35, s35, s36
s_cmp_ge_u32 s35, 10
s_cselect_b32 s36, 10, 0
s_sub_u32 s35, s35, s36"""
    A(f"""
s_setprio {P['lprio']}
s_sub_u32 s29, s29, 8
s_mov_b32 s22, 2621440
s_mov_b32 s23, 0x20000
s_mov_b32 s27, 0x20000
s_cmp_lt_u32 s15, 8
s_mov_b32 s26, 2211840
s_cselect_b32 s26, 2457600, s26
s_mov_b32 s28, 3456
s_cselect_b32 s28, 3840, s28
v_lshrrev_b32 v3, 3, v2
s_lshl_b32 s30, s29, 5
s_lshl_b32 s31, s14, 7
s_add_u32 s30, s30, s31
v_add_u32 v3, s30, v3
v_lshrrev_b32 v4, 4, v2
v_and_b32 v5, 7, v2
v_xor_b32 v6, v5, v4
v_xor_b32 v7, 4, v6
s_movk_i32 s32, 1280
v_mul_lo_u32 v3, v3, s32
v_lshl_add_u32 v10, v6, 4, v3
v_lshl_add_u32 v11, v7, 4, v3
v_add_u32 v11, 10240, v11
v_lshrrev_b32 v3, 5, v2
v_and_b32 v4, 31, v2
v_lshlrev_b32 v5, 2, v3
v_xor_b32 v5, v4, v5
v_xor_b32 v6, 8, v5
s_lshl_b32 s30, s29, 4
v_add_u32 v3, s30, v3
v_mul_lo_u32 v3, v3, s28
s_lshl_b32 s31, s17, 7
v_add_u32 v3, s31, v3
v_lshl_add_u32 v12, v5, 4, v3
v_lshl_add_u32 v13, v6, 4, v3
s_lshl_b32 s33, s28, 1
v_add_u32 v13, s33, v13
s_lshl_b32 s33, s28, 2
v_add_u32 v14, s33, v12
v_add_u32 v15, s33, v13
s_lshl_b32 s33, s18, 3
v_mov_b32 v8, 0x7fffffff
v_cmp_gt_u32 vcc, s33, v5
v_cmp_gt_u32 s[42:43], s33, v6
s_lshl_b32 s34, s28, 6
s_lshl_b32 s39, s28, 3
{ROT}
v_cndmask_b32 v12, v8, v12, vcc
v_cndmask_b32 v14, v8, v14, vcc
v_cndmask_b32 v13, v8, v13, s[42:43]
v_cndmask_b32 v15, v8, v15, s[42:43]
s_mul_i32 s36, s35, s34
s_lshl_b32 s35, s35, 7
s_lshl_b32 s37, s29, 12
s_lshl_b32 s38, s29, 13
s_add_u32 s38, s38, 16384
s_cmp_lt_u32 s15, 8
s_waitcnt lgkmcnt(0)
s_mov_b32 s20, s4
s_mov_b32 s21, s5
s_cselect_b32 s24, s6, s8
s_cselect_b32 s25, s7, s9
""")
    LM = P["lmod"]
    def issue(slot, fill=()):
        base = slot * 49152
        fill = list(fill); per = (len(fill) + 10) // 11
        def fl(k):
            if fill and k == 0: A("s_waitcnt lgkmcnt(0)")
            if k < 11:
                for o in fill[k * per:(k + 1) * per]: A(o)
        A("s_add_u32 s30, s35, 20480\ns_add_u32 s31, s36, s39")
        for j in range(4):
            A(f"s_add_u32 m0, s37, {base + j*1024}\nbuffer_load_dwordx4 v{10+(j&1)}, s[20:23], s{35 if j < 2 else 30} offen{LM} lds")
            if j: fl(j - 1)
        for j in range(8):
            A(f"s_add_u32 m0, s38, {base + j*1024}\nbuffer_load_dwordx4 v{12+(j&3)}, s[24:27], s{36 if j < 4 else 31} offen{LM} lds")
            fl(3 + j)
        A("s_add_u32 s35, s35, 128\ns_add_u32 s36, s36, s34\ns_cmp_eq_u32 s35, 1280\ns_cselect_b32 s35, 0, s35\ns_cselect_b32 s36, 0, s36")
    CSL = P["cs"] in ("dot", "valu")
    A("; MARK 12")
    issue(0); A("; MARK 0"); issue(1)
    PF = P["pf"]
    if PF:
        A(f"""
s_lshl_b32 s30, s14, 7
s_lshr_b32 s31, s41, 3
s_lshl_b32 s31, s31, 5
s_add_u32 s30, s30, s31
v_lshrrev_b32 v3, 1, v2
v_add_u32 v3, s30, v3
v_mul_lo_u32 v3, v3, s32
v_and_b32 v4, 1, v2
v_lshl_add_u32 v3, v4, 6, v3
s_and_b32 s30, s41, 7
s_lshl_b32 s30, s30, 3
v_lshrrev_b32 v4, 3, v2
v_add_u32 v4, s30, v4
v_mul_lo_u32 v4, v4, s28
v_and_b32 v5, 7, v2
v_lshl_add_u32 v4, v5, 6, v4
s_lshl_b32 s30, s17, 7
v_add_u32 v4, s30, v4
s_lshl_b32 s30, s18, 1
v_cmp_gt_u32 vcc, s30, v5
s_cmp_eq_u32 s29, 0
s_cselect_b32 s64, s20, s24
s_cselect_b32 s65, s21, s25
s_cselect_b32 s66, s22, s26
s_cselect_b32 s68, 128, s34
s_cselect_b64 s[30:31], -1, 0
s_mov_b32 s67, 0x20000
s_cmp_lt_u32 s29, 2
s_cselect_b32 s66, s66, 0
s_lshl_b32 s69, s68, 1
v_cndmask_b32 v4, v8, v4, vcc
v_cndmask_b32 v99, v4, v3, s[30:31]
""")
    def pref(st):
        if PF and st < 10:
            A("buffer_load_dword v120, v99, s[64:67], s69 offen\ns_add_u32 s69, s69, s68")
            return 1
        return 0
    npf = {}
    for st in range(2, PF): pref(st)
    A(f"""
s_lshl_b32 s30, s29, 12
v_lshl_add_u32 v96, v2, 4, s30
v_add_u32 v97, 98304, v96
s_mov_b32 s56, 0xffff0000
s_mov_b32 s55, 0x3f803f80
""")
    for i in list(range(32, 40)) + list(range(76, 80)): A(f"v_mov_b32 v{i}, 0")
    if CSL:
        A("""
v_lshrrev_b32 v3, 5, v2
v_bfe_u32 v5, v2, 2, 2
v_lshl_add_u32 v6, v3, 3, v5
v_lshlrev_b32 v6, 9, v6
v_bfe_u32 v7, v2, 1, 1
v_lshl_add_u32 v6, v7, 3, v6
v_add_u32 v6, 16384, v6
v_bfe_u32 v7, v2, 4, 1
v_and_b32 v8, 1, v2
v_lshl_add_u32 v7, v7, 1, v8
s_lshl_b32 s31, s29, 3
v_add_u32 v7, s31, v7
v_lshlrev_b32 v5, 2, v5
v_xor_b32 v7, v7, v5
v_lshl_add_u32 v6, v7, 4, v6
v_xor_b32 v7, 64, v6
""")
        for pos in range(4):
            for t in range(2): A(f"v_add_u32 v{80+pos*2+t}, {pos*8192}, v{6+t}\nv_add_u32 v{88+pos*2+t}, 98304, v{80+pos*2+t}")
    def sreads(st):
        slot = st % 3; off = 49152 if slot == 1 else 0
        for j in range(4): A(f"ds_read_b128 {vr(16+4*j,4)}, v{97 if slot == 2 else 96} offset:{off + j*1024}")
        if CSL:
            for pos in range(4):
                for t in range(2):
                    for q in range(2):
                        A(f"ds_read_b64_tr_b16 {vr(44+pos*8+t*4+q*2,2)}, v{(88 if slot == 2 else 80)+pos*2+t} offset:{off + q*2048}")
    def sops():
        ops = []
        for i in range(4 if P["xs"] != "none" else 0):
            for jp in range(2):
                if P["xs"] == "dot":
                    for j in (2*jp, 2*jp+1):
                        x = 16 + 4*j + i
                        ops += [f"v_dot2_f32_bf16 v{32+2*j}, v{x}, s55, v{32+2*j}", f"v_dot2_f32_bf16 v{33+2*j}, v{x}, v{x}, v{33+2*j}"]
                else:
                    for e, j in enumerate((2*jp, 2*jp+1)):
                        x = 16 + 4*j + i
                        ops += [f"v_lshlrev_b32 v{40+2*e}, 16, v{x}", f"v_and_b32 v{41+2*e}, s56, v{x}"]
                    for q in range(2):
                        for e, j in enumerate((2*jp, 2*jp+1)):
                            u = 40 + 2*e + q
                            ops += [f"v_add_f32 v{32+2*j}, v{32+2*j}, v{u}", f"v_fmac_f32 v{33+2*j}, v{u}, v{u}"]
        if CSL:
            for pos in range(4):
                for i in range(4):
                    if P["cs"] == "dot":
                        for t in range(2): ops.append(f"v_dot2_f32_bf16 v{76+2*t+(i&1)}, v{44+pos*8+t*4+i}, s55, v{76+2*t+(i&1)}")
                    else:
                        for t in range(2):
                            x = 44 + pos*8 + t*4 + i
                            ops += [f"v_lshlrev_b32 v{40+2*t}, 16, v{x}", f"v_and_b32 v{41+2*t}, s56, v{x}"]
                        for k in range(4): ops.append(f"v_add_f32 v{76+k}, v{76+k}, v{40+k}")
        return ops
    def stat_phase():
        if P["sprio"] is not None: A(f"s_setprio {P['sprio']}")
        A("s_waitcnt lgkmcnt(0)")
        for o in sops(): A(o)
        if P["sprio"] is not None: A(f"s_setprio {P['lprio']}")
    A(f"s_waitcnt vmcnt({12 + max(PF - 2, 0)})\n; MARK 1\ns_barrier")
    prev = max(PF - 2, 0)
    for s_ in range(8):
        sreads(s_)
        issue((s_ + 2) % 3, sops() if P["il"] else ())
        A(f"; MARK {4+s_}")
        if not P["il"]: stat_phase()
        cur = pref(s_ + PF)
        A(f"s_waitcnt vmcnt({12 + prev + cur})\ns_barrier")
        prev = cur
    sreads(8)
    A(f"""
; MARK 2
s_mov_b32 s44, s12
s_mov_b32 s45, s13
s_mov_b32 s48, s10
s_mov_b32 s49, s11
s_mov_b32 s50, 2211840
s_mov_b32 s51, 0x20000
s_lshl_b32 s57, s29, 8
s_add_u32 s58, s57, s2
s_min_u32 s57, s58, 539
s_mul_i32 s59, s57, 13108
s_lshr_b32 s59, s59, 16
s_mul_i32 s60, s59, 5
s_sub_u32 s60, s57, s60
s_mul_i32 s61, s59, 20480
s_lshl_b32 s62, s60, 8
s_add_u32 s62, s62, s61
s_add_u32 s63, s62, 5120
v_lshrrev_b32 v3, 5, v2
v_and_b32 v4, 31, v2
v_mul_u32_u24 v5, 10240, v3
v_lshl_add_u32 v98, v4, 3, v5
s_cmp_ge_u32 s58, 540
s_cselect_b32 s50, 0, s50
""")
    W2R = 100
    for j in range(8):
        A(f"buffer_load_dwordx2 {vr(W2R+2*j,2)}, v98, s[48:51], s{62 + (j >> 2)} offen offset:{(j & 3) * 1280}")
    stat_phase()
    A("s_waitcnt vmcnt(8)\ns_barrier")
    sreads(9)
    A(f"""
v_and_b32 v5, 3, v2
v_lshrrev_b32 v6, 3, v2
v_lshl_add_u32 v6, v5, 3, v6
s_lshl_b32 s30, s29, 5
v_add_u32 v6, s30, v6
v_lshlrev_b32 v6, 2, v6
s_lshl_b32 s30, s29, 9
v_lshl_add_u32 v7, v2, 2, s30
v_cmp_eq_u32 s[30:31], 1, v5
v_cmp_eq_u32 s[32:33], 2, v5
v_cmp_eq_u32 s[34:35], 3, v5
s_mov_b32 s36, 0x3acccccd
s_mov_b32 s37, 0x3727c5ac
s_waitcnt lgkmcnt(0)
""")
    for o in sops(): A(o)
    if CSL:
        A(f"v_add_f32 v76, v76, v77\nv_add_f32 v78, v78, v79\nds_write_b32 v7, v76 offset:{CS}\nds_write_b32 v7, v78 offset:{CS+256}")
    for m in ("quad_perm:[1,0,3,2]", "quad_perm:[2,3,0,1]", "row_half_mirror"):
        for i in range(8): A(f"v_add_f32_dpp v{32+i}, v{32+i}, v{32+i} {m} row_mask:0xf bank_mask:0xf")
    for j in range(1, 4):
        A(f"v_cndmask_b32 v32, v32, v{32+2*j}, s[{28+2*j}:{29+2*j}]\nv_cndmask_b32 v33, v33, v{33+2*j}, s[{28+2*j}:{29+2*j}]")
    A(f"""
v_mul_f32 v32, s36, v32
v_mul_f32 v34, v32, v32
v_fma_f32 v33, v33, s36, -v34
v_max_f32 v33, 0, v33
v_cvt_pk_bf16_f32 v33, 0, v33
v_add_f32 v33, s37, v33
v_cvt_pk_bf16_f32 v33, 0, v33
v_sqrt_f32 v33, v33
ds_write_b32 v6, v32 offset:{XS}
s_lshl_b32 s30, s14, 9
s_add_u32 s30, s30, {RS}
v_cvt_pk_bf16_f32 v33, 0, v33
v_rcp_f32 v33, v33
s_cmp_eq_u32 s15, 8
s_cselect_b32 s46, s46, 0
s_nop 0
ds_write_b32 v6, v33 offset:{RB}
s_waitcnt lgkmcnt(0)
s_barrier
; MARK 3
buffer_store_dword v33, v6, s[44:47], s30 offen{ST}
s_cmp_lt_u32 s58, 8
s_cselect_b32 s46, {WS_BYTES}, 0
s_lshl_b32 s30, s58, 10
s_add_u32 s30, s30, {FL2}
v_lshlrev_b32 v5, 4, v2
v_mov_b32 v36, 0
v_mov_b32 v37, 0
v_mov_b32 v38, 0
v_mov_b32 v39, 0
buffer_store_dwordx4 v[36:39], v5, s[44:47], s30 offen
s_cmp_ge_u32 s58, 540
s_cbranch_scc1 {E}_end
s_mov_b32 s46, {WS_BYTES}
s_mov_b32 s30, 0x05040100
s_mov_b32 s31, 0x07060302
v_lshrrev_b32 v5, 3, v4
v_and_b32 v6, 7, v2
v_lshlrev_b32 v5, 10, v5
v_lshl_add_u32 v5, v6, 6, v5
v_lshl_add_u32 v5, v3, 9, v5
s_lshl_b32 s34, s29, 12
s_add_u32 s34, s34, 147456
v_add_u32 v5, s34, v5
v_lshlrev_b32 v6, 4, v2
v_add_u32 v7, s34, v6
s_lshl_b32 s33, s60, 12
s_add_u32 s33, s33, s61
s_add_u32 s33, s33, {W2F}
s_waitcnt vmcnt(2)
""")
    for c in range(4):
        for k in range(4): A(f"v_perm_b32 v{40+4*c+k}, v{W2R+2+4*k+(c>>1)}, v{W2R+4*k+(c>>1)}, s{30+(c&1)}")
    for c in range(4): A(f"ds_write_b128 v5, {vr(40+4*c,4)} offset:{16*c}")
    for c in range(4): A(f"ds_read_b128 {vr(56+4*c,4)}, v7 offset:{1024*c}")
    for c in range(4): A(f"s_waitcnt lgkmcnt({3-c})\nbuffer_store_dwordx4 {vr(56+4*c,4)}, v6, s[44:47], s33 offen offset:{1024*c}{STW}")
    A("s_endpgm")
    A(f"""
{E}_comp:
v_lshrrev_b32 v3, 5, v2
v_and_b32 v4, 31, v2
""")
    A("""
s_and_b32 s52, s29, 1
s_lshr_b32 s53, s29, 1
s_lshl_b32 s30, s52, 1
s_xor_b32 s30, s30, s53
s_add_u32 s54, s17, s53
s_mov_b32 s56, 0x3f803f80
s_lshl_b32 s31, s30, 1
v_bfe_u32 v5, v2, 1, 3
v_xor_b32 v5, v5, v3
v_xor_b32 v5, s31, v5
s_lshl_b32 s31, s52, 13
v_lshlrev_b32 v6, 7, v4
v_add_u32 v6, s31, v6
""")
    for pos in range(4):
        A(f"v_xor_b32 v7, {2*pos}, v5\nv_lshl_add_u32 v{16+pos}, v7, 4, v6\nv_add_u32 v{20+pos}, 98304, v{16+pos}")
    A("""
v_bfe_u32 v5, v2, 2, 2
v_lshl_add_u32 v6, v3, 3, v5
v_lshlrev_b32 v6, 9, v6
v_bfe_u32 v7, v2, 1, 1
v_lshl_add_u32 v6, v7, 3, v6
v_add_u32 v6, 16384, v6
v_bfe_u32 v7, v2, 4, 1
v_and_b32 v8, 1, v2
v_lshl_add_u32 v7, v7, 1, v8
s_lshl_b32 s31, s53, 3
v_add_u32 v7, s31, v7
v_lshlrev_b32 v5, 2, v5
v_xor_b32 v7, v7, v5
v_lshl_add_u32 v6, v7, 4, v6
v_xor_b32 v7, 64, v6
""")
    for pos in range(4):
        A(f"s_xor_b32 s31, s30, {pos}\ns_lshl_b32 s31, s31, 13")
        for t in range(2):
            A(f"v_add_u32 v{24+pos*2+t}, s31, v{6+t}\nv_add_u32 v{32+pos*2+t}, 98304, v{24+pos*2+t}")
    A("""
v_and_b32 v5, 15, v2
v_bfe_u32 v6, v2, 4, 1
v_cmp_eq_u32 vcc, v5, v6
v_mov_b32 v5, s56
s_mov_b32 s56, 0xffff0000
""")
    for i in range(4): A(f"v_cndmask_b32 v{88+i}, 0, v5, vcc")
    A(f"""
s_lshl_b32 s31, s52, 8
s_add_u32 s31, s31, {XS}
v_lshl_add_u32 v9, v4, 2, s31
v_add_u32 v12, {RB - XS}, v9
""")
    if CSL:
        A("s_lshl_b32 s33, s53, 9\nv_lshl_add_u32 v8, v2, 2, s33")
    else:
        A(f"""
s_lshl_b32 s33, s29, 11
v_lshl_add_u32 v7, v2, 4, s33
s_lshl_b32 s33, s53, 12
v_lshl_add_u32 v8, v3, 11, s33
v_bfe_u32 v5, v2, 4, 1
v_lshl_add_u32 v8, v5, 4, v8
v_bfe_u32 v5, v2, 2, 2
v_lshl_add_u32 v8, v5, 8, v8
v_and_b32 v5, 3, v2
v_lshl_add_u32 v8, v5, 2, v8
""")
    A(f"""
s_cmp_lt_u32 s15, 8
s_cselect_b32 s55, s54, 0
s_cmp_ge_u32 s55, 20
s_cbranch_scc1 {E}_vloop
""")
    FB = [56, 72]
    def acc(ct, tt): return 96 + (ct * 2 + tt) * 16
    class Q:
        def __init__(s): s.q = []
        def op(s, tag, txt): A(txt); s.q.append(tag)
        def need(s, *tags):
            idx = max([i for i, t in enumerate(s.q) if t in tags], default=-1)
            if idx >= 0:
                A(f"s_waitcnt lgkmcnt({len(s.q) - 1 - idx})"); s.q = s.q[idx + 1:]
    def rd(L, p, i):
        s, pos = p >> 2, p & 3
        slot = s % 3; b = FB[p & 1]
        xa = (20 if slot == 2 else 16) + pos
        wa = (32 if slot == 2 else 24) + pos * 2
        off = 49152 if slot == 1 else 0
        L.op((p, i), [f"ds_read_b128 v[{b}:{b+3}], v{xa} offset:{off}",
                      f"ds_read_b64_tr_b16 v[{b+8}:{b+9}], v{wa} offset:{off}",
                      f"ds_read_b64_tr_b16 v[{b+10}:{b+11}], v{wa} offset:{off+2048}",
                      f"ds_read_b128 v[{b+4}:{b+7}], v{xa} offset:{off+4096}",
                      f"ds_read_b64_tr_b16 v[{b+12}:{b+13}], v{wa+1} offset:{off}",
                      f"ds_read_b64_tr_b16 v[{b+14}:{b+15}], v{wa+1} offset:{off+2048}"][i])
    def prep():
        o = []
        for t in range(2):
            c = 10 + t; h = 56 + 4 * t
            o += f"""v_cvt_pk_bf16_f32 v{h+2}, 0, v{c}
v_cvt_pk_bf16_f32 v{64+2*t}, -v{160+t}, -v{160+t}
v_sub_f32 v{h+2}, v{c}, v{h+2}
v_cvt_pk_bf16_f32 v{65+2*t}, -v{160+t}, 0
v_cvt_pk_bf16_f32 v{h+3}, 0, v{h+2}
v_cvt_pk_bf16_f32 v{h}, v{c}, v{h+2}
v_sub_f32 v{h+3}, v{h+2}, v{h+3}
v_cvt_pk_bf16_f32 v{h+1}, v{h+3}, 0""".split("\n")
        return o
    BP = P["bpos"]
    def loop(vmode):
        L = Q()
        A("; MARK 0\ns_waitcnt lgkmcnt(0)\ns_mov_b32 s44, s12\ns_mov_b32 s45, s13\ns_barrier\n; MARK 1")
        for i in range(6): rd(L, 0, i)
        for p in range(40):
            s, pos = p >> 2, p & 3
            b = FB[p & 1]
            bar = pos == 3 and s < 9
            if p == 39: sched = [[], [], [], []]
            elif bar: sched = {0: [[0, 1], [2, 3], [4, 5], []], 1: [[0, 1, 2], [3, 4, 5], [], []], 2: [[], [0, 1, 2], [3, 4, 5], []], 3: [[], [], [0, 1, 2, 3, 4, 5], []]}[BP]
            else: sched = [[0, 1], [2, 3], [4, 5], []]
            if bar:
                L.need(*[(p, i) for i in range(6)])
                if BP == 0: A(f"s_barrier\n; MARK {4+s}")
            for j, (ct, tt) in enumerate(((0, 0), (0, 1), (1, 1), (1, 0))):
                L.need(*[(p, i) for i in ([0, 1, 2], [3], [4, 5], [])[j]])
                a = acc(ct, tt)
                c = "0" if p == 0 else vr(a, 16)
                w, x = vr(b + 8 + 4 * ct, 4), vr(b + 4 * tt, 4)
                if vmode: A(f"v_mfma_f32_32x32x16_bf16 {vr(a,16)}, {x}, {w}, {c}")
                else: A(f"v_mfma_f32_32x32x16_bf16 {vr(a,16)}, {w}, {x}, {c}")
                if bar and BP == j + 1: A(f"s_barrier\n; MARK {4+s}")
                for i in sched[j]: rd(L, p + 1, i)
                if pos < 2 and P["cs"] == "mfma" and j in (1, 3):
                    ct2 = j >> 1
                    c = "0" if p == 0 else vr(40 + 4 * ct2, 4)
                    A(f"v_mfma_f32_16x16x32_bf16 {vr(40+4*ct2,4)}, {vr(b+8+4*ct2,4)}, v[88:91], {c}")
                if p == 38 and j == 0 and not CSL:
                    L.op("csw", f"ds_write_b128 v7, v[40:43] offset:{CS}"); L.op("csw", f"ds_write_b128 v7, v[44:47] offset:{CS + 1024}")
                if p == 38 and j == 3:
                    L.need("csw"); A("s_barrier")
                    L.op("st", f"ds_read_b32 v10, v8 offset:{CS}"); L.op("st", f"ds_read_b32 v11, v8 offset:{CS + (256 if CSL else 1024)}")
                    L.op("st", "ds_read2_b32 v[160:161], v9 offset0:0 offset1:32"); L.op("st", "ds_read2_b32 v[162:163], v12 offset0:0 offset1:32")
                if p == 39 and j == 1: L.need("st")
                if p == 39 and j in (1, 2):
                    for o in prep()[8 * (j - 1): 8 * j]: A(o)
    def stats(vmode):
        A("; MARK 2")
        for (ct, tt) in ((0, 0), (0, 1), (1, 1), (1, 0)):
            a = acc(ct, tt); w, x = vr(56 + 4 * ct, 2), vr(64 + 2 * tt, 2)
            if vmode: A(f"v_mfma_f32_32x32x8_bf16 {vr(a,16)}, {x}, {w}, {vr(a,16)}")
            else: A(f"v_mfma_f32_32x32x8_bf16 {vr(a,16)}, {w}, {x}, {vr(a,16)}")
        A("""
s_lshl_b32 s39, s14, 2
s_lshl_b32 s31, s52, 1
s_add_u32 s39, s39, s31
""")
    order = ((0, 0), (0, 1), (1, 1), (1, 0))
    loop(False); stats(False)
    A(f"""
s_cmp_ge_u32 s53, s18
s_cbranch_scc1 {E}_w2
v_lshlrev_b32 v5, 4, v2
s_cmp_lt_u32 s15, 8
s_cbranch_scc1 {E}_qk
""")
    A(f"""
s_mul_i32 s30, s39, 108
s_lshl_b32 s31, s54, 2
s_add_u32 s30, s30, s31
s_lshl_b32 s30, s30, 10
s_add_u32 s30, s30, {HF}
s_add_u32 s31, s30, {108*1024}
""")
    for (ct, tt) in order:
        a = acc(ct, tt)
        for k in range(8): A(f"v_cvt_pk_bf16_f32 v{a+k}, v{a+2*k}, v{a+2*k+1}")
        for k in range(8): A(f"v_pk_max_i16 v{a+k}, v{a+k}, 0")
        for j in range(2): A(f"buffer_store_dwordx4 {vr(a+4*j,4)}, v5, s[44:47], s{30+tt} offen offset:{(ct*2+j)*1024}{STH}")
    A(f"s_branch {E}_w2")
    A(f"""
{E}_qk:
s_cmp_lt_u32 s54, 10
s_cselect_b32 s30, {f32bits(QSCALE)}, 1.0
v_mul_f32 v162, s30, v162
v_mul_f32 v163, s30, v163
s_mul_i32 s30, s39, {TS}
s_lshl_b32 s31, s54, 12
s_add_u32 s30, s30, s31
s_add_u32 s30, s30, {QF}
s_add_u32 s31, s30, {TS}
""")
    for (ct, tt) in order:
        a = acc(ct, tt)
        sel = "op_sel_hi:[1,0]" if tt == 0 else "op_sel:[0,1] op_sel_hi:[1,1]"
        for k in range(8): A(f"v_pk_mul_f32 {vr(a+2*k,2)}, {vr(a+2*k,2)}, v[162:163] {sel}")
        for k in range(8): A(f"v_cvt_pk_bf16_f32 v{a+k}, v{a+2*k}, v{a+2*k+1}")
        for j in range(2): A(f"buffer_store_dwordx4 {vr(a+4*j,4)}, v5, s[44:47], s{30+tt} offen offset:{(ct*2+j)*1024}{ST}")
    A(f"s_branch {E}_w2")
    A(f"{E}_vloop:")
    loop(True); stats(True)
    A(f"""
s_cmp_ge_u32 s53, s18
s_cbranch_scc1 {E}_w2
s_lshl_b32 s30, s52, 8
v_lshl_add_u32 v6, v3, 4, s30
""")
    for tt in range(2):
        for q in range(4):
            A(f"ds_read_b128 {vr(56+16*tt+4*q,4)}, v6 offset:{RB + tt*128 + q*32}")
    A(f"""
s_sub_u32 s30, s54, 20
s_lshl_b32 s30, s30, 10
s_mul_i32 s31, s39, {TS}
s_add_u32 s30, s30, s31
s_add_u32 s30, s30, {QF + VOFF}
s_add_u32 s31, s30, {2*SV}
s_add_u32 s32, s30, {TS}
s_add_u32 s33, s31, {TS}
v_and_b32 v5, 19, v2
v_bfe_u32 v7, v2, 2, 1
v_lshl_add_u32 v5, v7, 3, v5
v_bfe_u32 v7, v2, 3, 1
v_lshl_add_u32 v5, v7, 2, v5
v_mul_u32_u24 v9, {SV}, v3
v_lshl_add_u32 v16, v5, 4, v9
s_waitcnt lgkmcnt(0)
""")
    for (ct, tt) in order:
        a = acc(ct, tt)
        for k in range(8): A(f"v_pk_mul_f32 {vr(a+2*k,2)}, {vr(a+2*k,2)}, {vr(56+16*tt+2*k,2)}")
        for k in range(8): A(f"v_cvt_pk_bf16_f32 v{a+k}, v{a+2*k}, v{a+2*k+1}")
        for j in range(2): A(f"buffer_store_dwordx4 {vr(a+4*j,4)}, v16, s[44:47], s{30+2*tt+j} offen offset:{ct*512}{STV}")
    A(f"""
{E}_w2:
; MARK 3
{E}_end:
s_endpgm
""")
    A.end(name, 168, 80)
```

```python
from asmlib import *
from layout import *

NP = 4
DEF = dict(offs=96.0, T1=4, wb=0, prio_ffn=0, prio_red=1, c1=12, db=1, prios=(3, 2, 1, 0), noffn=0, rot=1, frot=1, st="",
           order="M1 E8 E9 C0 C1 E10 E11 M2 K C2 C3 E12 E13 E14 E15 M3 C4 C5 N0 N1 C6 C7 N2 N3 M4 V N4 N5 N6 N7", npre=8, osc=" sc1", lsc=" sc1", NB=4, psl=2, spin=200000, rsl=1, wsl=16, prios2=None, nowo=0)

def gen_k2(A, name="k2_kernel", P=None):
    P = dict(DEF, **(P or {}))
    ST = P["st"]
    A.begin(name)
    E = f"L_{name}"
    A(f"""
s_cmp_ge_u32 s2, 256
s_cbranch_scc1 {E}_end
s_load_dwordx2 s[12:13], s[0:1], 64
s_load_dwordx2 s[4:5], s[0:1], 0
s_load_dwordx2 s[6:7], s[0:1], 16
s_load_dwordx2 s[8:9], s[0:1], 48
v_lshrrev_b32 v1, 6, v0
v_and_b32 v2, 63, v0
s_and_b32 s40, s2, 7
s_lshr_b32 s41, s2, 3
v_readfirstlane_b32 s29, v1
v_lshlrev_b32 v5, 4, v2
v_lshrrev_b32 v3, 5, v2
v_and_b32 v4, 31, v2
s_mov_b32 s46, {WS_BYTES}
s_mov_b32 s47, 0x20000
s_lshl_b32 s14, s40, 2
s_lshr_b32 s15, s41, 3
s_add_u32 s14, s14, s15
s_and_b32 s19, s41, 7
s_mul_i32 s16, s14, {HSTRIDE}
s_add_u32 s18, s16, {KVF}
s_lshl_b32 s15, s19, 3
s_mul_i32 s19, s19, {20480 * P['rot']}
s_cmp_ge_u32 s29, 8
s_cbranch_scc1 {E}_ffn
s_add_u32 s15, s15, s29
s_mul_i32 s20, s15, 2560
s_add_u32 s20, s20, s16
s_add_u32 s20, s20, {QF}
s_add_u32 s21, s18, s19
v_lshlrev_b32 v6, 3, v4
s_waitcnt lgkmcnt(0)
s_mov_b32 s44, s12
s_mov_b32 s45, s13
""")
    QM, QR, KM, KR, V0, V1 = 8, 12, 16, 20, 24, 28
    S = [32, 48]; O = 64; CB = 80
    FL = 120
    A(f"buffer_load_dwordx4 {vr(QM,4)}, v5, s[44:47], s20 offen")
    A(f"buffer_load_dwordx2 {vr(QR,2)}, v6, s[44:47], s20 offen offset:1024")
    A(f"buffer_load_dwordx4 {vr(KM,4)}, v5, s[44:47], s21 offen")
    A(f"""
v_and_b32 v{FL+1}, 3, v2
v_lshlrev_b32 v{FL+1}, 2, v{FL+1}
s_lshl_b32 s21, s29, 2
s_add_u32 s21, s21, 64
v_mov_b32 v{FL+2}, s21
""")
    A(f"""
v_mul_u32_u24 v7, 320, v3
v_lshl_add_u32 v7, v4, 4, v7
v_add_u32 v7, 1280, v7
v_add_u32 v6, 1024, v6
v_mov_b32 v1, 0x3f803f80
v_cmp_eq_u32 vcc, 20, v4
v_cmp_gt_u32 s[22:23], 20, v4
v_cmp_gt_u32 s[24:25], 32, v2
""")
    DB = P["db"]
    KB = [(KM, KR), (124, 128) if DB else (KM, KR)]; VB = [V0, 132 if DB else V0]
    for i in range(8): A(f"v_cndmask_b32 v{V0+i}, 0, v1, vcc")
    if DB:
        for i in range(8): A(f"v_cndmask_b32 v{VB[1]+i}, 0, v1, vcc")
    A("s_waitcnt vmcnt(0)\ns_barrier\n; MARK 0")
    def kread(o, km=None, kr=None):
        if km is None: km, kr = KB[o & 1]
        A(f"ds_read_b128 {vr(km,4)}, v5 offset:{o*2560}\nds_read_b64 {vr(kr,2)}, v6 offset:{o*2560}")
    def vread(o):
        A(f"s_mov_b64 exec, s[22:23]\nds_read_b128 {vr(VB[o&1],4)}, v7 offset:{o*2560}\nds_read_b128 {vr(VB[o&1]+4,4)}, v7 offset:{o*2560+640}\ns_mov_b64 exec, -1")
    A(f"ds_read_b64 {vr(KR,2)}, v6")
    for t in range(1, NP): kread(t, CB + 4 * t, 96 + 2 * t)
    A(f"v_cndmask_b32 v{QR}, 0, v{QR}, s[24:25]\nv_cndmask_b32 v{QR+1}, 0, v{QR+1}, s[24:25]")
    for t in range(NP):
        A(f"s_waitcnt lgkmcnt({2*(NP-1-t)})")
        dst = [S[0], S[1], O, 104][t]
        km, kr = (KM, KR) if t == 0 else (CB + 4 * t, 96 + 2 * t)
        A(f"v_mfma_f32_32x32x16_bf16 {vr(dst,16)}, {vr(km,4)}, {vr(QM,4)}, 0")
        A(f"v_mfma_f32_32x32x8_bf16 {vr(dst,16)}, {vr(kr,2)}, {vr(QR,2)}, {vr(dst,16)}")
    for t in range(NP):
        dst = [S[0], S[1], O, 104][t]
        for k in range(8):
            if t == 0 and k == 0: A(f"v_max_f32 v1, v{dst}, v{dst+1}")
            else: A(f"v_max3_f32 v1, v1, v{dst+2*k}, v{dst+2*k+1}")
    A(f"""
v_mov_b32 v14, v1
s_mov_b32 s26, {f32bits(P['offs'])}
v_permlane32_swap_b32 v1, v14
v_max_f32 v1, v1, v14
v_add_f32 v1, s26, v1
""")
    for i in range(16): A(f"v_sub_f32 v{CB+i}, 0, v1")
    for i in range(16): A(f"v_mov_b32 v{O+i}, 0")
    def M1(t): A(f"v_mfma_f32_32x32x16_bf16 {vr(S[t&1],16)}, {vr(KB[t&1][0],4)}, {vr(QM,4)}, {vr(CB,16)}")
    def M2(t): A(f"v_mfma_f32_32x32x8_bf16 {vr(S[t&1],16)}, {vr(KB[t&1][1],2)}, {vr(QR,2)}, {vr(S[t&1],16)}")
    def Ex(t, *idx):
        for i in idx: A(f"v_exp_f32 v{S[t&1]+i}, v{S[t&1]+i}")
    def Cv(t, *idx):
        for k in idx:
            d = S[t & 1] + (k & 3) + 8 * (k >> 2)
            A(f"v_cvt_pk_bf16_f32 v{d}, v{S[t&1]+2*k}, v{S[t&1]+2*k+1}")
    A("; MARK 1\ns_waitcnt lgkmcnt(0)")
    if DB:
        kread(1); vread(0); M1(0); M2(0); kread(2); vread(1)
    else:
        M1(0); M2(0); kread(1); vread(0)
    W = 6 if DB else 2
    Ex(0, *range(P["npre"]))
    def tile(t, hook=None, pr=None):
        pr = pr or P["prios"]
        if pr and (t == 0 or pr[t % len(pr)] != pr[(t - 1) % len(pr)]): A(f"s_setprio {pr[t % len(pr)]}")
        for tok in P["order"].split():
            if tok == "M1": A(f"s_waitcnt lgkmcnt({W})"); M1(t + 1)
            elif tok == "M2": M2(t + 1)
            elif tok == "M3": A(f"s_waitcnt lgkmcnt({W})\nv_mfma_f32_32x32x16_bf16 {vr(O,16)}, {vr(VB[t&1],4)}, {vr(S[t&1],4)}, {vr(O,16)}")
            elif tok == "M4": A(f"v_mfma_f32_32x32x16_bf16 {vr(O,16)}, {vr(VB[t&1]+4,4)}, {vr(S[t&1]+8,4)}, {vr(O,16)}")
            elif tok == "K":
                if hook: hook(t, 0)
                kread(t + 2 + DB)
                if hook: hook(t, 1)
            elif tok == "V": vread(t + 1 + DB)
            elif tok[0] == "E": Ex(t, int(tok[1:]))
            elif tok[0] == "N": Ex(t + 1, int(tok[1:]))
            elif tok[0] == "C": Cv(t, int(tok[1:]))
            else: raise ValueError(tok)
    adv = "v_add_u32 v5, 20480, v5\nv_add_u32 v6, 20480, v6\nv_add_u32 v7, 20480, v7"
    npoll = [0]
    def check(thr):
        k = npoll[0]; npoll[0] += 1
        A(f"""
s_waitcnt lgkmcnt(2)
v_cmp_gt_u32 vcc, {thr}, v{FL}
s_cbranch_vccz {E}_ok{k}
{E}_poll{k}:
s_sleep 1
ds_read_b32 v{FL}, v{FL+1}
s_waitcnt lgkmcnt(0)
v_cmp_gt_u32 vcc, {thr}, v{FL}
s_cbranch_vccnz {E}_poll{k}
{E}_ok{k}:
""")
    rdflag = f"ds_read_b32 v{FL}, v{FL+1}"
    def hook0(t, ph):
        if ph == 1 and t in (3 - DB, 7): A(rdflag)
        if ph == 0 and t == 4 - DB: check(1)
    for t in range(8): tile(t, hook0)
    A(adv)
    A(f"s_mov_b32 s27, 1\ns_mov_b32 s28, 0")
    def hook1(t, ph):
        if ph == 0 and t == 0: check("s28")
        if ph == 1 and t == 0: A(f"s_mov_b32 s28, 2\nv_mov_b32 v{FL+3}, s27\nds_write_b32 v{FL+2}, v{FL+3}")
        if ph == 1 and t == 7: A(rdflag)
    copies = [("", P["prios"])] + ([("b", P["prios2"])] if P["prios2"] else [])
    if P["prios2"]: A(f"s_cmp_ge_u32 s29, 4\ns_cbranch_scc1 {E}_loopb")
    for sfx, pr in copies:
        A(f"""
{E}_loop{sfx}:
s_cmp_eq_u32 s27, 4
s_cbranch_scc0 {E}_nm{sfx}
; MARK 2
{E}_nm{sfx}:
""")
        for t in range(8): tile(t, hook1, pr)
        A(adv)
        A(f"s_add_u32 s27, s27, 1\ns_cmp_lt_u32 s27, 8\ns_cbranch_scc1 {E}_loop{sfx}")
        if sfx == "" and P["prios2"]: A(f"s_branch {E}_ldone")
    A(f"{E}_ldone:")
    A(f"; MARK 3\ns_setprio 0\nv_mov_b32 v{FL+3}, 8\nds_write_b32 v{FL+2}, v{FL+3}\nv_mov_b32 v1, 0\ns_movk_i32 s26, 0x207")
    for i in range(12): A(f"v_fma_f32 v1, v{O+i}, 0, v1")
    A(f"""
v_cmp_class_f32 vcc, v1, s26
s_cbranch_vccnz {E}_fb
{E}_epi:
v_mov_b32 v14, v{O+8}
v_mov_b32 v15, v{O+8}
s_mul_i32 s26, s15, 40960
s_mul_i32 s27, s14, 1280
v_permlane32_swap_b32 v14, v15
v_rcp_f32 v14, v15
v_lshlrev_b32 v5, 4, v2
v_lshlrev_b32 v6, 3, v4
s_add_u32 s26, s26, s27
s_add_u32 s26, s26, {OF}
""")
    for k in range(6): A(f"v_pk_mul_f32 {vr(O+2*k,2)}, {vr(O+2*k,2)}, v[14:15] op_sel_hi:[1,0]")
    for k in range(6): A(f"v_cvt_pk_bf16_f32 v{O+k}, v{O+2*k}, v{O+2*k+1}")
    OSC = P["osc"]; LSC = P["lsc"]
    WO = 1024; PR = 143360
    A(f"""
buffer_store_dwordx4 {vr(O,4)}, v5, s[44:47], s26 offen{OSC}
s_mov_b64 exec, s[24:25]
buffer_store_dwordx2 {vr(O+4,2)}, v6, s[44:47], s26 offen offset:1024{OSC}
s_mov_b64 exec, -1
s_lshr_b32 s26, s15, 1
s_lshl_b32 s26, s26, 8
s_and_b32 s27, s15, 1
s_lshl_b32 s27, s27, 7
s_add_u32 s26, s26, s27
s_lshl_b32 s27, s14, 2
s_add_u32 s26, s26, s27
s_add_u32 s26, s26, {FL2}
s_lshr_b32 s50, s40, 1
s_lshl_b32 s50, s50, 3
s_and_b32 s51, s41, 7
s_add_u32 s50, s50, s51
s_lshl_b32 s50, s50, 1
s_bfe_u32 s51, s41, 0x10003
s_lshr_b32 s52, s29, 2
s_xor_b32 s53, s51, s52
s_add_u32 s50, s50, s53
s_and_b32 s53, s29, 1
s_bfe_u32 s54, s29, 0x10001
s_and_b32 s55, s40, 1
s_lshl_b32 s55, s55, 1
s_lshr_b32 s56, s41, 4
s_add_u32 s55, s55, s56
s_mul_i32 s55, s55, 320
s_lshl_b32 s56, s51, 7
s_add_u32 s55, s55, s56
s_and_b32 s56, s51, s52
s_lshl_b32 s56, s56, 6
s_add_u32 s55, s55, s56
s_mul_i32 s57, s50, 40960
s_add_u32 s55, s55, s57
s_mul_i32 s58, s54, 20480
s_add_u32 s57, s57, s58
s_add_u32 s57, s57, {OF}
s_mul_i32 s58, s54, 61440
s_add_u32 s58, s58, s56
s_add_u32 s58, s58, {WO}
s_sub_u32 s59, 3, s52
s_mul_i32 s59, s59, s53
s_lshl_b32 s59, s59, 11
s_mul_i32 s60, s52, 12288
s_add_u32 s59, s59, s60
s_add_u32 s59, s59, {PR}
s_lshl_b32 s60, s53, 4
v_and_b32 v8, 15, v2
v_add_u32 v8, s60, v8
v_lshrrev_b32 v9, 4, v2
v_lshrrev_b32 v10, 5, v2
v_and_b32 v11, 1, v9
v_mul_u32_u24 v12, 1280, v10
v_lshl_add_u32 v12, v11, 9, v12
v_lshl_add_u32 v6, v8, 4, v12
v_mul_u32_u24 v12, 2560, v9
v_lshl_add_u32 v7, v8, 3, v12
v_mul_u32_u24 v12, 1280, v8
v_lshl_add_u32 v13, v9, 3, v12
v_bfe_u32 v12, v2, 2, 2
v_and_b32 v14, 3, v2
v_lshl_add_u32 v14, v14, 3, s58
v_mul_u32_u24 v15, 40, v9
v_add_u32 v15, v15, v12
v_add_u32 v15, 16, v15
v_mul_u32_u24 v15, 192, v15
v_add_u32 v15, v15, v14
v_mul_u32_u24 v8, 20, v10
v_lshl_add_u32 v8, v11, 2, v8
v_add_u32 v8, v8, v12
v_mul_u32_u24 v8, 192, v8
v_add_u32 v8, v8, v14
v_xor_b32 v10, v10, v11
v_lshlrev_b32 v10, 5, v10
v_sub_u32 v9, v8, v10
v_add_u32 v8, v8, v10
v_add_u32 v5, s59, v5
v_mov_b32 v11, v{FL+1}
v_mov_b32 v1, 1
v_mov_b32 v10, 0
s_mov_b32 s48, s8
s_mov_b32 s49, s9
s_mov_b32 s50, 2621440
s_mov_b32 s51, 0x20000
s_waitcnt vmcnt(0)
s_mov_b64 exec, 1
buffer_store_dword v1, v10, s[44:47], s26 offen sc1
s_mov_b64 exec, -1
; MARK 4
""")
    nw_ = [0]
    def lwait(thr):
        k = nw_[0]; nw_[0] += 1
        A(f"""
{E}_lw{k}:
ds_read_b32 v1, v11
s_waitcnt lgkmcnt(0)
v_cmp_gt_u32 vcc, {thr}, v1
s_cbranch_vccz {E}_lwd{k}
s_sleep {P['psl']}
s_branch {E}_lw{k}
{E}_lwd{k}:
""")
    lwait(5)
    A(f"; MARK 5\ns_cmp_lg_u32 s52, 0\ns_cbranch_scc1 {E}_tB")
    OB = 16; AC = 56; WB = 80; NB = P["NB"]
    for ty, nb in ((0, 6), (1, 4)):
        T = "AB"[ty]
        if ty: A(f"{E}_tB:")
        q = []
        def need(tag):
            idx = max([i for i, t in enumerate(q) if t == tag], default=-1)
            if idx >= 0:
                A(f"s_waitcnt lgkmcnt({min(len(q) - 1 - idx, 15)})"); del q[:idx + 1]
        nbuf = min(NB, 88 // (4 * nb))
        def wr(st, lo=0, hi=99):
            b = WB + (st % nbuf) * 4 * nb
            for u in range(max(lo, 0), min(hi, nb)):
                if st < 8:
                    a = 8 + (u & 1); o1 = 7680 * st + 32 * u; o2 = o1 + 1536
                else:
                    a = 15; o1 = 30720 * (st - 8) + 32 * u; o2 = 30720 * (st - 8) + 3840 + 32 * (u ^ 1)
                A(f"ds_read_b64_tr_b16 {vr(b+4*u,2)}, v{a} offset:{o1}"); q.append((st, u))
                A(f"ds_read_b64_tr_b16 {vr(b+4*u+2,2)}, v{a} offset:{o2}"); q.append((st, u))
        for st in range(nbuf): wr(st)
        A("s_waitcnt lgkmcnt(0)"); q.clear()
        lwait(6)
        A("; MARK 6" if ty == 0 else "; MARK 6")
        for st in range(8):
            A(f"buffer_load_dwordx4 {vr(OB+4*st,4)}, v6, s[44:47], s57 offen{LSC}")
            A(f"s_add_u32 s57, s57, {2560 if st < 7 else -17920 & 0xffffffff}")
        for rr in range(2):
            for e in range(2):
                A(f"buffer_load_dwordx2 {vr(OB+32+4*rr+2*e,2)}, v7, s[44:47], s57 offen offset:{1024+1280*e}{LSC}")
            if rr == 0: A("s_add_u32 s57, s57, 10240")
        hn = nb // 2
        A(f"s_cmp_lg_u32 s54, 0\ns_cbranch_scc1 {E}_i1{T}")
        for h in range(2):
            if h: A(f"{E}_i1{T}:")
            send = range(hn, nb) if h == 0 else range(hn)
            for u in send: A(f"ds_read_b128 {vr(AC+4*u,4)}, v5 offset:{u*1024}")
            for u in range(nb):
                if u not in send:
                    for k in range(4): A(f"v_mov_b32 v{AC+4*u+k}, 0")
            if h == 0: A(f"s_branch {E}_i2{T}")
        A(f"{E}_i2{T}:\ns_waitcnt lgkmcnt(0)")
        for st in range(10):
            A(f"s_waitcnt vmcnt({11 - st if st < 8 else 2 * (9 - st)})")
            if st == 0: A("; MARK 7")
            b = WB + (st % nbuf) * 4 * nb
            for u in range(nb):
                need((st, u))
                A(f"v_mfma_f32_16x16x32_bf16 {vr(AC+4*u,4)}, {vr(b+4*u,4)}, {vr(OB+4*st,4)}, {vr(AC+4*u,4)}")
                if st + nbuf < 10 and u >= 1: wr(st + nbuf, u - 1, u)
            if st + nbuf < 10: wr(st + nbuf, nb - 1, nb)
        A(f"; MARK 8\ns_cmp_lg_u32 s54, 0\ns_cbranch_scc1 {E}_f1{T}")
        for h in range(2):
            if h: A(f"{E}_f1{T}:")
            send = range(hn, nb) if h == 0 else range(hn)
            fin = [u for u in range(nb) if u not in send]
            for u in send: A(f"ds_write_b128 v5, {vr(AC+4*u,4)} offset:{u*1024}")
            A("s_waitcnt lgkmcnt(0)\ns_barrier")
            for u in fin: A(f"ds_read_b128 {vr(WB+4*u,4)}, v5 offset:{u*1024}")
            for i, u in enumerate(fin):
                A(f"s_waitcnt lgkmcnt({len(fin) - 1 - i})")
                a = AC + 4 * u
                for k in range(4): A(f"v_add_f32 v{a+k}, v{a+k}, v{WB+4*u+k}")
                A(f"v_cvt_pk_bf16_f32 v{a}, v{a}, v{a+1}\nv_cvt_pk_bf16_f32 v{a+1}, v{a+2}, v{a+3}")
                A(f"buffer_store_dwordx2 {vr(a,2)}, v13, s[48:51], s55 offen offset:{u*32}")
            A("s_endpgm")
    A(f"""
{E}_fb:
s_waitcnt lgkmcnt(0)
v_lshlrev_b32 v5, 4, v2
v_lshlrev_b32 v6, 3, v4
v_mul_u32_u24 v7, 320, v3
v_lshl_add_u32 v7, v4, 4, v7
v_mov_b32 v1, 0xff800000
s_mov_b32 s26, s18
s_mov_b32 s27, 64
{E}_fb1:
buffer_load_dwordx4 {vr(KM,4)}, v5, s[44:47], s26 offen
buffer_load_dwordx2 {vr(KR,2)}, v6, s[44:47], s26 offen offset:1024
s_waitcnt vmcnt(0)
v_mfma_f32_32x32x16_bf16 {vr(S[0],16)}, {vr(KM,4)}, {vr(QM,4)}, 0
v_mfma_f32_32x32x8_bf16 {vr(S[0],16)}, {vr(KR,2)}, {vr(QR,2)}, {vr(S[0],16)}
""")
    for k in range(8): A(f"v_max3_f32 v1, v1, v{S[0]+2*k}, v{S[0]+2*k+1}")
    A(f"""
s_add_u32 s26, s26, 2560
s_sub_u32 s27, s27, 1
s_cmp_lg_u32 s27, 0
s_cbranch_scc1 {E}_fb1
v_mov_b32 v14, v1
v_permlane32_swap_b32 v1, v14
v_max_f32 v1, v1, v14
""")
    for i in range(16): A(f"v_sub_f32 v{CB+i}, 0, v1\nv_mov_b32 v{O+i}, 0")
    A(f"""
s_mov_b32 s26, s18
s_mov_b32 s27, 64
{E}_fb2:
buffer_load_dwordx4 {vr(KM,4)}, v5, s[44:47], s26 offen
buffer_load_dwordx2 {vr(KR,2)}, v6, s[44:47], s26 offen offset:1024
s_mov_b64 exec, s[22:23]
buffer_load_dwordx4 {vr(V0,4)}, v7, s[44:47], s26 offen offset:1280
buffer_load_dwordx4 {vr(V1,4)}, v7, s[44:47], s26 offen offset:1920
s_mov_b64 exec, -1
s_waitcnt vmcnt(0)
""")
    M1(0); M2(0)
    Ex(0, *range(16)); Cv(0, *range(8))
    A(f"""
v_mfma_f32_32x32x16_bf16 {vr(O,16)}, {vr(V0,4)}, {vr(S[0],4)}, {vr(O,16)}
v_mfma_f32_32x32x16_bf16 {vr(O,16)}, {vr(V1,4)}, {vr(S[0]+8,4)}, {vr(O,16)}
s_add_u32 s26, s26, 2560
s_sub_u32 s27, s27, 1
s_cmp_lg_u32 s27, 0
s_cbranch_scc1 {E}_fb2
s_nop 15
s_branch {E}_epi
""")
    A(f"""
{E}_ffn:
s_setprio 3
s_sub_u32 s29, s29, 8
s_lshl_b32 s17, s29, 10
s_add_u32 s19, s19, s17
v_add_u32 v15, s18, v5
v_mov_b32 v1, 0
v_lshlrev_b32 v7, 2, v2
s_waitcnt lgkmcnt(0)
s_mov_b32 s44, s12
s_mov_b32 s45, s13
""")
    def dma(i):
        if i == 0: A(f"s_cmp_eq_u32 s29, 0\ns_cbranch_scc1 {E}_d0")
        A(f"s_add_u32 m0, s17, {i*4096}\nbuffer_load_dwordx4 v15, s[44:47], s19 offen lds")
        if i == 0: A(f"{E}_d0:")
        if i < 39: A(f"s_add_u32 s19, s19, 4096\ns_cmp_ge_u32 s19, {HSTRIDE}\ns_cselect_b32 s21, {HSTRIDE}, 0\ns_sub_u32 s19, s19, s21")
    for i in range(4): dma(i)
    A("ds_write_b32 v7, v1")
    A(f"""
s_lshr_b32 s14, s40, 1
s_lshl_b32 s14, s14, 3
s_and_b32 s24, s41, 7
s_add_u32 s14, s14, s24
s_lshl_b32 s14, s14, 1
s_bfe_u32 s25, s41, 0x10003
s_xor_b32 s15, s25, 1
s_add_u32 s15, s15, s14
s_add_u32 s14, s14, s25
s_and_b32 s27, s40, 1
s_lshl_b32 s27, s27, 1
s_lshr_b32 s16, s41, 4
s_add_u32 s27, s27, s16
s_and_b32 s24, s41, 15
s_mul_i32 s24, s24, 27
s_lshr_b32 s24, s24, 4
s_mul_i32 s24, s24, {P['frot']}
s_add_u32 s20, s17, {HF}
s_mul_i32 s23, s29, 20480
s_mul_i32 s28, s27, 5120
s_add_u32 s23, s23, s28
s_add_u32 s23, s23, {W2F}
s_add_u32 s22, s20, {27*4096}
s_lshl_b32 s16, s24, 12
s_add_u32 s16, s16, s20
s_mul_i32 s26, s24, 81920
s_add_u32 s26, s26, s23
s_mul_i32 s30, s14, {108*1024}
s_mul_i32 s31, s15, {108*1024}
v_add_u32 v8, s30, v5
v_add_u32 v9, s31, v5
s_lshl_b32 s30, s25, 12
s_lshl_b32 s31, s25, 11
s_add_u32 s31, s31, 1024
v_add_u32 v10, s30, v5
v_add_u32 v11, s31, v5
v_add_u32 v12, 2048, v5
s_lshl_b32 s30, s14, 7
s_lshl_b32 s31, s15, 7
s_add_u32 s30, s30, {RS}
s_add_u32 s31, s31, {RS}
v_lshlrev_b32 v6, 2, v4
v_mov_b32 v7, s29
v_lshlrev_b32 v7, 2, v7
s_waitcnt vmcnt(0) lgkmcnt(0)
s_barrier
; MARK 0
""")
    C1 = P["c1"]
    for i in range(4, 16 + C1): dma(i)
    A(f"v_mov_b32 v1, 1\ns_waitcnt vmcnt({C1})\nds_write_b32 v7, v1\n; MARK 4")
    for i in range(16 + C1, 40): dma(i)
    A("buffer_load_dword v13, v6, s[44:47], s30 offen\nbuffer_load_dword v14, v6, s[44:47], s31 offen")
    XR = 76
    A(f"""
s_mov_b32 s48, s4
s_mov_b32 s49, s5
s_mov_b32 s50, 2621440
s_mov_b32 s51, 0x20000
v_mul_u32_u24 v86, 1280, v4
v_lshl_add_u32 v86, v3, 3, v86
s_mul_i32 s52, s27, 320
s_lshl_b32 s53, s29, 4
s_add_u32 s52, s52, s53
s_mul_i32 s53, s14, 40960
s_mul_i32 s54, s15, 40960
s_add_u32 s53, s53, s52
s_add_u32 s54, s54, s52
s_lshl_b32 s55, s25, 8
s_lshl_b32 s56, s25, 7
s_add_u32 s56, s56, 64
s_add_u32 s30, s54, s55
s_add_u32 s31, s54, s56
s_add_u32 s32, s53, s55
s_add_u32 s33, s53, s56
s_add_u32 s34, s53, 128
""")
    for t in range(5): A(f"buffer_load_dwordx2 {vr(XR+2*t,2)}, v86, s[48:51], s{30+t} offen")
    ACC = 88
    class Q:
        def __init__(s): s.q = []
        def op(s, tag, txt): A(txt); s.q.append(tag)
        def need(s, *tags):
            idx = max([i for i, t in enumerate(s.q) if t in tags], default=-1)
            if idx >= 0:
                A(f"s_waitcnt vmcnt({len(s.q) - 1 - idx})"); s.q = s.q[idx + 1:]
    VQ = Q()
    addr = {0: (9, 16), 1: (10, 26), 2: (11, 26), 3: (12, 26), 4: (8, 16)}
    def fl(i, j):
        b = 16 + 20 * (i % 3)
        VQ.op((i, j), f"buffer_load_dwordx4 {vr(b+4*j,4)}, v{addr[j][0]}, s[44:47], s{addr[j][1]} offen")
        if j == 4: A("s_add_u32 s16, s16, 4096\ns_add_u32 s26, s26, 81920\ns_cmp_eq_u32 s16, s22\ns_cselect_b32 s16, s20, s16\ns_cselect_b32 s26, s23, s26")
    for i in range(3):
        for j in range(5): fl(i, j)
    A(f"v_mov_b32 v1, 2\ns_waitcnt vmcnt(22)\nds_write_b32 v7, v1\n; MARK 5\ns_setprio {P['prio_ffn']}")
    blk = [(0, 1), (0, 2), (4, 1), (4, 2), (4, 3)]
    after = {1: [0], 2: [1], 3: [2], 4: [3, 4]}
    for i in range(27):
        if P["noffn"]: continue
        b = 16 + 20 * (i % 3)
        for t, (hj, wj) in enumerate(blk):
            VQ.need((i, hj), (i, wj))
            c = "0" if i == 0 else vr(ACC + 16 * t, 16)
            A(f"v_mfma_f32_32x32x16_bf16 {vr(ACC+16*t,16)}, {vr(b+4*wj,4)}, {vr(b+4*hj,4)}, {c}")
            if i + 3 < 27:
                for j in after.get(t, []): fl(i + 3, j)
        if i == 13: A("; MARK 1")
    RED = 2560
    A(f"""
; MARK 2
s_setprio {P['prio_red']}
v_and_b32 v1, 7, v2
v_lshlrev_b32 v1, 2, v1
""")
    for q in range(4):
        A(f"s_sub_u32 s16, s29, {q+1}\ns_and_b32 s16, s16, 3\ns_mul_i32 s16, s16, 5120\ns_add_u32 s16, s16, {RED + q*15360}\nv_add_u32 v{8+q}, s16, v5")
    A(f"""
{E}_w1:
ds_read_b32 v16, v1 offset:64
s_waitcnt lgkmcnt(0)
v_cmp_gt_u32 vcc, {P['T1']}, v16
s_cbranch_vccz {E}_w1d
s_sleep 4
s_branch {E}_w1
{E}_w1d:
; MARK 6
""")
    OWN = 56
    for q in range(4):
        A(f"s_cmp_eq_u32 s29, {q}\ns_cbranch_scc1 {E}_own{q}")
        for t in range(5): A(f"ds_write_b128 v{8+q}, {vr(ACC+16*t+4*q,4)} offset:{t*1024}")
        A(f"s_branch {E}_nx{q}\n{E}_own{q}:")
        for t in range(5):
            for k in range(4): A(f"v_mov_b32 v{OWN+4*t+k}, v{ACC+16*t+4*q+k}")
        A(f"{E}_nx{q}:")
    A(f"""
v_mov_b32 v16, 3
ds_write_b32 v7, v16
s_mul_i32 s17, s29, 15360
s_add_u32 s17, s17, {RED}
v_add_u32 v9, s17, v5
v_and_b32 v8, 12, v1
s_mov_b32 s36, 0xffff0000
{E}_w2:
ds_read_b32 v16, v8
s_waitcnt lgkmcnt(0)
v_cmp_gt_u32 vcc, 3, v16
s_cbranch_vccz {E}_w2d
s_sleep 1
s_branch {E}_w2
{E}_w2d:
; MARK 3
""")
    for t in range(5):
        for jj in range(3):
            A(f"ds_read_b128 {vr(88+12*t+4*jj,4)}, v9 offset:{jj * 5120 + t * 1024}")
    for t in range(5):
        b = 88 + 12 * t; o = OWN + 4 * t
        rreg = 14 if t < 2 else 13
        A(f"s_waitcnt lgkmcnt({3 * (4 - t)})")
        for k in range(4):
            A(f"v_add_f32 v{o+k}, v{o+k}, v{b+k}")
            A(f"v_add_f32 v{b+4+k}, v{b+4+k}, v{b+8+k}")
        for k in range(4): A(f"v_add_f32 v{o+k}, v{o+k}, v{b+4+k}")
        for k in range(2): A(f"v_lshlrev_b32 v{b+2*k}, 16, v{XR+2*t+k}\nv_and_b32 v{b+2*k+1}, s36, v{XR+2*t+k}")
        for k in range(4): A(f"v_fma_f32 v{o+k}, v{o+k}, v{rreg}, v{b+k}")
        if t == 4: A("v_mov_b32 v16, 4\nds_write_b32 v7, v16")
    A(f"""
; MARK 7
s_setprio 3
s_mov_b32 s48, s6
s_mov_b32 s49, s7
s_mov_b32 s50, 819200
s_mul_i32 s52, s27, 320
s_lshl_b32 s53, s25, 7
s_add_u32 s52, s52, s53
s_mul_i32 s53, s29, 20480
s_add_u32 s52, s52, s53
s_mul_i32 s53, s29, 3072
s_add_u32 s53, s53, {WO}
""")
    for c in range(3):
        A(f"""
v_add_u32 v16, {64*c}, v2
v_mul_u32_u24 v17, 5462, v16
v_lshrrev_b32 v17, 16, v17
v_mul_u32_u24 v18, 12, v17
v_sub_u32 v16, v16, v18
v_bfe_u32 v18, v17, 2, 1
v_lshlrev_b32 v18, 1, v18
v_xor_b32 v16, v16, v18
v_mul_u32_u24 v17, 1280, v17
v_lshl_add_u32 v{10+c}, v16, 4, v17
""")
    A(f"""
s_lshr_b32 s54, s29, 1
s_lshl_b32 s54, s54, 10
s_and_b32 s55, s29, 1
s_lshl_b32 s55, s55, 9
s_add_u32 s54, s54, s55
s_add_u32 s54, s54, {PR}
v_and_b32 v16, 15, v2
v_lshlrev_b32 v16, 4, v16
v_lshl_add_u32 v16, v3, 8, v16
v_add_u32 v16, s54, v16
v_bfe_u32 v17, v2, 4, 1
v_mul_u32_u24 v18, 6144, v17
v_add_u32 v18, v18, v16
v_lshl_add_u32 v17, v17, 12, v16
s_lshl_b32 s54, s25, 11
s_lshl_b32 s55, s25, 12
v_add_u32 v20, s54, v17
v_subrev_u32 v21, s54, v17
v_add_u32 v22, s55, v18
v_subrev_u32 v24, s55, v18
s_lshr_b32 s56, s14, 1
s_lshl_b32 s56, s56, 8
s_add_u32 s56, s56, {FL2}
v_lshlrev_b32 v19, 2, v2
""")
    npw = [0]
    def pwait(reg, off, thr, sl=2):
        k = npw[0]; npw[0] += 1
        A(f"""
{E}_pw{k}:
ds_read_b32 v16, v{reg} offset:{off}
s_waitcnt lgkmcnt(0)
v_cmp_gt_u32 vcc, {thr}, v16
s_cbranch_vccz {E}_pwd{k}
s_sleep {sl}
s_branch {E}_pw{k}
{E}_pwd{k}:
""")
    pwait(8, 0, 4, 1)
    for i in range(10):
        if i in (6, 8, 9): pwait(1, 64, {6: 5, 8: 6, 9: 7}[i], P['wsl'])
        for c in range(3):
            if not P["nowo"]: A(f"s_add_u32 m0, s53, {i*12288 + c*1024}\nbuffer_load_dwordx4 v{10+c}, s[48:51], s52 offen lds")
        if i < 9: A("s_add_u32 s52, s52, 81920")
    A(f"""
; MARK 8
v_mov_b32 v16, 5
s_waitcnt vmcnt(0)
ds_write_b32 v7, v16
; MARK 9
""")
    pwait(1, 64, 8, 2)
    for t, (r, o) in enumerate(((20, 12288), (21, 14336), (22, 0), (18, 2048), (24, 4096))):
        A(f"ds_write_b128 v{r}, {vr(OWN+4*t,4)} offset:{o}")
    A(f"""
; MARK 10
s_cmp_lg_u32 s29, 0
s_cbranch_scc1 {E}_go
s_mov_b32 s57, {P['spin']}
{E}_rp:
buffer_load_dword v16, v19, s[44:47], s56 offen sc1
s_sub_u32 s57, s57, 1
s_waitcnt vmcnt(0)
v_cmp_ne_u32 vcc, 1, v16
s_cbranch_vccz {E}_go
s_cmp_eq_u32 s57, 0
s_cbranch_scc1 {E}_go
s_sleep {P['rsl']}
s_branch {E}_rp
{E}_go:
v_mov_b32 v16, 6
ds_write_b32 v7, v16
; MARK 11
s_waitcnt lgkmcnt(0)
s_barrier
""")
    A(f"{E}_end:\ns_endpgm")
    A.end(name, 168, 64)
```

```python
from asmlib import *
from layout import *

NP = 4
DEF = dict(offs=96.0, T1=4, prio_ffn=0, prio_red=1, prio_add=0, c1=3, prios=(3, 2, 1, 0), rot=1, frot=1,
           order="M1 E8 E9 C0 C1 E10 E11 M2 K C2 C3 E12 E13 E14 E15 M3 C4 C5 N0 N1 C6 C7 N2 N3 M4 V N4 N5 N6 N7", npre=8,
           osc=" sc1", lsc=" sc1", psl=2, spin=200000, rsl=1, wsl=8, G0=1, DO=5, npoll=1, addpos=11)
WO = 1024; PR = 143360; MSK = 96
F_G1, F_G5, F_ALL, F_RW, F_RR, F_WO, F_FX = 1, 2, 3, 4, 5, 6, 7

def gen_k2(A, name="k2_kernel", P=None):
    P = dict(DEF, **(P or {}))
    A.begin(name)
    E = f"L_{name}"
    G0 = P["G0"]
    A(f"""
s_cmp_ge_u32 s2, 256
s_cbranch_scc1 {E}_end
s_load_dwordx2 s[12:13], s[0:1], 64
s_load_dwordx2 s[4:5], s[0:1], 0
s_load_dwordx2 s[6:7], s[0:1], 16
s_load_dwordx2 s[8:9], s[0:1], 48
v_lshrrev_b32 v1, 6, v0
v_and_b32 v2, 63, v0
s_and_b32 s40, s2, 7
s_lshr_b32 s41, s2, 3
v_readfirstlane_b32 s29, v1
v_lshlrev_b32 v5, 4, v2
v_lshrrev_b32 v3, 5, v2
v_and_b32 v4, 31, v2
s_mov_b32 s46, {WS_BYTES}
s_mov_b32 s47, 0x20000
s_lshl_b32 s14, s40, 2
s_lshr_b32 s15, s41, 3
s_add_u32 s14, s14, s15
s_mul_i32 s16, s14, 5
s_add_u32 s16, s16, 1
s_lshr_b32 s16, s16, 1
s_lshl_b32 s16, s16, 9
s_add_u32 s16, s16, {QF}
s_movk_i32 s17, 1024
s_bitcmp1_b32 s14, 0
s_cselect_b32 s17, -504, s17
s_and_b32 s19, s41, 7
s_lshl_b32 s15, s19, 3
s_mul_i32 s19, s19, {8 * TS * P['rot']}
s_cmp_ge_u32 s29, 8
s_cbranch_scc1 {E}_ffn
s_add_u32 s15, s15, s29
s_mul_i32 s20, s15, {TS}
s_add_u32 s20, s20, s16
s_add_u32 s18, s20, s17
s_add_u32 s21, s16, s19
s_add_u32 s21, s21, 40960
v_lshlrev_b32 v6, 4, v4
s_waitcnt lgkmcnt(0)
s_mov_b32 s44, s12
s_mov_b32 s45, s13
""")
    QM, QR, KM, KR, V0, V1 = 8, 12, 16, 20, 24, 28
    S = [32, 48]; O = 64; CB = 80
    FL = 120
    A(f"buffer_load_dwordx4 {vr(QM,4)}, v5, s[44:47], s20 offen")
    A(f"buffer_load_dwordx2 {vr(QR,2)}, v6, s[44:47], s18 offen")
    A(f"buffer_load_dwordx4 {vr(KM,4)}, v5, s[44:47], s21 offen")
    A(f"""
v_and_b32 v{FL+1}, 3, v2
v_lshlrev_b32 v{FL+1}, 2, v{FL+1}
s_lshl_b32 s21, s29, 2
s_add_u32 s21, s21, 64
v_mov_b32 v{FL+2}, s21
v_mul_u32_u24 v7, 320, v3
v_lshl_add_u32 v7, v4, 4, v7
v_add_u32 v7, 5120, v7
v_lshlrev_b32 v6, 3, v4
v_add_u32 v6, 4096, v6
v_mov_b32 v1, 0x3f803f80
v_cmp_eq_u32 vcc, 20, v4
v_cmp_gt_u32 s[22:23], 20, v4
v_cmp_gt_u32 s[24:25], 32, v2
""")
    KB = [(KM, KR), (124, 128)]; VB = [V0, 132]
    for i in range(8): A(f"v_cndmask_b32 v{V0+i}, 0, v1, vcc")
    for i in range(8): A(f"v_cndmask_b32 v{VB[1]+i}, 0, v1, vcc")
    OM, OR_, LE, LO, LR, PS, OA = 160, 161, 162, 163, 164, 165, 166
    A(f"""
s_mul_i32 s60, s15, 40960
s_mul_i32 s61, s14, 1280
s_add_u32 s60, s60, s61
s_add_u32 s60, s60, {OF}
s_lshl_b32 s61, s15, 7
s_lshl_b32 s27, s14, 2
s_add_u32 s61, s61, s27
s_add_u32 s61, s61, {FL2}
s_lshr_b32 s50, s40, 1
s_lshl_b32 s50, s50, 3
s_and_b32 s51, s41, 7
s_add_u32 s50, s50, s51
s_lshl_b32 s50, s50, 1
s_bfe_u32 s51, s41, 0x10003
s_lshr_b32 s52, s29, 2
s_xor_b32 s53, s51, s52
s_add_u32 s50, s50, s53
s_bfe_u32 s54, s29, 0x10001
s_lshl_b32 s56, s53, 1
s_add_u32 s56, s56, s54
s_lshl_b32 s56, s56, 4
s_and_b32 s53, s29, 1
s_and_b32 s55, s40, 1
s_lshl_b32 s55, s55, 1
s_lshr_b32 s58, s41, 4
s_add_u32 s55, s55, s58
s_mul_i32 s55, s55, 320
s_lshl_b32 s58, s51, 7
s_add_u32 s55, s55, s58
s_and_b32 s58, s51, s52
s_lshl_b32 s58, s58, 6
s_add_u32 s55, s55, s58
s_mul_i32 s57, s50, 40960
s_add_u32 s55, s55, s57
s_mul_i32 s59, s54, 20480
s_add_u32 s57, s57, s59
s_add_u32 s57, s57, {OF}
s_mul_i32 s59, s54, 61440
s_add_u32 s58, s58, s59
s_add_u32 s58, s58, {WO}
s_sub_u32 s59, 3, s52
s_mul_i32 s59, s59, s53
s_lshl_b32 s59, s59, 11
s_mul_i32 s26, s52, 12288
s_add_u32 s59, s59, s26
s_add_u32 s59, s59, {PR}
s_lshl_b32 s26, s53, 4
v_and_b32 v40, 15, v2
v_add_u32 v40, s26, v40
v_lshrrev_b32 v41, 4, v2
v_and_b32 v43, 1, v41
v_mul_u32_u24 v44, 1280, v3
v_lshl_add_u32 v44, v43, 9, v44
v_lshl_add_u32 v{OM}, v40, 4, v44
v_mul_u32_u24 v44, 2560, v41
v_lshl_add_u32 v{OR_}, v40, 3, v44
v_mul_u32_u24 v44, 1280, v40
v_lshl_add_u32 v{OA}, v41, 3, v44
v_bfe_u32 v44, v2, 2, 2
v_and_b32 v45, 3, v2
v_lshl_add_u32 v45, v45, 3, s58
v_mul_u32_u24 v46, 40, v41
v_add3_u32 v46, v46, v44, 16
v_mul_u32_u24 v46, 192, v46
v_add_u32 v{LR}, v46, v45
v_mul_u32_u24 v40, 20, v3
v_lshl_add_u32 v40, v43, 2, v40
v_add_u32 v40, v40, v44
v_mul_u32_u24 v40, 192, v40
v_add_u32 v40, v40, v45
v_xor_b32 v42, v3, v43
v_lshlrev_b32 v42, 5, v42
v_sub_u32 v{LO}, v40, v42
v_add_u32 v{LE}, v40, v42
v_add_u32 v{PS}, s59, v5
s_mov_b32 s48, s8
s_mov_b32 s49, s9
s_mov_b32 s50, 2621440
s_mov_b32 s51, 0x20000
""")
    A("s_waitcnt vmcnt(0)\ns_barrier\n; MARK 0")
    def kread(o, km=None, kr=None):
        if km is None: km, kr = KB[o & 1]
        g, i = o >> 2, o & 3
        A(f"ds_read_b128 {vr(km,4)}, v5 offset:{g*10240+i*1024}\nds_read_b64 {vr(kr,2)}, v6 offset:{g*10240+i*256}")
    def vread(o):
        g, i = o >> 2, o & 3; b = g * 10240 + i * 1280
        A(f"s_mov_b64 exec, s[22:23]\nds_read_b128 {vr(VB[o&1],4)}, v7 offset:{b}\nds_read_b128 {vr(VB[o&1]+4,4)}, v7 offset:{b+640}\ns_mov_b64 exec, -1")
    A(f"ds_read_b64 {vr(KR,2)}, v6")
    for t in range(1, NP): kread(t, CB + 4 * t, 96 + 2 * t)
    A(f"v_cndmask_b32 v{QR}, 0, v{QR}, s[24:25]\nv_cndmask_b32 v{QR+1}, 0, v{QR+1}, s[24:25]")
    for t in range(NP):
        A(f"s_waitcnt lgkmcnt({2*(NP-1-t)})")
        dst = [S[0], S[1], O, 104][t]
        km, kr = (KM, KR) if t == 0 else (CB + 4 * t, 96 + 2 * t)
        A(f"v_mfma_f32_32x32x16_bf16 {vr(dst,16)}, {vr(km,4)}, {vr(QM,4)}, 0")
        A(f"v_mfma_f32_32x32x8_bf16 {vr(dst,16)}, {vr(kr,2)}, {vr(QR,2)}, {vr(dst,16)}")
    for t in range(NP):
        dst = [S[0], S[1], O, 104][t]
        for k in range(8):
            if t == 0 and k == 0: A(f"v_max_f32 v1, v{dst}, v{dst+1}")
            else: A(f"v_max3_f32 v1, v1, v{dst+2*k}, v{dst+2*k+1}")
    A(f"""
v_mov_b32 v14, v1
s_mov_b32 s26, {f32bits(P['offs'])}
v_permlane32_swap_b32 v1, v14
v_max_f32 v1, v1, v14
v_add_f32 v1, s26, v1
""")
    for i in range(16): A(f"v_sub_f32 v{CB+i}, 0, v1")
    for i in range(16): A(f"v_mov_b32 v{O+i}, 0")
    def M1(t): A(f"v_mfma_f32_32x32x16_bf16 {vr(S[t&1],16)}, {vr(KB[t&1][0],4)}, {vr(QM,4)}, {vr(CB,16)}")
    def M2(t): A(f"v_mfma_f32_32x32x8_bf16 {vr(S[t&1],16)}, {vr(KB[t&1][1],2)}, {vr(QR,2)}, {vr(S[t&1],16)}")
    def Ex(t, *idx):
        for i in idx: A(f"v_exp_f32 v{S[t&1]+i}, v{S[t&1]+i}")
    def Cv(t, *idx):
        for k in idx:
            d = S[t & 1] + (k & 3) + 8 * (k >> 2)
            A(f"v_cvt_pk_bf16_f32 v{d}, v{S[t&1]+2*k}, v{S[t&1]+2*k+1}")
    A("; MARK 1\ns_waitcnt lgkmcnt(0)")
    kread(1); vread(0); M1(0); M2(0); kread(2); vread(1)
    W = 6
    Ex(0, *range(P["npre"]))
    def tile(t, hook=None):
        pr = P["prios"]
        if pr and (t == 0 or pr[t % len(pr)] != pr[(t - 1) % len(pr)]): A(f"s_setprio {pr[t % len(pr)]}")
        for tok in P["order"].split():
            if tok == "M1": A(f"s_waitcnt lgkmcnt({W})"); M1(t + 1)
            elif tok == "M2": M2(t + 1)
            elif tok == "M3": A(f"s_waitcnt lgkmcnt({W})\nv_mfma_f32_32x32x16_bf16 {vr(O,16)}, {vr(VB[t&1],4)}, {vr(S[t&1],4)}, {vr(O,16)}")
            elif tok == "M4": A(f"v_mfma_f32_32x32x16_bf16 {vr(O,16)}, {vr(VB[t&1]+4,4)}, {vr(S[t&1]+8,4)}, {vr(O,16)}")
            elif tok == "K":
                if hook: hook(t, 0)
                kread(t + 3)
                if hook: hook(t, 1)
            elif tok == "V": vread(t + 2)
            elif tok[0] == "E": Ex(t, int(tok[1:]))
            elif tok[0] == "N": Ex(t + 1, int(tok[1:]))
            elif tok[0] == "C": Cv(t, int(tok[1:]))
            else: raise ValueError(tok)
    adv = "v_add_u32 v5, 20480, v5\nv_add_u32 v6, 20480, v6\nv_add_u32 v7, 20480, v7"
    npoll = [0]
    def check(thr):
        k = npoll[0]; npoll[0] += 1
        A(f"""
s_waitcnt lgkmcnt(2)
v_cmp_gt_u32 vcc, {thr}, v{FL}
s_cbranch_vccz {E}_ok{k}
{E}_poll{k}:
s_sleep 1
ds_read_b32 v{FL}, v{FL+1}
s_waitcnt lgkmcnt(0)
v_cmp_gt_u32 vcc, {thr}, v{FL}
s_cbranch_vccnz {E}_poll{k}
{E}_ok{k}:
""")
    rdflag = f"ds_read_b32 v{FL}, v{FL+1}"
    def hook0(t, ph):
        if ph == 1 and (t in (4, 7) or (G0 == 1 and t == 0)): A(rdflag)
        if ph == 0 and t == 1 and G0 == 1: check(F_G1)
        if ph == 0 and t == 5: check(F_G5)
    for t in range(8): tile(t, hook0)
    A(adv)
    A(f"s_mov_b32 s27, 1\ns_mov_b32 s28, 0\n{E}_loop:")
    A(f"""
s_cmp_eq_u32 s27, 4
s_cbranch_scc0 {E}_nm
; MARK 2
{E}_nm:
""")
    def hook1(t, ph):
        if ph == 0 and t == 0: check("s28")
        if ph == 1 and t == 0: A(f"s_mov_b32 s28, {F_ALL}\nv_mov_b32 v{FL+3}, s27\nds_write_b32 v{FL+2}, v{FL+3}")
        if ph == 1 and t == 7: A(rdflag)
    for t in range(8): tile(t, hook1)
    A(adv)
    A(f"s_add_u32 s27, s27, 1\ns_cmp_lt_u32 s27, 8\ns_cbranch_scc1 {E}_loop")
    A(f"; MARK 3\nv_mov_b32 v{FL+3}, 8\nds_write_b32 v{FL+2}, v{FL+3}\nv_mov_b32 v1, 0\ns_movk_i32 s26, 0x207")
    for i in range(12): A(f"v_fma_f32 v1, v{O+i}, 0, v1")
    A(f"""
v_cmp_class_f32 vcc, v1, s26
s_cbranch_vccnz {E}_fb
{E}_epi:
v_mov_b32 v14, v{O+8}
v_mov_b32 v15, v{O+8}
v_lshlrev_b32 v5, 4, v2
v_permlane32_swap_b32 v14, v15
v_rcp_f32 v14, v15
v_lshlrev_b32 v6, 3, v4
v_mov_b32 v11, v{FL+1}
""")
    for k in range(6): A(f"v_pk_mul_f32 {vr(O+2*k,2)}, {vr(O+2*k,2)}, v[14:15] op_sel_hi:[1,0]")
    for k in range(6): A(f"v_cvt_pk_bf16_f32 v{O+k}, v{O+2*k}, v{O+2*k+1}")
    OSC = P["osc"]; LSC = P["lsc"]
    A(f"""
buffer_store_dwordx4 {vr(O,4)}, v5, s[44:47], s60 offen{OSC}
s_mov_b64 exec, s[24:25]
buffer_store_dwordx2 {vr(O+4,2)}, v6, s[44:47], s60 offen offset:1024{OSC}
s_mov_b64 exec, -1
v_mov_b32 v1, 1
v_mov_b32 v10, 0
s_waitcnt vmcnt(0)
s_mov_b64 exec, 1
buffer_store_dword v1, v10, s[44:47], s61 offen sc1
s_mov_b64 exec, -1
s_setprio 0
; MARK 4
""")
    nw_ = [0]
    def lwait(thr):
        k = nw_[0]; nw_[0] += 1
        A(f"""
{E}_lw{k}:
ds_read_b32 v1, v11
s_waitcnt lgkmcnt(0)
v_cmp_gt_u32 vcc, {thr}, v1
s_cbranch_vccz {E}_lwd{k}
s_sleep {P['psl']}
s_branch {E}_lw{k}
{E}_lwd{k}:
""")
    OB = 16; AC = 56; WB = 80; DO = P["DO"]
    for k in range(24): A(f"v_mov_b32 v{AC+k}, 0")
    A(f"s_mov_b32 s62, 0x5555\ns_mov_b32 s63, 0")
    lwait(F_WO)
    A(f"; MARK 5\ns_cmp_lg_u32 s52, 0\ns_cbranch_scc1 {E}_tB")
    for ty, nb in ((0, 6), (1, 4)):
        T = "AB"[ty]
        if ty: A(f"{E}_tB:")
        nbuf = 80 // (4 * nb)
        q = []; vq = []
        def need(tag):
            idx = max([i for i, t in enumerate(q) if t == tag], default=-1)
            if idx >= 0:
                A(f"s_waitcnt lgkmcnt({min(len(q) - 1 - idx, 15)})"); del q[:idx + 1]
        def vneed(tag):
            idx = max([i for i, t in enumerate(vq) if t == tag], default=-1)
            if idx >= 0:
                A(f"s_waitcnt vmcnt({len(vq) - 1 - idx})"); del vq[:idx + 1]
        def issue(k):
            if k < 8:
                L = f"{E}_is{T}{k}"
                A(f"""
s_cmp_lg_u32 s63, 0
s_cbranch_scc1 {L}g
{L}p:
ds_read_b64 v[12:13], v10 offset:{MSK}
s_waitcnt lgkmcnt(0)
v_readfirstlane_b32 s30, v12
v_readfirstlane_b32 s31, v13
s_lshr_b64 s[30:31], s[30:31], s56
s_lshr_b32 s31, s30, 1
s_and_b32 s30, s30, s31
s_and_b32 s63, s30, s62
s_cbranch_scc1 {L}g
s_sleep 1
s_branch {L}p
{L}g:
s_ff1_i32_b32 s30, s63
s_bitset0_b32 s63, s30
s_bitset0_b32 s62, s30
s_mul_i32 s31, s30, 1280
s_add_u32 s31, s31, s57
buffer_load_dwordx4 {vr(OB+4*k,4)}, v{OM}, s[44:47], s31 offen{LSC}
s_mul_i32 s{32+k}, s30, 3840
""")
                vq.append(k)
                if k == 7: A("; MARK 6")
            else:
                rr = k - 8
                if rr == 1: A("s_add_u32 s57, s57, 10240")
                for e in range(2):
                    A(f"buffer_load_dwordx2 {vr(OB+4*k+2*e,2)}, v{OR_}, s[44:47], s57 offen offset:{1024+1280*e}{LSC}"); vq.append(k)
        def addr(k):
            if k < 8: A(f"v_add_u32 v{6+2*(k&1)}, s{32+k}, v{LE}\nv_add_u32 v{7+2*(k&1)}, s{32+k}, v{LO}")
        def wr(k, lo=0, hi=99):
            b = WB + (k % nbuf) * 4 * nb
            for u in range(max(lo, 0), min(hi, nb)):
                if k < 8:
                    a = 6 + 2 * (k & 1) + (u & 1); o1 = 32 * u; o2 = o1 + 1536
                else:
                    a = LR; o1 = 30720 * (k - 8) + 32 * u; o2 = 30720 * (k - 8) + 3840 + 32 * (u ^ 1)
                A(f"ds_read_b64_tr_b16 {vr(b+4*u,2)}, v{a} offset:{o1}"); q.append((k, u))
                A(f"ds_read_b64_tr_b16 {vr(b+4*u+2,2)}, v{a} offset:{o2}"); q.append((k, u))
        nb2 = min(nbuf, DO)
        for k in range(DO + 1):
            issue(k)
            if k < nb2: addr(k); wr(k)
        for k in range(10):
            vneed(k)
            if k == 0: A("; MARK 7")
            b = WB + (k % nbuf) * 4 * nb
            nx = k + nb2
            if nx < 10: addr(nx)
            for u in range(nb):
                need((k, u))
                A(f"v_mfma_f32_16x16x32_bf16 {vr(AC+4*u,4)}, {vr(b+4*u,4)}, {vr(OB+4*k,4)}, {vr(AC+4*u,4)}")
                if nx < 10 and u >= 1: wr(nx, u - 1, u)
            if nx < 10: wr(nx, nb - 1, nb)
            if k + DO + 1 < 10: issue(k + DO + 1)
        A("; MARK 8")
        lwait(F_FX)
        hn = nb // 2
        A(f"s_cmp_lg_u32 s54, 0\ns_cbranch_scc1 {E}_f1{T}")
        for h in range(2):
            if h: A(f"{E}_f1{T}:")
            send = list(range(hn, nb) if h == 0 else range(hn))
            fin = [u for u in range(nb) if u not in send]
            for u in send: A(f"ds_read_b128 {vr(WB+4*u,4)}, v{PS} offset:{u*1024}")
            for i, u in enumerate(send):
                A(f"s_waitcnt lgkmcnt({len(send) - 1})")
                for k in range(4): A(f"v_add_f32 v{AC+4*u+k}, v{AC+4*u+k}, v{WB+4*u+k}")
                A(f"ds_write_b128 v{PS}, {vr(AC+4*u,4)} offset:{u*1024}")
            A("s_waitcnt lgkmcnt(0)\ns_barrier")
            for u in fin: A(f"ds_read_b128 {vr(WB+4*u,4)}, v{PS} offset:{u*1024}")
            for i, u in enumerate(fin):
                A(f"s_waitcnt lgkmcnt({len(fin) - 1 - i})")
                a = AC + 4 * u
                for k in range(4): A(f"v_add_f32 v{a+k}, v{a+k}, v{WB+4*u+k}")
                A(f"v_cvt_pk_bf16_f32 v{a}, v{a}, v{a+1}\nv_cvt_pk_bf16_f32 v{a+1}, v{a+2}, v{a+3}")
                A(f"buffer_store_dwordx2 {vr(a,2)}, v{OA}, s[48:51], s55 offen offset:{u*32}")
            A("s_endpgm")
    A(f"""
{E}_fb:
s_waitcnt lgkmcnt(0)
v_lshlrev_b32 v5, 4, v2
v_lshlrev_b32 v6, 4, v4
v_mul_u32_u24 v7, {SV}, v3
v_lshl_add_u32 v7, v4, 4, v7
v_add_u32 v15, {2*SV}, v7
v_mov_b32 v1, 0xff800000
s_add_u32 s18, s16, 40960
s_mov_b32 s26, s18
s_mov_b32 s27, 64
{E}_fb1:
s_add_u32 s30, s26, s17
buffer_load_dwordx4 {vr(KM,4)}, v5, s[44:47], s26 offen
buffer_load_dwordx2 {vr(KR,2)}, v6, s[44:47], s30 offen
s_waitcnt vmcnt(0)
v_mfma_f32_32x32x16_bf16 {vr(S[0],16)}, {vr(KM,4)}, {vr(QM,4)}, 0
v_mfma_f32_32x32x8_bf16 {vr(S[0],16)}, {vr(KR,2)}, {vr(QR,2)}, {vr(S[0],16)}
""")
    for k in range(8): A(f"v_max3_f32 v1, v1, v{S[0]+2*k}, v{S[0]+2*k+1}")
    A(f"""
s_add_u32 s26, s26, {TS}
s_sub_u32 s27, s27, 1
s_cmp_lg_u32 s27, 0
s_cbranch_scc1 {E}_fb1
v_mov_b32 v14, v1
v_permlane32_swap_b32 v1, v14
v_max_f32 v1, v1, v14
""")
    for i in range(16): A(f"v_sub_f32 v{CB+i}, 0, v1\nv_mov_b32 v{O+i}, 0")
    A(f"""
s_mov_b32 s26, s18
s_mul_i32 s28, s14, 320
s_add_u32 s28, s28, {QF + VOFF}
s_mov_b32 s27, 64
{E}_fb2:
s_add_u32 s30, s26, s17
buffer_load_dwordx4 {vr(KM,4)}, v5, s[44:47], s26 offen
buffer_load_dwordx2 {vr(KR,2)}, v6, s[44:47], s30 offen
s_mov_b64 exec, s[22:23]
buffer_load_dwordx4 {vr(V0,4)}, v7, s[44:47], s28 offen
buffer_load_dwordx4 {vr(V1,4)}, v15, s[44:47], s28 offen
s_mov_b64 exec, -1
s_waitcnt vmcnt(0)
""")
    M1(0); M2(0)
    Ex(0, *range(16)); Cv(0, *range(8))
    A(f"""
v_mfma_f32_32x32x16_bf16 {vr(O,16)}, {vr(V0,4)}, {vr(S[0],4)}, {vr(O,16)}
v_mfma_f32_32x32x16_bf16 {vr(O,16)}, {vr(V1,4)}, {vr(S[0]+8,4)}, {vr(O,16)}
s_add_u32 s26, s26, {TS}
s_add_u32 s28, s28, {TS}
s_sub_u32 s27, s27, 1
s_cmp_lg_u32 s27, 0
s_cbranch_scc1 {E}_fb2
s_nop 15
s_branch {E}_epi
""")
    DK, DR, DV, DW = 60, 61, 62, 63
    A(f"""
{E}_ffn:
s_setprio 3
s_sub_u32 s29, s29, 8
s_mul_i32 s20, s29, {TS}
s_add_u32 s20, s20, s16
s_add_u32 s20, s20, 40960
v_add_u32 v{DK}, s20, v5
s_add_u32 s20, s20, s17
v_lshrrev_b32 v6, 1, v2
v_and_b32 v7, 1, v2
v_lshlrev_b32 v7, 2, v7
v_lshl_add_u32 v6, v6, 4, v7
v_add_u32 v{DR}, s20, v6
s_lshl_b32 s17, s29, 10
s_lshl_b32 s18, s29, 8
s_mul_i32 s20, s14, 320
s_add_u32 s20, s20, {QF + VOFF}
s_lshl_b32 s21, s29, 6
s_lshl_b32 s22, s29, 4
s_add_u32 s22, s22, 256
""")
    def vaddr(dst, ci, extra=None):
        A(f"""
v_mul_u32_u24 v8, 3277, v{ci}
v_lshrrev_b32 v8, 16, v8
v_mul_u32_u24 v9, 20, v8
v_sub_u32 v9, v{ci}, v9
v_lshrrev_b32 v10, 2, v8
v_and_b32 v8, 3, v8
v_mul_u32_u24 v10, {TS}, v10
v_mul_u32_u24 v8, {SV}, v8
v_lshl_add_u32 v9, v9, 4, s20
v_add3_u32 v{dst}, v8, v9, v10
""")
    A("v_add_u32 v6, s21, v2"); vaddr(DV, 6)
    A("s_waitcnt lgkmcnt(0)\ns_mov_b32 s44, s12\ns_mov_b32 s45, s13")
    def dma(G, part):
        b = G * 10240
        if part == 0:
            if G == 0: A(f"s_cmp_eq_u32 s29, 0\ns_cbranch_scc1 {E}_d0")
            A(f"s_add_u32 m0, s17, {b}\nbuffer_load_dwordx4 v{DK}, s[44:47], s19 offen lds")
            if G == 0: A(f"{E}_d0:")
            A(f"s_add_u32 m0, s18, {b+4096}\nbuffer_load_dword v{DR}, s[44:47], s19 offen lds")
            A(f"s_add_u32 m0, s17, {b+5120}\nbuffer_load_dwordx4 v{DV}, s[44:47], s19 offen lds")
        else:
            A(f"s_add_u32 m0, s18, {b+9216}\nbuffer_load_dword v{DW}, s[44:47], s19 offen lds")
            if G < 15: A(f"s_add_u32 s19, s19, {4*TS}\ns_cmp_ge_u32 s19, {64*TS}\ns_cselect_b32 s21, {64*TS}, 0\ns_sub_u32 s19, s19, s21")
    dma(0, 0)
    A("v_lshrrev_b32 v6, 2, v2\nv_add_u32 v6, s22, v6"); vaddr(DW, 6)
    A(f"v_and_b32 v6, 3, v2\nv_lshl_add_u32 v{DW}, v6, 2, v{DW}")
    dma(0, 1)
    for G in range(1, G0): dma(G, 0); dma(G, 1)
    A("v_mov_b32 v1, 0\nv_lshlrev_b32 v7, 2, v2\nds_write_b32 v7, v1")
    WA, FX, FP, XA = 76, 79, 84, 85
    A(f"""
v_mov_b32 v{FP}, v7
s_lshr_b32 s14, s40, 1
s_lshl_b32 s14, s14, 3
s_and_b32 s24, s41, 7
s_add_u32 s14, s14, s24
s_lshl_b32 s56, s14, 8
s_add_u32 s56, s56, {FL2}
s_lshl_b32 s14, s14, 1
s_bfe_u32 s25, s41, 0x10003
s_xor_b32 s15, s25, 1
s_add_u32 s15, s15, s14
s_add_u32 s14, s14, s25
s_and_b32 s27, s40, 1
s_lshl_b32 s27, s27, 1
s_lshr_b32 s16, s41, 4
s_add_u32 s27, s27, s16
s_and_b32 s24, s41, 15
s_mul_i32 s24, s24, 27
s_lshr_b32 s24, s24, 4
s_mul_i32 s24, s24, {P['frot']}
s_add_u32 s20, s17, {HF}
s_mul_i32 s23, s29, 20480
s_mul_i32 s28, s27, 5120
s_add_u32 s23, s23, s28
s_add_u32 s23, s23, {W2F}
s_add_u32 s22, s20, {27*4096}
s_lshl_b32 s16, s24, 12
s_add_u32 s16, s16, s20
s_mul_i32 s26, s24, 81920
s_add_u32 s26, s26, s23
s_mul_i32 s30, s14, {108*1024}
s_mul_i32 s31, s15, {108*1024}
v_add_u32 v8, s30, v5
v_add_u32 v9, s31, v5
s_lshl_b32 s30, s25, 12
s_lshl_b32 s31, s25, 11
s_add_u32 s31, s31, 1024
v_add_u32 v10, s30, v5
v_add_u32 v11, s31, v5
v_add_u32 v12, 2048, v5
s_lshl_b32 s36, s14, 7
s_lshl_b32 s37, s15, 7
s_add_u32 s36, s36, {RS}
s_add_u32 s37, s37, {RS}
v_lshlrev_b32 v6, 2, v4
v_mov_b32 v7, s29
v_lshlrev_b32 v7, 2, v7
v_and_b32 v1, 7, v2
v_lshlrev_b32 v1, 2, v1
v_and_b32 v15, 12, v1
v_mul_u32_u24 v{XA}, 1280, v4
v_lshl_add_u32 v{XA}, v3, 3, v{XA}
s_mul_i32 s52, s27, 320
s_lshl_b32 s53, s29, 4
s_add_u32 s53, s53, s52
s_mul_i32 s54, s14, 40960
s_mul_i32 s55, s15, 40960
s_add_u32 s54, s54, s53
s_add_u32 s55, s55, s53
s_lshl_b32 s57, s25, 8
s_lshl_b32 s58, s25, 7
s_add_u32 s52, s52, s58
s_add_u32 s58, s58, 64
s_add_u32 s30, s55, s57
s_add_u32 s31, s55, s58
s_add_u32 s32, s54, s57
s_add_u32 s33, s54, s58
s_add_u32 s34, s54, 128
s_mul_i32 s53, s29, 20480
s_add_u32 s52, s52, s53
s_mul_i32 s53, s29, 3072
s_add_u32 s53, s53, {WO}
""")
    for c in range(3):
        A(f"""
v_add_u32 v16, {64*c}, v2
v_mul_u32_u24 v17, 5462, v16
v_lshrrev_b32 v17, 16, v17
v_mul_u32_u24 v18, 12, v17
v_sub_u32 v16, v16, v18
v_bfe_u32 v18, v17, 2, 1
v_lshlrev_b32 v18, 1, v18
v_xor_b32 v16, v16, v18
v_mul_u32_u24 v17, 1280, v17
v_lshl_add_u32 v{WA+c}, v16, 4, v17
""")
    A(f"""
s_lshr_b32 s54, s29, 1
s_lshl_b32 s54, s54, 10
s_and_b32 s55, s29, 1
s_lshl_b32 s55, s55, 9
s_add_u32 s54, s54, s55
s_add_u32 s54, s54, {PR}
v_and_b32 v16, 15, v2
v_lshlrev_b32 v16, 4, v16
v_lshl_add_u32 v16, v3, 8, v16
v_add_u32 v16, s54, v16
v_bfe_u32 v17, v2, 4, 1
v_mul_u32_u24 v18, 6144, v17
v_add_u32 v{FX+3}, v18, v16
v_lshl_add_u32 v17, v17, 12, v16
s_lshl_b32 s54, s25, 11
s_lshl_b32 s55, s25, 12
v_add_u32 v{FX}, s54, v17
v_subrev_u32 v{FX+1}, s54, v17
v_add_u32 v{FX+2}, s55, v{FX+3}
v_subrev_u32 v{FX+4}, s55, v{FX+3}
s_waitcnt vmcnt(0) lgkmcnt(0)
s_barrier
; MARK 0
""")
    C1 = P["c1"]
    def flag(v): A(f"v_mov_b32 v0, {v}\nds_write_b32 v7, v0")
    for G in range(G0, 16):
        dma(G, 0); dma(G, 1)
        if G0 == 1 and G == 2: A("s_waitcnt vmcnt(4)"); flag(F_G1)
        if G == 5 + C1: A(f"s_waitcnt vmcnt({4*C1})"); flag(F_G5); A("; MARK 4")
    A("buffer_load_dword v13, v6, s[44:47], s36 offen\nbuffer_load_dword v14, v6, s[44:47], s37 offen")
    ACC = 88
    class Q:
        def __init__(s): s.q = []
        def op(s, tag, txt): A(txt); s.q.append(tag)
        def need(s, *tags):
            idx = max([i for i, t in enumerate(s.q) if t in tags], default=-1)
            if idx >= 0:
                A(f"s_waitcnt vmcnt({len(s.q) - 1 - idx})"); s.q = s.q[idx + 1:]
    VQ = Q()
    addr = {0: (9, 16), 1: (10, 26), 2: (11, 26), 3: (12, 26), 4: (8, 16)}
    def fl(i, j):
        b = 16 + 20 * (i % 3)
        VQ.op((i, j), f"buffer_load_dwordx4 {vr(b+4*j,4)}, v{addr[j][0]}, s[44:47], s{addr[j][1]} offen")
        if j == 4: A("s_add_u32 s16, s16, 4096\ns_add_u32 s26, s26, 81920\ns_cmp_eq_u32 s16, s22\ns_cselect_b32 s16, s20, s16\ns_cselect_b32 s26, s23, s26")
    for i in range(3):
        for j in range(5): fl(i, j)
    A("s_waitcnt vmcnt(17)"); flag(F_ALL)
    A(f"; MARK 5\ns_setprio {P['prio_ffn']}")
    blk = [(0, 1), (0, 2), (4, 1), (4, 2), (4, 3)]
    after = {1: [0], 2: [1], 3: [2], 4: [3, 4]}
    for i in range(27):
        b = 16 + 20 * (i % 3)
        for t, (hj, wj) in enumerate(blk):
            VQ.need((i, hj), (i, wj))
            c = "0" if i == 0 else vr(ACC + 16 * t, 16)
            A(f"v_mfma_f32_32x32x16_bf16 {vr(ACC+16*t,16)}, {vr(b+4*wj,4)}, {vr(b+4*hj,4)}, {c}")
            if i + 3 < 27:
                for j in after.get(t, []): fl(i + 3, j)
        if i == 13: A("; MARK 1")
    RED = 2560
    A(f"; MARK 2\ns_setprio {P['prio_red']}")
    for q in range(4):
        A(f"s_sub_u32 s16, s29, {q+1}\ns_and_b32 s16, s16, 3\ns_mul_i32 s16, s16, 5120\ns_add_u32 s16, s16, {RED + q*15360}\nv_add_u32 v{8+q}, s16, v5")
    A(f"""
s_mul_i32 s17, s29, 15360
s_add_u32 s17, s17, {RED}
v_add_u32 v12, s17, v5
s_mov_b32 s48, s4
s_mov_b32 s49, s5
s_mov_b32 s50, 2621440
s_mov_b32 s51, 0x20000
s_mov_b32 s36, 0xffff0000
""")
    npw = [0]
    def pwait(reg, off, thr, sl=2):
        k = npw[0]; npw[0] += 1
        A(f"""
{E}_pw{k}:
ds_read_b32 v0, v{reg} offset:{off}
s_waitcnt lgkmcnt(0)
v_cmp_gt_u32 vcc, {thr}, v0
s_cbranch_vccz {E}_pwd{k}
s_sleep {sl}
s_branch {E}_pw{k}
{E}_pwd{k}:
""")
    pwait(1, 64, P["T1"], 4)
    A("; MARK 6")
    for q in range(4):
        A(f"s_cmp_eq_u32 s29, {q}\ns_cbranch_scc1 {E}_nx{q}")
        for t in range(5): A(f"ds_write_b128 v{8+q}, {vr(ACC+16*t+4*q,4)} offset:{t*1024}")
        A(f"{E}_nx{q}:")
    flag(F_RW)
    pwait(15, 0, F_RW, 1)
    A("; MARK 3")
    for t in range(5):
        for jj in range(3):
            A(f"ds_read_b128 {vr(16+12*t+4*jj,4)}, v12 offset:{jj * 5120 + t * 1024}")
    def perq(tag, body):
        for q in range(4):
            if q < 3: A(f"s_cmp_lg_u32 s29, {q}\ns_cbranch_scc1 {E}_{tag}{q+1}")
            body(q)
            if q < 3: A(f"s_branch {E}_{tag}d\n{E}_{tag}{q+1}:")
        A(f"{E}_{tag}d:")
    xr = lambda q, t: ACC + 16 * t + 4 * ((q + 1) & 3)
    perq("x", lambda q: [A(f"buffer_load_dwordx2 {vr(xr(q,t),2)}, v{XA}, s[48:51], s{30+t} offen") for t in range(5)])
    A("s_waitcnt lgkmcnt(0)"); flag(F_RR)
    A(f"""
; MARK 7
s_setprio 3
s_mov_b32 s48, s6
s_mov_b32 s49, s7
s_mov_b32 s50, 819200
""")
    def fin(q):
        for t in range(5):
            b = 16 + 12 * t; o = ACC + 16 * t + 4 * q; x = xr(q, t)
            for k in range(4): A(f"v_add_f32 v{b+k}, v{b+k}, v{o+k}")
            for k in range(2): A(f"v_lshlrev_b32 v{o+2*k}, 16, v{x+k}\nv_and_b32 v{o+2*k+1}, s36, v{x+k}")
            for k in range(4): A(f"v_add_f32 v{b+4+k}, v{b+4+k}, v{b+8+k}")
            for k in range(4): A(f"v_add_f32 v{b+k}, v{b+k}, v{b+4+k}")
            for k in range(4): A(f"v_fma_f32 v{b+k}, v{b+k}, v{14 if t < 2 else 13}, v{o+k}")
    def adds(n):
        A(f"s_setprio {P['prio_add']}\ns_waitcnt vmcnt({n})"); perq("fin", fin); A("s_setprio 3")
    pwait(15, 0, F_RR, 1)
    for i in range(10):
        if i == P["addpos"]: adds(3 * i)
        if i in (6, 8, 9): pwait(1, 64, {6: 5, 8: 6, 9: 7}[i], P['wsl'])
        for c in range(3):
            A(f"s_add_u32 m0, s53, {i*12288 + c*1024}\nbuffer_load_dwordx4 v{WA+c}, s[48:51], s52 offen lds")
        if i < 9: A("s_add_u32 s52, s52, 81920")
    A("; MARK 8")
    if P["addpos"] == 10: adds(30)
    A("s_waitcnt vmcnt(0)"); flag(F_WO)
    if P["addpos"] == 11: adds(0)
    A(f"""
; MARK 9
s_mov_b32 s57, {P['spin']}
s_mov_b32 s58, 0
s_cmp_lt_u32 s29, {P['npoll']}
s_cselect_b64 s[60:61], 0, -1
v_mov_b32 v6, 0
{E}_rp:
s_cmp_eq_u64 s[60:61], -1
s_cbranch_scc1 {E}_rq
buffer_load_dword v8, v{FP}, s[44:47], s56 offen sc1
s_sub_u32 s57, s57, 1
s_waitcnt vmcnt(0)
v_cmp_eq_u32 s[60:61], 1, v8
s_cmp_eq_u32 s57, 0
s_cselect_b64 s[60:61], -1, s[60:61]
v_mov_b32 v8, s60
v_mov_b32 v9, s61
ds_write_b64 v6, v[8:9] offset:{MSK}
{E}_rq:
s_cmp_lg_u32 s58, 0
s_cbranch_scc1 {E}_rr
ds_read_b32 v0, v1 offset:64
s_waitcnt lgkmcnt(0)
v_cmp_gt_u32 vcc, 8, v0
s_cbranch_vccnz {E}_rs
""")
    for t, o in enumerate((12288, 14336, 0, 2048, 4096)):
        A(f"ds_write_b128 v{FX+t}, {vr(16+12*t,4)} offset:{o}")
    flag(F_FX)
    A(f"""
; MARK 10
s_mov_b32 s58, 1
{E}_rr:
s_cmp_eq_u64 s[60:61], -1
s_cbranch_scc1 {E}_go
{E}_rs:
s_sleep {P['rsl']}
s_branch {E}_rp
{E}_go:
; MARK 11
s_waitcnt lgkmcnt(0)
s_barrier
{E}_end:
s_endpgm
""")
    A.end(name, 168, 64)
```

```python
import struct, math
HSTRIDE = 163840
QF  = 0
KVF = 0x500000
HF  = 0xA00000
W2F = 0x1100000
OF  = 0x1400000
FF  = 0x1700000
RS  = 0x1A00000
FL2 = 0x1A10000
WS_BYTES = 0x1B00000
SV = 10368
VOFF = 81920
TS = VOFF + 4 * SV + 128
QSCALE = 20 ** -0.5 * math.log2(math.e)
def f32bits(x): return hex(struct.unpack("<I", struct.pack("<f", x))[0])
```

```python
import sys, json
from asmlib import *
from k1 import gen_k1
from k2 import gen_k2
from k3 import gen_k3
import k2f, k1n, k2n
NAME = "parallel_sum__softmax_full_mha__dense_activation_relu__prompt"
PROF = 0x2000000
RT = [None]
def add_prof(lines):
    out = []; k = -1; name = None
    for ln in lines:
        t = ln.strip()
        if t.endswith("_kernel:"):
            k += 1; name = t[:-1]
            out += [ln, "    s_memrealtime s[88:89]", "    s_memtime s[90:91]", "    v_lshrrev_b32 v1, 6, v0", "    s_nop 1", "    v_readfirstlane_b32 s98, v1", "    s_waitcnt lgkmcnt(0)"] + [f"    s_mov_b32 s{r}, s90" for r in list(range(70, 80)) + [80, 82, 84, 86]]
        elif t == "s_endpgm":
            out.append(f"    s_branch L_prof_{name}")
        elif t.startswith("; MARK"):
            i = int(t.split()[2])
            if RT[0] is not None and k == RT[0]:
                out += ["    s_memrealtime s[96:97]", "    s_waitcnt lgkmcnt(0)", f"    s_mov_b32 s{80+2*i if i < 4 else 70+i-4}, s96"]
                continue
            if i < 4: out += [f"    s_memtime s[{80+2*i}:{81+2*i}]", "    s_waitcnt lgkmcnt(0)"]
            else: out += ["    s_memtime s[96:97]", "    s_waitcnt lgkmcnt(0)", f"    s_mov_b32 s{70+i-4}, s96"]
        elif t.startswith(".section .rodata"):
            out += [f"L_prof_{name}:"] + ["    " + x for x in f"""s_mov_b64 exec, -1
s_memrealtime s[92:93]
s_memtime s[94:95]
s_load_dwordx2 s[96:97], s[0:1], 64
s_lshl_b32 s99, s2, 4
s_add_u32 s99, s99, s98
s_add_u32 s99, s99, {k*8192}
s_lshl_b32 s99, s99, 7
s_add_u32 s99, s99, {PROF}
s_waitcnt lgkmcnt(0)
v_mov_b32 v1, s99
v_mov_b32 v4, s88
v_mov_b32 v5, s92
v_mov_b32 v6, s90
v_mov_b32 v7, s94
v_mov_b32 v8, s80
v_mov_b32 v9, s82
v_mov_b32 v10, s84
v_mov_b32 v11, s86
v_cmp_eq_u32 vcc, 0, v2
s_and_b64 exec, exec, vcc
s_cmp_ge_u32 s2, 256
s_cbranch_scc1 L_profe_{name}
global_store_dwordx4 v1, v[4:7], s[96:97]
global_store_dwordx4 v1, v[8:11], s[96:97] offset:16
v_mov_b32 v12, s70
v_mov_b32 v13, s71
v_mov_b32 v14, s72
v_mov_b32 v15, s73
v_mov_b32 v16, s74
v_mov_b32 v17, s75
v_mov_b32 v18, s76
v_mov_b32 v19, s77
v_mov_b32 v20, s78
v_mov_b32 v21, s79
global_store_dwordx4 v1, v[12:15], s[96:97] offset:32
global_store_dwordx4 v1, v[16:19], s[96:97] offset:48
global_store_dwordx2 v1, v[20:21], s[96:97] offset:64
s_and_b32 s99, s2, 0x1f
s_lshr_b32 s100, s2, 5
s_cmp_lg_u32 s99, s100
s_cbranch_scc1 L_profe_{name}
s_cmp_lg_u32 s98, {[7,7,3][k]}
s_cbranch_scc1 L_profe_{name}
s_load_dwordx2 s[96:97], s[0:1], 56
v_mov_b32 v1, 0
v_not_b32 v4, v4
v_sub_u32 v7, v7, v6
v_sub_u32 v8, v8, v6
v_sub_u32 v9, v9, v6
v_sub_u32 v10, v10, v6
v_sub_u32 v11, v11, v6
s_waitcnt lgkmcnt(0)
global_atomic_umax v1, v4, s[96:97]
global_atomic_umax v1, v5, s[96:97] offset:4
global_atomic_umax v1, v7, s[96:97] offset:8
global_atomic_umax v1, v8, s[96:97] offset:12
global_atomic_umax v1, v9, s[96:97] offset:16
global_atomic_umax v1, v10, s[96:97] offset:20
global_atomic_umax v1, v11, s[96:97] offset:24
s_cmp_lg_u32 s2, {0 if k == 2 else 999}
s_cbranch_scc1 L_profe_{name}
global_load_dwordx4 v[4:7], v1, s[96:97] offset:-1024
global_load_dwordx4 v[8:11], v1, s[96:97] offset:-512
global_load_dword v7, v1, s[96:97] offset:-1008
s_waitcnt vmcnt(0)
global_store_dwordx4 v1, v[4:7], s[96:97] offset:32
global_store_dwordx4 v1, v[8:11], s[96:97] offset:48
L_profe_{name}:
s_endpgm""".split("\n")] + [ln]
        elif t.startswith(".amdhsa_next_free_sgpr"):
            out.append(".amdhsa_next_free_sgpr 102")
        else: out.append(ln)
    return out
def build2(path, P1=None, P2=None, prof=False):
    A = Asm()
    hdr = """; LN + MHA + ReLU-FFN parallel block, two launches (generated by a hand-written python emitter)
; @launch kernel=k1_kernel grid=(256,1,1) block=(768,1,1) lds=147456
; @launch kernel=k2_kernel grid=(256,1,1) block=(768,1,1) lds=163840
"""
    gen_k1(A, P=P1); k2f.gen_k2(A, P=P2)
    if prof: A.lines = add_prof(A.lines)
    open(path, "w").write(hdr + HEADER + A.text())
def build3(path, P1=None, P2=None, prof=False):
    A = Asm()
    hdr = """; LN + MHA + ReLU-FFN parallel block, two launches (generated by a hand-written python emitter)
; @launch kernel=k1_kernel grid=(256,1,1) block=(768,1,1) lds=163840
; @launch kernel=k2_kernel grid=(256,1,1) block=(768,1,1) lds=163840
"""
    k1n.gen_k1(A, P=P1); k2n.gen_k2(A, P=P2)
    if prof: A.lines = add_prof(A.lines)
    open(path, "w").write(hdr + HEADER + A.text())
def build(path, P1=None, P2=None, P3=None, extra="", prof=False):
    A = Asm()
    hdr = """; LN + MHA + ReLU-FFN parallel block, three launches (generated by a hand-written python emitter)
; @launch kernel=k1_kernel grid=(256,1,1) block=(768,1,1) lds=147456
; @launch kernel=k2_kernel grid=(256,1,1) block=(768,1,1) lds=163840
; @launch kernel=k3_kernel grid=(256,1,1) block=(256,1,1) lds=102400
""" + extra
    gen_k1(A, P=P1); gen_k2(A, P=P2); gen_k3(A, P=P3)
    if prof: A.lines = add_prof(A.lines)
    open(path, "w").write(hdr + HEADER + A.text())
if __name__ == "__main__":
    build(f"cdna_kernels/{NAME}.s")
    build("cur.s")
    build("prof.s", prof=True)
    build3("cur3.s")
    build3("prof3.s", prof=True)
    build2("cur2.s")
    build2("prof2.s", prof=True)
```

```python
from asmlib import *
from layout import *

def gen_k1(A, name="k1_kernel", P=None):
    P = dict(dict(rot=(1,4), st=" sc1", lprio=3, lmod="", xs="valu", cs="mfma", sprio=None, bpos=0, il=1, pf=0), **(P or {}))
    XS = 49152; RB = 49152 + 4096; CS = 49152 + 8192
    ST = P["st"]; STH = P.get("sth", ST); STW = P.get("stw", ST); STV = P.get("stv", ST)
    A.begin(name)
    E = f"L_{name}"
    A(f"""
s_cmp_ge_u32 s2, 256
s_cbranch_scc1 {E}_end
s_load_dwordx4 s[4:7], s[0:1], 0
s_load_dwordx4 s[8:11], s[0:1], 32
s_load_dwordx2 s[12:13], s[0:1], 64
v_lshrrev_b32 v1, 6, v0
v_and_b32 v2, 63, v0
s_and_b32 s40, s2, 7
s_lshr_b32 s41, s2, 3
v_readfirstlane_b32 s29, v1
s_and_b32 s14, s40, 1
s_lshl_b32 s14, s14, 3
s_and_b32 s15, s41, 7
s_add_u32 s14, s14, s15
s_lshr_b32 s15, s40, 1
s_lshl_b32 s15, s15, 2
s_lshr_b32 s16, s41, 3
s_add_u32 s15, s15, s16
s_and_b32 s16, s15, 7
s_lshl_b32 s17, s16, 2
s_mul_i32 s18, s16, 3
s_cmp_lt_u32 s15, 8
s_cselect_b32 s19, 6, 3
s_add_u32 s18, s18, s19
s_min_u32 s17, s17, s18
s_cmp_lt_u32 s16, s19
s_cselect_b32 s18, 4, 3
s_mov_b32 s46, {WS_BYTES}
s_mov_b32 s47, 0x20000
s_cmp_lt_u32 s29, 8
s_cbranch_scc1 {E}_comp
""")
    if P["rot"] == 1:
        ROT = """s_and_b32 s35, s41, 7
s_lshr_b32 s36, s41, 3
s_mul_i32 s36, s36, 3
s_add_u32 s35, s35, s36
s_cmp_ge_u32 s35, 10
s_cselect_b32 s36, 10, 0
s_sub_u32 s35, s35, s36
"""
    elif P["rot"] == 0: ROT = "s_mov_b32 s35, 0"
    else:
        ra, rb = P["rot"]
        ROT = f"""s_lshr_b32 s35, s40, 1
s_mul_i32 s35, s35, {ra}
s_and_b32 s36, s40, 1
s_mul_i32 s36, s36, {rb}
s_add_u32 s35, s35, s36
s_cmp_ge_u32 s35, 10
s_cselect_b32 s36, 10, 0
s_sub_u32 s35, s35, s36"""
    A(f"""
s_setprio {P['lprio']}
s_sub_u32 s29, s29, 8
s_mov_b32 s22, 2621440
s_mov_b32 s23, 0x20000
s_mov_b32 s27, 0x20000
s_cmp_lt_u32 s15, 8
s_mov_b32 s26, 2211840
s_cselect_b32 s26, 2457600, s26
s_mov_b32 s28, 3456
s_cselect_b32 s28, 3840, s28
v_lshrrev_b32 v3, 3, v2
s_lshl_b32 s30, s29, 5
s_lshl_b32 s31, s14, 7
s_add_u32 s30, s30, s31
v_add_u32 v3, s30, v3
v_lshrrev_b32 v4, 4, v2
v_and_b32 v5, 7, v2
v_xor_b32 v6, v5, v4
v_xor_b32 v7, 4, v6
s_movk_i32 s32, 1280
v_mul_lo_u32 v3, v3, s32
v_lshl_add_u32 v10, v6, 4, v3
v_lshl_add_u32 v11, v7, 4, v3
v_add_u32 v11, 10240, v11
v_lshrrev_b32 v3, 5, v2
v_and_b32 v4, 31, v2
v_lshlrev_b32 v5, 2, v3
v_xor_b32 v5, v4, v5
v_xor_b32 v6, 8, v5
s_lshl_b32 s30, s29, 4
v_add_u32 v3, s30, v3
v_mul_lo_u32 v3, v3, s28
s_lshl_b32 s31, s17, 7
v_add_u32 v3, s31, v3
v_lshl_add_u32 v12, v5, 4, v3
v_lshl_add_u32 v13, v6, 4, v3
s_lshl_b32 s33, s28, 1
v_add_u32 v13, s33, v13
s_lshl_b32 s33, s28, 2
v_add_u32 v14, s33, v12
v_add_u32 v15, s33, v13
s_lshl_b32 s33, s18, 3
v_mov_b32 v8, 0x7fffffff
v_cmp_gt_u32 vcc, s33, v5
v_cmp_gt_u32 s[42:43], s33, v6
s_lshl_b32 s34, s28, 6
s_lshl_b32 s39, s28, 3
{ROT}
v_cndmask_b32 v12, v8, v12, vcc
v_cndmask_b32 v14, v8, v14, vcc
v_cndmask_b32 v13, v8, v13, s[42:43]
v_cndmask_b32 v15, v8, v15, s[42:43]
s_mul_i32 s36, s35, s34
s_lshl_b32 s35, s35, 7
s_lshl_b32 s37, s29, 12
s_lshl_b32 s38, s29, 13
s_add_u32 s38, s38, 16384
s_cmp_lt_u32 s15, 8
s_waitcnt lgkmcnt(0)
s_mov_b32 s20, s4
s_mov_b32 s21, s5
s_cselect_b32 s24, s6, s8
s_cselect_b32 s25, s7, s9
""")
    LM = P["lmod"]
    def issue(slot, fill=()):
        base = slot * 49152
        fill = list(fill); per = (len(fill) + 10) // 11
        def fl(k):
            if fill and k == 0: A("s_waitcnt lgkmcnt(0)")
            if k < 11:
                for o in fill[k * per:(k + 1) * per]: A(o)
        A("s_add_u32 s30, s35, 20480\ns_add_u32 s31, s36, s39")
        for j in range(4):
            A(f"s_add_u32 m0, s37, {base + j*1024}\nbuffer_load_dwordx4 v{10+(j&1)}, s[20:23], s{35 if j < 2 else 30} offen{LM} lds")
            if j: fl(j - 1)
        for j in range(8):
            A(f"s_add_u32 m0, s38, {base + j*1024}\nbuffer_load_dwordx4 v{12+(j&3)}, s[24:27], s{36 if j < 4 else 31} offen{LM} lds")
            fl(3 + j)
        A("s_add_u32 s35, s35, 128\ns_add_u32 s36, s36, s34\ns_cmp_eq_u32 s35, 1280\ns_cselect_b32 s35, 0, s35\ns_cselect_b32 s36, 0, s36")
    CSL = P["cs"] in ("dot", "valu")
    A("; MARK 12")
    issue(0); A("; MARK 0"); issue(1)
    PF = P["pf"]
    if PF:
        A(f"""
s_lshl_b32 s30, s14, 7
s_lshr_b32 s31, s41, 3
s_lshl_b32 s31, s31, 5
s_add_u32 s30, s30, s31
v_lshrrev_b32 v3, 1, v2
v_add_u32 v3, s30, v3
v_mul_lo_u32 v3, v3, s32
v_and_b32 v4, 1, v2
v_lshl_add_u32 v3, v4, 6, v3
s_and_b32 s30, s41, 7
s_lshl_b32 s30, s30, 3
v_lshrrev_b32 v4, 3, v2
v_add_u32 v4, s30, v4
v_mul_lo_u32 v4, v4, s28
v_and_b32 v5, 7, v2
v_lshl_add_u32 v4, v5, 6, v4
s_lshl_b32 s30, s17, 7
v_add_u32 v4, s30, v4
s_lshl_b32 s30, s18, 1
v_cmp_gt_u32 vcc, s30, v5
s_cmp_eq_u32 s29, 0
s_cselect_b32 s64, s20, s24
s_cselect_b32 s65, s21, s25
s_cselect_b32 s66, s22, s26
s_cselect_b32 s68, 128, s34
s_cselect_b64 s[30:31], -1, 0
s_mov_b32 s67, 0x20000
s_cmp_lt_u32 s29, 2
s_cselect_b32 s66, s66, 0
s_lshl_b32 s69, s68, 1
v_cndmask_b32 v4, v8, v4, vcc
v_cndmask_b32 v99, v4, v3, s[30:31]
""")
    def pref(st):
        if PF and st < 10:
            A("buffer_load_dword v120, v99, s[64:67], s69 offen\ns_add_u32 s69, s69, s68")
            return 1
        return 0
    npf = {}
    for st in range(2, PF): pref(st)
    A(f"""
s_lshl_b32 s30, s29, 12
v_lshl_add_u32 v96, v2, 4, s30
v_add_u32 v97, 98304, v96
s_mov_b32 s56, 0xffff0000
s_mov_b32 s55, 0x3f803f80
""")
    for i in list(range(32, 40)) + list(range(76, 80)): A(f"v_mov_b32 v{i}, 0")
    if CSL:
        A("""
v_lshrrev_b32 v3, 5, v2
v_bfe_u32 v5, v2, 2, 2
v_lshl_add_u32 v6, v3, 3, v5
v_lshlrev_b32 v6, 9, v6
v_bfe_u32 v7, v2, 1, 1
v_lshl_add_u32 v6, v7, 3, v6
v_add_u32 v6, 16384, v6
v_bfe_u32 v7, v2, 4, 1
v_and_b32 v8, 1, v2
v_lshl_add_u32 v7, v7, 1, v8
s_lshl_b32 s31, s29, 3
v_add_u32 v7, s31, v7
v_lshlrev_b32 v5, 2, v5
v_xor_b32 v7, v7, v5
v_lshl_add_u32 v6, v7, 4, v6
v_xor_b32 v7, 64, v6
""")
        for pos in range(4):
            for t in range(2): A(f"v_add_u32 v{80+pos*2+t}, {pos*8192}, v{6+t}\nv_add_u32 v{88+pos*2+t}, 98304, v{80+pos*2+t}")
    def sreads(st):
        slot = st % 3; off = 49152 if slot == 1 else 0
        for j in range(4): A(f"ds_read_b128 {vr(16+4*j,4)}, v{97 if slot == 2 else 96} offset:{off + j*1024}")
        if CSL:
            for pos in range(4):
                for t in range(2):
                    for q in range(2):
                        A(f"ds_read_b64_tr_b16 {vr(44+pos*8+t*4+q*2,2)}, v{(88 if slot == 2 else 80)+pos*2+t} offset:{off + q*2048}")
    def sops():
        ops = []
        for i in range(4 if P["xs"] != "none" else 0):
            for jp in range(2):
                if P["xs"] == "dot":
                    for j in (2*jp, 2*jp+1):
                        x = 16 + 4*j + i
                        ops += [f"v_dot2_f32_bf16 v{32+2*j}, v{x}, s55, v{32+2*j}", f"v_dot2_f32_bf16 v{33+2*j}, v{x}, v{x}, v{33+2*j}"]
                else:
                    for e, j in enumerate((2*jp, 2*jp+1)):
                        x = 16 + 4*j + i
                        ops += [f"v_lshlrev_b32 v{40+2*e}, 16, v{x}", f"v_and_b32 v{41+2*e}, s56, v{x}"]
                    for q in range(2):
                        for e, j in enumerate((2*jp, 2*jp+1)):
                            u = 40 + 2*e + q
                            ops += [f"v_add_f32 v{32+2*j}, v{32+2*j}, v{u}", f"v_fmac_f32 v{33+2*j}, v{u}, v{u}"]
        if CSL:
            for pos in range(4):
                for i in range(4):
                    if P["cs"] == "dot":
                        for t in range(2): ops.append(f"v_dot2_f32_bf16 v{76+2*t+(i&1)}, v{44+pos*8+t*4+i}, s55, v{76+2*t+(i&1)}")
                    else:
                        for t in range(2):
                            x = 44 + pos*8 + t*4 + i
                            ops += [f"v_lshlrev_b32 v{40+2*t}, 16, v{x}", f"v_and_b32 v{41+2*t}, s56, v{x}"]
                        for k in range(4): ops.append(f"v_add_f32 v{76+k}, v{76+k}, v{40+k}")
        return ops
    def stat_phase():
        if P["sprio"] is not None: A(f"s_setprio {P['sprio']}")
        A("s_waitcnt lgkmcnt(0)")
        for o in sops(): A(o)
        if P["sprio"] is not None: A(f"s_setprio {P['lprio']}")
    A(f"s_waitcnt vmcnt({12 + max(PF - 2, 0)})\n; MARK 1\ns_barrier")
    prev = max(PF - 2, 0)
    for s_ in range(8):
        sreads(s_)
        issue((s_ + 2) % 3, sops() if P["il"] else ())
        A(f"; MARK {4+s_}")
        if not P["il"]: stat_phase()
        cur = pref(s_ + PF)
        A(f"s_waitcnt vmcnt({12 + prev + cur})\ns_barrier")
        prev = cur
    sreads(8)
    A(f"""
; MARK 2
s_mov_b32 s44, s12
s_mov_b32 s45, s13
s_mov_b32 s48, s10
s_mov_b32 s49, s11
s_mov_b32 s50, 2211840
s_mov_b32 s51, 0x20000
s_lshl_b32 s57, s29, 8
s_add_u32 s58, s57, s2
s_min_u32 s57, s58, 539
s_mul_i32 s59, s57, 13108
s_lshr_b32 s59, s59, 16
s_mul_i32 s60, s59, 5
s_sub_u32 s60, s57, s60
s_mul_i32 s61, s59, 20480
s_lshl_b32 s62, s60, 8
s_add_u32 s62, s62, s61
s_add_u32 s63, s62, 5120
v_lshrrev_b32 v3, 5, v2
v_and_b32 v4, 31, v2
v_mul_u32_u24 v5, 10240, v3
v_lshl_add_u32 v98, v4, 3, v5
s_cmp_ge_u32 s58, 540
s_cselect_b32 s50, 0, s50
""")
    W2R = 100
    for j in range(8):
        A(f"buffer_load_dwordx2 {vr(W2R+2*j,2)}, v98, s[48:51], s{62 + (j >> 2)} offen offset:{(j & 3) * 1280}")
    stat_phase()
    A("s_waitcnt vmcnt(8)\ns_barrier")
    sreads(9)
    A(f"""
v_and_b32 v5, 3, v2
v_lshrrev_b32 v6, 3, v2
v_lshl_add_u32 v6, v5, 3, v6
s_lshl_b32 s30, s29, 5
v_add_u32 v6, s30, v6
v_lshlrev_b32 v6, 2, v6
s_lshl_b32 s30, s29, 9
v_lshl_add_u32 v7, v2, 2, s30
v_cmp_eq_u32 s[30:31], 1, v5
v_cmp_eq_u32 s[32:33], 2, v5
v_cmp_eq_u32 s[34:35], 3, v5
s_mov_b32 s36, 0x3acccccd
s_mov_b32 s37, 0x3727c5ac
s_waitcnt lgkmcnt(0)
""")
    for o in sops(): A(o)
    if CSL:
        A(f"v_add_f32 v76, v76, v77\nv_add_f32 v78, v78, v79\nds_write_b32 v7, v76 offset:{CS}\nds_write_b32 v7, v78 offset:{CS+256}")
    for m in ("quad_perm:[1,0,3,2]", "quad_perm:[2,3,0,1]", "row_half_mirror"):
        for i in range(8): A(f"v_add_f32_dpp v{32+i}, v{32+i}, v{32+i} {m} row_mask:0xf bank_mask:0xf")
    for j in range(1, 4):
        A(f"v_cndmask_b32 v32, v32, v{32+2*j}, s[{28+2*j}:{29+2*j}]\nv_cndmask_b32 v33, v33, v{33+2*j}, s[{28+2*j}:{29+2*j}]")
    A(f"""
v_mul_f32 v32, s36, v32
v_mul_f32 v34, v32, v32
v_fma_f32 v33, v33, s36, -v34
v_max_f32 v33, 0, v33
v_cvt_pk_bf16_f32 v33, 0, v33
v_add_f32 v33, s37, v33
v_cvt_pk_bf16_f32 v33, 0, v33
v_sqrt_f32 v33, v33
ds_write_b32 v6, v32 offset:{XS}
s_lshl_b32 s30, s14, 9
s_add_u32 s30, s30, {RS}
v_cvt_pk_bf16_f32 v33, 0, v33
v_rcp_f32 v33, v33
s_cmp_eq_u32 s15, 8
s_cselect_b32 s46, s46, 0
s_nop 0
ds_write_b32 v6, v33 offset:{RB}
s_waitcnt lgkmcnt(0)
s_barrier
; MARK 3
buffer_store_dword v33, v6, s[44:47], s30 offen{ST}
s_cmp_lt_u32 s58, 256
s_cselect_b32 s46, {WS_BYTES}, 0
s_lshl_b32 s30, s58, 10
s_add_u32 s30, s30, {FL2}
v_lshlrev_b32 v5, 4, v2
v_mov_b32 v36, 0
v_mov_b32 v37, 0
v_mov_b32 v38, 0
v_mov_b32 v39, 0
buffer_store_dwordx4 v[36:39], v5, s[44:47], s30 offen
s_cmp_ge_u32 s58, 540
s_cbranch_scc1 {E}_end
s_mov_b32 s46, {WS_BYTES}
s_mov_b32 s30, 0x05040100
s_mov_b32 s31, 0x07060302
v_lshrrev_b32 v5, 3, v4
v_and_b32 v6, 7, v2
v_lshlrev_b32 v5, 10, v5
v_lshl_add_u32 v5, v6, 6, v5
v_lshl_add_u32 v5, v3, 9, v5
s_lshl_b32 s34, s29, 12
s_add_u32 s34, s34, 147456
v_add_u32 v5, s34, v5
v_lshlrev_b32 v6, 4, v2
v_add_u32 v7, s34, v6
s_lshl_b32 s33, s60, 12
s_add_u32 s33, s33, s61
s_add_u32 s33, s33, {W2F}
s_waitcnt vmcnt(2)
""")
    for c in range(4):
        for k in range(4): A(f"v_perm_b32 v{40+4*c+k}, v{W2R+2+4*k+(c>>1)}, v{W2R+4*k+(c>>1)}, s{30+(c&1)}")
    for c in range(4): A(f"ds_write_b128 v5, {vr(40+4*c,4)} offset:{16*c}")
    for c in range(4): A(f"ds_read_b128 {vr(56+4*c,4)}, v7 offset:{1024*c}")
    for c in range(4): A(f"s_waitcnt lgkmcnt({3-c})\nbuffer_store_dwordx4 {vr(56+4*c,4)}, v6, s[44:47], s33 offen offset:{1024*c}{STW}")
    A("s_endpgm")
    A(f"""
{E}_comp:
v_lshrrev_b32 v3, 5, v2
v_and_b32 v4, 31, v2
""")
    A("""
s_and_b32 s52, s29, 1
s_lshr_b32 s53, s29, 1
s_lshl_b32 s30, s52, 1
s_xor_b32 s30, s30, s53
s_add_u32 s54, s17, s53
s_mov_b32 s56, 0x3f803f80
s_lshl_b32 s31, s30, 1
v_bfe_u32 v5, v2, 1, 3
v_xor_b32 v5, v5, v3
v_xor_b32 v5, s31, v5
s_lshl_b32 s31, s52, 13
v_lshlrev_b32 v6, 7, v4
v_add_u32 v6, s31, v6
""")
    for pos in range(4):
        A(f"v_xor_b32 v7, {2*pos}, v5\nv_lshl_add_u32 v{16+pos}, v7, 4, v6\nv_add_u32 v{20+pos}, 98304, v{16+pos}")
    A("""
v_bfe_u32 v5, v2, 2, 2
v_lshl_add_u32 v6, v3, 3, v5
v_lshlrev_b32 v6, 9, v6
v_bfe_u32 v7, v2, 1, 1
v_lshl_add_u32 v6, v7, 3, v6
v_add_u32 v6, 16384, v6
v_bfe_u32 v7, v2, 4, 1
v_and_b32 v8, 1, v2
v_lshl_add_u32 v7, v7, 1, v8
s_lshl_b32 s31, s53, 3
v_add_u32 v7, s31, v7
v_lshlrev_b32 v5, 2, v5
v_xor_b32 v7, v7, v5
v_lshl_add_u32 v6, v7, 4, v6
v_xor_b32 v7, 64, v6
""")
    for pos in range(4):
        A(f"s_xor_b32 s31, s30, {pos}\ns_lshl_b32 s31, s31, 13")
        for t in range(2):
            A(f"v_add_u32 v{24+pos*2+t}, s31, v{6+t}\nv_add_u32 v{32+pos*2+t}, 98304, v{24+pos*2+t}")
    A("""
v_and_b32 v5, 15, v2
v_bfe_u32 v6, v2, 4, 1
v_cmp_eq_u32 vcc, v5, v6
v_mov_b32 v5, s56
s_mov_b32 s56, 0xffff0000
""")
    for i in range(4): A(f"v_cndmask_b32 v{88+i}, 0, v5, vcc")
    A(f"""
s_lshl_b32 s31, s52, 8
s_add_u32 s31, s31, {XS}
v_lshl_add_u32 v9, v4, 2, s31
v_add_u32 v12, {RB - XS}, v9
""")
    if CSL:
        A("s_lshl_b32 s33, s53, 9\nv_lshl_add_u32 v8, v2, 2, s33")
    else:
        A(f"""
s_lshl_b32 s33, s29, 11
v_lshl_add_u32 v7, v2, 4, s33
s_lshl_b32 s33, s53, 12
v_lshl_add_u32 v8, v3, 11, s33
v_bfe_u32 v5, v2, 4, 1
v_lshl_add_u32 v8, v5, 4, v8
v_bfe_u32 v5, v2, 2, 2
v_lshl_add_u32 v8, v5, 8, v8
v_and_b32 v5, 3, v2
v_lshl_add_u32 v8, v5, 2, v8
""")
    A(f"""
s_cmp_lt_u32 s15, 8
s_cselect_b32 s55, s54, 0
s_cmp_ge_u32 s55, 20
s_cbranch_scc1 {E}_vloop
""")
    FB = [56, 72]
    def acc(ct, tt): return 96 + (ct * 2 + tt) * 16
    class Q:
        def __init__(s): s.q = []
        def op(s, tag, txt): A(txt); s.q.append(tag)
        def need(s, *tags):
            idx = max([i for i, t in enumerate(s.q) if t in tags], default=-1)
            if idx >= 0:
                A(f"s_waitcnt lgkmcnt({len(s.q) - 1 - idx})"); s.q = s.q[idx + 1:]
    def rd(L, p, i):
        s, pos = p >> 2, p & 3
        slot = s % 3; b = FB[p & 1]
        xa = (20 if slot == 2 else 16) + pos
        wa = (32 if slot == 2 else 24) + pos * 2
        off = 49152 if slot == 1 else 0
        L.op((p, i), [f"ds_read_b128 v[{b}:{b+3}], v{xa} offset:{off}",
                      f"ds_read_b64_tr_b16 v[{b+8}:{b+9}], v{wa} offset:{off}",
                      f"ds_read_b64_tr_b16 v[{b+10}:{b+11}], v{wa} offset:{off+2048}",
                      f"ds_read_b128 v[{b+4}:{b+7}], v{xa} offset:{off+4096}",
                      f"ds_read_b64_tr_b16 v[{b+12}:{b+13}], v{wa+1} offset:{off}",
                      f"ds_read_b64_tr_b16 v[{b+14}:{b+15}], v{wa+1} offset:{off+2048}"][i])
    def prep():
        o = []
        for t in range(2):
            c = 10 + t; h = 56 + 4 * t
            o += f"""v_cvt_pk_bf16_f32 v{h+2}, 0, v{c}
v_cvt_pk_bf16_f32 v{64+2*t}, -v{160+t}, -v{160+t}
v_sub_f32 v{h+2}, v{c}, v{h+2}
v_cvt_pk_bf16_f32 v{65+2*t}, -v{160+t}, 0
v_cvt_pk_bf16_f32 v{h+3}, 0, v{h+2}
v_cvt_pk_bf16_f32 v{h}, v{c}, v{h+2}
v_sub_f32 v{h+3}, v{h+2}, v{h+3}
v_cvt_pk_bf16_f32 v{h+1}, v{h+3}, 0""".split("\n")
        return o
    BP = P["bpos"]
    def loop(vmode):
        L = Q()
        A("; MARK 0\ns_waitcnt lgkmcnt(0)\ns_mov_b32 s44, s12\ns_mov_b32 s45, s13")
        if P.get("fill", 1):
            A(f"""
s_lshl_b32 s31, s2, 3
s_add_u32 s31, s31, s29
s_mul_i32 s31, s31, 1280
s_add_u32 s31, s31, {OF}
v_lshlrev_b32 v44, 4, v2
v_lshlrev_b32 v45, 2, v2
v_mov_b32 v40, -1
v_mov_b32 v41, -1
v_mov_b32 v42, -1
v_mov_b32 v43, -1
buffer_store_dwordx4 v[40:43], v44, s[44:47], s31 offen{ST}
buffer_store_dword v40, v45, s[44:47], s31 offen offset:1024{ST}
""")
        A("s_barrier\n; MARK 1")
        for i in range(6): rd(L, 0, i)
        for p in range(40):
            s, pos = p >> 2, p & 3
            b = FB[p & 1]
            bar = pos == 3 and s < 9
            if p == 39: sched = [[], [], [], []]
            elif bar: sched = {0: [[0, 1], [2, 3], [4, 5], []], 1: [[0, 1, 2], [3, 4, 5], [], []], 2: [[], [0, 1, 2], [3, 4, 5], []], 3: [[], [], [0, 1, 2, 3, 4, 5], []]}[BP]
            else: sched = [[0, 1], [2, 3], [4, 5], []]
            if bar:
                L.need(*[(p, i) for i in range(6)])
                if BP == 0: A(f"s_barrier\n; MARK {4+s}")
            for j, (ct, tt) in enumerate(((0, 0), (0, 1), (1, 1), (1, 0))):
                L.need(*[(p, i) for i in ([0, 1, 2], [3], [4, 5], [])[j]])
                a = acc(ct, tt)
                c = "0" if p == 0 else vr(a, 16)
                w, x = vr(b + 8 + 4 * ct, 4), vr(b + 4 * tt, 4)
                if vmode: A(f"v_mfma_f32_32x32x16_bf16 {vr(a,16)}, {x}, {w}, {c}")
                else: A(f"v_mfma_f32_32x32x16_bf16 {vr(a,16)}, {w}, {x}, {c}")
                if bar and BP == j + 1: A(f"s_barrier\n; MARK {4+s}")
                for i in sched[j]: rd(L, p + 1, i)
                if pos < 2 and P["cs"] == "mfma" and j in (1, 3):
                    ct2 = j >> 1
                    c = "0" if p == 0 else vr(40 + 4 * ct2, 4)
                    A(f"v_mfma_f32_16x16x32_bf16 {vr(40+4*ct2,4)}, {vr(b+8+4*ct2,4)}, v[88:91], {c}")
                if p == 38 and j == 0 and not CSL:
                    L.op("csw", f"ds_write_b128 v7, v[40:43] offset:{CS}"); L.op("csw", f"ds_write_b128 v7, v[44:47] offset:{CS + 1024}")
                if p == 38 and j == 3:
                    L.need("csw"); A("s_barrier")
                    L.op("st", f"ds_read_b32 v10, v8 offset:{CS}"); L.op("st", f"ds_read_b32 v11, v8 offset:{CS + (256 if CSL else 1024)}")
                    L.op("st", "ds_read2_b32 v[160:161], v9 offset0:0 offset1:32"); L.op("st", "ds_read2_b32 v[162:163], v12 offset0:0 offset1:32")
                if p == 39 and j == 1: L.need("st")
                if p == 39 and j in (1, 2):
                    for o in prep()[8 * (j - 1): 8 * j]: A(o)
    def stats(vmode):
        A("; MARK 2")
        for (ct, tt) in ((0, 0), (0, 1), (1, 1), (1, 0)):
            a = acc(ct, tt); w, x = vr(56 + 4 * ct, 2), vr(64 + 2 * tt, 2)
            if vmode: A(f"v_mfma_f32_32x32x8_bf16 {vr(a,16)}, {x}, {w}, {vr(a,16)}")
            else: A(f"v_mfma_f32_32x32x8_bf16 {vr(a,16)}, {w}, {x}, {vr(a,16)}")
        A("""
s_lshl_b32 s39, s14, 2
s_lshl_b32 s31, s52, 1
s_add_u32 s39, s39, s31
""")
    order = ((0, 0), (0, 1), (1, 1), (1, 0))
    loop(False); stats(False)
    A(f"""
s_cmp_ge_u32 s53, s18
s_cbranch_scc1 {E}_w2
v_lshlrev_b32 v5, 4, v2
s_cmp_lt_u32 s15, 8
s_cbranch_scc1 {E}_qk
""")
    A(f"""
s_mul_i32 s30, s39, 108
s_lshl_b32 s31, s54, 2
s_add_u32 s30, s30, s31
s_lshl_b32 s30, s30, 10
s_add_u32 s30, s30, {HF}
s_add_u32 s31, s30, {108*1024}
""")
    for (ct, tt) in order:
        a = acc(ct, tt)
        for k in range(8): A(f"v_cvt_pk_bf16_f32 v{a+k}, v{a+2*k}, v{a+2*k+1}")
        for k in range(8): A(f"v_pk_max_i16 v{a+k}, v{a+k}, 0")
        for j in range(2): A(f"buffer_store_dwordx4 {vr(a+4*j,4)}, v5, s[44:47], s{30+tt} offen offset:{(ct*2+j)*1024}{STH}")
    A(f"s_branch {E}_w2")
    A(f"""
{E}_qk:
s_cmp_lt_u32 s54, 10
s_cselect_b32 s30, {f32bits(QSCALE)}, 1.0
v_mul_f32 v162, s30, v162
v_mul_f32 v163, s30, v163
s_mul_i32 s30, s39, {TS}
s_lshl_b32 s31, s54, 12
s_add_u32 s30, s30, s31
s_add_u32 s30, s30, {QF}
s_add_u32 s31, s30, {TS}
""")
    for (ct, tt) in order:
        a = acc(ct, tt)
        sel = "op_sel_hi:[1,0]" if tt == 0 else "op_sel:[0,1] op_sel_hi:[1,1]"
        for k in range(8): A(f"v_pk_mul_f32 {vr(a+2*k,2)}, {vr(a+2*k,2)}, v[162:163] {sel}")
        for k in range(8): A(f"v_cvt_pk_bf16_f32 v{a+k}, v{a+2*k}, v{a+2*k+1}")
        for j in range(2): A(f"buffer_store_dwordx4 {vr(a+4*j,4)}, v5, s[44:47], s{30+tt} offen offset:{(ct*2+j)*1024}{ST}")
    A(f"s_branch {E}_w2")
    A(f"{E}_vloop:")
    loop(True); stats(True)
    A(f"""
s_cmp_ge_u32 s53, s18
s_cbranch_scc1 {E}_w2
s_lshl_b32 s30, s52, 8
v_lshl_add_u32 v6, v3, 4, s30
""")
    for tt in range(2):
        for q in range(4):
            A(f"ds_read_b128 {vr(56+16*tt+4*q,4)}, v6 offset:{RB + tt*128 + q*32}")
    A(f"""
s_sub_u32 s30, s54, 20
s_lshl_b32 s30, s30, 10
s_mul_i32 s31, s39, {TS}
s_add_u32 s30, s30, s31
s_add_u32 s30, s30, {QF + VOFF}
s_add_u32 s31, s30, {2*SV}
s_add_u32 s32, s30, {TS}
s_add_u32 s33, s31, {TS}
v_and_b32 v5, 19, v2
v_bfe_u32 v7, v2, 2, 1
v_lshl_add_u32 v5, v7, 3, v5
v_bfe_u32 v7, v2, 3, 1
v_lshl_add_u32 v5, v7, 2, v5
v_mul_u32_u24 v9, {SV}, v3
v_lshl_add_u32 v16, v5, 4, v9
s_waitcnt lgkmcnt(0)
""")
    for (ct, tt) in order:
        a = acc(ct, tt)
        for k in range(8): A(f"v_pk_mul_f32 {vr(a+2*k,2)}, {vr(a+2*k,2)}, {vr(56+16*tt+2*k,2)}")
        for k in range(8): A(f"v_cvt_pk_bf16_f32 v{a+k}, v{a+2*k}, v{a+2*k+1}")
        for j in range(2): A(f"buffer_store_dwordx4 {vr(a+4*j,4)}, v16, s[44:47], s{30+2*tt+j} offen offset:{ct*512}{STV}")
    A(f"""
{E}_w2:
; MARK 3
{E}_end:
s_endpgm
""")
    A.end(name, 168, 80)
```

```python
from asmlib import *
from layout import *

NP = 4
DEF = dict(offs=96.0, T1=4, prio_ffn=0, prio_red=1, prio_add=0, c1=3, prios=(3, 2, 1, 0), rot=1, frot=1,
           order="M1 E8 E9 C0 C1 E10 E11 M2 K C2 C3 E12 E13 E14 E15 M3 C4 C5 N0 N1 C6 C7 N2 N3 M4 V N4 N5 N6 N7", npre=8,
           osc=" sc1", lsc=" sc1", psl=2, spin=2000000, rsl=1, wsl=8, G0=1, npoll=1, addpos=11, hint=(7, 4), bq=2, pgate=13, rtsl=0, pd=2, lf=5, pper=3, psc=' sc1', hsc=' sc1')
WO = 1024; PR = 143360; MSK = 96; SENT = 128; FREE = 123904
F_G1, F_G5, F_ALL, F_RW, F_RR, F_WO, F_FX = 1, 2, 3, 4, 5, 6, 7

def gen_k2(A, name="k2_kernel", P=None):
    P = dict(DEF, **(P or {}))
    A.begin(name)
    E = f"L_{name}"
    G0 = P["G0"]; LF = P["lf"]
    A(f"""
s_cmp_ge_u32 s2, 256
s_cbranch_scc1 {E}_end
s_load_dwordx2 s[12:13], s[0:1], 64
s_load_dwordx2 s[4:5], s[0:1], 0
s_load_dwordx2 s[6:7], s[0:1], 16
s_load_dwordx2 s[8:9], s[0:1], 48
v_lshrrev_b32 v1, 6, v0
v_and_b32 v2, 63, v0
s_and_b32 s40, s2, 7
s_lshr_b32 s41, s2, 3
v_readfirstlane_b32 s29, v1
v_lshlrev_b32 v5, 4, v2
v_lshrrev_b32 v3, 5, v2
v_and_b32 v4, 31, v2
s_mov_b32 s46, {WS_BYTES}
s_mov_b32 s47, 0x20000
s_lshl_b32 s14, s40, 2
s_lshr_b32 s15, s41, 3
s_add_u32 s14, s14, s15
s_mul_i32 s16, s14, 5
s_add_u32 s16, s16, 1
s_lshr_b32 s16, s16, 1
s_lshl_b32 s16, s16, 9
s_add_u32 s16, s16, {QF}
s_movk_i32 s17, 1024
s_bitcmp1_b32 s14, 0
s_cselect_b32 s17, -504, s17
s_and_b32 s19, s41, 7
s_lshl_b32 s15, s19, 3
s_mul_i32 s19, s19, {8 * TS * P['rot']}
s_cmp_ge_u32 s29, 8
s_cbranch_scc1 {E}_ffn
s_add_u32 s15, s15, s29
s_mul_i32 s20, s15, {TS}
s_add_u32 s20, s20, s16
s_add_u32 s18, s20, s17
s_add_u32 s21, s16, s19
s_add_u32 s21, s21, 40960
v_lshlrev_b32 v6, 4, v4
s_waitcnt lgkmcnt(0)
s_mov_b32 s44, s12
s_mov_b32 s45, s13
""")
    QM, QR, KM, KR, V0, V1 = 8, 12, 16, 20, 24, 28
    S = [32, 48]; O = 64; CB = 80
    FL = 120
    A(f"buffer_load_dwordx4 {vr(QM,4)}, v5, s[44:47], s20 offen")
    A(f"buffer_load_dwordx2 {vr(QR,2)}, v6, s[44:47], s18 offen")
    A(f"buffer_load_dwordx4 {vr(KM,4)}, v5, s[44:47], s21 offen")
    A(f"""
v_and_b32 v{FL+1}, 3, v2
v_lshlrev_b32 v{FL+1}, 2, v{FL+1}
s_lshl_b32 s21, s29, 2
s_add_u32 s21, s21, 64
v_mov_b32 v{FL+2}, s21
v_mul_u32_u24 v7, 320, v3
v_lshl_add_u32 v7, v4, 4, v7
v_add_u32 v7, 5120, v7
v_lshlrev_b32 v6, 3, v4
v_add_u32 v6, 4096, v6
v_mov_b32 v1, 0x3f803f80
v_cmp_eq_u32 vcc, 20, v4
v_cmp_gt_u32 s[22:23], 20, v4
v_cmp_gt_u32 s[24:25], 32, v2
""")
    KB = [(KM, KR), (124, 128)]; VB = [V0, 132]
    for i in range(8): A(f"v_cndmask_b32 v{V0+i}, 0, v1, vcc")
    for i in range(8): A(f"v_cndmask_b32 v{VB[1]+i}, 0, v1, vcc")
    A(f"""
s_mul_i32 s60, s15, 40960
s_mul_i32 s61, s14, 1280
s_add_u32 s60, s60, s61
s_add_u32 s60, s60, {OF}
s_lshl_b32 s61, s15, {12 - LF}
s_lshr_b32 s27, s14, {LF}
s_lshl_b32 s27, s27, 7
s_add_u32 s61, s61, s27
s_and_b32 s27, s14, {(1 << LF) - 1}
s_lshl_b32 s27, s27, 2
s_add_u32 s61, s61, s27
s_add_u32 s61, s61, {FL2}
s_lshr_b32 s50, s40, 1
s_lshl_b32 s50, s50, 3
s_and_b32 s51, s41, 7
s_add_u32 s50, s50, s51
s_lshl_b32 s50, s50, 1
s_bfe_u32 s51, s41, 0x10003
s_lshr_b32 s52, s29, 2
s_xor_b32 s53, s51, s52
s_add_u32 s50, s50, s53
s_mul_i32 s54, s52, {P['bq']}
s_xor_b32 s54, s54, s29
s_and_b32 s54, s54, 3
s_lshl_b32 s56, s53, 2
s_add_u32 s56, s56, s54
s_lshl_b32 s56, s56, 3
s_and_b32 s55, s40, 1
s_lshl_b32 s55, s55, 1
s_lshr_b32 s58, s41, 4
s_add_u32 s55, s55, s58
s_mul_i32 s55, s55, 320
s_lshl_b32 s58, s51, 8
s_add_u32 s55, s55, s58
s_lshl_b32 s58, s54, 4
s_add_u32 s55, s55, s58
s_mul_i32 s57, s50, 40960
s_add_u32 s55, s55, s57
s_mul_i32 s59, s54, 10240
s_add_u32 s57, s57, s59
s_add_u32 s57, s57, {OF}
s_mul_i32 s58, s54, 30720
s_add_u32 s58, s58, {WO}
s_mul_i32 s59, s54, 5120
s_add_u32 s59, s59, {PR}
s_lshl_b32 s53, s51, 7
s_sub_u32 s53, 64, s53
s_mov_b32 s48, s8
s_mov_b32 s49, s9
s_mov_b32 s50, 2621440
s_mov_b32 s51, 0x20000
""")
    A("s_waitcnt vmcnt(0)\ns_barrier\n; MARK 0")
    def kread(o, km=None, kr=None):
        if km is None: km, kr = KB[o & 1]
        g, i = o >> 2, o & 3
        A(f"ds_read_b128 {vr(km,4)}, v5 offset:{g*10240+i*1024}\nds_read_b64 {vr(kr,2)}, v6 offset:{g*10240+i*256}")
    def vread(o):
        g, i = o >> 2, o & 3; b = g * 10240 + i * 1280
        A(f"s_mov_b64 exec, s[22:23]\nds_read_b128 {vr(VB[o&1],4)}, v7 offset:{b}\nds_read_b128 {vr(VB[o&1]+4,4)}, v7 offset:{b+640}\ns_mov_b64 exec, -1")
    A(f"ds_read_b64 {vr(KR,2)}, v6")
    for t in range(1, NP): kread(t, CB + 4 * t, 96 + 2 * t)
    A(f"v_cndmask_b32 v{QR}, 0, v{QR}, s[24:25]\nv_cndmask_b32 v{QR+1}, 0, v{QR+1}, s[24:25]")
    for t in range(NP):
        A(f"s_waitcnt lgkmcnt({2*(NP-1-t)})")
        dst = [S[0], S[1], O, 104][t]
        km, kr = (KM, KR) if t == 0 else (CB + 4 * t, 96 + 2 * t)
        A(f"v_mfma_f32_32x32x16_bf16 {vr(dst,16)}, {vr(km,4)}, {vr(QM,4)}, 0")
        A(f"v_mfma_f32_32x32x8_bf16 {vr(dst,16)}, {vr(kr,2)}, {vr(QR,2)}, {vr(dst,16)}")
    for t in range(NP):
        dst = [S[0], S[1], O, 104][t]
        for k in range(8):
            if t == 0 and k == 0: A(f"v_max_f32 v1, v{dst}, v{dst+1}")
            else: A(f"v_max3_f32 v1, v1, v{dst+2*k}, v{dst+2*k+1}")
    A(f"""
v_mov_b32 v14, v1
s_mov_b32 s26, {f32bits(P['offs'])}
v_permlane32_swap_b32 v1, v14
v_max_f32 v1, v1, v14
v_add_f32 v1, s26, v1
""")
    for i in range(16): A(f"v_sub_f32 v{CB+i}, 0, v1")
    for i in range(16): A(f"v_mov_b32 v{O+i}, 0")
    def M1(t): A(f"v_mfma_f32_32x32x16_bf16 {vr(S[t&1],16)}, {vr(KB[t&1][0],4)}, {vr(QM,4)}, {vr(CB,16)}")
    def M2(t): A(f"v_mfma_f32_32x32x8_bf16 {vr(S[t&1],16)}, {vr(KB[t&1][1],2)}, {vr(QR,2)}, {vr(S[t&1],16)}")
    def Ex(t, *idx):
        for i in idx: A(f"v_exp_f32 v{S[t&1]+i}, v{S[t&1]+i}")
    def Cv(t, *idx):
        for k in idx:
            d = S[t & 1] + (k & 3) + 8 * (k >> 2)
            A(f"v_cvt_pk_bf16_f32 v{d}, v{S[t&1]+2*k}, v{S[t&1]+2*k+1}")
    A("; MARK 1\ns_waitcnt lgkmcnt(0)")
    kread(1); vread(0); M1(0); M2(0); kread(2); vread(1)
    W = 6
    Ex(0, *range(P["npre"]))
    def tile(t, hook=None):
        pr = P["prios"]
        if pr and (t == 0 or pr[t % len(pr)] != pr[(t - 1) % len(pr)]): A(f"s_setprio {pr[t % len(pr)]}")
        for tok in P["order"].split():
            if tok == "M1": A(f"s_waitcnt lgkmcnt({W})"); M1(t + 1)
            elif tok == "M2": M2(t + 1)
            elif tok == "M3": A(f"s_waitcnt lgkmcnt({W})\nv_mfma_f32_32x32x16_bf16 {vr(O,16)}, {vr(VB[t&1],4)}, {vr(S[t&1],4)}, {vr(O,16)}")
            elif tok == "M4": A(f"v_mfma_f32_32x32x16_bf16 {vr(O,16)}, {vr(VB[t&1]+4,4)}, {vr(S[t&1]+8,4)}, {vr(O,16)}")
            elif tok == "K":
                if hook: hook(t, 0)
                kread(t + 3)
                if hook: hook(t, 1)
            elif tok == "V": vread(t + 2)
            elif tok[0] == "E": Ex(t, int(tok[1:]))
            elif tok[0] == "N": Ex(t + 1, int(tok[1:]))
            elif tok[0] == "C": Cv(t, int(tok[1:]))
            else: raise ValueError(tok)
    adv = "v_add_u32 v5, 20480, v5\nv_add_u32 v6, 20480, v6\nv_add_u32 v7, 20480, v7"
    npoll = [0]
    def check(thr):
        k = npoll[0]; npoll[0] += 1
        A(f"""
s_waitcnt lgkmcnt(2)
v_cmp_gt_u32 vcc, {thr}, v{FL}
s_cbranch_vccz {E}_ok{k}
{E}_poll{k}:
s_sleep 1
ds_read_b32 v{FL}, v{FL+1}
s_waitcnt lgkmcnt(0)
v_cmp_gt_u32 vcc, {thr}, v{FL}
s_cbranch_vccnz {E}_poll{k}
{E}_ok{k}:
""")
    rdflag = f"ds_read_b32 v{FL}, v{FL+1}"
    def hook0(t, ph):
        if ph == 1 and (t in (4, 7) or (G0 == 1 and t == 0)): A(rdflag)
        if ph == 0 and t == 1 and G0 == 1: check(F_G1)
        if ph == 0 and t == 5: check(F_G5)
    for t in range(8): tile(t, hook0)
    A(adv)
    A(f"s_mov_b32 s27, 1\ns_mov_b32 s28, 0\nv_mov_b32 v{FL+3}, 1\n{E}_loop:")
    A(f"""
s_cmp_eq_u32 s27, 4
s_cbranch_scc0 {E}_nm
; MARK 2
{E}_nm:
""")
    def hook1(t, ph):
        if ph == 0 and t == 0: check("s28")
        if ph == 1 and t == 0: A(f"s_mov_b32 s28, {F_ALL}")
        if ph == 1 and t in (0, 4): A(f"v_add_u32 v{FL+3}, 1, v{FL+3}\nds_write_b32 v{FL+2}, v{FL+3}")
        if ph == 1 and t == 7: A(rdflag)
        if ph == 1 and t == P["hint"][1]:
            A(f"""
s_cmp_lg_u32 s27, {P["hint"][0]}
s_cbranch_scc1 {E}_nh
s_mov_b64 exec, 1
buffer_store_dword v{FL+2}, off, s[44:47], s61{P['hsc']}
s_mov_b64 exec, -1
; HMARK 13
{E}_nh:
""")
    for t in range(8): tile(t, hook1)
    A(adv)
    A(f"s_add_u32 s27, s27, 1\ns_cmp_lt_u32 s27, 8\ns_cbranch_scc1 {E}_loop")
    A(f"; MARK 3\nv_mov_b32 v{FL+3}, 16\nds_write_b32 v{FL+2}, v{FL+3}\nv_mov_b32 v1, 0\ns_movk_i32 s26, 0x207")
    for i in range(12): A(f"v_fma_f32 v1, v{O+i}, 0, v1")
    A(f"""
v_cmp_class_f32 vcc, v1, s26
s_cbranch_vccnz {E}_fb
{E}_epi:
v_mov_b32 v10, 0
ds_read_b64 v[12:13], v10 offset:{MSK}
v_mov_b32 v14, v{O+8}
v_mov_b32 v15, v{O+8}
v_lshlrev_b32 v5, 4, v2
v_permlane32_swap_b32 v14, v15
v_rcp_f32 v14, v15
v_lshlrev_b32 v6, 3, v4
v_mov_b32 v11, v{FL+1}
""")
    for k in range(6): A(f"v_pk_mul_f32 {vr(O+2*k,2)}, {vr(O+2*k,2)}, v[14:15] op_sel_hi:[1,0]")
    for k in range(6): A(f"v_cvt_pk_bf16_f32 v{O+k}, v{O+2*k}, v{O+2*k+1}")
    OSC = P["osc"]; LSC = P["lsc"]
    VW, VR, OR_, OA, SP = 6, 7, 8, 9, 15
    A(f"""
buffer_store_dwordx4 {vr(O,4)}, v5, s[44:47], s60 offen{OSC}
s_mov_b64 exec, s[24:25]
buffer_store_dwordx2 {vr(O+4,2)}, v6, s[44:47], s60 offen offset:1024{OSC}
s_mov_b64 exec, -1
s_setprio 0
; MARK 4
v_mul_u32_u24 v14, 2560, v3
s_add_u32 s28, s57, 5120
s_waitcnt lgkmcnt(0)
v_readfirstlane_b32 s30, v12
v_readfirstlane_b32 s31, v13
v_lshl_add_u32 v{OR_}, v4, 3, v14
s_lshr_b64 s[30:31], s[30:31], s56
s_mov_b32 s63, s30
""")
    OB = 16; AC = 56
    def load(k):
        if k < 8: A(f"buffer_load_dwordx4 {vr(OB+4*k,4)}, v5, s[44:47], s{57 if k < 4 else 28} offen offset:{1280*(k&3)}{LSC}")
        else:
            for e in range(2): A(f"buffer_load_dwordx2 {vr(OB+4*k+2*e,2)}, v{OR_}, s[44:47], s{57 if k == 8 else 28} offen offset:{1024+1280*e}{LSC}")
    for k in range(8):
        A(f"s_mov_b32 s64, {k}\ns_bitcmp1_b32 s63, {k}\ns_cbranch_scc0 {E}_su")
        load(k)
    load(8); load(9)
    A(f"s_mov_b32 s64, 9\n{E}_su:")
    def issue_rest(T):
        A(f"s_cmp_eq_u32 s64, 9\ns_cbranch_scc1 {E}_id{T}")
        for k in range(8):
            L = f"{E}_is{T}{k}"
            A(f"""
s_cmp_gt_u32 s64, {k}
s_cbranch_scc1 {L}n
s_bitcmp1_b32 s63, {k}
s_cbranch_scc1 {L}g
{L}p:
ds_read_b64 v[0:1], v10 offset:{MSK}
s_waitcnt lgkmcnt(0)
v_readfirstlane_b32 s30, v0
v_readfirstlane_b32 s31, v1
s_lshr_b64 s[30:31], s[30:31], s56
s_mov_b32 s63, s30
s_bitcmp1_b32 s30, {k}
s_cbranch_scc1 {L}g
s_sleep 1
s_branch {L}p
{L}g:
""")
            load(k)
            A(f"{L}n:")
        load(8); load(9)
        A(f"{E}_id{T}:\n; MARK 6")
    A(f"""
ds_read_b32 v1, v11
v_mul_u32_u24 v12, 1280, v4
v_bfe_u32 v13, v2, 2, 2
v_and_b32 v7, 3, v2
v_lshl_add_u32 v{OA}, v3, 3, v12
v_lshlrev_b32 v13, 6, v13
v_lshl_add_u32 v13, v7, 3, v13
v_bfe_u32 v12, v2, 4, 1
v_lshl_add_u32 v13, v12, 5, v13
v_add_u32 v13, s58, v13
v_lshl_add_u32 v{VW}, v3, 8, v13
v_add_u32 v{VR}, v14, v13
s_sub_u32 s26, s54, 1
v_sub_u32 v14, s26, v2
v_and_b32 v14, 3, v14
s_lshl_b32 s26, s52, 4
s_add_u32 s26, s26, {SENT}
v_lshl_add_u32 v{SP}, v14, 2, s26
s_lshl_b32 s27, s54, 2
s_add_u32 s27, s27, s26
s_mov_b32 s62, {P['spin']}
v_add_u32 v12, s59, v5
s_lshl_b32 s30, s54, 2
v_mov_b32 v13, s30
""")
    nw_ = [0]
    def lwait(thr, ar=11):
        k = nw_[0]; nw_[0] += 1
        A(f"""
{E}_lw{k}:
s_waitcnt lgkmcnt(0)
v_cmp_gt_u32 vcc, {thr}, v1
s_cbranch_vccz {E}_lwd{k}
s_sleep {P['psl']}
ds_read_b32 v1, v{ar}
s_branch {E}_lw{k}
{E}_lwd{k}:
""")
    def perq4(tag, body):
        for q in range(4):
            if q < 3: A(f"s_cmp_lg_u32 s54, {q}\ns_cbranch_scc1 {E}_{tag}{q+1}")
            body(q)
            if q < 3: A(f"s_branch {E}_{tag}d\n{E}_{tag}{q+1}:")
        A(f"{E}_{tag}d:")
    lwait(F_WO)
    A(f"s_cmp_lg_u32 s52, 0\ns_cbranch_scc1 {E}_tB")
    for ty, nb in ((0, 3), (1, 2)):
        T = "AB"[ty]
        if ty: A(f"{E}_tB:")
        WB = AC + 16 * nb
        nbuf = min(10, (168 - WB) // (4 * nb))
        q = []
        def need(tag):
            idx = max([i for i, t in enumerate(q) if t == tag], default=-1)
            if idx >= 0:
                A(f"s_waitcnt lgkmcnt({min(len(q) - 1 - idx, 15)})"); del q[:idx + 1]
        later = lambda k: (7 - k + 4) if k < 8 else (2 if k == 8 else 0)
        def wr(k, lo=0, hi=99):
            b = WB + (k % nbuf) * 4 * nb
            for u in range(max(lo, 0), min(hi, nb)):
                if k < 8: a = VW; o1 = u * 10240 + k * 1280; o2 = o1 + 512
                else: a = VR; o1 = u * 10240 + (k - 8) * 5120 + 1024; o2 = o1 + 1280
                A(f"ds_read_b64_tr_b16 {vr(b+4*u,2)}, v{a} offset:{o1}"); q.append((k, u))
                A(f"ds_read_b64_tr_b16 {vr(b+4*u+2,2)}, v{a} offset:{o2}"); q.append((k, u))
        for k in range(nbuf): wr(k)
        if ty == 0:
            for j in range(4): A(f"s_sub_u32 s30, {j+3}, s54\ns_and_b32 s30, s30, 3\ns_mul_i32 s30, s30, 3072\ns_add_u32 s{32+j}, s30, s58\ns_add_u32 s{32+j}, s{32+j}, 20480")
            for r in range(3): A(f"s_sub_u32 s30, s54, {r+1}\ns_and_b32 s30, s30, 3\ns_mul_i32 s30, s30, 30720\ns_add_u32 s{36+r}, s30, {WO + 20480 + r*3072}")
        else:
            A(f"s_lshl_b32 s31, s54, 12\ns_add_u32 s31, s31, {FREE - 2048}")
            for j in range(4): A(f"s_sub_u32 s30, {j+3}, s54\ns_and_b32 s30, s30, 3\ns_lshl_b32 s{32+j}, s30, 11\ns_add_u32 s{32+j}, s{32+j}, s31\ns_cmp_eq_u32 s30, 0\ns_cselect_b32 s{32+j}, s59, s{32+j}")
            for r in range(3):
                A(f"s_sub_u32 s30, s54, {r+1}\ns_and_b32 s30, s30, 3\ns_mul_i32 s30, s30, {5120 if r == 0 else 4096}\ns_add_u32 s{36+r}, s30, {PR if r == 0 else FREE + (r-1)*2048}")
        for k in range(16 * nb): A(f"v_mov_b32 v{AC+k}, 0")
        issue_rest(T)
        A("ds_read_b32 v1, v13")
        lwait(F_FX, 13)
        q.clear()
        perq4(f"fx{T}", lambda qq: [A(f"ds_read_b128 {vr(AC+16*t+4*qq,4)}, v12 offset:{(2048 if ty == 0 else 0) + t*1024}") for t in range(nb)])
        A("s_waitcnt lgkmcnt(0)")
        for k in range(10):
            A(f"s_waitcnt vmcnt({later(k)})")
            o = OB + 4 * k
            A(f"""
{E}_ck{T}{k}:
v_max3_u32 v1, v{o}, v{o+1}, v{o+2}
v_max_u32 v1, v1, v{o+3}
v_cmp_eq_u32 vcc, -1, v1
s_cbranch_vccnz {E}_rt{T}{k}
{E}_bk{T}{k}:
""")
            b = WB + (k % nbuf) * 4 * nb
            nx = k + nbuf
            for u in range(nb):
                need((k, u))
                A(f"v_mfma_f32_32x32x16_bf16 {vr(AC+16*u,16)}, {vr(b+4*u,4)}, {vr(o,4)}, {vr(AC+16*u,16)}")
                if nx < 10 and u >= 1: wr(nx, u - 1, u)
            if nx < 10: wr(nx, nb - 1, nb)
        A("; MARK 8")
        for j in range(4): A(f"v_add_u32 v{16+j}, s{32+j}, v5")
        for r in range(3): A(f"v_add_u32 v{20+r}, s{36+r}, v5")
        A("v_mov_b32 v13, s27\ns_mov_b32 s63, 7")
        for j in range(4):
            A(f"s_cmp_eq_u32 s54, {j}\ns_cbranch_scc1 {E}_ns{T}{j}")
            for t in range(nb): A(f"ds_write_b128 v{16+j}, {vr(AC+16*t+4*j,4)} offset:{t*1024}")
            A(f"{E}_ns{T}{j}:")
        A(f"""
s_waitcnt lgkmcnt(0)
ds_write_b32 v13, v13
{E}_sp{T}:
ds_read_b32 v1, v{SP}
s_waitcnt lgkmcnt(0)
v_cmp_ne_u32 vcc, 0, v1
s_and_b32 s30, vcc_lo, s63
""")
        for r in range(3):
            A(f"s_bitcmp1_b32 s30, {r}\ns_cbranch_scc0 {E}_nr{T}{r}")
            for t in range(nb): A(f"ds_read_b128 {vr(WB+4*(3*t+r),4)}, v{20+r} offset:{t*1024}")
            A(f"{E}_nr{T}{r}:")
        A(f"""
s_andn2_b32 s63, s63, s30
s_cbranch_scc1 {E}_sp{T}
; MARK 9
; VAL 10 s62
s_waitcnt lgkmcnt(0)
""")
        def fin(qq):
            for t in range(nb):
                a = AC + 16 * t + 4 * qq; r = WB + 12 * t
                for k in range(4): A(f"v_add_f32 v{a+k}, v{a+k}, v{r+k}\nv_add_f32 v{r+4+k}, v{r+4+k}, v{r+8+k}")
                for k in range(4): A(f"v_add_f32 v{a+k}, v{a+k}, v{r+4+k}")
                A(f"v_cvt_pk_bf16_f32 v{a}, v{a}, v{a+1}\nv_cvt_pk_bf16_f32 v{a+1}, v{a+2}, v{a+3}")
                A(f"buffer_store_dwordx2 {vr(a,2)}, v{OA}, s[48:51], s55 offen")
                if t < nb - 1: A("s_add_u32 s55, s55, s53")
            A("s_endpgm")
        for qq in range(4):
            if qq < 3: A(f"s_cmp_lg_u32 s54, {qq}\ns_cbranch_scc1 {E}_fn{T}{qq+1}")
            fin(qq)
            if qq < 3: A(f"{E}_fn{T}{qq+1}:")
        for k in range(10):
            A(f"""
{E}_rt{T}{k}:
s_sub_u32 s62, s62, 1
s_cbranch_scc1 {E}_bk{T}{k}
""")
            if P["rtsl"]: A(f"s_sleep {P['rtsl']}")
            for kk in range(k, 10): load(kk)
            A(f"s_waitcnt vmcnt({later(k)})\ns_branch {E}_ck{T}{k}")
    A(f"""
{E}_fb:
s_waitcnt lgkmcnt(0)
v_lshlrev_b32 v5, 4, v2
v_lshlrev_b32 v6, 4, v4
v_mul_u32_u24 v7, {SV}, v3
v_lshl_add_u32 v7, v4, 4, v7
v_add_u32 v15, {2*SV}, v7
v_mov_b32 v1, 0xff800000
s_add_u32 s18, s16, 40960
s_mov_b32 s26, s18
s_mov_b32 s27, 64
{E}_fb1:
s_add_u32 s30, s26, s17
buffer_load_dwordx4 {vr(KM,4)}, v5, s[44:47], s26 offen
buffer_load_dwordx2 {vr(KR,2)}, v6, s[44:47], s30 offen
s_waitcnt vmcnt(0)
v_mfma_f32_32x32x16_bf16 {vr(S[0],16)}, {vr(KM,4)}, {vr(QM,4)}, 0
v_mfma_f32_32x32x8_bf16 {vr(S[0],16)}, {vr(KR,2)}, {vr(QR,2)}, {vr(S[0],16)}
""")
    for k in range(8): A(f"v_max3_f32 v1, v1, v{S[0]+2*k}, v{S[0]+2*k+1}")
    A(f"""
s_add_u32 s26, s26, {TS}
s_sub_u32 s27, s27, 1
s_cmp_lg_u32 s27, 0
s_cbranch_scc1 {E}_fb1
v_mov_b32 v14, v1
v_permlane32_swap_b32 v1, v14
v_max_f32 v1, v1, v14
""")
    for i in range(16): A(f"v_sub_f32 v{CB+i}, 0, v1\nv_mov_b32 v{O+i}, 0")
    A(f"""
s_mov_b32 s26, s18
s_mul_i32 s28, s14, 320
s_add_u32 s28, s28, {QF + VOFF}
s_mov_b32 s27, 64
{E}_fb2:
s_add_u32 s30, s26, s17
buffer_load_dwordx4 {vr(KM,4)}, v5, s[44:47], s26 offen
buffer_load_dwordx2 {vr(KR,2)}, v6, s[44:47], s30 offen
s_mov_b64 exec, s[22:23]
buffer_load_dwordx4 {vr(V0,4)}, v7, s[44:47], s28 offen
buffer_load_dwordx4 {vr(V1,4)}, v15, s[44:47], s28 offen
s_mov_b64 exec, -1
s_waitcnt vmcnt(0)
""")
    M1(0); M2(0)
    Ex(0, *range(16)); Cv(0, *range(8))
    A(f"""
v_mfma_f32_32x32x16_bf16 {vr(O,16)}, {vr(V0,4)}, {vr(S[0],4)}, {vr(O,16)}
v_mfma_f32_32x32x16_bf16 {vr(O,16)}, {vr(V1,4)}, {vr(S[0]+8,4)}, {vr(O,16)}
s_add_u32 s26, s26, {TS}
s_add_u32 s28, s28, {TS}
s_sub_u32 s27, s27, 1
s_cmp_lg_u32 s27, 0
s_cbranch_scc1 {E}_fb2
s_nop 15
s_branch {E}_epi
""")
    DK, DR, DV, DW = 60, 61, 62, 63
    A(f"""
{E}_ffn:
s_setprio 3
s_sub_u32 s29, s29, 8
s_mul_i32 s20, s29, {TS}
s_add_u32 s20, s20, s16
s_add_u32 s20, s20, 40960
v_add_u32 v{DK}, s20, v5
s_add_u32 s20, s20, s17
v_lshrrev_b32 v6, 1, v2
v_and_b32 v7, 1, v2
v_lshlrev_b32 v7, 2, v7
v_lshl_add_u32 v6, v6, 4, v7
v_add_u32 v{DR}, s20, v6
s_lshl_b32 s17, s29, 10
s_lshl_b32 s18, s29, 8
s_mul_i32 s20, s14, 320
s_add_u32 s20, s20, {QF + VOFF}
s_lshl_b32 s21, s29, 6
s_lshl_b32 s22, s29, 4
s_add_u32 s22, s22, 256
""")
    def vaddr(dst, ci, extra=None):
        A(f"""
v_mul_u32_u24 v8, 3277, v{ci}
v_lshrrev_b32 v8, 16, v8
v_mul_u32_u24 v9, 20, v8
v_sub_u32 v9, v{ci}, v9
v_lshrrev_b32 v10, 2, v8
v_and_b32 v8, 3, v8
v_mul_u32_u24 v10, {TS}, v10
v_mul_u32_u24 v8, {SV}, v8
v_lshl_add_u32 v9, v9, 4, s20
v_add3_u32 v{dst}, v8, v9, v10
""")
    A("v_add_u32 v6, s21, v2"); vaddr(DV, 6)
    A("s_waitcnt lgkmcnt(0)\ns_mov_b32 s44, s12\ns_mov_b32 s45, s13")
    def dma(G, part):
        b = G * 10240
        if part == 0:
            if G == 0: A(f"s_cmp_eq_u32 s29, 0\ns_cbranch_scc1 {E}_d0")
            A(f"s_add_u32 m0, s17, {b}\nbuffer_load_dwordx4 v{DK}, s[44:47], s19 offen lds")
            if G == 0: A(f"{E}_d0:")
            A(f"s_add_u32 m0, s18, {b+4096}\nbuffer_load_dword v{DR}, s[44:47], s19 offen lds")
            A(f"s_add_u32 m0, s17, {b+5120}\nbuffer_load_dwordx4 v{DV}, s[44:47], s19 offen lds")
        else:
            A(f"s_add_u32 m0, s18, {b+9216}\nbuffer_load_dword v{DW}, s[44:47], s19 offen lds")
            if G < 15: A(f"s_add_u32 s19, s19, {4*TS}\ns_cmp_ge_u32 s19, {64*TS}\ns_cselect_b32 s21, {64*TS}, 0\ns_sub_u32 s19, s19, s21")
    dma(0, 0)
    A("v_lshrrev_b32 v6, 2, v2\nv_add_u32 v6, s22, v6"); vaddr(DW, 6)
    A(f"v_and_b32 v6, 3, v2\nv_lshl_add_u32 v{DW}, v6, 2, v{DW}")
    dma(0, 1)
    for G in range(1, G0): dma(G, 0); dma(G, 1)
    A("v_mov_b32 v1, 0\nv_lshlrev_b32 v7, 2, v2\nds_write_b32 v7, v1")
    WA, FX, FP, XA = 76, 79, 84, 85
    A(f"""
v_lshrrev_b32 v{FP}, {LF}, v2
v_and_b32 v16, {(1 << LF) - 1}, v2
v_lshlrev_b32 v{FP}, 7, v{FP}
v_lshl_add_u32 v{FP}, v16, 2, v{FP}
s_lshr_b32 s14, s40, 1
s_lshl_b32 s14, s14, 3
s_and_b32 s24, s41, 7
s_add_u32 s14, s14, s24
s_lshl_b32 s56, s14, {13 - LF}
s_add_u32 s56, s56, {FL2}
s_lshl_b32 s14, s14, 1
s_bfe_u32 s25, s41, 0x10003
s_xor_b32 s15, s25, 1
s_add_u32 s15, s15, s14
s_add_u32 s14, s14, s25
s_and_b32 s27, s40, 1
s_lshl_b32 s27, s27, 1
s_lshr_b32 s16, s41, 4
s_add_u32 s27, s27, s16
s_and_b32 s24, s41, 15
s_mul_i32 s24, s24, 27
s_lshr_b32 s24, s24, 4
s_mul_i32 s24, s24, {P['frot']}
s_add_u32 s20, s17, {HF}
s_mul_i32 s23, s29, 20480
s_mul_i32 s28, s27, 5120
s_add_u32 s23, s23, s28
s_add_u32 s23, s23, {W2F}
s_add_u32 s22, s20, {27*4096}
s_lshl_b32 s16, s24, 12
s_add_u32 s16, s16, s20
s_mul_i32 s26, s24, 81920
s_add_u32 s26, s26, s23
s_mul_i32 s30, s14, {108*1024}
s_mul_i32 s31, s15, {108*1024}
v_add_u32 v8, s30, v5
v_add_u32 v9, s31, v5
s_lshl_b32 s30, s25, 12
s_lshl_b32 s31, s25, 11
s_add_u32 s31, s31, 1024
v_add_u32 v10, s30, v5
v_add_u32 v11, s31, v5
v_add_u32 v12, 2048, v5
s_lshl_b32 s36, s14, 7
s_lshl_b32 s37, s15, 7
s_add_u32 s36, s36, {RS}
s_add_u32 s37, s37, {RS}
v_lshlrev_b32 v6, 2, v4
v_mov_b32 v7, s29
v_lshlrev_b32 v7, 2, v7
v_and_b32 v1, 7, v2
v_lshlrev_b32 v1, 2, v1
v_and_b32 v15, 12, v1
v_mul_u32_u24 v{XA}, 1280, v4
v_lshl_add_u32 v{XA}, v3, 3, v{XA}
s_mul_i32 s52, s27, 320
s_lshl_b32 s53, s29, 4
s_add_u32 s53, s53, s52
s_mul_i32 s54, s14, 40960
s_mul_i32 s55, s15, 40960
s_add_u32 s54, s54, s53
s_add_u32 s55, s55, s53
s_lshl_b32 s57, s25, 8
s_lshl_b32 s58, s25, 7
s_add_u32 s52, s52, s57
s_sub_u32 s59, 64, s58
s_add_u32 s58, s58, 64
s_add_u32 s30, s55, s57
s_add_u32 s31, s55, s58
s_add_u32 s32, s54, s57
s_add_u32 s33, s54, s58
s_add_u32 s34, s54, 128
s_sub_u32 s54, s29, 1
s_add_u32 s53, s59, 204800
s_mul_i32 s53, s53, s54
s_add_u32 s52, s52, s53
s_mul_i32 s53, s54, 40960
s_add_u32 s53, s53, {WO}
v_lshrrev_b32 v16, 2, v2
v_and_b32 v17, 3, v2
v_mul_u32_u24 v16, 1280, v16
v_lshl_add_u32 v{WA}, v17, 4, v16
s_mul_i32 s54, s29, 5120
s_add_u32 s54, s54, {PR}
v_add_u32 v{FX}, s54, v5
s_sub_u32 s60, s59, 184320
s_lshl_b32 s61, s59, 1
s_sub_u32 s61, 20480, s61
s_cmp_eq_u32 s29, 3
s_cselect_b32 s54, 9, 0
s_cselect_b32 s55, 10, 0
s_cselect_b32 s63, 11, 0
s_cselect_b32 s64, 12, 0
s_cselect_b32 s62, 13, 0
s_cselect_b32 s57, s61, s60
s_cmp_eq_u32 s29, 2
s_cselect_b32 s62, 9, s62
s_cselect_b32 s58, s61, s60
s_cmp_eq_u32 s29, 1
s_cselect_b32 s59, s61, s60
s_waitcnt vmcnt(0) lgkmcnt(0)
s_barrier
; MARK 0
""")
    C1 = P["c1"]
    def flag(v): A(f"v_mov_b32 v0, {v}\nds_write_b32 v7, v0")
    for G in range(G0, 16):
        dma(G, 0); dma(G, 1)
        if G0 == 1 and G == 2: A("s_waitcnt vmcnt(4)"); flag(F_G1)
        if G == 5 + C1: A(f"s_waitcnt vmcnt({4*C1})"); flag(F_G5); A("; MARK 4")
    A("buffer_load_dword v13, v6, s[44:47], s36 offen\nbuffer_load_dword v14, v6, s[44:47], s37 offen")
    ACC = 88
    class Q:
        def __init__(s): s.q = []
        def op(s, tag, txt): A(txt); s.q.append(tag)
        def need(s, *tags):
            idx = max([i for i, t in enumerate(s.q) if t in tags], default=-1)
            if idx >= 0:
                A(f"s_waitcnt vmcnt({len(s.q) - 1 - idx})"); s.q = s.q[idx + 1:]
    VQ = Q()
    addr = {0: (9, 16), 1: (10, 26), 2: (11, 26), 3: (12, 26), 4: (8, 16)}
    def fl(i, j):
        b = 16 + 20 * (i % 3)
        VQ.op((i, j), f"buffer_load_dwordx4 {vr(b+4*j,4)}, v{addr[j][0]}, s[44:47], s{addr[j][1]} offen")
        if j == 4: A("s_add_u32 s16, s16, 4096\ns_add_u32 s26, s26, 81920\ns_cmp_eq_u32 s16, s22\ns_cselect_b32 s16, s20, s16\ns_cselect_b32 s26, s23, s26")
    for i in range(3):
        for j in range(5): fl(i, j)
    A("s_waitcnt vmcnt(17)"); flag(F_ALL)
    A(f"; MARK 5\ns_setprio {P['prio_ffn']}")
    blk = [(0, 1), (0, 2), (4, 1), (4, 2), (4, 3)]
    after = {1: [0], 2: [1], 3: [2], 4: [3, 4]}
    for i in range(27):
        b = 16 + 20 * (i % 3)
        for t, (hj, wj) in enumerate(blk):
            VQ.need((i, hj), (i, wj))
            c = "0" if i == 0 else vr(ACC + 16 * t, 16)
            A(f"v_mfma_f32_32x32x16_bf16 {vr(ACC+16*t,16)}, {vr(b+4*wj,4)}, {vr(b+4*hj,4)}, {c}")
            if i + 3 < 27:
                for j in after.get(t, []): fl(i + 3, j)
        if i == 13: A("; MARK 1")
    RED = 2560
    A(f"; MARK 2\ns_setprio {P['prio_red']}")
    for q in range(4):
        A(f"s_sub_u32 s16, s29, {q+1}\ns_and_b32 s16, s16, 3\ns_mul_i32 s16, s16, 5120\ns_add_u32 s16, s16, {RED + q*15360}\nv_add_u32 v{8+q}, s16, v5")
    A(f"""
s_mul_i32 s17, s29, 15360
s_add_u32 s17, s17, {RED}
v_add_u32 v12, s17, v5
s_mov_b32 s48, s4
s_mov_b32 s49, s5
s_mov_b32 s50, 2621440
s_mov_b32 s51, 0x20000
s_mov_b32 s36, 0xffff0000
""")
    npw = [0]
    def pwait(reg, off, thr, sl=2):
        k = npw[0]; npw[0] += 1
        A(f"""
{E}_pw{k}:
ds_read_b32 v0, v{reg} offset:{off}
s_waitcnt lgkmcnt(0)
v_cmp_gt_u32 vcc, {thr}, v0
s_cbranch_vccz {E}_pwd{k}
s_sleep {sl}
s_branch {E}_pw{k}
{E}_pwd{k}:
""")
    pwait(1, 64, 2 * P["T1"], 4)
    A("; MARK 6")
    for q in range(4):
        A(f"s_cmp_eq_u32 s29, {q}\ns_cbranch_scc1 {E}_nx{q}")
        for t in range(5): A(f"ds_write_b128 v{8+q}, {vr(ACC+16*t+4*q,4)} offset:{t*1024}")
        A(f"{E}_nx{q}:")
    flag(F_RW)
    pwait(15, 0, F_RW, 1)
    A("; MARK 3")
    for t in range(5):
        for jj in range(3):
            A(f"ds_read_b128 {vr(16+12*t+4*jj,4)}, v12 offset:{jj * 5120 + t * 1024}")
    def perq(tag, body):
        for q in range(4):
            if q < 3: A(f"s_cmp_lg_u32 s29, {q}\ns_cbranch_scc1 {E}_{tag}{q+1}")
            body(q)
            if q < 3: A(f"s_branch {E}_{tag}d\n{E}_{tag}{q+1}:")
        A(f"{E}_{tag}d:")
    xr = lambda q, t: ACC + 16 * t + 4 * ((q + 1) & 3)
    perq("x", lambda q: [A(f"buffer_load_dwordx2 {vr(xr(q,t),2)}, v{XA}, s[48:51], s{30+t} offen") for t in range(5)])
    A("s_waitcnt lgkmcnt(0)"); flag(F_RR)
    A(f"""
; MARK 7
s_setprio 3
s_mov_b32 s48, s6
s_mov_b32 s49, s7
s_mov_b32 s50, 819200
""")
    def fin(q):
        for t in range(5):
            b = 16 + 12 * t; o = ACC + 16 * t + 4 * q; x = xr(q, t)
            for k in range(4): A(f"v_add_f32 v{b+k}, v{b+k}, v{o+k}")
            for k in range(2): A(f"v_lshlrev_b32 v{o+2*k}, 16, v{x+k}\nv_and_b32 v{o+2*k+1}, s36, v{x+k}")
            for k in range(4): A(f"v_add_f32 v{b+4+k}, v{b+4+k}, v{b+8+k}")
            for k in range(4): A(f"v_add_f32 v{b+k}, v{b+k}, v{b+4+k}")
            for k in range(4): A(f"v_fma_f32 v{b+k}, v{b+k}, v{14 if t < 2 else 13}, v{o+k}")
    def adds(n):
        A(f"s_setprio {P['prio_add']}\ns_waitcnt vmcnt({n})"); perq("fin", fin); A("s_setprio 3")
    A(f"s_cmp_eq_u32 s29, 0\ns_cbranch_scc1 {E}_nd")
    pwait(15, 0, F_RR, 1)
    for m in range(40):
        if m in (0, 9, 19, 29, 39): pwait(1, 64, {0: "s54", 9: "s55", 19: "s63", 29: "s64", 39: "s62"}[m], P['wsl'])
        A(f"s_add_u32 m0, s53, {m*1024}\nbuffer_load_dwordx4 v{WA}, s[48:51], s52 offen lds")
        if m % 10 < 9: A("s_add_u32 s52, s52, 20480")
        elif m < 39: A(f"s_add_u32 s52, s52, s{57 + m // 10}")
    A(f"; MARK 8\ns_waitcnt vmcnt(0)\n{E}_nd:"); flag(F_WO)
    A(f"s_cmp_eq_u32 s29, 0\ns_cbranch_scc1 {E}_pl")
    adds(0)
    A("; MARK 9")
    def fxw():
        for t in range(5): A(f"ds_write_b128 v{FX}, {vr(16+12*t,4)} offset:{t*1024}")
        flag(F_FX)
    pwait(1, 64, 16, P['rsl'])
    fxw()
    A(f"; MARK 10\ns_waitcnt lgkmcnt(0)\ns_endpgm\n{E}_pl:")
    PV = 80
    A(f"s_waitcnt vmcnt(0)\nv_mov_b32 v{PV}, 0\nv_mov_b32 v6, 0\ns_mov_b32 s57, {P['spin']}\ns_mov_b32 s58, 0\ns_mov_b32 s59, 0")
    if P["pgate"]: pwait(1, 64, P["pgate"], P['wsl'])
    A(f"""
; MARK 9
{E}_rp:
s_sub_u32 s59, s59, 1
s_cbranch_scc0 {E}_np
s_mov_b32 s59, {P['pper']}
s_waitcnt vmcnt({P['pd'] - 1})
buffer_load_dword v{PV}, v{FP}, s[44:47], s56 offen{P['psc']}
{E}_np:
ds_read_b32 v0, v1 offset:64
v_cmp_ne_u32 s[60:61], 0, v{PV}
s_sub_u32 s57, s57, 1
s_cselect_b64 s[60:61], -1, s[60:61]
s_cselect_b32 s57, 0, s57
v_mov_b32 v8, s60
v_mov_b32 v9, s61
ds_write_b64 v6, v[8:9] offset:{MSK}
; CMARK 12
s_cmp_lg_u32 s58, 0
s_cbranch_scc1 {E}_rr
s_waitcnt lgkmcnt(1)
v_cmp_gt_u32 vcc, 16, v0
s_cbranch_vccnz {E}_rs
""")
    fin(0); fxw()
    A(f"""
; MARK 10
s_mov_b32 s58, 1
{E}_rr:
s_cmp_eq_u64 s[60:61], -1
s_cbranch_scc1 {E}_go
{E}_rs:
s_sleep {P['rsl']}
s_branch {E}_rp
{E}_go:
; MARK 11
s_waitcnt vmcnt(0) lgkmcnt(0)
{E}_end:
s_endpgm
""")
    A.end(name, 168, 72)
```

```python
import sys, json
from asmlib import *
from k1 import gen_k1
from k2 import gen_k2
from k3 import gen_k3
import k2f, k1n, k2n, k2g
NAME = "parallel_sum__softmax_full_mha__dense_activation_relu__prompt"
PROF = 0x2000000
RT = [None]
def add_prof(lines):
    out = []; k = -1; name = None
    for ln in lines:
        t = ln.strip()
        if t.endswith("_kernel:"):
            k += 1; name = t[:-1]
            out += [ln, "    s_memrealtime s[88:89]", "    s_memtime s[90:91]", "    v_lshrrev_b32 v1, 6, v0", "    s_nop 1", "    v_readfirstlane_b32 s98, v1", "    s_waitcnt lgkmcnt(0)"] + [f"    s_mov_b32 s{r}, s90" for r in list(range(70, 80)) + [80, 82, 84, 86]]
        elif t == "s_endpgm":
            out.append(f"    s_branch L_prof_{name}")
        elif t.startswith("; HMARK"):
            i = int(t.split()[2]); out += ["    s_memrealtime s[96:97]", "    s_waitcnt lgkmcnt(0)", f"    s_mov_b32 s{70+i-4}, s96"]
        elif t.startswith("; CMARK"):
            i = int(t.split()[2]); out += ["    s_cmp_eq_u64 s[60:61], -1", "    s_cbranch_scc0 L_cm", f"    s_cmp_lg_u32 s{70+i-4}, s90", "    s_cbranch_scc1 L_cm", "    s_memrealtime s[96:97]", "    s_waitcnt lgkmcnt(0)", f"    s_mov_b32 s{70+i-4}, s96", "L_cm:"]
        elif t.startswith("; VAL"):
            i = int(t.split()[2]); out.append(f"    s_mov_b32 s{70+i-4}, {t.split()[3]}")
        elif t.startswith("; MARK"):
            i = int(t.split()[2])
            if RT[0] is not None and k == RT[0]:
                out += ["    s_memrealtime s[96:97]", "    s_waitcnt lgkmcnt(0)", f"    s_mov_b32 s{80+2*i if i < 4 else 70+i-4}, s96"]
                continue
            if i < 4: out += [f"    s_memtime s[{80+2*i}:{81+2*i}]", "    s_waitcnt lgkmcnt(0)"]
            else: out += ["    s_memtime s[96:97]", "    s_waitcnt lgkmcnt(0)", f"    s_mov_b32 s{70+i-4}, s96"]
        elif t.startswith(".section .rodata"):
            out += [f"L_prof_{name}:"] + ["    " + x for x in f"""s_mov_b64 exec, -1
s_memrealtime s[92:93]
s_memtime s[94:95]
s_load_dwordx2 s[96:97], s[0:1], 64
s_lshl_b32 s99, s2, 4
s_add_u32 s99, s99, s98
s_add_u32 s99, s99, {k*8192}
s_lshl_b32 s99, s99, 7
s_add_u32 s99, s99, {PROF}
s_waitcnt lgkmcnt(0)
v_mov_b32 v1, s99
v_mov_b32 v4, s88
v_mov_b32 v5, s92
v_mov_b32 v6, s90
v_mov_b32 v7, s94
v_mov_b32 v8, s80
v_mov_b32 v9, s82
v_mov_b32 v10, s84
v_mov_b32 v11, s86
v_cmp_eq_u32 vcc, 0, v2
s_and_b64 exec, exec, vcc
s_cmp_ge_u32 s2, 256
s_cbranch_scc1 L_profe_{name}
global_store_dwordx4 v1, v[4:7], s[96:97]
global_store_dwordx4 v1, v[8:11], s[96:97] offset:16
v_mov_b32 v12, s70
v_mov_b32 v13, s71
v_mov_b32 v14, s72
v_mov_b32 v15, s73
v_mov_b32 v16, s74
v_mov_b32 v17, s75
v_mov_b32 v18, s76
v_mov_b32 v19, s77
v_mov_b32 v20, s78
v_mov_b32 v21, s79
global_store_dwordx4 v1, v[12:15], s[96:97] offset:32
global_store_dwordx4 v1, v[16:19], s[96:97] offset:48
global_store_dwordx2 v1, v[20:21], s[96:97] offset:64
s_and_b32 s99, s2, 0x1f
s_lshr_b32 s100, s2, 5
s_cmp_lg_u32 s99, s100
s_cbranch_scc1 L_profe_{name}
s_cmp_lg_u32 s98, {[7,7,3][k]}
s_cbranch_scc1 L_profe_{name}
s_load_dwordx2 s[96:97], s[0:1], 56
v_mov_b32 v1, 0
v_not_b32 v4, v4
v_sub_u32 v7, v7, v6
v_sub_u32 v8, v8, v6
v_sub_u32 v9, v9, v6
v_sub_u32 v10, v10, v6
v_sub_u32 v11, v11, v6
s_waitcnt lgkmcnt(0)
global_atomic_umax v1, v4, s[96:97]
global_atomic_umax v1, v5, s[96:97] offset:4
global_atomic_umax v1, v7, s[96:97] offset:8
global_atomic_umax v1, v8, s[96:97] offset:12
global_atomic_umax v1, v9, s[96:97] offset:16
global_atomic_umax v1, v10, s[96:97] offset:20
global_atomic_umax v1, v11, s[96:97] offset:24
s_cmp_lg_u32 s2, {0 if k == 2 else 999}
s_cbranch_scc1 L_profe_{name}
global_load_dwordx4 v[4:7], v1, s[96:97] offset:-1024
global_load_dwordx4 v[8:11], v1, s[96:97] offset:-512
global_load_dword v7, v1, s[96:97] offset:-1008
s_waitcnt vmcnt(0)
global_store_dwordx4 v1, v[4:7], s[96:97] offset:32
global_store_dwordx4 v1, v[8:11], s[96:97] offset:48
L_profe_{name}:
s_endpgm""".split("\n")] + [ln]
        elif t.startswith(".amdhsa_next_free_sgpr"):
            out.append(".amdhsa_next_free_sgpr 102")
        else: out.append(ln)
    return out
def add_tl(lines):
    out = []; k = -1; name = None
    for ln in lines:
        t = ln.strip()
        if t.endswith("_kernel:"):
            k += 1; name = t[:-1]
            out += [ln, "    s_memrealtime s[88:89]", "    s_memtime s[90:91]", "    v_lshrrev_b32 v1, 6, v0", "    s_nop 1", "    v_readfirstlane_b32 s98, v1"]
        elif t == "s_endpgm":
            out.append(f"    s_branch L_prof_{name}")
        elif t.startswith(".section .rodata"):
            o2 = 512 if k == 0 else -512
            out += [f"L_prof_{name}:"] + ["    " + x for x in f"""s_mov_b64 exec, -1
s_memrealtime s[92:93]
s_memtime s[94:95]
s_load_dwordx2 s[96:97], s[0:1], 56
s_cmp_ge_u32 s2, 256
s_cbranch_scc1 L_profe_{name}
s_cmp_lg_u32 s98, 7
s_cbranch_scc1 L_profe_{name}
s_lshr_b32 s99, s2, 3
s_and_b32 s99, s99, 15
s_cmp_lg_u32 s99, 5
s_cbranch_scc1 L_profe_{name}
s_waitcnt lgkmcnt(0)
v_mov_b32 v1, 0
v_mov_b32 v4, s88
v_mov_b32 v5, s92
v_mov_b32 v6, s90
v_mov_b32 v7, s94
v_not_b32 v8, v4
v_sub_u32 v7, v7, v6
v_cmp_eq_u32 vcc, 0, v2
s_and_b64 exec, exec, vcc
global_atomic_umax v1, v8, s[96:97] offset:{k*16}
global_atomic_umax v1, v5, s[96:97] offset:{k*16+4}
global_atomic_umax v1, v7, s[96:97] offset:{k*16+8}
global_atomic_umax v1, v8, s[96:97] offset:{o2+k*16}
global_atomic_umax v1, v5, s[96:97] offset:{o2+k*16+4}
global_atomic_umax v1, v7, s[96:97] offset:{o2+k*16+8}
L_profe_{name}:
s_endpgm""".split("\n")] + [ln]
        elif t.startswith(".amdhsa_next_free_sgpr"):
            out.append(".amdhsa_next_free_sgpr 102")
        else: out.append(ln)
    return out
def build2(path, P1=None, P2=None, prof=False):
    A = Asm()
    hdr = """; LN + MHA + ReLU-FFN parallel block, two launches (generated by a hand-written python emitter)
; @launch kernel=k1_kernel grid=(256,1,1) block=(768,1,1) lds=147456
; @launch kernel=k2_kernel grid=(256,1,1) block=(768,1,1) lds=163840
"""
    gen_k1(A, P=P1); k2f.gen_k2(A, P=P2)
    if prof: A.lines = add_prof(A.lines)
    open(path, "w").write(hdr + HEADER + A.text())
def build3(path, P1=None, P2=None, prof=False):
    A = Asm()
    hdr = """; LN + MHA + ReLU-FFN parallel block, two launches (generated by a hand-written python emitter)
; @launch kernel=k1_kernel grid=(256,1,1) block=(768,1,1) lds=163840
; @launch kernel=k2_kernel grid=(256,1,1) block=(768,1,1) lds=163840
"""
    k1n.gen_k1(A, P=P1); k2n.gen_k2(A, P=P2)
    if prof == "lite": A.lines = add_prof([l for l in A.lines if not l.strip().startswith(("; MARK", "; HMARK", "; CMARK", "; VAL"))])
    elif prof == "tl": A.lines = add_tl(A.lines)
    elif prof: A.lines = add_prof(A.lines)
    open(path, "w").write(hdr + HEADER + A.text())
def build4(path, P1=None, P2=None, prof=False):
    A = Asm()
    hdr = """; LN + MHA + ReLU-FFN parallel block, two launches (generated by a hand-written python emitter)
; @launch kernel=k1_kernel grid=(256,1,1) block=(768,1,1) lds=163840
; @launch kernel=k2_kernel grid=(256,1,1) block=(768,1,1) lds=163840
"""
    k1n.gen_k1(A, P=P1); k2g.gen_k2(A, P=P2)
    if prof == "lite": A.lines = add_prof([l for l in A.lines if not l.strip().startswith(("; MARK", "; HMARK", "; CMARK", "; VAL"))])
    elif prof == "tl": A.lines = add_tl(A.lines)
    elif prof: A.lines = add_prof(A.lines)
    open(path, "w").write(hdr + HEADER + A.text())
def build(path, P1=None, P2=None, P3=None, extra="", prof=False):
    A = Asm()
    hdr = """; LN + MHA + ReLU-FFN parallel block, three launches (generated by a hand-written python emitter)
; @launch kernel=k1_kernel grid=(256,1,1) block=(768,1,1) lds=147456
; @launch kernel=k2_kernel grid=(256,1,1) block=(768,1,1) lds=163840
; @launch kernel=k3_kernel grid=(256,1,1) block=(256,1,1) lds=102400
""" + extra
    gen_k1(A, P=P1); gen_k2(A, P=P2); gen_k3(A, P=P3)
    if prof: A.lines = add_prof(A.lines)
    open(path, "w").write(hdr + HEADER + A.text())
if __name__ == "__main__":
    build3(f"cdna_kernels/{NAME}.s")
    build("cur.s")
    build("prof.s", prof=True)
    build3("cur3.s")
    build3("prof3.s", prof=True)
    build3("tl3.s", prof="tl")
    build4("cur4.s")
    build4("prof4.s", prof=True)
    build2("cur2.s")
    build2("prof2.s", prof=True)
```

```python
from gen import *
V = dict(
 a=dict(pper=12, pd=1, lf=5),
 b=dict(pper=12, pd=1, lf=2),
 c=dict(pper=6, pd=2, lf=2),
 d=dict(pper=12, pd=1, lf=2, hint=(7,2)),
 e=dict(pper=6, pd=2, lf=2, hint=(7,2)),
 f=dict(pper=6, pd=2, lf=0, hint=(7,3)),
 g=dict(pper=12, pd=1, lf=5, hint=(7,0), pgate=14),
)
for k, v in V.items(): build4(f"v_{k}.s", P2=v, prof="lite")
build3("v_3.s", prof="lite")
```

```python
from asmlib import *
from layout import *

def gen_k1(A, name="k1_kernel", P=None):
    P = dict(dict(rot=(1,4), st=" sc1", lprio=3, lmod="", xs="valu", cs="mfma", sprio=None, bpos=0, il=1, pf=0, map=[0,6,8,11, 1,2,12,13, 3,7,9,14, 4,5,10,15], noh=0, now2=0, pf2=0, pfs=0, dum=None, fillst=None, pf3=0, pf3s=0, pf3o=2), **(P or {}))
    XS = 49152; RB = 49152 + 4096; CS = 49152 + 8192
    ST = P["st"]; STH = P.get("sth", ST); STW = P.get("stw", ST); STV = P.get("stv", ST)
    A.begin(name)
    E = f"L_{name}"
    MAP0 = "s_and_b32 s14, s40, 1\ns_lshl_b32 s14, s14, 3\ns_and_b32 s15, s41, 7\ns_add_u32 s14, s14, s15"
    if P.get("rows16"):
        MAP0 = "s_and_b32 s14, s41, 15"
        MAP = "s_lshr_b32 s15, s41, 4\ns_lshl_b32 s15, s15, 3\ns_add_u32 s15, s15, s40"
    elif P["map"] == 0: MAP = "s_lshr_b32 s15, s40, 1\ns_lshl_b32 s15, s15, 2\ns_lshr_b32 s16, s41, 3\ns_add_u32 s15, s15, s16"
    else:
        tab = P["map"]
        lo = sum(tab[i] << (4 * i) for i in range(8)); hi = sum(tab[8 + i] << (4 * i) for i in range(8))
        MAP = f"""s_lshr_b32 s15, s40, 1
s_lshl_b32 s15, s15, 2
s_lshr_b32 s16, s41, 3
s_add_u32 s15, s15, s16
s_lshl_b32 s15, s15, 2
s_mov_b32 s16, {hex(lo)}
s_mov_b32 s17, {hex(hi)}
s_lshr_b64 s[16:17], s[16:17], s15
s_and_b32 s15, s16, 15"""
    A(f"""
s_cmp_ge_u32 s2, 256
s_cbranch_scc1 {E}_end
s_load_dwordx4 s[4:7], s[0:1], 0
s_load_dwordx4 s[8:11], s[0:1], 32
s_load_dwordx2 s[12:13], s[0:1], 64
v_lshrrev_b32 v1, 6, v0
v_and_b32 v2, 63, v0
s_and_b32 s40, s2, 7
s_lshr_b32 s41, s2, 3
v_readfirstlane_b32 s29, v1
{MAP0}
{MAP}
s_and_b32 s16, s15, 7
s_lshl_b32 s17, s16, 2
s_mul_i32 s18, s16, 3
s_cmp_lt_u32 s15, 8
s_cselect_b32 s19, 6, 3
s_add_u32 s18, s18, s19
s_min_u32 s17, s17, s18
s_cmp_lt_u32 s16, s19
s_cselect_b32 s18, 4, 3
s_mov_b32 s46, {WS_BYTES}
s_mov_b32 s47, 0x20000
s_cmp_lt_u32 s29, 8
s_cbranch_scc1 {E}_comp
""")
    if P["rot"] == 1:
        ROT = """s_and_b32 s35, s41, 7
s_lshr_b32 s36, s41, 3
s_mul_i32 s36, s36, 3
s_add_u32 s35, s35, s36
s_cmp_ge_u32 s35, 10
s_cselect_b32 s36, 10, 0
s_sub_u32 s35, s35, s36
"""
    elif P["rot"] == 0: ROT = "s_mov_b32 s35, 0"
    else:
        ra, rb = P["rot"]
        ROT = f"""s_lshr_b32 s35, s40, 1
s_mul_i32 s35, s35, {ra}
s_and_b32 s36, s40, 1
s_mul_i32 s36, s36, {rb}
s_add_u32 s35, s35, s36
s_cmp_ge_u32 s35, 10
s_cselect_b32 s36, 10, 0
s_sub_u32 s35, s35, s36"""
    A(f"""
s_setprio {P['lprio']}
s_sub_u32 s29, s29, 8
s_mov_b32 s22, 2621440
s_mov_b32 s23, 0x20000
s_mov_b32 s27, 0x20000
s_cmp_lt_u32 s15, 8
s_mov_b32 s26, 2211840
s_cselect_b32 s26, 2457600, s26
s_mov_b32 s28, 3456
s_cselect_b32 s28, 3840, s28
v_lshrrev_b32 v3, 3, v2
s_lshl_b32 s30, s29, 5
s_lshl_b32 s31, s14, 7
s_add_u32 s30, s30, s31
v_add_u32 v3, s30, v3
v_lshrrev_b32 v4, 4, v2
v_and_b32 v5, 7, v2
v_xor_b32 v6, v5, v4
v_xor_b32 v7, 4, v6
s_movk_i32 s32, 1280
v_mul_lo_u32 v3, v3, s32
v_lshl_add_u32 v10, v6, 4, v3
v_lshl_add_u32 v11, v7, 4, v3
v_add_u32 v11, 10240, v11
v_lshrrev_b32 v3, 5, v2
v_and_b32 v4, 31, v2
v_lshlrev_b32 v5, 2, v3
v_xor_b32 v5, v4, v5
v_xor_b32 v6, 8, v5
s_lshl_b32 s30, s29, 4
v_add_u32 v3, s30, v3
v_mul_lo_u32 v3, v3, s28
s_lshl_b32 s31, s17, 7
v_add_u32 v3, s31, v3
v_lshl_add_u32 v12, v5, 4, v3
v_lshl_add_u32 v13, v6, 4, v3
s_lshl_b32 s33, s28, 1
v_add_u32 v13, s33, v13
s_lshl_b32 s33, s28, 2
v_add_u32 v14, s33, v12
v_add_u32 v15, s33, v13
s_lshl_b32 s33, s18, 3
v_mov_b32 v8, 0x7fffffff
v_cmp_gt_u32 vcc, s33, v5
v_cmp_gt_u32 s[42:43], s33, v6
s_lshl_b32 s34, s28, 6
s_lshl_b32 s39, s28, 3
{ROT}
v_cndmask_b32 v12, v8, v12, vcc
v_cndmask_b32 v14, v8, v14, vcc
v_cndmask_b32 v13, v8, v13, s[42:43]
v_cndmask_b32 v15, v8, v15, s[42:43]
s_mul_i32 s36, s35, s34
s_lshl_b32 s35, s35, 7
s_lshl_b32 s37, s29, 12
s_lshl_b32 s38, s29, 13
s_add_u32 s38, s38, 16384
s_cmp_lt_u32 s15, 8
s_waitcnt lgkmcnt(0)
s_mov_b32 s20, s4
s_mov_b32 s21, s5
s_cselect_b32 s24, s6, s8
s_cselect_b32 s25, s7, s9
""")
    LM = P["lmod"]
    def issue(slot, fill=()):
        base = slot * 49152
        fill = list(fill); per = (len(fill) + 10) // 11
        def fl(k):
            if fill and k == 0: A("s_waitcnt lgkmcnt(0)")
            if k < 11:
                for o in fill[k * per:(k + 1) * per]: A(o)
        A("s_add_u32 s30, s35, 20480\ns_add_u32 s31, s36, s39")
        for j in range(4):
            A(f"s_add_u32 m0, s37, {base + j*1024}\nbuffer_load_dwordx4 v{10+(j&1)}, s[20:23], s{35 if j < 2 else 30} offen{LM} lds")
            if j: fl(j - 1)
        for j in range(8):
            A(f"s_add_u32 m0, s38, {base + j*1024}\nbuffer_load_dwordx4 v{12+(j&3)}, s[24:27], s{36 if j < 4 else 31} offen{LM} lds")
            fl(3 + j)
        A("s_add_u32 s35, s35, 128\ns_add_u32 s36, s36, s34\ns_cmp_eq_u32 s35, 1280\ns_cselect_b32 s35, 0, s35\ns_cselect_b32 s36, 0, s36")
    CSL = P["cs"] in ("dot", "valu")
    A("; MARK 12")
    issue(0); A("; MARK 0"); issue(1)
    PF = P["pf"]
    if PF:
        A(f"""
s_lshl_b32 s30, s14, 7
s_lshr_b32 s31, s41, 3
s_lshl_b32 s31, s31, 5
s_add_u32 s30, s30, s31
v_lshrrev_b32 v3, 1, v2
v_add_u32 v3, s30, v3
v_mul_lo_u32 v3, v3, s32
v_and_b32 v4, 1, v2
v_lshl_add_u32 v3, v4, 6, v3
s_and_b32 s30, s41, 7
s_lshl_b32 s30, s30, 3
v_lshrrev_b32 v4, 3, v2
v_add_u32 v4, s30, v4
v_mul_lo_u32 v4, v4, s28
v_and_b32 v5, 7, v2
v_lshl_add_u32 v4, v5, 6, v4
s_lshl_b32 s30, s17, 7
v_add_u32 v4, s30, v4
s_lshl_b32 s30, s18, 1
v_cmp_gt_u32 vcc, s30, v5
s_cmp_eq_u32 s29, 0
s_cselect_b32 s64, s20, s24
s_cselect_b32 s65, s21, s25
s_cselect_b32 s66, s22, s26
s_cselect_b32 s68, 128, s34
s_cselect_b64 s[30:31], -1, 0
s_mov_b32 s67, 0x20000
s_cmp_lt_u32 s29, 2
s_cselect_b32 s66, s66, 0
s_lshl_b32 s69, s68, 1
v_cndmask_b32 v4, v8, v4, vcc
v_cndmask_b32 v99, v4, v3, s[30:31]
""")
    def pref(st):
        if PF and st < 10:
            A("buffer_load_dword v120, v99, s[64:67], s69 offen\ns_add_u32 s69, s69, s68")
            return 1
        return 0
    npf = {}
    for st in range(2, PF): pref(st)
    A(f"""
s_lshl_b32 s30, s29, 12
v_lshl_add_u32 v96, v2, 4, s30
v_add_u32 v97, 98304, v96
s_mov_b32 s56, 0xffff0000
s_mov_b32 s55, 0x3f803f80
""")
    for i in list(range(32, 40)) + list(range(76, 80)): A(f"v_mov_b32 v{i}, 0")
    if CSL:
        A("""
v_lshrrev_b32 v3, 5, v2
v_bfe_u32 v5, v2, 2, 2
v_lshl_add_u32 v6, v3, 3, v5
v_lshlrev_b32 v6, 9, v6
v_bfe_u32 v7, v2, 1, 1
v_lshl_add_u32 v6, v7, 3, v6
v_add_u32 v6, 16384, v6
v_bfe_u32 v7, v2, 4, 1
v_and_b32 v8, 1, v2
v_lshl_add_u32 v7, v7, 1, v8
s_lshl_b32 s31, s29, 3
v_add_u32 v7, s31, v7
v_lshlrev_b32 v5, 2, v5
v_xor_b32 v7, v7, v5
v_lshl_add_u32 v6, v7, 4, v6
v_xor_b32 v7, 64, v6
""")
        for pos in range(4):
            for t in range(2): A(f"v_add_u32 v{80+pos*2+t}, {pos*8192}, v{6+t}\nv_add_u32 v{88+pos*2+t}, 98304, v{80+pos*2+t}")
    def sreads(st):
        slot = st % 3; off = 49152 if slot == 1 else 0
        for j in range(4): A(f"ds_read_b128 {vr(16+4*j,4)}, v{97 if slot == 2 else 96} offset:{off + j*1024}")
        if CSL:
            for pos in range(4):
                for t in range(2):
                    for q in range(2):
                        A(f"ds_read_b64_tr_b16 {vr(44+pos*8+t*4+q*2,2)}, v{(88 if slot == 2 else 80)+pos*2+t} offset:{off + q*2048}")
    def sops():
        ops = []
        for i in range(4 if P["xs"] != "none" else 0):
            for jp in range(2):
                if P["xs"] == "dot":
                    for j in (2*jp, 2*jp+1):
                        x = 16 + 4*j + i
                        ops += [f"v_dot2_f32_bf16 v{32+2*j}, v{x}, s55, v{32+2*j}", f"v_dot2_f32_bf16 v{33+2*j}, v{x}, v{x}, v{33+2*j}"]
                else:
                    for e, j in enumerate((2*jp, 2*jp+1)):
                        x = 16 + 4*j + i
                        ops += [f"v_lshlrev_b32 v{40+2*e}, 16, v{x}", f"v_and_b32 v{41+2*e}, s56, v{x}"]
                    for q in range(2):
                        for e, j in enumerate((2*jp, 2*jp+1)):
                            u = 40 + 2*e + q
                            ops += [f"v_add_f32 v{32+2*j}, v{32+2*j}, v{u}", f"v_fmac_f32 v{33+2*j}, v{u}, v{u}"]
        if CSL:
            for pos in range(4):
                for i in range(4):
                    if P["cs"] == "dot":
                        for t in range(2): ops.append(f"v_dot2_f32_bf16 v{76+2*t+(i&1)}, v{44+pos*8+t*4+i}, s55, v{76+2*t+(i&1)}")
                    else:
                        for t in range(2):
                            x = 44 + pos*8 + t*4 + i
                            ops += [f"v_lshlrev_b32 v{40+2*t}, 16, v{x}", f"v_and_b32 v{41+2*t}, s56, v{x}"]
                        for k in range(4): ops.append(f"v_add_f32 v{76+k}, v{76+k}, v{40+k}")
        return ops
    def stat_phase():
        if P["sprio"] is not None: A(f"s_setprio {P['sprio']}")
        A("s_waitcnt lgkmcnt(0)")
        for o in sops(): A(o)
        if P["sprio"] is not None: A(f"s_setprio {P['lprio']}")
    A(f"s_waitcnt vmcnt({12 + max(PF - 2, 0)})\n; MARK 1\ns_barrier")
    prev = max(PF - 2, 0)
    for s_ in range(8):
        sreads(s_)
        issue((s_ + 2) % 3, sops() if P["il"] else ())
        A(f"; MARK {4+s_}")
        if not P["il"]: stat_phase()
        cur = pref(s_ + PF)
        A(f"s_waitcnt vmcnt({12 + prev + cur})\ns_barrier")
        prev = cur
    sreads(8)
    A(f"""
; MARK 2
s_mov_b32 s44, s12
s_mov_b32 s45, s13
s_mov_b32 s48, s10
s_mov_b32 s49, s11
s_mov_b32 s50, 2211840
s_mov_b32 s51, 0x20000
s_lshl_b32 s57, s29, 8
s_add_u32 s58, s57, s2
s_min_u32 s57, s58, 539
s_mul_i32 s59, s57, 13108
s_lshr_b32 s59, s59, 16
s_mul_i32 s60, s59, 5
s_sub_u32 s60, s57, s60
s_mul_i32 s61, s59, 20480
s_lshl_b32 s62, s60, 8
s_add_u32 s62, s62, s61
s_add_u32 s63, s62, 5120
v_lshrrev_b32 v3, 5, v2
v_and_b32 v4, 31, v2
v_mul_u32_u24 v5, 10240, v3
v_lshl_add_u32 v98, v4, 3, v5
s_cmp_ge_u32 s58, 540
s_cselect_b32 s50, 0, s50
""")
    W2R = 100
    for j in range(8):
        A(f"buffer_load_dwordx2 {vr(W2R+2*j,2)}, v98, s[48:51], s{62 + (j >> 2)} offen offset:{(j & 3) * 1280}")
    stat_phase()
    A("s_waitcnt vmcnt(8)\ns_barrier")
    sreads(9)
    A(f"""
v_and_b32 v5, 3, v2
v_lshrrev_b32 v6, 3, v2
v_lshl_add_u32 v6, v5, 3, v6
s_lshl_b32 s30, s29, 5
v_add_u32 v6, s30, v6
v_lshlrev_b32 v6, 2, v6
s_lshl_b32 s30, s29, 9
v_lshl_add_u32 v7, v2, 2, s30
v_cmp_eq_u32 s[30:31], 1, v5
v_cmp_eq_u32 s[32:33], 2, v5
v_cmp_eq_u32 s[34:35], 3, v5
s_mov_b32 s36, 0x3acccccd
s_mov_b32 s37, 0x3727c5ac
s_waitcnt lgkmcnt(0)
""")
    for o in sops(): A(o)
    if CSL:
        A(f"v_add_f32 v76, v76, v77\nv_add_f32 v78, v78, v79\nds_write_b32 v7, v76 offset:{CS}\nds_write_b32 v7, v78 offset:{CS+256}")
    for m in ("quad_perm:[1,0,3,2]", "quad_perm:[2,3,0,1]", "row_half_mirror"):
        for i in range(8): A(f"v_add_f32_dpp v{32+i}, v{32+i}, v{32+i} {m} row_mask:0xf bank_mask:0xf")
    for j in range(1, 4):
        A(f"v_cndmask_b32 v32, v32, v{32+2*j}, s[{28+2*j}:{29+2*j}]\nv_cndmask_b32 v33, v33, v{33+2*j}, s[{28+2*j}:{29+2*j}]")
    A(f"""
v_mul_f32 v32, s36, v32
v_mul_f32 v34, v32, v32
v_fma_f32 v33, v33, s36, -v34
v_max_f32 v33, 0, v33
v_cvt_pk_bf16_f32 v33, 0, v33
v_add_f32 v33, s37, v33
v_cvt_pk_bf16_f32 v33, 0, v33
v_sqrt_f32 v33, v33
ds_write_b32 v6, v32 offset:{XS}
s_lshl_b32 s30, s14, 9
s_add_u32 s30, s30, {RS}
v_cvt_pk_bf16_f32 v33, 0, v33
v_rcp_f32 v33, v33
s_cmp_eq_u32 s15, 8
s_cselect_b32 s46, s46, 0
s_nop 0
ds_write_b32 v6, v33 offset:{RB}
s_waitcnt lgkmcnt(0)
s_barrier
; MARK 3
buffer_store_dword v33, v6, s[44:47], s30 offen{ST}
s_cmp_lt_u32 s58, 256
s_cselect_b32 s46, {WS_BYTES}, 0
s_lshl_b32 s30, s58, 10
s_add_u32 s30, s30, {FL2}
v_lshlrev_b32 v5, 4, v2
v_mov_b32 v36, 0
v_mov_b32 v37, 0
v_mov_b32 v38, 0
v_mov_b32 v39, 0
buffer_store_dwordx4 v[36:39], v5, s[44:47], s30 offen
s_cmp_ge_u32 s58, 540
s_cbranch_scc1 {E}_end
s_mov_b32 s46, {WS_BYTES}
s_mov_b32 s30, 0x05040100
s_mov_b32 s31, 0x07060302
v_lshrrev_b32 v5, 3, v4
v_and_b32 v6, 7, v2
v_lshlrev_b32 v5, 10, v5
v_lshl_add_u32 v5, v6, 6, v5
v_lshl_add_u32 v5, v3, 9, v5
s_lshl_b32 s34, s29, 12
s_add_u32 s34, s34, 147456
v_add_u32 v5, s34, v5
v_lshlrev_b32 v6, 4, v2
v_add_u32 v7, s34, v6
s_lshl_b32 s33, s60, 12
s_add_u32 s33, s33, s61
s_add_u32 s33, s33, {W2F}
s_waitcnt vmcnt(2)
""")
    for c in range(4):
        for k in range(4): A(f"v_perm_b32 v{40+4*c+k}, v{W2R+2+4*k+(c>>1)}, v{W2R+4*k+(c>>1)}, s{30+(c&1)}")
    for c in range(4): A(f"ds_write_b128 v5, {vr(40+4*c,4)} offset:{16*c}")
    for c in range(4): A(f"ds_read_b128 {vr(56+4*c,4)}, v7 offset:{1024*c}")
    for c in range(4 * (1 - P["now2"])): A(f"s_waitcnt lgkmcnt({3-c})\nbuffer_store_dwordx4 {vr(56+4*c,4)}, v6, s[44:47], s33 offen offset:{1024*c}{STW}")
    A("s_endpgm")
    A(f"""
{E}_comp:
""")
    if P["pf3"]:
        A(f"""
{ROT}
s_add_u32 s35, s35, s29
s_add_u32 s35, s35, {P['pf3o']}
s_cmp_ge_u32 s35, 10
s_cselect_b32 s36, 10, 0
s_sub_u32 s35, s35, s36
s_cmp_ge_u32 s35, 10
s_cselect_b32 s36, 10, 0
s_sub_u32 s35, s35, s36
s_mov_b32 s22, 2621440
s_mov_b32 s23, 0x20000
s_mov_b32 s27, 0x20000
s_cmp_lt_u32 s15, 8
s_mov_b32 s26, 2211840
s_cselect_b32 s26, 2457600, s26
s_mov_b32 s28, 3456
s_cselect_b32 s28, 3840, s28
s_movk_i32 s32, 1280
s_lshl_b32 s30, s14, 7
s_lshr_b32 s31, s41, 3
s_lshl_b32 s31, s31, 5
s_add_u32 s30, s30, s31
v_lshrrev_b32 v3, 3, v2
v_add_u32 v3, s30, v3
v_mul_lo_u32 v3, v3, s32
v_and_b32 v4, 7, v2
v_lshl_add_u32 v3, v4, 4, v3
s_lshl_b32 s31, s29, 2
s_add_u32 s30, s30, s31
s_mul_i32 s38, s30, 1280
v_lshlrev_b32 v6, 4, v2
s_and_b32 s30, s41, 7
s_lshl_b32 s30, s30, 3
v_lshrrev_b32 v4, 5, v2
v_add_u32 v4, s30, v4
v_mul_lo_u32 v4, v4, s28
v_and_b32 v5, 31, v2
v_lshl_add_u32 v4, v5, 4, v4
s_lshl_b32 s30, s17, 7
v_add_u32 v4, s30, v4
s_lshl_b32 s30, s18, 3
v_cmp_gt_u32 vcc, s30, v5
v_mov_b32 v8, 0x7fffffff
s_lshl_b32 s34, s28, 6
s_mul_i32 s36, s35, s34
s_lshl_b32 s37, s35, 7
s_lshl_b32 s28, s28, 1
v_cndmask_b32 v4, v8, v4, vcc
s_cmp_lt_u32 s15, 8
s_waitcnt lgkmcnt(0)
s_mov_b32 s20, s4
s_mov_b32 s21, s5
s_cselect_b32 s24, s6, s8
s_cselect_b32 s25, s7, s9
""")
        if P["pf3s"]: A(f"s_sleep {P['pf3s']}")
        for j in range(4):
            if P["pf3"] & 1: A(f"buffer_load_dwordx4 v[164:167], v3, s[20:23], s37 offen\ns_add_u32 s37, s37, 10240")
            if P["pf3"] & 2: A(f"buffer_load_dwordx4 v[164:167], v4, s[24:27], s36 offen\ns_add_u32 s36, s36, s28")
        if P["pf3"] & 4:
            for j in range(5): A(f"buffer_load_dwordx4 v[164:167], v6, s[20:23], s38 offen\ns_add_u32 s38, s38, 1024")
    if P["pf2"]:
        A(f"""
{ROT}
s_add_u32 s35, s35, s29
s_cmp_ge_u32 s35, 10
s_cselect_b32 s36, 10, 0
s_sub_u32 s35, s35, s36
s_mov_b32 s22, 2621440
s_mov_b32 s23, 0x20000
s_mov_b32 s27, 0x20000
s_cmp_lt_u32 s15, 8
s_mov_b32 s26, 2211840
s_cselect_b32 s26, 2457600, s26
s_mov_b32 s28, 3456
s_cselect_b32 s28, 3840, s28
s_movk_i32 s32, 1280
s_lshl_b32 s30, s14, 7
s_lshr_b32 s31, s41, 3
s_lshl_b32 s31, s31, 5
s_add_u32 s30, s30, s31
v_lshrrev_b32 v3, 1, v2
v_add_u32 v3, s30, v3
v_mul_lo_u32 v3, v3, s32
v_and_b32 v4, 1, v2
v_lshl_add_u32 v3, v4, 6, v3
s_and_b32 s30, s41, 7
s_lshl_b32 s30, s30, 3
v_lshrrev_b32 v4, 3, v2
v_add_u32 v4, s30, v4
v_mul_lo_u32 v4, v4, s28
v_and_b32 v5, 7, v2
v_lshl_add_u32 v4, v5, 6, v4
s_lshl_b32 s30, s17, 7
v_add_u32 v4, s30, v4
s_lshl_b32 s30, s18, 1
v_cmp_gt_u32 vcc, s30, v5
v_mov_b32 v8, 0x7fffffff
s_lshl_b32 s34, s28, 6
s_mul_i32 s36, s35, s34
s_lshl_b32 s37, s35, 7
v_cndmask_b32 v4, v8, v4, vcc
s_cmp_lt_u32 s15, 8
s_waitcnt lgkmcnt(0)
s_mov_b32 s20, s4
s_mov_b32 s21, s5
s_cselect_b32 s24, s6, s8
s_cselect_b32 s25, s7, s9
""")
        if P["pfs"]:
            A(f"s_mul_i32 s30, s29, {P['pfs']}\n{E}_pfs:\ns_sub_u32 s30, s30, 1\ns_cbranch_scc1 {E}_pfd\ns_sleep 1\ns_branch {E}_pfs\n{E}_pfd:")
        A(f"""
s_cmp_ge_u32 s29, {P['pf2']}
s_cbranch_scc1 {E}_pfe
buffer_load_dword v164, v3, s[20:23], s37 offen
buffer_load_dword v165, v4, s[24:27], s36 offen
s_add_u32 s30, s29, 8
s_cmp_ge_u32 s30, {P['pf2']}
s_cbranch_scc1 {E}_pfe
s_add_u32 s35, s35, 8
s_cmp_ge_u32 s35, 10
s_cselect_b32 s36, 10, 0
s_sub_u32 s35, s35, s36
s_mul_i32 s36, s35, s34
s_lshl_b32 s37, s35, 7
buffer_load_dword v166, v3, s[20:23], s37 offen
buffer_load_dword v167, v4, s[24:27], s36 offen
{E}_pfe:
""")
    A(f"""
v_lshrrev_b32 v3, 5, v2
v_and_b32 v4, 31, v2
""")
    A("""
s_and_b32 s52, s29, 1
s_lshr_b32 s53, s29, 1
s_lshl_b32 s30, s52, 1
s_xor_b32 s30, s30, s53
s_add_u32 s54, s17, s53
s_mov_b32 s56, 0x3f803f80
s_lshl_b32 s31, s30, 1
v_bfe_u32 v5, v2, 1, 3
v_xor_b32 v5, v5, v3
v_xor_b32 v5, s31, v5
s_lshl_b32 s31, s52, 13
v_lshlrev_b32 v6, 7, v4
v_add_u32 v6, s31, v6
""")
    for pos in range(4):
        A(f"v_xor_b32 v7, {2*pos}, v5\nv_lshl_add_u32 v{16+pos}, v7, 4, v6\nv_add_u32 v{20+pos}, 98304, v{16+pos}")
    A("""
v_bfe_u32 v5, v2, 2, 2
v_lshl_add_u32 v6, v3, 3, v5
v_lshlrev_b32 v6, 9, v6
v_bfe_u32 v7, v2, 1, 1
v_lshl_add_u32 v6, v7, 3, v6
v_add_u32 v6, 16384, v6
v_bfe_u32 v7, v2, 4, 1
v_and_b32 v8, 1, v2
v_lshl_add_u32 v7, v7, 1, v8
s_lshl_b32 s31, s53, 3
v_add_u32 v7, s31, v7
v_lshlrev_b32 v5, 2, v5
v_xor_b32 v7, v7, v5
v_lshl_add_u32 v6, v7, 4, v6
v_xor_b32 v7, 64, v6
""")
    for pos in range(4):
        A(f"s_xor_b32 s31, s30, {pos}\ns_lshl_b32 s31, s31, 13")
        for t in range(2):
            A(f"v_add_u32 v{24+pos*2+t}, s31, v{6+t}\nv_add_u32 v{32+pos*2+t}, 98304, v{24+pos*2+t}")
    A("""
v_and_b32 v5, 15, v2
v_bfe_u32 v6, v2, 4, 1
v_cmp_eq_u32 vcc, v5, v6
v_mov_b32 v5, s56
s_mov_b32 s56, 0xffff0000
""")
    for i in range(4): A(f"v_cndmask_b32 v{88+i}, 0, v5, vcc")
    A(f"""
s_lshl_b32 s31, s52, 8
s_add_u32 s31, s31, {XS}
v_lshl_add_u32 v9, v4, 2, s31
v_add_u32 v12, {RB - XS}, v9
""")
    if CSL:
        A("s_lshl_b32 s33, s53, 9\nv_lshl_add_u32 v8, v2, 2, s33")
    else:
        A(f"""
s_lshl_b32 s33, s29, 11
v_lshl_add_u32 v7, v2, 4, s33
s_lshl_b32 s33, s53, 12
v_lshl_add_u32 v8, v3, 11, s33
v_bfe_u32 v5, v2, 4, 1
v_lshl_add_u32 v8, v5, 4, v8
v_bfe_u32 v5, v2, 2, 2
v_lshl_add_u32 v8, v5, 8, v8
v_and_b32 v5, 3, v2
v_lshl_add_u32 v8, v5, 2, v8
""")
    A(f"""
s_cmp_lt_u32 s15, 8
s_cselect_b32 s55, s54, 0
s_cmp_ge_u32 s55, 20
s_cbranch_scc1 {E}_vloop
""")
    FB = [56, 72]
    def acc(ct, tt): return 96 + (ct * 2 + tt) * 16
    class Q:
        def __init__(s): s.q = []
        def op(s, tag, txt): A(txt); s.q.append(tag)
        def need(s, *tags):
            idx = max([i for i, t in enumerate(s.q) if t in tags], default=-1)
            if idx >= 0:
                A(f"s_waitcnt lgkmcnt({len(s.q) - 1 - idx})"); s.q = s.q[idx + 1:]
    def rd(L, p, i):
        s, pos = p >> 2, p & 3
        slot = s % 3; b = FB[p & 1]
        xa = (20 if slot == 2 else 16) + pos
        wa = (32 if slot == 2 else 24) + pos * 2
        off = 49152 if slot == 1 else 0
        L.op((p, i), [f"ds_read_b128 v[{b}:{b+3}], v{xa} offset:{off}",
                      f"ds_read_b64_tr_b16 v[{b+8}:{b+9}], v{wa} offset:{off}",
                      f"ds_read_b64_tr_b16 v[{b+10}:{b+11}], v{wa} offset:{off+2048}",
                      f"ds_read_b128 v[{b+4}:{b+7}], v{xa} offset:{off+4096}",
                      f"ds_read_b64_tr_b16 v[{b+12}:{b+13}], v{wa+1} offset:{off}",
                      f"ds_read_b64_tr_b16 v[{b+14}:{b+15}], v{wa+1} offset:{off+2048}"][i])
    def prep():
        o = []
        for t in range(2):
            c = 10 + t; h = 56 + 4 * t
            o += f"""v_cvt_pk_bf16_f32 v{h+2}, 0, v{c}
v_cvt_pk_bf16_f32 v{64+2*t}, -v{160+t}, -v{160+t}
v_sub_f32 v{h+2}, v{c}, v{h+2}
v_cvt_pk_bf16_f32 v{65+2*t}, -v{160+t}, 0
v_cvt_pk_bf16_f32 v{h+3}, 0, v{h+2}
v_cvt_pk_bf16_f32 v{h}, v{c}, v{h+2}
v_sub_f32 v{h+3}, v{h+2}, v{h+3}
v_cvt_pk_bf16_f32 v{h+1}, v{h+3}, 0""".split("\n")
        return o
    BP = P["bpos"]
    def loop(vmode):
        L = Q()
        A("; MARK 0\ns_waitcnt lgkmcnt(0)\ns_mov_b32 s44, s12\ns_mov_b32 s45, s13")
        if P["dum"] or P["fillst"] is not None:
            A(f"""
s_mov_b32 s60, s12
s_mov_b32 s61, s13
s_mov_b32 s62, 0x8000000
s_mov_b32 s63, 0x20000
v_lshlrev_b32 v48, 4, v2
v_lshlrev_b32 v49, 2, v2
v_mov_b32 v92, -1
v_mov_b32 v93, -1
v_mov_b32 v94, -1
v_mov_b32 v95, -1
s_lshl_b32 s57, s2, 3
s_add_u32 s57, s57, s29
s_mul_i32 s57, s57, 1280
s_add_u32 s57, s57, {OF}
""")
        if P.get("fill", 1) and P["fillst"] is None:
            A(f"""
s_lshl_b32 s31, s2, 3
s_add_u32 s31, s31, s29
s_mul_i32 s31, s31, 1280
s_add_u32 s31, s31, {OF}
v_lshlrev_b32 v44, 4, v2
v_lshlrev_b32 v45, 2, v2
v_mov_b32 v40, -1
v_mov_b32 v41, -1
v_mov_b32 v42, -1
v_mov_b32 v43, -1
buffer_store_dwordx4 v[40:43], v44, s[44:47], s31 offen{ST}
buffer_store_dword v40, v45, s[44:47], s31 offen offset:1024{ST}
""")
        A("s_barrier\n; MARK 1")
        for i in range(6): rd(L, 0, i)
        for p in range(40):
            s, pos = p >> 2, p & 3
            b = FB[p & 1]
            bar = pos == 3 and s < 9
            if p == 39: sched = [[], [], [], []]
            elif bar: sched = {0: [[0, 1], [2, 3], [4, 5], []], 1: [[0, 1, 2], [3, 4, 5], [], []], 2: [[], [0, 1, 2], [3, 4, 5], []], 3: [[], [], [0, 1, 2, 3, 4, 5], []]}[BP]
            else: sched = [[0, 1], [2, 3], [4, 5], []]
            if bar:
                L.need(*[(p, i) for i in range(6)])
                if BP == 0: A(f"s_barrier\n; MARK {4+s}")
            for j, (ct, tt) in enumerate(((0, 0), (0, 1), (1, 1), (1, 0))):
                L.need(*[(p, i) for i in ([0, 1, 2], [3], [4, 5], [])[j]])
                a = acc(ct, tt)
                c = "0" if p == 0 else vr(a, 16)
                w, x = vr(b + 8 + 4 * ct, 4), vr(b + 4 * tt, 4)
                if vmode: A(f"v_mfma_f32_32x32x16_bf16 {vr(a,16)}, {x}, {w}, {c}")
                else: A(f"v_mfma_f32_32x32x16_bf16 {vr(a,16)}, {w}, {x}, {c}")
                if bar and BP == j + 1: A(f"s_barrier\n; MARK {4+s}")
                for i in sched[j]: rd(L, p + 1, i)
                if pos < 2 and P["cs"] == "mfma" and j in (1, 3):
                    ct2 = j >> 1
                    c = "0" if p == 0 else vr(40 + 4 * ct2, 4)
                    A(f"v_mfma_f32_16x16x32_bf16 {vr(40+4*ct2,4)}, {vr(b+8+4*ct2,4)}, v[88:91], {c}")
                if P["dum"] and j == 0 and p in P["dum"]:
                    n = P["dum"].index(p)
                    A(f"s_lshl_b32 s31, s2, 15\ns_lshl_b32 s30, s29, 12\ns_add_u32 s31, s31, s30\ns_add_u32 s31, s31, 0x4000000\nbuffer_store_dwordx4 v[92:95], v48, s[60:63], s31 offen offset:{n*1024}{ST}")
                if P["fillst"] is not None and j == 0 and p == P["fillst"]:
                    A(f"buffer_store_dwordx4 v[92:95], v48, s[44:47], s57 offen{ST}\nbuffer_store_dword v92, v49, s[44:47], s57 offen offset:1024{ST}")
                if p == 38 and j == 0 and not CSL:
                    L.op("csw", f"ds_write_b128 v7, v[40:43] offset:{CS}"); L.op("csw", f"ds_write_b128 v7, v[44:47] offset:{CS + 1024}")
                if p == 38 and j == 3:
                    L.need("csw"); A("s_barrier")
                    L.op("st", f"ds_read_b32 v10, v8 offset:{CS}"); L.op("st", f"ds_read_b32 v11, v8 offset:{CS + (256 if CSL else 1024)}")
                    L.op("st", "ds_read2_b32 v[160:161], v9 offset0:0 offset1:32"); L.op("st", "ds_read2_b32 v[162:163], v12 offset0:0 offset1:32")
                if p == 39 and j == 1: L.need("st")
                if p == 39 and j in (1, 2):
                    for o in prep()[8 * (j - 1): 8 * j]: A(o)
    def stats(vmode):
        A("; MARK 2")
        for (ct, tt) in ((0, 0), (0, 1), (1, 1), (1, 0)):
            a = acc(ct, tt); w, x = vr(56 + 4 * ct, 2), vr(64 + 2 * tt, 2)
            if vmode: A(f"v_mfma_f32_32x32x8_bf16 {vr(a,16)}, {x}, {w}, {vr(a,16)}")
            else: A(f"v_mfma_f32_32x32x8_bf16 {vr(a,16)}, {w}, {x}, {vr(a,16)}")
        A("""
s_lshl_b32 s39, s14, 2
s_lshl_b32 s31, s52, 1
s_add_u32 s39, s39, s31
""")
    order = ((0, 0), (0, 1), (1, 1), (1, 0))
    loop(False); stats(False)
    A(f"""
s_cmp_ge_u32 s53, s18
s_cbranch_scc1 {E}_w2
v_lshlrev_b32 v5, 4, v2
s_cmp_lt_u32 s15, 8
s_cbranch_scc1 {E}_qk
""")
    A(f"""
s_mul_i32 s30, s39, 108
s_lshl_b32 s31, s54, 2
s_add_u32 s30, s30, s31
s_lshl_b32 s30, s30, 10
s_add_u32 s30, s30, {HF}
s_add_u32 s31, s30, {108*1024}
""")
    for (ct, tt) in order:
        a = acc(ct, tt)
        for k in range(8): A(f"v_cvt_pk_bf16_f32 v{a+k}, v{a+2*k}, v{a+2*k+1}")
        for k in range(8): A(f"v_pk_max_i16 v{a+k}, v{a+k}, 0")
        for j in range(2 * (1 - P["noh"])): A(f"buffer_store_dwordx4 {vr(a+4*j,4)}, v5, s[44:47], s{30+tt} offen offset:{(ct*2+j)*1024}{STH}")
    A(f"s_branch {E}_w2")
    A(f"""
{E}_qk:
s_cmp_lt_u32 s54, 10
s_cselect_b32 s30, {f32bits(QSCALE)}, 1.0
v_mul_f32 v162, s30, v162
v_mul_f32 v163, s30, v163
s_mul_i32 s30, s39, {TS}
s_lshl_b32 s31, s54, 12
s_add_u32 s30, s30, s31
s_add_u32 s30, s30, {QF}
s_add_u32 s31, s30, {TS}
""")
    for (ct, tt) in order:
        a = acc(ct, tt)
        sel = "op_sel_hi:[1,0]" if tt == 0 else "op_sel:[0,1] op_sel_hi:[1,1]"
        for k in range(8): A(f"v_pk_mul_f32 {vr(a+2*k,2)}, {vr(a+2*k,2)}, v[162:163] {sel}")
        for k in range(8): A(f"v_cvt_pk_bf16_f32 v{a+k}, v{a+2*k}, v{a+2*k+1}")
        for j in range(2): A(f"buffer_store_dwordx4 {vr(a+4*j,4)}, v5, s[44:47], s{30+tt} offen offset:{(ct*2+j)*1024}{ST}")
    A(f"s_branch {E}_w2")
    A(f"{E}_vloop:")
    loop(True); stats(True)
    A(f"""
s_cmp_ge_u32 s53, s18
s_cbranch_scc1 {E}_w2
s_lshl_b32 s30, s52, 8
v_lshl_add_u32 v6, v3, 4, s30
""")
    for tt in range(2):
        for q in range(4):
            A(f"ds_read_b128 {vr(56+16*tt+4*q,4)}, v6 offset:{RB + tt*128 + q*32}")
    A(f"""
s_sub_u32 s30, s54, 20
s_lshl_b32 s30, s30, 10
s_mul_i32 s31, s39, {TS}
s_add_u32 s30, s30, s31
s_add_u32 s30, s30, {QF + VOFF}
s_add_u32 s31, s30, {2*SV}
s_add_u32 s32, s30, {TS}
s_add_u32 s33, s31, {TS}
v_and_b32 v5, 19, v2
v_bfe_u32 v7, v2, 2, 1
v_lshl_add_u32 v5, v7, 3, v5
v_bfe_u32 v7, v2, 3, 1
v_lshl_add_u32 v5, v7, 2, v5
v_mul_u32_u24 v9, {SV}, v3
v_lshl_add_u32 v16, v5, 4, v9
s_waitcnt lgkmcnt(0)
""")
    for (ct, tt) in order:
        a = acc(ct, tt)
        for k in range(8): A(f"v_pk_mul_f32 {vr(a+2*k,2)}, {vr(a+2*k,2)}, {vr(56+16*tt+2*k,2)}")
        for k in range(8): A(f"v_cvt_pk_bf16_f32 v{a+k}, v{a+2*k}, v{a+2*k+1}")
        for j in range(2): A(f"buffer_store_dwordx4 {vr(a+4*j,4)}, v16, s[44:47], s{30+2*tt+j} offen offset:{ct*512}{STV}")
    A(f"""
{E}_w2:
; MARK 3
{E}_end:
s_endpgm
""")
    A.end(name, 168, 80)
```

```python
import sys, json
from asmlib import *
from k1 import gen_k1
from k2 import gen_k2
from k3 import gen_k3
import k2f, k1n, k2n, k2g, kf
NAME = "parallel_sum__softmax_full_mha__dense_activation_relu__prompt"
PROF = 0x2000000
RT = [None]
def add_prof(lines):
    out = []; k = -1; name = None
    for ln in lines:
        t = ln.strip()
        if t.endswith("_kernel:"):
            k += 1; name = t[:-1]
            out += [ln, "    s_memrealtime s[88:89]", "    s_memtime s[90:91]", "    v_lshrrev_b32 v1, 6, v0", "    s_nop 1", "    v_readfirstlane_b32 s98, v1", "    s_waitcnt lgkmcnt(0)"] + [f"    s_mov_b32 s{r}, s90" for r in list(range(70, 80)) + [80, 82, 84, 86]]
        elif t == "s_endpgm":
            out.append(f"    s_branch L_prof_{name}")
        elif t.startswith("; HMARK"):
            i = int(t.split()[2]); out += ["    s_memrealtime s[96:97]", "    s_waitcnt lgkmcnt(0)", f"    s_mov_b32 s{70+i-4}, s96"]
        elif t.startswith("; CMARK"):
            i = int(t.split()[2]); out += ["    s_cmp_eq_u64 s[60:61], -1", "    s_cbranch_scc0 L_cm", f"    s_cmp_lg_u32 s{70+i-4}, s90", "    s_cbranch_scc1 L_cm", "    s_memrealtime s[96:97]", "    s_waitcnt lgkmcnt(0)", f"    s_mov_b32 s{70+i-4}, s96", "L_cm:"]
        elif t.startswith("; VAL"):
            i = int(t.split()[2]); out.append(f"    s_mov_b32 s{70+i-4}, {t.split()[3]}")
        elif t.startswith("; MARK"):
            i = int(t.split()[2])
            if RT[0] is not None and k == RT[0]:
                out += ["    s_memrealtime s[96:97]", "    s_waitcnt lgkmcnt(0)", f"    s_mov_b32 s{80+2*i if i < 4 else 70+i-4}, s96"]
                continue
            if i < 4: out += [f"    s_memtime s[{80+2*i}:{81+2*i}]", "    s_waitcnt lgkmcnt(0)"]
            else: out += ["    s_memtime s[96:97]", "    s_waitcnt lgkmcnt(0)", f"    s_mov_b32 s{70+i-4}, s96"]
        elif t.startswith(".section .rodata"):
            out += [f"L_prof_{name}:"] + ["    " + x for x in f"""s_mov_b64 exec, -1
s_memrealtime s[92:93]
s_memtime s[94:95]
s_load_dwordx2 s[96:97], s[0:1], 64
s_lshl_b32 s99, s2, 4
s_add_u32 s99, s99, s98
s_add_u32 s99, s99, {k*8192}
s_lshl_b32 s99, s99, 7
s_add_u32 s99, s99, {PROF}
s_waitcnt lgkmcnt(0)
v_mov_b32 v1, s99
v_mov_b32 v4, s88
v_mov_b32 v5, s92
v_mov_b32 v6, s90
v_mov_b32 v7, s94
v_mov_b32 v8, s80
v_mov_b32 v9, s82
v_mov_b32 v10, s84
v_mov_b32 v11, s86
v_cmp_eq_u32 vcc, 0, v2
s_and_b64 exec, exec, vcc
s_cmp_ge_u32 s2, 256
s_cbranch_scc1 L_profe_{name}
global_store_dwordx4 v1, v[4:7], s[96:97]
global_store_dwordx4 v1, v[8:11], s[96:97] offset:16
v_mov_b32 v12, s70
v_mov_b32 v13, s71
v_mov_b32 v14, s72
v_mov_b32 v15, s73
v_mov_b32 v16, s74
v_mov_b32 v17, s75
v_mov_b32 v18, s76
v_mov_b32 v19, s77
v_mov_b32 v20, s78
v_mov_b32 v21, s79
global_store_dwordx4 v1, v[12:15], s[96:97] offset:32
global_store_dwordx4 v1, v[16:19], s[96:97] offset:48
global_store_dwordx2 v1, v[20:21], s[96:97] offset:64
s_and_b32 s99, s2, 0x1f
s_lshr_b32 s100, s2, 5
s_cmp_lg_u32 s99, s100
s_cbranch_scc1 L_profe_{name}
s_cmp_lg_u32 s98, {[7,7,3][k]}
s_cbranch_scc1 L_profe_{name}
s_load_dwordx2 s[96:97], s[0:1], 56
v_mov_b32 v1, 0
v_not_b32 v4, v4
v_sub_u32 v7, v7, v6
v_sub_u32 v8, v8, v6
v_sub_u32 v9, v9, v6
v_sub_u32 v10, v10, v6
v_sub_u32 v11, v11, v6
s_waitcnt lgkmcnt(0)
global_atomic_umax v1, v4, s[96:97]
global_atomic_umax v1, v5, s[96:97] offset:4
global_atomic_umax v1, v7, s[96:97] offset:8
global_atomic_umax v1, v8, s[96:97] offset:12
global_atomic_umax v1, v9, s[96:97] offset:16
global_atomic_umax v1, v10, s[96:97] offset:20
global_atomic_umax v1, v11, s[96:97] offset:24
s_cmp_lg_u32 s2, {0 if k == 2 else 999}
s_cbranch_scc1 L_profe_{name}
global_load_dwordx4 v[4:7], v1, s[96:97] offset:-1024
global_load_dwordx4 v[8:11], v1, s[96:97] offset:-512
global_load_dword v7, v1, s[96:97] offset:-1008
s_waitcnt vmcnt(0)
global_store_dwordx4 v1, v[4:7], s[96:97] offset:32
global_store_dwordx4 v1, v[8:11], s[96:97] offset:48
L_profe_{name}:
s_endpgm""".split("\n")] + [ln]
        elif t.startswith(".amdhsa_next_free_sgpr"):
            out.append(".amdhsa_next_free_sgpr 102")
        else: out.append(ln)
    return out
def add_tl(lines):
    out = []; k = -1; name = None
    for ln in lines:
        t = ln.strip()
        if t.endswith("_kernel:"):
            k += 1; name = t[:-1]
            out += [ln, "    s_memrealtime s[88:89]", "    s_memtime s[90:91]", "    v_lshrrev_b32 v1, 6, v0", "    s_nop 1", "    v_readfirstlane_b32 s98, v1"]
        elif t == "s_endpgm":
            out.append(f"    s_branch L_prof_{name}")
        elif t.startswith(".section .rodata"):
            o2 = 512 if k == 0 else -512
            out += [f"L_prof_{name}:"] + ["    " + x for x in f"""s_mov_b64 exec, -1
s_memrealtime s[92:93]
s_memtime s[94:95]
s_load_dwordx2 s[96:97], s[0:1], 56
s_cmp_ge_u32 s2, 256
s_cbranch_scc1 L_profe_{name}
s_cmp_lg_u32 s98, 7
s_cbranch_scc1 L_profe_{name}
s_lshr_b32 s99, s2, 3
s_and_b32 s99, s99, 15
s_cmp_lg_u32 s99, 5
s_cbranch_scc1 L_profe_{name}
s_waitcnt lgkmcnt(0)
v_mov_b32 v1, 0
v_mov_b32 v4, s88
v_mov_b32 v5, s92
v_mov_b32 v6, s90
v_mov_b32 v7, s94
v_not_b32 v8, v4
v_sub_u32 v7, v7, v6
v_cmp_eq_u32 vcc, 0, v2
s_and_b64 exec, exec, vcc
global_atomic_umax v1, v8, s[96:97] offset:{k*16}
global_atomic_umax v1, v5, s[96:97] offset:{k*16+4}
global_atomic_umax v1, v7, s[96:97] offset:{k*16+8}
global_atomic_umax v1, v8, s[96:97] offset:{o2+k*16}
global_atomic_umax v1, v5, s[96:97] offset:{o2+k*16+4}
global_atomic_umax v1, v7, s[96:97] offset:{o2+k*16+8}
L_profe_{name}:
s_endpgm""".split("\n")] + [ln]
        elif t.startswith(".amdhsa_next_free_sgpr"):
            out.append(".amdhsa_next_free_sgpr 102")
        else: out.append(ln)
    return out
def build2(path, P1=None, P2=None, prof=False):
    A = Asm()
    hdr = """; LN + MHA + ReLU-FFN parallel block, two launches (generated by a hand-written python emitter)
; @launch kernel=k1_kernel grid=(256,1,1) block=(768,1,1) lds=147456
; @launch kernel=k2_kernel grid=(256,1,1) block=(768,1,1) lds=163840
"""
    gen_k1(A, P=P1); k2f.gen_k2(A, P=P2)
    if prof: A.lines = add_prof(A.lines)
    open(path, "w").write(hdr + HEADER + A.text())
def build3(path, P1=None, P2=None, prof=False):
    A = Asm()
    hdr = """; LN + MHA + ReLU-FFN parallel block, two launches (generated by a hand-written python emitter)
; @launch kernel=k1_kernel grid=(256,1,1) block=(768,1,1) lds=163840
; @launch kernel=k2_kernel grid=(256,1,1) block=(768,1,1) lds=163840
"""
    k1n.gen_k1(A, P=P1); k2n.gen_k2(A, P=P2)
    if prof == "lite": A.lines = add_prof([l for l in A.lines if not l.strip().startswith(("; MARK", "; HMARK", "; CMARK", "; VAL"))])
    elif prof == "tl": A.lines = add_tl(A.lines)
    elif prof: A.lines = add_prof(A.lines)
    open(path, "w").write(hdr + HEADER + A.text())
def build4(path, P1=None, P2=None, prof=False):
    A = Asm()
    hdr = """; LN + MHA + ReLU-FFN parallel block, two launches (generated by a hand-written python emitter)
; @launch kernel=k1_kernel grid=(256,1,1) block=(768,1,1) lds=163840
; @launch kernel=k2_kernel grid=(256,1,1) block=(768,1,1) lds=163840
"""
    k1n.gen_k1(A, P=P1); k2g.gen_k2(A, P=P2)
    if prof == "lite": A.lines = add_prof([l for l in A.lines if not l.strip().startswith(("; MARK", "; HMARK", "; CMARK", "; VAL"))])
    elif prof == "tl": A.lines = add_tl(A.lines)
    elif prof: A.lines = add_prof(A.lines)
    open(path, "w").write(hdr + HEADER + A.text())
MA = dict(c0=0, cA=1, cS=2, cF=3, cQ=4, cB=5, c1=6, cH=7, c3=8, c4=9, c6=10, c8=11, c9=12, lA=1, lS=2, lG=4, lB=5, l4=6, lH=7, l2=8, l7=9, l8=10)
def build5(path, P=None, prof=False, aslist=True):
    A = Asm()
    P = dict(P or {})
    kn = "fused_kernel" if aslist else NAME + "_kernel"
    hdr = "; LN + MHA + ReLU-FFN parallel block, one persistent launch (generated by a hand-written python emitter)\n"
    hdr += f"; @launch {'kernel=fused_kernel ' if aslist else ''}grid=(256,1,1) block=(768,1,1) lds=163840\n"
    if prof is True: P.setdefault("marks", MA)
    kf.gen_f(A, kn, P=P)
    if prof: A.lines = add_prof(A.lines)
    open(path, "w").write(hdr + HEADER + A.text())
def build(path, P1=None, P2=None, P3=None, extra="", prof=False):
    A = Asm()
    hdr = """; LN + MHA + ReLU-FFN parallel block, three launches (generated by a hand-written python emitter)
; @launch kernel=k1_kernel grid=(256,1,1) block=(768,1,1) lds=147456
; @launch kernel=k2_kernel grid=(256,1,1) block=(768,1,1) lds=163840
; @launch kernel=k3_kernel grid=(256,1,1) block=(256,1,1) lds=102400
""" + extra
    gen_k1(A, P=P1); gen_k2(A, P=P2); gen_k3(A, P=P3)
    if prof: A.lines = add_prof(A.lines)
    open(path, "w").write(hdr + HEADER + A.text())
if __name__ == "__main__":
    build4(f"cdna_kernels/{NAME}.s")
    build("cur.s")
    build("prof.s", prof=True)
    build3("cur3.s")
    build3("prof3.s", prof=True)
    build3("tl3.s", prof="tl")
    build4("cur4.s")
    build5("cur5.s")
    build5("cur5p.s", aslist=False)
    build5("prof5.s", prof=True)
    build4("prof4.s", prof=True)
    build2("cur2.s")
    build2("prof2.s", prof=True)
```

```python
from asmlib import *
from layout import *

NP = 4
DEF = dict(krot=(1, 4), st=" sc1", lprio=3, gtab=None, cntp=1, eprio=3,
           offs=96.0, T1=4, prio_ffn=0, prio_red=1, prio_add=0, c1=3, prios=(3, 2, 1, 0), rot=0, frot=1,
           order="M1 E8 E9 C0 C1 E10 E11 M2 K C2 C3 E12 E13 E14 E15 M3 C4 C5 N0 N1 C6 C7 N2 N3 M4 V N4 N5 N6 N7", npre=8,
           osc=" sc1", lsc=" sc1", psl=2, spin=2000000, rsl=1, wsl=8, G0=2, hint=(7, 4), bq=2, pgate=13, rtsl=0, pd=1, pper=12,
           psc=' sc1', hsc=' sc1', qsl=1, hst=(0, 0, 1, 1, 2, 2, 3, 3), ofp=5, hfl=(0, 7), w2g=5, marks=None, hsl=2, noh=0, noof=0, now2=0, dsc=' sc1', fsc=' sc1', qdel=0, hgate=0)
WO = 1024; PR = 143360; MSK = 96; SENT = 128; FREE = 123904
RLY = 147392
F_G1, F_G5, F_ALL, F_RW, F_RR, F_WO, F_FX = 1, 2, 3, 4, 5, 6, 7
LF = 2
HD = [0, 0, 0, 1, 2, 2, 2, 3, 4, 4, 4, 4, 5, 5, 5, 5]
H1 = (2, 3, 6, 7, 11)

def gen_f(A, name, P=None):
    P = dict(DEF, **(P or {}))
    XS = 49152; RB = 49152 + 4096; CS = 49152 + 8192
    ST = P["st"]; SC = " sc1"
    G0 = P["G0"]
    A.begin(name)
    E = "L_f"
    def MK(tag):
        if P["marks"] and tag in P["marks"]: A(f"; MARK {P['marks'][tag]}")
    hd = sum(v << (4 * i) for i, v in enumerate(HD))
    GT = ""
    if P["gtab"]:
        t = sum(v << (4 * i) for i, v in enumerate(P["gtab"]))
        GT = f"s_lshl_b32 s15, s15, 2\ns_mov_b32 s16, {hex(t & 0xffffffff)}\ns_mov_b32 s17, {hex(t >> 32)}\ns_lshr_b64 s[16:17], s[16:17], s15\ns_and_b32 s15, s16, 15"
    A(f"""
s_cmp_ge_u32 s2, 256
s_cbranch_scc1 {E}_end
s_load_dwordx4 s[4:7], s[0:1], 0
s_load_dwordx4 s[8:11], s[0:1], 32
s_load_dwordx2 s[12:13], s[0:1], 64
s_load_dwordx4 s[64:67], s[0:1], 48
v_lshrrev_b32 v1, 6, v0
v_and_b32 v2, 63, v0
s_and_b32 s40, s2, 7
s_lshr_b32 s41, s2, 3
v_readfirstlane_b32 s29, v1
s_and_b32 s14, s40, 1
s_lshl_b32 s14, s14, 3
s_and_b32 s15, s41, 7
s_add_u32 s14, s14, s15
s_lshr_b32 s15, s40, 1
s_lshl_b32 s15, s15, 2
s_lshr_b32 s16, s41, 3
s_add_u32 s15, s15, s16
{GT}
s_lshl_b32 s17, s15, 2
s_mov_b32 s18, {hex(hd & 0xffffffff)}
s_mov_b32 s19, {hex(hd >> 32)}
s_lshr_b64 s[18:19], s[18:19], s17
s_and_b32 s18, s18, 15
s_lshl_b32 s17, s15, 1
s_sub_u32 s19, s17, s18
s_mov_b32 s18, {sum(1 << g for g in H1)}
s_bitcmp1_b32 s18, s15
s_cselect_b32 s18, 1, 2
s_mov_b32 s46, {WS_BYTES}
s_mov_b32 s47, 0x20000
s_cmp_lt_u32 s29, 8
s_cbranch_scc1 {E}_comp
""")
    ra, rb = P["krot"]
    A(f"""
s_setprio {P['lprio']}
s_sub_u32 s29, s29, 8
s_mov_b32 s22, 2621440
s_mov_b32 s23, 0x20000
s_mov_b32 s27, 0x20000
s_mov_b32 s50, 2211840
s_mov_b32 s51, 0x20000
s_cmp_lt_u32 s15, 15
s_cselect_b32 s26, 2457600, 0
v_lshrrev_b32 v3, 3, v2
s_lshl_b32 s30, s29, 5
s_lshl_b32 s31, s14, 7
s_add_u32 s30, s30, s31
v_add_u32 v3, s30, v3
v_lshrrev_b32 v4, 4, v2
v_and_b32 v5, 7, v2
v_xor_b32 v6, v5, v4
v_xor_b32 v7, 4, v6
s_movk_i32 s32, 1280
v_mul_lo_u32 v3, v3, s32
v_lshl_add_u32 v10, v6, 4, v3
v_lshl_add_u32 v11, v7, 4, v3
v_add_u32 v11, 10240, v11
v_and_b32 v5, 15, v2
v_lshlrev_b32 v6, 2, v4
v_xor_b32 v5, v5, v6
s_lshl_b32 s30, s29, 4
v_add_u32 v4, s30, v4
v_mul_u32_u24 v6, 3840, v4
v_mul_u32_u24 v7, 3456, v4
s_lshl_b32 s31, s17, 7
s_lshl_b32 s33, s19, 7
v_lshl_add_u32 v6, v5, 4, v6
v_lshl_add_u32 v7, v5, 4, v7
v_add_u32 v12, s31, v6
v_add_u32 v44, s33, v7
s_lshl_b32 s33, s18, 3
v_mov_b32 v8, 0x7fffffff
v_cmp_gt_u32 vcc, s33, v5
s_lshr_b32 s35, s40, 1
s_mul_i32 s35, s35, {ra}
s_and_b32 s36, s40, 1
s_mul_i32 s36, s36, {rb}
s_add_u32 s35, s35, s36
s_cmp_ge_u32 s35, 10
s_cselect_b32 s36, 10, 0
s_sub_u32 s35, s35, s36
""")
    for j in range(1, 4): A(f"v_add_u32 v{12+j}, {j*4*3840}, v12\nv_add_u32 v{44+j}, {j*4*3456}, v44")
    for j in range(4): A(f"v_cndmask_b32 v{44+j}, v8, v{44+j}, vcc")
    A(f"""
s_mul_i32 s36, s35, {64*3840}
s_mul_i32 s39, s35, {64*3456}
s_lshl_b32 s35, s35, 7
s_lshl_b32 s37, s29, 12
s_add_u32 s38, s37, 16384
s_waitcnt lgkmcnt(0)
s_mov_b32 s20, s4
s_mov_b32 s21, s5
s_mov_b32 s24, s6
s_mov_b32 s25, s7
s_mov_b32 s48, s8
s_mov_b32 s49, s9
""")
    def issue(slot, fill=()):
        base = slot * 49152
        fill = list(fill); per = (len(fill) + 10) // 11
        def fl(k):
            if fill and k == 0: A("s_waitcnt lgkmcnt(0)")
            if k < 11:
                for o in fill[k * per:(k + 1) * per]: A(o)
        A("s_add_u32 s30, s35, 20480")
        for j in range(4):
            A(f"s_add_u32 m0, s37, {base + j*1024}\nbuffer_load_dwordx4 v{10+(j&1)}, s[20:23], s{35 if j < 2 else 30} offen lds")
            if j: fl(j - 1)
        for j in range(4):
            A(f"s_add_u32 m0, s38, {base + j*1024}\nbuffer_load_dwordx4 v{12+j}, s[24:27], s36 offen lds")
            fl(3 + j)
        for j in range(4):
            A(f"s_add_u32 m0, s38, {base + 16384 + j*1024}\nbuffer_load_dwordx4 v{44+j}, s[48:51], s39 offen lds")
            fl(7 + j)
        A(f"s_add_u32 s35, s35, 128\ns_add_u32 s36, s36, {64*3840}\ns_add_u32 s39, s39, {64*3456}\ns_cmp_eq_u32 s35, 1280\ns_cselect_b32 s35, 0, s35\ns_cselect_b32 s36, 0, s36\ns_cselect_b32 s39, 0, s39")
    issue(0); issue(1)
    A(f"""
s_load_dwordx2 s[6:7], s[0:1], 16
s_lshl_b32 s30, s29, 12
v_lshl_add_u32 v96, v2, 4, s30
v_add_u32 v97, 98304, v96
s_mov_b32 s56, 0xffff0000
""")
    for i in range(32, 40): A(f"v_mov_b32 v{i}, 0")
    def sreads(st):
        slot = st % 3; off = 49152 if slot == 1 else 0
        for j in range(4): A(f"ds_read_b128 {vr(16+4*j,4)}, v{97 if slot == 2 else 96} offset:{off + j*1024}")
    def sops():
        ops = []
        for i in range(4):
            for jp in range(2):
                for e, j in enumerate((2*jp, 2*jp+1)):
                    x = 16 + 4*j + i
                    ops += [f"v_lshlrev_b32 v{40+2*e}, 16, v{x}", f"v_and_b32 v{41+2*e}, s56, v{x}"]
                for q in range(2):
                    for e, j in enumerate((2*jp, 2*jp+1)):
                        u = 40 + 2*e + q
                        ops += [f"v_add_f32 v{32+2*j}, v{32+2*j}, v{u}", f"v_fmac_f32 v{33+2*j}, v{u}, v{u}"]
        return ops
    A("s_waitcnt vmcnt(12)\ns_barrier")
    for s_ in range(8):
        sreads(s_)
        issue((s_ + 2) % 3, sops())
        A("s_waitcnt vmcnt(12)\ns_barrier")
    sreads(8)
    A(f"""
v_mov_b32 v99, 0
global_load_dword v116, v99, s[66:67] offset:{CNT} sc1
s_mov_b32 s44, s12
s_mov_b32 s45, s13
s_mov_b32 s48, s10
s_mov_b32 s49, s11
s_lshl_b32 s57, s29, 8
s_add_u32 s58, s57, s2
s_min_u32 s57, s58, 539
s_mul_i32 s59, s57, 13108
s_lshr_b32 s59, s59, 16
s_mul_i32 s60, s59, 5
s_sub_u32 s60, s57, s60
s_mul_i32 s61, s59, 20480
s_lshl_b32 s62, s60, 8
s_add_u32 s62, s62, s61
s_add_u32 s63, s62, 5120
v_lshrrev_b32 v3, 5, v2
v_and_b32 v4, 31, v2
v_mul_u32_u24 v5, 10240, v3
v_lshl_add_u32 v98, v4, 3, v5
s_cmp_ge_u32 s58, 540
s_cselect_b32 s50, 0, s50
""")
    W2R = 100
    for j in range(8):
        A(f"buffer_load_dwordx2 {vr(W2R+2*j,2)}, v98, s[48:51], s{62 + (j >> 2)} offen offset:{(j & 3) * 1280}")
    A("s_waitcnt lgkmcnt(0)")
    for o in sops(): A(o)
    A("s_waitcnt vmcnt(8)\ns_barrier")
    sreads(9)
    A(f"""
v_and_b32 v5, 3, v2
v_lshrrev_b32 v6, 3, v2
v_lshl_add_u32 v6, v5, 3, v6
s_lshl_b32 s30, s29, 5
v_add_u32 v6, s30, v6
v_lshlrev_b32 v6, 2, v6
v_cmp_eq_u32 s[30:31], 1, v5
v_cmp_eq_u32 s[32:33], 2, v5
v_cmp_eq_u32 s[34:35], 3, v5
s_mov_b32 s36, 0x3acccccd
s_mov_b32 s37, 0x3727c5ac
v_mov_b32 v98, 0
v_mov_b32 v7, {RLY}
ds_write_b64 v7, v[98:99]
s_waitcnt lgkmcnt(0)
""")
    for o in sops(): A(o)
    for m in ("quad_perm:[1,0,3,2]", "quad_perm:[2,3,0,1]", "row_half_mirror"):
        for i in range(8): A(f"v_add_f32_dpp v{32+i}, v{32+i}, v{32+i} {m} row_mask:0xf bank_mask:0xf")
    for j in range(1, 4):
        A(f"v_cndmask_b32 v32, v32, v{32+2*j}, s[{28+2*j}:{29+2*j}]\nv_cndmask_b32 v33, v33, v{33+2*j}, s[{28+2*j}:{29+2*j}]")
    A(f"""
v_mul_f32 v32, s36, v32
v_mul_f32 v34, v32, v32
v_fma_f32 v33, v33, s36, -v34
v_max_f32 v33, 0, v33
v_cvt_pk_bf16_f32 v33, 0, v33
v_add_f32 v33, s37, v33
v_cvt_pk_bf16_f32 v33, 0, v33
v_sqrt_f32 v33, v33
ds_write_b32 v6, v32 offset:{XS}
v_readfirstlane_b32 s30, v116
v_cvt_pk_bf16_f32 v33, 0, v33
v_rcp_f32 v33, v33
s_mov_b32 s31, {P['spin']}
s_nop 0
ds_write_b32 v6, v33 offset:{RB}
s_waitcnt lgkmcnt(0)
s_barrier
{E}_cw:
s_cmp_ge_u32 s30, 256
s_cbranch_scc1 {E}_cd
s_sub_u32 s31, s31, 1
s_cbranch_scc1 {E}_cd
s_sleep 2
global_load_dword v116, v99, s[66:67] offset:{CNT} sc1
s_waitcnt vmcnt(0)
v_readfirstlane_b32 s30, v116
s_branch {E}_cw
{E}_cd:
s_barrier
""")
    MK("lA")
    A(f"""
v_mov_b32 v1, 0
v_lshlrev_b32 v7, 2, v2
ds_write_b32 v7, v1
s_mov_b32 s64, s12
s_mov_b32 s65, s13
s_mov_b32 s67, 0x20000
s_cmp_ge_u32 s58, 540
s_cselect_b32 s66, 0, {WS_BYTES}
s_mov_b32 s30, 0x05040100
s_mov_b32 s31, 0x07060302
v_lshrrev_b32 v5, 3, v4
v_and_b32 v6, 7, v2
v_lshlrev_b32 v5, 10, v5
v_lshl_add_u32 v5, v6, 6, v5
v_lshl_add_u32 v5, v3, 9, v5
s_lshl_b32 s34, s29, 12
s_add_u32 s34, s34, 147456
v_add_u32 v5, s34, v5
v_lshlrev_b32 v6, 4, v2
v_add_u32 v7, s34, v6
s_lshl_b32 s69, s60, 12
s_add_u32 s69, s69, s61
s_add_u32 s69, s69, {W2F}
s_mul_i32 s68, s60, 108
s_add_u32 s68, s68, s59
s_lshl_b32 s68, s68, 7
s_add_u32 s68, s68, {FW}
s_waitcnt vmcnt(0)
""")
    for c in range(4):
        for k in range(4): A(f"v_perm_b32 v{40+4*c+k}, v{W2R+2+4*k+(c>>1)}, v{W2R+4*k+(c>>1)}, s{30+(c&1)}")
    for c in range(4): A(f"ds_write_b128 v5, {vr(40+4*c,4)} offset:{16*c}")
    for c in range(4): A(f"ds_read_b128 {vr(88+4*c,4)}, v7 offset:{1024*c}")
    A(f"s_branch {E}_ffn")

    def head_scalars():
        A(f"""
s_lshl_b32 s14, s40, 2
s_lshr_b32 s15, s41, 3
s_add_u32 s14, s14, s15
s_mul_i32 s16, s14, 5
s_add_u32 s16, s16, 1
s_lshr_b32 s16, s16, 1
s_lshl_b32 s16, s16, 9
s_add_u32 s16, s16, {QF}
s_movk_i32 s17, 1024
s_bitcmp1_b32 s14, 0
s_cselect_b32 s17, -504, s17
s_and_b32 s19, s41, 7
s_lshl_b32 s15, s19, 3
s_mul_i32 s19, s19, {8 * TS * P['rot']}
""")
    def poll_addr(dst, t0, t1):
        A(f"""
s_mul_i32 s{t0}, s14, 20
s_add_u32 s{t1}, s{t0}, 19
s_lshr_b32 s{t0}, s{t0}, 6
s_lshr_b32 s{t1}, s{t1}, 6
s_sub_u32 s{t1}, s{t1}, s{t0}
s_lshl_b32 s{t0}, s{t0}, 12
s_add_u32 s{t0}, s{t0}, {FQ}
s_lshl_b32 s{t1}, s{t1}, 12
v_mul_u32_u24 v{dst}, s{t1}, v3
v_lshl_add_u32 v{dst}, v4, 7, v{dst}
v_add_u32 v{dst}, s{t0}, v{dst}
""")
    A(f"""
{E}_comp:
v_lshrrev_b32 v3, 5, v2
v_and_b32 v4, 31, v2
s_and_b32 s52, s29, 1
s_lshr_b32 s53, s29, 1
s_lshl_b32 s30, s52, 1
s_xor_b32 s30, s30, s53
s_mov_b32 s56, 0x3f803f80
s_lshl_b32 s31, s30, 1
v_bfe_u32 v5, v2, 1, 3
v_xor_b32 v5, v5, v3
v_xor_b32 v5, s31, v5
s_lshl_b32 s31, s52, 13
v_lshlrev_b32 v6, 7, v4
v_add_u32 v6, s31, v6
""")
    for pos in range(4):
        A(f"v_xor_b32 v7, {2*pos}, v5\nv_lshl_add_u32 v{16+pos}, v7, 4, v6\nv_add_u32 v{20+pos}, 98304, v{16+pos}")
    A("""
v_bfe_u32 v5, v2, 2, 2
v_lshl_add_u32 v6, v3, 3, v5
v_lshlrev_b32 v6, 8, v6
v_bfe_u32 v7, v2, 1, 1
v_lshl_add_u32 v6, v7, 3, v6
s_lshr_b32 s31, s53, 1
s_lshl_b32 s31, s31, 14
s_add_u32 s31, s31, 16384
v_add_u32 v6, s31, v6
v_bfe_u32 v7, v2, 4, 1
v_and_b32 v8, 1, v2
v_lshl_add_u32 v7, v7, 1, v8
s_and_b32 s55, s53, 1
s_lshl_b32 s31, s55, 3
v_add_u32 v7, s31, v7
v_lshlrev_b32 v5, 2, v5
v_xor_b32 v7, v7, v5
v_lshl_add_u32 v6, v7, 4, v6
v_xor_b32 v7, 64, v6
""")
    for pos in range(4):
        A(f"s_xor_b32 s31, s30, {pos}\ns_lshl_b32 s31, s31, 12")
        for t in range(2):
            A(f"v_add_u32 v{24+pos*2+t}, s31, v{6+t}\nv_add_u32 v{32+pos*2+t}, 98304, v{24+pos*2+t}")
    A("""
v_and_b32 v5, 15, v2
v_bfe_u32 v6, v2, 4, 1
v_cmp_eq_u32 vcc, v5, v6
v_mov_b32 v5, s56
""")
    for i in range(4): A(f"v_cndmask_b32 v{88+i}, 0, v5, vcc")
    A(f"""
s_lshl_b32 s31, s52, 8
v_lshl_add_u32 v48, v3, 4, s31
s_add_u32 s31, s31, {XS}
v_lshl_add_u32 v9, v4, 2, s31
v_add_u32 v12, {RB - XS}, v9
s_lshl_b32 s33, s29, 11
v_lshl_add_u32 v7, v2, 4, s33
s_lshl_b32 s33, s53, 12
v_lshl_add_u32 v8, v3, 11, s33
v_bfe_u32 v5, v2, 4, 1
v_lshl_add_u32 v8, v5, 4, v8
v_bfe_u32 v5, v2, 2, 2
v_lshl_add_u32 v8, v5, 8, v8
v_and_b32 v5, 3, v2
v_lshl_add_u32 v8, v5, 2, v8
v_lshlrev_b32 v5, 4, v2
s_waitcnt lgkmcnt(0)
s_mov_b32 s44, s12
s_mov_b32 s45, s13
s_mov_b32 s48, s64
s_mov_b32 s49, s65
s_mov_b32 s64, s66
s_mov_b32 s65, s67
s_mov_b32 s67, 0x20000
s_cmp_eq_u32 s29, 0
s_cselect_b32 s66, 256, 0
s_cselect_b32 s62, {WS_BYTES}, 0
s_mov_b32 s60, s12
s_mov_b32 s61, s13
s_mov_b32 s63, 0x20000
s_mul_i32 s31, s2, 1280
s_add_u32 s31, s31, {FL2}
v_mov_b32 v92, 0
v_mov_b32 v93, 0
v_mov_b32 v94, 0
v_mov_b32 v95, 0
v_mov_b32 v49, 1
buffer_store_dwordx4 v[92:95], v5, s[60:63], s31 offen sc1
s_mov_b64 exec, 0xffff
buffer_store_dwordx4 v[92:95], v5, s[60:63], s31 offen offset:1024 sc1
s_mov_b64 exec, -1
""")
    A(f"""
s_lshl_b32 s39, s14, 2
s_lshl_b32 s31, s52, 1
s_add_u32 s39, s39, s31
s_lshr_b32 s30, s39, 1
s_mov_b32 s32, s12
s_mov_b32 s33, s13
s_mov_b32 s34, 0
s_mov_b32 s35, 0x20000
s_mov_b32 s8, 1.0
s_cmp_ge_u32 s29, 4
s_cbranch_scc1 {E}_ch
s_add_u32 s54, s17, s55
s_cmp_lt_u32 s54, 10
s_cselect_b32 s8, {f32bits(QSCALE)}, s8
s_cselect_b32 s31, 0, 10
s_cselect_b32 s10, 0, 4
s_cmp_ge_u32 s54, 20
s_cselect_b32 s31, 20, s31
s_cselect_b32 s10, 8, s10
s_cselect_b32 s9, 1, 0
s_sub_u32 s31, s54, s31
s_lshl_b32 s6, s31, 12
s_add_u32 s10, s10, s6
s_lshl_b32 s30, s30, 7
s_add_u32 s10, s10, s30
s_add_u32 s10, s10, {FQ}
s_mul_i32 s4, s39, {TS}
s_lshl_b32 s5, s54, 12
s_lshl_b32 s6, s31, 10
s_add_u32 s6, s6, {VOFF}
s_cmp_eq_u32 s9, 1
s_cselect_b32 s5, s6, s5
s_add_u32 s4, s4, s5
s_add_u32 s4, s4, {QF}
s_cmp_eq_u32 s9, 1
s_mov_b32 s5, {TS}
s_cselect_b32 s5, {2*SV}, s5
s_add_u32 s5, s5, s4
s_add_u32 s6, s4, {TS}
s_add_u32 s7, s5, {TS}
s_cmp_ge_u32 s54, 30
s_cselect_b32 s9, 3, s9
s_branch {E}_cj
{E}_ch:
s_add_u32 s54, s19, s55
s_mul_i32 s10, s30, 27
s_add_u32 s10, s10, s54
s_lshl_b32 s10, s10, 7
s_lshl_b32 s31, s54, 2
s_add_u32 s10, s10, {FH}
s_mul_i32 s4, s39, 108
s_add_u32 s4, s4, s31
s_lshl_b32 s4, s4, 10
s_add_u32 s4, s4, {HF}
s_add_u32 s5, s4, {108*1024}
s_mov_b32 s6, 0
s_mov_b32 s7, 0
s_cmp_lt_u32 s55, s18
s_cselect_b32 s9, 2, 3
s_cselect_b32 s34, {WS_BYTES}, 0
{E}_cj:
""")
    head_scalars()
    A(f"""
s_lshr_b32 s11, s15, 1
s_add_u32 s15, s15, s29
s_mul_i32 s20, s15, {TS}
s_add_u32 s20, s20, s16
s_add_u32 s18, s20, s17
s_add_u32 s21, s16, s19
s_add_u32 s21, s21, 40960
s_mul_i32 s60, s15, 40960
s_mul_i32 s61, s14, 1280
s_add_u32 s60, s60, s61
s_add_u32 s60, s60, {OF}
s_sub_u32 s3, s60, 3072
s_lshl_b32 s61, s15, {12 - LF}
s_lshr_b32 s27, s14, {LF}
s_lshl_b32 s27, s27, 7
s_add_u32 s61, s61, s27
s_and_b32 s27, s14, {(1 << LF) - 1}
s_lshl_b32 s27, s27, 2
s_add_u32 s61, s61, s27
s_add_u32 s61, s61, {FL2}
s_lshr_b32 s50, s40, 1
s_lshl_b32 s50, s50, 3
s_and_b32 s51, s41, 7
s_add_u32 s50, s50, s51
s_lshl_b32 s50, s50, 1
s_bfe_u32 s51, s41, 0x10003
s_lshr_b32 s52, s29, 2
s_xor_b32 s53, s51, s52
s_add_u32 s50, s50, s53
s_mul_i32 s54, s52, {P['bq']}
s_xor_b32 s54, s54, s29
s_and_b32 s54, s54, 3
s_lshl_b32 s56, s53, 2
s_add_u32 s56, s56, s54
s_lshl_b32 s56, s56, 3
s_and_b32 s55, s40, 1
s_lshl_b32 s55, s55, 1
s_lshr_b32 s58, s41, 4
s_add_u32 s55, s55, s58
s_mul_i32 s55, s55, 320
s_lshl_b32 s58, s51, 8
s_add_u32 s55, s55, s58
s_lshl_b32 s58, s54, 4
s_add_u32 s55, s55, s58
s_mul_i32 s57, s50, 40960
s_add_u32 s55, s55, s57
s_mul_i32 s59, s54, 10240
s_add_u32 s57, s57, s59
s_add_u32 s57, s57, {OF}
s_mul_i32 s58, s54, 30720
s_add_u32 s58, s58, {WO}
s_mul_i32 s59, s54, 5120
s_add_u32 s59, s59, {PR}
s_lshl_b32 s53, s51, 7
s_sub_u32 s53, 64, s53
s_mov_b32 s50, 2621440
s_mov_b32 s51, 0x20000
""")
    poll_addr(50, 30, 31)
    A(f"""
v_cmp_gt_u32 s[22:23], 20, v4
v_cmp_gt_u32 s[24:25], 32, v2
s_cmp_eq_u32 s9, 1
s_cbranch_scc1 {E}_vloop
""")
    FB = [56, 72]
    def acc(ct, tt): return 96 + (ct * 2 + tt) * 16
    class Q:
        def __init__(s): s.q = []
        def op(s, tag, txt): A(txt); s.q.append(tag)
        def need(s, *tags):
            idx = max([i for i, t in enumerate(s.q) if t in tags], default=-1)
            if idx >= 0:
                A(f"s_waitcnt lgkmcnt({len(s.q) - 1 - idx})"); s.q = s.q[idx + 1:]
    def rd(L, p, i):
        s, pos = p >> 2, p & 3
        slot = s % 3; b = FB[p & 1]
        xa = (20 if slot == 2 else 16) + pos
        wa = (32 if slot == 2 else 24) + pos * 2
        off = 49152 if slot == 1 else 0
        L.op((p, i), [f"ds_read_b128 v[{b}:{b+3}], v{xa} offset:{off}",
                      f"ds_read_b64_tr_b16 v[{b+8}:{b+9}], v{wa} offset:{off}",
                      f"ds_read_b64_tr_b16 v[{b+10}:{b+11}], v{wa} offset:{off+1024}",
                      f"ds_read_b128 v[{b+4}:{b+7}], v{xa} offset:{off+4096}",
                      f"ds_read_b64_tr_b16 v[{b+12}:{b+13}], v{wa+1} offset:{off}",
                      f"ds_read_b64_tr_b16 v[{b+14}:{b+15}], v{wa+1} offset:{off+1024}"][i])
    def prep():
        o = []
        for t in range(2):
            c = 10 + t; h = 56 + 4 * t
            o += f"""v_cvt_pk_bf16_f32 v{h+2}, 0, v{c}
v_cvt_pk_bf16_f32 v{64+2*t}, -v{160+t}, -v{160+t}
v_sub_f32 v{h+2}, v{c}, v{h+2}
v_cvt_pk_bf16_f32 v{65+2*t}, -v{160+t}, 0
v_cvt_pk_bf16_f32 v{h+3}, 0, v{h+2}
v_cvt_pk_bf16_f32 v{h}, v{c}, v{h+2}
v_sub_f32 v{h+3}, v{h+2}, v{h+3}
v_cvt_pk_bf16_f32 v{h+1}, v{h+3}, 0""".split("\n")
        return o
    def loop(vmode):
        L = Q()
        A("s_barrier")
        MK("c0")
        for i in range(6): rd(L, 0, i)
        for p in range(40):
            s, pos = p >> 2, p & 3
            b = FB[p & 1]
            bar = pos == 3 and s < 9
            sched = [[], [], [], []] if p == 39 else [[0, 1], [2, 3], [4, 5], []]
            if bar:
                L.need(*[(p, i) for i in range(6)])
                A("s_barrier")
            for j, (ct, tt) in enumerate(((0, 0), (0, 1), (1, 1), (1, 0))):
                L.need(*[(p, i) for i in ([0, 1, 2], [3], [4, 5], [])[j]])
                a = acc(ct, tt)
                c = "0" if p == 0 else vr(a, 16)
                w, x = vr(b + 8 + 4 * ct, 4), vr(b + 4 * tt, 4)
                if vmode: A(f"v_mfma_f32_32x32x16_bf16 {vr(a,16)}, {x}, {w}, {c}")
                else: A(f"v_mfma_f32_32x32x16_bf16 {vr(a,16)}, {w}, {x}, {c}")
                for i in sched[j]: rd(L, p + 1, i)
                if pos < 2 and j in (1, 3):
                    ct2 = j >> 1
                    c = "0" if p == 0 else vr(40 + 4 * ct2, 4)
                    A(f"v_mfma_f32_16x16x32_bf16 {vr(40+4*ct2,4)}, {vr(b+8+4*ct2,4)}, v[88:91], {c}")
                if p == P["cntp"] and j == 0 and not vmode_has_no_w0(vmode):
                    A(f"s_waitcnt vmcnt(0)\ns_mov_b64 exec, 1\nbuffer_atomic_add v49, off, s[64:67], 0 offset:{CNT}\ns_mov_b64 exec, -1")
                if p == 38 and j == 0:
                    L.op("csw", f"ds_write_b128 v7, v[40:43] offset:{CS}"); L.op("csw", f"ds_write_b128 v7, v[44:47] offset:{CS + 1024}")
                if p == 38 and j == 3:
                    L.need("csw"); A("s_barrier")
                    L.op("st", f"ds_read_b32 v10, v8 offset:{CS}"); L.op("st", f"ds_read_b32 v11, v8 offset:{CS + 1024}")
                    L.op("st", "ds_read2_b32 v[160:161], v9 offset0:0 offset1:32"); L.op("st", "ds_read2_b32 v[162:163], v12 offset0:0 offset1:32")
                if p == 39 and j == 1: L.need("st")
                if p == 39 and j in (1, 2):
                    for o in prep()[8 * (j - 1): 8 * j]: A(o)
        A("s_barrier")
        MK("cA")
        for (ct, tt) in ((0, 0), (0, 1), (1, 1), (1, 0)):
            a = acc(ct, tt); w, x = vr(56 + 4 * ct, 2), vr(64 + 2 * tt, 2)
            if vmode: A(f"v_mfma_f32_32x32x8_bf16 {vr(a,16)}, {x}, {w}, {vr(a,16)}")
            else: A(f"v_mfma_f32_32x32x8_bf16 {vr(a,16)}, {w}, {x}, {vr(a,16)}")
    vmode_has_no_w0 = lambda vm: False
    order = ((0, 0), (0, 1), (1, 1), (1, 0))
    loop(False)
    A(f"""
s_cmp_eq_u32 s9, 0
s_cbranch_scc1 {E}_qk
s_cmp_eq_u32 s9, 3
s_cbranch_scc1 {E}_att
""")
    HP = {(0, 0): 104, (0, 1): 112, (1, 1): 144, (1, 0): 152}
    for (ct, tt) in order:
        a = acc(ct, tt); d = HP[(ct, tt)]
        sel = "op_sel_hi:[1,0]" if tt == 0 else "op_sel:[0,1] op_sel_hi:[1,1]"
        for k in range(8): A(f"v_pk_mul_f32 {vr(a+2*k,2)}, {vr(a+2*k,2)}, v[162:163] {sel}")
        for k in (range(7, -1, -1) if (ct, tt) == (0, 0) else range(8)): A(f"v_cvt_pk_bf16_f32 v{d+k}, v{a+2*k}, v{a+2*k+1}")
        for k in range(8): A(f"v_pk_max_i16 v{d+k}, v{d+k}, 0")
    A(f"s_branch {E}_att")
    A(f"""
{E}_qk:
s_setprio {P['eprio']}
v_mul_f32 v162, s8, v162
v_mul_f32 v163, s8, v163
""")
    for (ct, tt) in order:
        a = acc(ct, tt)
        sel = "op_sel_hi:[1,0]" if tt == 0 else "op_sel:[0,1] op_sel_hi:[1,1]"
        for k in range(8): A(f"v_pk_mul_f32 {vr(a+2*k,2)}, {vr(a+2*k,2)}, v[162:163] {sel}")
        for k in range(8): A(f"v_cvt_pk_bf16_f32 v{a+k}, v{a+2*k}, v{a+2*k+1}")
        for j in range(2): A(f"buffer_store_dwordx4 {vr(a+4*j,4)}, v5, s[44:47], s{4+tt} offen offset:{(ct*2+j)*1024}{ST}")
    A(f"s_branch {E}_pub")
    A(f"{E}_vloop:")
    A(f"""
v_and_b32 v1, 19, v2
v_bfe_u32 v6, v2, 2, 1
v_lshl_add_u32 v1, v6, 3, v1
v_bfe_u32 v6, v2, 3, 1
v_lshl_add_u32 v1, v6, 2, v1
v_mul_u32_u24 v6, {SV}, v3
v_lshl_add_u32 v51, v1, 4, v6
""")
    loop(True)
    A(f"s_setprio {P['eprio']}")
    for tt in range(2):
        for q in range(4):
            A(f"ds_read_b128 {vr(16+16*tt+4*q,4)}, v48 offset:{RB + tt*128 + q*32}")
    for n, (ct, tt) in enumerate(order):
        a = acc(ct, tt)
        if n < 2: A(f"s_waitcnt lgkmcnt({4 - 4*n})")
        for k in range(8): A(f"v_pk_mul_f32 {vr(a+2*k,2)}, {vr(a+2*k,2)}, {vr(16+16*tt+2*k,2)}")
        for k in range(8): A(f"v_cvt_pk_bf16_f32 v{a+k}, v{a+2*k}, v{a+2*k+1}")
        for j in range(2): A(f"buffer_store_dwordx4 {vr(a+4*j,4)}, v51, s[44:47], s{4+2*tt+j} offen offset:{ct*512}{ST}")
    QM, QR, KM, KR, V0, V1 = 8, 12, 16, 20, 24, 28
    S = [32, 48]; O = 64; CB = 80
    FL = 120
    KB = [(KM, KR), (124, 128)]; VB = [V0, 132]
    def vsetup():
        A(f"""
v_and_b32 v{FL+1}, 3, v2
v_lshlrev_b32 v{FL+1}, 2, v{FL+1}
s_lshl_b32 s26, s29, 2
s_add_u32 s26, s26, 64
v_mov_b32 v{FL+2}, s26
v_mul_u32_u24 v7, 320, v3
v_lshl_add_u32 v7, v4, 4, v7
v_add_u32 v7, 5120, v7
v_lshlrev_b32 v6, 4, v4
v_mov_b32 v1, 0x3f803f80
v_cmp_eq_u32 vcc, 20, v4
v_mov_b32 v14, {RLY}
""")
        for i in range(8): A(f"v_cndmask_b32 v{V0+i}, 0, v1, vcc")
    A(f"{E}_pub:")
    MK("cS")
    vsetup()
    A(f"""
s_waitcnt vmcnt(0)
s_mov_b64 exec, 1
buffer_store_dword v49, off, s[44:47], s10 sc1
s_mov_b64 exec, -1
""")
    MK("cF")
    A(f"s_branch {E}_at2\n{E}_att:")
    vsetup()
    need7 = (1 << (2 * G0)) - 1
    A(f"""
s_cmp_lg_u32 s29, 7
s_cbranch_scc1 {E}_at2
s_mov_b32 s26, {P['spin']}
{"s_sleep " + str(P['qdel']) if P['qdel'] else ""}
{E}_qp:
buffer_load_dwordx4 v[52:55], v50, s[44:47], 0 offen sc1
s_waitcnt vmcnt(0)
v_min_u32 v53, v53, v54
v_cmp_ne_u32 s[30:31], 0, v52
v_cmp_ne_u32 s[36:37], 0, v53
s_and_b32 s30, s30, s31
s_and_b32 s36, s36, s37
s_lshr_b32 s30, s30, s11
s_mov_b32 s37, s36
s_mul_i32 s31, s11, {P['rot']}
s_lshr_b64 s[36:37], s[36:37], s31
s_sub_u32 s26, s26, 1
s_cselect_b32 s30, -1, s30
s_cselect_b32 s36, -1, s36
s_cselect_b32 s26, 0, s26
v_mov_b32 v52, s30
v_mov_b32 v53, s36
ds_write_b64 v14, v[52:53]
s_and_b32 s30, s30, 15
s_and_b32 s36, s36, {need7}
s_lshl_b32 s36, s36, 4
s_or_b32 s30, s30, s36
s_cmp_eq_u32 s30, {(need7 << 4) | 15}
s_cbranch_scc1 {E}_at2
s_sleep {P['qsl']}
s_branch {E}_qp
{E}_at2:
s_lshr_b32 s26, s29, 1
{E}_qw:
ds_read_b64 v[52:53], v14
s_waitcnt lgkmcnt(0)
v_readfirstlane_b32 s30, v52
v_readfirstlane_b32 s31, v53
s_lshr_b32 s30, s30, s26
s_and_b32 s30, s30, s31
s_bitcmp1_b32 s30, 0
s_cbranch_scc1 {E}_qg
s_sleep 1
s_branch {E}_qw
{E}_qg:
""")
    MK("cQ")
    A(f"buffer_load_dwordx4 {vr(QM,4)}, v5, s[44:47], s20 offen{SC}")
    A(f"buffer_load_dwordx2 {vr(QR,2)}, v6, s[44:47], s18 offen{SC}")
    A(f"buffer_load_dwordx4 {vr(KM,4)}, v5, s[44:47], s21 offen{SC}")
    A("v_lshlrev_b32 v15, 3, v4")
    for i in range(8): A(f"v_cndmask_b32 v{VB[1]+i}, 0, v1, vcc")
    for i in range(4): A(f"v_mov_b32 v{164+i}, -1")
    A("v_add_u32 v6, 4096, v15")
    A("s_waitcnt vmcnt(0)\ns_barrier")
    MK("cB")
    def kread(o, km=None, kr=None):
        if km is None: km, kr = KB[o & 1]
        g, i = o >> 2, o & 3
        A(f"ds_read_b128 {vr(km,4)}, v5 offset:{g*10240+i*1024}\nds_read_b64 {vr(kr,2)}, v6 offset:{g*10240+i*256}")
    def vread(o):
        g, i = o >> 2, o & 3; b = g * 10240 + i * 1280
        A(f"s_mov_b64 exec, s[22:23]\nds_read_b128 {vr(VB[o&1],4)}, v7 offset:{b}\nds_read_b128 {vr(VB[o&1]+4,4)}, v7 offset:{b+640}\ns_mov_b64 exec, -1")
    A(f"ds_read_b64 {vr(KR,2)}, v6")
    for t in range(1, NP): kread(t, CB + 4 * t, 96 + 2 * t)
    A(f"v_cndmask_b32 v{QR}, 0, v{QR}, s[24:25]\nv_cndmask_b32 v{QR+1}, 0, v{QR+1}, s[24:25]")
    PD = [S[0], S[1], O, S[0]]
    def pmax(t):
        for k in range(8):
            if t == 0 and k == 0: A(f"v_max_f32 v1, v{PD[t]}, v{PD[t]+1}")
            else: A(f"v_max3_f32 v1, v1, v{PD[t]+2*k}, v{PD[t]+2*k+1}")
    for t in range(NP):
        if t == 3: pmax(0)
        A(f"s_waitcnt lgkmcnt({2*(NP-1-t)})")
        km, kr = (KM, KR) if t == 0 else (CB + 4 * t, 96 + 2 * t)
        A(f"v_mfma_f32_32x32x16_bf16 {vr(PD[t],16)}, {vr(km,4)}, {vr(QM,4)}, 0")
        A(f"v_mfma_f32_32x32x8_bf16 {vr(PD[t],16)}, {vr(kr,2)}, {vr(QR,2)}, {vr(PD[t],16)}")
    for t in range(1, NP): pmax(t)
    A(f"""
v_mov_b32 v14, v1
s_mov_b32 s26, {f32bits(P['offs'])}
v_permlane32_swap_b32 v1, v14
v_max_f32 v1, v1, v14
v_add_f32 v1, s26, v1
""")
    for i in range(16): A(f"v_sub_f32 v{CB+i}, 0, v1")
    for i in range(16): A(f"v_mov_b32 v{O+i}, 0")
    def M1(t): A(f"v_mfma_f32_32x32x16_bf16 {vr(S[t&1],16)}, {vr(KB[t&1][0],4)}, {vr(QM,4)}, {vr(CB,16)}")
    def M2(t): A(f"v_mfma_f32_32x32x8_bf16 {vr(S[t&1],16)}, {vr(KB[t&1][1],2)}, {vr(QR,2)}, {vr(S[t&1],16)}")
    def Ex(t, *idx):
        for i in idx: A(f"v_exp_f32 v{S[t&1]+i}, v{S[t&1]+i}")
    def Cv(t, *idx):
        for k in idx:
            d = S[t & 1] + (k & 3) + 8 * (k >> 2)
            A(f"v_cvt_pk_bf16_f32 v{d}, v{S[t&1]+2*k}, v{S[t&1]+2*k+1}")
    MK("c1")
    A("s_waitcnt lgkmcnt(0)")
    kread(1); vread(0); M1(0); M2(0); kread(2); vread(1)
    W = 6
    Ex(0, *range(P["npre"]))
    def tile(t, hook=None):
        pr = P["prios"]
        if pr and (t == 0 or pr[t % len(pr)] != pr[(t - 1) % len(pr)]): A(f"s_setprio {pr[t % len(pr)]}")
        for tok in P["order"].split():
            if tok == "M1": A(f"s_waitcnt lgkmcnt({W})"); M1(t + 1)
            elif tok == "M2": M2(t + 1)
            elif tok == "M3": A(f"s_waitcnt lgkmcnt({W})\nv_mfma_f32_32x32x16_bf16 {vr(O,16)}, {vr(VB[t&1],4)}, {vr(S[t&1],4)}, {vr(O,16)}")
            elif tok == "M4": A(f"v_mfma_f32_32x32x16_bf16 {vr(O,16)}, {vr(VB[t&1]+4,4)}, {vr(S[t&1]+8,4)}, {vr(O,16)}")
            elif tok == "K":
                if hook: hook(t, 0)
                kread(t + 3)
                if hook: hook(t, 1)
            elif tok == "V":
                vread(t + 2)
                if hook: hook(t, 2)
            elif tok[0] == "E": Ex(t, int(tok[1:]))
            elif tok[0] == "N": Ex(t + 1, int(tok[1:]))
            elif tok[0] == "C": Cv(t, int(tok[1:]))
            else: raise ValueError(tok)
    adv = "v_add_u32 v5, 20480, v5\nv_add_u32 v6, 20480, v6\nv_add_u32 v7, 20480, v7"
    npoll = [0]
    def check(thr):
        k = npoll[0]; npoll[0] += 1
        A(f"""
s_waitcnt lgkmcnt(2)
v_cmp_gt_u32 vcc, {thr}, v{FL}
s_cbranch_vccz {E}_ok{k}
{E}_poll{k}:
s_sleep 1
ds_read_b32 v{FL}, v{FL+1}
s_waitcnt lgkmcnt(0)
v_cmp_gt_u32 vcc, {thr}, v{FL}
s_cbranch_vccnz {E}_poll{k}
{E}_ok{k}:
""")
    rdflag = f"ds_read_b32 v{FL}, v{FL+1}"
    hstores = [(ct, tt, j) for (ct, tt) in order for j in range(2)]
    hflag = f"s_waitcnt vmcnt(0)\ns_mov_b64 exec, 1\nbuffer_store_dword v{FL+2}, off, s[32:35], s10 sc1\ns_mov_b64 exec, -1"
    def hook0(t, ph):
        if ph == 1 and (t in (4, 7) or t == 0): A(rdflag)
        if ph == 0 and t == 1: check(F_G1)
        if ph == 0 and t == 5: check(F_G5)
        if ph in (1, 2):
            mine = [n for n in range(8) if P["hst"][n] == t]
            for n in mine[ph - 1::2] if not P["noh"] else []:
                ct, tt, j = hstores[n]
                A(f"buffer_store_dwordx4 {vr(HP[(ct,tt)]+4*j,4)}, v5, s[32:35], s{4+tt} offen offset:{(ct*2+j)*1024}{ST}")
        if ph == 1 and t == P["ofp"] and not P["noof"]:
            A(f"buffer_store_dwordx4 v[164:167], v5, s[44:47], s60 offen sc1\nbuffer_store_dwordx2 v[164:165], v6, s[44:47], s3 offen sc1")
        if ph == 2 and t == 3: MK("t3")
        if ph == 2 and P["hfl"] == (0, t): MK("t7"); A(hflag); MK("cH")
    for t in range(8): tile(t, hook0)
    A(adv)
    A(f"s_mov_b32 s27, 1\ns_mov_b32 s28, 0\nv_mov_b32 v{FL+3}, 1\n{E}_loop:")
    def hook1(t, ph):
        if ph == 0 and t == 0: check("s28")
        if ph == 1 and t == 0: A(f"s_mov_b32 s28, {F_ALL}")
        if ph == 1 and t in (0, 4): A(f"v_add_u32 v{FL+3}, 1, v{FL+3}\nds_write_b32 v{FL+2}, v{FL+3}")
        if ph == 1 and t == 7: A(rdflag)
        if ph == 2 and P["hfl"][0] > 0 and P["hfl"][1] == t:
            A(f"s_cmp_lg_u32 s27, {P['hfl'][0]}\ns_cbranch_scc1 {E}_nf\n{hflag}\n{E}_nf:")
        if ph == 1 and t == P["hint"][1]:
            A(f"""
s_cmp_lg_u32 s27, {P["hint"][0]}
s_cbranch_scc1 {E}_nh
s_waitcnt vmcnt(0)
s_mov_b64 exec, 1
buffer_store_dword v{FL+2}, off, s[44:47], s61{P['hsc']}
s_mov_b64 exec, -1
{E}_nh:
""")
    for t in range(8): tile(t, hook1)
    A(adv)
    A(f"s_add_u32 s27, s27, 1\ns_cmp_lt_u32 s27, 8\ns_cbranch_scc1 {E}_loop")
    MK("c3")
    A(f"v_mov_b32 v{FL+3}, 16\nds_write_b32 v{FL+2}, v{FL+3}\nv_mov_b32 v1, 0\ns_movk_i32 s26, 0x207")
    for i in range(12): A(f"v_fma_f32 v1, v{O+i}, 0, v1")
    A(f"""
v_cmp_class_f32 vcc, v1, s26
s_cbranch_vccnz {E}_fb
{E}_epi:
v_mov_b32 v10, 0
ds_read_b64 v[12:13], v10 offset:{MSK}
v_mov_b32 v14, v{O+8}
v_mov_b32 v15, v{O+8}
v_lshlrev_b32 v5, 4, v2
v_permlane32_swap_b32 v14, v15
v_rcp_f32 v14, v15
v_lshlrev_b32 v6, 3, v4
v_mov_b32 v11, v{FL+1}
""")
    for k in range(6): A(f"v_pk_mul_f32 {vr(O+2*k,2)}, {vr(O+2*k,2)}, v[14:15] op_sel_hi:[1,0]")
    for k in range(6): A(f"v_cvt_pk_bf16_f32 v{O+k}, v{O+2*k}, v{O+2*k+1}")
    OSC = P["osc"]; LSC = P["lsc"]
    VW, VR, OR_, OA, SP = 6, 7, 8, 9, 15
    A(f"""
buffer_store_dwordx4 {vr(O,4)}, v5, s[44:47], s60 offen{OSC}
s_mov_b64 exec, s[24:25]
buffer_store_dwordx2 {vr(O+4,2)}, v6, s[44:47], s60 offen offset:1024{OSC}
s_mov_b64 exec, -1
s_setprio 0
""")
    MK("c4")
    A(f"""
v_mul_u32_u24 v14, 2560, v3
s_add_u32 s28, s57, 5120
s_waitcnt lgkmcnt(0)
v_readfirstlane_b32 s30, v12
v_readfirstlane_b32 s31, v13
v_lshl_add_u32 v{OR_}, v4, 3, v14
s_lshr_b64 s[30:31], s[30:31], s56
s_mov_b32 s63, s30
""")
    OB = 16; AC = 56
    def load(k):
        if k < 8: A(f"buffer_load_dwordx4 {vr(OB+4*k,4)}, v5, s[44:47], s{57 if k < 4 else 28} offen offset:{1280*(k&3)}{LSC}")
        else:
            for e in range(2): A(f"buffer_load_dwordx2 {vr(OB+4*k+2*e,2)}, v{OR_}, s[44:47], s{57 if k == 8 else 28} offen offset:{1024+1280*e}{LSC}")
    for k in range(8):
        A(f"s_mov_b32 s64, {k}\ns_bitcmp1_b32 s63, {k}\ns_cbranch_scc0 {E}_su")
        load(k)
    load(8); load(9)
    A(f"s_mov_b32 s64, 9\n{E}_su:")
    def issue_rest(T):
        A(f"s_cmp_eq_u32 s64, 9\ns_cbranch_scc1 {E}_id{T}")
        for k in range(8):
            L = f"{E}_is{T}{k}"
            A(f"""
s_cmp_gt_u32 s64, {k}
s_cbranch_scc1 {L}n
s_bitcmp1_b32 s63, {k}
s_cbranch_scc1 {L}g
{L}p:
ds_read_b64 v[0:1], v10 offset:{MSK}
s_waitcnt lgkmcnt(0)
v_readfirstlane_b32 s30, v0
v_readfirstlane_b32 s31, v1
s_lshr_b64 s[30:31], s[30:31], s56
s_mov_b32 s63, s30
s_bitcmp1_b32 s30, {k}
s_cbranch_scc1 {L}g
s_sleep 1
s_branch {L}p
{L}g:
""")
            load(k)
            A(f"{L}n:")
        load(8); load(9)
        A(f"{E}_id{T}:"); MK("c6")
    A(f"""
ds_read_b32 v1, v11
v_mul_u32_u24 v12, 1280, v4
v_bfe_u32 v13, v2, 2, 2
v_and_b32 v7, 3, v2
v_lshl_add_u32 v{OA}, v3, 3, v12
v_lshlrev_b32 v13, 6, v13
v_lshl_add_u32 v13, v7, 3, v13
v_bfe_u32 v12, v2, 4, 1
v_lshl_add_u32 v13, v12, 5, v13
v_add_u32 v13, s58, v13
v_lshl_add_u32 v{VW}, v3, 8, v13
v_add_u32 v{VR}, v14, v13
s_sub_u32 s26, s54, 1
v_sub_u32 v14, s26, v2
v_and_b32 v14, 3, v14
s_lshl_b32 s26, s52, 4
s_add_u32 s26, s26, {SENT}
v_lshl_add_u32 v{SP}, v14, 2, s26
s_lshl_b32 s27, s54, 2
s_add_u32 s27, s27, s26
s_mov_b32 s62, {P['spin']}
v_add_u32 v12, s59, v5
s_lshl_b32 s30, s54, 2
v_mov_b32 v13, s30
""")
    nw_ = [0]
    def lwait(thr, ar=11):
        k = nw_[0]; nw_[0] += 1
        A(f"""
{E}_lw{k}:
s_waitcnt lgkmcnt(0)
v_cmp_gt_u32 vcc, {thr}, v1
s_cbranch_vccz {E}_lwd{k}
s_sleep {P['psl']}
ds_read_b32 v1, v{ar}
s_branch {E}_lw{k}
{E}_lwd{k}:
""")
    def perq4(tag, body):
        for q in range(4):
            if q < 3: A(f"s_cmp_lg_u32 s54, {q}\ns_cbranch_scc1 {E}_{tag}{q+1}")
            body(q)
            if q < 3: A(f"s_branch {E}_{tag}d\n{E}_{tag}{q+1}:")
        A(f"{E}_{tag}d:")
    lwait(F_WO)
    A(f"s_cmp_lg_u32 s52, 0\ns_cbranch_scc1 {E}_tB")
    for ty, nb in ((0, 3), (1, 2)):
        T = "AB"[ty]
        if ty: A(f"{E}_tB:")
        WB = AC + 16 * nb
        nbuf = min(10, (168 - WB) // (4 * nb))
        q = []
        def need(tag):
            idx = max([i for i, t in enumerate(q) if t == tag], default=-1)
            if idx >= 0:
                A(f"s_waitcnt lgkmcnt({min(len(q) - 1 - idx, 15)})"); del q[:idx + 1]
        later = lambda k: (7 - k + 4) if k < 8 else (2 if k == 8 else 0)
        def wr(k, lo=0, hi=99):
            b = WB + (k % nbuf) * 4 * nb
            for u in range(max(lo, 0), min(hi, nb)):
                if k < 8: a = VW; o1 = u * 10240 + k * 1280; o2 = o1 + 512
                else: a = VR; o1 = u * 10240 + (k - 8) * 5120 + 1024; o2 = o1 + 1280
                A(f"ds_read_b64_tr_b16 {vr(b+4*u,2)}, v{a} offset:{o1}"); q.append((k, u))
                A(f"ds_read_b64_tr_b16 {vr(b+4*u+2,2)}, v{a} offset:{o2}"); q.append((k, u))
        for k in range(nbuf): wr(k)
        if ty == 0:
            for j in range(4): A(f"s_sub_u32 s30, {j+3}, s54\ns_and_b32 s30, s30, 3\ns_mul_i32 s30, s30, 3072\ns_add_u32 s{32+j}, s30, s58\ns_add_u32 s{32+j}, s{32+j}, 20480")
            for r in range(3): A(f"s_sub_u32 s30, s54, {r+1}\ns_and_b32 s30, s30, 3\ns_mul_i32 s30, s30, 30720\ns_add_u32 s{36+r}, s30, {WO + 20480 + r*3072}")
        else:
            A(f"s_lshl_b32 s31, s54, 12\ns_add_u32 s31, s31, {FREE - 2048}")
            for j in range(4): A(f"s_sub_u32 s30, {j+3}, s54\ns_and_b32 s30, s30, 3\ns_lshl_b32 s{32+j}, s30, 11\ns_add_u32 s{32+j}, s{32+j}, s31\ns_cmp_eq_u32 s30, 0\ns_cselect_b32 s{32+j}, s59, s{32+j}")
            for r in range(3):
                A(f"s_sub_u32 s30, s54, {r+1}\ns_and_b32 s30, s30, 3\ns_mul_i32 s30, s30, {5120 if r == 0 else 4096}\ns_add_u32 s{36+r}, s30, {PR if r == 0 else FREE + (r-1)*2048}")
        for k in range(16 * nb): A(f"v_mov_b32 v{AC+k}, 0")
        issue_rest(T)
        A("ds_read_b32 v1, v13")
        lwait(F_FX, 13)
        q.clear()
        perq4(f"fx{T}", lambda qq: [A(f"ds_read_b128 {vr(AC+16*t+4*qq,4)}, v12 offset:{(2048 if ty == 0 else 0) + t*1024}") for t in range(nb)])
        A("s_waitcnt lgkmcnt(0)")
        for k in range(10):
            A(f"s_waitcnt vmcnt({later(k)})")
            o = OB + 4 * k
            A(f"""
{E}_ck{T}{k}:
v_max3_u32 v1, v{o}, v{o+1}, v{o+2}
v_max_u32 v1, v1, v{o+3}
v_cmp_eq_u32 vcc, -1, v1
s_cbranch_vccnz {E}_rt{T}{k}
{E}_bk{T}{k}:
""")
            b = WB + (k % nbuf) * 4 * nb
            nx = k + nbuf
            for u in range(nb):
                need((k, u))
                A(f"v_mfma_f32_32x32x16_bf16 {vr(AC+16*u,16)}, {vr(b+4*u,4)}, {vr(o,4)}, {vr(AC+16*u,16)}")
                if nx < 10 and u >= 1: wr(nx, u - 1, u)
            if nx < 10: wr(nx, nb - 1, nb)
        MK("c8")
        for j in range(4): A(f"v_add_u32 v{16+j}, s{32+j}, v5")
        for r in range(3): A(f"v_add_u32 v{20+r}, s{36+r}, v5")
        A("v_mov_b32 v13, s27\ns_mov_b32 s63, 7")
        for j in range(4):
            A(f"s_cmp_eq_u32 s54, {j}\ns_cbranch_scc1 {E}_ns{T}{j}")
            for t in range(nb): A(f"ds_write_b128 v{16+j}, {vr(AC+16*t+4*j,4)} offset:{t*1024}")
            A(f"{E}_ns{T}{j}:")
        A(f"""
s_waitcnt lgkmcnt(0)
ds_write_b32 v13, v13
{E}_sp{T}:
ds_read_b32 v1, v{SP}
s_waitcnt lgkmcnt(0)
v_cmp_ne_u32 vcc, 0, v1
s_and_b32 s30, vcc_lo, s63
""")
        for r in range(3):
            A(f"s_bitcmp1_b32 s30, {r}\ns_cbranch_scc0 {E}_nr{T}{r}")
            for t in range(nb): A(f"ds_read_b128 {vr(WB+4*(3*t+r),4)}, v{20+r} offset:{t*1024}")
            A(f"{E}_nr{T}{r}:")
        A(f"""
s_andn2_b32 s63, s63, s30
s_cbranch_scc1 {E}_sp{T}
s_waitcnt lgkmcnt(0)
""")
        MK("c9")
        def fin(qq):
            for t in range(nb):
                a = AC + 16 * t + 4 * qq; r = WB + 12 * t
                for k in range(4): A(f"v_add_f32 v{a+k}, v{a+k}, v{r+k}\nv_add_f32 v{r+4+k}, v{r+4+k}, v{r+8+k}")
                for k in range(4): A(f"v_add_f32 v{a+k}, v{a+k}, v{r+4+k}")
                A(f"v_cvt_pk_bf16_f32 v{a}, v{a}, v{a+1}\nv_cvt_pk_bf16_f32 v{a+1}, v{a+2}, v{a+3}")
                A(f"buffer_store_dwordx2 {vr(a,2)}, v{OA}, s[48:51], s55 offen")
                if t < nb - 1: A("s_add_u32 s55, s55, s53")
            A("s_endpgm")
        for qq in range(4):
            if qq < 3: A(f"s_cmp_lg_u32 s54, {qq}\ns_cbranch_scc1 {E}_fn{T}{qq+1}")
            fin(qq)
            if qq < 3: A(f"{E}_fn{T}{qq+1}:")
        for k in range(10):
            A(f"""
{E}_rt{T}{k}:
s_sub_u32 s62, s62, 1
s_cbranch_scc1 {E}_bk{T}{k}
""")
            if P["rtsl"]: A(f"s_sleep {P['rtsl']}")
            for kk in range(k, 10): load(kk)
            A(f"s_waitcnt vmcnt({later(k)})\ns_branch {E}_ck{T}{k}")
    A(f"""
{E}_fb:
s_waitcnt lgkmcnt(0)
v_lshlrev_b32 v5, 4, v2
v_lshlrev_b32 v6, 4, v4
v_mul_u32_u24 v7, {SV}, v3
v_lshl_add_u32 v7, v4, 4, v7
v_add_u32 v15, {2*SV}, v7
v_mov_b32 v1, 0xff800000
s_add_u32 s18, s16, 40960
s_mov_b32 s26, s18
s_mov_b32 s27, 64
{E}_fb1:
s_add_u32 s30, s26, s17
buffer_load_dwordx4 {vr(KM,4)}, v5, s[44:47], s26 offen{SC}
buffer_load_dwordx2 {vr(KR,2)}, v6, s[44:47], s30 offen{SC}
s_waitcnt vmcnt(0)
v_mfma_f32_32x32x16_bf16 {vr(S[0],16)}, {vr(KM,4)}, {vr(QM,4)}, 0
v_mfma_f32_32x32x8_bf16 {vr(S[0],16)}, {vr(KR,2)}, {vr(QR,2)}, {vr(S[0],16)}
""")
    for k in range(8): A(f"v_max3_f32 v1, v1, v{S[0]+2*k}, v{S[0]+2*k+1}")
    A(f"""
s_add_u32 s26, s26, {TS}
s_sub_u32 s27, s27, 1
s_cmp_lg_u32 s27, 0
s_cbranch_scc1 {E}_fb1
v_mov_b32 v14, v1
v_permlane32_swap_b32 v1, v14
v_max_f32 v1, v1, v14
""")
    for i in range(16): A(f"v_sub_f32 v{CB+i}, 0, v1\nv_mov_b32 v{O+i}, 0")
    A(f"""
s_mov_b32 s26, s18
s_mul_i32 s28, s14, 320
s_add_u32 s28, s28, {QF + VOFF}
s_mov_b32 s27, 64
{E}_fb2:
s_add_u32 s30, s26, s17
buffer_load_dwordx4 {vr(KM,4)}, v5, s[44:47], s26 offen{SC}
buffer_load_dwordx2 {vr(KR,2)}, v6, s[44:47], s30 offen{SC}
s_mov_b64 exec, s[22:23]
buffer_load_dwordx4 {vr(V0,4)}, v7, s[44:47], s28 offen{SC}
buffer_load_dwordx4 {vr(V1,4)}, v15, s[44:47], s28 offen{SC}
s_mov_b64 exec, -1
s_waitcnt vmcnt(0)
""")
    M1(0); M2(0)
    Ex(0, *range(16)); Cv(0, *range(8))
    A(f"""
v_mfma_f32_32x32x16_bf16 {vr(O,16)}, {vr(V0,4)}, {vr(S[0],4)}, {vr(O,16)}
v_mfma_f32_32x32x16_bf16 {vr(O,16)}, {vr(V1,4)}, {vr(S[0]+8,4)}, {vr(O,16)}
s_add_u32 s26, s26, {TS}
s_add_u32 s28, s28, {TS}
s_sub_u32 s27, s27, 1
s_cmp_lg_u32 s27, 0
s_cbranch_scc1 {E}_fb2
s_nop 15
s_branch {E}_epi
""")
    DK, DR, DV, DW = 60, 61, 62, 63
    A(f"{E}_ffn:")
    head_scalars()
    A(f"""
v_lshlrev_b32 v5, 4, v2
s_mul_i32 s20, s29, {TS}
s_add_u32 s20, s20, s16
s_add_u32 s20, s20, 40960
v_add_u32 v{DK}, s20, v5
s_add_u32 s20, s20, s17
v_lshrrev_b32 v6, 1, v2
v_and_b32 v7, 1, v2
v_lshlrev_b32 v7, 2, v7
v_lshl_add_u32 v6, v6, 4, v7
v_add_u32 v{DR}, s20, v6
s_lshl_b32 s17, s29, 10
s_lshl_b32 s18, s29, 8
s_mul_i32 s20, s14, 320
s_add_u32 s20, s20, {QF + VOFF}
s_lshl_b32 s21, s29, 6
s_lshl_b32 s22, s29, 4
s_add_u32 s22, s22, 256
s_lshr_b32 s11, s15, 1
s_mul_i32 s11, s11, {P['rot']}
""")
    PA = 64
    poll_addr(PA, 30, 31)
    def vaddr(dst, ci):
        A(f"""
v_mul_u32_u24 v8, 3277, v{ci}
v_lshrrev_b32 v8, 16, v8
v_mul_u32_u24 v9, 20, v8
v_sub_u32 v9, v{ci}, v9
v_lshrrev_b32 v10, 2, v8
v_and_b32 v8, 3, v8
v_mul_u32_u24 v10, {TS}, v10
v_mul_u32_u24 v8, {SV}, v8
v_lshl_add_u32 v9, v9, 4, s20
v_add3_u32 v{dst}, v8, v9, v10
""")
    A("v_add_u32 v6, s21, v2"); vaddr(DV, 6)
    A("v_lshrrev_b32 v6, 2, v2\nv_add_u32 v6, s22, v6"); vaddr(DW, 6)
    A(f"v_and_b32 v6, 3, v2\nv_lshl_add_u32 v{DW}, v6, 2, v{DW}")
    def dma(G):
        b = G * 10240
        if G == 0: A(f"s_cmp_eq_u32 s29, 0\ns_cbranch_scc1 {E}_d0")
        A(f"s_add_u32 m0, s17, {b}\nbuffer_load_dwordx4 v{DK}, s[44:47], s19 offen{P['dsc']} lds")
        if G == 0: A(f"{E}_d0:")
        A(f"s_add_u32 m0, s18, {b+4096}\nbuffer_load_dword v{DR}, s[44:47], s19 offen{P['dsc']} lds")
        A(f"s_add_u32 m0, s17, {b+5120}\nbuffer_load_dwordx4 v{DV}, s[44:47], s19 offen{P['dsc']} lds")
        A(f"s_add_u32 m0, s18, {b+9216}\nbuffer_load_dword v{DW}, s[44:47], s19 offen{P['dsc']} lds")
        if G < 15: A(f"s_add_u32 s19, s19, {4*TS}\ns_cmp_ge_u32 s19, {64*TS}\ns_cselect_b32 s21, {64*TS}, 0\ns_sub_u32 s19, s19, s21")
    WA, FX, FP, XA = 76, 79, 84, 85
    HA, WFA = 65, 66
    A(f"""
v_lshrrev_b32 v{FP}, {LF}, v2
v_and_b32 v16, {(1 << LF) - 1}, v2
v_lshlrev_b32 v{FP}, 7, v{FP}
v_lshl_add_u32 v{FP}, v16, 2, v{FP}
v_mov_b32 v16, {108*128}
s_lshr_b32 s14, s40, 1
s_lshl_b32 s14, s14, 3
s_and_b32 s24, s41, 7
s_add_u32 s14, s14, s24
s_lshl_b32 s56, s14, {13 - LF}
s_add_u32 s56, s56, {FL2}
s_mul_i32 s30, s14, {27*128}
s_add_u32 s30, s30, {FH}
v_min_u32 v{HA}, 26, v4
v_lshl_add_u32 v{HA}, v{HA}, 7, s30
s_lshl_b32 s14, s14, 1
s_bfe_u32 s25, s41, 0x10003
s_xor_b32 s15, s25, 1
s_add_u32 s15, s15, s14
s_add_u32 s14, s14, s25
s_and_b32 s27, s40, 1
s_lshl_b32 s27, s27, 1
s_lshr_b32 s16, s41, 4
s_add_u32 s27, s27, s16
s_mul_i32 s30, s27, 108
s_add_u32 s30, s30, s29
s_lshl_b32 s30, s30, 7
s_add_u32 s30, s30, {FW}
v_min_u32 v{WFA}, 26, v4
v_lshl_add_u32 v{WFA}, v{WFA}, 9, s30
v_mad_u32_u24 v{WFA}, v3, v16, v{WFA}
s_and_b32 s24, s41, 15
s_mul_i32 s24, s24, 27
s_lshr_b32 s24, s24, 4
s_mul_i32 s24, s24, {P['frot']}
s_add_u32 s20, s17, {HF}
s_mul_i32 s23, s29, 20480
s_mul_i32 s28, s27, 5120
s_add_u32 s23, s23, s28
s_add_u32 s23, s23, {W2F}
s_add_u32 s22, s20, {27*4096}
s_lshl_b32 s16, s24, 12
s_add_u32 s16, s16, s20
s_mul_i32 s26, s24, 81920
s_add_u32 s26, s26, s23
s_mul_i32 s30, s14, {108*1024}
s_mul_i32 s31, s15, {108*1024}
v_add_u32 v8, s30, v5
v_add_u32 v9, s31, v5
s_lshl_b32 s30, s25, 12
s_lshl_b32 s31, s25, 11
s_add_u32 s31, s31, 1024
v_add_u32 v10, s30, v5
v_add_u32 v11, s31, v5
v_add_u32 v12, 2048, v5
v_mov_b32 v7, s29
v_lshlrev_b32 v7, 2, v7
v_and_b32 v1, 7, v2
v_lshlrev_b32 v1, 2, v1
v_and_b32 v15, 12, v1
v_mul_u32_u24 v{XA}, 1280, v4
v_lshl_add_u32 v{XA}, v3, 3, v{XA}
s_mul_i32 s52, s27, 320
s_lshl_b32 s53, s29, 4
s_add_u32 s53, s53, s52
s_mul_i32 s54, s14, 40960
s_mul_i32 s55, s15, 40960
s_add_u32 s54, s54, s53
s_add_u32 s55, s55, s53
s_lshl_b32 s57, s25, 8
s_lshl_b32 s58, s25, 7
s_add_u32 s52, s52, s57
s_sub_u32 s59, 64, s58
s_add_u32 s58, s58, 64
s_add_u32 s30, s55, s57
s_add_u32 s31, s55, s58
s_add_u32 s32, s54, s57
s_add_u32 s33, s54, s58
s_add_u32 s34, s54, 128
s_sub_u32 s54, s29, 1
s_add_u32 s53, s59, 204800
s_mul_i32 s53, s53, s54
s_add_u32 s52, s52, s53
s_mul_i32 s53, s54, 40960
s_add_u32 s53, s53, {WO}
v_lshrrev_b32 v16, 2, v2
v_and_b32 v17, 3, v2
v_mul_u32_u24 v16, 1280, v16
v_lshl_add_u32 v{WA}, v17, 4, v16
s_mul_i32 s54, s29, 5120
s_add_u32 s54, s54, {PR}
v_add_u32 v{FX}, s54, v5
s_sub_u32 s60, s59, 184320
s_lshl_b32 s61, s59, 1
s_sub_u32 s61, 20480, s61
s_cmp_eq_u32 s29, 3
s_cselect_b32 s54, 9, 0
s_cselect_b32 s55, 10, 0
s_cselect_b32 s63, 11, 0
s_cselect_b32 s3, 12, 0
s_cselect_b32 s62, 13, 0
s_cselect_b32 s57, s61, s60
s_cmp_eq_u32 s29, 2
s_cselect_b32 s62, 9, s62
s_cselect_b32 s58, s61, s60
s_cmp_eq_u32 s29, 1
s_cselect_b32 s59, s61, s60
v_mov_b32 v6, {RLY}
s_mov_b32 s10, {P['spin']}
s_mov_b32 s8, 0
""")
    MK("lS")
    for G in range(G0):
        m = 3 << (2 * G)
        A(f"""
{E}_rw{G}:
s_and_b32 s9, s8, {m}
s_cmp_eq_u32 s9, {m}
s_cbranch_scc1 {E}_rg{G}
ds_read_b32 v0, v6 offset:4
s_waitcnt lgkmcnt(0)
v_readfirstlane_b32 s8, v0
s_branch {E}_rw{G}
{E}_rg{G}:
""")
        if G == 0: MK("lG")
        dma(G)
    A(f"s_waitcnt vmcnt({4*(G0-1)}) lgkmcnt(0)\ns_barrier")
    MK("lB")
    C1 = P["c1"]
    def flag(v): A(f"v_mov_b32 v0, {v}\nds_write_b32 v7, v0")
    if G0 >= 2: A(f"s_waitcnt vmcnt({4*(G0-2)})"); flag(F_G1)
    def gwait(G):
        m = (3 << (2 * G)) & 0xffffffff
        A(f"""
{E}_gw{G}:
s_and_b32 s9, s8, {hex(m)}
s_cmp_eq_u32 s9, {hex(m)}
s_cbranch_scc1 {E}_gg{G}
buffer_load_dwordx4 v[68:71], v{PA}, s[44:47], 0 offen sc1
s_waitcnt vmcnt(0)
v_min_u32 v69, v69, v70
v_cmp_ne_u32 s[8:9], 0, v69
s_and_b32 s8, s8, s9
s_mov_b32 s9, s8
s_lshr_b64 s[8:9], s[8:9], s11
s_sub_u32 s10, s10, 1
s_cselect_b32 s8, -1, s8
s_cselect_b32 s10, 0, s10
s_branch {E}_gw{G}
{E}_gg{G}:
""")
    nst = 0
    for G in range(G0, 16):
        gwait(G); dma(G)
        if G == P["w2g"]:
            if P["now2"]: A("s_mov_b32 s9, s66\ns_mov_b32 s66, 0")
            for c in range(4): A(f"buffer_store_dwordx4 {vr(88+4*c,4)}, v5, s[64:67], s69 offen offset:{1024*c}{ST}")
            if P["now2"]: A("s_mov_b32 s66, s9")
        if G0 == 1 and G == 2:
            n = 4 * (G - 1) + (4 if 1 <= P["w2g"] <= G else 0)
            A(f"s_waitcnt vmcnt({n})"); flag(F_G1)
        if G == 5 + C1:
            n = 4 * C1 + (4 if 5 <= P["w2g"] <= G else 0)
            A(f"s_waitcnt vmcnt({n})"); flag(F_G5); MK("l4")
    A(f"""
s_waitcnt vmcnt({4 * (15 - P["w2g"])})
v_mov_b32 v0, 1
s_mov_b64 exec, 1
buffer_store_dword v0, off, s[64:67], s68 sc1
s_mov_b64 exec, -1
""")
    if P["hgate"]:
        A("s_waitcnt vmcnt(1)"); flag(F_ALL)
        A(f"""
{E}_hq:
ds_read_b32 v0, v1 offset:64
s_waitcnt lgkmcnt(0)
v_cmp_gt_u32 vcc, {P['hgate']}, v0
s_cbranch_vccz {E}_hw
s_sleep 4
s_branch {E}_hq
""")
    A(f"""
{E}_hw:
buffer_load_dword v68, v{HA}, s[44:47], 0 offen sc1
buffer_load_dword v69, v{WFA}, s[44:47], 0 offen sc1
s_waitcnt vmcnt(2)
""")
    flag(F_ALL)
    A(f"""
s_waitcnt vmcnt(0)
v_min_u32 v68, v68, v69
v_cmp_eq_u32 s[8:9], 0, v68
s_or_b32 s8, s8, s9
s_and_b32 s8, s8, 0x7ffffff
s_cbranch_scc0 {E}_hg
s_sub_u32 s10, s10, 1
s_cselect_b32 s10, 0, s10
s_cbranch_scc1 {E}_hg
s_sleep {P['hsl']}
s_branch {E}_hw
{E}_hg:
""")
    MK("lH")
    ACC = 88
    class VQ_:
        def __init__(s): s.q = []
        def op(s, tag, txt): A(txt); s.q.append(tag)
        def need(s, *tags):
            idx = max([i for i, t in enumerate(s.q) if t in tags], default=-1)
            if idx >= 0:
                A(f"s_waitcnt vmcnt({len(s.q) - 1 - idx})"); s.q = s.q[idx + 1:]
    VQ = VQ_()
    addr = {0: (9, 16), 1: (10, 26), 2: (11, 26), 3: (12, 26), 4: (8, 16)}
    def fl(i, j):
        b = 16 + 20 * (i % 3)
        VQ.op((i, j), f"buffer_load_dwordx4 {vr(b+4*j,4)}, v{addr[j][0]}, s[44:47], s{addr[j][1]} offen{P['fsc']}")
        if j == 4: A("s_add_u32 s16, s16, 4096\ns_add_u32 s26, s26, 81920\ns_cmp_eq_u32 s16, s22\ns_cselect_b32 s16, s20, s16\ns_cselect_b32 s26, s23, s26")
    for i in range(3):
        for j in range(5): fl(i, j)
    A(f"s_setprio {P['prio_ffn']}")
    blk = [(0, 1), (0, 2), (4, 1), (4, 2), (4, 3)]
    after = {1: [0], 2: [1], 3: [2], 4: [3, 4]}
    for i in range(27):
        b = 16 + 20 * (i % 3)
        for t, (hj, wj) in enumerate(blk):
            VQ.need((i, hj), (i, wj))
            c = "0" if i == 0 else vr(ACC + 16 * t, 16)
            A(f"v_mfma_f32_32x32x16_bf16 {vr(ACC+16*t,16)}, {vr(b+4*wj,4)}, {vr(b+4*hj,4)}, {c}")
            if i + 3 < 27:
                for j in after.get(t, []): fl(i + 3, j)
    RED = 2560
    MK("l2")
    A(f"s_setprio {P['prio_red']}")
    for q in range(4):
        A(f"s_sub_u32 s16, s29, {q+1}\ns_and_b32 s16, s16, 3\ns_mul_i32 s16, s16, 5120\ns_add_u32 s16, s16, {RED + q*15360}\nv_add_u32 v{8+q}, s16, v5")
    A(f"""
s_mul_i32 s17, s29, 15360
s_add_u32 s17, s17, {RED}
v_add_u32 v12, s17, v5
s_mov_b32 s48, s4
s_mov_b32 s49, s5
s_mov_b32 s50, 2621440
s_mov_b32 s51, 0x20000
s_mov_b32 s36, 0xffff0000
""")
    npw = [0]
    def pwait(reg, off, thr, sl=2):
        k = npw[0]; npw[0] += 1
        A(f"""
{E}_pw{k}:
ds_read_b32 v0, v{reg} offset:{off}
s_waitcnt lgkmcnt(0)
v_cmp_gt_u32 vcc, {thr}, v0
s_cbranch_vccz {E}_pwd{k}
s_sleep {sl}
s_branch {E}_pw{k}
{E}_pwd{k}:
""")
    pwait(1, 64, 2 * P["T1"], 4)
    for q in range(4):
        A(f"s_cmp_eq_u32 s29, {q}\ns_cbranch_scc1 {E}_nx{q}")
        for t in range(5): A(f"ds_write_b128 v{8+q}, {vr(ACC+16*t+4*q,4)} offset:{t*1024}")
        A(f"{E}_nx{q}:")
    flag(F_RW)
    pwait(15, 0, F_RW, 1)
    for t in range(5):
        for jj in range(3):
            A(f"ds_read_b128 {vr(16+12*t+4*jj,4)}, v12 offset:{jj * 5120 + t * 1024}")
    def perq(tag, body):
        for q in range(4):
            if q < 3: A(f"s_cmp_lg_u32 s29, {q}\ns_cbranch_scc1 {E}_{tag}{q+1}")
            body(q)
            if q < 3: A(f"s_branch {E}_{tag}d\n{E}_{tag}{q+1}:")
        A(f"{E}_{tag}d:")
    xr = lambda q, t: ACC + 16 * t + 4 * ((q + 1) & 3)
    perq("x", lambda q: [A(f"buffer_load_dwordx2 {vr(xr(q,t),2)}, v{XA}, s[48:51], s{30+t} offen") for t in range(5)])
    A("s_waitcnt lgkmcnt(0)"); flag(F_RR)
    MK("l7")
    A(f"""
s_setprio 3
s_mov_b32 s48, s6
s_mov_b32 s49, s7
s_mov_b32 s50, 819200
""")
    def fin(q):
        for t in range(5):
            b = 16 + 12 * t; o = ACC + 16 * t + 4 * q; x = xr(q, t)
            for k in range(4): A(f"v_add_f32 v{b+k}, v{b+k}, v{o+k}")
            for k in range(2): A(f"v_lshlrev_b32 v{o+2*k}, 16, v{x+k}\nv_and_b32 v{o+2*k+1}, s36, v{x+k}")
            for k in range(4): A(f"v_add_f32 v{b+4+k}, v{b+4+k}, v{b+8+k}")
            for k in range(4): A(f"v_add3_f32 v{b+k}, v{b+k}, v{b+4+k}, v{o+k}" if False else f"v_add_f32 v{b+k}, v{b+k}, v{b+4+k}")
            for k in range(4): A(f"v_add_f32 v{b+k}, v{b+k}, v{o+k}")
    def adds(n):
        A(f"s_setprio {P['prio_add']}\ns_waitcnt vmcnt({n})"); perq("fin", fin); A("s_setprio 3")
    A(f"s_cmp_eq_u32 s29, 0\ns_cbranch_scc1 {E}_nd")
    pwait(15, 0, F_RR, 1)
    for m in range(40):
        if m in (0, 9, 19, 29, 39): pwait(1, 64, {0: "s54", 9: "s55", 19: "s63", 29: "s3", 39: "s62"}[m], P['wsl'])
        A(f"s_add_u32 m0, s53, {m*1024}\nbuffer_load_dwordx4 v{WA}, s[48:51], s52 offen lds")
        if m % 10 < 9: A("s_add_u32 s52, s52, 20480")
        elif m < 39: A(f"s_add_u32 s52, s52, s{57 + m // 10}")
    MK("l8")
    A(f"s_waitcnt vmcnt(0)\n{E}_nd:"); flag(F_WO)
    A(f"s_cmp_eq_u32 s29, 0\ns_cbranch_scc1 {E}_pl")
    adds(0)
    def fxw():
        for t in range(5): A(f"ds_write_b128 v{FX}, {vr(16+12*t,4)} offset:{t*1024}")
        flag(F_FX)
    pwait(1, 64, 16, P['rsl'])
    fxw()
    A(f"s_waitcnt lgkmcnt(0)\ns_endpgm\n{E}_pl:")
    PV = 80
    A(f"s_waitcnt vmcnt(0)\nv_mov_b32 v{PV}, 0\nv_mov_b32 v6, 0\ns_mov_b32 s57, {P['spin']}\ns_mov_b32 s58, 0\ns_mov_b32 s59, 0")
    if P["pgate"]: pwait(1, 64, P["pgate"], P['wsl'])
    A(f"""
{E}_rp:
s_sub_u32 s59, s59, 1
s_cbranch_scc0 {E}_np
s_mov_b32 s59, {P['pper']}
s_waitcnt vmcnt({P['pd'] - 1})
buffer_load_dword v{PV}, v{FP}, s[44:47], s56 offen{P['psc']}
{E}_np:
ds_read_b32 v0, v1 offset:64
v_cmp_ne_u32 s[60:61], 0, v{PV}
s_sub_u32 s57, s57, 1
s_cselect_b64 s[60:61], -1, s[60:61]
s_cselect_b32 s57, 0, s57
v_mov_b32 v8, s60
v_mov_b32 v9, s61
ds_write_b64 v6, v[8:9] offset:{MSK}
s_cmp_lg_u32 s58, 0
s_cbranch_scc1 {E}_rr
s_waitcnt lgkmcnt(1)
v_cmp_gt_u32 vcc, 16, v0
s_cbranch_vccnz {E}_rs
""")
    fin(0); fxw()
    A(f"""
s_mov_b32 s58, 1
{E}_rr:
s_cmp_eq_u64 s[60:61], -1
s_cbranch_scc1 {E}_go
{E}_rs:
s_sleep {P['rsl']}
s_branch {E}_rp
{E}_go:
s_waitcnt vmcnt(0) lgkmcnt(0)
{E}_end:
s_endpgm
""")
    A.end(name, 168, 72)
```

```python
import struct, math
HSTRIDE = 163840
QF  = 0
KVF = 0x500000
HF  = 0xA00000
W2F = 0x1100000
OF  = 0x1400000
FF  = 0x1700000
RS  = 0x1A00000
FL2 = 0x1A10000
WS_BYTES = 0x1B00000
SV = 10368
VOFF = 81920
TS = VOFF + 4 * SV + 128
QSCALE = 20 ** -0.5 * math.log2(math.e)
def f32bits(x): return hex(struct.unpack("<I", struct.pack("<f", x))[0])
FQ = FL2 + 0x10000
FH = FQ + 0xA000
FW = FH + 0x1B000
FEND = FW + 0x11000
assert FEND <= FL2 + 0x50000
CNT = 192
```

```python
from gen import *
M = dict(cA=1, cS=2, cF=3, cQ=4, cB=5, c1=6, t3=0, t7=11, cH=7, c3=8, c4=9, c6=10, c9=12, lA=1, lS=2, lG=4, lB=5, l4=6, lH=7, l2=8, l7=9, l8=10)
B = dict(spin=20000, marks=M)
V = dict(a={}, b=dict(hgate=2), c=dict(hgate=2, qdel=30), d=dict(hgate=2, qdel=30, hfl=(1,2), hst=(0,1,2,3,4,5,6,7), ofp=7), e=dict(noh=1, noof=1, now2=1, hgate=2, qdel=30))
for k, v in V.items(): build5(f"p_{k}.s", P=dict(B, **v), prof=True)
build5("t5.s", P=dict(spin=20000, hgate=2))
```

```python
import sys, json
from asmlib import *
from k1 import gen_k1
from k2 import gen_k2
from k3 import gen_k3
import k2f, k1n, k2n, k2g, kf, kg, kh
NAME = "parallel_sum__softmax_full_mha__dense_activation_relu__prompt"
PROF = 0x2000000
RT = [None]
def add_prof(lines):
    out = []; k = -1; name = None
    for ln in lines:
        t = ln.strip()
        if t.endswith("_kernel:"):
            k += 1; name = t[:-1]
            out += [ln, "    s_memrealtime s[88:89]", "    s_memtime s[90:91]", "    v_lshrrev_b32 v1, 6, v0", "    s_nop 1", "    v_readfirstlane_b32 s98, v1", "    s_waitcnt lgkmcnt(0)"] + [f"    s_mov_b32 s{r}, s90" for r in list(range(70, 80)) + [80, 82, 84, 86]]
        elif t == "s_endpgm":
            out.append(f"    s_branch L_prof_{name}")
        elif t.startswith("; HMARK"):
            i = int(t.split()[2]); out += ["    s_memrealtime s[96:97]", "    s_waitcnt lgkmcnt(0)", f"    s_mov_b32 s{70+i-4}, s96"]
        elif t.startswith("; CMARK"):
            i = int(t.split()[2]); out += ["    s_cmp_eq_u64 s[60:61], -1", "    s_cbranch_scc0 L_cm", f"    s_cmp_lg_u32 s{70+i-4}, s90", "    s_cbranch_scc1 L_cm", "    s_memrealtime s[96:97]", "    s_waitcnt lgkmcnt(0)", f"    s_mov_b32 s{70+i-4}, s96", "L_cm:"]
        elif t.startswith("; VAL"):
            i = int(t.split()[2]); out.append(f"    s_mov_b32 s{70+i-4}, {t.split()[3]}")
        elif t.startswith("; MARK"):
            i = int(t.split()[2])
            if RT[0] is not None and k == RT[0]:
                out += ["    s_memrealtime s[96:97]", "    s_waitcnt lgkmcnt(0)", f"    s_mov_b32 s{80+2*i if i < 4 else 70+i-4}, s96"]
                continue
            if i < 4: out += [f"    s_memtime s[{80+2*i}:{81+2*i}]", "    s_waitcnt lgkmcnt(0)"]
            else: out += ["    s_memtime s[96:97]", "    s_waitcnt lgkmcnt(0)", f"    s_mov_b32 s{70+i-4}, s96"]
        elif t.startswith(".section .rodata"):
            out += [f"L_prof_{name}:"] + ["    " + x for x in f"""s_mov_b64 exec, -1
s_memrealtime s[92:93]
s_memtime s[94:95]
s_load_dwordx2 s[96:97], s[0:1], 64
s_lshl_b32 s99, s2, 4
s_add_u32 s99, s99, s98
s_add_u32 s99, s99, {k*8192}
s_lshl_b32 s99, s99, 7
s_add_u32 s99, s99, {PROF}
s_waitcnt lgkmcnt(0)
v_mov_b32 v1, s99
v_mov_b32 v4, s88
v_mov_b32 v5, s92
v_mov_b32 v6, s90
v_mov_b32 v7, s94
v_mov_b32 v8, s80
v_mov_b32 v9, s82
v_mov_b32 v10, s84
v_mov_b32 v11, s86
v_cmp_eq_u32 vcc, 0, v2
s_and_b64 exec, exec, vcc
s_cmp_ge_u32 s2, 256
s_cbranch_scc1 L_profe_{name}
global_store_dwordx4 v1, v[4:7], s[96:97]
global_store_dwordx4 v1, v[8:11], s[96:97] offset:16
v_mov_b32 v12, s70
v_mov_b32 v13, s71
v_mov_b32 v14, s72
v_mov_b32 v15, s73
v_mov_b32 v16, s74
v_mov_b32 v17, s75
v_mov_b32 v18, s76
v_mov_b32 v19, s77
v_mov_b32 v20, s78
v_mov_b32 v21, s79
global_store_dwordx4 v1, v[12:15], s[96:97] offset:32
global_store_dwordx4 v1, v[16:19], s[96:97] offset:48
global_store_dwordx2 v1, v[20:21], s[96:97] offset:64
s_and_b32 s99, s2, 0x1f
s_lshr_b32 s100, s2, 5
s_cmp_lg_u32 s99, s100
s_cbranch_scc1 L_profe_{name}
s_cmp_lg_u32 s98, {[7,7,3][k]}
s_cbranch_scc1 L_profe_{name}
s_load_dwordx2 s[96:97], s[0:1], 56
v_mov_b32 v1, 0
v_not_b32 v4, v4
v_sub_u32 v7, v7, v6
v_sub_u32 v8, v8, v6
v_sub_u32 v9, v9, v6
v_sub_u32 v10, v10, v6
v_sub_u32 v11, v11, v6
s_waitcnt lgkmcnt(0)
global_atomic_umax v1, v4, s[96:97]
global_atomic_umax v1, v5, s[96:97] offset:4
global_atomic_umax v1, v7, s[96:97] offset:8
global_atomic_umax v1, v8, s[96:97] offset:12
global_atomic_umax v1, v9, s[96:97] offset:16
global_atomic_umax v1, v10, s[96:97] offset:20
global_atomic_umax v1, v11, s[96:97] offset:24
s_cmp_lg_u32 s2, {0 if k == 2 else 999}
s_cbranch_scc1 L_profe_{name}
global_load_dwordx4 v[4:7], v1, s[96:97] offset:-1024
global_load_dwordx4 v[8:11], v1, s[96:97] offset:-512
global_load_dword v7, v1, s[96:97] offset:-1008
s_waitcnt vmcnt(0)
global_store_dwordx4 v1, v[4:7], s[96:97] offset:32
global_store_dwordx4 v1, v[8:11], s[96:97] offset:48
L_profe_{name}:
s_endpgm""".split("\n")] + [ln]
        elif t.startswith(".amdhsa_next_free_sgpr"):
            out.append(".amdhsa_next_free_sgpr 102")
        else: out.append(ln)
    return out
def add_tl(lines):
    out = []; k = -1; name = None
    for ln in lines:
        t = ln.strip()
        if t.endswith("_kernel:"):
            k += 1; name = t[:-1]
            out += [ln, "    s_memrealtime s[88:89]", "    s_memtime s[90:91]", "    v_lshrrev_b32 v1, 6, v0", "    s_nop 1", "    v_readfirstlane_b32 s98, v1"]
        elif t == "s_endpgm":
            out.append(f"    s_branch L_prof_{name}")
        elif t.startswith(".section .rodata"):
            o2 = 512 if k == 0 else -512
            out += [f"L_prof_{name}:"] + ["    " + x for x in f"""s_mov_b64 exec, -1
s_memrealtime s[92:93]
s_memtime s[94:95]
s_load_dwordx2 s[96:97], s[0:1], 56
s_cmp_ge_u32 s2, 256
s_cbranch_scc1 L_profe_{name}
s_cmp_lg_u32 s98, 7
s_cbranch_scc1 L_profe_{name}
s_lshr_b32 s99, s2, 3
s_and_b32 s99, s99, 15
s_cmp_lg_u32 s99, 5
s_cbranch_scc1 L_profe_{name}
s_waitcnt lgkmcnt(0)
v_mov_b32 v1, 0
v_mov_b32 v4, s88
v_mov_b32 v5, s92
v_mov_b32 v6, s90
v_mov_b32 v7, s94
v_not_b32 v8, v4
v_sub_u32 v7, v7, v6
v_cmp_eq_u32 vcc, 0, v2
s_and_b64 exec, exec, vcc
global_atomic_umax v1, v8, s[96:97] offset:{k*16}
global_atomic_umax v1, v5, s[96:97] offset:{k*16+4}
global_atomic_umax v1, v7, s[96:97] offset:{k*16+8}
global_atomic_umax v1, v8, s[96:97] offset:{o2+k*16}
global_atomic_umax v1, v5, s[96:97] offset:{o2+k*16+4}
global_atomic_umax v1, v7, s[96:97] offset:{o2+k*16+8}
L_profe_{name}:
s_endpgm""".split("\n")] + [ln]
        elif t.startswith(".amdhsa_next_free_sgpr"):
            out.append(".amdhsa_next_free_sgpr 102")
        else: out.append(ln)
    return out
def build2(path, P1=None, P2=None, prof=False):
    A = Asm()
    hdr = """; LN + MHA + ReLU-FFN parallel block, two launches (generated by a hand-written python emitter)
; @launch kernel=k1_kernel grid=(256,1,1) block=(768,1,1) lds=147456
; @launch kernel=k2_kernel grid=(256,1,1) block=(768,1,1) lds=163840
"""
    gen_k1(A, P=P1); k2f.gen_k2(A, P=P2)
    if prof: A.lines = add_prof(A.lines)
    open(path, "w").write(hdr + HEADER + A.text())
def build3(path, P1=None, P2=None, prof=False):
    A = Asm()
    hdr = """; LN + MHA + ReLU-FFN parallel block, two launches (generated by a hand-written python emitter)
; @launch kernel=k1_kernel grid=(256,1,1) block=(768,1,1) lds=163840
; @launch kernel=k2_kernel grid=(256,1,1) block=(768,1,1) lds=163840
"""
    k1n.gen_k1(A, P=P1); k2n.gen_k2(A, P=P2)
    if prof == "lite": A.lines = add_prof([l for l in A.lines if not l.strip().startswith(("; MARK", "; HMARK", "; CMARK", "; VAL"))])
    elif prof == "tl": A.lines = add_tl(A.lines)
    elif prof: A.lines = add_prof(A.lines)
    open(path, "w").write(hdr + HEADER + A.text())
def build4(path, P1=None, P2=None, prof=False):
    A = Asm()
    hdr = """; LN + MHA + ReLU-FFN parallel block, two launches (generated by a hand-written python emitter)
; @launch kernel=k1_kernel grid=(256,1,1) block=(768,1,1) lds=163840
; @launch kernel=k2_kernel grid=(256,1,1) block=(768,1,1) lds=163840
"""
    k1n.gen_k1(A, P=P1); k2g.gen_k2(A, P=P2)
    if prof == "lite": A.lines = add_prof([l for l in A.lines if not l.strip().startswith(("; MARK", "; HMARK", "; CMARK", "; VAL"))])
    elif prof == "tl": A.lines = add_tl(A.lines)
    elif prof: A.lines = add_prof(A.lines)
    open(path, "w").write(hdr + HEADER + A.text())
MA = dict(c0=0, cA=1, cS=2, cF=3, cQ=4, cB=5, c1=6, cH=7, c3=8, c4=9, c6=10, c8=11, c9=12, lA=1, lS=2, lG=4, lB=5, l4=6, lH=7, l2=8, l7=9, l8=10)
def build5(path, P=None, prof=False, aslist=True, mod=None):
    A = Asm()
    P = dict(P or {})
    kn = "fused_kernel" if aslist else NAME + "_kernel"
    hdr = "; LN + MHA + ReLU-FFN parallel block, one persistent launch (generated by a hand-written python emitter)\n"
    hdr += f"; @launch {'kernel=fused_kernel ' if aslist else ''}grid=(256,1,1) block=(768,1,1) lds=163840\n"
    if prof is True: P.setdefault("marks", MA)
    (mod or kf).gen_f(A, kn, P=P)
    if prof: A.lines = add_prof(A.lines)
    open(path, "w").write(hdr + HEADER + A.text())
def build(path, P1=None, P2=None, P3=None, extra="", prof=False):
    A = Asm()
    hdr = """; LN + MHA + ReLU-FFN parallel block, three launches (generated by a hand-written python emitter)
; @launch kernel=k1_kernel grid=(256,1,1) block=(768,1,1) lds=147456
; @launch kernel=k2_kernel grid=(256,1,1) block=(768,1,1) lds=163840
; @launch kernel=k3_kernel grid=(256,1,1) block=(256,1,1) lds=102400
""" + extra
    gen_k1(A, P=P1); gen_k2(A, P=P2); gen_k3(A, P=P3)
    if prof: A.lines = add_prof(A.lines)
    open(path, "w").write(hdr + HEADER + A.text())
if __name__ == "__main__":
    build5(f"cdna_kernels/{NAME}.s")
    build("cur.s")
    build("prof.s", prof=True)
    build3("cur3.s")
    build3("prof3.s", prof=True)
    build3("tl3.s", prof="tl")
    build4("cur4.s")
    build5("cur5.s")
    build5("cur5p.s", aslist=False)
    build5("prof5.s", prof=True)
    build4("prof4.s", prof=True)
    build2("cur2.s")
    build2("prof2.s", prof=True)
```

```python
from asmlib import *
from layout import *

NP = 4
DEF = dict(cpf=None, kpar=0, kbit=0, krot=(1, 4), st=" sc1", lprio=3, gtab=None, cntp=1, eprio=3,
           offs=96.0, T1=4, prio_ffn=0, prio_red=1, prio_add=0, c1=3, prios=(3, 2, 1, 0), rot=0, frot=1,
           order="M1 E8 E9 C0 C1 E10 E11 M2 K C2 C3 E12 E13 E14 E15 M3 C4 C5 N0 N1 C6 C7 N2 N3 M4 V N4 N5 N6 N7", npre=8,
           osc=" sc1", lsc=" sc1", psl=2, spin=2000000, rsl=1, wsl=8, G0=2, hint=(7, 4), bq=2, pgate=13, rtsl=0, pd=1, pper=12,
           psc=' sc1', hsc=' sc1', qsl=1, hst=(0, 0, 1, 1, 2, 2, 3, 3), ofp=5, hfl=(0, 7), w2g=5, marks=None, hsl=2, noh=0, noof=0, now2=0, dsc=' sc1', fsc=' sc1', qdel=0, hgate=2, xq=0, clrb=1)
WO = 1024; PR = 143360; MSK = 96; SENT = 128; FREE = 123904
RLY = 147392
F_G1, F_G5, F_ALL, F_RW, F_RR, F_WO, F_FX = 1, 2, 3, 4, 5, 6, 7
LF = 2
HD = [0, 0, 0, 1, 2, 2, 2, 3, 4, 4, 4, 4, 5, 5, 5, 5]
H1 = (2, 3, 6, 7, 11)

def gen_f(A, name, P=None):
    P = dict(DEF, **(P or {}))
    XS = 49152; RB = 49152 + 4096; CS = 49152 + 8192
    ST = P["st"]; SC = " sc1"
    G0 = P["G0"]
    A.begin(name)
    E = "L_f"
    def MK(tag):
        if P["marks"] and tag in P["marks"]: A(f"; MARK {P['marks'][tag]}")
    hd = sum(v << (4 * i) for i, v in enumerate(HD))
    GT = ""
    if P["gtab"]:
        t = sum(v << (4 * i) for i, v in enumerate(P["gtab"]))
        GT = f"s_lshl_b32 s15, s15, 2\ns_mov_b32 s16, {hex(t & 0xffffffff)}\ns_mov_b32 s17, {hex(t >> 32)}\ns_lshr_b64 s[16:17], s[16:17], s15\ns_and_b32 s15, s16, 15"
    CP = ""
    if P["cpf"]:
        n0, n1 = P["cpf"]
        CP = f"""s_getpc_b64 s[42:43]
{E}_pc:
s_lshr_b32 s3, s2, 3
s_mul_i32 s3, s3, {n1}
v_mov_b32 v3, s3
v_cmp_gt_u32 vcc, {n0}, v0
v_cndmask_b32 v3, v3, 0, vcc
v_add_lshl_u32 v3, v3, v0, 7
v_min_u32 v3, {E}_end-{E}_pc, v3
v_mov_b32 v5, s43
v_add_co_u32 v4, vcc, s42, v3
v_addc_co_u32 v5, vcc, 0, v5, vcc
v_cmp_gt_u32 vcc, {n0 + n1}, v0
s_and_b64 exec, exec, vcc
s_cbranch_execz {E}_np0
global_load_dword v167, v[4:5], off
{E}_np0:
s_mov_b64 exec, -1"""
    A(f"""
s_cmp_ge_u32 s2, 256
s_cbranch_scc1 {E}_end
{CP}
s_load_dwordx4 s[4:7], s[0:1], 0
s_load_dwordx4 s[8:11], s[0:1], 32
s_load_dwordx2 s[12:13], s[0:1], 64
s_load_dwordx4 s[64:67], s[0:1], 48
v_lshrrev_b32 v1, 6, v0
v_and_b32 v2, 63, v0
s_and_b32 s40, s2, 7
s_lshr_b32 s41, s2, 3
v_readfirstlane_b32 s29, v1
s_and_b32 s14, s40, 1
s_lshl_b32 s14, s14, 3
s_and_b32 s15, s41, 7
s_add_u32 s14, s14, s15
s_lshr_b32 s15, s40, 1
s_lshl_b32 s15, s15, 2
s_lshr_b32 s16, s41, 3
s_add_u32 s15, s15, s16
{GT}
s_lshl_b32 s17, s15, 2
s_mov_b32 s18, {hex(hd & 0xffffffff)}
s_mov_b32 s19, {hex(hd >> 32)}
s_lshr_b64 s[18:19], s[18:19], s17
s_and_b32 s18, s18, 15
s_lshl_b32 s17, s15, 1
s_sub_u32 s19, s17, s18
s_mov_b32 s18, {sum(1 << g for g in H1)}
s_bitcmp1_b32 s18, s15
s_cselect_b32 s18, 1, 2
s_mov_b32 s46, {WS_BYTES}
s_mov_b32 s47, 0x20000
s_cmp_lt_u32 s29, 8
s_cbranch_scc1 {E}_comp
""")
    ra, rb = P["krot"]
    A(f"""
s_setprio {P['lprio']}
s_sub_u32 s29, s29, 8
s_mov_b32 s22, 2621440
s_mov_b32 s23, 0x20000
s_mov_b32 s27, 0x20000
s_mov_b32 s50, 2211840
s_mov_b32 s51, 0x20000
s_cmp_lt_u32 s15, 15
s_cselect_b32 s26, 2457600, 0
v_lshrrev_b32 v3, 3, v2
s_lshl_b32 s30, s29, 5
s_lshl_b32 s31, s14, 7
s_add_u32 s30, s30, s31
v_add_u32 v3, s30, v3
v_lshrrev_b32 v4, 4, v2
v_and_b32 v5, 7, v2
v_xor_b32 v6, v5, v4
v_xor_b32 v7, 4, v6
s_movk_i32 s32, 1280
v_mul_lo_u32 v3, v3, s32
v_lshl_add_u32 v10, v6, 4, v3
v_lshl_add_u32 v11, v7, 4, v3
v_add_u32 v11, 10240, v11
v_and_b32 v5, 15, v2
v_lshlrev_b32 v6, 2, v4
v_xor_b32 v5, v5, v6
s_lshl_b32 s30, s29, 4
v_add_u32 v4, s30, v4
v_mul_u32_u24 v6, 3840, v4
v_mul_u32_u24 v7, 3456, v4
s_lshl_b32 s31, s17, 7
s_lshl_b32 s33, s19, 7
v_lshl_add_u32 v6, v5, 4, v6
v_lshl_add_u32 v7, v5, 4, v7
v_add_u32 v12, s31, v6
v_add_u32 v44, s33, v7
s_lshl_b32 s33, s18, 3
v_mov_b32 v8, 0x7fffffff
v_cmp_gt_u32 vcc, s33, v5
s_lshr_b32 s35, s40, 1
s_mul_i32 s35, s35, {ra}
s_and_b32 s36, s40, 1
s_mul_i32 s36, s36, {rb}
s_add_u32 s35, s35, s36
s_bfe_u32 s36, s41, {0x10000 + P['kbit']}
s_mul_i32 s36, s36, {P['kpar']}
s_add_u32 s35, s35, s36
s_cmp_ge_u32 s35, 10
s_cselect_b32 s36, 10, 0
s_sub_u32 s35, s35, s36
""")
    for j in range(1, 4): A(f"v_add_u32 v{12+j}, {j*4*3840}, v12\nv_add_u32 v{44+j}, {j*4*3456}, v44")
    for j in range(4): A(f"v_cndmask_b32 v{44+j}, v8, v{44+j}, vcc")
    A(f"""
s_mul_i32 s36, s35, {64*3840}
s_mul_i32 s39, s35, {64*3456}
s_lshl_b32 s35, s35, 7
s_lshl_b32 s37, s29, 12
s_add_u32 s38, s37, 16384
s_waitcnt lgkmcnt(0)
s_mov_b32 s20, s4
s_mov_b32 s21, s5
s_mov_b32 s24, s6
s_mov_b32 s25, s7
s_mov_b32 s48, s8
s_mov_b32 s49, s9
""")
    def issue(slot, fill=()):
        base = slot * 49152
        fill = list(fill); per = (len(fill) + 10) // 11
        def fl(k):
            if fill and k == 0: A("s_waitcnt lgkmcnt(0)")
            if k < 11:
                for o in fill[k * per:(k + 1) * per]: A(o)
        A("s_add_u32 s30, s35, 20480")
        for j in range(4):
            A(f"s_add_u32 m0, s37, {base + j*1024}\nbuffer_load_dwordx4 v{10+(j&1)}, s[20:23], s{35 if j < 2 else 30} offen lds")
            if j: fl(j - 1)
        for j in range(4):
            A(f"s_add_u32 m0, s38, {base + j*1024}\nbuffer_load_dwordx4 v{12+j}, s[24:27], s36 offen lds")
            fl(3 + j)
        for j in range(4):
            if not P["xq"]: A(f"s_add_u32 m0, s38, {base + 16384 + j*1024}\nbuffer_load_dwordx4 v{44+j}, s[48:51], s39 offen lds")
            fl(7 + j)
        A(f"s_add_u32 s35, s35, 128\ns_add_u32 s36, s36, {64*3840}\ns_add_u32 s39, s39, {64*3456}\ns_cmp_eq_u32 s35, 1280\ns_cselect_b32 s35, 0, s35\ns_cselect_b32 s36, 0, s36\ns_cselect_b32 s39, 0, s39")
    issue(0); issue(1)
    A(f"""
s_load_dwordx2 s[6:7], s[0:1], 16
s_lshl_b32 s30, s29, 12
v_lshl_add_u32 v96, v2, 4, s30
v_add_u32 v97, 98304, v96
s_mov_b32 s56, 0xffff0000
""")
    for i in range(32, 40): A(f"v_mov_b32 v{i}, 0")
    def sreads(st):
        slot = st % 3; off = 49152 if slot == 1 else 0
        for j in range(4): A(f"ds_read_b128 {vr(16+4*j,4)}, v{97 if slot == 2 else 96} offset:{off + j*1024}")
    def sops():
        ops = []
        for i in range(4):
            for jp in range(2):
                for e, j in enumerate((2*jp, 2*jp+1)):
                    x = 16 + 4*j + i
                    ops += [f"v_lshlrev_b32 v{40+2*e}, 16, v{x}", f"v_and_b32 v{41+2*e}, s56, v{x}"]
                for q in range(2):
                    for e, j in enumerate((2*jp, 2*jp+1)):
                        u = 40 + 2*e + q
                        ops += [f"v_add_f32 v{32+2*j}, v{32+2*j}, v{u}", f"v_fmac_f32 v{33+2*j}, v{u}, v{u}"]
        return ops
    NV = 8 if P["xq"] else 12
    A(f"s_waitcnt vmcnt({NV})\ns_barrier")
    for s_ in range(8):
        sreads(s_)
        issue((s_ + 2) % 3, sops())
        A(f"s_waitcnt vmcnt({NV})\ns_barrier")
    sreads(8)
    A(f"""
v_mov_b32 v99, 0
global_load_dword v116, v99, s[66:67] offset:{CNT} sc1
s_mov_b32 s44, s12
s_mov_b32 s45, s13
s_mov_b32 s48, s10
s_mov_b32 s49, s11
s_lshl_b32 s57, s29, 8
s_add_u32 s58, s57, s2
s_min_u32 s57, s58, 539
s_mul_i32 s59, s57, 13108
s_lshr_b32 s59, s59, 16
s_mul_i32 s60, s59, 5
s_sub_u32 s60, s57, s60
s_mul_i32 s61, s59, 20480
s_lshl_b32 s62, s60, 8
s_add_u32 s62, s62, s61
s_add_u32 s63, s62, 5120
v_lshrrev_b32 v3, 5, v2
v_and_b32 v4, 31, v2
v_mul_u32_u24 v5, 10240, v3
v_lshl_add_u32 v98, v4, 3, v5
s_cmp_ge_u32 s58, 540
s_cselect_b32 s50, 0, s50
""")
    W2R = 100
    for j in range(8):
        A(f"buffer_load_dwordx2 {vr(W2R+2*j,2)}, v98, s[48:51], s{62 + (j >> 2)} offen offset:{(j & 3) * 1280}")
    A("s_waitcnt lgkmcnt(0)")
    for o in sops(): A(o)
    A("s_waitcnt vmcnt(8)\ns_barrier")
    sreads(9)
    A(f"""
v_and_b32 v5, 3, v2
v_lshrrev_b32 v6, 3, v2
v_lshl_add_u32 v6, v5, 3, v6
s_lshl_b32 s30, s29, 5
v_add_u32 v6, s30, v6
v_lshlrev_b32 v6, 2, v6
v_cmp_eq_u32 s[30:31], 1, v5
v_cmp_eq_u32 s[32:33], 2, v5
v_cmp_eq_u32 s[34:35], 3, v5
s_mov_b32 s36, 0x3acccccd
s_mov_b32 s37, 0x3727c5ac
v_mov_b32 v98, 0
v_mov_b32 v7, {RLY}
ds_write_b64 v7, v[98:99]
s_waitcnt lgkmcnt(0)
""")
    for o in sops(): A(o)
    for m in ("quad_perm:[1,0,3,2]", "quad_perm:[2,3,0,1]", "row_half_mirror"):
        for i in range(8): A(f"v_add_f32_dpp v{32+i}, v{32+i}, v{32+i} {m} row_mask:0xf bank_mask:0xf")
    for j in range(1, 4):
        A(f"v_cndmask_b32 v32, v32, v{32+2*j}, s[{28+2*j}:{29+2*j}]\nv_cndmask_b32 v33, v33, v{33+2*j}, s[{28+2*j}:{29+2*j}]")
    A(f"""
v_mul_f32 v32, s36, v32
v_mul_f32 v34, v32, v32
v_fma_f32 v33, v33, s36, -v34
v_max_f32 v33, 0, v33
v_cvt_pk_bf16_f32 v33, 0, v33
v_add_f32 v33, s37, v33
v_cvt_pk_bf16_f32 v33, 0, v33
v_sqrt_f32 v33, v33
ds_write_b32 v6, v32 offset:{XS}
v_readfirstlane_b32 s30, v116
v_cvt_pk_bf16_f32 v33, 0, v33
v_rcp_f32 v33, v33
s_mov_b32 s31, {P['spin']}
s_nop 0
ds_write_b32 v6, v33 offset:{RB}
s_waitcnt lgkmcnt(0)
s_barrier
{E}_cw:
s_cmp_ge_u32 s30, 256
s_cbranch_scc1 {E}_cd
s_sub_u32 s31, s31, 1
s_cbranch_scc1 {E}_cd
s_sleep 2
global_load_dword v116, v99, s[66:67] offset:{CNT} sc1
s_waitcnt vmcnt(0)
v_readfirstlane_b32 s30, v116
s_branch {E}_cw
{E}_cd:
s_barrier
""")
    MK("lA")
    A(f"""
v_mov_b32 v1, 0
v_lshlrev_b32 v7, 2, v2
ds_write_b32 v7, v1
s_mov_b32 s64, s12
s_mov_b32 s65, s13
s_mov_b32 s67, 0x20000
s_cmp_ge_u32 s58, 540
s_cselect_b32 s66, 0, {WS_BYTES}
s_mov_b32 s30, 0x05040100
s_mov_b32 s31, 0x07060302
v_lshrrev_b32 v5, 3, v4
v_and_b32 v6, 7, v2
v_lshlrev_b32 v5, 10, v5
v_lshl_add_u32 v5, v6, 6, v5
v_lshl_add_u32 v5, v3, 9, v5
s_lshl_b32 s34, s29, 12
s_add_u32 s34, s34, 147456
v_add_u32 v5, s34, v5
v_lshlrev_b32 v6, 4, v2
v_add_u32 v7, s34, v6
s_lshl_b32 s69, s60, 12
s_add_u32 s69, s69, s61
s_add_u32 s69, s69, {W2F}
s_mul_i32 s68, s60, 108
s_add_u32 s68, s68, s59
s_lshl_b32 s68, s68, 7
s_add_u32 s68, s68, {FW}
s_waitcnt vmcnt(0)
""")
    for c in range(4):
        for k in range(4): A(f"v_perm_b32 v{40+4*c+k}, v{W2R+2+4*k+(c>>1)}, v{W2R+4*k+(c>>1)}, s{30+(c&1)}")
    for c in range(4): A(f"ds_write_b128 v5, {vr(40+4*c,4)} offset:{16*c}")
    for c in range(4): A(f"ds_read_b128 {vr(88+4*c,4)}, v7 offset:{1024*c}")
    A(f"s_branch {E}_ffn")

    def head_scalars():
        A(f"""
s_lshl_b32 s14, s40, 2
s_lshr_b32 s15, s41, 3
s_add_u32 s14, s14, s15
s_mul_i32 s16, s14, 5
s_add_u32 s16, s16, 1
s_lshr_b32 s16, s16, 1
s_lshl_b32 s16, s16, 9
s_add_u32 s16, s16, {QF}
s_movk_i32 s17, 1024
s_bitcmp1_b32 s14, 0
s_cselect_b32 s17, -504, s17
s_and_b32 s19, s41, 7
s_lshl_b32 s15, s19, 3
s_mul_i32 s19, s19, {8 * TS * P['rot']}
""")
    def poll_addr(dst, t0, t1):
        A(f"""
s_mul_i32 s{t0}, s14, 20
s_add_u32 s{t1}, s{t0}, 19
s_lshr_b32 s{t0}, s{t0}, 6
s_lshr_b32 s{t1}, s{t1}, 6
s_sub_u32 s{t1}, s{t1}, s{t0}
s_lshl_b32 s{t0}, s{t0}, 12
s_add_u32 s{t0}, s{t0}, {FQ}
s_lshl_b32 s{t1}, s{t1}, 12
v_mul_u32_u24 v{dst}, s{t1}, v3
v_lshl_add_u32 v{dst}, v4, 7, v{dst}
v_add_u32 v{dst}, s{t0}, v{dst}
""")
    A(f"""
{E}_comp:
v_lshrrev_b32 v3, 5, v2
v_and_b32 v4, 31, v2
s_and_b32 s52, s29, 1
s_lshr_b32 s53, s29, 1
s_lshl_b32 s30, s52, 1
s_xor_b32 s30, s30, s53
s_mov_b32 s56, 0x3f803f80
s_lshl_b32 s31, s30, 1
v_bfe_u32 v5, v2, 1, 3
v_xor_b32 v5, v5, v3
v_xor_b32 v5, s31, v5
s_lshl_b32 s31, s52, 13
v_lshlrev_b32 v6, 7, v4
v_add_u32 v6, s31, v6
""")
    for pos in range(4):
        A(f"v_xor_b32 v7, {2*pos}, v5\nv_lshl_add_u32 v{16+pos}, v7, 4, v6\nv_add_u32 v{20+pos}, 98304, v{16+pos}")
    A("""
v_bfe_u32 v5, v2, 2, 2
v_lshl_add_u32 v6, v3, 3, v5
v_lshlrev_b32 v6, 8, v6
v_bfe_u32 v7, v2, 1, 1
v_lshl_add_u32 v6, v7, 3, v6
s_lshr_b32 s31, s53, 1
s_lshl_b32 s31, s31, 14
s_add_u32 s31, s31, 16384
v_add_u32 v6, s31, v6
v_bfe_u32 v7, v2, 4, 1
v_and_b32 v8, 1, v2
v_lshl_add_u32 v7, v7, 1, v8
s_and_b32 s55, s53, 1
s_lshl_b32 s31, s55, 3
v_add_u32 v7, s31, v7
v_lshlrev_b32 v5, 2, v5
v_xor_b32 v7, v7, v5
v_lshl_add_u32 v6, v7, 4, v6
v_xor_b32 v7, 64, v6
""")
    for pos in range(4):
        A(f"s_xor_b32 s31, s30, {pos}\ns_lshl_b32 s31, s31, 12")
        for t in range(2):
            A(f"v_add_u32 v{24+pos*2+t}, s31, v{6+t}\nv_add_u32 v{32+pos*2+t}, 98304, v{24+pos*2+t}")
    A("""
v_and_b32 v5, 15, v2
v_bfe_u32 v6, v2, 4, 1
v_cmp_eq_u32 vcc, v5, v6
v_mov_b32 v5, s56
""")
    for i in range(4): A(f"v_cndmask_b32 v{88+i}, 0, v5, vcc")
    A(f"""
s_lshl_b32 s31, s52, 8
v_lshl_add_u32 v48, v3, 4, s31
s_add_u32 s31, s31, {XS}
v_lshl_add_u32 v9, v4, 2, s31
v_add_u32 v12, {RB - XS}, v9
s_lshl_b32 s33, s29, 11
v_lshl_add_u32 v7, v2, 4, s33
s_lshl_b32 s33, s53, 12
v_lshl_add_u32 v8, v3, 11, s33
v_bfe_u32 v5, v2, 4, 1
v_lshl_add_u32 v8, v5, 4, v8
v_bfe_u32 v5, v2, 2, 2
v_lshl_add_u32 v8, v5, 8, v8
v_and_b32 v5, 3, v2
v_lshl_add_u32 v8, v5, 2, v8
v_lshlrev_b32 v5, 4, v2
s_waitcnt lgkmcnt(0)
s_mov_b32 s44, s12
s_mov_b32 s45, s13
s_mov_b32 s48, s64
s_mov_b32 s49, s65
s_mov_b32 s64, s66
s_mov_b32 s65, s67
s_mov_b32 s67, 0x20000
s_cmp_eq_u32 s29, 0
s_cselect_b32 s66, 256, 0
s_cselect_b32 s62, {WS_BYTES}, 0
s_mov_b32 s60, s12
s_mov_b32 s61, s13
s_mov_b32 s63, 0x20000
s_mul_i32 s31, s2, 1280
s_add_u32 s31, s31, {FL2}
v_mov_b32 v92, 0
v_mov_b32 v93, 0
v_mov_b32 v94, 0
v_mov_b32 v95, 0
v_mov_b32 v49, 1
{"s_cmp_lg_u32 s29, 0" if P["clrb"] else ""}
{"s_cbranch_scc1 " + E + "_nclr" if P["clrb"] else ""}
buffer_store_dwordx4 v[92:95], v5, s[60:63], s31 offen sc1
s_mov_b64 exec, 0xffff
buffer_store_dwordx4 v[92:95], v5, s[60:63], s31 offen offset:1024 sc1
s_mov_b64 exec, -1
{E}_nclr:
""")
    A(f"""
s_lshl_b32 s39, s14, 2
s_lshl_b32 s31, s52, 1
s_add_u32 s39, s39, s31
s_lshr_b32 s30, s39, 1
s_mov_b32 s32, s12
s_mov_b32 s33, s13
s_mov_b32 s34, 0
s_mov_b32 s35, 0x20000
s_mov_b32 s8, 1.0
s_cmp_ge_u32 s29, 4
s_cbranch_scc1 {E}_ch
s_add_u32 s54, s17, s55
s_cmp_lt_u32 s54, 10
s_cselect_b32 s8, {f32bits(QSCALE)}, s8
s_cselect_b32 s31, 0, 10
s_cselect_b32 s10, 0, 4
s_cmp_ge_u32 s54, 20
s_cselect_b32 s31, 20, s31
s_cselect_b32 s10, 8, s10
s_cselect_b32 s9, 1, 0
s_sub_u32 s31, s54, s31
s_lshl_b32 s6, s31, 12
s_add_u32 s10, s10, s6
s_lshl_b32 s30, s30, 7
s_add_u32 s10, s10, s30
s_add_u32 s10, s10, {FQ}
s_mul_i32 s4, s39, {TS}
s_lshl_b32 s5, s54, 12
s_lshl_b32 s6, s31, 10
s_add_u32 s6, s6, {VOFF}
s_cmp_eq_u32 s9, 1
s_cselect_b32 s5, s6, s5
s_add_u32 s4, s4, s5
s_add_u32 s4, s4, {QF}
s_cmp_eq_u32 s9, 1
s_mov_b32 s5, {TS}
s_cselect_b32 s5, {2*SV}, s5
s_add_u32 s5, s5, s4
s_add_u32 s6, s4, {TS}
s_add_u32 s7, s5, {TS}
s_cmp_ge_u32 s54, 30
s_cselect_b32 s9, 3, s9
s_branch {E}_cj
{E}_ch:
s_add_u32 s54, s19, s55
s_mul_i32 s10, s30, 27
s_add_u32 s10, s10, s54
s_lshl_b32 s10, s10, 7
s_lshl_b32 s31, s54, 2
s_add_u32 s10, s10, {FH}
s_mul_i32 s4, s39, 108
s_add_u32 s4, s4, s31
s_lshl_b32 s4, s4, 10
s_add_u32 s4, s4, {HF}
s_add_u32 s5, s4, {108*1024}
s_mov_b32 s6, 0
s_mov_b32 s7, 0
s_cmp_lt_u32 s55, s18
s_cselect_b32 s9, 2, 3
s_cselect_b32 s34, {WS_BYTES}, 0
{E}_cj:
""")
    head_scalars()
    A(f"""
s_lshr_b32 s11, s15, 1
s_add_u32 s15, s15, s29
s_mul_i32 s20, s15, {TS}
s_add_u32 s20, s20, s16
s_add_u32 s18, s20, s17
s_add_u32 s21, s16, s19
s_add_u32 s21, s21, 40960
s_mul_i32 s60, s15, 40960
s_mul_i32 s61, s14, 1280
s_add_u32 s60, s60, s61
s_add_u32 s60, s60, {OF}
s_sub_u32 s3, s60, 3072
s_lshl_b32 s61, s15, {12 - LF}
s_lshr_b32 s27, s14, {LF}
s_lshl_b32 s27, s27, 7
s_add_u32 s61, s61, s27
s_and_b32 s27, s14, {(1 << LF) - 1}
s_lshl_b32 s27, s27, 2
s_add_u32 s61, s61, s27
s_add_u32 s61, s61, {FL2}
s_lshr_b32 s50, s40, 1
s_lshl_b32 s50, s50, 3
s_and_b32 s51, s41, 7
s_add_u32 s50, s50, s51
s_lshl_b32 s50, s50, 1
s_bfe_u32 s51, s41, 0x10003
s_lshr_b32 s52, s29, 2
s_xor_b32 s53, s51, s52
s_add_u32 s50, s50, s53
s_mul_i32 s54, s52, {P['bq']}
s_xor_b32 s54, s54, s29
s_and_b32 s54, s54, 3
s_lshl_b32 s56, s53, 2
s_add_u32 s56, s56, s54
s_lshl_b32 s56, s56, 3
s_and_b32 s55, s40, 1
s_lshl_b32 s55, s55, 1
s_lshr_b32 s58, s41, 4
s_add_u32 s55, s55, s58
s_mul_i32 s55, s55, 320
s_lshl_b32 s58, s51, 8
s_add_u32 s55, s55, s58
s_lshl_b32 s58, s54, 4
s_add_u32 s55, s55, s58
s_mul_i32 s57, s50, 40960
s_add_u32 s55, s55, s57
s_mul_i32 s59, s54, 10240
s_add_u32 s57, s57, s59
s_add_u32 s57, s57, {OF}
s_mul_i32 s58, s54, 30720
s_add_u32 s58, s58, {WO}
s_mul_i32 s59, s54, 5120
s_add_u32 s59, s59, {PR}
s_lshl_b32 s53, s51, 7
s_sub_u32 s53, 64, s53
s_mov_b32 s50, 2621440
s_mov_b32 s51, 0x20000
""")
    poll_addr(50, 30, 31)
    A(f"""
v_cmp_gt_u32 s[22:23], 20, v4
v_cmp_gt_u32 s[24:25], 32, v2
s_cmp_eq_u32 s9, 1
s_cbranch_scc1 {E}_vloop
""")
    FB = [56, 72]
    def acc(ct, tt): return 96 + (ct * 2 + tt) * 16
    class Q:
        def __init__(s): s.q = []
        def op(s, tag, txt): A(txt); s.q.append(tag)
        def need(s, *tags):
            idx = max([i for i, t in enumerate(s.q) if t in tags], default=-1)
            if idx >= 0:
                A(f"s_waitcnt lgkmcnt({len(s.q) - 1 - idx})"); s.q = s.q[idx + 1:]
    def rd(L, p, i):
        s, pos = p >> 2, p & 3
        slot = s % 3; b = FB[p & 1]
        xa = (20 if slot == 2 else 16) + pos
        wa = (32 if slot == 2 else 24) + pos * 2
        off = 49152 if slot == 1 else 0
        L.op((p, i), [f"ds_read_b128 v[{b}:{b+3}], v{xa} offset:{off}",
                      f"ds_read_b64_tr_b16 v[{b+8}:{b+9}], v{wa} offset:{off}",
                      f"ds_read_b64_tr_b16 v[{b+10}:{b+11}], v{wa} offset:{off+1024}",
                      f"ds_read_b128 v[{b+4}:{b+7}], v{xa} offset:{off+4096}",
                      f"ds_read_b64_tr_b16 v[{b+12}:{b+13}], v{wa+1} offset:{off}",
                      f"ds_read_b64_tr_b16 v[{b+14}:{b+15}], v{wa+1} offset:{off+1024}"][i])
    def prep():
        o = []
        for t in range(2):
            c = 10 + t; h = 56 + 4 * t
            o += f"""v_cvt_pk_bf16_f32 v{h+2}, 0, v{c}
v_cvt_pk_bf16_f32 v{64+2*t}, -v{160+t}, -v{160+t}
v_sub_f32 v{h+2}, v{c}, v{h+2}
v_cvt_pk_bf16_f32 v{65+2*t}, -v{160+t}, 0
v_cvt_pk_bf16_f32 v{h+3}, 0, v{h+2}
v_cvt_pk_bf16_f32 v{h}, v{c}, v{h+2}
v_sub_f32 v{h+3}, v{h+2}, v{h+3}
v_cvt_pk_bf16_f32 v{h+1}, v{h+3}, 0""".split("\n")
        return o
    def loop(vmode):
        L = Q()
        A("s_barrier")
        MK("c0")
        for i in range(6): rd(L, 0, i)
        for p in range(40):
            s, pos = p >> 2, p & 3
            b = FB[p & 1]
            bar = pos == 3 and s < 9
            sched = [[], [], [], []] if p == 39 else [[0, 1], [2, 3], [4, 5], []]
            if bar:
                L.need(*[(p, i) for i in range(6)])
                A("s_barrier")
                MK(f"s{s}")
            for j, (ct, tt) in enumerate(((0, 0), (0, 1), (1, 1), (1, 0))):
                L.need(*[(p, i) for i in ([0, 1, 2], [3], [4, 5], [])[j]])
                a = acc(ct, tt)
                c = "0" if p == 0 else vr(a, 16)
                w, x = vr(b + 8 + 4 * ct, 4), vr(b + 4 * tt, 4)
                if vmode: A(f"v_mfma_f32_32x32x16_bf16 {vr(a,16)}, {x}, {w}, {c}")
                else: A(f"v_mfma_f32_32x32x16_bf16 {vr(a,16)}, {w}, {x}, {c}")
                for i in sched[j]: rd(L, p + 1, i)
                if pos < 2 and j in (1, 3):
                    ct2 = j >> 1
                    c = "0" if p == 0 else vr(40 + 4 * ct2, 4)
                    A(f"v_mfma_f32_16x16x32_bf16 {vr(40+4*ct2,4)}, {vr(b+8+4*ct2,4)}, v[88:91], {c}")
                if p == P["cntp"] and j == 0 and not vmode_has_no_w0(vmode):
                    A(f"s_waitcnt vmcnt(0)\ns_mov_b64 exec, 1\nbuffer_atomic_add v49, off, s[64:67], 0 offset:{CNT}\ns_mov_b64 exec, -1")
                if p == 38 and j == 0:
                    L.op("csw", f"ds_write_b128 v7, v[40:43] offset:{CS}"); L.op("csw", f"ds_write_b128 v7, v[44:47] offset:{CS + 1024}")
                if p == 38 and j == 3:
                    L.need("csw"); A("s_barrier")
                    L.op("st", f"ds_read_b32 v10, v8 offset:{CS}"); L.op("st", f"ds_read_b32 v11, v8 offset:{CS + 1024}")
                    L.op("st", "ds_read2_b32 v[160:161], v9 offset0:0 offset1:32"); L.op("st", "ds_read2_b32 v[162:163], v12 offset0:0 offset1:32")
                if p == 39 and j == 1: L.need("st")
                if p == 39 and j in (1, 2):
                    for o in prep()[8 * (j - 1): 8 * j]: A(o)
        A("s_barrier")
        MK("cA")
        for (ct, tt) in ((0, 0), (0, 1), (1, 1), (1, 0)):
            a = acc(ct, tt); w, x = vr(56 + 4 * ct, 2), vr(64 + 2 * tt, 2)
            if vmode: A(f"v_mfma_f32_32x32x8_bf16 {vr(a,16)}, {x}, {w}, {vr(a,16)}")
            else: A(f"v_mfma_f32_32x32x8_bf16 {vr(a,16)}, {w}, {x}, {vr(a,16)}")
    vmode_has_no_w0 = lambda vm: False
    order = ((0, 0), (0, 1), (1, 1), (1, 0))
    if P["xq"]:
        A(f"s_cmp_lt_u32 s29, 4\ns_cbranch_scc1 {E}_xq")
        for i in range(12): A("s_barrier")
        MK("cA")
        A(f"s_branch {E}_att\n{E}_xq:")
    loop(False)
    A(f"""
s_cmp_eq_u32 s9, 0
s_cbranch_scc1 {E}_qk
s_cmp_eq_u32 s9, 3
s_cbranch_scc1 {E}_att
""")
    HP = {(0, 0): 104, (0, 1): 112, (1, 1): 144, (1, 0): 152}
    A("v_mov_b32 v164, v163")
    for (ct, tt) in order:
        a = acc(ct, tt); d = HP[(ct, tt)]
        for k in range(8): A(f"v_pk_mul_f32 {vr(a+2*k,2)}, {vr(a+2*k,2)}, {vr(162+2*tt,2)} op_sel_hi:[1,0]")
        for k in (range(7, -1, -1) if (ct, tt) == (0, 0) else range(8)): A(f"v_cvt_pk_bf16_f32 v{d+k}, v{a+2*k}, v{a+2*k+1}")
        for k in range(8): A(f"v_pk_max_i16 v{d+k}, v{d+k}, 0")
    A(f"s_branch {E}_att")
    A(f"""
{E}_qk:
s_setprio {P['eprio']}
v_mul_f32 v162, s8, v162
v_mul_f32 v164, s8, v163
""")
    for (ct, tt) in order:
        a = acc(ct, tt)
        for k in range(8): A(f"v_pk_mul_f32 {vr(a+2*k,2)}, {vr(a+2*k,2)}, {vr(162+2*tt,2)} op_sel_hi:[1,0]")
        for k in range(8): A(f"v_cvt_pk_bf16_f32 v{a+k}, v{a+2*k}, v{a+2*k+1}")
        for j in range(2): A(f"buffer_store_dwordx4 {vr(a+4*j,4)}, v5, s[44:47], s{4+tt} offen offset:{(ct*2+j)*1024}{ST}")
    A(f"s_branch {E}_pub")
    A(f"{E}_vloop:")
    A(f"""
v_and_b32 v1, 19, v2
v_bfe_u32 v6, v2, 2, 1
v_lshl_add_u32 v1, v6, 3, v1
v_bfe_u32 v6, v2, 3, 1
v_lshl_add_u32 v1, v6, 2, v1
v_mul_u32_u24 v6, {SV}, v3
v_lshl_add_u32 v51, v1, 4, v6
""")
    loop(True)
    A(f"s_setprio {P['eprio']}")
    for tt in range(2):
        for q in range(4):
            A(f"ds_read_b128 {vr(16+16*tt+4*q,4)}, v48 offset:{RB + tt*128 + q*32}")
    for n, (ct, tt) in enumerate(order):
        a = acc(ct, tt)
        if n < 2: A(f"s_waitcnt lgkmcnt({4 - 4*n})")
        for k in range(8): A(f"v_pk_mul_f32 {vr(a+2*k,2)}, {vr(a+2*k,2)}, {vr(16+16*tt+2*k,2)}")
        for k in range(8): A(f"v_cvt_pk_bf16_f32 v{a+k}, v{a+2*k}, v{a+2*k+1}")
        for j in range(2): A(f"buffer_store_dwordx4 {vr(a+4*j,4)}, v51, s[44:47], s{4+2*tt+j} offen offset:{ct*512}{ST}")
    QM, QR, KM, KR, V0, V1 = 8, 12, 16, 20, 24, 28
    S = [32, 48]; O = 64; CB = 80
    FL = 120
    KB = [(KM, KR), (124, 128)]; VB = [V0, 132]
    def vsetup():
        A(f"""
v_and_b32 v{FL+1}, 3, v2
v_lshlrev_b32 v{FL+1}, 2, v{FL+1}
s_lshl_b32 s26, s29, 2
s_add_u32 s26, s26, 64
v_mov_b32 v{FL+2}, s26
v_mul_u32_u24 v7, 320, v3
v_lshl_add_u32 v7, v4, 4, v7
v_add_u32 v7, 5120, v7
v_lshlrev_b32 v6, 4, v4
v_mov_b32 v1, 0x3f803f80
v_cmp_eq_u32 vcc, 20, v4
v_mov_b32 v14, {RLY}
""")
        for i in range(8): A(f"v_cndmask_b32 v{V0+i}, 0, v1, vcc")
    A(f"{E}_pub:")
    MK("cS")
    vsetup()
    A(f"""
s_waitcnt vmcnt(0)
s_mov_b64 exec, 1
buffer_store_dword v49, off, s[44:47], s10 sc1
s_mov_b64 exec, -1
""")
    MK("cF")
    A(f"s_branch {E}_at2\n{E}_att:")
    vsetup()
    need7 = (1 << (2 * G0)) - 1
    A(f"""
s_cmp_lg_u32 s29, 7
s_cbranch_scc1 {E}_at2
s_mov_b32 s26, {P['spin']}
{"s_sleep " + str(P['qdel']) if P['qdel'] else ""}
{E}_qp:
buffer_load_dwordx4 v[52:55], v50, s[44:47], 0 offen sc1
s_waitcnt vmcnt(0)
v_min_u32 v53, v53, v54
v_cmp_ne_u32 s[30:31], 0, v52
v_cmp_ne_u32 s[36:37], 0, v53
s_and_b32 s30, s30, s31
s_and_b32 s36, s36, s37
s_lshr_b32 s30, s30, s11
s_mov_b32 s37, s36
s_mul_i32 s31, s11, {P['rot']}
s_lshr_b64 s[36:37], s[36:37], s31
s_sub_u32 s26, s26, 1
s_cselect_b32 s30, -1, s30
s_cselect_b32 s36, -1, s36
s_cselect_b32 s26, 0, s26
v_mov_b32 v52, s30
v_mov_b32 v53, s36
ds_write_b64 v14, v[52:53]
s_and_b32 s30, s30, 15
s_and_b32 s36, s36, {need7}
s_lshl_b32 s36, s36, 4
s_or_b32 s30, s30, s36
s_cmp_eq_u32 s30, {(need7 << 4) | 15}
s_cbranch_scc1 {E}_at2
s_sleep {P['qsl']}
s_branch {E}_qp
{E}_at2:
s_lshr_b32 s26, s29, 1
{E}_qw:
ds_read_b64 v[52:53], v14
s_waitcnt lgkmcnt(0)
v_readfirstlane_b32 s30, v52
v_readfirstlane_b32 s31, v53
s_lshr_b32 s30, s30, s26
s_and_b32 s30, s30, s31
s_bitcmp1_b32 s30, 0
s_cbranch_scc1 {E}_qg
s_sleep 1
s_branch {E}_qw
{E}_qg:
""")
    MK("cQ")
    A(f"buffer_load_dwordx4 {vr(QM,4)}, v5, s[44:47], s20 offen{SC}")
    A(f"buffer_load_dwordx2 {vr(QR,2)}, v6, s[44:47], s18 offen{SC}")
    A(f"buffer_load_dwordx4 {vr(KM,4)}, v5, s[44:47], s21 offen{SC}")
    A("v_lshlrev_b32 v15, 3, v4")
    for i in range(8): A(f"v_cndmask_b32 v{VB[1]+i}, 0, v1, vcc")
    for i in range(4): A(f"v_mov_b32 v{164+i}, -1")
    A("v_add_u32 v6, 4096, v15")
    A("s_waitcnt vmcnt(0)\ns_barrier")
    MK("cB")
    def kread(o, km=None, kr=None):
        if km is None: km, kr = KB[o & 1]
        g, i = o >> 2, o & 3
        A(f"ds_read_b128 {vr(km,4)}, v5 offset:{g*10240+i*1024}\nds_read_b64 {vr(kr,2)}, v6 offset:{g*10240+i*256}")
    def vread(o):
        g, i = o >> 2, o & 3; b = g * 10240 + i * 1280
        A(f"s_mov_b64 exec, s[22:23]\nds_read_b128 {vr(VB[o&1],4)}, v7 offset:{b}\nds_read_b128 {vr(VB[o&1]+4,4)}, v7 offset:{b+640}\ns_mov_b64 exec, -1")
    A(f"ds_read_b64 {vr(KR,2)}, v6")
    for t in range(1, NP): kread(t, CB + 4 * t, 96 + 2 * t)
    A(f"v_cndmask_b32 v{QR}, 0, v{QR}, s[24:25]\nv_cndmask_b32 v{QR+1}, 0, v{QR+1}, s[24:25]")
    PD = [S[0], S[1], O, S[0]]
    def pmax(t):
        for k in range(8):
            if t == 0 and k == 0: A(f"v_max_f32 v1, v{PD[t]}, v{PD[t]+1}")
            else: A(f"v_max3_f32 v1, v1, v{PD[t]+2*k}, v{PD[t]+2*k+1}")
    for t in range(NP):
        if t == 3: pmax(0)
        A(f"s_waitcnt lgkmcnt({2*(NP-1-t)})")
        km, kr = (KM, KR) if t == 0 else (CB + 4 * t, 96 + 2 * t)
        A(f"v_mfma_f32_32x32x16_bf16 {vr(PD[t],16)}, {vr(km,4)}, {vr(QM,4)}, 0")
        A(f"v_mfma_f32_32x32x8_bf16 {vr(PD[t],16)}, {vr(kr,2)}, {vr(QR,2)}, {vr(PD[t],16)}")
    for t in range(1, NP): pmax(t)
    A(f"""
v_mov_b32 v14, v1
s_mov_b32 s26, {f32bits(P['offs'])}
v_permlane32_swap_b32 v1, v14
v_max_f32 v1, v1, v14
v_add_f32 v1, s26, v1
""")
    for i in range(16): A(f"v_sub_f32 v{CB+i}, 0, v1")
    for i in range(16): A(f"v_mov_b32 v{O+i}, 0")
    def M1(t): A(f"v_mfma_f32_32x32x16_bf16 {vr(S[t&1],16)}, {vr(KB[t&1][0],4)}, {vr(QM,4)}, {vr(CB,16)}")
    def M2(t): A(f"v_mfma_f32_32x32x8_bf16 {vr(S[t&1],16)}, {vr(KB[t&1][1],2)}, {vr(QR,2)}, {vr(S[t&1],16)}")
    def Ex(t, *idx):
        for i in idx: A(f"v_exp_f32 v{S[t&1]+i}, v{S[t&1]+i}")
    def Cv(t, *idx):
        for k in idx:
            d = S[t & 1] + (k & 3) + 8 * (k >> 2)
            A(f"v_cvt_pk_bf16_f32 v{d}, v{S[t&1]+2*k}, v{S[t&1]+2*k+1}")
    MK("c1")
    A("s_waitcnt lgkmcnt(0)")
    kread(1); vread(0); M1(0); M2(0); kread(2); vread(1)
    W = 6
    Ex(0, *range(P["npre"]))
    def tile(t, hook=None):
        pr = P["prios"]
        if pr and (t == 0 or pr[t % len(pr)] != pr[(t - 1) % len(pr)]): A(f"s_setprio {pr[t % len(pr)]}")
        for tok in P["order"].split():
            if tok == "M1": A(f"s_waitcnt lgkmcnt({W})"); M1(t + 1)
            elif tok == "M2": M2(t + 1)
            elif tok == "M3": A(f"s_waitcnt lgkmcnt({W})\nv_mfma_f32_32x32x16_bf16 {vr(O,16)}, {vr(VB[t&1],4)}, {vr(S[t&1],4)}, {vr(O,16)}")
            elif tok == "M4": A(f"v_mfma_f32_32x32x16_bf16 {vr(O,16)}, {vr(VB[t&1]+4,4)}, {vr(S[t&1]+8,4)}, {vr(O,16)}")
            elif tok == "K":
                if hook: hook(t, 0)
                kread(t + 3)
                if hook: hook(t, 1)
            elif tok == "V":
                vread(t + 2)
                if hook: hook(t, 2)
            elif tok[0] == "E": Ex(t, int(tok[1:]))
            elif tok[0] == "N": Ex(t + 1, int(tok[1:]))
            elif tok[0] == "C": Cv(t, int(tok[1:]))
            else: raise ValueError(tok)
    adv = "v_add_u32 v5, 20480, v5\nv_add_u32 v6, 20480, v6\nv_add_u32 v7, 20480, v7"
    npoll = [0]
    def check(thr):
        k = npoll[0]; npoll[0] += 1
        A(f"""
s_waitcnt lgkmcnt(2)
v_cmp_gt_u32 vcc, {thr}, v{FL}
s_cbranch_vccz {E}_ok{k}
{E}_poll{k}:
s_sleep 1
ds_read_b32 v{FL}, v{FL+1}
s_waitcnt lgkmcnt(0)
v_cmp_gt_u32 vcc, {thr}, v{FL}
s_cbranch_vccnz {E}_poll{k}
{E}_ok{k}:
""")
    rdflag = f"ds_read_b32 v{FL}, v{FL+1}"
    hstores = [(ct, tt, j) for (ct, tt) in order for j in range(2)]
    hflag = f"s_waitcnt vmcnt(0)\ns_mov_b64 exec, 1\nbuffer_store_dword v{FL+2}, off, s[32:35], s10 sc1\ns_mov_b64 exec, -1"
    def hook0(t, ph):
        if ph == 1 and (t in (4, 7) or t == 0): A(rdflag)
        if ph == 0 and t == 1: check(F_G1)
        if ph == 0 and t == 5: check(F_G5)
        if ph in (1, 2):
            mine = [n for n in range(8) if P["hst"][n] == t]
            for n in mine[ph - 1::2] if not P["noh"] else []:
                ct, tt, j = hstores[n]
                A(f"buffer_store_dwordx4 {vr(HP[(ct,tt)]+4*j,4)}, v5, s[32:35], s{4+tt} offen offset:{(ct*2+j)*1024}{ST}")
        if ph == 1 and t == P["ofp"] and not P["noof"]:
            A(f"buffer_store_dwordx4 v[164:167], v5, s[44:47], s60 offen sc1\nbuffer_store_dwordx2 v[164:165], v6, s[44:47], s3 offen sc1")
        if ph == 2 and t == 3: MK("t3")
        if ph == 2 and P["hfl"] == (0, t): MK("t7"); A(hflag); MK("cH")
    for t in range(8): tile(t, hook0)
    A(adv)
    A(f"s_mov_b32 s27, 1\ns_mov_b32 s28, 0\nv_mov_b32 v{FL+3}, 1\n{E}_loop:")
    def hook1(t, ph):
        if ph == 0 and t == 0: check("s28")
        if ph == 1 and t == 0: A(f"s_mov_b32 s28, {F_ALL}")
        if ph == 1 and t in (0, 4): A(f"v_add_u32 v{FL+3}, 1, v{FL+3}\nds_write_b32 v{FL+2}, v{FL+3}")
        if ph == 1 and t == 7: A(rdflag)
        if ph == 2 and P["hfl"][0] > 0 and P["hfl"][1] == t:
            A(f"s_cmp_lg_u32 s27, {P['hfl'][0]}\ns_cbranch_scc1 {E}_nf\n{hflag}\n{E}_nf:")
        if ph == 1 and t == P["hint"][1]:
            A(f"""
s_cmp_lg_u32 s27, {P["hint"][0]}
s_cbranch_scc1 {E}_nh
s_waitcnt vmcnt(0)
s_mov_b64 exec, 1
buffer_store_dword v{FL+2}, off, s[44:47], s61{P['hsc']}
s_mov_b64 exec, -1
{E}_nh:
""")
    for t in range(8): tile(t, hook1)
    A(adv)
    A(f"s_add_u32 s27, s27, 1\ns_cmp_lt_u32 s27, 8\ns_cbranch_scc1 {E}_loop")
    MK("c3")
    A(f"v_mov_b32 v{FL+3}, 16\nds_write_b32 v{FL+2}, v{FL+3}\nv_mov_b32 v1, 0\ns_movk_i32 s26, 0x207")
    for i in range(12): A(f"v_fma_f32 v1, v{O+i}, 0, v1")
    A(f"""
v_cmp_class_f32 vcc, v1, s26
s_cbranch_vccnz {E}_fb
{E}_epi:
v_mov_b32 v10, 0
ds_read_b64 v[12:13], v10 offset:{MSK}
v_mov_b32 v14, v{O+8}
v_mov_b32 v15, v{O+8}
v_lshlrev_b32 v5, 4, v2
v_permlane32_swap_b32 v14, v15
v_rcp_f32 v14, v15
v_lshlrev_b32 v6, 3, v4
v_mov_b32 v11, v{FL+1}
""")
    for k in range(6): A(f"v_pk_mul_f32 {vr(O+2*k,2)}, {vr(O+2*k,2)}, v[14:15] op_sel_hi:[1,0]")
    for k in range(6): A(f"v_cvt_pk_bf16_f32 v{O+k}, v{O+2*k}, v{O+2*k+1}")
    OSC = P["osc"]; LSC = P["lsc"]
    VW, VR, OR_, OA, SP = 6, 7, 8, 9, 15
    A(f"""
buffer_store_dwordx4 {vr(O,4)}, v5, s[44:47], s60 offen{OSC}
s_mov_b64 exec, s[24:25]
buffer_store_dwordx2 {vr(O+4,2)}, v6, s[44:47], s60 offen offset:1024{OSC}
s_mov_b64 exec, -1
s_setprio 0
""")
    MK("c4")
    A(f"""
v_mul_u32_u24 v14, 2560, v3
s_add_u32 s28, s57, 5120
s_waitcnt lgkmcnt(0)
v_readfirstlane_b32 s30, v12
v_readfirstlane_b32 s31, v13
v_lshl_add_u32 v{OR_}, v4, 3, v14
s_lshr_b64 s[30:31], s[30:31], s56
s_mov_b32 s63, s30
""")
    OB = 16; AC = 56
    def load(k):
        if k < 8: A(f"buffer_load_dwordx4 {vr(OB+4*k,4)}, v5, s[44:47], s{57 if k < 4 else 28} offen offset:{1280*(k&3)}{LSC}")
        else:
            for e in range(2): A(f"buffer_load_dwordx2 {vr(OB+4*k+2*e,2)}, v{OR_}, s[44:47], s{57 if k == 8 else 28} offen offset:{1024+1280*e}{LSC}")
    for k in range(8):
        A(f"s_mov_b32 s64, {k}\ns_bitcmp1_b32 s63, {k}\ns_cbranch_scc0 {E}_su")
        load(k)
    load(8); load(9)
    A(f"s_mov_b32 s64, 9\n{E}_su:")
    def issue_rest(T):
        A(f"s_cmp_eq_u32 s64, 9\ns_cbranch_scc1 {E}_id{T}")
        for k in range(8):
            L = f"{E}_is{T}{k}"
            A(f"""
s_cmp_gt_u32 s64, {k}
s_cbranch_scc1 {L}n
s_bitcmp1_b32 s63, {k}
s_cbranch_scc1 {L}g
{L}p:
ds_read_b64 v[0:1], v10 offset:{MSK}
s_waitcnt lgkmcnt(0)
v_readfirstlane_b32 s30, v0
v_readfirstlane_b32 s31, v1
s_lshr_b64 s[30:31], s[30:31], s56
s_mov_b32 s63, s30
s_bitcmp1_b32 s30, {k}
s_cbranch_scc1 {L}g
s_sleep 1
s_branch {L}p
{L}g:
""")
            load(k)
            A(f"{L}n:")
        load(8); load(9)
        A(f"{E}_id{T}:"); MK("c6")
    A(f"""
ds_read_b32 v1, v11
v_mul_u32_u24 v12, 1280, v4
v_bfe_u32 v13, v2, 2, 2
v_and_b32 v7, 3, v2
v_lshl_add_u32 v{OA}, v3, 3, v12
v_lshlrev_b32 v13, 6, v13
v_lshl_add_u32 v13, v7, 3, v13
v_bfe_u32 v12, v2, 4, 1
v_lshl_add_u32 v13, v12, 5, v13
v_add_u32 v13, s58, v13
v_lshl_add_u32 v{VW}, v3, 8, v13
v_add_u32 v{VR}, v14, v13
s_sub_u32 s26, s54, 1
v_sub_u32 v14, s26, v2
v_and_b32 v14, 3, v14
s_lshl_b32 s26, s52, 4
s_add_u32 s26, s26, {SENT}
v_lshl_add_u32 v{SP}, v14, 2, s26
s_lshl_b32 s27, s54, 2
s_add_u32 s27, s27, s26
s_mov_b32 s62, {P['spin']}
v_add_u32 v12, s59, v5
s_lshl_b32 s30, s54, 2
v_mov_b32 v13, s30
""")
    nw_ = [0]
    def lwait(thr, ar=11):
        k = nw_[0]; nw_[0] += 1
        A(f"""
{E}_lw{k}:
s_waitcnt lgkmcnt(0)
v_cmp_gt_u32 vcc, {thr}, v1
s_cbranch_vccz {E}_lwd{k}
s_sleep {P['psl']}
ds_read_b32 v1, v{ar}
s_branch {E}_lw{k}
{E}_lwd{k}:
""")
    def perq4(tag, body):
        for q in range(4):
            if q < 3: A(f"s_cmp_lg_u32 s54, {q}\ns_cbranch_scc1 {E}_{tag}{q+1}")
            body(q)
            if q < 3: A(f"s_branch {E}_{tag}d\n{E}_{tag}{q+1}:")
        A(f"{E}_{tag}d:")
    lwait(F_WO)
    A(f"s_cmp_lg_u32 s52, 0\ns_cbranch_scc1 {E}_tB")
    for ty, nb in ((0, 3), (1, 2)):
        T = "AB"[ty]
        if ty: A(f"{E}_tB:")
        WB = AC + 16 * nb
        nbuf = min(10, (168 - WB) // (4 * nb))
        q = []
        def need(tag):
            idx = max([i for i, t in enumerate(q) if t == tag], default=-1)
            if idx >= 0:
                A(f"s_waitcnt lgkmcnt({min(len(q) - 1 - idx, 15)})"); del q[:idx + 1]
        later = lambda k: (7 - k + 4) if k < 8 else (2 if k == 8 else 0)
        def wr(k, lo=0, hi=99):
            b = WB + (k % nbuf) * 4 * nb
            for u in range(max(lo, 0), min(hi, nb)):
                if k < 8: a = VW; o1 = u * 10240 + k * 1280; o2 = o1 + 512
                else: a = VR; o1 = u * 10240 + (k - 8) * 5120 + 1024; o2 = o1 + 1280
                A(f"ds_read_b64_tr_b16 {vr(b+4*u,2)}, v{a} offset:{o1}"); q.append((k, u))
                A(f"ds_read_b64_tr_b16 {vr(b+4*u+2,2)}, v{a} offset:{o2}"); q.append((k, u))
        for k in range(nbuf): wr(k)
        if ty == 0:
            for j in range(4): A(f"s_sub_u32 s30, {j+3}, s54\ns_and_b32 s30, s30, 3\ns_mul_i32 s30, s30, 3072\ns_add_u32 s{32+j}, s30, s58\ns_add_u32 s{32+j}, s{32+j}, 20480")
            for r in range(3): A(f"s_sub_u32 s30, s54, {r+1}\ns_and_b32 s30, s30, 3\ns_mul_i32 s30, s30, 30720\ns_add_u32 s{36+r}, s30, {WO + 20480 + r*3072}")
        else:
            A(f"s_lshl_b32 s31, s54, 12\ns_add_u32 s31, s31, {FREE - 2048}")
            for j in range(4): A(f"s_sub_u32 s30, {j+3}, s54\ns_and_b32 s30, s30, 3\ns_lshl_b32 s{32+j}, s30, 11\ns_add_u32 s{32+j}, s{32+j}, s31\ns_cmp_eq_u32 s30, 0\ns_cselect_b32 s{32+j}, s59, s{32+j}")
            for r in range(3):
                A(f"s_sub_u32 s30, s54, {r+1}\ns_and_b32 s30, s30, 3\ns_mul_i32 s30, s30, {5120 if r == 0 else 4096}\ns_add_u32 s{36+r}, s30, {PR if r == 0 else FREE + (r-1)*2048}")
        for k in range(16 * nb): A(f"v_mov_b32 v{AC+k}, 0")
        issue_rest(T)
        A("ds_read_b32 v1, v13")
        lwait(F_FX, 13)
        q.clear()
        perq4(f"fx{T}", lambda qq: [A(f"ds_read_b128 {vr(AC+16*t+4*qq,4)}, v12 offset:{(2048 if ty == 0 else 0) + t*1024}") for t in range(nb)])
        A("s_waitcnt lgkmcnt(0)")
        for k in range(10):
            A(f"s_waitcnt vmcnt({later(k)})")
            o = OB + 4 * k
            A(f"""
{E}_ck{T}{k}:
v_max3_u32 v1, v{o}, v{o+1}, v{o+2}
v_max_u32 v1, v1, v{o+3}
v_cmp_eq_u32 vcc, -1, v1
s_cbranch_vccnz {E}_rt{T}{k}
{E}_bk{T}{k}:
""")
            b = WB + (k % nbuf) * 4 * nb
            nx = k + nbuf
            for u in range(nb):
                need((k, u))
                A(f"v_mfma_f32_32x32x16_bf16 {vr(AC+16*u,16)}, {vr(b+4*u,4)}, {vr(o,4)}, {vr(AC+16*u,16)}")
                if nx < 10 and u >= 1: wr(nx, u - 1, u)
            if nx < 10: wr(nx, nb - 1, nb)
        MK("c8")
        for j in range(4): A(f"v_add_u32 v{16+j}, s{32+j}, v5")
        for r in range(3): A(f"v_add_u32 v{20+r}, s{36+r}, v5")
        A("v_mov_b32 v13, s27\ns_mov_b32 s63, 7")
        for j in range(4):
            A(f"s_cmp_eq_u32 s54, {j}\ns_cbranch_scc1 {E}_ns{T}{j}")
            for t in range(nb): A(f"ds_write_b128 v{16+j}, {vr(AC+16*t+4*j,4)} offset:{t*1024}")
            A(f"{E}_ns{T}{j}:")
        A(f"""
s_waitcnt lgkmcnt(0)
ds_write_b32 v13, v13
{E}_sp{T}:
ds_read_b32 v1, v{SP}
s_waitcnt lgkmcnt(0)
v_cmp_ne_u32 vcc, 0, v1
s_and_b32 s30, vcc_lo, s63
""")
        for r in range(3):
            A(f"s_bitcmp1_b32 s30, {r}\ns_cbranch_scc0 {E}_nr{T}{r}")
            for t in range(nb): A(f"ds_read_b128 {vr(WB+4*(3*t+r),4)}, v{20+r} offset:{t*1024}")
            A(f"{E}_nr{T}{r}:")
        A(f"""
s_andn2_b32 s63, s63, s30
s_cbranch_scc1 {E}_sp{T}
s_waitcnt lgkmcnt(0)
""")
        MK("c9")
        def fin(qq):
            for t in range(nb):
                a = AC + 16 * t + 4 * qq; r = WB + 12 * t
                for k in range(4): A(f"v_add_f32 v{a+k}, v{a+k}, v{r+k}\nv_add_f32 v{r+4+k}, v{r+4+k}, v{r+8+k}")
                for k in range(4): A(f"v_add_f32 v{a+k}, v{a+k}, v{r+4+k}")
                A(f"v_cvt_pk_bf16_f32 v{a}, v{a}, v{a+1}\nv_cvt_pk_bf16_f32 v{a+1}, v{a+2}, v{a+3}")
                A(f"buffer_store_dwordx2 {vr(a,2)}, v{OA}, s[48:51], s55 offen")
                if t < nb - 1: A("s_add_u32 s55, s55, s53")
            A("s_endpgm")
        for qq in range(4):
            if qq < 3: A(f"s_cmp_lg_u32 s54, {qq}\ns_cbranch_scc1 {E}_fn{T}{qq+1}")
            fin(qq)
            if qq < 3: A(f"{E}_fn{T}{qq+1}:")
        for k in range(10):
            A(f"""
{E}_rt{T}{k}:
s_sub_u32 s62, s62, 1
s_cbranch_scc1 {E}_bk{T}{k}
""")
            if P["rtsl"]: A(f"s_sleep {P['rtsl']}")
            for kk in range(k, 10): load(kk)
            A(f"s_waitcnt vmcnt({later(k)})\ns_branch {E}_ck{T}{k}")
    A(f"""
{E}_fb:
s_waitcnt lgkmcnt(0)
v_lshlrev_b32 v5, 4, v2
v_lshlrev_b32 v6, 4, v4
v_mul_u32_u24 v7, {SV}, v3
v_lshl_add_u32 v7, v4, 4, v7
v_add_u32 v15, {2*SV}, v7
v_mov_b32 v1, 0xff800000
s_add_u32 s18, s16, 40960
s_mov_b32 s26, s18
s_mov_b32 s27, 64
{E}_fb1:
s_add_u32 s30, s26, s17
buffer_load_dwordx4 {vr(KM,4)}, v5, s[44:47], s26 offen{SC}
buffer_load_dwordx2 {vr(KR,2)}, v6, s[44:47], s30 offen{SC}
s_waitcnt vmcnt(0)
v_mfma_f32_32x32x16_bf16 {vr(S[0],16)}, {vr(KM,4)}, {vr(QM,4)}, 0
v_mfma_f32_32x32x8_bf16 {vr(S[0],16)}, {vr(KR,2)}, {vr(QR,2)}, {vr(S[0],16)}
""")
    for k in range(8): A(f"v_max3_f32 v1, v1, v{S[0]+2*k}, v{S[0]+2*k+1}")
    A(f"""
s_add_u32 s26, s26, {TS}
s_sub_u32 s27, s27, 1
s_cmp_lg_u32 s27, 0
s_cbranch_scc1 {E}_fb1
v_mov_b32 v14, v1
v_permlane32_swap_b32 v1, v14
v_max_f32 v1, v1, v14
""")
    for i in range(16): A(f"v_sub_f32 v{CB+i}, 0, v1\nv_mov_b32 v{O+i}, 0")
    A(f"""
s_mov_b32 s26, s18
s_mul_i32 s28, s14, 320
s_add_u32 s28, s28, {QF + VOFF}
s_mov_b32 s27, 64
{E}_fb2:
s_add_u32 s30, s26, s17
buffer_load_dwordx4 {vr(KM,4)}, v5, s[44:47], s26 offen{SC}
buffer_load_dwordx2 {vr(KR,2)}, v6, s[44:47], s30 offen{SC}
s_mov_b64 exec, s[22:23]
buffer_load_dwordx4 {vr(V0,4)}, v7, s[44:47], s28 offen{SC}
buffer_load_dwordx4 {vr(V1,4)}, v15, s[44:47], s28 offen{SC}
s_mov_b64 exec, -1
s_waitcnt vmcnt(0)
""")
    M1(0); M2(0)
    Ex(0, *range(16)); Cv(0, *range(8))
    A(f"""
v_mfma_f32_32x32x16_bf16 {vr(O,16)}, {vr(V0,4)}, {vr(S[0],4)}, {vr(O,16)}
v_mfma_f32_32x32x16_bf16 {vr(O,16)}, {vr(V1,4)}, {vr(S[0]+8,4)}, {vr(O,16)}
s_add_u32 s26, s26, {TS}
s_add_u32 s28, s28, {TS}
s_sub_u32 s27, s27, 1
s_cmp_lg_u32 s27, 0
s_cbranch_scc1 {E}_fb2
s_nop 15
s_branch {E}_epi
""")
    DK, DR, DV, DW = 60, 61, 62, 63
    A(f"{E}_ffn:")
    head_scalars()
    A(f"""
v_lshlrev_b32 v5, 4, v2
s_mul_i32 s20, s29, {TS}
s_add_u32 s20, s20, s16
s_add_u32 s20, s20, 40960
v_add_u32 v{DK}, s20, v5
s_add_u32 s20, s20, s17
v_lshrrev_b32 v6, 1, v2
v_and_b32 v7, 1, v2
v_lshlrev_b32 v7, 2, v7
v_lshl_add_u32 v6, v6, 4, v7
v_add_u32 v{DR}, s20, v6
s_lshl_b32 s17, s29, 10
s_lshl_b32 s18, s29, 8
s_mul_i32 s20, s14, 320
s_add_u32 s20, s20, {QF + VOFF}
s_lshl_b32 s21, s29, 6
s_lshl_b32 s22, s29, 4
s_add_u32 s22, s22, 256
s_lshr_b32 s11, s15, 1
s_mul_i32 s11, s11, {P['rot']}
""")
    PA = 64
    poll_addr(PA, 30, 31)
    def vaddr(dst, ci):
        A(f"""
v_mul_u32_u24 v8, 3277, v{ci}
v_lshrrev_b32 v8, 16, v8
v_mul_u32_u24 v9, 20, v8
v_sub_u32 v9, v{ci}, v9
v_lshrrev_b32 v10, 2, v8
v_and_b32 v8, 3, v8
v_mul_u32_u24 v10, {TS}, v10
v_mul_u32_u24 v8, {SV}, v8
v_lshl_add_u32 v9, v9, 4, s20
v_add3_u32 v{dst}, v8, v9, v10
""")
    A("v_add_u32 v6, s21, v2"); vaddr(DV, 6)
    A("v_lshrrev_b32 v6, 2, v2\nv_add_u32 v6, s22, v6"); vaddr(DW, 6)
    A(f"v_and_b32 v6, 3, v2\nv_lshl_add_u32 v{DW}, v6, 2, v{DW}")
    def dma(G):
        b = G * 10240
        if G == 0: A(f"s_cmp_eq_u32 s29, 0\ns_cbranch_scc1 {E}_d0")
        A(f"s_add_u32 m0, s17, {b}\nbuffer_load_dwordx4 v{DK}, s[44:47], s19 offen{P['dsc']} lds")
        if G == 0: A(f"{E}_d0:")
        A(f"s_add_u32 m0, s18, {b+4096}\nbuffer_load_dword v{DR}, s[44:47], s19 offen{P['dsc']} lds")
        A(f"s_add_u32 m0, s17, {b+5120}\nbuffer_load_dwordx4 v{DV}, s[44:47], s19 offen{P['dsc']} lds")
        A(f"s_add_u32 m0, s18, {b+9216}\nbuffer_load_dword v{DW}, s[44:47], s19 offen{P['dsc']} lds")
        if G < 15: A(f"s_add_u32 s19, s19, {4*TS}\ns_cmp_ge_u32 s19, {64*TS}\ns_cselect_b32 s21, {64*TS}, 0\ns_sub_u32 s19, s19, s21")
    WA, FX, FP, XA = 76, 79, 84, 85
    HA, WFA = 65, 66
    A(f"""
v_lshrrev_b32 v{FP}, {LF}, v2
v_and_b32 v16, {(1 << LF) - 1}, v2
v_lshlrev_b32 v{FP}, 7, v{FP}
v_lshl_add_u32 v{FP}, v16, 2, v{FP}
v_mov_b32 v16, {108*128}
s_lshr_b32 s14, s40, 1
s_lshl_b32 s14, s14, 3
s_and_b32 s24, s41, 7
s_add_u32 s14, s14, s24
s_lshl_b32 s56, s14, {13 - LF}
s_add_u32 s56, s56, {FL2}
s_mul_i32 s30, s14, {27*128}
s_add_u32 s30, s30, {FH}
v_min_u32 v{HA}, 26, v4
v_lshl_add_u32 v{HA}, v{HA}, 7, s30
s_lshl_b32 s14, s14, 1
s_bfe_u32 s25, s41, 0x10003
s_xor_b32 s15, s25, 1
s_add_u32 s15, s15, s14
s_add_u32 s14, s14, s25
s_and_b32 s27, s40, 1
s_lshl_b32 s27, s27, 1
s_lshr_b32 s16, s41, 4
s_add_u32 s27, s27, s16
s_mul_i32 s30, s27, 108
s_add_u32 s30, s30, s29
s_lshl_b32 s30, s30, 7
s_add_u32 s30, s30, {FW}
v_min_u32 v{WFA}, 26, v4
v_lshl_add_u32 v{WFA}, v{WFA}, 9, s30
v_mad_u32_u24 v{WFA}, v3, v16, v{WFA}
s_and_b32 s24, s41, 15
s_mul_i32 s24, s24, 27
s_lshr_b32 s24, s24, 4
s_mul_i32 s24, s24, {P['frot']}
s_add_u32 s20, s17, {HF}
s_mul_i32 s23, s29, 20480
s_mul_i32 s28, s27, 5120
s_add_u32 s23, s23, s28
s_add_u32 s23, s23, {W2F}
s_add_u32 s22, s20, {27*4096}
s_lshl_b32 s16, s24, 12
s_add_u32 s16, s16, s20
s_mul_i32 s26, s24, 81920
s_add_u32 s26, s26, s23
s_mul_i32 s30, s14, {108*1024}
s_mul_i32 s31, s15, {108*1024}
v_add_u32 v8, s30, v5
v_add_u32 v9, s31, v5
s_lshl_b32 s30, s25, 12
s_lshl_b32 s31, s25, 11
s_add_u32 s31, s31, 1024
v_add_u32 v10, s30, v5
v_add_u32 v11, s31, v5
v_add_u32 v12, 2048, v5
v_mov_b32 v7, s29
v_lshlrev_b32 v7, 2, v7
v_and_b32 v1, 7, v2
v_lshlrev_b32 v1, 2, v1
v_and_b32 v15, 12, v1
v_mul_u32_u24 v{XA}, 1280, v4
v_lshl_add_u32 v{XA}, v3, 3, v{XA}
s_mul_i32 s52, s27, 320
s_lshl_b32 s53, s29, 4
s_add_u32 s53, s53, s52
s_mul_i32 s54, s14, 40960
s_mul_i32 s55, s15, 40960
s_add_u32 s54, s54, s53
s_add_u32 s55, s55, s53
s_lshl_b32 s57, s25, 8
s_lshl_b32 s58, s25, 7
s_add_u32 s52, s52, s57
s_sub_u32 s59, 64, s58
s_add_u32 s58, s58, 64
s_add_u32 s30, s55, s57
s_add_u32 s31, s55, s58
s_add_u32 s32, s54, s57
s_add_u32 s33, s54, s58
s_add_u32 s34, s54, 128
s_sub_u32 s54, s29, 1
s_add_u32 s53, s59, 204800
s_mul_i32 s53, s53, s54
s_add_u32 s52, s52, s53
s_mul_i32 s53, s54, 40960
s_add_u32 s53, s53, {WO}
v_lshrrev_b32 v16, 2, v2
v_and_b32 v17, 3, v2
v_mul_u32_u24 v16, 1280, v16
v_lshl_add_u32 v{WA}, v17, 4, v16
s_mul_i32 s54, s29, 5120
s_add_u32 s54, s54, {PR}
v_add_u32 v{FX}, s54, v5
s_sub_u32 s60, s59, 184320
s_lshl_b32 s61, s59, 1
s_sub_u32 s61, 20480, s61
s_cmp_eq_u32 s29, 3
s_cselect_b32 s54, 9, 0
s_cselect_b32 s55, 10, 0
s_cselect_b32 s63, 11, 0
s_cselect_b32 s3, 12, 0
s_cselect_b32 s62, 13, 0
s_cselect_b32 s57, s61, s60
s_cmp_eq_u32 s29, 2
s_cselect_b32 s62, 9, s62
s_cselect_b32 s58, s61, s60
s_cmp_eq_u32 s29, 1
s_cselect_b32 s59, s61, s60
v_mov_b32 v6, {RLY}
s_mov_b32 s10, {P['spin']}
s_mov_b32 s8, 0
""")
    MK("lS")
    for G in range(G0):
        m = 3 << (2 * G)
        A(f"""
{E}_rw{G}:
s_and_b32 s9, s8, {m}
s_cmp_eq_u32 s9, {m}
s_cbranch_scc1 {E}_rg{G}
ds_read_b32 v0, v6 offset:4
s_waitcnt lgkmcnt(0)
v_readfirstlane_b32 s8, v0
s_branch {E}_rw{G}
{E}_rg{G}:
""")
        if G == 0: MK("lG")
        dma(G)
    A(f"s_waitcnt vmcnt({4*(G0-1)}) lgkmcnt(0)\ns_barrier")
    MK("lB")
    C1 = P["c1"]
    def flag(v): A(f"v_mov_b32 v0, {v}\nds_write_b32 v7, v0")
    if G0 >= 2: A(f"s_waitcnt vmcnt({4*(G0-2)})"); flag(F_G1)
    def gwait(G):
        m = (3 << (2 * G)) & 0xffffffff
        A(f"""
{E}_gw{G}:
s_and_b32 s9, s8, {hex(m)}
s_cmp_eq_u32 s9, {hex(m)}
s_cbranch_scc1 {E}_gg{G}
buffer_load_dwordx4 v[68:71], v{PA}, s[44:47], 0 offen sc1
s_waitcnt vmcnt(0)
v_min_u32 v69, v69, v70
v_cmp_ne_u32 s[8:9], 0, v69
s_and_b32 s8, s8, s9
s_mov_b32 s9, s8
s_lshr_b64 s[8:9], s[8:9], s11
s_sub_u32 s10, s10, 1
s_cselect_b32 s8, -1, s8
s_cselect_b32 s10, 0, s10
s_branch {E}_gw{G}
{E}_gg{G}:
""")
    nst = 0
    for G in range(G0, 16):
        gwait(G); dma(G)
        if G == P["w2g"]:
            if P["now2"]: A("s_mov_b32 s9, s66\ns_mov_b32 s66, 0")
            for c in range(4): A(f"buffer_store_dwordx4 {vr(88+4*c,4)}, v5, s[64:67], s69 offen offset:{1024*c}{ST}")
            if P["now2"]: A("s_mov_b32 s66, s9")
        if G0 == 1 and G == 2:
            n = 4 * (G - 1) + (4 if 1 <= P["w2g"] <= G else 0)
            A(f"s_waitcnt vmcnt({n})"); flag(F_G1)
        if G == 5 + C1:
            n = 4 * C1 + (4 if 5 <= P["w2g"] <= G else 0)
            A(f"s_waitcnt vmcnt({n})"); flag(F_G5); MK("l4")
    A(f"""
s_waitcnt vmcnt({4 * (15 - P["w2g"])})
v_mov_b32 v0, 1
s_mov_b64 exec, 1
buffer_store_dword v0, off, s[64:67], s68 sc1
s_mov_b64 exec, -1
""")
    if P["hgate"]:
        A("s_waitcnt vmcnt(1)"); flag(F_ALL)
        A(f"""
{E}_hq:
ds_read_b32 v0, v1 offset:64
s_waitcnt lgkmcnt(0)
v_cmp_gt_u32 vcc, {P['hgate']}, v0
s_cbranch_vccz {E}_hw
s_sleep 4
s_branch {E}_hq
""")
    A(f"""
{E}_hw:
buffer_load_dword v68, v{HA}, s[44:47], 0 offen sc1
buffer_load_dword v69, v{WFA}, s[44:47], 0 offen sc1
s_waitcnt vmcnt(2)
""")
    flag(F_ALL)
    A(f"""
s_waitcnt vmcnt(0)
v_min_u32 v68, v68, v69
v_cmp_eq_u32 s[8:9], 0, v68
s_or_b32 s8, s8, s9
s_and_b32 s8, s8, 0x7ffffff
s_cbranch_scc0 {E}_hg
s_sub_u32 s10, s10, 1
s_cselect_b32 s10, 0, s10
s_cbranch_scc1 {E}_hg
s_sleep {P['hsl']}
s_branch {E}_hw
{E}_hg:
""")
    MK("lH")
    ACC = 88
    class VQ_:
        def __init__(s): s.q = []
        def op(s, tag, txt): A(txt); s.q.append(tag)
        def need(s, *tags):
            idx = max([i for i, t in enumerate(s.q) if t in tags], default=-1)
            if idx >= 0:
                A(f"s_waitcnt vmcnt({len(s.q) - 1 - idx})"); s.q = s.q[idx + 1:]
    VQ = VQ_()
    addr = {0: (9, 16), 1: (10, 26), 2: (11, 26), 3: (12, 26), 4: (8, 16)}
    def fl(i, j):
        b = 16 + 20 * (i % 3)
        VQ.op((i, j), f"buffer_load_dwordx4 {vr(b+4*j,4)}, v{addr[j][0]}, s[44:47], s{addr[j][1]} offen{P['fsc']}")
        if j == 4: A("s_add_u32 s16, s16, 4096\ns_add_u32 s26, s26, 81920\ns_cmp_eq_u32 s16, s22\ns_cselect_b32 s16, s20, s16\ns_cselect_b32 s26, s23, s26")
    for i in range(3):
        for j in range(5): fl(i, j)
    A(f"s_setprio {P['prio_ffn']}")
    blk = [(0, 1), (0, 2), (4, 1), (4, 2), (4, 3)]
    after = {1: [0], 2: [1], 3: [2], 4: [3, 4]}
    for i in range(27):
        b = 16 + 20 * (i % 3)
        for t, (hj, wj) in enumerate(blk):
            VQ.need((i, hj), (i, wj))
            c = "0" if i == 0 else vr(ACC + 16 * t, 16)
            A(f"v_mfma_f32_32x32x16_bf16 {vr(ACC+16*t,16)}, {vr(b+4*wj,4)}, {vr(b+4*hj,4)}, {c}")
            if i + 3 < 27:
                for j in after.get(t, []): fl(i + 3, j)
    RED = 2560
    MK("l2")
    A(f"s_setprio {P['prio_red']}")
    for q in range(4):
        A(f"s_sub_u32 s16, s29, {q+1}\ns_and_b32 s16, s16, 3\ns_mul_i32 s16, s16, 5120\ns_add_u32 s16, s16, {RED + q*15360}\nv_add_u32 v{8+q}, s16, v5")
    A(f"""
s_mul_i32 s17, s29, 15360
s_add_u32 s17, s17, {RED}
v_add_u32 v12, s17, v5
s_mov_b32 s48, s4
s_mov_b32 s49, s5
s_mov_b32 s50, 2621440
s_mov_b32 s51, 0x20000
s_mov_b32 s36, 0xffff0000
""")
    npw = [0]
    def pwait(reg, off, thr, sl=2):
        k = npw[0]; npw[0] += 1
        A(f"""
{E}_pw{k}:
ds_read_b32 v0, v{reg} offset:{off}
s_waitcnt lgkmcnt(0)
v_cmp_gt_u32 vcc, {thr}, v0
s_cbranch_vccz {E}_pwd{k}
s_sleep {sl}
s_branch {E}_pw{k}
{E}_pwd{k}:
""")
    pwait(1, 64, 2 * P["T1"], 4)
    for q in range(4):
        A(f"s_cmp_eq_u32 s29, {q}\ns_cbranch_scc1 {E}_nx{q}")
        for t in range(5): A(f"ds_write_b128 v{8+q}, {vr(ACC+16*t+4*q,4)} offset:{t*1024}")
        A(f"{E}_nx{q}:")
    flag(F_RW)
    pwait(15, 0, F_RW, 1)
    for t in range(5):
        for jj in range(3):
            A(f"ds_read_b128 {vr(16+12*t+4*jj,4)}, v12 offset:{jj * 5120 + t * 1024}")
    def perq(tag, body):
        for q in range(4):
            if q < 3: A(f"s_cmp_lg_u32 s29, {q}\ns_cbranch_scc1 {E}_{tag}{q+1}")
            body(q)
            if q < 3: A(f"s_branch {E}_{tag}d\n{E}_{tag}{q+1}:")
        A(f"{E}_{tag}d:")
    xr = lambda q, t: ACC + 16 * t + 4 * ((q + 1) & 3)
    perq("x", lambda q: [A(f"buffer_load_dwordx2 {vr(xr(q,t),2)}, v{XA}, s[48:51], s{30+t} offen") for t in range(5)])
    A("s_waitcnt lgkmcnt(0)"); flag(F_RR)
    MK("l7")
    A(f"""
s_setprio 3
s_mov_b32 s48, s6
s_mov_b32 s49, s7
s_mov_b32 s50, 819200
""")
    def fin(q):
        for t in range(5):
            b = 16 + 12 * t; o = ACC + 16 * t + 4 * q; x = xr(q, t)
            for k in range(4): A(f"v_add_f32 v{b+k}, v{b+k}, v{o+k}")
            for k in range(2): A(f"v_lshlrev_b32 v{o+2*k}, 16, v{x+k}\nv_and_b32 v{o+2*k+1}, s36, v{x+k}")
            for k in range(4): A(f"v_add_f32 v{b+4+k}, v{b+4+k}, v{b+8+k}")
            for k in range(4): A(f"v_add3_f32 v{b+k}, v{b+k}, v{b+4+k}, v{o+k}" if False else f"v_add_f32 v{b+k}, v{b+k}, v{b+4+k}")
            for k in range(4): A(f"v_add_f32 v{b+k}, v{b+k}, v{o+k}")
    def adds(n):
        A(f"s_setprio {P['prio_add']}\ns_waitcnt vmcnt({n})"); perq("fin", fin); A("s_setprio 3")
    A(f"s_cmp_eq_u32 s29, 0\ns_cbranch_scc1 {E}_nd")
    pwait(15, 0, F_RR, 1)
    for m in range(40):
        if m in (0, 9, 19, 29, 39): pwait(1, 64, {0: "s54", 9: "s55", 19: "s63", 29: "s3", 39: "s62"}[m], P['wsl'])
        A(f"s_add_u32 m0, s53, {m*1024}\nbuffer_load_dwordx4 v{WA}, s[48:51], s52 offen lds")
        if m % 10 < 9: A("s_add_u32 s52, s52, 20480")
        elif m < 39: A(f"s_add_u32 s52, s52, s{57 + m // 10}")
    MK("l8")
    A(f"s_waitcnt vmcnt(0)\n{E}_nd:"); flag(F_WO)
    A(f"s_cmp_eq_u32 s29, 0\ns_cbranch_scc1 {E}_pl")
    adds(0)
    def fxw():
        for t in range(5): A(f"ds_write_b128 v{FX}, {vr(16+12*t,4)} offset:{t*1024}")
        flag(F_FX)
    pwait(1, 64, 16, P['rsl'])
    fxw()
    A(f"s_waitcnt lgkmcnt(0)\ns_endpgm\n{E}_pl:")
    PV = 80
    A(f"s_waitcnt vmcnt(0)\nv_mov_b32 v{PV}, 0\nv_mov_b32 v6, 0\ns_mov_b32 s57, {P['spin']}\ns_mov_b32 s58, 0\ns_mov_b32 s59, 0")
    if P["pgate"]: pwait(1, 64, P["pgate"], P['wsl'])
    A(f"""
{E}_rp:
s_sub_u32 s59, s59, 1
s_cbranch_scc0 {E}_np
s_mov_b32 s59, {P['pper']}
s_waitcnt vmcnt({P['pd'] - 1})
buffer_load_dword v{PV}, v{FP}, s[44:47], s56 offen{P['psc']}
{E}_np:
ds_read_b32 v0, v1 offset:64
v_cmp_ne_u32 s[60:61], 0, v{PV}
s_sub_u32 s57, s57, 1
s_cselect_b64 s[60:61], -1, s[60:61]
s_cselect_b32 s57, 0, s57
v_mov_b32 v8, s60
v_mov_b32 v9, s61
ds_write_b64 v6, v[8:9] offset:{MSK}
s_cmp_lg_u32 s58, 0
s_cbranch_scc1 {E}_rr
s_waitcnt lgkmcnt(1)
v_cmp_gt_u32 vcc, 16, v0
s_cbranch_vccnz {E}_rs
""")
    fin(0); fxw()
    A(f"""
s_mov_b32 s58, 1
{E}_rr:
s_cmp_eq_u64 s[60:61], -1
s_cbranch_scc1 {E}_go
{E}_rs:
s_sleep {P['rsl']}
s_branch {E}_rp
{E}_go:
s_waitcnt vmcnt(0) lgkmcnt(0)
{E}_end:
s_endpgm
""")
    A.end(name, 168, 72)
```

```python
from asmlib import *
from layout import *

NP = 4
DEF = dict(cpf=None, kpar=0, kbit=0, krot=(1, 4), st=" sc1", lprio=3, gtab=None, cntp=1, eprio=3,
           offs=96.0, T1=4, prio_ffn=0, prio_red=1, prio_add=0, c1=3, prios=(3, 2, 1, 0), rot=0, frot=1,
           order="M1 E8 E9 C0 C1 E10 E11 M2 K C2 C3 E12 E13 E14 E15 M3 C4 C5 N0 N1 C6 C7 N2 N3 M4 V N4 N5 N6 N7", npre=8,
           osc=" sc1", lsc=" sc1", psl=2, spin=2000000, rsl=1, wsl=8, G0=2, hint=(7, 4), bq=2, pgate=13, rtsl=0, pd=1, pper=12,
           psc=' sc1', hsc=' sc1', qsl=1, hst=(0, 0, 1, 1, 2, 2, 3, 3), ofp=5, hfl=(0, 7), w2g=5, marks=None, hsl=2, noh=0, noof=0, now2=0, dsc=' sc1', fsc=' sc1', qdel=0, hgate=2,
           xsl=(5,6,7,8,9,5,6,7,8,9, 5,6,7,8,9, 5,6,8,9,5), wsl_=(1,2,3,4,1,2,3,4,1,2, 3,4,1,2,3, 4,7,2,3,4), nxr=5,
           xb=(81920, 147456), wb=(16384, 114688), cs_slot=6, w2_slot=7, w2_after=16, w2at=13, qtry=16, cntl=32, early=1, qprio=2, hprio=1, pw=3, sched=((0, 1), (2, 3), (4, 5), ()), finearly=0, c0=3, pk=1, xah=9, wah=9, w1min=-1, pf=None, dsl=0, qsp=3, rws=1, nold=0, nostat=0, stat='v', clr=(0, 3), pf2=None)
WO = 1024; PR = 143360; MSK = 96; SENT = 128; FREE = 123904
LAND = 160; DONE = 176; PUB = 192; CSF = 208; RLY = 224
F_G1, F_G5, F_ALL, F_RW, F_RR, F_WO, F_FX = 1, 2, 3, 4, 5, 6, 7
LF = 2
HD = [0, 0, 0, 1, 2, 2, 2, 3, 4, 4, 4, 4, 5, 5, 5, 5]
H1 = (2, 3, 6, 7, 11)

def gen_f(A, name, P=None):
    P = dict(DEF, **(P or {}))
    XS = 1024; RB = 1536; CSQ = 2048
    XSL, WSL, NXR = P['xsl'], P['wsl_'], P['nxr']
    ST = P["st"]; SC = " sc1"
    G0 = P["G0"]
    A.begin(name)
    E = "L_f"
    def MK(tag):
        if P["marks"] and tag in P["marks"]: A(f"; MARK {P['marks'][tag]}")
    hd = sum(v << (4 * i) for i, v in enumerate(HD))
    GT = ""
    if P["gtab"]:
        t = sum(v << (4 * i) for i, v in enumerate(P["gtab"]))
        GT = f"s_lshl_b32 s15, s15, 2\ns_mov_b32 s16, {hex(t & 0xffffffff)}\ns_mov_b32 s17, {hex(t >> 32)}\ns_lshr_b64 s[16:17], s[16:17], s15\ns_and_b32 s15, s16, 15"
    CP = ""
    if P["cpf"]:
        n0, n1 = P["cpf"]
        CP = f"""s_getpc_b64 s[42:43]
{E}_pc:
s_lshr_b32 s3, s2, 3
s_mul_i32 s3, s3, {n1}
v_mov_b32 v3, s3
v_cmp_gt_u32 vcc, {n0}, v0
v_cndmask_b32 v3, v3, 0, vcc
v_add_lshl_u32 v3, v3, v0, 7
v_min_u32 v3, {E}_end-{E}_pc, v3
v_mov_b32 v5, s43
v_add_co_u32 v4, vcc, s42, v3
v_addc_co_u32 v5, vcc, 0, v5, vcc
v_cmp_gt_u32 vcc, {n0 + n1}, v0
s_and_b64 exec, exec, vcc
s_cbranch_execz {E}_np0
global_load_dword v167, v[4:5], off
{E}_np0:
s_mov_b64 exec, -1"""
    A(f"""
s_cmp_ge_u32 s2, 256
s_cbranch_scc1 {E}_end
{CP}
s_load_dwordx4 s[4:7], s[0:1], 0
s_load_dwordx4 s[8:11], s[0:1], 32
s_load_dwordx2 s[12:13], s[0:1], 64
s_load_dwordx4 s[64:67], s[0:1], 48
v_lshrrev_b32 v1, 6, v0
v_and_b32 v2, 63, v0
s_and_b32 s40, s2, 7
s_lshr_b32 s41, s2, 3
v_readfirstlane_b32 s29, v1
s_and_b32 s14, s40, 1
s_lshl_b32 s14, s14, 3
s_and_b32 s15, s41, 7
s_add_u32 s14, s14, s15
s_lshr_b32 s15, s40, 1
s_lshl_b32 s15, s15, 2
s_lshr_b32 s16, s41, 3
s_add_u32 s15, s15, s16
{GT}
s_lshl_b32 s17, s15, 2
s_mov_b32 s18, {hex(hd & 0xffffffff)}
s_mov_b32 s19, {hex(hd >> 32)}
s_lshr_b64 s[18:19], s[18:19], s17
s_and_b32 s18, s18, 15
s_lshl_b32 s17, s15, 1
s_sub_u32 s19, s17, s18
s_mov_b32 s18, {sum(1 << g for g in H1)}
s_bitcmp1_b32 s18, s15
s_cselect_b32 s18, 1, 2
s_mov_b32 s46, {WS_BYTES}
s_mov_b32 s47, 0x20000
s_cmp_lt_u32 s29, 8
s_cbranch_scc1 {E}_comp
""")
    ra, rb = P["krot"]
    A(f"""
s_setprio {P['lprio']}
s_sub_u32 s29, s29, 8
s_mov_b32 s22, 2621440
s_mov_b32 s23, 0x20000
s_mov_b32 s27, 0x20000
s_mov_b32 s50, 2211840
s_mov_b32 s51, 0x20000
s_cmp_lt_u32 s15, 15
s_cselect_b32 s26, 2457600, 0
v_lshrrev_b32 v3, 3, v2
s_lshl_b32 s30, s29, 5
s_lshl_b32 s31, s14, 7
s_add_u32 s30, s30, s31
v_add_u32 v3, s30, v3
v_lshrrev_b32 v4, 4, v2
v_and_b32 v5, 7, v2
v_xor_b32 v6, v5, v4
v_xor_b32 v7, 4, v6
s_movk_i32 s32, 1280
v_mul_lo_u32 v3, v3, s32
v_lshl_add_u32 v10, v6, 4, v3
v_lshl_add_u32 v11, v7, 4, v3
v_add_u32 v11, 10240, v11
v_and_b32 v5, 15, v2
v_lshlrev_b32 v6, 2, v4
v_xor_b32 v5, v5, v6
s_lshl_b32 s30, s29, 4
v_add_u32 v4, s30, v4
v_mul_u32_u24 v6, 3840, v4
v_mul_u32_u24 v7, 3456, v4
s_lshl_b32 s31, s17, 7
s_lshl_b32 s33, s19, 7
v_lshl_add_u32 v6, v5, 4, v6
v_lshl_add_u32 v7, v5, 4, v7
v_add_u32 v12, s31, v6
v_add_u32 v44, s33, v7
s_lshl_b32 s33, s18, 3
v_mov_b32 v8, 0x7fffffff
v_cmp_gt_u32 vcc, s33, v5
s_lshr_b32 s35, s40, 1
s_mul_i32 s35, s35, {ra}
s_and_b32 s36, s40, 1
s_mul_i32 s36, s36, {rb}
s_add_u32 s35, s35, s36
s_bfe_u32 s36, s41, {0x10000 + P['kbit']}
s_mul_i32 s36, s36, {P['kpar']}
s_add_u32 s35, s35, s36
s_cmp_ge_u32 s35, 10
s_cselect_b32 s36, 10, 0
s_sub_u32 s35, s35, s36
""")
    for j in range(1, 4): A(f"v_add_u32 v{12+j}, {j*4*3840}, v12\nv_add_u32 v{44+j}, {j*4*3456}, v44")
    for j in range(4): A(f"v_cndmask_b32 v{44+j}, v8, v{44+j}, vcc")
    A(f"""
s_mul_i32 s36, s35, {64*3840}
s_add_u32 s39, s35, {10 - NXR}
s_cmp_ge_u32 s39, 10
s_cselect_b32 s30, 10, 0
s_sub_u32 s39, s39, s30
s_mul_i32 s39, s39, {64*3456}
s_lshl_b32 s35, s35, 7
s_lshl_b32 s37, s29, 12
s_waitcnt lgkmcnt(0)
s_mov_b32 s20, s4
s_mov_b32 s21, s5
s_mov_b32 s24, s6
s_mov_b32 s25, s7
s_mov_b32 s48, s8
s_mov_b32 s49, s9
""")
    if P["nold"]: A("s_mov_b32 s22, 0\ns_mov_b32 s26, 0\ns_mov_b32 s50, 0")
    class VQ_:
        def __init__(s): s.q = []
        def op(s, tag, txt): A(txt); s.q.append(tag)
        def need(s, *tags):
            idx = max([i for i, t in enumerate(s.q) if t in tags], default=-1)
            if idx >= 0:
                A(f"s_waitcnt vmcnt({len(s.q) - 1 - idx})"); s.q = s.q[idx + 1:]
    LQ = VQ_()
    def ld(kind, st):
        if kind == "x":
            base = XSL[st] * 16384
            A("s_add_u32 s30, s35, 20480")
            for j in range(4): LQ.op(("x", st), f"s_add_u32 m0, s37, {base + j*1024}\nbuffer_load_dwordx4 v{10+(j&1)}, s[20:23], s{35 if j < 2 else 30} offen lds")
            A("s_add_u32 s35, s35, 128\ns_cmp_eq_u32 s35, 1280\ns_cselect_b32 s35, 0, s35")
        elif st < 10:
            base = WSL[st] * 16384
            for j in range(4): LQ.op(("w", st), f"s_add_u32 m0, s37, {base + j*1024}\nbuffer_load_dwordx4 v{12+j}, s[24:27], s36 offen lds")
            A(f"s_add_u32 s36, s36, {64*3840}\ns_cmp_eq_u32 s36, {640*3840}\ns_cselect_b32 s36, 0, s36")
        else:
            base = WSL[st] * 16384
            for j in range(4): LQ.op(("w", st), f"s_add_u32 m0, s37, {base + j*1024}\nbuffer_load_dwordx4 v{44+j}, s[48:51], s39 offen lds")
            A(f"s_add_u32 s39, s39, {64*3456}\ns_cmp_eq_u32 s39, {640*3456}\ns_cselect_b32 s39, 0, s39")
    loads = [("x", st) for st in range(20) if not 10 <= st < 10 + NXR] + [("w", st) for st in range(20)]
    for i in range(NXR): assert XSL[10 + i] == XSL[10 - NXR + i]
    free = {}
    for kind, st in loads:
        sl = (XSL if kind == "x" else WSL)[st]
        free[(kind, st)] = max([u for u in range(st) if XSL[u] == sl or WSL[u] == sl], default=-1)
        if st < 10: free[(kind, st)] = max(free[(kind, st)], st - P[kind + "ah"] - 1)
        elif kind == "w": free[(kind, st)] = max(free[(kind, st)], P["w1min"])
    for u in range(20): assert XSL[u] != WSL[u]
    for i in range(NXR):
        for u in range(10 - NXR + i + 1, 10 + i): assert XSL[u] != XSL[10 + i] and WSL[u] != XSL[10 + i]
    for kd in "xw":
        f = [free[l] for l in loads if l[0] == kd]
        assert f == sorted(f), f
    S1LAST = max(u for u in range(20) if 1 in (XSL[u], WSL[u]))
    def issue_at(f):
        for l in sorted([l for l in loads if free[l] == f], key=lambda l: (l[1], l[0] == "w")): ld(*l)
    issue_at(-1)
    A(f"""
s_load_dwordx2 s[6:7], s[0:1], 16
v_mov_b32 v1, 0
v_lshrrev_b32 v0, 2, v2
v_cmp_eq_u32 vcc, {DONE // 16}, v0
v_cndmask_b32 v1, v1, 12, vcc
v_mov_b32 v0, 0x100
v_cmp_eq_u32 vcc, {RLY // 4}, v2
v_cndmask_b32 v1, v1, v0, vcc
v_lshlrev_b32 v7, 2, v2
ds_write_b32 v7, v1
v_and_b32 v1, 3, v2
v_lshlrev_b32 v1, 2, v1
s_lshl_b32 s30, s29, 2
v_mov_b32 v7, s30
""")
    A(f"""
s_mov_b32 s44, s12
s_mov_b32 s45, s13
s_mov_b32 s52, s10
s_mov_b32 s53, s11
s_mov_b32 s55, 0x20000
s_lshl_b32 s57, s29, 8
s_add_u32 s58, s57, s2
s_min_u32 s57, s58, 539
s_mul_i32 s59, s57, 13108
s_lshr_b32 s59, s59, 16
s_mul_i32 s60, s59, 5
s_sub_u32 s60, s57, s60
s_mul_i32 s61, s59, 20480
s_lshl_b32 s62, s60, 8
s_add_u32 s62, s62, s61
s_add_u32 s63, s62, 5120
v_lshrrev_b32 v3, 5, v2
v_and_b32 v4, 31, v2
v_mul_u32_u24 v5, 10240, v3
v_lshl_add_u32 v98, v4, 3, v5
s_cmp_ge_u32 s58, 540
s_cselect_b32 s54, 0, 2211840
s_mov_b32 s64, s12
s_mov_b32 s65, s13
s_mov_b32 s67, 0x20000
s_cselect_b32 s66, 0, {WS_BYTES}
v_lshrrev_b32 v5, 3, v4
v_and_b32 v6, 7, v2
v_lshlrev_b32 v5, 10, v5
v_lshl_add_u32 v5, v6, 6, v5
v_lshl_add_u32 v5, v3, 9, v5
s_add_u32 s34, s37, {P['w2_slot'] * 16384}
v_add_u32 v16, s34, v5
v_lshlrev_b32 v6, 4, v2
v_add_u32 v17, s34, v6
s_lshl_b32 s69, s60, 12
s_add_u32 s69, s69, s61
s_add_u32 s69, s69, {W2F}
s_mul_i32 s68, s60, 108
s_add_u32 s68, s68, s59
s_lshl_b32 s68, s68, 7
s_add_u32 s68, s68, {FW}
s_waitcnt lgkmcnt(0)
""")
    W2R = 100
    def w2loads():
        for j in range(8):
            LQ.op("w2", f"buffer_load_dwordx2 {vr(W2R+2*j,2)}, v98, s[52:55], s{62 + (j >> 2)} offen offset:{(j & 3) * 1280}")
    for st in range(10):
        if st >= 2: issue_at(st - 2)
        if P["w2at"] == st - 1: w2loads()
        MK(f"i{st-1}")
        LQ.need(("x", st), ("w", st), ("x", min(st + P["early"], 9)))
        MK(f"a{st-1}")
        A("s_barrier")
        MK(f"s{st-1}")
    issue_at(8)
    LQ.need(("w", 10))
    A("s_barrier")
    MK("lA")
    npd = [0]
    def dwait(st):
        k = npd[0]; npd[0] += 1
        A(f"""
{E}_dw{k}:
ds_read_b32 v0, v1 offset:{DONE}
s_waitcnt lgkmcnt(0)
v_cmp_gt_u32 vcc, {st + 3}, v0
s_cbranch_vccz {E}_dx{k}
{"s_sleep " + str(P['dsl']) if P['dsl'] else ""}
s_branch {E}_dw{k}
{E}_dx{k}:
""")
    def land(st):
        LQ.need(("x", st), ("w", st))
        A(f"v_mov_b32 v0, {st}\nds_write_b32 v7, v0 offset:{LAND}")
        MK(f"L{st}")
    issue_at(9)
    if P["w2at"] == 9: w2loads()
    land(11)
    lastf = max(free.values())
    for st in range(10, lastf + 1):
        dwait(st); MK(f"D{st}"); issue_at(st)
        if P["w2at"] == st: w2loads()
        land(st + 2)
    for st in range(lastf + 3, 20): land(st)
    MK("lL")
    assert max(u for u in range(20) if P['w2_slot'] in (XSL[u], WSL[u])) <= P["w2_after"]
    A("s_mov_b32 s30, 0x05040100\ns_mov_b32 s31, 0x07060302")
    LQ.need("w2")
    for c in range(4):
        for k in range(4): A(f"v_perm_b32 v{40+4*c+k}, v{W2R+2+4*k+(c>>1)}, v{W2R+4*k+(c>>1)}, s{30+(c&1)}")
    dwait(P["w2_after"])
    for c in range(4): A(f"ds_write_b128 v16, {vr(40+4*c,4)} offset:{16*c}")
    for c in range(4): A(f"ds_read_b128 {vr(88+4*c,4)}, v17 offset:{1024*c}")
    A(f"s_branch {E}_ffn")

    def head_scalars():
        A(f"""
s_lshl_b32 s14, s40, 2
s_lshr_b32 s15, s41, 3
s_add_u32 s14, s14, s15
s_mul_i32 s16, s14, 5
s_add_u32 s16, s16, 1
s_lshr_b32 s16, s16, 1
s_lshl_b32 s16, s16, 9
s_add_u32 s16, s16, {QF}
s_movk_i32 s17, 1024
s_bitcmp1_b32 s14, 0
s_cselect_b32 s17, -504, s17
s_and_b32 s19, s41, 7
s_lshl_b32 s15, s19, 3
s_mul_i32 s19, s19, {8 * TS * P['rot']}
""")
    def poll_addr(dst, t0, t1):
        A(f"""
s_mul_i32 s{t0}, s14, 20
s_add_u32 s{t1}, s{t0}, 19
s_lshr_b32 s{t0}, s{t0}, 6
s_lshr_b32 s{t1}, s{t1}, 6
s_sub_u32 s{t1}, s{t1}, s{t0}
s_lshl_b32 s{t0}, s{t0}, 12
s_add_u32 s{t0}, s{t0}, {FQ}
s_lshl_b32 s{t1}, s{t1}, 12
v_mul_u32_u24 v{dst}, s{t1}, v3
v_lshl_add_u32 v{dst}, v4, 7, v{dst}
v_add_u32 v{dst}, s{t0}, v{dst}
""")
    A(f"""
{E}_comp:
v_lshrrev_b32 v3, 5, v2
v_and_b32 v4, 31, v2
s_and_b32 s52, s29, 1
s_lshr_b32 s53, s29, 1
s_lshl_b32 s30, s52, 1
s_xor_b32 s30, s30, s53
s_mov_b32 s56, 0x3f803f80
s_lshl_b32 s31, s30, 1
v_bfe_u32 v5, v2, 1, 3
v_xor_b32 v5, v5, v3
v_xor_b32 v5, s31, v5
s_lshl_b32 s31, s52, 13
s_add_u32 s31, s31, {P['xb'][0]}
v_lshlrev_b32 v6, 7, v4
v_add_u32 v6, s31, v6
""")
    for pos in range(4):
        A(f"v_xor_b32 v7, {2*pos}, v5\nv_lshl_add_u32 v{16+pos}, v7, 4, v6\nv_add_u32 v{20+pos}, {P['xb'][1] - P['xb'][0]}, v{16+pos}")
    A(f"""
v_bfe_u32 v5, v2, 2, 2
v_lshl_add_u32 v6, v3, 3, v5
v_lshlrev_b32 v6, 8, v6
v_bfe_u32 v7, v2, 1, 1
v_lshl_add_u32 v6, v7, 3, v6
v_add_u32 v6, {P['wb'][0]}, v6
v_bfe_u32 v7, v2, 4, 1
v_and_b32 v8, 1, v2
v_lshl_add_u32 v7, v7, 1, v8
s_and_b32 s55, s53, 1
s_lshl_b32 s31, s55, 3
v_add_u32 v7, s31, v7
v_lshlrev_b32 v5, 2, v5
v_xor_b32 v7, v7, v5
v_lshl_add_u32 v6, v7, 4, v6
v_xor_b32 v7, 64, v6
""")
    for pos in range(4):
        A(f"s_xor_b32 s31, s30, {pos}\ns_lshl_b32 s31, s31, 12")
        for t in range(2):
            A(f"v_add_u32 v{24+pos*2+t}, s31, v{6+t}\nv_add_u32 v{32+pos*2+t}, {P['wb'][1] - P['wb'][0]}, v{24+pos*2+t}")
    A("""
v_and_b32 v5, 15, v2
v_bfe_u32 v6, v2, 4, 1
v_cmp_eq_u32 vcc, v5, v6
v_mov_b32 v5, s56
""")
    for i in range(4): A(f"v_cndmask_b32 v{88+i}, 0, v5, vcc")
    A(f"""
s_lshl_b32 s31, s52, 8
v_lshl_add_u32 v48, v3, 4, s31
s_add_u32 s31, s31, {XS}
v_lshl_add_u32 v9, v4, 2, s31
v_add_u32 v12, {RB - XS}, v9
s_movk_i32 s32, {CSQ}
s_cmp_ge_u32 s29, 4
s_cselect_b32 s32, {P['cs_slot'] * 16384 - 8192}, s32
s_lshl_b32 s33, s29, 11
s_add_u32 s33, s33, s32
v_lshl_add_u32 v7, v2, 4, s33
s_lshl_b32 s33, s53, 12
s_add_u32 s33, s33, s32
v_lshl_add_u32 v8, v3, 11, s33
v_bfe_u32 v5, v2, 4, 1
v_lshl_add_u32 v8, v5, 4, v8
v_bfe_u32 v5, v2, 2, 2
v_lshl_add_u32 v8, v5, 8, v8
v_and_b32 v5, 3, v2
v_lshl_add_u32 v8, v5, 2, v8
v_lshlrev_b32 v5, 4, v2
s_waitcnt lgkmcnt(0)
s_mov_b32 s44, s12
s_mov_b32 s45, s13
s_mov_b32 s48, s64
s_mov_b32 s49, s65
s_mov_b32 s64, s66
s_mov_b32 s65, s67
s_mov_b32 s67, 0x20000
s_mov_b32 s66, 256
v_mov_b32 v49, 1
""")
    A(f"""
s_and_b32 s30, s41, 7
s_mul_i32 s30, s30, 80
s_and_b32 s33, s29, 3
s_mul_i32 s31, s33, 20
s_add_u32 s30, s30, s31
v_lshrrev_b32 v164, 1, v2
v_min_u32 v165, 19, v164
v_add_u32 v165, s30, v165
v_and_b32 v166, 1, v2
s_sub_u32 s30, s18, 1
v_min_u32 v1, s30, v166
v_add_u32 v1, s19, v1
v_lshlrev_b32 v1, 7, v1
s_movk_i32 s31, 3456
s_lshl_b32 s33, s33, 8
s_add_u32 s33, s33, s2
s_min_u32 s33, s33, 539
s_mul_i32 s30, s33, 13108
s_lshr_b32 s30, s30, 16
s_mul_i32 s32, s30, {20480 - 5*256}
s_lshl_b32 s33, s33, 8
s_add_u32 s32, s32, s33
v_and_b32 v6, 15, v164
v_mad_u32_u24 v164, v165, s31, v1
v_mul_u32_u24 v6, 1280, v6
v_lshl_add_u32 v6, v166, 7, v6
v_add_u32 v165, s32, v6
""")
    A(f"""
s_lshl_b32 s39, s14, 2
s_lshl_b32 s31, s52, 1
s_add_u32 s39, s39, s31
s_lshr_b32 s30, s39, 1
s_mov_b32 s32, s12
s_mov_b32 s33, s13
s_mov_b32 s34, 0
s_mov_b32 s35, 0x20000
s_mov_b32 s8, 1.0
s_cmp_ge_u32 s29, 4
s_cbranch_scc1 {E}_ch
s_add_u32 s54, s17, s55
s_cmp_lt_u32 s54, 10
s_cselect_b32 s8, {f32bits(QSCALE)}, s8
s_cselect_b32 s31, 0, 10
s_cselect_b32 s10, 0, 4
s_cmp_ge_u32 s54, 20
s_cselect_b32 s31, 20, s31
s_cselect_b32 s10, 8, s10
s_cselect_b32 s9, 1, 0
s_sub_u32 s31, s54, s31
s_lshl_b32 s6, s31, 12
s_add_u32 s10, s10, s6
s_lshl_b32 s30, s30, 7
s_add_u32 s10, s10, s30
s_add_u32 s10, s10, {FQ}
s_mul_i32 s4, s39, {TS}
s_lshl_b32 s5, s54, 12
s_lshl_b32 s6, s31, 10
s_add_u32 s6, s6, {VOFF}
s_cmp_eq_u32 s9, 1
s_cselect_b32 s5, s6, s5
s_add_u32 s4, s4, s5
s_add_u32 s4, s4, {QF}
s_cmp_eq_u32 s9, 1
s_mov_b32 s5, {TS}
s_cselect_b32 s5, {2*SV}, s5
s_add_u32 s5, s5, s4
s_add_u32 s6, s4, {TS}
s_add_u32 s7, s5, {TS}
s_cmp_ge_u32 s54, 30
s_cselect_b32 s9, 3, s9
s_branch {E}_cj
{E}_ch:
s_add_u32 s54, s19, s55
s_mul_i32 s10, s30, 27
s_add_u32 s10, s10, s54
s_lshl_b32 s10, s10, 7
s_lshl_b32 s31, s54, 2
s_add_u32 s10, s10, {FH}
s_mul_i32 s4, s39, 108
s_add_u32 s4, s4, s31
s_lshl_b32 s4, s4, 10
s_add_u32 s4, s4, {HF}
s_add_u32 s5, s4, {108*1024}
s_mov_b32 s6, 0
s_mov_b32 s7, 0
s_cmp_lt_u32 s55, s18
s_cselect_b32 s9, 2, 3
s_cselect_b32 s34, {WS_BYTES}, 0
{E}_cj:
""")
    head_scalars()
    A(f"""
s_lshr_b32 s11, s15, 1
s_add_u32 s15, s15, s29
s_mul_i32 s20, s15, {TS}
s_add_u32 s20, s20, s16
s_add_u32 s18, s20, s17
s_add_u32 s21, s16, s19
s_add_u32 s21, s21, 40960
s_mul_i32 s60, s15, 40960
s_mul_i32 s61, s14, 1280
s_add_u32 s60, s60, s61
s_add_u32 s60, s60, {OF}
s_sub_u32 s3, s60, 3072
s_lshl_b32 s61, s15, {12 - LF}
s_lshr_b32 s27, s14, {LF}
s_lshl_b32 s27, s27, 7
s_add_u32 s61, s61, s27
s_and_b32 s27, s14, {(1 << LF) - 1}
s_lshl_b32 s27, s27, 2
s_add_u32 s61, s61, s27
s_add_u32 s61, s61, {FL2}
s_lshr_b32 s50, s40, 1
s_lshl_b32 s50, s50, 3
s_and_b32 s51, s41, 7
s_add_u32 s50, s50, s51
s_lshl_b32 s50, s50, 1
s_bfe_u32 s51, s41, 0x10003
s_lshr_b32 s52, s29, 2
s_xor_b32 s53, s51, s52
s_add_u32 s50, s50, s53
s_mul_i32 s54, s52, {P['bq']}
s_xor_b32 s54, s54, s29
s_and_b32 s54, s54, 3
s_lshl_b32 s56, s53, 2
s_add_u32 s56, s56, s54
s_lshl_b32 s56, s56, 3
s_and_b32 s55, s40, 1
s_lshl_b32 s55, s55, 1
s_lshr_b32 s58, s41, 4
s_add_u32 s55, s55, s58
s_mul_i32 s55, s55, 320
s_lshl_b32 s58, s51, 8
s_add_u32 s55, s55, s58
s_lshl_b32 s58, s54, 4
s_add_u32 s55, s55, s58
s_mul_i32 s57, s50, 40960
s_add_u32 s55, s55, s57
s_mul_i32 s59, s54, 10240
s_add_u32 s57, s57, s59
s_add_u32 s57, s57, {OF}
s_mul_i32 s58, s54, 30720
s_add_u32 s58, s58, {WO}
s_mul_i32 s59, s54, 5120
s_add_u32 s59, s59, {PR}
s_lshl_b32 s53, s51, 7
s_sub_u32 s53, 64, s53
s_mov_b32 s50, 2621440
s_mov_b32 s51, 0x20000
""")
    A(f"""
v_cmp_gt_u32 s[22:23], 20, v4
v_cmp_gt_u32 s[24:25], 32, v2
s_cmp_ge_u32 s29, 4
s_cbranch_scc1 {E}_hp
s_setprio {P['qprio']}
""")
    poll_addr(50, 30, 31)
    A(f"""
s_cmp_eq_u32 s9, 1
s_cbranch_scc1 {E}_vloop
""")
    FB = [56, 72]
    QL, RL, KL = 52, 14, 92
    def acc(ct, tt): return 96 + (ct * 2 + tt) * 16
    class Q:
        def __init__(s): s.q = []
        def op(s, tag, txt): A(txt); s.q.append(tag)
        def need(s, *tags):
            idx = max([i for i, t in enumerate(s.q) if t in tags], default=-1)
            if idx >= 0:
                A(f"s_waitcnt lgkmcnt({len(s.q) - 1 - idx})"); s.q = s.q[idx + 1:]
        def drain(s):
            if s.q: A("s_waitcnt lgkmcnt(0)"); s.q = []
    def pick(bases, slot):
        for k, b in enumerate(bases):
            if 0 <= slot * 16384 - b <= 49152: return k, slot * 16384 - b
        raise ValueError(slot)
    def rd(L, s0, p, i):
        s, pos = s0 + (p >> 2), p & 3
        b = FB[p & 1]
        kx, ox = pick(P["xb"], XSL[s]); kw, ow = pick(P["wb"], WSL[s])
        xa = 16 + 4 * kx + pos
        wa = 24 + 8 * kw + pos * 2
        L.op((p, i), [f"ds_read_b128 v[{b}:{b+3}], v{xa} offset:{ox}",
                      f"ds_read_b64_tr_b16 v[{b+8}:{b+9}], v{wa} offset:{ow}",
                      f"ds_read_b64_tr_b16 v[{b+10}:{b+11}], v{wa} offset:{ow+1024}",
                      f"ds_read_b128 v[{b+4}:{b+7}], v{xa} offset:{ox+4096}",
                      f"ds_read_b64_tr_b16 v[{b+12}:{b+13}], v{wa+1} offset:{ow}",
                      f"ds_read_b64_tr_b16 v[{b+14}:{b+15}], v{wa+1} offset:{ow+1024}"][i])
    def prep():
        o = []
        for t in range(2):
            c = 10 + t; h = 56 + 4 * t
            o += f"""v_cvt_pk_bf16_f32 v{h+2}, 0, v{c}
v_cvt_pk_bf16_f32 v{64+2*t}, -v{160+t}, -v{160+t}
v_sub_f32 v{h+2}, v{c}, v{h+2}
v_cvt_pk_bf16_f32 v{65+2*t}, -v{160+t}, 0
v_cvt_pk_bf16_f32 v{h+3}, 0, v{h+2}
v_cvt_pk_bf16_f32 v{h}, v{c}, v{h+2}
v_sub_f32 v{h+3}, v{h+2}, v{h+3}
v_cvt_pk_bf16_f32 v{h+1}, v{h+3}, 0""".split("\n")
        return o
    def qloads():
        A(f"buffer_load_dwordx4 {vr(QL,4)}, v5, s[44:47], s20 offen{SC}")
        A(f"buffer_load_dwordx2 {vr(RL,2)}, v6, s[44:47], s18 offen{SC}")
        A(f"buffer_load_dwordx4 {vr(KL,4)}, v5, s[44:47], s21 offen{SC}")
    def loop(mode):
        vmode = mode == "v"; hm = mode == "h"; s0 = 10 if hm else 0
        L = Q()
        A("s_barrier")
        MK("h9" if hm else "c0")
        stat = lambda: (L.op("st", "ds_read2_b32 v[160:161], v9 offset0:0 offset1:32"), L.op("st", "ds_read2_b32 v[162:163], v12 offset0:0 offset1:32"))
        for i in range(6): rd(L, s0, 0, i)
        if hm: stat()
        for p in range(40):
            s, pos = s0 + (p >> 2), p & 3
            b = FB[p & 1]
            bar = pos == 3 and p < 39
            sched = [[], [], [], []] if p == 39 else P["sched"]
            if bar:
                L.need(*[(p, i) for i in range(6)])
                if not hm:
                    MK(f"a{s}")
                    A("s_barrier")
                    MK(f"s{s}")
                else:
                    A(f"v_mov_b32 v1, {s + 3}")
                    L.op("dn", f"ds_write_b32 v50, v1")
                    A(f"""
v_cmp_gt_u32 vcc, {s + 1}, v13
s_cbranch_vccz {E}_hk{s}
{E}_hl{s}:
ds_read_b32 v13, v48
s_waitcnt lgkmcnt(0)
v_cmp_gt_u32 vcc, {s + 1}, v13
s_cbranch_vccnz {E}_hl{s}
{E}_hk{s}:
""")
                    if s + 1 >= P["qtry"]:
                        A(f"v_readlane_b32 s30, v13, 63\ns_and_b32 s30, s30, s68\ns_cbranch_scc0 {E}_hq{s}")
                        qloads()
                        A(f"s_mov_b32 s68, 0\n{E}_hq{s}:")
                    MK(f"h{s}")
            for j, (ct, tt) in enumerate(((0, 0), (0, 1), (1, 1), (1, 0))):
                L.need(*[(p, i) for i in ([0, 1, 2], [3], [4, 5], [])[j]])
                a = acc(ct, tt)
                c = "0" if p == 0 else vr(a, 16)
                w, x = vr(b + 8 + 4 * ct, 4), vr(b + 4 * tt, 4)
                if vmode: A(f"v_mfma_f32_32x32x16_bf16 {vr(a,16)}, {x}, {w}, {c}")
                else: A(f"v_mfma_f32_32x32x16_bf16 {vr(a,16)}, {w}, {x}, {c}")
                if hm and pos == 2 and j == 0 and p < 38: L.op("fl", "ds_read_b32 v13, v48")
                for i in sched[j]: rd(L, s0, p + 1, i)
                if pos < 2 and j in (1, 3):
                    ct2 = j >> 1
                    c = "0" if p == 0 else vr(40 + 4 * ct2, 4)
                    A(f"v_mfma_f32_16x16x32_bf16 {vr(40+4*ct2,4)}, {vr(b+8+4*ct2,4)}, v[88:91], {c}")
                if p == P["cntl"] and j == 0 and not hm:
                    A(f"buffer_load_dword v13, off, s[64:67], 0 offset:{CNT} sc1")
                if p == 38 and j == 0:
                    L.op("csw", f"ds_write_b128 v7, v[40:43]"); L.op("csw", f"ds_write_b128 v7, v[44:47] offset:1024")
                if p == 38 and j == 3:
                    if hm:
                        L.need("csw")
                        L.op("cf", f"ds_write_b32 v50, v49 offset:{CSF - DONE}")
                        A(f"""
{E}_hc:
ds_read_b32 v13, v51 offset:{CSF - DONE}
s_waitcnt lgkmcnt(0)
v_cmp_eq_u32 vcc, 0, v13
s_cbranch_vccnz {E}_hc
""")
                        L.q = []
                    else:
                        L.drain(); A("s_barrier")
                    L.op("st", f"ds_read_b32 v10, v8"); L.op("st", f"ds_read_b32 v11, v8 offset:1024")
                    if not hm: stat()
                if p == 39 and j == 1: L.need("st")
                if p == 39 and j in (1, 2):
                    for o in prep()[8 * (j - 1): 8 * j]: A(o)
        MK("hA" if hm else "cA")
        for (ct, tt) in ((0, 0), (0, 1), (1, 1), (1, 0)):
            a = acc(ct, tt); w, x = vr(56 + 4 * ct, 2), vr(64 + 2 * tt, 2)
            if vmode: A(f"v_mfma_f32_32x32x8_bf16 {vr(a,16)}, {x}, {w}, {vr(a,16)}")
            else: A(f"v_mfma_f32_32x32x8_bf16 {vr(a,16)}, {w}, {x}, {vr(a,16)}")
    order = ((0, 0), (0, 1), (1, 1), (1, 0))
    loop("q")
    A(f"""
s_cmp_eq_u32 s9, 3
s_cbranch_scc1 {E}_pub
s_setprio {P['eprio']}
v_mul_f32 v162, s8, v162
v_mul_f32 v164, s8, v163
""")
    for (ct, tt) in order:
        a = acc(ct, tt)
        if P["pk"]:
            for k in range(8): A(f"v_pk_mul_f32 {vr(a+2*k,2)}, {vr(a+2*k,2)}, {vr(162+2*tt,2)} op_sel_hi:[1,0]")
        else:
            for k in range(16): A(f"v_mul_f32 v{a+k}, v{a+k}, v{162+2*tt}")
        for k in range(8): A(f"v_cvt_pk_bf16_f32 v{a+k}, v{a+2*k}, v{a+2*k+1}")
        for j in range(2): A(f"buffer_store_dwordx4 {vr(a+4*j,4)}, v5, s[44:47], s{4+tt} offen offset:{(ct*2+j)*1024}{ST}")
    A(f"s_branch {E}_pub")
    QM, QR, KM, KR, V0, V1 = 8, 12, 16, 20, 24, 28
    S = [32, 48]; O = 64; CB = 80
    FL = 120
    KB = [(KM, KR), (124, 128)]; VB = [V0, 132]
    def vsetup():
        A(f"""
v_and_b32 v{FL+1}, 3, v2
v_lshlrev_b32 v{FL+1}, 2, v{FL+1}
s_lshl_b32 s26, s29, 2
s_add_u32 s26, s26, 64
v_mov_b32 v{FL+2}, s26
v_mul_u32_u24 v7, 320, v3
v_lshl_add_u32 v7, v4, 4, v7
v_add_u32 v7, 5120, v7
v_lshlrev_b32 v6, 4, v4
v_mov_b32 v1, 0x3f803f80
v_cmp_eq_u32 vcc, 20, v4
v_mov_b32 v56, 0
""")
        for i in range(8): A(f"v_cndmask_b32 v{V0+i}, 0, v1, vcc")
    SD, SA, ST_, SX = 96, 112, 120, 124
    A(f"""
{E}_hp:
s_load_dwordx4 s[36:39], s[0:1], 32
s_setprio {P['hprio']}
s_sub_u32 s31, s29, 4
s_lshl_b32 s30, s31, 12
s_add_u32 s30, s30, {P['xb'][0]}
v_lshl_add_u32 v{SX}, v2, 4, s30
v_add_u32 v{SX+1}, {P['xb'][1] - P['xb'][0]}, v{SX}
s_mov_b32 s69, 0xffff0000
s_lshl_b32 s30, s31, 2
s_add_u32 s30, s30, {DONE}
v_mov_b32 v50, s30
v_xor_b32 v51, 4, v50
v_and_b32 v48, 7, v2
v_lshlrev_b32 v48, 2, v48
v_add_u32 v48, {LAND}, v48
v_mov_b32 v1, {RLY}
v_cmp_eq_u32 vcc, 63, v2
v_cndmask_b32 v48, v48, v1, vcc
v_lshlrev_b32 v6, 4, v4
s_lshr_b32 s30, s29, 1
s_lshl_b32 s68, 1, s30
v_and_b32 v1, 3, v2
v_lshrrev_b32 v13, 3, v2
v_lshl_add_u32 v13, v1, 3, v13
s_lshl_b32 s30, s31, 5
v_add_u32 v13, s30, v13
v_lshlrev_b32 v13, 2, v13
""")
    for i in range(8): A(f"v_mov_b32 v{SA+i}, 0")
    A("s_waitcnt lgkmcnt(0)")
    if P["stat"] == "pk":
        for i in range(16): A(f"v_mov_b32 v{128+i}, 0")
    if P["stat"] == "dot": A(f"v_mov_b32 v{ST_}, 0x3f803f80")
    def sreads(st):
        k, o = pick(P["xb"], XSL[st])
        for j in range(4): A(f"ds_read_b128 {vr(SD+4*j,4)}, v{SX+k} offset:{o + j*1024}")
    def sops():
        if P["stat"] == "dot":
            for j in range(4):
                A(f"s_waitcnt lgkmcnt({3 - j})")
                for i in range(4):
                    x = SD + 4*j + i
                    A(f"v_dot2c_f32_bf16 v{SA+2*j}, v{x}, v{ST_}\nv_dot2c_f32_bf16 v{SA+1+2*j}, v{x}, v{x}")
            return
        if P["stat"] == "pk":
            for jp in range(2):
                A(f"s_waitcnt lgkmcnt({2 - 2*jp})")
                for i in range(4):
                    for e, j in enumerate((2*jp, 2*jp+1)):
                        x = SD + 4*j + i
                        A(f"v_lshlrev_b32 v{ST_+2*e}, 16, v{x}\nv_and_b32 v{ST_+1+2*e}, s69, v{x}")
                    for e, j in enumerate((2*jp, 2*jp+1)):
                        u = vr(ST_ + 2*e, 2); a = vr(128 + 4*j, 2); b = vr(130 + 4*j, 2)
                        A(f"v_pk_add_f32 {a}, {a}, {u}\nv_pk_fma_f32 {b}, {u}, {u}, {b}")
            return
        for jp in range(2):
            A(f"s_waitcnt lgkmcnt({2 - 2*jp})")
            for i in range(4):
                for e, j in enumerate((2*jp, 2*jp+1)):
                    x = SD + 4*j + i
                    A(f"v_lshlrev_b32 v{ST_+2*e}, 16, v{x}\nv_and_b32 v{ST_+1+2*e}, s69, v{x}")
                for q in range(2):
                    for e, j in enumerate((2*jp, 2*jp+1)):
                        u = ST_ + 2*e + q
                        A(f"v_add_f32 v{SA+2*j}, v{SA+2*j}, v{u}\nv_fmac_f32 v{SA+1+2*j}, v{u}, v{u}")
    def sfin():
        if P["stat"] == "pk":
            for j in range(4): A(f"v_add_f32 v{SA+2*j}, v{128+4*j}, v{129+4*j}\nv_add_f32 v{SA+1+2*j}, v{130+4*j}, v{131+4*j}")
        for m in ("quad_perm:[1,0,3,2]", "quad_perm:[2,3,0,1]", "row_half_mirror"):
            for i in range(8): A(f"v_add_f32_dpp v{SA+i}, v{SA+i}, v{SA+i} {m} row_mask:0xf bank_mask:0xf")
        for j in range(1, 4):
            A(f"v_cmp_eq_u32 vcc, {j}, v1\nv_cndmask_b32 v{SA}, v{SA}, v{SA+2*j}, vcc\nv_cndmask_b32 v{SA+1}, v{SA+1}, v{SA+1+2*j}, vcc")
        A(f"""
s_mov_b32 s30, 0x3acccccd
s_mov_b32 s31, 0x3727c5ac
v_mul_f32 v{SA}, s30, v{SA}
v_mul_f32 v{SA+2}, v{SA}, v{SA}
v_fma_f32 v{SA+1}, v{SA+1}, s30, -v{SA+2}
v_max_f32 v{SA+1}, 0, v{SA+1}
v_cvt_pk_bf16_f32 v{SA+1}, 0, v{SA+1}
v_add_f32 v{SA+1}, s31, v{SA+1}
v_cvt_pk_bf16_f32 v{SA+1}, 0, v{SA+1}
v_sqrt_f32 v{SA+1}, v{SA+1}
ds_write_b32 v13, v{SA} offset:{XS}
s_nop 0
v_cvt_pk_bf16_f32 v{SA+1}, 0, v{SA+1}
v_rcp_f32 v{SA+1}, v{SA+1}
s_nop 0
ds_write_b32 v13, v{SA+1} offset:{RB}
s_waitcnt lgkmcnt(0)
""")
    done = 0
    for st in range(10):
        MK(f"a{st-1}")
        A("s_barrier")
        if st == P["clr"][0]:
            A(f"""
s_cmp_lg_u32 s29, 7
s_cbranch_scc1 {E}_nc
s_mul_i32 s31, s2, 1280
s_add_u32 s31, s31, {FL2}
v_mov_b32 v92, 0
v_mov_b32 v93, 0
v_mov_b32 v94, 0
v_mov_b32 v95, 0
buffer_store_dwordx4 v[92:95], v5, s[44:47], s31 offen sc1
s_mov_b64 exec, 0xffff
buffer_store_dwordx4 v[92:95], v5, s[44:47], s31 offen offset:1024 sc1
s_mov_b64 exec, -1
{E}_nc:
""")
        if st == P["pf"]: A("global_load_dword v166, v164, s[36:37]")
        if st == P["pf2"]: A("global_load_dword v166, v165, s[38:39]")
        if st == P["clr"][1]:
            A(f"s_cmp_lg_u32 s29, 7\ns_cbranch_scc1 {E}_na\ns_waitcnt vmcnt(0)\ns_mov_b64 exec, 1\nbuffer_atomic_add v49, off, s[64:67], 0 offset:{CNT}\ns_mov_b64 exec, -1\n{E}_na:")
        while done <= min(st + P["early"], 9):
            if not P['nostat']: sreads(done); sops()
            done += 1
            if done == 10 and P["early"] and P["finearly"]: sfin()
    if not (P["early"] and P["finearly"]): sfin()
    loop("h")
    HP = {(0, 0): 104, (0, 1): 112, (1, 1): 144, (1, 0): 152}
    A(f"s_cmp_eq_u32 s9, 3\ns_cbranch_scc1 {E}_hd\nv_mov_b32 v164, v163")
    for (ct, tt) in order:
        a = acc(ct, tt); d = HP[(ct, tt)]
        for k in range(8): A(f"v_pk_mul_f32 {vr(a+2*k,2)}, {vr(a+2*k,2)}, {vr(162+2*tt,2)} op_sel_hi:[1,0]")
        for k in (range(7, -1, -1) if (ct, tt) == (0, 0) else range(8)): A(f"v_cvt_pk_bf16_f32 v{d+k}, v{a+2*k}, v{a+2*k+1}")
        for k in range(8): A(f"v_pk_max_i16 v{d+k}, v{d+k}, 0")
    A(f"{E}_hd:")
    vsetup()
    A(f"""
s_cmp_eq_u32 s68, 0
s_cbranch_scc1 {E}_at2
{E}_hw0:
ds_read_b32 v57, v56 offset:{RLY}
s_waitcnt lgkmcnt(0)
v_readfirstlane_b32 s30, v57
s_and_b32 s30, s30, s68
s_cbranch_scc1 {E}_hw1
s_sleep 1
s_branch {E}_hw0
{E}_hw1:
""")
    qloads()
    A(f"s_branch {E}_at2")
    A(f"{E}_vloop:")
    A(f"""
v_and_b32 v1, 19, v2
v_bfe_u32 v6, v2, 2, 1
v_lshl_add_u32 v1, v6, 3, v1
v_bfe_u32 v6, v2, 3, 1
v_lshl_add_u32 v1, v6, 2, v1
v_mul_u32_u24 v6, {SV}, v3
v_lshl_add_u32 v51, v1, 4, v6
""")
    loop("v")
    A(f"s_setprio {P['eprio']}")
    for tt in range(2):
        for q in range(4):
            A(f"ds_read_b128 {vr(16+16*tt+4*q,4)}, v48 offset:{RB + tt*128 + q*32}")
    for n, (ct, tt) in enumerate(order):
        a = acc(ct, tt)
        if n < 2: A(f"s_waitcnt lgkmcnt({4 - 4*n})")
        for k in range(8): A(f"v_pk_mul_f32 {vr(a+2*k,2)}, {vr(a+2*k,2)}, {vr(16+16*tt+2*k,2)}")
        for k in range(8): A(f"v_cvt_pk_bf16_f32 v{a+k}, v{a+2*k}, v{a+2*k+1}")
        for j in range(2): A(f"buffer_store_dwordx4 {vr(a+4*j,4)}, v51, s[44:47], s{4+2*tt+j} offen offset:{ct*512}{ST}")
    DK, DR, DV, DW = 60, 61, 62, 63
    def dma_addr(t0, t1, t2, m1, m2):
        A(f"""
s_mul_i32 s{t0}, s29, {TS}
s_add_u32 s{t0}, s{t0}, s16
s_add_u32 s{t0}, s{t0}, 40960
v_add_u32 v{DK}, s{t0}, v5
s_add_u32 s{t0}, s{t0}, s17
v_lshrrev_b32 v8, 1, v2
v_and_b32 v9, 1, v2
v_lshlrev_b32 v9, 2, v9
v_lshl_add_u32 v8, v8, 4, v9
v_add_u32 v{DR}, s{t0}, v8
s_lshl_b32 s{m1}, s29, 10
s_lshl_b32 s{m2}, s29, 8
s_mul_i32 s{t0}, s14, 320
s_add_u32 s{t0}, s{t0}, {QF + VOFF}
s_lshl_b32 s{t1}, s29, 6
s_lshl_b32 s{t2}, s29, 4
s_add_u32 s{t2}, s{t2}, 256
""")
        def vaddr(dst, ci):
            A(f"""
v_mul_u32_u24 v8, 3277, v{ci}
v_lshrrev_b32 v8, 16, v8
v_mul_u32_u24 v9, 20, v8
v_sub_u32 v9, v{ci}, v9
v_lshrrev_b32 v10, 2, v8
v_and_b32 v8, 3, v8
v_mul_u32_u24 v10, {TS}, v10
v_mul_u32_u24 v8, {SV}, v8
v_lshl_add_u32 v9, v9, 4, s{t0}
v_add3_u32 v{dst}, v8, v9, v10
""")
        A(f"v_add_u32 v11, s{t1}, v2"); vaddr(DV, 11)
        A(f"v_lshrrev_b32 v11, 2, v2\nv_add_u32 v11, s{t2}, v11"); vaddr(DW, 11)
        A(f"v_and_b32 v11, 3, v2\nv_lshl_add_u32 v{DW}, v11, 2, v{DW}")
    def dma(G, m1, m2, so):
        b = G * 10240
        if G == 0: A(f"s_cmp_eq_u32 s29, 0\ns_cbranch_scc1 {E}_d0")
        A(f"s_add_u32 m0, s{m1}, {b}\nbuffer_load_dwordx4 v{DK}, s[44:47], {so} offen{P['dsc']} lds")
        if G == 0: A(f"{E}_d0:")
        A(f"s_add_u32 m0, s{m2}, {b+4096}\nbuffer_load_dword v{DR}, s[44:47], {so} offen{P['dsc']} lds")
        A(f"s_add_u32 m0, s{m1}, {b+5120}\nbuffer_load_dwordx4 v{DV}, s[44:47], {so} offen{P['dsc']} lds")
        A(f"s_add_u32 m0, s{m2}, {b+9216}\nbuffer_load_dword v{DW}, s[44:47], {so} offen{P['dsc']} lds")
    assert G0 == 2 and P["rot"] == 0
    PT = S1LAST + 3
    assert max(u for u in range(20) if P['cs_slot'] in (XSL[u], WSL[u])) <= 16
    A(f"{E}_pub:")
    MK("cS")
    vsetup()
    dma_addr(30, 31, 26, 36, 37)
    A(f"""
s_lshl_b32 s26, s29, 2
v_mov_b32 v57, s26
v_mov_b32 v58, {PT}
s_mov_b32 s38, {4*TS}
ds_write_b32 v57, v58 offset:{PUB}
s_cmp_eq_u32 s9, 3
s_cbranch_scc1 {E}_pb2
s_mov_b32 s26, {P['spin']}
s_waitcnt vmcnt(0)
{E}_cw:
v_readfirstlane_b32 s30, v13
s_cmp_ge_u32 s30, 256
s_cbranch_scc1 {E}_cd
s_sub_u32 s26, s26, 1
s_cbranch_scc1 {E}_cd
s_sleep 2
buffer_load_dword v13, off, s[64:67], 0 offset:{CNT} sc1
s_waitcnt vmcnt(0)
s_branch {E}_cw
{E}_cd:
s_mov_b64 exec, 1
buffer_store_dword v49, off, s[44:47], s10 sc1
s_mov_b64 exec, -1
{E}_pb2:
s_setprio {P['qsp']}
""")
    MK("cF")
    A(f"""
s_cmp_lg_u32 s29, {P['pw']}
s_cbranch_scc1 {E}_at1
v_and_b32 v57, 7, v2
v_lshlrev_b32 v57, 2, v57
{E}_pq:
ds_read_b32 v58, v57 offset:{DONE}
s_waitcnt lgkmcnt(0)
s_sleep 1
v_cmp_gt_u32 vcc, {PT}, v58
s_cbranch_vccnz {E}_pq
s_mov_b32 s26, {P['spin']}
{"s_sleep " + str(P['qdel']) if P['qdel'] else ""}
{E}_qp:
buffer_load_dwordx4 v[52:55], v50, s[44:47], 0 offen sc1
s_waitcnt vmcnt(0)
v_min_u32 v53, v53, v54
v_cmp_ne_u32 s[30:31], 0, v52
v_cmp_ne_u32 s[42:43], 0, v53
s_and_b32 s30, s30, s31
s_and_b32 s42, s42, s43
s_lshr_b32 s30, s30, s11
s_sub_u32 s26, s26, 1
s_cselect_b32 s30, -1, s30
s_cselect_b32 s42, -1, s42
s_cselect_b32 s26, 0, s26
s_bitcmp1_b32 s42, 0
s_cselect_b32 s31, 15, 0
s_and_b32 s30, s30, s31
s_or_b32 s30, s30, 0x100
v_mov_b32 v52, s30
v_mov_b32 v53, s42
ds_write_b64 v56, v[52:53] offset:{RLY}
s_and_b32 s42, s42, 15
s_lshl_b32 s42, s42, 4
s_or_b32 s30, s30, s42
s_cmp_eq_u32 s30, 0x1ff
s_cbranch_scc1 {E}_at1
s_sleep {P['qsl']}
s_branch {E}_qp
{E}_at1:
s_lshr_b32 s26, s29, 1
s_mov_b32 s27, 11
{E}_qw:
ds_read_b64 v[58:59], v56 offset:{RLY}
s_waitcnt lgkmcnt(0)
v_readfirstlane_b32 s30, v58
v_readfirstlane_b32 s31, v59
s_lshr_b32 s30, s30, s26
s_and_b32 s30, s30, 1
s_lshr_b32 s28, s31, 1
s_and_b32 s31, s31, s28
s_and_b32 s31, s31, 5
s_lshl_b32 s31, s31, 1
s_or_b32 s30, s30, s31
s_and_b32 s30, s30, s27
s_cbranch_scc1 {E}_qa
s_sleep {P['rws']}
s_branch {E}_qw
{E}_qa:
s_bitcmp1_b32 s30, 1
s_cbranch_scc0 {E}_qb
""")
    dma(0, 36, 37, "0")
    A(f"{E}_qb:\ns_bitcmp1_b32 s30, 0\ns_cbranch_scc0 {E}_qc")
    qloads()
    MK("cQ")
    A(f"{E}_qc:\ns_bitcmp1_b32 s30, 3\ns_cbranch_scc0 {E}_qd")
    dma(1, 36, 37, "s38")
    A(f"""
{E}_qd:
s_andn2_b32 s27, s27, s30
s_cbranch_scc1 {E}_qw
{E}_at2:
v_cmp_eq_u32 vcc, 20, v4
v_lshlrev_b32 v57, 3, v4
""")
    for i in range(8): A(f"v_cndmask_b32 v{VB[1]+i}, 0, v1, vcc")
    for i in range(4): A(f"v_mov_b32 v{164+i}, -1")
    A("v_add_u32 v6, 4096, v57")
    MK("cW")
    A("s_waitcnt vmcnt(0)")
    for i in range(4): A(f"v_mov_b32 v{QM+i}, v{QL+i}\nv_mov_b32 v{KM+i}, v{KL+i}")
    A(f"v_cndmask_b32 v{QR}, 0, v{RL}, s[24:25]\nv_cndmask_b32 v{QR+1}, 0, v{RL+1}, s[24:25]")
    A("s_barrier")
    MK("cB")
    def kread(o, km=None, kr=None):
        if km is None: km, kr = KB[o & 1]
        g, i = o >> 2, o & 3
        A(f"ds_read_b128 {vr(km,4)}, v5 offset:{g*10240+i*1024}\nds_read_b64 {vr(kr,2)}, v6 offset:{g*10240+i*256}")
    def vread(o):
        g, i = o >> 2, o & 3; b = g * 10240 + i * 1280
        A(f"s_mov_b64 exec, s[22:23]\nds_read_b128 {vr(VB[o&1],4)}, v7 offset:{b}\nds_read_b128 {vr(VB[o&1]+4,4)}, v7 offset:{b+640}\ns_mov_b64 exec, -1")
    A(f"ds_read_b64 {vr(KR,2)}, v6")
    for t in range(1, NP): kread(t, CB + 4 * t, 96 + 2 * t)
    PD = [S[0], S[1], O, S[0]]
    def pmax(t):
        for k in range(8):
            if t == 0 and k == 0: A(f"v_max_f32 v1, v{PD[t]}, v{PD[t]+1}")
            else: A(f"v_max3_f32 v1, v1, v{PD[t]+2*k}, v{PD[t]+2*k+1}")
    for t in range(NP):
        if t == 3: pmax(0)
        A(f"s_waitcnt lgkmcnt({2*(NP-1-t)})")
        km, kr = (KM, KR) if t == 0 else (CB + 4 * t, 96 + 2 * t)
        A(f"v_mfma_f32_32x32x16_bf16 {vr(PD[t],16)}, {vr(km,4)}, {vr(QM,4)}, 0")
        A(f"v_mfma_f32_32x32x8_bf16 {vr(PD[t],16)}, {vr(kr,2)}, {vr(QR,2)}, {vr(PD[t],16)}")
    for t in range(1, NP): pmax(t)
    A(f"""
v_mov_b32 v14, v1
s_mov_b32 s26, {f32bits(P['offs'])}
v_permlane32_swap_b32 v1, v14
v_max_f32 v1, v1, v14
v_add_f32 v1, s26, v1
""")
    for i in range(16): A(f"v_sub_f32 v{CB+i}, 0, v1")
    for i in range(16): A(f"v_mov_b32 v{O+i}, 0")
    def M1(t): A(f"v_mfma_f32_32x32x16_bf16 {vr(S[t&1],16)}, {vr(KB[t&1][0],4)}, {vr(QM,4)}, {vr(CB,16)}")
    def M2(t): A(f"v_mfma_f32_32x32x8_bf16 {vr(S[t&1],16)}, {vr(KB[t&1][1],2)}, {vr(QR,2)}, {vr(S[t&1],16)}")
    def Ex(t, *idx):
        for i in idx: A(f"v_exp_f32 v{S[t&1]+i}, v{S[t&1]+i}")
    def Cv(t, *idx):
        for k in idx:
            d = S[t & 1] + (k & 3) + 8 * (k >> 2)
            A(f"v_cvt_pk_bf16_f32 v{d}, v{S[t&1]+2*k}, v{S[t&1]+2*k+1}")
    MK("c1")
    A("s_waitcnt lgkmcnt(0)")
    kread(1); vread(0); M1(0); M2(0); kread(2); vread(1)
    W = 6
    Ex(0, *range(P["npre"]))
    def tile(t, hook=None):
        pr = P["prios"]
        if pr and (t == 0 or pr[t % len(pr)] != pr[(t - 1) % len(pr)]): A(f"s_setprio {pr[t % len(pr)]}")
        for tok in P["order"].split():
            if tok == "M1": A(f"s_waitcnt lgkmcnt({W})"); M1(t + 1)
            elif tok == "M2": M2(t + 1)
            elif tok == "M3": A(f"s_waitcnt lgkmcnt({W})\nv_mfma_f32_32x32x16_bf16 {vr(O,16)}, {vr(VB[t&1],4)}, {vr(S[t&1],4)}, {vr(O,16)}")
            elif tok == "M4": A(f"v_mfma_f32_32x32x16_bf16 {vr(O,16)}, {vr(VB[t&1]+4,4)}, {vr(S[t&1]+8,4)}, {vr(O,16)}")
            elif tok == "K":
                if hook: hook(t, 0)
                kread(t + 3)
                if hook: hook(t, 1)
            elif tok == "V":
                vread(t + 2)
                if hook: hook(t, 2)
            elif tok[0] == "E": Ex(t, int(tok[1:]))
            elif tok[0] == "N": Ex(t + 1, int(tok[1:]))
            elif tok[0] == "C": Cv(t, int(tok[1:]))
            else: raise ValueError(tok)
    adv = "v_add_u32 v5, 20480, v5\nv_add_u32 v6, 20480, v6\nv_add_u32 v7, 20480, v7"
    npoll = [0]
    def check(thr):
        k = npoll[0]; npoll[0] += 1
        A(f"""
s_waitcnt lgkmcnt(2)
v_cmp_gt_u32 vcc, {thr}, v{FL}
s_cbranch_vccz {E}_ok{k}
{E}_poll{k}:
s_sleep 1
ds_read_b32 v{FL}, v{FL+1}
s_waitcnt lgkmcnt(0)
v_cmp_gt_u32 vcc, {thr}, v{FL}
s_cbranch_vccnz {E}_poll{k}
{E}_ok{k}:
""")
    rdflag = f"ds_read_b32 v{FL}, v{FL+1}"
    hstores = [(ct, tt, j) for (ct, tt) in order for j in range(2)]
    hflag = f"s_waitcnt vmcnt(0)\ns_mov_b64 exec, 1\nbuffer_store_dword v{FL+2}, off, s[32:35], s10 sc1\ns_mov_b64 exec, -1"
    def hook0(t, ph):
        if ph == 1 and t in (4, 7): A(rdflag)
        if ph == 0 and t == 5: check(F_G1)
        if ph in (1, 2):
            mine = [n for n in range(8) if P["hst"][n] == t]
            for n in mine[ph - 1::2] if not P["noh"] else []:
                ct, tt, j = hstores[n]
                A(f"buffer_store_dwordx4 {vr(HP[(ct,tt)]+4*j,4)}, v5, s[32:35], s{4+tt} offen offset:{(ct*2+j)*1024}{ST}")
        if ph == 1 and t == P["ofp"] and not P["noof"]:
            A(f"buffer_store_dwordx4 v[164:167], v5, s[44:47], s60 offen sc1\nbuffer_store_dwordx2 v[164:165], v6, s[44:47], s3 offen sc1")
        if ph == 2 and t == 3: MK("t3")
        if ph == 2 and P["hfl"] == (0, t): MK("t7"); A(hflag); MK("cH")
    for t in range(8): tile(t, hook0)
    A(adv)
    A(f"s_mov_b32 s27, 1\ns_mov_b32 s28, {F_G5}\nv_mov_b32 v{FL+3}, 1\n{E}_loop:")
    def hook1(t, ph):
        if ph == 0 and t == 0: check("s28")
        if ph == 1 and t == 0: A(f"s_mov_b32 s28, {F_ALL}")
        if ph == 1 and t in (0, 4): A(f"v_add_u32 v{FL+3}, 1, v{FL+3}\nds_write_b32 v{FL+2}, v{FL+3}")
        if ph == 1 and t == 7: A(rdflag)
        if ph == 2 and P["hfl"][0] > 0 and P["hfl"][1] == t:
            A(f"s_cmp_lg_u32 s27, {P['hfl'][0]}\ns_cbranch_scc1 {E}_nf\n{hflag}\n{E}_nf:")
        if ph == 1 and t == P["hint"][1]:
            A(f"""
s_cmp_lg_u32 s27, {P["hint"][0]}
s_cbranch_scc1 {E}_nh
s_waitcnt vmcnt(0)
s_mov_b64 exec, 1
buffer_store_dword v{FL+2}, off, s[44:47], s61{P['hsc']}
s_mov_b64 exec, -1
{E}_nh:
""")
    for t in range(8): tile(t, hook1)
    A(adv)
    A(f"s_add_u32 s27, s27, 1\ns_cmp_lt_u32 s27, 8\ns_cbranch_scc1 {E}_loop")
    MK("c3")
    A(f"v_mov_b32 v{FL+3}, 16\nds_write_b32 v{FL+2}, v{FL+3}\nv_mov_b32 v1, 0\ns_movk_i32 s26, 0x207")
    for i in range(12): A(f"v_fma_f32 v1, v{O+i}, 0, v1")
    A(f"""
v_cmp_class_f32 vcc, v1, s26
s_cbranch_vccnz {E}_fb
{E}_epi:
v_mov_b32 v10, 0
ds_read_b64 v[12:13], v10 offset:{MSK}
v_mov_b32 v14, v{O+8}
v_mov_b32 v15, v{O+8}
v_lshlrev_b32 v5, 4, v2
v_permlane32_swap_b32 v14, v15
v_rcp_f32 v14, v15
v_lshlrev_b32 v6, 3, v4
v_mov_b32 v11, v{FL+1}
""")
    for k in range(6): A(f"v_pk_mul_f32 {vr(O+2*k,2)}, {vr(O+2*k,2)}, v[14:15] op_sel_hi:[1,0]")
    for k in range(6): A(f"v_cvt_pk_bf16_f32 v{O+k}, v{O+2*k}, v{O+2*k+1}")
    OSC = P["osc"]; LSC = P["lsc"]
    VW, VR, OR_, OA, SP = 6, 7, 8, 9, 15
    A(f"""
buffer_store_dwordx4 {vr(O,4)}, v5, s[44:47], s60 offen{OSC}
s_mov_b64 exec, s[24:25]
buffer_store_dwordx2 {vr(O+4,2)}, v6, s[44:47], s60 offen offset:1024{OSC}
s_mov_b64 exec, -1
s_setprio 0
""")
    MK("c4")
    A(f"""
v_mul_u32_u24 v14, 2560, v3
s_add_u32 s28, s57, 5120
s_waitcnt lgkmcnt(0)
v_readfirstlane_b32 s30, v12
v_readfirstlane_b32 s31, v13
v_lshl_add_u32 v{OR_}, v4, 3, v14
s_lshr_b64 s[30:31], s[30:31], s56
s_mov_b32 s63, s30
""")
    OB = 16; AC = 56
    def load(k):
        if k < 8: A(f"buffer_load_dwordx4 {vr(OB+4*k,4)}, v5, s[44:47], s{57 if k < 4 else 28} offen offset:{1280*(k&3)}{LSC}")
        else:
            for e in range(2): A(f"buffer_load_dwordx2 {vr(OB+4*k+2*e,2)}, v{OR_}, s[44:47], s{57 if k == 8 else 28} offen offset:{1024+1280*e}{LSC}")
    for k in range(8):
        A(f"s_mov_b32 s64, {k}\ns_bitcmp1_b32 s63, {k}\ns_cbranch_scc0 {E}_su")
        load(k)
    load(8); load(9)
    A(f"s_mov_b32 s64, 9\n{E}_su:")
    def issue_rest(T):
        A(f"s_cmp_eq_u32 s64, 9\ns_cbranch_scc1 {E}_id{T}")
        for k in range(8):
            L = f"{E}_is{T}{k}"
            A(f"""
s_cmp_gt_u32 s64, {k}
s_cbranch_scc1 {L}n
s_bitcmp1_b32 s63, {k}
s_cbranch_scc1 {L}g
{L}p:
ds_read_b64 v[0:1], v10 offset:{MSK}
s_waitcnt lgkmcnt(0)
v_readfirstlane_b32 s30, v0
v_readfirstlane_b32 s31, v1
s_lshr_b64 s[30:31], s[30:31], s56
s_mov_b32 s63, s30
s_bitcmp1_b32 s30, {k}
s_cbranch_scc1 {L}g
s_sleep 1
s_branch {L}p
{L}g:
""")
            load(k)
            A(f"{L}n:")
        load(8); load(9)
        A(f"{E}_id{T}:"); MK("c6")
    A(f"""
ds_read_b32 v1, v11
v_mul_u32_u24 v12, 1280, v4
v_bfe_u32 v13, v2, 2, 2
v_and_b32 v7, 3, v2
v_lshl_add_u32 v{OA}, v3, 3, v12
v_lshlrev_b32 v13, 6, v13
v_lshl_add_u32 v13, v7, 3, v13
v_bfe_u32 v12, v2, 4, 1
v_lshl_add_u32 v13, v12, 5, v13
v_add_u32 v13, s58, v13
v_lshl_add_u32 v{VW}, v3, 8, v13
v_add_u32 v{VR}, v14, v13
s_sub_u32 s26, s54, 1
v_sub_u32 v14, s26, v2
v_and_b32 v14, 3, v14
s_lshl_b32 s26, s52, 4
s_add_u32 s26, s26, {SENT}
v_lshl_add_u32 v{SP}, v14, 2, s26
s_lshl_b32 s27, s54, 2
s_add_u32 s27, s27, s26
s_mov_b32 s62, {P['spin']}
v_add_u32 v12, s59, v5
s_lshl_b32 s30, s54, 2
v_mov_b32 v13, s30
""")
    nw_ = [0]
    def lwait(thr, ar=11):
        k = nw_[0]; nw_[0] += 1
        A(f"""
{E}_lw{k}:
s_waitcnt lgkmcnt(0)
v_cmp_gt_u32 vcc, {thr}, v1
s_cbranch_vccz {E}_lwd{k}
s_sleep {P['psl']}
ds_read_b32 v1, v{ar}
s_branch {E}_lw{k}
{E}_lwd{k}:
""")
    def perq4(tag, body):
        for q in range(4):
            if q < 3: A(f"s_cmp_lg_u32 s54, {q}\ns_cbranch_scc1 {E}_{tag}{q+1}")
            body(q)
            if q < 3: A(f"s_branch {E}_{tag}d\n{E}_{tag}{q+1}:")
        A(f"{E}_{tag}d:")
    lwait(F_WO)
    A(f"s_cmp_lg_u32 s52, 0\ns_cbranch_scc1 {E}_tB")
    for ty, nb in ((0, 3), (1, 2)):
        T = "AB"[ty]
        if ty: A(f"{E}_tB:")
        WB = AC + 16 * nb
        nbuf = min(10, (168 - WB) // (4 * nb))
        q = []
        def need(tag):
            idx = max([i for i, t in enumerate(q) if t == tag], default=-1)
            if idx >= 0:
                A(f"s_waitcnt lgkmcnt({min(len(q) - 1 - idx, 15)})"); del q[:idx + 1]
        later = lambda k: (7 - k + 4) if k < 8 else (2 if k == 8 else 0)
        def wr(k, lo=0, hi=99):
            b = WB + (k % nbuf) * 4 * nb
            for u in range(max(lo, 0), min(hi, nb)):
                if k < 8: a = VW; o1 = u * 10240 + k * 1280; o2 = o1 + 512
                else: a = VR; o1 = u * 10240 + (k - 8) * 5120 + 1024; o2 = o1 + 1280
                A(f"ds_read_b64_tr_b16 {vr(b+4*u,2)}, v{a} offset:{o1}"); q.append((k, u))
                A(f"ds_read_b64_tr_b16 {vr(b+4*u+2,2)}, v{a} offset:{o2}"); q.append((k, u))
        for k in range(nbuf): wr(k)
        if ty == 0:
            for j in range(4): A(f"s_sub_u32 s30, {j+3}, s54\ns_and_b32 s30, s30, 3\ns_mul_i32 s30, s30, 3072\ns_add_u32 s{32+j}, s30, s58\ns_add_u32 s{32+j}, s{32+j}, 20480")
            for r in range(3): A(f"s_sub_u32 s30, s54, {r+1}\ns_and_b32 s30, s30, 3\ns_mul_i32 s30, s30, 30720\ns_add_u32 s{36+r}, s30, {WO + 20480 + r*3072}")
        else:
            A(f"s_lshl_b32 s31, s54, 12\ns_add_u32 s31, s31, {FREE - 2048}")
            for j in range(4): A(f"s_sub_u32 s30, {j+3}, s54\ns_and_b32 s30, s30, 3\ns_lshl_b32 s{32+j}, s30, 11\ns_add_u32 s{32+j}, s{32+j}, s31\ns_cmp_eq_u32 s30, 0\ns_cselect_b32 s{32+j}, s59, s{32+j}")
            for r in range(3):
                A(f"s_sub_u32 s30, s54, {r+1}\ns_and_b32 s30, s30, 3\ns_mul_i32 s30, s30, {5120 if r == 0 else 4096}\ns_add_u32 s{36+r}, s30, {PR if r == 0 else FREE + (r-1)*2048}")
        for k in range(16 * nb): A(f"v_mov_b32 v{AC+k}, 0")
        issue_rest(T)
        A("ds_read_b32 v1, v13")
        lwait(F_FX, 13)
        q.clear()
        perq4(f"fx{T}", lambda qq: [A(f"ds_read_b128 {vr(AC+16*t+4*qq,4)}, v12 offset:{(2048 if ty == 0 else 0) + t*1024}") for t in range(nb)])
        A("s_waitcnt lgkmcnt(0)")
        for k in range(10):
            A(f"s_waitcnt vmcnt({later(k)})")
            o = OB + 4 * k
            A(f"""
{E}_ck{T}{k}:
v_max3_u32 v1, v{o}, v{o+1}, v{o+2}
v_max_u32 v1, v1, v{o+3}
v_cmp_eq_u32 vcc, -1, v1
s_cbranch_vccnz {E}_rt{T}{k}
{E}_bk{T}{k}:
""")
            b = WB + (k % nbuf) * 4 * nb
            nx = k + nbuf
            for u in range(nb):
                need((k, u))
                A(f"v_mfma_f32_32x32x16_bf16 {vr(AC+16*u,16)}, {vr(b+4*u,4)}, {vr(o,4)}, {vr(AC+16*u,16)}")
                if nx < 10 and u >= 1: wr(nx, u - 1, u)
            if nx < 10: wr(nx, nb - 1, nb)
        MK("c8")
        for j in range(4): A(f"v_add_u32 v{16+j}, s{32+j}, v5")
        for r in range(3): A(f"v_add_u32 v{20+r}, s{36+r}, v5")
        A("v_mov_b32 v13, s27\ns_mov_b32 s63, 7")
        for j in range(4):
            A(f"s_cmp_eq_u32 s54, {j}\ns_cbranch_scc1 {E}_ns{T}{j}")
            for t in range(nb): A(f"ds_write_b128 v{16+j}, {vr(AC+16*t+4*j,4)} offset:{t*1024}")
            A(f"{E}_ns{T}{j}:")
        A(f"""
s_waitcnt lgkmcnt(0)
ds_write_b32 v13, v13
{E}_sp{T}:
ds_read_b32 v1, v{SP}
s_waitcnt lgkmcnt(0)
v_cmp_ne_u32 vcc, 0, v1
s_and_b32 s30, vcc_lo, s63
""")
        for r in range(3):
            A(f"s_bitcmp1_b32 s30, {r}\ns_cbranch_scc0 {E}_nr{T}{r}")
            for t in range(nb): A(f"ds_read_b128 {vr(WB+4*(3*t+r),4)}, v{20+r} offset:{t*1024}")
            A(f"{E}_nr{T}{r}:")
        A(f"""
s_andn2_b32 s63, s63, s30
s_cbranch_scc1 {E}_sp{T}
s_waitcnt lgkmcnt(0)
""")
        MK("c9")
        def fin(qq):
            for t in range(nb):
                a = AC + 16 * t + 4 * qq; r = WB + 12 * t
                for k in range(4): A(f"v_add_f32 v{a+k}, v{a+k}, v{r+k}\nv_add_f32 v{r+4+k}, v{r+4+k}, v{r+8+k}")
                for k in range(4): A(f"v_add_f32 v{a+k}, v{a+k}, v{r+4+k}")
                A(f"v_cvt_pk_bf16_f32 v{a}, v{a}, v{a+1}\nv_cvt_pk_bf16_f32 v{a+1}, v{a+2}, v{a+3}")
                A(f"buffer_store_dwordx2 {vr(a,2)}, v{OA}, s[48:51], s55 offen")
                if t < nb - 1: A("s_add_u32 s55, s55, s53")
            A("s_endpgm")
        for qq in range(4):
            if qq < 3: A(f"s_cmp_lg_u32 s54, {qq}\ns_cbranch_scc1 {E}_fn{T}{qq+1}")
            fin(qq)
            if qq < 3: A(f"{E}_fn{T}{qq+1}:")
        for k in range(10):
            A(f"""
{E}_rt{T}{k}:
s_sub_u32 s62, s62, 1
s_cbranch_scc1 {E}_bk{T}{k}
""")
            if P["rtsl"]: A(f"s_sleep {P['rtsl']}")
            for kk in range(k, 10): load(kk)
            A(f"s_waitcnt vmcnt({later(k)})\ns_branch {E}_ck{T}{k}")
    A(f"""
{E}_fb:
s_waitcnt lgkmcnt(0)
v_lshlrev_b32 v5, 4, v2
v_lshlrev_b32 v6, 4, v4
v_mul_u32_u24 v7, {SV}, v3
v_lshl_add_u32 v7, v4, 4, v7
v_add_u32 v15, {2*SV}, v7
v_mov_b32 v1, 0xff800000
s_add_u32 s18, s16, 40960
s_mov_b32 s26, s18
s_mov_b32 s27, 64
{E}_fb1:
s_add_u32 s30, s26, s17
buffer_load_dwordx4 {vr(KM,4)}, v5, s[44:47], s26 offen{SC}
buffer_load_dwordx2 {vr(KR,2)}, v6, s[44:47], s30 offen{SC}
s_waitcnt vmcnt(0)
v_mfma_f32_32x32x16_bf16 {vr(S[0],16)}, {vr(KM,4)}, {vr(QM,4)}, 0
v_mfma_f32_32x32x8_bf16 {vr(S[0],16)}, {vr(KR,2)}, {vr(QR,2)}, {vr(S[0],16)}
""")
    for k in range(8): A(f"v_max3_f32 v1, v1, v{S[0]+2*k}, v{S[0]+2*k+1}")
    A(f"""
s_add_u32 s26, s26, {TS}
s_sub_u32 s27, s27, 1
s_cmp_lg_u32 s27, 0
s_cbranch_scc1 {E}_fb1
v_mov_b32 v14, v1
v_permlane32_swap_b32 v1, v14
v_max_f32 v1, v1, v14
""")
    for i in range(16): A(f"v_sub_f32 v{CB+i}, 0, v1\nv_mov_b32 v{O+i}, 0")
    A(f"""
s_mov_b32 s26, s18
s_mul_i32 s28, s14, 320
s_add_u32 s28, s28, {QF + VOFF}
s_mov_b32 s27, 64
{E}_fb2:
s_add_u32 s30, s26, s17
buffer_load_dwordx4 {vr(KM,4)}, v5, s[44:47], s26 offen{SC}
buffer_load_dwordx2 {vr(KR,2)}, v6, s[44:47], s30 offen{SC}
s_mov_b64 exec, s[22:23]
buffer_load_dwordx4 {vr(V0,4)}, v7, s[44:47], s28 offen{SC}
buffer_load_dwordx4 {vr(V1,4)}, v15, s[44:47], s28 offen{SC}
s_mov_b64 exec, -1
s_waitcnt vmcnt(0)
""")
    M1(0); M2(0)
    Ex(0, *range(16)); Cv(0, *range(8))
    A(f"""
v_mfma_f32_32x32x16_bf16 {vr(O,16)}, {vr(V0,4)}, {vr(S[0],4)}, {vr(O,16)}
v_mfma_f32_32x32x16_bf16 {vr(O,16)}, {vr(V1,4)}, {vr(S[0]+8,4)}, {vr(O,16)}
s_add_u32 s26, s26, {TS}
s_add_u32 s28, s28, {TS}
s_sub_u32 s27, s27, 1
s_cmp_lg_u32 s27, 0
s_cbranch_scc1 {E}_fb2
s_nop 15
s_branch {E}_epi
""")
    A(f"{E}_ffn:")
    head_scalars()
    A("v_lshlrev_b32 v5, 4, v2")
    PA = 64
    poll_addr(PA, 30, 31)
    dma_addr(20, 21, 22, 17, 18)
    A(f"s_mov_b32 s19, {G0*4*TS}")
    WA, FX, FP, XA = 76, 79, 84, 85
    HA, WFA = 65, 66
    A(f"""
v_lshrrev_b32 v{FP}, {LF}, v2
v_and_b32 v16, {(1 << LF) - 1}, v2
v_lshlrev_b32 v{FP}, 7, v{FP}
v_lshl_add_u32 v{FP}, v16, 2, v{FP}
v_mov_b32 v16, {108*128}
s_lshr_b32 s14, s40, 1
s_lshl_b32 s14, s14, 3
s_and_b32 s24, s41, 7
s_add_u32 s14, s14, s24
s_lshl_b32 s56, s14, {13 - LF}
s_add_u32 s56, s56, {FL2}
s_mul_i32 s30, s14, {27*128}
s_add_u32 s30, s30, {FH}
v_min_u32 v{HA}, 26, v4
v_lshl_add_u32 v{HA}, v{HA}, 7, s30
s_lshl_b32 s14, s14, 1
s_bfe_u32 s25, s41, 0x10003
s_xor_b32 s15, s25, 1
s_add_u32 s15, s15, s14
s_add_u32 s14, s14, s25
s_and_b32 s27, s40, 1
s_lshl_b32 s27, s27, 1
s_lshr_b32 s16, s41, 4
s_add_u32 s27, s27, s16
s_mul_i32 s30, s27, 108
s_add_u32 s30, s30, s29
s_lshl_b32 s30, s30, 7
s_add_u32 s30, s30, {FW}
v_min_u32 v{WFA}, 26, v4
v_lshl_add_u32 v{WFA}, v{WFA}, 9, s30
v_mad_u32_u24 v{WFA}, v3, v16, v{WFA}
s_and_b32 s24, s41, 15
s_mul_i32 s24, s24, 27
s_lshr_b32 s24, s24, 4
s_mul_i32 s24, s24, {P['frot']}
s_add_u32 s20, s17, {HF}
s_mul_i32 s23, s29, 20480
s_mul_i32 s28, s27, 5120
s_add_u32 s23, s23, s28
s_add_u32 s23, s23, {W2F}
s_add_u32 s22, s20, {27*4096}
s_lshl_b32 s16, s24, 12
s_add_u32 s16, s16, s20
s_mul_i32 s26, s24, 81920
s_add_u32 s26, s26, s23
s_mul_i32 s30, s14, {108*1024}
s_mul_i32 s31, s15, {108*1024}
v_add_u32 v8, s30, v5
v_add_u32 v9, s31, v5
s_lshl_b32 s30, s25, 12
s_lshl_b32 s31, s25, 11
s_add_u32 s31, s31, 1024
v_add_u32 v10, s30, v5
v_add_u32 v11, s31, v5
v_add_u32 v12, 2048, v5
v_mov_b32 v7, s29
v_lshlrev_b32 v7, 2, v7
v_and_b32 v1, 7, v2
v_lshlrev_b32 v1, 2, v1
v_and_b32 v15, 12, v1
v_mul_u32_u24 v{XA}, 1280, v4
v_lshl_add_u32 v{XA}, v3, 3, v{XA}
s_mul_i32 s52, s27, 320
s_lshl_b32 s53, s29, 4
s_add_u32 s53, s53, s52
s_mul_i32 s54, s14, 40960
s_mul_i32 s55, s15, 40960
s_add_u32 s54, s54, s53
s_add_u32 s55, s55, s53
s_lshl_b32 s57, s25, 8
s_lshl_b32 s58, s25, 7
s_add_u32 s52, s52, s57
s_sub_u32 s59, 64, s58
s_add_u32 s58, s58, 64
s_add_u32 s30, s55, s57
s_add_u32 s31, s55, s58
s_add_u32 s32, s54, s57
s_add_u32 s33, s54, s58
s_add_u32 s34, s54, 128
s_sub_u32 s54, s29, 1
s_add_u32 s53, s59, 204800
s_mul_i32 s53, s53, s54
s_add_u32 s52, s52, s53
s_mul_i32 s53, s54, 40960
s_add_u32 s53, s53, {WO}
v_lshrrev_b32 v16, 2, v2
v_and_b32 v17, 3, v2
v_mul_u32_u24 v16, 1280, v16
v_lshl_add_u32 v{WA}, v17, 4, v16
s_mul_i32 s54, s29, 5120
s_add_u32 s54, s54, {PR}
v_add_u32 v{FX}, s54, v5
s_sub_u32 s60, s59, 184320
s_lshl_b32 s61, s59, 1
s_sub_u32 s61, 20480, s61
s_cmp_eq_u32 s29, 3
s_cselect_b32 s54, 9, 0
s_cselect_b32 s55, 10, 0
s_cselect_b32 s63, 11, 0
s_cselect_b32 s3, 12, 0
s_cselect_b32 s62, 13, 0
s_cselect_b32 s57, s61, s60
s_cmp_eq_u32 s29, 2
s_cselect_b32 s62, 9, s62
s_cselect_b32 s58, s61, s60
s_cmp_eq_u32 s29, 1
s_cselect_b32 s59, s61, s60
v_mov_b32 v6, {RLY}
s_mov_b32 s10, {P['spin']}
s_mov_b32 s8, 0
""")
    MK("lS")
    A(f"s_waitcnt lgkmcnt(0)\ns_barrier\nds_read_b32 v0, v6 offset:4")
    MK("lB")
    C1 = P["c1"]
    def flag(v): A(f"v_mov_b32 v0, {v}\nds_write_b32 v7, v0")
    A("s_waitcnt lgkmcnt(0)\nv_readfirstlane_b32 s8, v0")
    def gwait(G):
        m = (3 << (2 * G)) & 0xffffffff
        A(f"""
{E}_gw{G}:
s_and_b32 s9, s8, {hex(m)}
s_cmp_eq_u32 s9, {hex(m)}
s_cbranch_scc1 {E}_gg{G}
buffer_load_dwordx4 v[68:71], v{PA}, s[44:47], 0 offen sc1
s_waitcnt vmcnt(0)
v_min_u32 v69, v69, v70
v_cmp_ne_u32 s[8:9], 0, v69
s_and_b32 s8, s8, s9
s_sub_u32 s10, s10, 1
s_cselect_b32 s8, -1, s8
s_cselect_b32 s10, 0, s10
s_branch {E}_gw{G}
{E}_gg{G}:
""")
    nst = 0
    for G in range(G0, 16):
        gwait(G); dma(G, 17, 18, "s19")
        if G < 15: A(f"s_add_u32 s19, s19, {4*TS}")
        if G == P["w2g"]:
            if P["now2"]: A("s_mov_b32 s9, s66\ns_mov_b32 s66, 0")
            for c in range(4): A(f"buffer_store_dwordx4 {vr(88+4*c,4)}, v5, s[64:67], s69 offen offset:{1024*c}{ST}")
            if P["now2"]: A("s_mov_b32 s66, s9")
        if G == 2 + P["c0"]:
            n = 4 * P["c0"] + (4 if 2 <= P["w2g"] <= G else 0)
            A(f"s_waitcnt vmcnt({n})"); flag(F_G1)
        if G == 5 + C1:
            n = 4 * C1 + (4 if 5 <= P["w2g"] <= G else 0)
            A(f"s_waitcnt vmcnt({n})"); flag(F_G5); MK("l4")
    A(f"""
s_waitcnt vmcnt({4 * (15 - P["w2g"])})
v_mov_b32 v0, 1
s_mov_b64 exec, 1
buffer_store_dword v0, off, s[64:67], s68 sc1
s_mov_b64 exec, -1
""")
    if P["hgate"]:
        A("s_waitcnt vmcnt(1)"); flag(F_ALL)
        A(f"""
{E}_hq:
ds_read_b32 v0, v1 offset:64
s_waitcnt lgkmcnt(0)
v_cmp_gt_u32 vcc, {P['hgate']}, v0
s_cbranch_vccz {E}_hw
s_sleep 4
s_branch {E}_hq
""")
    A(f"""
{E}_hw:
buffer_load_dword v68, v{HA}, s[44:47], 0 offen sc1
buffer_load_dword v69, v{WFA}, s[44:47], 0 offen sc1
s_waitcnt vmcnt(2)
""")
    flag(F_ALL)
    A(f"""
s_waitcnt vmcnt(0)
v_min_u32 v68, v68, v69
v_cmp_eq_u32 s[8:9], 0, v68
s_or_b32 s8, s8, s9
s_and_b32 s8, s8, 0x7ffffff
s_cbranch_scc0 {E}_hg
s_sub_u32 s10, s10, 1
s_cselect_b32 s10, 0, s10
s_cbranch_scc1 {E}_hg
s_sleep {P['hsl']}
s_branch {E}_hw
{E}_hg:
""")
    MK("lH")
    ACC = 88
    class VQ_:
        def __init__(s): s.q = []
        def op(s, tag, txt): A(txt); s.q.append(tag)
        def need(s, *tags):
            idx = max([i for i, t in enumerate(s.q) if t in tags], default=-1)
            if idx >= 0:
                A(f"s_waitcnt vmcnt({len(s.q) - 1 - idx})"); s.q = s.q[idx + 1:]
    VQ = VQ_()
    addr = {0: (9, 16), 1: (10, 26), 2: (11, 26), 3: (12, 26), 4: (8, 16)}
    def fl(i, j):
        b = 16 + 20 * (i % 3)
        VQ.op((i, j), f"buffer_load_dwordx4 {vr(b+4*j,4)}, v{addr[j][0]}, s[44:47], s{addr[j][1]} offen{P['fsc']}")
        if j == 4: A("s_add_u32 s16, s16, 4096\ns_add_u32 s26, s26, 81920\ns_cmp_eq_u32 s16, s22\ns_cselect_b32 s16, s20, s16\ns_cselect_b32 s26, s23, s26")
    for i in range(3):
        for j in range(5): fl(i, j)
    A(f"s_setprio {P['prio_ffn']}")
    blk = [(0, 1), (0, 2), (4, 1), (4, 2), (4, 3)]
    after = {1: [0], 2: [1], 3: [2], 4: [3, 4]}
    for i in range(27):
        b = 16 + 20 * (i % 3)
        for t, (hj, wj) in enumerate(blk):
            VQ.need((i, hj), (i, wj))
            c = "0" if i == 0 else vr(ACC + 16 * t, 16)
            A(f"v_mfma_f32_32x32x16_bf16 {vr(ACC+16*t,16)}, {vr(b+4*wj,4)}, {vr(b+4*hj,4)}, {c}")
            if i + 3 < 27:
                for j in after.get(t, []): fl(i + 3, j)
    RED = 2560
    MK("l2")
    A(f"s_setprio {P['prio_red']}")
    for q in range(4):
        A(f"s_sub_u32 s16, s29, {q+1}\ns_and_b32 s16, s16, 3\ns_mul_i32 s16, s16, 5120\ns_add_u32 s16, s16, {RED + q*15360}\nv_add_u32 v{8+q}, s16, v5")
    A(f"""
s_mul_i32 s17, s29, 15360
s_add_u32 s17, s17, {RED}
v_add_u32 v12, s17, v5
s_mov_b32 s48, s4
s_mov_b32 s49, s5
s_mov_b32 s50, 2621440
s_mov_b32 s51, 0x20000
s_mov_b32 s36, 0xffff0000
""")
    npw = [0]
    def pwait(reg, off, thr, sl=2):
        k = npw[0]; npw[0] += 1
        A(f"""
{E}_pw{k}:
ds_read_b32 v0, v{reg} offset:{off}
s_waitcnt lgkmcnt(0)
v_cmp_gt_u32 vcc, {thr}, v0
s_cbranch_vccz {E}_pwd{k}
s_sleep {sl}
s_branch {E}_pw{k}
{E}_pwd{k}:
""")
    pwait(1, 64, 2 * P["T1"], 4)
    for q in range(4):
        A(f"s_cmp_eq_u32 s29, {q}\ns_cbranch_scc1 {E}_nx{q}")
        for t in range(5): A(f"ds_write_b128 v{8+q}, {vr(ACC+16*t+4*q,4)} offset:{t*1024}")
        A(f"{E}_nx{q}:")
    flag(F_RW)
    pwait(15, 0, F_RW, 1)
    for t in range(5):
        for jj in range(3):
            A(f"ds_read_b128 {vr(16+12*t+4*jj,4)}, v12 offset:{jj * 5120 + t * 1024}")
    def perq(tag, body):
        for q in range(4):
            if q < 3: A(f"s_cmp_lg_u32 s29, {q}\ns_cbranch_scc1 {E}_{tag}{q+1}")
            body(q)
            if q < 3: A(f"s_branch {E}_{tag}d\n{E}_{tag}{q+1}:")
        A(f"{E}_{tag}d:")
    xr = lambda q, t: ACC + 16 * t + 4 * ((q + 1) & 3)
    perq("x", lambda q: [A(f"buffer_load_dwordx2 {vr(xr(q,t),2)}, v{XA}, s[48:51], s{30+t} offen") for t in range(5)])
    A("s_waitcnt lgkmcnt(0)"); flag(F_RR)
    MK("l7")
    A(f"""
s_setprio 3
s_mov_b32 s48, s6
s_mov_b32 s49, s7
s_mov_b32 s50, 819200
""")
    def fin(q):
        for t in range(5):
            b = 16 + 12 * t; o = ACC + 16 * t + 4 * q; x = xr(q, t)
            for k in range(4): A(f"v_add_f32 v{b+k}, v{b+k}, v{o+k}")
            for k in range(2): A(f"v_lshlrev_b32 v{o+2*k}, 16, v{x+k}\nv_and_b32 v{o+2*k+1}, s36, v{x+k}")
            for k in range(4): A(f"v_add_f32 v{b+4+k}, v{b+4+k}, v{b+8+k}")
            for k in range(4): A(f"v_add3_f32 v{b+k}, v{b+k}, v{b+4+k}, v{o+k}" if False else f"v_add_f32 v{b+k}, v{b+k}, v{b+4+k}")
            for k in range(4): A(f"v_add_f32 v{b+k}, v{b+k}, v{o+k}")
    def adds(n):
        A(f"s_setprio {P['prio_add']}\ns_waitcnt vmcnt({n})"); perq("fin", fin); A("s_setprio 3")
    A(f"s_cmp_eq_u32 s29, 0\ns_cbranch_scc1 {E}_nd")
    pwait(15, 0, F_RR, 1)
    for m in range(40):
        if m in (0, 9, 19, 29, 39): pwait(1, 64, {0: "s54", 9: "s55", 19: "s63", 29: "s3", 39: "s62"}[m], P['wsl'])
        A(f"s_add_u32 m0, s53, {m*1024}\nbuffer_load_dwordx4 v{WA}, s[48:51], s52 offen lds")
        if m % 10 < 9: A("s_add_u32 s52, s52, 20480")
        elif m < 39: A(f"s_add_u32 s52, s52, s{57 + m // 10}")
    MK("l8")
    A(f"s_waitcnt vmcnt(0)\n{E}_nd:"); flag(F_WO)
    A(f"s_cmp_eq_u32 s29, 0\ns_cbranch_scc1 {E}_pl")
    adds(0)
    def fxw():
        for t in range(5): A(f"ds_write_b128 v{FX}, {vr(16+12*t,4)} offset:{t*1024}")
        flag(F_FX)
    pwait(1, 64, 16, P['rsl'])
    fxw()
    A(f"s_waitcnt lgkmcnt(0)\ns_endpgm\n{E}_pl:")
    PV = 80
    A(f"s_waitcnt vmcnt(0)\nv_mov_b32 v{PV}, 0\nv_mov_b32 v6, 0\ns_mov_b32 s57, {P['spin']}\ns_mov_b32 s58, 0\ns_mov_b32 s59, 0")
    if P["pgate"]: pwait(1, 64, P["pgate"], P['wsl'])
    A(f"""
{E}_rp:
s_sub_u32 s59, s59, 1
s_cbranch_scc0 {E}_np
s_mov_b32 s59, {P['pper']}
s_waitcnt vmcnt({P['pd'] - 1})
buffer_load_dword v{PV}, v{FP}, s[44:47], s56 offen{P['psc']}
{E}_np:
ds_read_b32 v0, v1 offset:64
v_cmp_ne_u32 s[60:61], 0, v{PV}
s_sub_u32 s57, s57, 1
s_cselect_b64 s[60:61], -1, s[60:61]
s_cselect_b32 s57, 0, s57
v_mov_b32 v8, s60
v_mov_b32 v9, s61
ds_write_b64 v6, v[8:9] offset:{MSK}
s_cmp_lg_u32 s58, 0
s_cbranch_scc1 {E}_rr
s_waitcnt lgkmcnt(1)
v_cmp_gt_u32 vcc, 16, v0
s_cbranch_vccnz {E}_rs
""")
    fin(0); fxw()
    A(f"""
s_mov_b32 s58, 1
{E}_rr:
s_cmp_eq_u64 s[60:61], -1
s_cbranch_scc1 {E}_go
{E}_rs:
s_sleep {P['rsl']}
s_branch {E}_rp
{E}_go:
s_waitcnt vmcnt(0) lgkmcnt(0)
{E}_end:
s_endpgm
""")
    A.end(name, 168, 72)
```

```python
from asmlib import *
from layout import *

NP = 4
DEF = dict(cpf=None, kpar=0, kbit=0, krot=(1, 4), st=" sc1", lprio=3, gtab=None, cntp=8, eprio=3,
           offs=96.0, T1=4, prio_ffn=0, prio_red=1, prio_add=0, c1=3, prios=(3, 2, 1, 0), rot=0, frot=1,
           order="M1 E8 E9 C0 C1 E10 E11 M2 K C2 C3 E12 E13 E14 E15 M3 C4 C5 N0 N1 C6 C7 N2 N3 M4 V N4 N5 N6 N7", npre=8,
           osc=" sc1", lsc=" sc1", psl=2, spin=2000000, rsl=1, wsl=8, G0=2, hint=(7, 4), bq=2, pgate=13, rtsl=0, pd=1, pper=12,
           psc=' sc1', hsc=' sc1', qsl=1, hst=(0, 0, 1, 1, 2, 2, 3, 3), ofp=5, hfl=(0, 7), w2g=5, marks=None, hsl=2, noh=0, noof=0, now2=0, dsc=' sc1', fsc=' sc1', qdel=0, hgate=2, xq=0, clrb=1, atb=0, atk=0, ptouch=0, clrf=1, ptp=-1, ptr=(4, 10))
WO = 1024; PR = 143360; MSK = 96; SENT = 128; FREE = 123904
RLY = 147392
F_G1, F_G5, F_ALL, F_RW, F_RR, F_WO, F_FX = 1, 2, 3, 4, 5, 6, 7
LF = 2
HD = [0, 0, 0, 1, 2, 2, 2, 3, 4, 4, 4, 4, 5, 5, 5, 5]
H1 = (2, 3, 6, 7, 11)

def gen_f(A, name, P=None):
    P = dict(DEF, **(P or {}))
    XS = 49152; RB = 49152 + 4096; CS = 49152 + 8192
    ST = P["st"]; SC = " sc1"
    G0 = P["G0"]
    A.begin(name)
    E = "L_f"
    def MK(tag):
        if P["marks"] and tag in P["marks"]: A(f"; MARK {P['marks'][tag]}")
    hd = sum(v << (4 * i) for i, v in enumerate(HD))
    GT = ""
    if P["gtab"]:
        t = sum(v << (4 * i) for i, v in enumerate(P["gtab"]))
        GT = f"s_lshl_b32 s15, s15, 2\ns_mov_b32 s16, {hex(t & 0xffffffff)}\ns_mov_b32 s17, {hex(t >> 32)}\ns_lshr_b64 s[16:17], s[16:17], s15\ns_and_b32 s15, s16, 15"
    CP = ""
    if P["cpf"]:
        n0, n1 = P["cpf"]
        CP = f"""s_getpc_b64 s[42:43]
{E}_pc:
s_lshr_b32 s3, s2, 3
s_mul_i32 s3, s3, {n1}
v_mov_b32 v3, s3
v_cmp_gt_u32 vcc, {n0}, v0
v_cndmask_b32 v3, v3, 0, vcc
v_add_lshl_u32 v3, v3, v0, 7
v_min_u32 v3, {E}_end-{E}_pc, v3
v_mov_b32 v5, s43
v_add_co_u32 v4, vcc, s42, v3
v_addc_co_u32 v5, vcc, 0, v5, vcc
v_cmp_gt_u32 vcc, {n0 + n1}, v0
s_and_b64 exec, exec, vcc
s_cbranch_execz {E}_np0
global_load_dword v167, v[4:5], off
{E}_np0:
s_mov_b64 exec, -1"""
    A(f"""
s_cmp_ge_u32 s2, 256
s_cbranch_scc1 {E}_end
{CP}
s_load_dwordx4 s[4:7], s[0:1], 0
s_load_dwordx4 s[8:11], s[0:1], 32
s_load_dwordx2 s[12:13], s[0:1], 64
s_load_dwordx4 s[64:67], s[0:1], 48
v_lshrrev_b32 v1, 6, v0
v_and_b32 v2, 63, v0
s_and_b32 s40, s2, 7
s_lshr_b32 s41, s2, 3
v_readfirstlane_b32 s29, v1
s_and_b32 s14, s40, 1
s_lshl_b32 s14, s14, 3
s_and_b32 s15, s41, 7
s_add_u32 s14, s14, s15
s_lshr_b32 s15, s40, 1
s_lshl_b32 s15, s15, 2
s_lshr_b32 s16, s41, 3
s_add_u32 s15, s15, s16
{GT}
s_lshl_b32 s17, s15, 2
s_mov_b32 s18, {hex(hd & 0xffffffff)}
s_mov_b32 s19, {hex(hd >> 32)}
s_lshr_b64 s[18:19], s[18:19], s17
s_and_b32 s18, s18, 15
s_lshl_b32 s17, s15, 1
s_sub_u32 s19, s17, s18
s_mov_b32 s18, {sum(1 << g for g in H1)}
s_bitcmp1_b32 s18, s15
s_cselect_b32 s18, 1, 2
s_mov_b32 s46, {WS_BYTES}
s_mov_b32 s47, 0x20000
s_cmp_lt_u32 s29, 8
s_cbranch_scc1 {E}_comp
""")
    ra, rb = P["krot"]
    A(f"""
s_setprio {P['lprio']}
s_sub_u32 s29, s29, 8
s_mov_b32 s22, 2621440
s_mov_b32 s23, 0x20000
s_mov_b32 s27, 0x20000
s_mov_b32 s50, 2211840
s_mov_b32 s51, 0x20000
s_cmp_lt_u32 s15, 15
s_cselect_b32 s26, 2457600, 0
v_lshrrev_b32 v3, 3, v2
s_lshl_b32 s30, s29, 5
s_lshl_b32 s31, s14, 7
s_add_u32 s30, s30, s31
v_add_u32 v3, s30, v3
v_lshrrev_b32 v4, 4, v2
v_and_b32 v5, 7, v2
v_xor_b32 v6, v5, v4
v_xor_b32 v7, 4, v6
s_movk_i32 s32, 1280
v_mul_lo_u32 v3, v3, s32
v_lshl_add_u32 v10, v6, 4, v3
v_lshl_add_u32 v11, v7, 4, v3
v_add_u32 v11, 10240, v11
v_and_b32 v5, 15, v2
v_lshlrev_b32 v6, 2, v4
v_xor_b32 v5, v5, v6
s_lshl_b32 s30, s29, 4
v_add_u32 v4, s30, v4
v_mul_u32_u24 v6, 3840, v4
v_mul_u32_u24 v7, 3456, v4
s_lshl_b32 s31, s17, 7
s_lshl_b32 s33, s19, 7
v_lshl_add_u32 v6, v5, 4, v6
v_lshl_add_u32 v7, v5, 4, v7
v_add_u32 v12, s31, v6
v_add_u32 v44, s33, v7
s_lshl_b32 s33, s18, 3
v_mov_b32 v8, 0x7fffffff
v_cmp_gt_u32 vcc, s33, v5
s_lshr_b32 s35, s40, 1
s_mul_i32 s35, s35, {ra}
s_and_b32 s36, s40, 1
s_mul_i32 s36, s36, {rb}
s_add_u32 s35, s35, s36
s_bfe_u32 s36, s41, {0x10000 + P['kbit']}
s_mul_i32 s36, s36, {P['kpar']}
s_add_u32 s35, s35, s36
s_cmp_ge_u32 s35, 10
s_cselect_b32 s36, 10, 0
s_sub_u32 s35, s35, s36
""")
    for j in range(1, 4): A(f"v_add_u32 v{12+j}, {j*4*3840}, v12\nv_add_u32 v{44+j}, {j*4*3456}, v44")
    for j in range(4): A(f"v_cndmask_b32 v{44+j}, v8, v{44+j}, vcc")
    A(f"""
s_mul_i32 s36, s35, {64*3840}
s_mul_i32 s39, s35, {64*3456}
s_lshl_b32 s35, s35, 7
s_lshl_b32 s37, s29, 12
s_add_u32 s38, s37, 16384
s_waitcnt lgkmcnt(0)
s_mov_b32 s20, s4
s_mov_b32 s21, s5
s_mov_b32 s24, s6
s_mov_b32 s25, s7
s_mov_b32 s48, s8
s_mov_b32 s49, s9
""")
    def issue(slot, fill=()):
        base = slot * 49152
        fill = list(fill); per = (len(fill) + 10) // 11
        def fl(k):
            if fill and k == 0: A("s_waitcnt lgkmcnt(0)")
            if k < 11:
                for o in fill[k * per:(k + 1) * per]: A(o)
        A("s_add_u32 s30, s35, 20480")
        for j in range(4):
            A(f"s_add_u32 m0, s37, {base + j*1024}\nbuffer_load_dwordx4 v{10+(j&1)}, s[20:23], s{35 if j < 2 else 30} offen lds")
            if j: fl(j - 1)
        for j in range(4):
            A(f"s_add_u32 m0, s38, {base + j*1024}\nbuffer_load_dwordx4 v{12+j}, s[24:27], s36 offen lds")
            fl(3 + j)
        for j in range(4):
            if not P["xq"]: A(f"s_add_u32 m0, s38, {base + 16384 + j*1024}\nbuffer_load_dwordx4 v{44+j}, s[48:51], s39 offen lds")
            fl(7 + j)
        A(f"s_add_u32 s35, s35, 128\ns_add_u32 s36, s36, {64*3840}\ns_add_u32 s39, s39, {64*3456}\ns_cmp_eq_u32 s35, 1280\ns_cselect_b32 s35, 0, s35\ns_cselect_b32 s36, 0, s36\ns_cselect_b32 s39, 0, s39")
    issue(0); issue(1)
    A(f"""
s_load_dwordx2 s[6:7], s[0:1], 16
s_lshl_b32 s30, s29, 12
v_lshl_add_u32 v96, v2, 4, s30
v_add_u32 v97, 98304, v96
s_mov_b32 s56, 0xffff0000
""")
    for i in range(32, 40): A(f"v_mov_b32 v{i}, 0")
    def sreads(st):
        slot = st % 3; off = 49152 if slot == 1 else 0
        for j in range(4): A(f"ds_read_b128 {vr(16+4*j,4)}, v{97 if slot == 2 else 96} offset:{off + j*1024}")
    def sops():
        ops = []
        for i in range(4):
            for jp in range(2):
                for e, j in enumerate((2*jp, 2*jp+1)):
                    x = 16 + 4*j + i
                    ops += [f"v_lshlrev_b32 v{40+2*e}, 16, v{x}", f"v_and_b32 v{41+2*e}, s56, v{x}"]
                for q in range(2):
                    for e, j in enumerate((2*jp, 2*jp+1)):
                        u = 40 + 2*e + q
                        ops += [f"v_add_f32 v{32+2*j}, v{32+2*j}, v{u}", f"v_fmac_f32 v{33+2*j}, v{u}, v{u}"]
        return ops
    NV = 8 if P["xq"] else 12
    A(f"s_waitcnt vmcnt({NV})\ns_barrier")
    for s_ in range(8):
        sreads(s_)
        issue((s_ + 2) % 3, sops())
        A(f"s_waitcnt vmcnt({NV})\ns_barrier")
    sreads(8)
    A(f"""
v_mov_b32 v99, 0
global_load_dword v116, v99, s[66:67] offset:{CNT} sc1
s_mov_b32 s44, s12
s_mov_b32 s45, s13
s_mov_b32 s48, s10
s_mov_b32 s49, s11
s_lshl_b32 s57, s29, 8
s_add_u32 s58, s57, s2
s_min_u32 s57, s58, 539
s_mul_i32 s59, s57, 13108
s_lshr_b32 s59, s59, 16
s_mul_i32 s60, s59, 5
s_sub_u32 s60, s57, s60
s_mul_i32 s61, s59, 20480
s_lshl_b32 s62, s60, 8
s_add_u32 s62, s62, s61
s_add_u32 s63, s62, 5120
v_lshrrev_b32 v3, 5, v2
v_and_b32 v4, 31, v2
v_mul_u32_u24 v5, 10240, v3
v_lshl_add_u32 v98, v4, 3, v5
s_cmp_ge_u32 s58, 540
s_cselect_b32 s50, 0, s50
""")
    W2R = 100
    for j in range(8):
        A(f"buffer_load_dwordx2 {vr(W2R+2*j,2)}, v98, s[48:51], s{62 + (j >> 2)} offen offset:{(j & 3) * 1280}")
    A("s_waitcnt lgkmcnt(0)")
    for o in sops(): A(o)
    A("s_waitcnt vmcnt(8)\ns_barrier")
    sreads(9)
    A(f"""
v_and_b32 v5, 3, v2
v_lshrrev_b32 v6, 3, v2
v_lshl_add_u32 v6, v5, 3, v6
s_lshl_b32 s30, s29, 5
v_add_u32 v6, s30, v6
v_lshlrev_b32 v6, 2, v6
v_cmp_eq_u32 s[30:31], 1, v5
v_cmp_eq_u32 s[32:33], 2, v5
v_cmp_eq_u32 s[34:35], 3, v5
s_mov_b32 s36, 0x3acccccd
s_mov_b32 s37, 0x3727c5ac
v_mov_b32 v98, 0
v_mov_b32 v7, {RLY}
ds_write_b64 v7, v[98:99]
s_waitcnt lgkmcnt(0)
""")
    for o in sops(): A(o)
    for m in ("quad_perm:[1,0,3,2]", "quad_perm:[2,3,0,1]", "row_half_mirror"):
        for i in range(8): A(f"v_add_f32_dpp v{32+i}, v{32+i}, v{32+i} {m} row_mask:0xf bank_mask:0xf")
    for j in range(1, 4):
        A(f"v_cndmask_b32 v32, v32, v{32+2*j}, s[{28+2*j}:{29+2*j}]\nv_cndmask_b32 v33, v33, v{33+2*j}, s[{28+2*j}:{29+2*j}]")
    A(f"""
v_mul_f32 v32, s36, v32
v_mul_f32 v34, v32, v32
v_fma_f32 v33, v33, s36, -v34
v_max_f32 v33, 0, v33
v_cvt_pk_bf16_f32 v33, 0, v33
v_add_f32 v33, s37, v33
v_cvt_pk_bf16_f32 v33, 0, v33
v_sqrt_f32 v33, v33
ds_write_b32 v6, v32 offset:{XS}
v_readfirstlane_b32 s30, v116
v_cvt_pk_bf16_f32 v33, 0, v33
v_rcp_f32 v33, v33
s_mov_b32 s31, {P['spin']}
s_nop 0
ds_write_b32 v6, v33 offset:{RB}
s_waitcnt lgkmcnt(0)
s_barrier
{E}_cw:
s_cmp_ge_u32 s30, 16
s_cbranch_scc1 {E}_cd
s_sub_u32 s31, s31, 1
s_cbranch_scc1 {E}_cd
s_sleep 2
global_load_dword v116, v99, s[66:67] offset:{CNT} sc1
s_waitcnt vmcnt(0)
v_readfirstlane_b32 s30, v116
s_branch {E}_cw
{E}_cd:
s_barrier
""")
    MK("lA")
    A(f"""
v_mov_b32 v1, 0
v_lshlrev_b32 v7, 2, v2
ds_write_b32 v7, v1
s_mov_b32 s64, s12
s_mov_b32 s65, s13
s_mov_b32 s67, 0x20000
s_cmp_ge_u32 s58, 540
s_cselect_b32 s66, 0, {WS_BYTES}
s_mov_b32 s30, 0x05040100
s_mov_b32 s31, 0x07060302
v_lshrrev_b32 v5, 3, v4
v_and_b32 v6, 7, v2
v_lshlrev_b32 v5, 10, v5
v_lshl_add_u32 v5, v6, 6, v5
v_lshl_add_u32 v5, v3, 9, v5
s_lshl_b32 s34, s29, 12
s_add_u32 s34, s34, 147456
v_add_u32 v5, s34, v5
v_lshlrev_b32 v6, 4, v2
v_add_u32 v7, s34, v6
s_lshl_b32 s69, s60, 12
s_add_u32 s69, s69, s61
s_add_u32 s69, s69, {W2F}
s_mul_i32 s68, s60, 108
s_add_u32 s68, s68, s59
s_lshl_b32 s68, s68, 7
s_add_u32 s68, s68, {FW}
s_waitcnt vmcnt(0)
""")
    for c in range(4):
        for k in range(4): A(f"v_perm_b32 v{40+4*c+k}, v{W2R+2+4*k+(c>>1)}, v{W2R+4*k+(c>>1)}, s{30+(c&1)}")
    for c in range(4): A(f"ds_write_b128 v5, {vr(40+4*c,4)} offset:{16*c}")
    for c in range(4): A(f"ds_read_b128 {vr(88+4*c,4)}, v7 offset:{1024*c}")
    A(f"s_branch {E}_ffn")

    def head_scalars():
        A(f"""
s_lshl_b32 s14, s40, 2
s_lshr_b32 s15, s41, 3
s_add_u32 s14, s14, s15
s_mul_i32 s16, s14, 5
s_add_u32 s16, s16, 1
s_lshr_b32 s16, s16, 1
s_lshl_b32 s16, s16, 9
s_add_u32 s16, s16, {QF}
s_movk_i32 s17, 1024
s_bitcmp1_b32 s14, 0
s_cselect_b32 s17, -504, s17
s_and_b32 s19, s41, 7
s_lshl_b32 s15, s19, 3
s_mul_i32 s19, s19, {8 * TS * P['rot']}
""")
    def poll_addr(dst, t0, t1):
        A(f"""
s_mul_i32 s{t0}, s14, 20
s_add_u32 s{t1}, s{t0}, 19
s_lshr_b32 s{t0}, s{t0}, 6
s_lshr_b32 s{t1}, s{t1}, 6
s_sub_u32 s{t1}, s{t1}, s{t0}
s_lshl_b32 s{t0}, s{t0}, 12
s_add_u32 s{t0}, s{t0}, {FQ}
s_lshl_b32 s{t1}, s{t1}, 12
v_mul_u32_u24 v{dst}, s{t1}, v3
v_lshl_add_u32 v{dst}, v4, 7, v{dst}
v_add_u32 v{dst}, s{t0}, v{dst}
""")
    A(f"""
{E}_comp:
v_lshrrev_b32 v3, 5, v2
v_and_b32 v4, 31, v2
s_and_b32 s52, s29, 1
s_lshr_b32 s53, s29, 1
s_lshl_b32 s30, s52, 1
s_xor_b32 s30, s30, s53
s_mov_b32 s56, 0x3f803f80
s_lshl_b32 s31, s30, 1
v_bfe_u32 v5, v2, 1, 3
v_xor_b32 v5, v5, v3
v_xor_b32 v5, s31, v5
s_lshl_b32 s31, s52, 13
v_lshlrev_b32 v6, 7, v4
v_add_u32 v6, s31, v6
""")
    for pos in range(4):
        A(f"v_xor_b32 v7, {2*pos}, v5\nv_lshl_add_u32 v{16+pos}, v7, 4, v6\nv_add_u32 v{20+pos}, 98304, v{16+pos}")
    A("""
v_bfe_u32 v5, v2, 2, 2
v_lshl_add_u32 v6, v3, 3, v5
v_lshlrev_b32 v6, 8, v6
v_bfe_u32 v7, v2, 1, 1
v_lshl_add_u32 v6, v7, 3, v6
s_lshr_b32 s31, s53, 1
s_lshl_b32 s31, s31, 14
s_add_u32 s31, s31, 16384
v_add_u32 v6, s31, v6
v_bfe_u32 v7, v2, 4, 1
v_and_b32 v8, 1, v2
v_lshl_add_u32 v7, v7, 1, v8
s_and_b32 s55, s53, 1
s_lshl_b32 s31, s55, 3
v_add_u32 v7, s31, v7
v_lshlrev_b32 v5, 2, v5
v_xor_b32 v7, v7, v5
v_lshl_add_u32 v6, v7, 4, v6
v_xor_b32 v7, 64, v6
""")
    for pos in range(4):
        A(f"s_xor_b32 s31, s30, {pos}\ns_lshl_b32 s31, s31, 12")
        for t in range(2):
            A(f"v_add_u32 v{24+pos*2+t}, s31, v{6+t}\nv_add_u32 v{32+pos*2+t}, 98304, v{24+pos*2+t}")
    A("""
v_and_b32 v5, 15, v2
v_bfe_u32 v6, v2, 4, 1
v_cmp_eq_u32 vcc, v5, v6
v_mov_b32 v5, s56
""")
    for i in range(4): A(f"v_cndmask_b32 v{88+i}, 0, v5, vcc")
    if P["clrf"]:
        CLR = "\n".join(f"buffer_store_dwordx4 v[92:95], v5, s[44:47], s31 offen offset:{(n & 3) * 1024} sc1" + ("\ns_add_u32 s31, s31, 4096" if n & 3 == 3 else "") for n in range(17))
        CLR += "\ns_mov_b32 exec_hi, 0\nbuffer_store_dwordx4 v[92:95], v5, s[44:47], s31 offen offset:1024 sc1\ns_mov_b64 exec, -1"
    else:
        CLR = """s_add_u32 s60, s31, 8192
s_add_u32 s61, s31, 16384
v_lshlrev_b32 v96, 7, v2
buffer_store_dwordx4 v[92:95], v96, s[44:47], s31 offen sc1
buffer_store_dwordx4 v[92:95], v96, s[44:47], s60 offen sc1
s_mov_b64 exec, 0xfff
buffer_store_dwordx4 v[92:95], v96, s[44:47], s61 offen sc1
s_mov_b64 exec, -1"""
    A(f"""
s_lshl_b32 s31, s52, 8
v_lshl_add_u32 v48, v3, 4, s31
s_add_u32 s31, s31, {XS}
v_lshl_add_u32 v9, v4, 2, s31
v_add_u32 v12, {RB - XS}, v9
s_lshl_b32 s33, s29, 11
v_lshl_add_u32 v7, v2, 4, s33
s_lshl_b32 s33, s53, 12
v_lshl_add_u32 v8, v3, 11, s33
v_bfe_u32 v5, v2, 4, 1
v_lshl_add_u32 v8, v5, 4, v8
v_bfe_u32 v5, v2, 2, 2
v_lshl_add_u32 v8, v5, 8, v8
v_and_b32 v5, 3, v2
v_lshl_add_u32 v8, v5, 2, v8
v_lshlrev_b32 v5, 4, v2
s_waitcnt lgkmcnt(0)
s_mov_b32 s44, s12
s_mov_b32 s45, s13
s_mov_b32 s48, s64
s_mov_b32 s49, s65
s_mov_b32 s64, s66
s_mov_b32 s65, s67
s_mov_b32 s67, 0x20000
s_lshl_b32 s31, s15, 3
s_add_u32 s31, s31, s29
s_cmp_eq_u32 s31, {15 * 8}
s_cselect_b32 s66, 256, 0
v_mov_b32 v49, 1
s_cbranch_scc0 {E}_nclr
s_mul_i32 s31, s14, {140 * 128}
s_add_u32 s31, s31, {FL2}
v_mov_b32 v92, 0
v_mov_b32 v93, 0
v_mov_b32 v94, 0
v_mov_b32 v95, 0
{CLR}
{E}_nclr:
""")
    A(f"""
s_lshl_b32 s39, s14, 2
s_lshl_b32 s31, s52, 1
s_add_u32 s39, s39, s31
s_lshr_b32 s30, s39, 1
s_mov_b32 s32, s12
s_mov_b32 s33, s13
s_mov_b32 s34, 0
s_mov_b32 s35, 0x20000
s_mov_b32 s8, 1.0
s_cmp_ge_u32 s29, 4
s_cbranch_scc1 {E}_ch
s_add_u32 s54, s17, s55
s_cmp_lt_u32 s54, 10
s_cselect_b32 s8, {f32bits(QSCALE)}, s8
s_cselect_b32 s31, 0, 10
s_cselect_b32 s10, 0, 4
s_cmp_ge_u32 s54, 20
s_cselect_b32 s31, 20, s31
s_cselect_b32 s10, 8, s10
s_cselect_b32 s9, 1, 0
s_sub_u32 s31, s54, s31
s_lshl_b32 s6, s31, 12
s_add_u32 s10, s10, s6
s_lshl_b32 s30, s30, 7
s_add_u32 s10, s10, s30
s_add_u32 s10, s10, {FQ}
s_mul_i32 s4, s39, {TS}
s_lshl_b32 s5, s54, 12
s_lshl_b32 s6, s31, 10
s_add_u32 s6, s6, {VOFF}
s_cmp_eq_u32 s9, 1
s_cselect_b32 s5, s6, s5
s_add_u32 s4, s4, s5
s_add_u32 s4, s4, {QF}
s_cmp_eq_u32 s9, 1
s_mov_b32 s5, {TS}
s_cselect_b32 s5, {2*SV}, s5
s_add_u32 s5, s5, s4
s_add_u32 s6, s4, {TS}
s_add_u32 s7, s5, {TS}
s_cmp_ge_u32 s54, 30
s_cselect_b32 s9, 3, s9
s_branch {E}_cj
{E}_ch:
s_add_u32 s54, s19, s55
s_mul_i32 s10, s30, 27
s_add_u32 s10, s10, s54
s_lshl_b32 s10, s10, 7
s_lshl_b32 s31, s54, 2
s_add_u32 s10, s10, {FH}
s_mul_i32 s4, s39, 108
s_add_u32 s4, s4, s31
s_lshl_b32 s4, s4, 10
s_add_u32 s4, s4, {HF}
s_add_u32 s5, s4, {108*1024}
s_mov_b32 s6, 0
s_mov_b32 s7, 0
s_cmp_lt_u32 s55, s18
s_cselect_b32 s9, 2, 3
s_cselect_b32 s34, {WS_BYTES}, 0
{E}_cj:
""")
    if P["ptouch"] == 1: A(f"s_mul_i32 s31, s2, 1280\ns_add_u32 s31, s31, {FL2}\ns_cmp_lg_u32 s29, 0\ns_cbranch_scc1 {E}_npt\nbuffer_load_dword v166, off, s[44:47], s31 sc1\n{E}_npt:")
    if P["ptouch"] == 2: A(f"buffer_load_dword v166, off, s[44:47], s4 sc1\nbuffer_load_dword v167, off, s[44:47], s10 sc1")
    if P["ptouch"] == 3: A(f"s_mul_i32 s31, s2, 1280\ns_add_u32 s31, s31, {FF}\ns_cmp_lg_u32 s29, 0\ns_cbranch_scc1 {E}_npt\nbuffer_store_dwordx4 v[88:91], v5, s[44:47], s31 offen sc1\n{E}_npt:")
    head_scalars()
    A(f"""
s_lshr_b32 s11, s15, 1
s_add_u32 s15, s15, s29
s_mul_i32 s20, s15, {TS}
s_add_u32 s20, s20, s16
s_add_u32 s18, s20, s17
s_add_u32 s21, s16, s19
s_add_u32 s21, s21, 40960
s_mul_i32 s60, s15, 40960
s_mul_i32 s61, s14, 1280
s_add_u32 s60, s60, s61
s_add_u32 s60, s60, {OF}
s_sub_u32 s3, s60, 3072
s_lshl_b32 s61, s15, {12 - LF}
s_lshr_b32 s27, s14, {LF}
s_lshl_b32 s27, s27, 7
s_add_u32 s61, s61, s27
s_and_b32 s27, s14, {(1 << LF) - 1}
s_lshl_b32 s27, s27, 2
s_add_u32 s61, s61, s27
s_add_u32 s61, s61, {FL2}
s_lshr_b32 s50, s40, 1
s_lshl_b32 s50, s50, 3
s_and_b32 s51, s41, 7
s_add_u32 s50, s50, s51
s_lshl_b32 s50, s50, 1
s_bfe_u32 s51, s41, 0x10003
s_lshr_b32 s52, s29, 2
s_xor_b32 s53, s51, s52
s_add_u32 s50, s50, s53
s_mul_i32 s54, s52, {P['bq']}
s_xor_b32 s54, s54, s29
s_and_b32 s54, s54, 3
s_lshl_b32 s56, s53, 2
s_add_u32 s56, s56, s54
s_lshl_b32 s56, s56, 3
s_and_b32 s55, s40, 1
s_lshl_b32 s55, s55, 1
s_lshr_b32 s58, s41, 4
s_add_u32 s55, s55, s58
s_mul_i32 s55, s55, 320
s_lshl_b32 s58, s51, 8
s_add_u32 s55, s55, s58
s_lshl_b32 s58, s54, 4
s_add_u32 s55, s55, s58
s_mul_i32 s57, s50, 40960
s_add_u32 s55, s55, s57
s_mul_i32 s59, s54, 10240
s_add_u32 s57, s57, s59
s_add_u32 s57, s57, {OF}
s_mul_i32 s58, s54, 30720
s_add_u32 s58, s58, {WO}
s_mul_i32 s59, s54, 5120
s_add_u32 s59, s59, {PR}
s_lshl_b32 s53, s51, 7
s_sub_u32 s53, 64, s53
s_mov_b32 s50, 2621440
s_mov_b32 s51, 0x20000
""")
    poll_addr(50, 30, 31)
    A(f"""
v_cmp_gt_u32 s[22:23], 20, v4
v_cmp_gt_u32 s[24:25], 32, v2
s_cmp_eq_u32 s9, 1
s_cbranch_scc1 {E}_vloop
""")
    FB = [56, 72]
    def acc(ct, tt): return 96 + (ct * 2 + tt) * 16
    class Q:
        def __init__(s): s.q = []
        def op(s, tag, txt): A(txt); s.q.append(tag)
        def need(s, *tags):
            idx = max([i for i, t in enumerate(s.q) if t in tags], default=-1)
            if idx >= 0:
                A(f"s_waitcnt lgkmcnt({len(s.q) - 1 - idx})"); s.q = s.q[idx + 1:]
    def rd(L, p, i):
        s, pos = p >> 2, p & 3
        slot = s % 3; b = FB[p & 1]
        xa = (20 if slot == 2 else 16) + pos
        wa = (32 if slot == 2 else 24) + pos * 2
        off = 49152 if slot == 1 else 0
        L.op((p, i), [f"ds_read_b128 v[{b}:{b+3}], v{xa} offset:{off}",
                      f"ds_read_b64_tr_b16 v[{b+8}:{b+9}], v{wa} offset:{off}",
                      f"ds_read_b64_tr_b16 v[{b+10}:{b+11}], v{wa} offset:{off+1024}",
                      f"ds_read_b128 v[{b+4}:{b+7}], v{xa} offset:{off+4096}",
                      f"ds_read_b64_tr_b16 v[{b+12}:{b+13}], v{wa+1} offset:{off}",
                      f"ds_read_b64_tr_b16 v[{b+14}:{b+15}], v{wa+1} offset:{off+1024}"][i])
    def prep():
        o = []
        for t in range(2):
            c = 10 + t; h = 56 + 4 * t
            o += f"""v_cvt_pk_bf16_f32 v{h+2}, 0, v{c}
v_cvt_pk_bf16_f32 v{64+2*t}, -v{160+t}, -v{160+t}
v_sub_f32 v{h+2}, v{c}, v{h+2}
v_cvt_pk_bf16_f32 v{65+2*t}, -v{160+t}, 0
v_cvt_pk_bf16_f32 v{h+3}, 0, v{h+2}
v_cvt_pk_bf16_f32 v{h}, v{c}, v{h+2}
v_sub_f32 v{h+3}, v{h+2}, v{h+3}
v_cvt_pk_bf16_f32 v{h+1}, v{h+3}, 0""".split("\n")
        return o
    def loop(vmode):
        L = Q()
        A("s_barrier")
        MK("c0")
        for i in range(6): rd(L, 0, i)
        for p in range(40):
            s, pos = p >> 2, p & 3
            b = FB[p & 1]
            bar = pos == 3 and s < 9
            sched = [[], [], [], []] if p == 39 else [[0, 1], [2, 3], [4, 5], []]
            if bar:
                L.need(*[(p, i) for i in range(6)])
                A("s_barrier")
                MK(f"s{s}")
            for j, (ct, tt) in enumerate(((0, 0), (0, 1), (1, 1), (1, 0))):
                L.need(*[(p, i) for i in ([0, 1, 2], [3], [4, 5], [])[j]])
                a = acc(ct, tt)
                c = "0" if p == 0 else vr(a, 16)
                w, x = vr(b + 8 + 4 * ct, 4), vr(b + 4 * tt, 4)
                if vmode: A(f"v_mfma_f32_32x32x16_bf16 {vr(a,16)}, {x}, {w}, {c}")
                else: A(f"v_mfma_f32_32x32x16_bf16 {vr(a,16)}, {w}, {x}, {c}")
                for i in sched[j]: rd(L, p + 1, i)
                if pos < 2 and j in (1, 3):
                    ct2 = j >> 1
                    c = "0" if p == 0 else vr(40 + 4 * ct2, 4)
                    A(f"v_mfma_f32_16x16x32_bf16 {vr(40+4*ct2,4)}, {vr(b+8+4*ct2,4)}, v[88:91], {c}")
                if p == P["cntp"] and j == 0 and not vmode_has_no_w0(vmode):
                    lb = f"{E}_na{int(vmode)}"
                    A(f"s_cmp_eq_u32 s66, 0\ns_cbranch_scc1 {lb}")
                    ins = {0: f"buffer_atomic_add v49, off, s[64:67], 0 offset:{CNT}", 1: f"buffer_load_dword v165, off, s[64:67], 0 offset:{CNT} sc1",
                           2: f"buffer_store_byte v49, off, s[64:67], s2 sc1", 3: f"buffer_atomic_add v49, off, s[64:67], 0 offset:{CNT} sc1"}[P["atk"]]
                    A(f"s_waitcnt vmcnt(0)\ns_mov_b64 exec, 1\n{ins}\ns_mov_b64 exec, -1\n{lb}:")
                if p == P["ptp"] and j == 0:
                    for n, r in enumerate(P["ptr"]): A(f"buffer_load_dword v{164+n}, off, s[44:47], s{r} sc1")
                if p == 38 and j == 0:
                    L.op("csw", f"ds_write_b128 v7, v[40:43] offset:{CS}"); L.op("csw", f"ds_write_b128 v7, v[44:47] offset:{CS + 1024}")
                if p == 38 and j == 3:
                    L.need("csw"); A("s_barrier")
                    L.op("st", f"ds_read_b32 v10, v8 offset:{CS}"); L.op("st", f"ds_read_b32 v11, v8 offset:{CS + 1024}")
                    L.op("st", "ds_read2_b32 v[160:161], v9 offset0:0 offset1:32"); L.op("st", "ds_read2_b32 v[162:163], v12 offset0:0 offset1:32")
                if p == 39 and j == 1: L.need("st")
                if p == 39 and j in (1, 2):
                    for o in prep()[8 * (j - 1): 8 * j]: A(o)
        A("s_barrier")
        MK("cA")
        for (ct, tt) in ((0, 0), (0, 1), (1, 1), (1, 0)):
            a = acc(ct, tt); w, x = vr(56 + 4 * ct, 2), vr(64 + 2 * tt, 2)
            if vmode: A(f"v_mfma_f32_32x32x8_bf16 {vr(a,16)}, {x}, {w}, {vr(a,16)}")
            else: A(f"v_mfma_f32_32x32x8_bf16 {vr(a,16)}, {w}, {x}, {vr(a,16)}")
    vmode_has_no_w0 = lambda vm: False
    order = ((0, 0), (0, 1), (1, 1), (1, 0))
    if P["xq"]:
        A(f"s_cmp_lt_u32 s29, 4\ns_cbranch_scc1 {E}_xq")
        for i in range(12): A("s_barrier")
        MK("cA")
        A(f"s_branch {E}_att\n{E}_xq:")
    loop(False)
    A(f"""
s_cmp_eq_u32 s9, 0
s_cbranch_scc1 {E}_qk
s_cmp_eq_u32 s9, 3
s_cbranch_scc1 {E}_att
""")
    HP = {(0, 0): 104, (0, 1): 112, (1, 1): 144, (1, 0): 152}
    A("v_mov_b32 v164, v163")
    for (ct, tt) in order:
        a = acc(ct, tt); d = HP[(ct, tt)]
        for k in range(8): A(f"v_pk_mul_f32 {vr(a+2*k,2)}, {vr(a+2*k,2)}, {vr(162+2*tt,2)} op_sel_hi:[1,0]")
        for k in (range(7, -1, -1) if (ct, tt) == (0, 0) else range(8)): A(f"v_cvt_pk_bf16_f32 v{d+k}, v{a+2*k}, v{a+2*k+1}")
        for k in range(8): A(f"v_pk_max_i16 v{d+k}, v{d+k}, 0")
    A(f"s_branch {E}_att")
    A(f"""
{E}_qk:
s_setprio {P['eprio']}
v_mul_f32 v162, s8, v162
v_mul_f32 v164, s8, v163
""")
    for (ct, tt) in order:
        a = acc(ct, tt)
        for k in range(8): A(f"v_pk_mul_f32 {vr(a+2*k,2)}, {vr(a+2*k,2)}, {vr(162+2*tt,2)} op_sel_hi:[1,0]")
        for k in range(8): A(f"v_cvt_pk_bf16_f32 v{a+k}, v{a+2*k}, v{a+2*k+1}")
        for j in range(2): A(f"buffer_store_dwordx4 {vr(a+4*j,4)}, v5, s[44:47], s{4+tt} offen offset:{(ct*2+j)*1024}{ST}")
    A(f"s_branch {E}_pub")
    A(f"{E}_vloop:")
    A(f"""
v_and_b32 v1, 19, v2
v_bfe_u32 v6, v2, 2, 1
v_lshl_add_u32 v1, v6, 3, v1
v_bfe_u32 v6, v2, 3, 1
v_lshl_add_u32 v1, v6, 2, v1
v_mul_u32_u24 v6, {SV}, v3
v_lshl_add_u32 v51, v1, 4, v6
""")
    loop(True)
    A(f"s_setprio {P['eprio']}")
    for tt in range(2):
        for q in range(4):
            A(f"ds_read_b128 {vr(16+16*tt+4*q,4)}, v48 offset:{RB + tt*128 + q*32}")
    for n, (ct, tt) in enumerate(order):
        a = acc(ct, tt)
        if n < 2: A(f"s_waitcnt lgkmcnt({4 - 4*n})")
        for k in range(8): A(f"v_pk_mul_f32 {vr(a+2*k,2)}, {vr(a+2*k,2)}, {vr(16+16*tt+2*k,2)}")
        for k in range(8): A(f"v_cvt_pk_bf16_f32 v{a+k}, v{a+2*k}, v{a+2*k+1}")
        for j in range(2): A(f"buffer_store_dwordx4 {vr(a+4*j,4)}, v51, s[44:47], s{4+2*tt+j} offen offset:{ct*512}{ST}")
    QM, QR, KM, KR, V0, V1 = 8, 12, 16, 20, 24, 28
    S = [32, 48]; O = 64; CB = 80
    FL = 120
    KB = [(KM, KR), (124, 128)]; VB = [V0, 132]
    def vsetup():
        A(f"""
v_and_b32 v{FL+1}, 3, v2
v_lshlrev_b32 v{FL+1}, 2, v{FL+1}
s_lshl_b32 s26, s29, 2
s_add_u32 s26, s26, 64
v_mov_b32 v{FL+2}, s26
v_mul_u32_u24 v7, 320, v3
v_lshl_add_u32 v7, v4, 4, v7
v_add_u32 v7, 5120, v7
v_lshlrev_b32 v6, 4, v4
v_mov_b32 v1, 0x3f803f80
v_cmp_eq_u32 vcc, 20, v4
v_mov_b32 v14, {RLY}
""")
        for i in range(8): A(f"v_cndmask_b32 v{V0+i}, 0, v1, vcc")
    A(f"{E}_pub:")
    MK("cS")
    vsetup()
    A(f"""
s_waitcnt vmcnt(0)
s_mov_b64 exec, 1
buffer_store_dword v49, off, s[44:47], s10 sc1
s_mov_b64 exec, -1
""")
    MK("cF")
    A(f"s_branch {E}_at2\n{E}_att:")
    vsetup()
    need7 = (1 << (2 * G0)) - 1
    A(f"""
s_cmp_lg_u32 s29, 7
s_cbranch_scc1 {E}_at2
s_mov_b32 s26, {P['spin']}
{"s_sleep " + str(P['qdel']) if P['qdel'] else ""}
{E}_qp:
buffer_load_dwordx4 v[52:55], v50, s[44:47], 0 offen sc1
s_waitcnt vmcnt(0)
v_min_u32 v53, v53, v54
v_cmp_ne_u32 s[30:31], 0, v52
v_cmp_ne_u32 s[36:37], 0, v53
s_and_b32 s30, s30, s31
s_and_b32 s36, s36, s37
s_lshr_b32 s30, s30, s11
s_mov_b32 s37, s36
s_mul_i32 s31, s11, {P['rot']}
s_lshr_b64 s[36:37], s[36:37], s31
s_sub_u32 s26, s26, 1
s_cselect_b32 s30, -1, s30
s_cselect_b32 s36, -1, s36
s_cselect_b32 s26, 0, s26
v_mov_b32 v52, s30
v_mov_b32 v53, s36
ds_write_b64 v14, v[52:53]
s_and_b32 s30, s30, 15
s_and_b32 s36, s36, {need7}
s_lshl_b32 s36, s36, 4
s_or_b32 s30, s30, s36
s_cmp_eq_u32 s30, {(need7 << 4) | 15}
s_cbranch_scc1 {E}_at2
s_sleep {P['qsl']}
s_branch {E}_qp
{E}_at2:
s_lshr_b32 s26, s29, 1
{E}_qw:
ds_read_b64 v[52:53], v14
s_waitcnt lgkmcnt(0)
v_readfirstlane_b32 s30, v52
v_readfirstlane_b32 s31, v53
s_lshr_b32 s30, s30, s26
s_and_b32 s30, s30, s31
s_bitcmp1_b32 s30, 0
s_cbranch_scc1 {E}_qg
s_sleep 1
s_branch {E}_qw
{E}_qg:
""")
    MK("cQ")
    A(f"buffer_load_dwordx4 {vr(QM,4)}, v5, s[44:47], s20 offen{SC}")
    A(f"buffer_load_dwordx2 {vr(QR,2)}, v6, s[44:47], s18 offen{SC}")
    A(f"buffer_load_dwordx4 {vr(KM,4)}, v5, s[44:47], s21 offen{SC}")
    A("v_lshlrev_b32 v15, 3, v4")
    for i in range(8): A(f"v_cndmask_b32 v{VB[1]+i}, 0, v1, vcc")
    for i in range(4): A(f"v_mov_b32 v{164+i}, -1")
    A("v_add_u32 v6, 4096, v15")
    A("s_waitcnt vmcnt(0)\ns_barrier")
    MK("cB")
    def kread(o, km=None, kr=None):
        if km is None: km, kr = KB[o & 1]
        g, i = o >> 2, o & 3
        A(f"ds_read_b128 {vr(km,4)}, v5 offset:{g*10240+i*1024}\nds_read_b64 {vr(kr,2)}, v6 offset:{g*10240+i*256}")
    def vread(o):
        g, i = o >> 2, o & 3; b = g * 10240 + i * 1280
        A(f"s_mov_b64 exec, s[22:23]\nds_read_b128 {vr(VB[o&1],4)}, v7 offset:{b}\nds_read_b128 {vr(VB[o&1]+4,4)}, v7 offset:{b+640}\ns_mov_b64 exec, -1")
    A(f"ds_read_b64 {vr(KR,2)}, v6")
    for t in range(1, NP): kread(t, CB + 4 * t, 96 + 2 * t)
    A(f"v_cndmask_b32 v{QR}, 0, v{QR}, s[24:25]\nv_cndmask_b32 v{QR+1}, 0, v{QR+1}, s[24:25]")
    PD = [S[0], S[1], O, S[0]]
    def pmax(t):
        for k in range(8):
            if t == 0 and k == 0: A(f"v_max_f32 v1, v{PD[t]}, v{PD[t]+1}")
            else: A(f"v_max3_f32 v1, v1, v{PD[t]+2*k}, v{PD[t]+2*k+1}")
    for t in range(NP):
        if t == 3: pmax(0)
        A(f"s_waitcnt lgkmcnt({2*(NP-1-t)})")
        km, kr = (KM, KR) if t == 0 else (CB + 4 * t, 96 + 2 * t)
        A(f"v_mfma_f32_32x32x16_bf16 {vr(PD[t],16)}, {vr(km,4)}, {vr(QM,4)}, 0")
        A(f"v_mfma_f32_32x32x8_bf16 {vr(PD[t],16)}, {vr(kr,2)}, {vr(QR,2)}, {vr(PD[t],16)}")
    for t in range(1, NP): pmax(t)
    A(f"""
v_mov_b32 v14, v1
s_mov_b32 s26, {f32bits(P['offs'])}
v_permlane32_swap_b32 v1, v14
v_max_f32 v1, v1, v14
v_add_f32 v1, s26, v1
""")
    for i in range(16): A(f"v_sub_f32 v{CB+i}, 0, v1")
    for i in range(16): A(f"v_mov_b32 v{O+i}, 0")
    def M1(t): A(f"v_mfma_f32_32x32x16_bf16 {vr(S[t&1],16)}, {vr(KB[t&1][0],4)}, {vr(QM,4)}, {vr(CB,16)}")
    def M2(t): A(f"v_mfma_f32_32x32x8_bf16 {vr(S[t&1],16)}, {vr(KB[t&1][1],2)}, {vr(QR,2)}, {vr(S[t&1],16)}")
    def Ex(t, *idx):
        for i in idx: A(f"v_exp_f32 v{S[t&1]+i}, v{S[t&1]+i}")
    def Cv(t, *idx):
        for k in idx:
            d = S[t & 1] + (k & 3) + 8 * (k >> 2)
            A(f"v_cvt_pk_bf16_f32 v{d}, v{S[t&1]+2*k}, v{S[t&1]+2*k+1}")
    MK("c1")
    A("s_waitcnt lgkmcnt(0)")
    kread(1); vread(0); M1(0); M2(0); kread(2); vread(1)
    W = 6
    Ex(0, *range(P["npre"]))
    def tile(t, hook=None):
        pr = P["prios"]
        if pr and (t == 0 or pr[t % len(pr)] != pr[(t - 1) % len(pr)]): A(f"s_setprio {pr[t % len(pr)]}")
        for tok in P["order"].split():
            if tok == "M1": A(f"s_waitcnt lgkmcnt({W})"); M1(t + 1)
            elif tok == "M2": M2(t + 1)
            elif tok == "M3": A(f"s_waitcnt lgkmcnt({W})\nv_mfma_f32_32x32x16_bf16 {vr(O,16)}, {vr(VB[t&1],4)}, {vr(S[t&1],4)}, {vr(O,16)}")
            elif tok == "M4": A(f"v_mfma_f32_32x32x16_bf16 {vr(O,16)}, {vr(VB[t&1]+4,4)}, {vr(S[t&1]+8,4)}, {vr(O,16)}")
            elif tok == "K":
                if hook: hook(t, 0)
                kread(t + 3)
                if hook: hook(t, 1)
            elif tok == "V":
                vread(t + 2)
                if hook: hook(t, 2)
            elif tok[0] == "E": Ex(t, int(tok[1:]))
            elif tok[0] == "N": Ex(t + 1, int(tok[1:]))
            elif tok[0] == "C": Cv(t, int(tok[1:]))
            else: raise ValueError(tok)
    adv = "v_add_u32 v5, 20480, v5\nv_add_u32 v6, 20480, v6\nv_add_u32 v7, 20480, v7"
    npoll = [0]
    def check(thr):
        k = npoll[0]; npoll[0] += 1
        A(f"""
s_waitcnt lgkmcnt(2)
v_cmp_gt_u32 vcc, {thr}, v{FL}
s_cbranch_vccz {E}_ok{k}
{E}_poll{k}:
s_sleep 1
ds_read_b32 v{FL}, v{FL+1}
s_waitcnt lgkmcnt(0)
v_cmp_gt_u32 vcc, {thr}, v{FL}
s_cbranch_vccnz {E}_poll{k}
{E}_ok{k}:
""")
    rdflag = f"ds_read_b32 v{FL}, v{FL+1}"
    hstores = [(ct, tt, j) for (ct, tt) in order for j in range(2)]
    hflag = f"s_waitcnt vmcnt(0)\ns_mov_b64 exec, 1\nbuffer_store_dword v{FL+2}, off, s[32:35], s10 sc1\ns_mov_b64 exec, -1"
    def hook0(t, ph):
        if ph == 1 and (t in (4, 7) or t == 0): A(rdflag)
        if ph == 0 and t == 1: check(F_G1)
        if ph == 0 and t == 5: check(F_G5)
        if ph in (1, 2):
            mine = [n for n in range(8) if P["hst"][n] == t]
            for n in mine[ph - 1::2] if not P["noh"] else []:
                ct, tt, j = hstores[n]
                A(f"buffer_store_dwordx4 {vr(HP[(ct,tt)]+4*j,4)}, v5, s[32:35], s{4+tt} offen offset:{(ct*2+j)*1024}{ST}")
        if ph == 1 and t == P["ofp"] and not P["noof"]:
            A(f"buffer_store_dwordx4 v[164:167], v5, s[44:47], s60 offen sc1\nbuffer_store_dwordx2 v[164:165], v6, s[44:47], s3 offen sc1")
        if ph == 2 and t == 3: MK("t3")
        if ph == 2 and P["hfl"] == (0, t): MK("t7"); A(hflag); MK("cH")
    for t in range(8): tile(t, hook0)
    A(adv)
    A(f"s_mov_b32 s27, 1\ns_mov_b32 s28, 0\nv_mov_b32 v{FL+3}, 1\n{E}_loop:")
    def hook1(t, ph):
        if ph == 0 and t == 0: check("s28")
        if ph == 1 and t == 0: A(f"s_mov_b32 s28, {F_ALL}")
        if ph == 1 and t in (0, 4): A(f"v_add_u32 v{FL+3}, 1, v{FL+3}\nds_write_b32 v{FL+2}, v{FL+3}")
        if ph == 1 and t == 7: A(rdflag)
        if ph == 2 and P["hfl"][0] > 0 and P["hfl"][1] == t:
            A(f"s_cmp_lg_u32 s27, {P['hfl'][0]}\ns_cbranch_scc1 {E}_nf\n{hflag}\n{E}_nf:")
        if ph == 1 and t == P["hint"][1]:
            A(f"""
s_cmp_lg_u32 s27, {P["hint"][0]}
s_cbranch_scc1 {E}_nh
s_waitcnt vmcnt(0)
s_mov_b64 exec, 1
buffer_store_dword v{FL+2}, off, s[44:47], s61{P['hsc']}
s_mov_b64 exec, -1
{E}_nh:
""")
    for t in range(8): tile(t, hook1)
    A(adv)
    A(f"s_add_u32 s27, s27, 1\ns_cmp_lt_u32 s27, 8\ns_cbranch_scc1 {E}_loop")
    MK("c3")
    A(f"v_mov_b32 v{FL+3}, 16\nds_write_b32 v{FL+2}, v{FL+3}\nv_mov_b32 v1, 0\ns_movk_i32 s26, 0x207")
    for i in range(12): A(f"v_fma_f32 v1, v{O+i}, 0, v1")
    A(f"""
v_cmp_class_f32 vcc, v1, s26
s_cbranch_vccnz {E}_fb
{E}_epi:
v_mov_b32 v10, 0
ds_read_b64 v[12:13], v10 offset:{MSK}
v_mov_b32 v14, v{O+8}
v_mov_b32 v15, v{O+8}
v_lshlrev_b32 v5, 4, v2
v_permlane32_swap_b32 v14, v15
v_rcp_f32 v14, v15
v_lshlrev_b32 v6, 3, v4
v_mov_b32 v11, v{FL+1}
""")
    for k in range(6): A(f"v_pk_mul_f32 {vr(O+2*k,2)}, {vr(O+2*k,2)}, v[14:15] op_sel_hi:[1,0]")
    for k in range(6): A(f"v_cvt_pk_bf16_f32 v{O+k}, v{O+2*k}, v{O+2*k+1}")
    OSC = P["osc"]; LSC = P["lsc"]
    VW, VR, OR_, OA, SP = 6, 7, 8, 9, 15
    A(f"""
buffer_store_dwordx4 {vr(O,4)}, v5, s[44:47], s60 offen{OSC}
s_mov_b64 exec, s[24:25]
buffer_store_dwordx2 {vr(O+4,2)}, v6, s[44:47], s60 offen offset:1024{OSC}
s_mov_b64 exec, -1
s_setprio 0
""")
    MK("c4")
    A(f"""
v_mul_u32_u24 v14, 2560, v3
s_add_u32 s28, s57, 5120
s_waitcnt lgkmcnt(0)
v_readfirstlane_b32 s30, v12
v_readfirstlane_b32 s31, v13
v_lshl_add_u32 v{OR_}, v4, 3, v14
s_lshr_b64 s[30:31], s[30:31], s56
s_mov_b32 s63, s30
""")
    OB = 16; AC = 56
    def load(k):
        if k < 8: A(f"buffer_load_dwordx4 {vr(OB+4*k,4)}, v5, s[44:47], s{57 if k < 4 else 28} offen offset:{1280*(k&3)}{LSC}")
        else:
            for e in range(2): A(f"buffer_load_dwordx2 {vr(OB+4*k+2*e,2)}, v{OR_}, s[44:47], s{57 if k == 8 else 28} offen offset:{1024+1280*e}{LSC}")
    for k in range(8):
        A(f"s_mov_b32 s64, {k}\ns_bitcmp1_b32 s63, {k}\ns_cbranch_scc0 {E}_su")
        load(k)
    load(8); load(9)
    A(f"s_mov_b32 s64, 9\n{E}_su:")
    def issue_rest(T):
        A(f"s_cmp_eq_u32 s64, 9\ns_cbranch_scc1 {E}_id{T}")
        for k in range(8):
            L = f"{E}_is{T}{k}"
            A(f"""
s_cmp_gt_u32 s64, {k}
s_cbranch_scc1 {L}n
s_bitcmp1_b32 s63, {k}
s_cbranch_scc1 {L}g
{L}p:
ds_read_b64 v[0:1], v10 offset:{MSK}
s_waitcnt lgkmcnt(0)
v_readfirstlane_b32 s30, v0
v_readfirstlane_b32 s31, v1
s_lshr_b64 s[30:31], s[30:31], s56
s_mov_b32 s63, s30
s_bitcmp1_b32 s30, {k}
s_cbranch_scc1 {L}g
s_sleep 1
s_branch {L}p
{L}g:
""")
            load(k)
            A(f"{L}n:")
        load(8); load(9)
        A(f"{E}_id{T}:"); MK("c6")
    A(f"""
ds_read_b32 v1, v11
v_mul_u32_u24 v12, 1280, v4
v_bfe_u32 v13, v2, 2, 2
v_and_b32 v7, 3, v2
v_lshl_add_u32 v{OA}, v3, 3, v12
v_lshlrev_b32 v13, 6, v13
v_lshl_add_u32 v13, v7, 3, v13
v_bfe_u32 v12, v2, 4, 1
v_lshl_add_u32 v13, v12, 5, v13
v_add_u32 v13, s58, v13
v_lshl_add_u32 v{VW}, v3, 8, v13
v_add_u32 v{VR}, v14, v13
s_sub_u32 s26, s54, 1
v_sub_u32 v14, s26, v2
v_and_b32 v14, 3, v14
s_lshl_b32 s26, s52, 4
s_add_u32 s26, s26, {SENT}
v_lshl_add_u32 v{SP}, v14, 2, s26
s_lshl_b32 s27, s54, 2
s_add_u32 s27, s27, s26
s_mov_b32 s62, {P['spin']}
v_add_u32 v12, s59, v5
s_lshl_b32 s30, s54, 2
v_mov_b32 v13, s30
""")
    nw_ = [0]
    def lwait(thr, ar=11):
        k = nw_[0]; nw_[0] += 1
        A(f"""
{E}_lw{k}:
s_waitcnt lgkmcnt(0)
v_cmp_gt_u32 vcc, {thr}, v1
s_cbranch_vccz {E}_lwd{k}
s_sleep {P['psl']}
ds_read_b32 v1, v{ar}
s_branch {E}_lw{k}
{E}_lwd{k}:
""")
    def perq4(tag, body):
        for q in range(4):
            if q < 3: A(f"s_cmp_lg_u32 s54, {q}\ns_cbranch_scc1 {E}_{tag}{q+1}")
            body(q)
            if q < 3: A(f"s_branch {E}_{tag}d\n{E}_{tag}{q+1}:")
        A(f"{E}_{tag}d:")
    lwait(F_WO)
    A(f"s_cmp_lg_u32 s52, 0\ns_cbranch_scc1 {E}_tB")
    for ty, nb in ((0, 3), (1, 2)):
        T = "AB"[ty]
        if ty: A(f"{E}_tB:")
        WB = AC + 16 * nb
        nbuf = min(10, (168 - WB) // (4 * nb))
        q = []
        def need(tag):
            idx = max([i for i, t in enumerate(q) if t == tag], default=-1)
            if idx >= 0:
                A(f"s_waitcnt lgkmcnt({min(len(q) - 1 - idx, 15)})"); del q[:idx + 1]
        later = lambda k: (7 - k + 4) if k < 8 else (2 if k == 8 else 0)
        def wr(k, lo=0, hi=99):
            b = WB + (k % nbuf) * 4 * nb
            for u in range(max(lo, 0), min(hi, nb)):
                if k < 8: a = VW; o1 = u * 10240 + k * 1280; o2 = o1 + 512
                else: a = VR; o1 = u * 10240 + (k - 8) * 5120 + 1024; o2 = o1 + 1280
                A(f"ds_read_b64_tr_b16 {vr(b+4*u,2)}, v{a} offset:{o1}"); q.append((k, u))
                A(f"ds_read_b64_tr_b16 {vr(b+4*u+2,2)}, v{a} offset:{o2}"); q.append((k, u))
        for k in range(nbuf): wr(k)
        if ty == 0:
            for j in range(4): A(f"s_sub_u32 s30, {j+3}, s54\ns_and_b32 s30, s30, 3\ns_mul_i32 s30, s30, 3072\ns_add_u32 s{32+j}, s30, s58\ns_add_u32 s{32+j}, s{32+j}, 20480")
            for r in range(3): A(f"s_sub_u32 s30, s54, {r+1}\ns_and_b32 s30, s30, 3\ns_mul_i32 s30, s30, 30720\ns_add_u32 s{36+r}, s30, {WO + 20480 + r*3072}")
        else:
            A(f"s_lshl_b32 s31, s54, 12\ns_add_u32 s31, s31, {FREE - 2048}")
            for j in range(4): A(f"s_sub_u32 s30, {j+3}, s54\ns_and_b32 s30, s30, 3\ns_lshl_b32 s{32+j}, s30, 11\ns_add_u32 s{32+j}, s{32+j}, s31\ns_cmp_eq_u32 s30, 0\ns_cselect_b32 s{32+j}, s59, s{32+j}")
            for r in range(3):
                A(f"s_sub_u32 s30, s54, {r+1}\ns_and_b32 s30, s30, 3\ns_mul_i32 s30, s30, {5120 if r == 0 else 4096}\ns_add_u32 s{36+r}, s30, {PR if r == 0 else FREE + (r-1)*2048}")
        for k in range(16 * nb): A(f"v_mov_b32 v{AC+k}, 0")
        issue_rest(T)
        A("ds_read_b32 v1, v13")
        lwait(F_FX, 13)
        q.clear()
        perq4(f"fx{T}", lambda qq: [A(f"ds_read_b128 {vr(AC+16*t+4*qq,4)}, v12 offset:{(2048 if ty == 0 else 0) + t*1024}") for t in range(nb)])
        A("s_waitcnt lgkmcnt(0)")
        for k in range(10):
            A(f"s_waitcnt vmcnt({later(k)})")
            o = OB + 4 * k
            A(f"""
{E}_ck{T}{k}:
v_max3_u32 v1, v{o}, v{o+1}, v{o+2}
v_max_u32 v1, v1, v{o+3}
v_cmp_eq_u32 vcc, -1, v1
s_cbranch_vccnz {E}_rt{T}{k}
{E}_bk{T}{k}:
""")
            b = WB + (k % nbuf) * 4 * nb
            nx = k + nbuf
            for u in range(nb):
                need((k, u))
                A(f"v_mfma_f32_32x32x16_bf16 {vr(AC+16*u,16)}, {vr(b+4*u,4)}, {vr(o,4)}, {vr(AC+16*u,16)}")
                if nx < 10 and u >= 1: wr(nx, u - 1, u)
            if nx < 10: wr(nx, nb - 1, nb)
        MK("c8")
        for j in range(4): A(f"v_add_u32 v{16+j}, s{32+j}, v5")
        for r in range(3): A(f"v_add_u32 v{20+r}, s{36+r}, v5")
        A("v_mov_b32 v13, s27\ns_mov_b32 s63, 7")
        for j in range(4):
            A(f"s_cmp_eq_u32 s54, {j}\ns_cbranch_scc1 {E}_ns{T}{j}")
            for t in range(nb): A(f"ds_write_b128 v{16+j}, {vr(AC+16*t+4*j,4)} offset:{t*1024}")
            A(f"{E}_ns{T}{j}:")
        A(f"""
s_waitcnt lgkmcnt(0)
ds_write_b32 v13, v13
{E}_sp{T}:
ds_read_b32 v1, v{SP}
s_waitcnt lgkmcnt(0)
v_cmp_ne_u32 vcc, 0, v1
s_and_b32 s30, vcc_lo, s63
""")
        for r in range(3):
            A(f"s_bitcmp1_b32 s30, {r}\ns_cbranch_scc0 {E}_nr{T}{r}")
            for t in range(nb): A(f"ds_read_b128 {vr(WB+4*(3*t+r),4)}, v{20+r} offset:{t*1024}")
            A(f"{E}_nr{T}{r}:")
        A(f"""
s_andn2_b32 s63, s63, s30
s_cbranch_scc1 {E}_sp{T}
s_waitcnt lgkmcnt(0)
""")
        MK("c9")
        def fin(qq):
            for t in range(nb):
                a = AC + 16 * t + 4 * qq; r = WB + 12 * t
                for k in range(4): A(f"v_add_f32 v{a+k}, v{a+k}, v{r+k}\nv_add_f32 v{r+4+k}, v{r+4+k}, v{r+8+k}")
                for k in range(4): A(f"v_add_f32 v{a+k}, v{a+k}, v{r+4+k}")
                A(f"v_cvt_pk_bf16_f32 v{a}, v{a}, v{a+1}\nv_cvt_pk_bf16_f32 v{a+1}, v{a+2}, v{a+3}")
                A(f"buffer_store_dwordx2 {vr(a,2)}, v{OA}, s[48:51], s55 offen")
                if t < nb - 1: A("s_add_u32 s55, s55, s53")
            A("s_endpgm")
        for qq in range(4):
            if qq < 3: A(f"s_cmp_lg_u32 s54, {qq}\ns_cbranch_scc1 {E}_fn{T}{qq+1}")
            fin(qq)
            if qq < 3: A(f"{E}_fn{T}{qq+1}:")
        for k in range(10):
            A(f"""
{E}_rt{T}{k}:
s_sub_u32 s62, s62, 1
s_cbranch_scc1 {E}_bk{T}{k}
""")
            if P["rtsl"]: A(f"s_sleep {P['rtsl']}")
            for kk in range(k, 10): load(kk)
            A(f"s_waitcnt vmcnt({later(k)})\ns_branch {E}_ck{T}{k}")
    A(f"""
{E}_fb:
s_waitcnt lgkmcnt(0)
v_lshlrev_b32 v5, 4, v2
v_lshlrev_b32 v6, 4, v4
v_mul_u32_u24 v7, {SV}, v3
v_lshl_add_u32 v7, v4, 4, v7
v_add_u32 v15, {2*SV}, v7
v_mov_b32 v1, 0xff800000
s_add_u32 s18, s16, 40960
s_mov_b32 s26, s18
s_mov_b32 s27, 64
{E}_fb1:
s_add_u32 s30, s26, s17
buffer_load_dwordx4 {vr(KM,4)}, v5, s[44:47], s26 offen{SC}
buffer_load_dwordx2 {vr(KR,2)}, v6, s[44:47], s30 offen{SC}
s_waitcnt vmcnt(0)
v_mfma_f32_32x32x16_bf16 {vr(S[0],16)}, {vr(KM,4)}, {vr(QM,4)}, 0
v_mfma_f32_32x32x8_bf16 {vr(S[0],16)}, {vr(KR,2)}, {vr(QR,2)}, {vr(S[0],16)}
""")
    for k in range(8): A(f"v_max3_f32 v1, v1, v{S[0]+2*k}, v{S[0]+2*k+1}")
    A(f"""
s_add_u32 s26, s26, {TS}
s_sub_u32 s27, s27, 1
s_cmp_lg_u32 s27, 0
s_cbranch_scc1 {E}_fb1
v_mov_b32 v14, v1
v_permlane32_swap_b32 v1, v14
v_max_f32 v1, v1, v14
""")
    for i in range(16): A(f"v_sub_f32 v{CB+i}, 0, v1\nv_mov_b32 v{O+i}, 0")
    A(f"""
s_mov_b32 s26, s18
s_mul_i32 s28, s14, 320
s_add_u32 s28, s28, {QF + VOFF}
s_mov_b32 s27, 64
{E}_fb2:
s_add_u32 s30, s26, s17
buffer_load_dwordx4 {vr(KM,4)}, v5, s[44:47], s26 offen{SC}
buffer_load_dwordx2 {vr(KR,2)}, v6, s[44:47], s30 offen{SC}
s_mov_b64 exec, s[22:23]
buffer_load_dwordx4 {vr(V0,4)}, v7, s[44:47], s28 offen{SC}
buffer_load_dwordx4 {vr(V1,4)}, v15, s[44:47], s28 offen{SC}
s_mov_b64 exec, -1
s_waitcnt vmcnt(0)
""")
    M1(0); M2(0)
    Ex(0, *range(16)); Cv(0, *range(8))
    A(f"""
v_mfma_f32_32x32x16_bf16 {vr(O,16)}, {vr(V0,4)}, {vr(S[0],4)}, {vr(O,16)}
v_mfma_f32_32x32x16_bf16 {vr(O,16)}, {vr(V1,4)}, {vr(S[0]+8,4)}, {vr(O,16)}
s_add_u32 s26, s26, {TS}
s_add_u32 s28, s28, {TS}
s_sub_u32 s27, s27, 1
s_cmp_lg_u32 s27, 0
s_cbranch_scc1 {E}_fb2
s_nop 15
s_branch {E}_epi
""")
    DK, DR, DV, DW = 60, 61, 62, 63
    A(f"{E}_ffn:")
    head_scalars()
    A(f"""
v_lshlrev_b32 v5, 4, v2
s_mul_i32 s20, s29, {TS}
s_add_u32 s20, s20, s16
s_add_u32 s20, s20, 40960
v_add_u32 v{DK}, s20, v5
s_add_u32 s20, s20, s17
v_lshrrev_b32 v6, 1, v2
v_and_b32 v7, 1, v2
v_lshlrev_b32 v7, 2, v7
v_lshl_add_u32 v6, v6, 4, v7
v_add_u32 v{DR}, s20, v6
s_lshl_b32 s17, s29, 10
s_lshl_b32 s18, s29, 8
s_mul_i32 s20, s14, 320
s_add_u32 s20, s20, {QF + VOFF}
s_lshl_b32 s21, s29, 6
s_lshl_b32 s22, s29, 4
s_add_u32 s22, s22, 256
s_lshr_b32 s11, s15, 1
s_mul_i32 s11, s11, {P['rot']}
""")
    PA = 64
    poll_addr(PA, 30, 31)
    def vaddr(dst, ci):
        A(f"""
v_mul_u32_u24 v8, 3277, v{ci}
v_lshrrev_b32 v8, 16, v8
v_mul_u32_u24 v9, 20, v8
v_sub_u32 v9, v{ci}, v9
v_lshrrev_b32 v10, 2, v8
v_and_b32 v8, 3, v8
v_mul_u32_u24 v10, {TS}, v10
v_mul_u32_u24 v8, {SV}, v8
v_lshl_add_u32 v9, v9, 4, s20
v_add3_u32 v{dst}, v8, v9, v10
""")
    A("v_add_u32 v6, s21, v2"); vaddr(DV, 6)
    A("v_lshrrev_b32 v6, 2, v2\nv_add_u32 v6, s22, v6"); vaddr(DW, 6)
    A(f"v_and_b32 v6, 3, v2\nv_lshl_add_u32 v{DW}, v6, 2, v{DW}")
    def dma(G):
        b = G * 10240
        if G == 0: A(f"s_cmp_eq_u32 s29, 0\ns_cbranch_scc1 {E}_d0")
        A(f"s_add_u32 m0, s17, {b}\nbuffer_load_dwordx4 v{DK}, s[44:47], s19 offen{P['dsc']} lds")
        if G == 0: A(f"{E}_d0:")
        A(f"s_add_u32 m0, s18, {b+4096}\nbuffer_load_dword v{DR}, s[44:47], s19 offen{P['dsc']} lds")
        A(f"s_add_u32 m0, s17, {b+5120}\nbuffer_load_dwordx4 v{DV}, s[44:47], s19 offen{P['dsc']} lds")
        A(f"s_add_u32 m0, s18, {b+9216}\nbuffer_load_dword v{DW}, s[44:47], s19 offen{P['dsc']} lds")
        if G < 15: A(f"s_add_u32 s19, s19, {4*TS}\ns_cmp_ge_u32 s19, {64*TS}\ns_cselect_b32 s21, {64*TS}, 0\ns_sub_u32 s19, s19, s21")
    WA, FX, FP, XA = 76, 79, 84, 85
    HA, WFA = 65, 66
    A(f"""
v_lshrrev_b32 v{FP}, {LF}, v2
v_and_b32 v16, {(1 << LF) - 1}, v2
v_lshlrev_b32 v{FP}, 7, v{FP}
v_lshl_add_u32 v{FP}, v16, 2, v{FP}
v_mov_b32 v16, {108*128}
s_lshr_b32 s14, s40, 1
s_lshl_b32 s14, s14, 3
s_and_b32 s24, s41, 7
s_add_u32 s14, s14, s24
s_lshl_b32 s56, s14, {13 - LF}
s_add_u32 s56, s56, {FL2}
s_mul_i32 s30, s14, {27*128}
s_add_u32 s30, s30, {FH}
v_min_u32 v{HA}, 26, v4
v_lshl_add_u32 v{HA}, v{HA}, 7, s30
s_lshl_b32 s14, s14, 1
s_bfe_u32 s25, s41, 0x10003
s_xor_b32 s15, s25, 1
s_add_u32 s15, s15, s14
s_add_u32 s14, s14, s25
s_and_b32 s27, s40, 1
s_lshl_b32 s27, s27, 1
s_lshr_b32 s16, s41, 4
s_add_u32 s27, s27, s16
s_mul_i32 s30, s27, 108
s_add_u32 s30, s30, s29
s_lshl_b32 s30, s30, 7
s_add_u32 s30, s30, {FW}
v_min_u32 v{WFA}, 26, v4
v_lshl_add_u32 v{WFA}, v{WFA}, 9, s30
v_mad_u32_u24 v{WFA}, v3, v16, v{WFA}
s_and_b32 s24, s41, 15
s_mul_i32 s24, s24, 27
s_lshr_b32 s24, s24, 4
s_mul_i32 s24, s24, {P['frot']}
s_add_u32 s20, s17, {HF}
s_mul_i32 s23, s29, 20480
s_mul_i32 s28, s27, 5120
s_add_u32 s23, s23, s28
s_add_u32 s23, s23, {W2F}
s_add_u32 s22, s20, {27*4096}
s_lshl_b32 s16, s24, 12
s_add_u32 s16, s16, s20
s_mul_i32 s26, s24, 81920
s_add_u32 s26, s26, s23
s_mul_i32 s30, s14, {108*1024}
s_mul_i32 s31, s15, {108*1024}
v_add_u32 v8, s30, v5
v_add_u32 v9, s31, v5
s_lshl_b32 s30, s25, 12
s_lshl_b32 s31, s25, 11
s_add_u32 s31, s31, 1024
v_add_u32 v10, s30, v5
v_add_u32 v11, s31, v5
v_add_u32 v12, 2048, v5
v_mov_b32 v7, s29
v_lshlrev_b32 v7, 2, v7
v_and_b32 v1, 7, v2
v_lshlrev_b32 v1, 2, v1
v_and_b32 v15, 12, v1
v_mul_u32_u24 v{XA}, 1280, v4
v_lshl_add_u32 v{XA}, v3, 3, v{XA}
s_mul_i32 s52, s27, 320
s_lshl_b32 s53, s29, 4
s_add_u32 s53, s53, s52
s_mul_i32 s54, s14, 40960
s_mul_i32 s55, s15, 40960
s_add_u32 s54, s54, s53
s_add_u32 s55, s55, s53
s_lshl_b32 s57, s25, 8
s_lshl_b32 s58, s25, 7
s_add_u32 s52, s52, s57
s_sub_u32 s59, 64, s58
s_add_u32 s58, s58, 64
s_add_u32 s30, s55, s57
s_add_u32 s31, s55, s58
s_add_u32 s32, s54, s57
s_add_u32 s33, s54, s58
s_add_u32 s34, s54, 128
s_sub_u32 s54, s29, 1
s_add_u32 s53, s59, 204800
s_mul_i32 s53, s53, s54
s_add_u32 s52, s52, s53
s_mul_i32 s53, s54, 40960
s_add_u32 s53, s53, {WO}
v_lshrrev_b32 v16, 2, v2
v_and_b32 v17, 3, v2
v_mul_u32_u24 v16, 1280, v16
v_lshl_add_u32 v{WA}, v17, 4, v16
s_mul_i32 s54, s29, 5120
s_add_u32 s54, s54, {PR}
v_add_u32 v{FX}, s54, v5
s_sub_u32 s60, s59, 184320
s_lshl_b32 s61, s59, 1
s_sub_u32 s61, 20480, s61
s_cmp_eq_u32 s29, 3
s_cselect_b32 s54, 9, 0
s_cselect_b32 s55, 10, 0
s_cselect_b32 s63, 11, 0
s_cselect_b32 s3, 12, 0
s_cselect_b32 s62, 13, 0
s_cselect_b32 s57, s61, s60
s_cmp_eq_u32 s29, 2
s_cselect_b32 s62, 9, s62
s_cselect_b32 s58, s61, s60
s_cmp_eq_u32 s29, 1
s_cselect_b32 s59, s61, s60
v_mov_b32 v6, {RLY}
s_mov_b32 s10, {P['spin']}
s_mov_b32 s8, 0
""")
    MK("lS")
    for G in range(G0):
        m = 3 << (2 * G)
        A(f"""
{E}_rw{G}:
s_and_b32 s9, s8, {m}
s_cmp_eq_u32 s9, {m}
s_cbranch_scc1 {E}_rg{G}
ds_read_b32 v0, v6 offset:4
s_waitcnt lgkmcnt(0)
v_readfirstlane_b32 s8, v0
s_branch {E}_rw{G}
{E}_rg{G}:
""")
        if G == 0: MK("lG")
        dma(G)
    A(f"s_waitcnt vmcnt({4*(G0-1)}) lgkmcnt(0)\ns_barrier")
    MK("lB")
    C1 = P["c1"]
    def flag(v): A(f"v_mov_b32 v0, {v}\nds_write_b32 v7, v0")
    if G0 >= 2: A(f"s_waitcnt vmcnt({4*(G0-2)})"); flag(F_G1)
    def gwait(G):
        m = (3 << (2 * G)) & 0xffffffff
        A(f"""
{E}_gw{G}:
s_and_b32 s9, s8, {hex(m)}
s_cmp_eq_u32 s9, {hex(m)}
s_cbranch_scc1 {E}_gg{G}
buffer_load_dwordx4 v[68:71], v{PA}, s[44:47], 0 offen sc1
s_waitcnt vmcnt(0)
v_min_u32 v69, v69, v70
v_cmp_ne_u32 s[8:9], 0, v69
s_and_b32 s8, s8, s9
s_mov_b32 s9, s8
s_lshr_b64 s[8:9], s[8:9], s11
s_sub_u32 s10, s10, 1
s_cselect_b32 s8, -1, s8
s_cselect_b32 s10, 0, s10
s_branch {E}_gw{G}
{E}_gg{G}:
""")
    nst = 0
    for G in range(G0, 16):
        gwait(G); dma(G)
        if G == P["w2g"]:
            if P["now2"]: A("s_mov_b32 s9, s66\ns_mov_b32 s66, 0")
            for c in range(4): A(f"buffer_store_dwordx4 {vr(88+4*c,4)}, v5, s[64:67], s69 offen offset:{1024*c}{ST}")
            if P["now2"]: A("s_mov_b32 s66, s9")
        if G0 == 1 and G == 2:
            n = 4 * (G - 1) + (4 if 1 <= P["w2g"] <= G else 0)
            A(f"s_waitcnt vmcnt({n})"); flag(F_G1)
        if G == 5 + C1:
            n = 4 * C1 + (4 if 5 <= P["w2g"] <= G else 0)
            A(f"s_waitcnt vmcnt({n})"); flag(F_G5); MK("l4")
    A(f"""
s_waitcnt vmcnt({4 * (15 - P["w2g"])})
v_mov_b32 v0, 1
s_mov_b64 exec, 1
buffer_store_dword v0, off, s[64:67], s68 sc1
s_mov_b64 exec, -1
""")
    if P["hgate"]:
        A("s_waitcnt vmcnt(1)"); flag(F_ALL)
        A(f"""
{E}_hq:
ds_read_b32 v0, v1 offset:64
s_waitcnt lgkmcnt(0)
v_cmp_gt_u32 vcc, {P['hgate']}, v0
s_cbranch_vccz {E}_hw
s_sleep 4
s_branch {E}_hq
""")
    A(f"""
{E}_hw:
buffer_load_dword v68, v{HA}, s[44:47], 0 offen sc1
buffer_load_dword v69, v{WFA}, s[44:47], 0 offen sc1
s_waitcnt vmcnt(2)
""")
    flag(F_ALL)
    A(f"""
s_waitcnt vmcnt(0)
v_min_u32 v68, v68, v69
v_cmp_eq_u32 s[8:9], 0, v68
s_or_b32 s8, s8, s9
s_and_b32 s8, s8, 0x7ffffff
s_cbranch_scc0 {E}_hg
s_sub_u32 s10, s10, 1
s_cselect_b32 s10, 0, s10
s_cbranch_scc1 {E}_hg
s_sleep {P['hsl']}
s_branch {E}_hw
{E}_hg:
""")
    MK("lH")
    ACC = 88
    class VQ_:
        def __init__(s): s.q = []
        def op(s, tag, txt): A(txt); s.q.append(tag)
        def need(s, *tags):
            idx = max([i for i, t in enumerate(s.q) if t in tags], default=-1)
            if idx >= 0:
                A(f"s_waitcnt vmcnt({len(s.q) - 1 - idx})"); s.q = s.q[idx + 1:]
    VQ = VQ_()
    addr = {0: (9, 16), 1: (10, 26), 2: (11, 26), 3: (12, 26), 4: (8, 16)}
    def fl(i, j):
        b = 16 + 20 * (i % 3)
        VQ.op((i, j), f"buffer_load_dwordx4 {vr(b+4*j,4)}, v{addr[j][0]}, s[44:47], s{addr[j][1]} offen{P['fsc']}")
        if j == 4: A("s_add_u32 s16, s16, 4096\ns_add_u32 s26, s26, 81920\ns_cmp_eq_u32 s16, s22\ns_cselect_b32 s16, s20, s16\ns_cselect_b32 s26, s23, s26")
    for i in range(3):
        for j in range(5): fl(i, j)
    A(f"s_setprio {P['prio_ffn']}")
    blk = [(0, 1), (0, 2), (4, 1), (4, 2), (4, 3)]
    after = {1: [0], 2: [1], 3: [2], 4: [3, 4]}
    for i in range(27):
        b = 16 + 20 * (i % 3)
        for t, (hj, wj) in enumerate(blk):
            VQ.need((i, hj), (i, wj))
            c = "0" if i == 0 else vr(ACC + 16 * t, 16)
            A(f"v_mfma_f32_32x32x16_bf16 {vr(ACC+16*t,16)}, {vr(b+4*wj,4)}, {vr(b+4*hj,4)}, {c}")
            if i + 3 < 27:
                for j in after.get(t, []): fl(i + 3, j)
    RED = 2560
    MK("l2")
    A(f"s_setprio {P['prio_red']}")
    for q in range(4):
        A(f"s_sub_u32 s16, s29, {q+1}\ns_and_b32 s16, s16, 3\ns_mul_i32 s16, s16, 5120\ns_add_u32 s16, s16, {RED + q*15360}\nv_add_u32 v{8+q}, s16, v5")
    A(f"""
s_mul_i32 s17, s29, 15360
s_add_u32 s17, s17, {RED}
v_add_u32 v12, s17, v5
s_mov_b32 s48, s4
s_mov_b32 s49, s5
s_mov_b32 s50, 2621440
s_mov_b32 s51, 0x20000
s_mov_b32 s36, 0xffff0000
""")
    npw = [0]
    def pwait(reg, off, thr, sl=2):
        k = npw[0]; npw[0] += 1
        A(f"""
{E}_pw{k}:
ds_read_b32 v0, v{reg} offset:{off}
s_waitcnt lgkmcnt(0)
v_cmp_gt_u32 vcc, {thr}, v0
s_cbranch_vccz {E}_pwd{k}
s_sleep {sl}
s_branch {E}_pw{k}
{E}_pwd{k}:
""")
    pwait(1, 64, 2 * P["T1"], 4)
    for q in range(4):
        A(f"s_cmp_eq_u32 s29, {q}\ns_cbranch_scc1 {E}_nx{q}")
        for t in range(5): A(f"ds_write_b128 v{8+q}, {vr(ACC+16*t+4*q,4)} offset:{t*1024}")
        A(f"{E}_nx{q}:")
    flag(F_RW)
    pwait(15, 0, F_RW, 1)
    for t in range(5):
        for jj in range(3):
            A(f"ds_read_b128 {vr(16+12*t+4*jj,4)}, v12 offset:{jj * 5120 + t * 1024}")
    def perq(tag, body):
        for q in range(4):
            if q < 3: A(f"s_cmp_lg_u32 s29, {q}\ns_cbranch_scc1 {E}_{tag}{q+1}")
            body(q)
            if q < 3: A(f"s_branch {E}_{tag}d\n{E}_{tag}{q+1}:")
        A(f"{E}_{tag}d:")
    xr = lambda q, t: ACC + 16 * t + 4 * ((q + 1) & 3)
    perq("x", lambda q: [A(f"buffer_load_dwordx2 {vr(xr(q,t),2)}, v{XA}, s[48:51], s{30+t} offen") for t in range(5)])
    A("s_waitcnt lgkmcnt(0)"); flag(F_RR)
    MK("l7")
    A(f"""
s_setprio 3
s_mov_b32 s48, s6
s_mov_b32 s49, s7
s_mov_b32 s50, 819200
""")
    def fin(q):
        for t in range(5):
            b = 16 + 12 * t; o = ACC + 16 * t + 4 * q; x = xr(q, t)
            for k in range(4): A(f"v_add_f32 v{b+k}, v{b+k}, v{o+k}")
            for k in range(2): A(f"v_lshlrev_b32 v{o+2*k}, 16, v{x+k}\nv_and_b32 v{o+2*k+1}, s36, v{x+k}")
            for k in range(4): A(f"v_add_f32 v{b+4+k}, v{b+4+k}, v{b+8+k}")
            for k in range(4): A(f"v_add3_f32 v{b+k}, v{b+k}, v{b+4+k}, v{o+k}" if False else f"v_add_f32 v{b+k}, v{b+k}, v{b+4+k}")
            for k in range(4): A(f"v_add_f32 v{b+k}, v{b+k}, v{o+k}")
    def adds(n):
        A(f"s_setprio {P['prio_add']}\ns_waitcnt vmcnt({n})"); perq("fin", fin); A("s_setprio 3")
    A(f"s_cmp_eq_u32 s29, 0\ns_cbranch_scc1 {E}_nd")
    pwait(15, 0, F_RR, 1)
    for m in range(40):
        if m in (0, 9, 19, 29, 39): pwait(1, 64, {0: "s54", 9: "s55", 19: "s63", 29: "s3", 39: "s62"}[m], P['wsl'])
        A(f"s_add_u32 m0, s53, {m*1024}\nbuffer_load_dwordx4 v{WA}, s[48:51], s52 offen lds")
        if m % 10 < 9: A("s_add_u32 s52, s52, 20480")
        elif m < 39: A(f"s_add_u32 s52, s52, s{57 + m // 10}")
    MK("l8")
    A(f"s_waitcnt vmcnt(0)\n{E}_nd:"); flag(F_WO)
    A(f"s_cmp_eq_u32 s29, 0\ns_cbranch_scc1 {E}_pl")
    adds(0)
    def fxw():
        for t in range(5): A(f"ds_write_b128 v{FX}, {vr(16+12*t,4)} offset:{t*1024}")
        flag(F_FX)
    pwait(1, 64, 16, P['rsl'])
    fxw()
    A(f"s_waitcnt lgkmcnt(0)\ns_endpgm\n{E}_pl:")
    PV = 80
    A(f"s_waitcnt vmcnt(0)\nv_mov_b32 v{PV}, 0\nv_mov_b32 v6, 0\ns_mov_b32 s57, {P['spin']}\ns_mov_b32 s58, 0\ns_mov_b32 s59, 0")
    if P["pgate"]: pwait(1, 64, P["pgate"], P['wsl'])
    A(f"""
{E}_rp:
s_sub_u32 s59, s59, 1
s_cbranch_scc0 {E}_np
s_mov_b32 s59, {P['pper']}
s_waitcnt vmcnt({P['pd'] - 1})
buffer_load_dword v{PV}, v{FP}, s[44:47], s56 offen{P['psc']}
{E}_np:
ds_read_b32 v0, v1 offset:64
v_cmp_ne_u32 s[60:61], 0, v{PV}
s_sub_u32 s57, s57, 1
s_cselect_b64 s[60:61], -1, s[60:61]
s_cselect_b32 s57, 0, s57
v_mov_b32 v8, s60
v_mov_b32 v9, s61
ds_write_b64 v6, v[8:9] offset:{MSK}
s_cmp_lg_u32 s58, 0
s_cbranch_scc1 {E}_rr
s_waitcnt lgkmcnt(1)
v_cmp_gt_u32 vcc, 16, v0
s_cbranch_vccnz {E}_rs
""")
    fin(0); fxw()
    A(f"""
s_mov_b32 s58, 1
{E}_rr:
s_cmp_eq_u64 s[60:61], -1
s_cbranch_scc1 {E}_go
{E}_rs:
s_sleep {P['rsl']}
s_branch {E}_rp
{E}_go:
s_waitcnt vmcnt(0) lgkmcnt(0)
{E}_end:
s_endpgm
""")
    A.end(name, 168, 72)
```

```python
from asmlib import *
from layout import *

NP = 4
DEF = dict(cpf=None, kpar=0, kbit=0, krot=(1, 4), st=" sc1", lprio=3, gtab=None, cntp=8, eprio=3,
           offs=96.0, T1=4, prio_ffn=0, prio_red=1, prio_add=0, c1=3, prios=(3, 2, 1, 0), rot=0, frot=1,
           order="M1 E8 E9 C0 C1 E10 E11 M2 K C2 C3 E12 E13 E14 E15 M3 C4 C5 N0 N1 C6 C7 N2 N3 M4 V N4 N5 N6 N7", npre=8,
           osc=" sc1", lsc=" sc1", psl=2, spin=2000000, rsl=1, wsl=8, G0=2, hint=(7, 4), bq=2, pgate=13, rtsl=0, pd=1, pper=12,
           psc=' sc1', hsc=' sc1', qsl=1, hst=(0, 0, 1, 1, 2, 2, 3, 3), ofp=5, hfl=(0, 7), w2g=5, marks=None, hsl=2, noh=0, noof=0, now2=0, dsc=' sc1', fsc=' sc1', qdel=0, hgate=2,
           xsl=(5,6,7,8,9,5,6,7,8,9, 5,6,7,8,9, 5,6,8,9,5), wsl_=(1,2,3,4,1,2,3,4,1,2, 3,4,1,2,3, 4,7,2,3,4), nxr=5,
           xb=(81920, 147456), wb=(16384, 114688), cs_slot=6, w2_slot=7, w2_after=16, w2at=13, qtry=16, cntl=32, early=1, qprio=2, hprio=1, pw=3, sched=((0, 1), (2, 3), (4, 5), ()), finearly=0, c0=3, pk=1, xah=9, wah=9, w1min=-1, pf=None, dsl=0, qsp=3, rws=1, nold=0, nostat=0, stat='v', pf2=None, D=2, bj=0, fj=0, schb=((0, 1), (2, 3), (4, 5), ()), csx=(38, 3))
WO = 1024; PR = 143360; MSK = 96; SENT = 128; FREE = 123904
LAND = 160; DONE = 176; PUB = 192; CSF = 208; RLY = 224
F_G1, F_G5, F_ALL, F_RW, F_RR, F_WO, F_FX = 1, 2, 3, 4, 5, 6, 7
LF = 2
HD = [0, 0, 0, 1, 2, 2, 2, 3, 4, 4, 4, 4, 5, 5, 5, 5]
H1 = (2, 3, 6, 7, 11)

def gen_f(A, name, P=None):
    P = dict(DEF, **(P or {}))
    XS = 1024; RB = 1536; CSQ = 2048
    XSL, WSL, NXR = P['xsl'], P['wsl_'], P['nxr']
    ST = P["st"]; SC = " sc1"
    G0 = P["G0"]
    A.begin(name)
    E = "L_f"
    def MK(tag):
        if P["marks"] and tag in P["marks"]: A(f"; MARK {P['marks'][tag]}")
    hd = sum(v << (4 * i) for i, v in enumerate(HD))
    GT = ""
    if P["gtab"]:
        t = sum(v << (4 * i) for i, v in enumerate(P["gtab"]))
        GT = f"s_lshl_b32 s15, s15, 2\ns_mov_b32 s16, {hex(t & 0xffffffff)}\ns_mov_b32 s17, {hex(t >> 32)}\ns_lshr_b64 s[16:17], s[16:17], s15\ns_and_b32 s15, s16, 15"
    CP = ""
    if P["cpf"]:
        n0, n1 = P["cpf"]
        CP = f"""s_getpc_b64 s[42:43]
{E}_pc:
s_lshr_b32 s3, s2, 3
s_mul_i32 s3, s3, {n1}
v_mov_b32 v3, s3
v_cmp_gt_u32 vcc, {n0}, v0
v_cndmask_b32 v3, v3, 0, vcc
v_add_lshl_u32 v3, v3, v0, 7
v_min_u32 v3, {E}_end-{E}_pc, v3
v_mov_b32 v5, s43
v_add_co_u32 v4, vcc, s42, v3
v_addc_co_u32 v5, vcc, 0, v5, vcc
v_cmp_gt_u32 vcc, {n0 + n1}, v0
s_and_b64 exec, exec, vcc
s_cbranch_execz {E}_np0
global_load_dword v167, v[4:5], off
{E}_np0:
s_mov_b64 exec, -1"""
    A(f"""
s_cmp_ge_u32 s2, 256
s_cbranch_scc1 {E}_end
{CP}
s_load_dwordx4 s[4:7], s[0:1], 0
s_load_dwordx4 s[8:11], s[0:1], 32
s_load_dwordx2 s[12:13], s[0:1], 64
s_load_dwordx4 s[64:67], s[0:1], 48
v_lshrrev_b32 v1, 6, v0
v_and_b32 v2, 63, v0
s_and_b32 s40, s2, 7
s_lshr_b32 s41, s2, 3
v_readfirstlane_b32 s29, v1
s_and_b32 s14, s40, 1
s_lshl_b32 s14, s14, 3
s_and_b32 s15, s41, 7
s_add_u32 s14, s14, s15
s_lshr_b32 s15, s40, 1
s_lshl_b32 s15, s15, 2
s_lshr_b32 s16, s41, 3
s_add_u32 s15, s15, s16
{GT}
s_lshl_b32 s17, s15, 2
s_mov_b32 s18, {hex(hd & 0xffffffff)}
s_mov_b32 s19, {hex(hd >> 32)}
s_lshr_b64 s[18:19], s[18:19], s17
s_and_b32 s18, s18, 15
s_lshl_b32 s17, s15, 1
s_sub_u32 s19, s17, s18
s_mov_b32 s18, {sum(1 << g for g in H1)}
s_bitcmp1_b32 s18, s15
s_cselect_b32 s18, 1, 2
s_mov_b32 s46, {WS_BYTES}
s_mov_b32 s47, 0x20000
s_cmp_lt_u32 s29, 8
s_cbranch_scc1 {E}_comp
""")
    ra, rb = P["krot"]
    A(f"""
s_setprio {P['lprio']}
s_sub_u32 s29, s29, 8
s_mov_b32 s22, 2621440
s_mov_b32 s23, 0x20000
s_mov_b32 s27, 0x20000
s_mov_b32 s50, 2211840
s_mov_b32 s51, 0x20000
s_cmp_lt_u32 s15, 15
s_cselect_b32 s26, 2457600, 0
v_lshrrev_b32 v3, 3, v2
s_lshl_b32 s30, s29, 5
s_lshl_b32 s31, s14, 7
s_add_u32 s30, s30, s31
v_add_u32 v3, s30, v3
v_lshrrev_b32 v4, 4, v2
v_and_b32 v5, 7, v2
v_xor_b32 v6, v5, v4
v_xor_b32 v7, 4, v6
s_movk_i32 s32, 1280
v_mul_lo_u32 v3, v3, s32
v_lshl_add_u32 v10, v6, 4, v3
v_lshl_add_u32 v11, v7, 4, v3
v_add_u32 v11, 10240, v11
v_and_b32 v5, 15, v2
v_lshlrev_b32 v6, 2, v4
v_xor_b32 v5, v5, v6
s_lshl_b32 s30, s29, 4
v_add_u32 v4, s30, v4
v_mul_u32_u24 v6, 3840, v4
v_mul_u32_u24 v7, 3456, v4
s_lshl_b32 s31, s17, 7
s_lshl_b32 s33, s19, 7
v_lshl_add_u32 v6, v5, 4, v6
v_lshl_add_u32 v7, v5, 4, v7
v_add_u32 v12, s31, v6
v_add_u32 v44, s33, v7
s_lshl_b32 s33, s18, 3
v_mov_b32 v8, 0x7fffffff
v_cmp_gt_u32 vcc, s33, v5
s_lshr_b32 s35, s40, 1
s_mul_i32 s35, s35, {ra}
s_and_b32 s36, s40, 1
s_mul_i32 s36, s36, {rb}
s_add_u32 s35, s35, s36
s_bfe_u32 s36, s41, {0x10000 + P['kbit']}
s_mul_i32 s36, s36, {P['kpar']}
s_add_u32 s35, s35, s36
s_cmp_ge_u32 s35, 10
s_cselect_b32 s36, 10, 0
s_sub_u32 s35, s35, s36
""")
    for j in range(1, 4): A(f"v_add_u32 v{12+j}, {j*4*3840}, v12\nv_add_u32 v{44+j}, {j*4*3456}, v44")
    for j in range(4): A(f"v_cndmask_b32 v{44+j}, v8, v{44+j}, vcc")
    A(f"""
s_mul_i32 s36, s35, {64*3840}
s_add_u32 s39, s35, {10 - NXR}
s_cmp_ge_u32 s39, 10
s_cselect_b32 s30, 10, 0
s_sub_u32 s39, s39, s30
s_mul_i32 s39, s39, {64*3456}
s_lshl_b32 s35, s35, 7
s_lshl_b32 s37, s29, 12
s_waitcnt lgkmcnt(0)
s_mov_b32 s20, s4
s_mov_b32 s21, s5
s_mov_b32 s24, s6
s_mov_b32 s25, s7
s_mov_b32 s48, s8
s_mov_b32 s49, s9
""")
    if P["nold"]: A("s_mov_b32 s22, 0\ns_mov_b32 s26, 0\ns_mov_b32 s50, 0")
    class VQ_:
        def __init__(s): s.q = []
        def op(s, tag, txt): A(txt); s.q.append(tag)
        def need(s, *tags):
            idx = max([i for i, t in enumerate(s.q) if t in tags], default=-1)
            if idx >= 0:
                A(f"s_waitcnt vmcnt({len(s.q) - 1 - idx})"); s.q = s.q[idx + 1:]
    LQ = VQ_()
    def ld(kind, st):
        if kind == "x":
            base = XSL[st] * 16384
            A("s_add_u32 s30, s35, 20480")
            for j in range(4): LQ.op(("x", st), f"s_add_u32 m0, s37, {base + j*1024}\nbuffer_load_dwordx4 v{10+(j&1)}, s[20:23], s{35 if j < 2 else 30} offen lds")
            A("s_add_u32 s35, s35, 128\ns_cmp_eq_u32 s35, 1280\ns_cselect_b32 s35, 0, s35")
        elif st < 10:
            base = WSL[st] * 16384
            for j in range(4): LQ.op(("w", st), f"s_add_u32 m0, s37, {base + j*1024}\nbuffer_load_dwordx4 v{12+j}, s[24:27], s36 offen lds")
            A(f"s_add_u32 s36, s36, {64*3840}\ns_cmp_eq_u32 s36, {640*3840}\ns_cselect_b32 s36, 0, s36")
        else:
            base = WSL[st] * 16384
            for j in range(4): LQ.op(("w", st), f"s_add_u32 m0, s37, {base + j*1024}\nbuffer_load_dwordx4 v{44+j}, s[48:51], s39 offen lds")
            A(f"s_add_u32 s39, s39, {64*3456}\ns_cmp_eq_u32 s39, {640*3456}\ns_cselect_b32 s39, 0, s39")
    loads = [("x", st) for st in range(20) if not 10 <= st < 10 + NXR] + [("w", st) for st in range(20)]
    for i in range(NXR): assert XSL[10 + i] == XSL[10 - NXR + i]
    free = {}
    for kind, st in loads:
        sl = (XSL if kind == "x" else WSL)[st]
        free[(kind, st)] = max([u for u in range(st) if XSL[u] == sl or WSL[u] == sl], default=-1)
        if st < 10: free[(kind, st)] = max(free[(kind, st)], st - P[kind + "ah"] - 1)
        elif kind == "w": free[(kind, st)] = max(free[(kind, st)], P["w1min"])
    for u in range(20): assert XSL[u] != WSL[u]
    for i in range(NXR):
        for u in range(10 - NXR + i + 1, 10 + i): assert XSL[u] != XSL[10 + i] and WSL[u] != XSL[10 + i]
    for kd in "xw":
        f = [free[l] for l in loads if l[0] == kd]
        assert f == sorted(f), f
    S1LAST = max(u for u in range(20) if 1 in (XSL[u], WSL[u]))
    def issue_at(f):
        for l in sorted([l for l in loads if free[l] == f], key=lambda l: (l[1], l[0] == "w")): ld(*l)
    issue_at(-1)
    A(f"""
s_load_dwordx2 s[6:7], s[0:1], 16
v_mov_b32 v1, 0
v_lshrrev_b32 v0, 2, v2
v_cmp_eq_u32 vcc, {DONE // 16}, v0
v_cndmask_b32 v1, v1, 12, vcc
v_mov_b32 v0, 0x100
v_cmp_eq_u32 vcc, {RLY // 4}, v2
v_cndmask_b32 v1, v1, v0, vcc
v_lshlrev_b32 v7, 2, v2
ds_write_b32 v7, v1
v_and_b32 v1, 3, v2
v_lshlrev_b32 v1, 2, v1
s_lshl_b32 s30, s29, 2
v_mov_b32 v7, s30
""")
    A(f"""
s_mov_b32 s44, s12
s_mov_b32 s45, s13
s_mov_b32 s52, s10
s_mov_b32 s53, s11
s_mov_b32 s55, 0x20000
s_lshl_b32 s57, s29, 8
s_add_u32 s58, s57, s2
s_min_u32 s57, s58, 539
s_mul_i32 s59, s57, 13108
s_lshr_b32 s59, s59, 16
s_mul_i32 s60, s59, 5
s_sub_u32 s60, s57, s60
s_mul_i32 s61, s59, 20480
s_lshl_b32 s62, s60, 8
s_add_u32 s62, s62, s61
s_add_u32 s63, s62, 5120
v_lshrrev_b32 v3, 5, v2
v_and_b32 v4, 31, v2
v_mul_u32_u24 v5, 10240, v3
v_lshl_add_u32 v98, v4, 3, v5
s_cmp_ge_u32 s58, 540
s_cselect_b32 s54, 0, 2211840
s_mov_b32 s64, s12
s_mov_b32 s65, s13
s_mov_b32 s67, 0x20000
s_cselect_b32 s66, 0, {WS_BYTES}
v_lshrrev_b32 v5, 3, v4
v_and_b32 v6, 7, v2
v_lshlrev_b32 v5, 10, v5
v_lshl_add_u32 v5, v6, 6, v5
v_lshl_add_u32 v5, v3, 9, v5
s_add_u32 s34, s37, {P['w2_slot'] * 16384}
v_add_u32 v16, s34, v5
v_lshlrev_b32 v6, 4, v2
v_add_u32 v17, s34, v6
s_lshl_b32 s69, s60, 12
s_add_u32 s69, s69, s61
s_add_u32 s69, s69, {W2F}
s_mul_i32 s68, s60, 108
s_add_u32 s68, s68, s59
s_lshl_b32 s68, s68, 7
s_add_u32 s68, s68, {FW}
s_waitcnt lgkmcnt(0)
""")
    W2R = 100
    def w2loads():
        for j in range(8):
            LQ.op("w2", f"buffer_load_dwordx2 {vr(W2R+2*j,2)}, v98, s[52:55], s{62 + (j >> 2)} offen offset:{(j & 3) * 1280}")
    for st in range(10):
        if st >= 2: issue_at(st - 2)
        if P["w2at"] == st - 1: w2loads()
        MK(f"i{st-1}")
        LQ.need(("x", st), ("w", st), ("x", min(st + P["early"], 9)))
        MK(f"a{st-1}")
        A("s_barrier")
        MK(f"s{st-1}")
    issue_at(8)
    LQ.need(("w", 10))
    A("s_barrier")
    MK("lA")
    npd = [0]
    def dwait(st):
        k = npd[0]; npd[0] += 1
        A(f"""
{E}_dw{k}:
ds_read_b32 v0, v1 offset:{DONE}
s_waitcnt lgkmcnt(0)
v_cmp_gt_u32 vcc, {st + 3}, v0
s_cbranch_vccz {E}_dx{k}
{"s_sleep " + str(P['dsl']) if P['dsl'] else ""}
s_branch {E}_dw{k}
{E}_dx{k}:
""")
    def land(st):
        LQ.need(("x", st), ("w", st))
        A(f"v_mov_b32 v0, {st}\nds_write_b32 v7, v0 offset:{LAND}")
        MK(f"L{st}")
    issue_at(9)
    if P["w2at"] == 9: w2loads()
    land(11)
    lastf = max(free.values())
    for st in range(10, lastf + 1):
        dwait(st); MK(f"D{st}"); issue_at(st)
        if P["w2at"] == st: w2loads()
        land(st + 2)
    for st in range(lastf + 3, 20): land(st)
    MK("lL")
    assert max(u for u in range(20) if P['w2_slot'] in (XSL[u], WSL[u])) <= P["w2_after"]
    A("s_mov_b32 s30, 0x05040100\ns_mov_b32 s31, 0x07060302")
    LQ.need("w2")
    for c in range(4):
        for k in range(4): A(f"v_perm_b32 v{40+4*c+k}, v{W2R+2+4*k+(c>>1)}, v{W2R+4*k+(c>>1)}, s{30+(c&1)}")
    dwait(P["w2_after"])
    for c in range(4): A(f"ds_write_b128 v16, {vr(40+4*c,4)} offset:{16*c}")
    for c in range(4): A(f"ds_read_b128 {vr(88+4*c,4)}, v17 offset:{1024*c}")
    A(f"s_branch {E}_ffn")

    def head_scalars():
        A(f"""
s_lshl_b32 s14, s40, 2
s_lshr_b32 s15, s41, 3
s_add_u32 s14, s14, s15
s_mul_i32 s16, s14, 5
s_add_u32 s16, s16, 1
s_lshr_b32 s16, s16, 1
s_lshl_b32 s16, s16, 9
s_add_u32 s16, s16, {QF}
s_movk_i32 s17, 1024
s_bitcmp1_b32 s14, 0
s_cselect_b32 s17, -504, s17
s_and_b32 s19, s41, 7
s_lshl_b32 s15, s19, 3
s_mul_i32 s19, s19, {8 * TS * P['rot']}
""")
    def poll_addr(dst, t0, t1):
        A(f"""
s_mul_i32 s{t0}, s14, 20
s_add_u32 s{t1}, s{t0}, 19
s_lshr_b32 s{t0}, s{t0}, 6
s_lshr_b32 s{t1}, s{t1}, 6
s_sub_u32 s{t1}, s{t1}, s{t0}
s_lshl_b32 s{t0}, s{t0}, 12
s_add_u32 s{t0}, s{t0}, {FQ}
s_lshl_b32 s{t1}, s{t1}, 12
v_mul_u32_u24 v{dst}, s{t1}, v3
v_lshl_add_u32 v{dst}, v4, 7, v{dst}
v_add_u32 v{dst}, s{t0}, v{dst}
""")
    A(f"""
{E}_comp:
v_lshrrev_b32 v3, 5, v2
v_and_b32 v4, 31, v2
s_and_b32 s52, s29, 1
s_lshr_b32 s53, s29, 1
s_lshl_b32 s30, s52, 1
s_xor_b32 s30, s30, s53
s_mov_b32 s56, 0x3f803f80
s_lshl_b32 s31, s30, 1
v_bfe_u32 v5, v2, 1, 3
v_xor_b32 v5, v5, v3
v_xor_b32 v5, s31, v5
s_lshl_b32 s31, s52, 13
s_add_u32 s31, s31, {P['xb'][0]}
v_lshlrev_b32 v6, 7, v4
v_add_u32 v6, s31, v6
""")
    for pos in range(4):
        A(f"v_xor_b32 v7, {2*pos}, v5\nv_lshl_add_u32 v{16+pos}, v7, 4, v6")
    A(f"""
v_bfe_u32 v5, v2, 2, 2
v_lshl_add_u32 v6, v3, 3, v5
v_lshlrev_b32 v6, 8, v6
v_bfe_u32 v7, v2, 1, 1
v_lshl_add_u32 v6, v7, 3, v6
v_add_u32 v6, {P['wb'][0]}, v6
v_bfe_u32 v7, v2, 4, 1
v_and_b32 v8, 1, v2
v_lshl_add_u32 v7, v7, 1, v8
s_and_b32 s55, s53, 1
s_lshl_b32 s31, s55, 3
v_add_u32 v7, s31, v7
v_lshlrev_b32 v5, 2, v5
v_xor_b32 v7, v7, v5
v_lshl_add_u32 v6, v7, 4, v6
v_xor_b32 v7, 64, v6
""")
    for pos in range(4):
        A(f"s_xor_b32 s31, s30, {pos}\ns_lshl_b32 s31, s31, 12")
        for t in range(2):
            A(f"v_add_u32 v{20+pos*2+t}, s31, v{6+t}")
    A("""
v_and_b32 v5, 15, v2
v_bfe_u32 v6, v2, 4, 1
v_cmp_eq_u32 vcc, v5, v6
v_mov_b32 v5, s56
""")
    for i in range(4): A(f"v_cndmask_b32 v{88+i}, 0, v5, vcc")
    A(f"""
s_lshl_b32 s31, s52, 8
v_lshl_add_u32 v48, v3, 4, s31
s_add_u32 s31, s31, {XS}
v_lshl_add_u32 v9, v4, 2, s31
v_add_u32 v12, {RB - XS}, v9
s_movk_i32 s32, {CSQ}
s_cmp_ge_u32 s29, 4
s_cselect_b32 s32, {P['cs_slot'] * 16384 - 8192}, s32
s_lshl_b32 s33, s29, 11
s_add_u32 s33, s33, s32
v_lshl_add_u32 v7, v2, 4, s33
s_lshl_b32 s33, s53, 12
s_add_u32 s33, s33, s32
v_lshl_add_u32 v8, v3, 11, s33
v_bfe_u32 v5, v2, 4, 1
v_lshl_add_u32 v8, v5, 4, v8
v_bfe_u32 v5, v2, 2, 2
v_lshl_add_u32 v8, v5, 8, v8
v_and_b32 v5, 3, v2
v_lshl_add_u32 v8, v5, 2, v8
v_lshlrev_b32 v5, 4, v2
s_waitcnt lgkmcnt(0)
s_mov_b32 s44, s12
s_mov_b32 s45, s13
s_mov_b32 s48, s64
s_mov_b32 s49, s65
s_mov_b32 s64, s66
s_mov_b32 s65, s67
s_mov_b32 s67, 0x20000
s_mov_b32 s66, 256
v_mov_b32 v49, 1
s_lshl_b32 s31, s15, 3
s_add_u32 s31, s31, s29
s_cmp_eq_u32 s31, {15 * 8}
s_cselect_b32 s42, 1, 0
s_cbranch_scc0 {E}_nclr
s_mul_i32 s31, s14, {140 * 128}
s_add_u32 s31, s31, {FL2}
v_mov_b32 v92, 0
v_mov_b32 v93, 0
v_mov_b32 v94, 0
v_mov_b32 v95, 0
""")
    for n in range(17):
        A(f"buffer_store_dwordx4 v[92:95], v5, s[44:47], s31 offen offset:{(n & 3) * 1024} sc1")
        if n & 3 == 3: A("s_add_u32 s31, s31, 4096")
    A(f"s_mov_b32 exec_hi, 0\nbuffer_store_dwordx4 v[92:95], v5, s[44:47], s31 offen offset:1024 sc1\ns_mov_b64 exec, -1\n{E}_nclr:")
    A(f"""
s_and_b32 s30, s41, 7
s_mul_i32 s30, s30, 80
s_and_b32 s33, s29, 3
s_mul_i32 s31, s33, 20
s_add_u32 s30, s30, s31
v_lshrrev_b32 v164, 1, v2
v_min_u32 v165, 19, v164
v_add_u32 v165, s30, v165
v_and_b32 v166, 1, v2
s_sub_u32 s30, s18, 1
v_min_u32 v1, s30, v166
v_add_u32 v1, s19, v1
v_lshlrev_b32 v1, 7, v1
s_movk_i32 s31, 3456
s_lshl_b32 s33, s33, 8
s_add_u32 s33, s33, s2
s_min_u32 s33, s33, 539
s_mul_i32 s30, s33, 13108
s_lshr_b32 s30, s30, 16
s_mul_i32 s32, s30, {20480 - 5*256}
s_lshl_b32 s33, s33, 8
s_add_u32 s32, s32, s33
v_and_b32 v6, 15, v164
v_mad_u32_u24 v164, v165, s31, v1
v_mul_u32_u24 v6, 1280, v6
v_lshl_add_u32 v6, v166, 7, v6
v_add_u32 v165, s32, v6
""")
    A(f"""
s_lshl_b32 s39, s14, 2
s_lshl_b32 s31, s52, 1
s_add_u32 s39, s39, s31
s_lshr_b32 s30, s39, 1
s_mov_b32 s32, s12
s_mov_b32 s33, s13
s_mov_b32 s34, 0
s_mov_b32 s35, 0x20000
s_mov_b32 s8, 1.0
s_cmp_ge_u32 s29, 4
s_cbranch_scc1 {E}_ch
s_add_u32 s54, s17, s55
s_cmp_lt_u32 s54, 10
s_cselect_b32 s8, {f32bits(QSCALE)}, s8
s_cselect_b32 s31, 0, 10
s_cselect_b32 s10, 0, 4
s_cmp_ge_u32 s54, 20
s_cselect_b32 s31, 20, s31
s_cselect_b32 s10, 8, s10
s_cselect_b32 s9, 1, 0
s_sub_u32 s31, s54, s31
s_lshl_b32 s6, s31, 12
s_add_u32 s10, s10, s6
s_lshl_b32 s30, s30, 7
s_add_u32 s10, s10, s30
s_add_u32 s10, s10, {FQ}
s_mul_i32 s4, s39, {TS}
s_lshl_b32 s5, s54, 12
s_lshl_b32 s6, s31, 10
s_add_u32 s6, s6, {VOFF}
s_cmp_eq_u32 s9, 1
s_cselect_b32 s5, s6, s5
s_add_u32 s4, s4, s5
s_add_u32 s4, s4, {QF}
s_cmp_eq_u32 s9, 1
s_mov_b32 s5, {TS}
s_cselect_b32 s5, {2*SV}, s5
s_add_u32 s5, s5, s4
s_add_u32 s6, s4, {TS}
s_add_u32 s7, s5, {TS}
s_cmp_ge_u32 s54, 30
s_cselect_b32 s9, 3, s9
s_branch {E}_cj
{E}_ch:
s_add_u32 s54, s19, s55
s_mul_i32 s10, s30, 27
s_add_u32 s10, s10, s54
s_lshl_b32 s10, s10, 7
s_lshl_b32 s31, s54, 2
s_add_u32 s10, s10, {FH}
s_mul_i32 s4, s39, 108
s_add_u32 s4, s4, s31
s_lshl_b32 s4, s4, 10
s_add_u32 s4, s4, {HF}
s_add_u32 s5, s4, {108*1024}
s_mov_b32 s6, 0
s_mov_b32 s7, 0
s_cmp_lt_u32 s55, s18
s_cselect_b32 s9, 2, 3
s_cselect_b32 s34, {WS_BYTES}, 0
{E}_cj:
""")
    head_scalars()
    A(f"""
s_lshr_b32 s11, s15, 1
s_add_u32 s15, s15, s29
s_mul_i32 s20, s15, {TS}
s_add_u32 s20, s20, s16
s_add_u32 s18, s20, s17
s_add_u32 s21, s16, s19
s_add_u32 s21, s21, 40960
s_mul_i32 s60, s15, 40960
s_mul_i32 s61, s14, 1280
s_add_u32 s60, s60, s61
s_add_u32 s60, s60, {OF}
s_sub_u32 s3, s60, 3072
s_lshl_b32 s61, s15, {12 - LF}
s_lshr_b32 s27, s14, {LF}
s_lshl_b32 s27, s27, 7
s_add_u32 s61, s61, s27
s_and_b32 s27, s14, {(1 << LF) - 1}
s_lshl_b32 s27, s27, 2
s_add_u32 s61, s61, s27
s_add_u32 s61, s61, {FL2}
s_lshr_b32 s50, s40, 1
s_lshl_b32 s50, s50, 3
s_and_b32 s51, s41, 7
s_add_u32 s50, s50, s51
s_lshl_b32 s50, s50, 1
s_bfe_u32 s51, s41, 0x10003
s_lshr_b32 s52, s29, 2
s_xor_b32 s53, s51, s52
s_add_u32 s50, s50, s53
s_mul_i32 s54, s52, {P['bq']}
s_xor_b32 s54, s54, s29
s_and_b32 s54, s54, 3
s_lshl_b32 s56, s53, 2
s_add_u32 s56, s56, s54
s_lshl_b32 s56, s56, 3
s_and_b32 s55, s40, 1
s_lshl_b32 s55, s55, 1
s_lshr_b32 s58, s41, 4
s_add_u32 s55, s55, s58
s_mul_i32 s55, s55, 320
s_lshl_b32 s58, s51, 8
s_add_u32 s55, s55, s58
s_lshl_b32 s58, s54, 4
s_add_u32 s55, s55, s58
s_mul_i32 s57, s50, 40960
s_add_u32 s55, s55, s57
s_mul_i32 s59, s54, 10240
s_add_u32 s57, s57, s59
s_add_u32 s57, s57, {OF}
s_mul_i32 s58, s54, 30720
s_add_u32 s58, s58, {WO}
s_mul_i32 s59, s54, 5120
s_add_u32 s59, s59, {PR}
s_lshl_b32 s53, s51, 7
s_sub_u32 s53, 64, s53
s_mov_b32 s50, 2621440
s_mov_b32 s51, 0x20000
""")
    A(f"""
v_cmp_gt_u32 s[22:23], 20, v4
v_cmp_gt_u32 s[24:25], 32, v2
s_cmp_ge_u32 s29, 4
s_cbranch_scc1 {E}_hp
s_setprio {P['qprio']}
""")
    poll_addr(50, 30, 31)
    A(f"""
s_cmp_eq_u32 s9, 1
s_cbranch_scc1 {E}_vloop
""")
    D = P["D"]
    FB = [[56, 60, 64, 68], [72, 76, 80, 84]] if D == 1 else [[72, 76, 80, 84], [56, 60, 64, 68], [28, 32, 36, 164]]
    QL, RL, KL = 52, 14, 92
    def acc(ct, tt): return 96 + (ct * 2 + tt) * 16
    class Q:
        def __init__(s): s.q = []
        def op(s, tag, txt): A(txt); s.q.append(tag)
        def need(s, *tags):
            idx = max([i for i, t in enumerate(s.q) if t in tags], default=-1)
            if idx >= 0:
                A(f"s_waitcnt lgkmcnt({len(s.q) - 1 - idx})"); s.q = s.q[idx + 1:]
        def drain(s):
            if s.q: A("s_waitcnt lgkmcnt(0)"); s.q = []
    def pick(bases, slot):
        for k, b in enumerate(bases):
            if 0 <= slot * 16384 - b <= 49152: return k, slot * 16384 - b
        raise ValueError(slot)
    def rd(L, s0, p, i):
        s, pos = s0 + (p >> 2), p & 3
        x0, x1, w0, w1 = FB[p % (D + 1)]
        isx = i in (0, 3)
        r = 16 + pos if isx else 20 + pos * 2 + (i >= 4)
        a = (XSL if isx else WSL)[s] * 16384
        if not 0 <= a - L.cur[r] <= 49152:
            nb = a if a < L.cur[r] else a - 49152
            A(f"v_add_u32 v{r}, {(nb - L.cur[r]) & 0xffffffff}, v{r}"); L.cur[r] = nb
        o = a - L.cur[r]
        L.op((p, i), [f"ds_read_b128 {vr(x0,4)}, v{r} offset:{o}",
                      f"ds_read_b64_tr_b16 {vr(w0,2)}, v{r} offset:{o}",
                      f"ds_read_b64_tr_b16 {vr(w0+2,2)}, v{r} offset:{o+1024}",
                      f"ds_read_b128 {vr(x1,4)}, v{r} offset:{o+4096}",
                      f"ds_read_b64_tr_b16 {vr(w1,2)}, v{r} offset:{o}",
                      f"ds_read_b64_tr_b16 {vr(w1+2,2)}, v{r} offset:{o+1024}"][i])
    def prep():
        o = []
        for t in range(2):
            c = 10 + t; h = 56 + 4 * t
            o += f"""v_cvt_pk_bf16_f32 v{h+2}, 0, v{c}
v_cvt_pk_bf16_f32 v{64+2*t}, -v{160+t}, -v{160+t}
v_sub_f32 v{h+2}, v{c}, v{h+2}
v_cvt_pk_bf16_f32 v{65+2*t}, -v{160+t}, 0
v_cvt_pk_bf16_f32 v{h+3}, 0, v{h+2}
v_cvt_pk_bf16_f32 v{h}, v{c}, v{h+2}
v_sub_f32 v{h+3}, v{h+2}, v{h+3}
v_cvt_pk_bf16_f32 v{h+1}, v{h+3}, 0""".split("\n")
        return o
    def qloads():
        A(f"buffer_load_dwordx4 {vr(QL,4)}, v5, s[44:47], s20 offen{SC}")
        A(f"buffer_load_dwordx2 {vr(RL,2)}, v6, s[44:47], s18 offen{SC}")
        A(f"buffer_load_dwordx4 {vr(KL,4)}, v5, s[44:47], s21 offen{SC}")
    def loop(mode):
        vmode = mode == "v"; hm = mode == "h"; s0 = 10 if hm else 0
        L = Q()
        L.cur = {r: P["xb"][0] if r < 20 else P["wb"][0] for r in range(16, 28)}
        A("s_barrier")
        MK("h9" if hm else "c0")
        stat = lambda: (L.op("st", "ds_read2_b32 v[160:161], v9 offset0:0 offset1:32"), L.op("st", "ds_read2_b32 v[162:163], v12 offset0:0 offset1:32"))
        for q in range(D):
            for i in range(6): rd(L, s0, q, i)
        if hm: stat()
        def sync(p, s):
            L.need(*[(q, i) for q in range(p, p + D) for i in range(6)])
            if not hm:
                MK(f"a{s}")
                A("s_barrier")
                MK(f"s{s}")
            else:
                A(f"v_mov_b32 v1, {s + 3}")
                L.op("dn", f"ds_write_b32 v50, v1")
                A(f"""
v_cmp_gt_u32 vcc, {s + 1}, v13
s_cbranch_vccz {E}_hk{s}
{E}_hl{s}:
ds_read_b32 v13, v48
s_waitcnt lgkmcnt(0)
v_cmp_gt_u32 vcc, {s + 1}, v13
s_cbranch_vccnz {E}_hl{s}
{E}_hk{s}:
""")
                if s + 1 >= P["qtry"]:
                    A(f"v_readlane_b32 s30, v13, 63\ns_and_b32 s30, s30, s68\ns_cbranch_scc0 {E}_hq{s}")
                    qloads()
                    A(f"s_mov_b32 s68, 0\n{E}_hq{s}:")
                MK(f"h{s}")
        CP_, CJ = P["csx"]
        for p in range(40):
            s, pos = s0 + (p >> 2), p & 3
            b = FB[p % (D + 1)]
            bar = pos == 4 - D and p < 36
            sched = [[], [], [], []] if p + D > 39 else (P["schb"] if bar else P["sched"])
            if bar and P["bj"] < 0: sync(p, s)
            for j, (ct, tt) in enumerate(((0, 0), (0, 1), (1, 1), (1, 0))):
                L.need(*[(p, i) for i in ([0, 1, 2], [3], [4, 5], [])[j]])
                a = acc(ct, tt)
                c = "0" if p == 0 else vr(a, 16)
                w, x = vr(b[2 + ct], 4), vr(b[tt], 4)
                if vmode: A(f"v_mfma_f32_32x32x16_bf16 {vr(a,16)}, {x}, {w}, {c}")
                else: A(f"v_mfma_f32_32x32x16_bf16 {vr(a,16)}, {w}, {x}, {c}")
                if bar and P["bj"] == j: sync(p, s)
                if hm and pos == 3 - D and j == P["fj"] and p < 36: L.op("fl", "ds_read_b32 v13, v48")
                for i in sched[j]: rd(L, s0, p + D, i)
                if pos < 2 and j in (1, 3):
                    ct2 = j >> 1
                    c = "0" if p == 0 else vr(40 + 4 * ct2, 4)
                    A(f"v_mfma_f32_16x16x32_bf16 {vr(40+4*ct2,4)}, {vr(b[2+ct2],4)}, v[88:91], {c}")
                if p == P["cntp"] and j == 0 and mode == "q":
                    A(f"s_cmp_eq_u32 s42, 0\ns_cbranch_scc1 {E}_na\ns_waitcnt vmcnt(0)\ns_mov_b64 exec, 1\nbuffer_atomic_add v49, off, s[64:67], 0 offset:{CNT}\ns_mov_b64 exec, -1\n{E}_na:")
                if p == P["cntl"] and j == 0 and not hm:
                    A(f"buffer_load_dword v13, off, s[64:67], 0 offset:{CNT} sc1")
                if p == 38 and j == 0:
                    L.op("csw", f"ds_write_b128 v7, v[40:43]"); L.op("csw", f"ds_write_b128 v7, v[44:47] offset:1024")
                if p == CP_ and j == CJ:
                    if hm:
                        L.need("csw")
                        L.op("cf", f"ds_write_b32 v50, v49 offset:{CSF - DONE}")
                        A(f"""
{E}_hc:
ds_read_b32 v13, v51 offset:{CSF - DONE}
s_waitcnt lgkmcnt(0)
v_cmp_eq_u32 vcc, 0, v13
s_cbranch_vccnz {E}_hc
""")
                        L.q = []
                    else:
                        L.drain(); A("s_barrier")
                    L.op("st", f"ds_read_b32 v10, v8"); L.op("st", f"ds_read_b32 v11, v8 offset:1024")
                    if not hm: stat()
                if p == 39 and j == 1: L.need("st")
                if p == 39 and j in (1, 2):
                    for o in prep()[8 * (j - 1): 8 * j]: A(o)
        MK("hA" if hm else "cA")
        for (ct, tt) in ((0, 0), (0, 1), (1, 1), (1, 0)):
            a = acc(ct, tt); w, x = vr(56 + 4 * ct, 2), vr(64 + 2 * tt, 2)
            if vmode: A(f"v_mfma_f32_32x32x8_bf16 {vr(a,16)}, {x}, {w}, {vr(a,16)}")
            else: A(f"v_mfma_f32_32x32x8_bf16 {vr(a,16)}, {w}, {x}, {vr(a,16)}")
    order = ((0, 0), (0, 1), (1, 1), (1, 0))
    loop("q")
    A(f"""
s_cmp_eq_u32 s9, 3
s_cbranch_scc1 {E}_pub
s_setprio {P['eprio']}
v_mul_f32 v162, s8, v162
v_mul_f32 v164, s8, v163
""")
    for (ct, tt) in order:
        a = acc(ct, tt)
        if P["pk"]:
            for k in range(8): A(f"v_pk_mul_f32 {vr(a+2*k,2)}, {vr(a+2*k,2)}, {vr(162+2*tt,2)} op_sel_hi:[1,0]")
        else:
            for k in range(16): A(f"v_mul_f32 v{a+k}, v{a+k}, v{162+2*tt}")
        for k in range(8): A(f"v_cvt_pk_bf16_f32 v{a+k}, v{a+2*k}, v{a+2*k+1}")
        for j in range(2): A(f"buffer_store_dwordx4 {vr(a+4*j,4)}, v5, s[44:47], s{4+tt} offen offset:{(ct*2+j)*1024}{ST}")
    A(f"s_branch {E}_pub")
    QM, QR, KM, KR, V0, V1 = 8, 12, 16, 20, 24, 28
    S = [32, 48]; O = 64; CB = 80
    FL = 120
    KB = [(KM, KR), (124, 128)]; VB = [V0, 132]
    def vsetup():
        A(f"""
v_and_b32 v{FL+1}, 3, v2
v_lshlrev_b32 v{FL+1}, 2, v{FL+1}
s_lshl_b32 s26, s29, 2
s_add_u32 s26, s26, 64
v_mov_b32 v{FL+2}, s26
v_mul_u32_u24 v7, 320, v3
v_lshl_add_u32 v7, v4, 4, v7
v_add_u32 v7, 5120, v7
v_lshlrev_b32 v6, 4, v4
v_mov_b32 v1, 0x3f803f80
v_cmp_eq_u32 vcc, 20, v4
v_mov_b32 v56, 0
""")
        for i in range(8): A(f"v_cndmask_b32 v{V0+i}, 0, v1, vcc")
    SD, SA, ST_, SX = 96, 112, 120, 124
    A(f"""
{E}_hp:
s_load_dwordx4 s[36:39], s[0:1], 32
s_setprio {P['hprio']}
s_sub_u32 s31, s29, 4
s_lshl_b32 s30, s31, 12
s_add_u32 s30, s30, {P['xb'][0]}
v_lshl_add_u32 v{SX}, v2, 4, s30
v_add_u32 v{SX+1}, {P['xb'][1] - P['xb'][0]}, v{SX}
s_mov_b32 s69, 0xffff0000
s_lshl_b32 s30, s31, 2
s_add_u32 s30, s30, {DONE}
v_mov_b32 v50, s30
v_xor_b32 v51, 4, v50
v_and_b32 v48, 7, v2
v_lshlrev_b32 v48, 2, v48
v_add_u32 v48, {LAND}, v48
v_mov_b32 v1, {RLY}
v_cmp_eq_u32 vcc, 63, v2
v_cndmask_b32 v48, v48, v1, vcc
v_lshlrev_b32 v6, 4, v4
s_lshr_b32 s30, s29, 1
s_lshl_b32 s68, 1, s30
v_and_b32 v1, 3, v2
v_lshrrev_b32 v13, 3, v2
v_lshl_add_u32 v13, v1, 3, v13
s_lshl_b32 s30, s31, 5
v_add_u32 v13, s30, v13
v_lshlrev_b32 v13, 2, v13
""")
    for i in range(8): A(f"v_mov_b32 v{SA+i}, 0")
    A("s_waitcnt lgkmcnt(0)")
    if P["stat"] == "pk":
        for i in range(16): A(f"v_mov_b32 v{128+i}, 0")
    if P["stat"] == "dot": A(f"v_mov_b32 v{ST_}, 0x3f803f80")
    def sreads(st):
        k, o = pick(P["xb"], XSL[st])
        for j in range(4): A(f"ds_read_b128 {vr(SD+4*j,4)}, v{SX+k} offset:{o + j*1024}")
    def sops():
        if P["stat"] == "dot":
            for j in range(4):
                A(f"s_waitcnt lgkmcnt({3 - j})")
                for i in range(4):
                    x = SD + 4*j + i
                    A(f"v_dot2c_f32_bf16 v{SA+2*j}, v{x}, v{ST_}\nv_dot2c_f32_bf16 v{SA+1+2*j}, v{x}, v{x}")
            return
        if P["stat"] == "pk":
            for jp in range(2):
                A(f"s_waitcnt lgkmcnt({2 - 2*jp})")
                for i in range(4):
                    for e, j in enumerate((2*jp, 2*jp+1)):
                        x = SD + 4*j + i
                        A(f"v_lshlrev_b32 v{ST_+2*e}, 16, v{x}\nv_and_b32 v{ST_+1+2*e}, s69, v{x}")
                    for e, j in enumerate((2*jp, 2*jp+1)):
                        u = vr(ST_ + 2*e, 2); a = vr(128 + 4*j, 2); b = vr(130 + 4*j, 2)
                        A(f"v_pk_add_f32 {a}, {a}, {u}\nv_pk_fma_f32 {b}, {u}, {u}, {b}")
            return
        for jp in range(2):
            A(f"s_waitcnt lgkmcnt({2 - 2*jp})")
            for i in range(4):
                for e, j in enumerate((2*jp, 2*jp+1)):
                    x = SD + 4*j + i
                    A(f"v_lshlrev_b32 v{ST_+2*e}, 16, v{x}\nv_and_b32 v{ST_+1+2*e}, s69, v{x}")
                for q in range(2):
                    for e, j in enumerate((2*jp, 2*jp+1)):
                        u = ST_ + 2*e + q
                        A(f"v_add_f32 v{SA+2*j}, v{SA+2*j}, v{u}\nv_fmac_f32 v{SA+1+2*j}, v{u}, v{u}")
    def sfin():
        if P["stat"] == "pk":
            for j in range(4): A(f"v_add_f32 v{SA+2*j}, v{128+4*j}, v{129+4*j}\nv_add_f32 v{SA+1+2*j}, v{130+4*j}, v{131+4*j}")
        for m in ("quad_perm:[1,0,3,2]", "quad_perm:[2,3,0,1]", "row_half_mirror"):
            for i in range(8): A(f"v_add_f32_dpp v{SA+i}, v{SA+i}, v{SA+i} {m} row_mask:0xf bank_mask:0xf")
        for j in range(1, 4):
            A(f"v_cmp_eq_u32 vcc, {j}, v1\nv_cndmask_b32 v{SA}, v{SA}, v{SA+2*j}, vcc\nv_cndmask_b32 v{SA+1}, v{SA+1}, v{SA+1+2*j}, vcc")
        A(f"""
s_mov_b32 s30, 0x3acccccd
s_mov_b32 s31, 0x3727c5ac
v_mul_f32 v{SA}, s30, v{SA}
v_mul_f32 v{SA+2}, v{SA}, v{SA}
v_fma_f32 v{SA+1}, v{SA+1}, s30, -v{SA+2}
v_max_f32 v{SA+1}, 0, v{SA+1}
v_cvt_pk_bf16_f32 v{SA+1}, 0, v{SA+1}
v_add_f32 v{SA+1}, s31, v{SA+1}
v_cvt_pk_bf16_f32 v{SA+1}, 0, v{SA+1}
v_sqrt_f32 v{SA+1}, v{SA+1}
ds_write_b32 v13, v{SA} offset:{XS}
s_nop 0
v_cvt_pk_bf16_f32 v{SA+1}, 0, v{SA+1}
v_rcp_f32 v{SA+1}, v{SA+1}
s_nop 0
ds_write_b32 v13, v{SA+1} offset:{RB}
s_waitcnt lgkmcnt(0)
""")
    done = 0
    for st in range(10):
        MK(f"a{st-1}")
        A("s_barrier")
        if st == P["pf"]: A("global_load_dword v0, v164, s[36:37]")
        if st == P["pf2"]: A("global_load_dword v0, v165, s[38:39]")
        while done <= min(st + P["early"], 9):
            if not P['nostat']: sreads(done); sops()
            done += 1
            if done == 10 and P["early"] and P["finearly"]: sfin()
    if not (P["early"] and P["finearly"]): sfin()
    loop("h")
    HP = {(0, 0): 104, (0, 1): 112, (1, 1): 144, (1, 0): 152}
    A(f"s_cmp_eq_u32 s9, 3\ns_cbranch_scc1 {E}_hd\nv_mov_b32 v164, v163")
    for (ct, tt) in order:
        a = acc(ct, tt); d = HP[(ct, tt)]
        for k in range(8): A(f"v_pk_mul_f32 {vr(a+2*k,2)}, {vr(a+2*k,2)}, {vr(162+2*tt,2)} op_sel_hi:[1,0]")
        for k in (range(7, -1, -1) if (ct, tt) == (0, 0) else range(8)): A(f"v_cvt_pk_bf16_f32 v{d+k}, v{a+2*k}, v{a+2*k+1}")
        for k in range(8): A(f"v_pk_max_i16 v{d+k}, v{d+k}, 0")
    A(f"{E}_hd:")
    vsetup()
    A(f"""
s_cmp_eq_u32 s68, 0
s_cbranch_scc1 {E}_at2
{E}_hw0:
ds_read_b32 v57, v56 offset:{RLY}
s_waitcnt lgkmcnt(0)
v_readfirstlane_b32 s30, v57
s_and_b32 s30, s30, s68
s_cbranch_scc1 {E}_hw1
s_sleep 1
s_branch {E}_hw0
{E}_hw1:
""")
    qloads()
    A(f"s_branch {E}_at2")
    A(f"{E}_vloop:")
    A(f"""
v_and_b32 v1, 19, v2
v_bfe_u32 v6, v2, 2, 1
v_lshl_add_u32 v1, v6, 3, v1
v_bfe_u32 v6, v2, 3, 1
v_lshl_add_u32 v1, v6, 2, v1
v_mul_u32_u24 v6, {SV}, v3
v_lshl_add_u32 v51, v1, 4, v6
""")
    loop("v")
    A(f"s_setprio {P['eprio']}")
    for tt in range(2):
        for q in range(4):
            A(f"ds_read_b128 {vr(16+16*tt+4*q,4)}, v48 offset:{RB + tt*128 + q*32}")
    for n, (ct, tt) in enumerate(order):
        a = acc(ct, tt)
        if n < 2: A(f"s_waitcnt lgkmcnt({4 - 4*n})")
        for k in range(8): A(f"v_pk_mul_f32 {vr(a+2*k,2)}, {vr(a+2*k,2)}, {vr(16+16*tt+2*k,2)}")
        for k in range(8): A(f"v_cvt_pk_bf16_f32 v{a+k}, v{a+2*k}, v{a+2*k+1}")
        for j in range(2): A(f"buffer_store_dwordx4 {vr(a+4*j,4)}, v51, s[44:47], s{4+2*tt+j} offen offset:{ct*512}{ST}")
    DK, DR, DV, DW = 60, 61, 62, 63
    def dma_addr(t0, t1, t2, m1, m2):
        A(f"""
s_mul_i32 s{t0}, s29, {TS}
s_add_u32 s{t0}, s{t0}, s16
s_add_u32 s{t0}, s{t0}, 40960
v_add_u32 v{DK}, s{t0}, v5
s_add_u32 s{t0}, s{t0}, s17
v_lshrrev_b32 v8, 1, v2
v_and_b32 v9, 1, v2
v_lshlrev_b32 v9, 2, v9
v_lshl_add_u32 v8, v8, 4, v9
v_add_u32 v{DR}, s{t0}, v8
s_lshl_b32 s{m1}, s29, 10
s_lshl_b32 s{m2}, s29, 8
s_mul_i32 s{t0}, s14, 320
s_add_u32 s{t0}, s{t0}, {QF + VOFF}
s_lshl_b32 s{t1}, s29, 6
s_lshl_b32 s{t2}, s29, 4
s_add_u32 s{t2}, s{t2}, 256
""")
        def vaddr(dst, ci):
            A(f"""
v_mul_u32_u24 v8, 3277, v{ci}
v_lshrrev_b32 v8, 16, v8
v_mul_u32_u24 v9, 20, v8
v_sub_u32 v9, v{ci}, v9
v_lshrrev_b32 v10, 2, v8
v_and_b32 v8, 3, v8
v_mul_u32_u24 v10, {TS}, v10
v_mul_u32_u24 v8, {SV}, v8
v_lshl_add_u32 v9, v9, 4, s{t0}
v_add3_u32 v{dst}, v8, v9, v10
""")
        A(f"v_add_u32 v11, s{t1}, v2"); vaddr(DV, 11)
        A(f"v_lshrrev_b32 v11, 2, v2\nv_add_u32 v11, s{t2}, v11"); vaddr(DW, 11)
        A(f"v_and_b32 v11, 3, v2\nv_lshl_add_u32 v{DW}, v11, 2, v{DW}")
    def dma(G, m1, m2, so):
        b = G * 10240
        if G == 0: A(f"s_cmp_eq_u32 s29, 0\ns_cbranch_scc1 {E}_d0")
        A(f"s_add_u32 m0, s{m1}, {b}\nbuffer_load_dwordx4 v{DK}, s[44:47], {so} offen{P['dsc']} lds")
        if G == 0: A(f"{E}_d0:")
        A(f"s_add_u32 m0, s{m2}, {b+4096}\nbuffer_load_dword v{DR}, s[44:47], {so} offen{P['dsc']} lds")
        A(f"s_add_u32 m0, s{m1}, {b+5120}\nbuffer_load_dwordx4 v{DV}, s[44:47], {so} offen{P['dsc']} lds")
        A(f"s_add_u32 m0, s{m2}, {b+9216}\nbuffer_load_dword v{DW}, s[44:47], {so} offen{P['dsc']} lds")
    assert G0 == 2 and P["rot"] == 0
    PT = S1LAST + 3
    assert max(u for u in range(20) if P['cs_slot'] in (XSL[u], WSL[u])) <= 16
    A(f"{E}_pub:")
    MK("cS")
    vsetup()
    dma_addr(30, 31, 26, 36, 37)
    A(f"""
s_lshl_b32 s26, s29, 2
v_mov_b32 v57, s26
v_mov_b32 v58, {PT}
s_mov_b32 s38, {4*TS}
ds_write_b32 v57, v58 offset:{PUB}
s_cmp_eq_u32 s9, 3
s_cbranch_scc1 {E}_pb2
s_mov_b32 s26, {P['spin']}
s_waitcnt vmcnt(0)
{E}_cw:
v_readfirstlane_b32 s30, v13
s_cmp_ge_u32 s30, 16
s_cbranch_scc1 {E}_cd
s_sub_u32 s26, s26, 1
s_cbranch_scc1 {E}_cd
s_sleep 2
buffer_load_dword v13, off, s[64:67], 0 offset:{CNT} sc1
s_waitcnt vmcnt(0)
s_branch {E}_cw
{E}_cd:
s_mov_b64 exec, 1
buffer_store_dword v49, off, s[44:47], s10 sc1
s_mov_b64 exec, -1
{E}_pb2:
s_setprio {P['qsp']}
""")
    MK("cF")
    A(f"""
s_cmp_lg_u32 s29, {P['pw']}
s_cbranch_scc1 {E}_at1
v_and_b32 v57, 7, v2
v_lshlrev_b32 v57, 2, v57
{E}_pq:
ds_read_b32 v58, v57 offset:{DONE}
s_waitcnt lgkmcnt(0)
s_sleep 1
v_cmp_gt_u32 vcc, {PT}, v58
s_cbranch_vccnz {E}_pq
s_mov_b32 s26, {P['spin']}
{"s_sleep " + str(P['qdel']) if P['qdel'] else ""}
{E}_qp:
buffer_load_dwordx4 v[52:55], v50, s[44:47], 0 offen sc1
s_waitcnt vmcnt(0)
v_min_u32 v53, v53, v54
v_cmp_ne_u32 s[30:31], 0, v52
v_cmp_ne_u32 s[42:43], 0, v53
s_and_b32 s30, s30, s31
s_and_b32 s42, s42, s43
s_lshr_b32 s30, s30, s11
s_sub_u32 s26, s26, 1
s_cselect_b32 s30, -1, s30
s_cselect_b32 s42, -1, s42
s_cselect_b32 s26, 0, s26
s_bitcmp1_b32 s42, 0
s_cselect_b32 s31, 15, 0
s_and_b32 s30, s30, s31
s_or_b32 s30, s30, 0x100
v_mov_b32 v52, s30
v_mov_b32 v53, s42
ds_write_b64 v56, v[52:53] offset:{RLY}
s_and_b32 s42, s42, 15
s_lshl_b32 s42, s42, 4
s_or_b32 s30, s30, s42
s_cmp_eq_u32 s30, 0x1ff
s_cbranch_scc1 {E}_at1
s_sleep {P['qsl']}
s_branch {E}_qp
{E}_at1:
s_lshr_b32 s26, s29, 1
s_mov_b32 s27, 11
{E}_qw:
ds_read_b64 v[58:59], v56 offset:{RLY}
s_waitcnt lgkmcnt(0)
v_readfirstlane_b32 s30, v58
v_readfirstlane_b32 s31, v59
s_lshr_b32 s30, s30, s26
s_and_b32 s30, s30, 1
s_lshr_b32 s28, s31, 1
s_and_b32 s31, s31, s28
s_and_b32 s31, s31, 5
s_lshl_b32 s31, s31, 1
s_or_b32 s30, s30, s31
s_and_b32 s30, s30, s27
s_cbranch_scc1 {E}_qa
s_sleep {P['rws']}
s_branch {E}_qw
{E}_qa:
s_bitcmp1_b32 s30, 1
s_cbranch_scc0 {E}_qb
""")
    dma(0, 36, 37, "0")
    A(f"{E}_qb:\ns_bitcmp1_b32 s30, 0\ns_cbranch_scc0 {E}_qc")
    qloads()
    MK("cQ")
    A(f"{E}_qc:\ns_bitcmp1_b32 s30, 3\ns_cbranch_scc0 {E}_qd")
    dma(1, 36, 37, "s38")
    A(f"""
{E}_qd:
s_andn2_b32 s27, s27, s30
s_cbranch_scc1 {E}_qw
{E}_at2:
v_cmp_eq_u32 vcc, 20, v4
v_lshlrev_b32 v57, 3, v4
""")
    for i in range(8): A(f"v_cndmask_b32 v{VB[1]+i}, 0, v1, vcc")
    for i in range(4): A(f"v_mov_b32 v{164+i}, -1")
    A("v_add_u32 v6, 4096, v57")
    MK("cW")
    A("s_waitcnt vmcnt(0)")
    for i in range(4): A(f"v_mov_b32 v{QM+i}, v{QL+i}\nv_mov_b32 v{KM+i}, v{KL+i}")
    A(f"v_cndmask_b32 v{QR}, 0, v{RL}, s[24:25]\nv_cndmask_b32 v{QR+1}, 0, v{RL+1}, s[24:25]")
    A("s_barrier")
    MK("cB")
    def kread(o, km=None, kr=None):
        if km is None: km, kr = KB[o & 1]
        g, i = o >> 2, o & 3
        A(f"ds_read_b128 {vr(km,4)}, v5 offset:{g*10240+i*1024}\nds_read_b64 {vr(kr,2)}, v6 offset:{g*10240+i*256}")
    def vread(o):
        g, i = o >> 2, o & 3; b = g * 10240 + i * 1280
        A(f"s_mov_b64 exec, s[22:23]\nds_read_b128 {vr(VB[o&1],4)}, v7 offset:{b}\nds_read_b128 {vr(VB[o&1]+4,4)}, v7 offset:{b+640}\ns_mov_b64 exec, -1")
    A(f"ds_read_b64 {vr(KR,2)}, v6")
    for t in range(1, NP): kread(t, CB + 4 * t, 96 + 2 * t)
    PD = [S[0], S[1], O, S[0]]
    def pmax(t):
        for k in range(8):
            if t == 0 and k == 0: A(f"v_max_f32 v1, v{PD[t]}, v{PD[t]+1}")
            else: A(f"v_max3_f32 v1, v1, v{PD[t]+2*k}, v{PD[t]+2*k+1}")
    for t in range(NP):
        if t == 3: pmax(0)
        A(f"s_waitcnt lgkmcnt({2*(NP-1-t)})")
        km, kr = (KM, KR) if t == 0 else (CB + 4 * t, 96 + 2 * t)
        A(f"v_mfma_f32_32x32x16_bf16 {vr(PD[t],16)}, {vr(km,4)}, {vr(QM,4)}, 0")
        A(f"v_mfma_f32_32x32x8_bf16 {vr(PD[t],16)}, {vr(kr,2)}, {vr(QR,2)}, {vr(PD[t],16)}")
    for t in range(1, NP): pmax(t)
    A(f"""
v_mov_b32 v14, v1
s_mov_b32 s26, {f32bits(P['offs'])}
v_permlane32_swap_b32 v1, v14
v_max_f32 v1, v1, v14
v_add_f32 v1, s26, v1
""")
    for i in range(16): A(f"v_sub_f32 v{CB+i}, 0, v1")
    for i in range(16): A(f"v_mov_b32 v{O+i}, 0")
    def M1(t): A(f"v_mfma_f32_32x32x16_bf16 {vr(S[t&1],16)}, {vr(KB[t&1][0],4)}, {vr(QM,4)}, {vr(CB,16)}")
    def M2(t): A(f"v_mfma_f32_32x32x8_bf16 {vr(S[t&1],16)}, {vr(KB[t&1][1],2)}, {vr(QR,2)}, {vr(S[t&1],16)}")
    def Ex(t, *idx):
        for i in idx: A(f"v_exp_f32 v{S[t&1]+i}, v{S[t&1]+i}")
    def Cv(t, *idx):
        for k in idx:
            d = S[t & 1] + (k & 3) + 8 * (k >> 2)
            A(f"v_cvt_pk_bf16_f32 v{d}, v{S[t&1]+2*k}, v{S[t&1]+2*k+1}")
    MK("c1")
    A("s_waitcnt lgkmcnt(0)")
    kread(1); vread(0); M1(0); M2(0); kread(2); vread(1)
    W = 6
    Ex(0, *range(P["npre"]))
    def tile(t, hook=None):
        pr = P["prios"]
        if pr and (t == 0 or pr[t % len(pr)] != pr[(t - 1) % len(pr)]): A(f"s_setprio {pr[t % len(pr)]}")
        for tok in P["order"].split():
            if tok == "M1": A(f"s_waitcnt lgkmcnt({W})"); M1(t + 1)
            elif tok == "M2": M2(t + 1)
            elif tok == "M3": A(f"s_waitcnt lgkmcnt({W})\nv_mfma_f32_32x32x16_bf16 {vr(O,16)}, {vr(VB[t&1],4)}, {vr(S[t&1],4)}, {vr(O,16)}")
            elif tok == "M4": A(f"v_mfma_f32_32x32x16_bf16 {vr(O,16)}, {vr(VB[t&1]+4,4)}, {vr(S[t&1]+8,4)}, {vr(O,16)}")
            elif tok == "K":
                if hook: hook(t, 0)
                kread(t + 3)
                if hook: hook(t, 1)
            elif tok == "V":
                vread(t + 2)
                if hook: hook(t, 2)
            elif tok[0] == "E": Ex(t, int(tok[1:]))
            elif tok[0] == "N": Ex(t + 1, int(tok[1:]))
            elif tok[0] == "C": Cv(t, int(tok[1:]))
            else: raise ValueError(tok)
    adv = "v_add_u32 v5, 20480, v5\nv_add_u32 v6, 20480, v6\nv_add_u32 v7, 20480, v7"
    npoll = [0]
    def check(thr):
        k = npoll[0]; npoll[0] += 1
        A(f"""
s_waitcnt lgkmcnt(2)
v_cmp_gt_u32 vcc, {thr}, v{FL}
s_cbranch_vccz {E}_ok{k}
{E}_poll{k}:
s_sleep 1
ds_read_b32 v{FL}, v{FL+1}
s_waitcnt lgkmcnt(0)
v_cmp_gt_u32 vcc, {thr}, v{FL}
s_cbranch_vccnz {E}_poll{k}
{E}_ok{k}:
""")
    rdflag = f"ds_read_b32 v{FL}, v{FL+1}"
    hstores = [(ct, tt, j) for (ct, tt) in order for j in range(2)]
    hflag = f"s_waitcnt vmcnt(0)\ns_mov_b64 exec, 1\nbuffer_store_dword v{FL+2}, off, s[32:35], s10 sc1\ns_mov_b64 exec, -1"
    def hook0(t, ph):
        if ph == 1 and t in (4, 7): A(rdflag)
        if ph == 0 and t == 5: check(F_G1)
        if ph in (1, 2):
            mine = [n for n in range(8) if P["hst"][n] == t]
            for n in mine[ph - 1::2] if not P["noh"] else []:
                ct, tt, j = hstores[n]
                A(f"buffer_store_dwordx4 {vr(HP[(ct,tt)]+4*j,4)}, v5, s[32:35], s{4+tt} offen offset:{(ct*2+j)*1024}{ST}")
        if ph == 1 and t == P["ofp"] and not P["noof"]:
            A(f"buffer_store_dwordx4 v[164:167], v5, s[44:47], s60 offen sc1\nbuffer_store_dwordx2 v[164:165], v6, s[44:47], s3 offen sc1")
        if ph == 2 and t == 3: MK("t3")
        if ph == 2 and P["hfl"] == (0, t): MK("t7"); A(hflag); MK("cH")
    for t in range(8): tile(t, hook0)
    A(adv)
    A(f"s_mov_b32 s27, 1\ns_mov_b32 s28, {F_G5}\nv_mov_b32 v{FL+3}, 1\n{E}_loop:")
    def hook1(t, ph):
        if ph == 0 and t == 0: check("s28")
        if ph == 1 and t == 0: A(f"s_mov_b32 s28, {F_ALL}")
        if ph == 1 and t in (0, 4): A(f"v_add_u32 v{FL+3}, 1, v{FL+3}\nds_write_b32 v{FL+2}, v{FL+3}")
        if ph == 1 and t == 7: A(rdflag)
        if ph == 2 and P["hfl"][0] > 0 and P["hfl"][1] == t:
            A(f"s_cmp_lg_u32 s27, {P['hfl'][0]}\ns_cbranch_scc1 {E}_nf\n{hflag}\n{E}_nf:")
        if ph == 1 and t == P["hint"][1]:
            A(f"""
s_cmp_lg_u32 s27, {P["hint"][0]}
s_cbranch_scc1 {E}_nh
s_waitcnt vmcnt(0)
s_mov_b64 exec, 1
buffer_store_dword v{FL+2}, off, s[44:47], s61{P['hsc']}
s_mov_b64 exec, -1
{E}_nh:
""")
    for t in range(8): tile(t, hook1)
    A(adv)
    A(f"s_add_u32 s27, s27, 1\ns_cmp_lt_u32 s27, 8\ns_cbranch_scc1 {E}_loop")
    MK("c3")
    A(f"v_mov_b32 v{FL+3}, 16\nds_write_b32 v{FL+2}, v{FL+3}\nv_mov_b32 v1, 0\ns_movk_i32 s26, 0x207")
    for i in range(12): A(f"v_fma_f32 v1, v{O+i}, 0, v1")
    A(f"""
v_cmp_class_f32 vcc, v1, s26
s_cbranch_vccnz {E}_fb
{E}_epi:
v_mov_b32 v10, 0
ds_read_b64 v[12:13], v10 offset:{MSK}
v_mov_b32 v14, v{O+8}
v_mov_b32 v15, v{O+8}
v_lshlrev_b32 v5, 4, v2
v_permlane32_swap_b32 v14, v15
v_rcp_f32 v14, v15
v_lshlrev_b32 v6, 3, v4
v_mov_b32 v11, v{FL+1}
""")
    for k in range(6): A(f"v_pk_mul_f32 {vr(O+2*k,2)}, {vr(O+2*k,2)}, v[14:15] op_sel_hi:[1,0]")
    for k in range(6): A(f"v_cvt_pk_bf16_f32 v{O+k}, v{O+2*k}, v{O+2*k+1}")
    OSC = P["osc"]; LSC = P["lsc"]
    VW, VR, OR_, OA, SP = 6, 7, 8, 9, 15
    A(f"""
buffer_store_dwordx4 {vr(O,4)}, v5, s[44:47], s60 offen{OSC}
s_mov_b64 exec, s[24:25]
buffer_store_dwordx2 {vr(O+4,2)}, v6, s[44:47], s60 offen offset:1024{OSC}
s_mov_b64 exec, -1
s_setprio 0
""")
    MK("c4")
    A(f"""
v_mul_u32_u24 v14, 2560, v3
s_add_u32 s28, s57, 5120
s_waitcnt lgkmcnt(0)
v_readfirstlane_b32 s30, v12
v_readfirstlane_b32 s31, v13
v_lshl_add_u32 v{OR_}, v4, 3, v14
s_lshr_b64 s[30:31], s[30:31], s56
s_mov_b32 s63, s30
""")
    OB = 16; AC = 56
    def load(k):
        if k < 8: A(f"buffer_load_dwordx4 {vr(OB+4*k,4)}, v5, s[44:47], s{57 if k < 4 else 28} offen offset:{1280*(k&3)}{LSC}")
        else:
            for e in range(2): A(f"buffer_load_dwordx2 {vr(OB+4*k+2*e,2)}, v{OR_}, s[44:47], s{57 if k == 8 else 28} offen offset:{1024+1280*e}{LSC}")
    for k in range(8):
        A(f"s_mov_b32 s64, {k}\ns_bitcmp1_b32 s63, {k}\ns_cbranch_scc0 {E}_su")
        load(k)
    load(8); load(9)
    A(f"s_mov_b32 s64, 9\n{E}_su:")
    def issue_rest(T):
        A(f"s_cmp_eq_u32 s64, 9\ns_cbranch_scc1 {E}_id{T}")
        for k in range(8):
            L = f"{E}_is{T}{k}"
            A(f"""
s_cmp_gt_u32 s64, {k}
s_cbranch_scc1 {L}n
s_bitcmp1_b32 s63, {k}
s_cbranch_scc1 {L}g
{L}p:
ds_read_b64 v[0:1], v10 offset:{MSK}
s_waitcnt lgkmcnt(0)
v_readfirstlane_b32 s30, v0
v_readfirstlane_b32 s31, v1
s_lshr_b64 s[30:31], s[30:31], s56
s_mov_b32 s63, s30
s_bitcmp1_b32 s30, {k}
s_cbranch_scc1 {L}g
s_sleep 1
s_branch {L}p
{L}g:
""")
            load(k)
            A(f"{L}n:")
        load(8); load(9)
        A(f"{E}_id{T}:"); MK("c6")
    A(f"""
ds_read_b32 v1, v11
v_mul_u32_u24 v12, 1280, v4
v_bfe_u32 v13, v2, 2, 2
v_and_b32 v7, 3, v2
v_lshl_add_u32 v{OA}, v3, 3, v12
v_lshlrev_b32 v13, 6, v13
v_lshl_add_u32 v13, v7, 3, v13
v_bfe_u32 v12, v2, 4, 1
v_lshl_add_u32 v13, v12, 5, v13
v_add_u32 v13, s58, v13
v_lshl_add_u32 v{VW}, v3, 8, v13
v_add_u32 v{VR}, v14, v13
s_sub_u32 s26, s54, 1
v_sub_u32 v14, s26, v2
v_and_b32 v14, 3, v14
s_lshl_b32 s26, s52, 4
s_add_u32 s26, s26, {SENT}
v_lshl_add_u32 v{SP}, v14, 2, s26
s_lshl_b32 s27, s54, 2
s_add_u32 s27, s27, s26
s_mov_b32 s62, {P['spin']}
v_add_u32 v12, s59, v5
s_lshl_b32 s30, s54, 2
v_mov_b32 v13, s30
""")
    nw_ = [0]
    def lwait(thr, ar=11):
        k = nw_[0]; nw_[0] += 1
        A(f"""
{E}_lw{k}:
s_waitcnt lgkmcnt(0)
v_cmp_gt_u32 vcc, {thr}, v1
s_cbranch_vccz {E}_lwd{k}
s_sleep {P['psl']}
ds_read_b32 v1, v{ar}
s_branch {E}_lw{k}
{E}_lwd{k}:
""")
    def perq4(tag, body):
        for q in range(4):
            if q < 3: A(f"s_cmp_lg_u32 s54, {q}\ns_cbranch_scc1 {E}_{tag}{q+1}")
            body(q)
            if q < 3: A(f"s_branch {E}_{tag}d\n{E}_{tag}{q+1}:")
        A(f"{E}_{tag}d:")
    lwait(F_WO)
    A(f"s_cmp_lg_u32 s52, 0\ns_cbranch_scc1 {E}_tB")
    for ty, nb in ((0, 3), (1, 2)):
        T = "AB"[ty]
        if ty: A(f"{E}_tB:")
        WB = AC + 16 * nb
        nbuf = min(10, (168 - WB) // (4 * nb))
        q = []
        def need(tag):
            idx = max([i for i, t in enumerate(q) if t == tag], default=-1)
            if idx >= 0:
                A(f"s_waitcnt lgkmcnt({min(len(q) - 1 - idx, 15)})"); del q[:idx + 1]
        later = lambda k: (7 - k + 4) if k < 8 else (2 if k == 8 else 0)
        def wr(k, lo=0, hi=99):
            b = WB + (k % nbuf) * 4 * nb
            for u in range(max(lo, 0), min(hi, nb)):
                if k < 8: a = VW; o1 = u * 10240 + k * 1280; o2 = o1 + 512
                else: a = VR; o1 = u * 10240 + (k - 8) * 5120 + 1024; o2 = o1 + 1280
                A(f"ds_read_b64_tr_b16 {vr(b+4*u,2)}, v{a} offset:{o1}"); q.append((k, u))
                A(f"ds_read_b64_tr_b16 {vr(b+4*u+2,2)}, v{a} offset:{o2}"); q.append((k, u))
        for k in range(nbuf): wr(k)
        if ty == 0:
            for j in range(4): A(f"s_sub_u32 s30, {j+3}, s54\ns_and_b32 s30, s30, 3\ns_mul_i32 s30, s30, 3072\ns_add_u32 s{32+j}, s30, s58\ns_add_u32 s{32+j}, s{32+j}, 20480")
            for r in range(3): A(f"s_sub_u32 s30, s54, {r+1}\ns_and_b32 s30, s30, 3\ns_mul_i32 s30, s30, 30720\ns_add_u32 s{36+r}, s30, {WO + 20480 + r*3072}")
        else:
            A(f"s_lshl_b32 s31, s54, 12\ns_add_u32 s31, s31, {FREE - 2048}")
            for j in range(4): A(f"s_sub_u32 s30, {j+3}, s54\ns_and_b32 s30, s30, 3\ns_lshl_b32 s{32+j}, s30, 11\ns_add_u32 s{32+j}, s{32+j}, s31\ns_cmp_eq_u32 s30, 0\ns_cselect_b32 s{32+j}, s59, s{32+j}")
            for r in range(3):
                A(f"s_sub_u32 s30, s54, {r+1}\ns_and_b32 s30, s30, 3\ns_mul_i32 s30, s30, {5120 if r == 0 else 4096}\ns_add_u32 s{36+r}, s30, {PR if r == 0 else FREE + (r-1)*2048}")
        for k in range(16 * nb): A(f"v_mov_b32 v{AC+k}, 0")
        issue_rest(T)
        A("ds_read_b32 v1, v13")
        lwait(F_FX, 13)
        q.clear()
        perq4(f"fx{T}", lambda qq: [A(f"ds_read_b128 {vr(AC+16*t+4*qq,4)}, v12 offset:{(2048 if ty == 0 else 0) + t*1024}") for t in range(nb)])
        A("s_waitcnt lgkmcnt(0)")
        for k in range(10):
            A(f"s_waitcnt vmcnt({later(k)})")
            o = OB + 4 * k
            A(f"""
{E}_ck{T}{k}:
v_max3_u32 v1, v{o}, v{o+1}, v{o+2}
v_max_u32 v1, v1, v{o+3}
v_cmp_eq_u32 vcc, -1, v1
s_cbranch_vccnz {E}_rt{T}{k}
{E}_bk{T}{k}:
""")
            b = WB + (k % nbuf) * 4 * nb
            nx = k + nbuf
            for u in range(nb):
                need((k, u))
                A(f"v_mfma_f32_32x32x16_bf16 {vr(AC+16*u,16)}, {vr(b+4*u,4)}, {vr(o,4)}, {vr(AC+16*u,16)}")
                if nx < 10 and u >= 1: wr(nx, u - 1, u)
            if nx < 10: wr(nx, nb - 1, nb)
        MK("c8")
        for j in range(4): A(f"v_add_u32 v{16+j}, s{32+j}, v5")
        for r in range(3): A(f"v_add_u32 v{20+r}, s{36+r}, v5")
        A("v_mov_b32 v13, s27\ns_mov_b32 s63, 7")
        for j in range(4):
            A(f"s_cmp_eq_u32 s54, {j}\ns_cbranch_scc1 {E}_ns{T}{j}")
            for t in range(nb): A(f"ds_write_b128 v{16+j}, {vr(AC+16*t+4*j,4)} offset:{t*1024}")
            A(f"{E}_ns{T}{j}:")
        A(f"""
s_waitcnt lgkmcnt(0)
ds_write_b32 v13, v13
{E}_sp{T}:
ds_read_b32 v1, v{SP}
s_waitcnt lgkmcnt(0)
v_cmp_ne_u32 vcc, 0, v1
s_and_b32 s30, vcc_lo, s63
""")
        for r in range(3):
            A(f"s_bitcmp1_b32 s30, {r}\ns_cbranch_scc0 {E}_nr{T}{r}")
            for t in range(nb): A(f"ds_read_b128 {vr(WB+4*(3*t+r),4)}, v{20+r} offset:{t*1024}")
            A(f"{E}_nr{T}{r}:")
        A(f"""
s_andn2_b32 s63, s63, s30
s_cbranch_scc1 {E}_sp{T}
s_waitcnt lgkmcnt(0)
""")
        MK("c9")
        def fin(qq):
            for t in range(nb):
                a = AC + 16 * t + 4 * qq; r = WB + 12 * t
                for k in range(4): A(f"v_add_f32 v{a+k}, v{a+k}, v{r+k}\nv_add_f32 v{r+4+k}, v{r+4+k}, v{r+8+k}")
                for k in range(4): A(f"v_add_f32 v{a+k}, v{a+k}, v{r+4+k}")
                A(f"v_cvt_pk_bf16_f32 v{a}, v{a}, v{a+1}\nv_cvt_pk_bf16_f32 v{a+1}, v{a+2}, v{a+3}")
                A(f"buffer_store_dwordx2 {vr(a,2)}, v{OA}, s[48:51], s55 offen")
                if t < nb - 1: A("s_add_u32 s55, s55, s53")
            A("s_endpgm")
        for qq in range(4):
            if qq < 3: A(f"s_cmp_lg_u32 s54, {qq}\ns_cbranch_scc1 {E}_fn{T}{qq+1}")
            fin(qq)
            if qq < 3: A(f"{E}_fn{T}{qq+1}:")
        for k in range(10):
            A(f"""
{E}_rt{T}{k}:
s_sub_u32 s62, s62, 1
s_cbranch_scc1 {E}_bk{T}{k}
""")
            if P["rtsl"]: A(f"s_sleep {P['rtsl']}")
            for kk in range(k, 10): load(kk)
            A(f"s_waitcnt vmcnt({later(k)})\ns_branch {E}_ck{T}{k}")
    A(f"""
{E}_fb:
s_waitcnt lgkmcnt(0)
v_lshlrev_b32 v5, 4, v2
v_lshlrev_b32 v6, 4, v4
v_mul_u32_u24 v7, {SV}, v3
v_lshl_add_u32 v7, v4, 4, v7
v_add_u32 v15, {2*SV}, v7
v_mov_b32 v1, 0xff800000
s_add_u32 s18, s16, 40960
s_mov_b32 s26, s18
s_mov_b32 s27, 64
{E}_fb1:
s_add_u32 s30, s26, s17
buffer_load_dwordx4 {vr(KM,4)}, v5, s[44:47], s26 offen{SC}
buffer_load_dwordx2 {vr(KR,2)}, v6, s[44:47], s30 offen{SC}
s_waitcnt vmcnt(0)
v_mfma_f32_32x32x16_bf16 {vr(S[0],16)}, {vr(KM,4)}, {vr(QM,4)}, 0
v_mfma_f32_32x32x8_bf16 {vr(S[0],16)}, {vr(KR,2)}, {vr(QR,2)}, {vr(S[0],16)}
""")
    for k in range(8): A(f"v_max3_f32 v1, v1, v{S[0]+2*k}, v{S[0]+2*k+1}")
    A(f"""
s_add_u32 s26, s26, {TS}
s_sub_u32 s27, s27, 1
s_cmp_lg_u32 s27, 0
s_cbranch_scc1 {E}_fb1
v_mov_b32 v14, v1
v_permlane32_swap_b32 v1, v14
v_max_f32 v1, v1, v14
""")
    for i in range(16): A(f"v_sub_f32 v{CB+i}, 0, v1\nv_mov_b32 v{O+i}, 0")
    A(f"""
s_mov_b32 s26, s18
s_mul_i32 s28, s14, 320
s_add_u32 s28, s28, {QF + VOFF}
s_mov_b32 s27, 64
{E}_fb2:
s_add_u32 s30, s26, s17
buffer_load_dwordx4 {vr(KM,4)}, v5, s[44:47], s26 offen{SC}
buffer_load_dwordx2 {vr(KR,2)}, v6, s[44:47], s30 offen{SC}
s_mov_b64 exec, s[22:23]
buffer_load_dwordx4 {vr(V0,4)}, v7, s[44:47], s28 offen{SC}
buffer_load_dwordx4 {vr(V1,4)}, v15, s[44:47], s28 offen{SC}
s_mov_b64 exec, -1
s_waitcnt vmcnt(0)
""")
    M1(0); M2(0)
    Ex(0, *range(16)); Cv(0, *range(8))
    A(f"""
v_mfma_f32_32x32x16_bf16 {vr(O,16)}, {vr(V0,4)}, {vr(S[0],4)}, {vr(O,16)}
v_mfma_f32_32x32x16_bf16 {vr(O,16)}, {vr(V1,4)}, {vr(S[0]+8,4)}, {vr(O,16)}
s_add_u32 s26, s26, {TS}
s_add_u32 s28, s28, {TS}
s_sub_u32 s27, s27, 1
s_cmp_lg_u32 s27, 0
s_cbranch_scc1 {E}_fb2
s_nop 15
s_branch {E}_epi
""")
    A(f"{E}_ffn:")
    head_scalars()
    A("v_lshlrev_b32 v5, 4, v2")
    PA = 64
    poll_addr(PA, 30, 31)
    dma_addr(20, 21, 22, 17, 18)
    A(f"s_mov_b32 s19, {G0*4*TS}")
    WA, FX, FP, XA = 76, 79, 84, 85
    HA, WFA = 65, 66
    A(f"""
v_lshrrev_b32 v{FP}, {LF}, v2
v_and_b32 v16, {(1 << LF) - 1}, v2
v_lshlrev_b32 v{FP}, 7, v{FP}
v_lshl_add_u32 v{FP}, v16, 2, v{FP}
v_mov_b32 v16, {108*128}
s_lshr_b32 s14, s40, 1
s_lshl_b32 s14, s14, 3
s_and_b32 s24, s41, 7
s_add_u32 s14, s14, s24
s_lshl_b32 s56, s14, {13 - LF}
s_add_u32 s56, s56, {FL2}
s_mul_i32 s30, s14, {27*128}
s_add_u32 s30, s30, {FH}
v_min_u32 v{HA}, 26, v4
v_lshl_add_u32 v{HA}, v{HA}, 7, s30
s_lshl_b32 s14, s14, 1
s_bfe_u32 s25, s41, 0x10003
s_xor_b32 s15, s25, 1
s_add_u32 s15, s15, s14
s_add_u32 s14, s14, s25
s_and_b32 s27, s40, 1
s_lshl_b32 s27, s27, 1
s_lshr_b32 s16, s41, 4
s_add_u32 s27, s27, s16
s_mul_i32 s30, s27, 108
s_add_u32 s30, s30, s29
s_lshl_b32 s30, s30, 7
s_add_u32 s30, s30, {FW}
v_min_u32 v{WFA}, 26, v4
v_lshl_add_u32 v{WFA}, v{WFA}, 9, s30
v_mad_u32_u24 v{WFA}, v3, v16, v{WFA}
s_and_b32 s24, s41, 15
s_mul_i32 s24, s24, 27
s_lshr_b32 s24, s24, 4
s_mul_i32 s24, s24, {P['frot']}
s_add_u32 s20, s17, {HF}
s_mul_i32 s23, s29, 20480
s_mul_i32 s28, s27, 5120
s_add_u32 s23, s23, s28
s_add_u32 s23, s23, {W2F}
s_add_u32 s22, s20, {27*4096}
s_lshl_b32 s16, s24, 12
s_add_u32 s16, s16, s20
s_mul_i32 s26, s24, 81920
s_add_u32 s26, s26, s23
s_mul_i32 s30, s14, {108*1024}
s_mul_i32 s31, s15, {108*1024}
v_add_u32 v8, s30, v5
v_add_u32 v9, s31, v5
s_lshl_b32 s30, s25, 12
s_lshl_b32 s31, s25, 11
s_add_u32 s31, s31, 1024
v_add_u32 v10, s30, v5
v_add_u32 v11, s31, v5
v_add_u32 v12, 2048, v5
v_mov_b32 v7, s29
v_lshlrev_b32 v7, 2, v7
v_and_b32 v1, 7, v2
v_lshlrev_b32 v1, 2, v1
v_and_b32 v15, 12, v1
v_mul_u32_u24 v{XA}, 1280, v4
v_lshl_add_u32 v{XA}, v3, 3, v{XA}
s_mul_i32 s52, s27, 320
s_lshl_b32 s53, s29, 4
s_add_u32 s53, s53, s52
s_mul_i32 s54, s14, 40960
s_mul_i32 s55, s15, 40960
s_add_u32 s54, s54, s53
s_add_u32 s55, s55, s53
s_lshl_b32 s57, s25, 8
s_lshl_b32 s58, s25, 7
s_add_u32 s52, s52, s57
s_sub_u32 s59, 64, s58
s_add_u32 s58, s58, 64
s_add_u32 s30, s55, s57
s_add_u32 s31, s55, s58
s_add_u32 s32, s54, s57
s_add_u32 s33, s54, s58
s_add_u32 s34, s54, 128
s_sub_u32 s54, s29, 1
s_add_u32 s53, s59, 204800
s_mul_i32 s53, s53, s54
s_add_u32 s52, s52, s53
s_mul_i32 s53, s54, 40960
s_add_u32 s53, s53, {WO}
v_lshrrev_b32 v16, 2, v2
v_and_b32 v17, 3, v2
v_mul_u32_u24 v16, 1280, v16
v_lshl_add_u32 v{WA}, v17, 4, v16
s_mul_i32 s54, s29, 5120
s_add_u32 s54, s54, {PR}
v_add_u32 v{FX}, s54, v5
s_sub_u32 s60, s59, 184320
s_lshl_b32 s61, s59, 1
s_sub_u32 s61, 20480, s61
s_cmp_eq_u32 s29, 3
s_cselect_b32 s54, 9, 0
s_cselect_b32 s55, 10, 0
s_cselect_b32 s63, 11, 0
s_cselect_b32 s3, 12, 0
s_cselect_b32 s62, 13, 0
s_cselect_b32 s57, s61, s60
s_cmp_eq_u32 s29, 2
s_cselect_b32 s62, 9, s62
s_cselect_b32 s58, s61, s60
s_cmp_eq_u32 s29, 1
s_cselect_b32 s59, s61, s60
v_mov_b32 v6, {RLY}
s_mov_b32 s10, {P['spin']}
s_mov_b32 s8, 0
""")
    MK("lS")
    A(f"s_waitcnt lgkmcnt(0)\ns_barrier\nds_read_b32 v0, v6 offset:4")
    MK("lB")
    C1 = P["c1"]
    def flag(v): A(f"v_mov_b32 v0, {v}\nds_write_b32 v7, v0")
    A("s_waitcnt lgkmcnt(0)\nv_readfirstlane_b32 s8, v0")
    def gwait(G):
        m = (3 << (2 * G)) & 0xffffffff
        A(f"""
{E}_gw{G}:
s_and_b32 s9, s8, {hex(m)}
s_cmp_eq_u32 s9, {hex(m)}
s_cbranch_scc1 {E}_gg{G}
buffer_load_dwordx4 v[68:71], v{PA}, s[44:47], 0 offen sc1
s_waitcnt vmcnt(0)
v_min_u32 v69, v69, v70
v_cmp_ne_u32 s[8:9], 0, v69
s_and_b32 s8, s8, s9
s_sub_u32 s10, s10, 1
s_cselect_b32 s8, -1, s8
s_cselect_b32 s10, 0, s10
s_branch {E}_gw{G}
{E}_gg{G}:
""")
    nst = 0
    for G in range(G0, 16):
        gwait(G); dma(G, 17, 18, "s19")
        if G < 15: A(f"s_add_u32 s19, s19, {4*TS}")
        if G == P["w2g"]:
            if P["now2"]: A("s_mov_b32 s9, s66\ns_mov_b32 s66, 0")
            for c in range(4): A(f"buffer_store_dwordx4 {vr(88+4*c,4)}, v5, s[64:67], s69 offen offset:{1024*c}{ST}")
            if P["now2"]: A("s_mov_b32 s66, s9")
        if G == 2 + P["c0"]:
            n = 4 * P["c0"] + (4 if 2 <= P["w2g"] <= G else 0)
            A(f"s_waitcnt vmcnt({n})"); flag(F_G1)
        if G == 5 + C1:
            n = 4 * C1 + (4 if 5 <= P["w2g"] <= G else 0)
            A(f"s_waitcnt vmcnt({n})"); flag(F_G5); MK("l4")
    A(f"""
s_waitcnt vmcnt({4 * (15 - P["w2g"])})
v_mov_b32 v0, 1
s_mov_b64 exec, 1
buffer_store_dword v0, off, s[64:67], s68 sc1
s_mov_b64 exec, -1
""")
    if P["hgate"]:
        A("s_waitcnt vmcnt(1)"); flag(F_ALL)
        A(f"""
{E}_hq:
ds_read_b32 v0, v1 offset:64
s_waitcnt lgkmcnt(0)
v_cmp_gt_u32 vcc, {P['hgate']}, v0
s_cbranch_vccz {E}_hw
s_sleep 4
s_branch {E}_hq
""")
    A(f"""
{E}_hw:
buffer_load_dword v68, v{HA}, s[44:47], 0 offen sc1
buffer_load_dword v69, v{WFA}, s[44:47], 0 offen sc1
s_waitcnt vmcnt(2)
""")
    flag(F_ALL)
    A(f"""
s_waitcnt vmcnt(0)
v_min_u32 v68, v68, v69
v_cmp_eq_u32 s[8:9], 0, v68
s_or_b32 s8, s8, s9
s_and_b32 s8, s8, 0x7ffffff
s_cbranch_scc0 {E}_hg
s_sub_u32 s10, s10, 1
s_cselect_b32 s10, 0, s10
s_cbranch_scc1 {E}_hg
s_sleep {P['hsl']}
s_branch {E}_hw
{E}_hg:
""")
    MK("lH")
    ACC = 88
    class VQ_:
        def __init__(s): s.q = []
        def op(s, tag, txt): A(txt); s.q.append(tag)
        def need(s, *tags):
            idx = max([i for i, t in enumerate(s.q) if t in tags], default=-1)
            if idx >= 0:
                A(f"s_waitcnt vmcnt({len(s.q) - 1 - idx})"); s.q = s.q[idx + 1:]
    VQ = VQ_()
    addr = {0: (9, 16), 1: (10, 26), 2: (11, 26), 3: (12, 26), 4: (8, 16)}
    def fl(i, j):
        b = 16 + 20 * (i % 3)
        VQ.op((i, j), f"buffer_load_dwordx4 {vr(b+4*j,4)}, v{addr[j][0]}, s[44:47], s{addr[j][1]} offen{P['fsc']}")
        if j == 4: A("s_add_u32 s16, s16, 4096\ns_add_u32 s26, s26, 81920\ns_cmp_eq_u32 s16, s22\ns_cselect_b32 s16, s20, s16\ns_cselect_b32 s26, s23, s26")
    for i in range(3):
        for j in range(5): fl(i, j)
    A(f"s_setprio {P['prio_ffn']}")
    blk = [(0, 1), (0, 2), (4, 1), (4, 2), (4, 3)]
    after = {1: [0], 2: [1], 3: [2], 4: [3, 4]}
    for i in range(27):
        b = 16 + 20 * (i % 3)
        for t, (hj, wj) in enumerate(blk):
            VQ.need((i, hj), (i, wj))
            c = "0" if i == 0 else vr(ACC + 16 * t, 16)
            A(f"v_mfma_f32_32x32x16_bf16 {vr(ACC+16*t,16)}, {vr(b+4*wj,4)}, {vr(b+4*hj,4)}, {c}")
            if i + 3 < 27:
                for j in after.get(t, []): fl(i + 3, j)
    RED = 2560
    MK("l2")
    A(f"s_setprio {P['prio_red']}")
    for q in range(4):
        A(f"s_sub_u32 s16, s29, {q+1}\ns_and_b32 s16, s16, 3\ns_mul_i32 s16, s16, 5120\ns_add_u32 s16, s16, {RED + q*15360}\nv_add_u32 v{8+q}, s16, v5")
    A(f"""
s_mul_i32 s17, s29, 15360
s_add_u32 s17, s17, {RED}
v_add_u32 v12, s17, v5
s_mov_b32 s48, s4
s_mov_b32 s49, s5
s_mov_b32 s50, 2621440
s_mov_b32 s51, 0x20000
s_mov_b32 s36, 0xffff0000
""")
    npw = [0]
    def pwait(reg, off, thr, sl=2):
        k = npw[0]; npw[0] += 1
        A(f"""
{E}_pw{k}:
ds_read_b32 v0, v{reg} offset:{off}
s_waitcnt lgkmcnt(0)
v_cmp_gt_u32 vcc, {thr}, v0
s_cbranch_vccz {E}_pwd{k}
s_sleep {sl}
s_branch {E}_pw{k}
{E}_pwd{k}:
""")
    pwait(1, 64, 2 * P["T1"], 4)
    for q in range(4):
        A(f"s_cmp_eq_u32 s29, {q}\ns_cbranch_scc1 {E}_nx{q}")
        for t in range(5): A(f"ds_write_b128 v{8+q}, {vr(ACC+16*t+4*q,4)} offset:{t*1024}")
        A(f"{E}_nx{q}:")
    flag(F_RW)
    pwait(15, 0, F_RW, 1)
    for t in range(5):
        for jj in range(3):
            A(f"ds_read_b128 {vr(16+12*t+4*jj,4)}, v12 offset:{jj * 5120 + t * 1024}")
    def perq(tag, body):
        for q in range(4):
            if q < 3: A(f"s_cmp_lg_u32 s29, {q}\ns_cbranch_scc1 {E}_{tag}{q+1}")
            body(q)
            if q < 3: A(f"s_branch {E}_{tag}d\n{E}_{tag}{q+1}:")
        A(f"{E}_{tag}d:")
    xr = lambda q, t: ACC + 16 * t + 4 * ((q + 1) & 3)
    perq("x", lambda q: [A(f"buffer_load_dwordx2 {vr(xr(q,t),2)}, v{XA}, s[48:51], s{30+t} offen") for t in range(5)])
    A("s_waitcnt lgkmcnt(0)"); flag(F_RR)
    MK("l7")
    A(f"""
s_setprio 3
s_mov_b32 s48, s6
s_mov_b32 s49, s7
s_mov_b32 s50, 819200
""")
    def fin(q):
        for t in range(5):
            b = 16 + 12 * t; o = ACC + 16 * t + 4 * q; x = xr(q, t)
            for k in range(4): A(f"v_add_f32 v{b+k}, v{b+k}, v{o+k}")
            for k in range(2): A(f"v_lshlrev_b32 v{o+2*k}, 16, v{x+k}\nv_and_b32 v{o+2*k+1}, s36, v{x+k}")
            for k in range(4): A(f"v_add_f32 v{b+4+k}, v{b+4+k}, v{b+8+k}")
            for k in range(4): A(f"v_add3_f32 v{b+k}, v{b+k}, v{b+4+k}, v{o+k}" if False else f"v_add_f32 v{b+k}, v{b+k}, v{b+4+k}")
            for k in range(4): A(f"v_add_f32 v{b+k}, v{b+k}, v{o+k}")
    def adds(n):
        A(f"s_setprio {P['prio_add']}\ns_waitcnt vmcnt({n})"); perq("fin", fin); A("s_setprio 3")
    A(f"s_cmp_eq_u32 s29, 0\ns_cbranch_scc1 {E}_nd")
    pwait(15, 0, F_RR, 1)
    for m in range(40):
        if m in (0, 9, 19, 29, 39): pwait(1, 64, {0: "s54", 9: "s55", 19: "s63", 29: "s3", 39: "s62"}[m], P['wsl'])
        A(f"s_add_u32 m0, s53, {m*1024}\nbuffer_load_dwordx4 v{WA}, s[48:51], s52 offen lds")
        if m % 10 < 9: A("s_add_u32 s52, s52, 20480")
        elif m < 39: A(f"s_add_u32 s52, s52, s{57 + m // 10}")
    MK("l8")
    A(f"s_waitcnt vmcnt(0)\n{E}_nd:"); flag(F_WO)
    A(f"s_cmp_eq_u32 s29, 0\ns_cbranch_scc1 {E}_pl")
    adds(0)
    def fxw():
        for t in range(5): A(f"ds_write_b128 v{FX}, {vr(16+12*t,4)} offset:{t*1024}")
        flag(F_FX)
    pwait(1, 64, 16, P['rsl'])
    fxw()
    A(f"s_waitcnt lgkmcnt(0)\ns_endpgm\n{E}_pl:")
    PV = 80
    A(f"s_waitcnt vmcnt(0)\nv_mov_b32 v{PV}, 0\nv_mov_b32 v6, 0\ns_mov_b32 s57, {P['spin']}\ns_mov_b32 s58, 0\ns_mov_b32 s59, 0")
    if P["pgate"]: pwait(1, 64, P["pgate"], P['wsl'])
    A(f"""
{E}_rp:
s_sub_u32 s59, s59, 1
s_cbranch_scc0 {E}_np
s_mov_b32 s59, {P['pper']}
s_waitcnt vmcnt({P['pd'] - 1})
buffer_load_dword v{PV}, v{FP}, s[44:47], s56 offen{P['psc']}
{E}_np:
ds_read_b32 v0, v1 offset:64
v_cmp_ne_u32 s[60:61], 0, v{PV}
s_sub_u32 s57, s57, 1
s_cselect_b64 s[60:61], -1, s[60:61]
s_cselect_b32 s57, 0, s57
v_mov_b32 v8, s60
v_mov_b32 v9, s61
ds_write_b64 v6, v[8:9] offset:{MSK}
s_cmp_lg_u32 s58, 0
s_cbranch_scc1 {E}_rr
s_waitcnt lgkmcnt(1)
v_cmp_gt_u32 vcc, 16, v0
s_cbranch_vccnz {E}_rs
""")
    fin(0); fxw()
    A(f"""
s_mov_b32 s58, 1
{E}_rr:
s_cmp_eq_u64 s[60:61], -1
s_cbranch_scc1 {E}_go
{E}_rs:
s_sleep {P['rsl']}
s_branch {E}_rp
{E}_go:
s_waitcnt vmcnt(0) lgkmcnt(0)
{E}_end:
s_endpgm
""")
    A.end(name, 168, 72)
```

```python
from asmlib import *
from layout import *

NP = 4
DEF = dict(cpf=None, kpar=0, kbit=0, krot=(1, 4), st=" sc1", lprio=3, gtab=None, cntp=8, eprio=3,
           offs=96.0, T1=4, prio_ffn=0, prio_red=1, prio_add=0, c1=3, prios=(3, 2, 1, 0), rot=0, frot=1,
           order="M1 E8 E9 C0 C1 E10 E11 M2 K C2 C3 E12 E13 E14 E15 M3 C4 C5 N0 N1 C6 C7 N2 N3 M4 V N4 N5 N6 N7", npre=8,
           osc=" sc1", lsc=" sc1", psl=2, spin=2000000, rsl=1, wsl=8, G0=2, hint=(7, 4), bq=2, pgate=13, rtsl=0, pd=1, pper=12,
           psc=' sc1', hsc=' sc1', qsl=1, hst=(0, 0, 1, 1, 2, 2, 3, 3), ofp=5, hfl=(0, 7), w2g=5, marks=None, hsl=2, noh=0, noof=0, now2=0, dsc=' sc1', fsc=' sc1', qdel=0, hgate=2,
           n=5, init=6, lord=None, ss=None, qtry=99, cntl=32, qprio=1, hprio=1, pw=3, sched=((0, 1), (2, 3), (4, 5), ()), pk=1,
           pf=None, pf2=None, dsl=1, qsp=0, rws=2, nold=0, nostat=0, D=2, bj=0, fj=0, schb=((0, 1), (2, 3), (4, 5), ()), csx=(38, 1),
           c0=3, xb=81920, wb=16384, ub=16384, show=0, sprio=(None, None), prp=(0, 1, 2), pgw=0, w2t=None, w2at=None)
WO = 1024; PR = 143360; MSK = 96; SENT = 128; FREE = 123904
LAND = 160; DONE = 176; PUB = 192; CSF = 208; RLY = 224
F_G1, F_G5, F_ALL, F_RW, F_RR, F_WO, F_FX = 1, 2, 3, 4, 5, 6, 7
LF = 2
HD = [0, 0, 0, 1, 2, 2, 2, 3, 4, 4, 4, 4, 5, 5, 5, 5]
H1 = (2, 3, 6, 7, 11)

def gen_f(A, name, P=None):
    P = dict(DEF, **(P or {}))
    XS = 1024; RB = 1536; CSQ = 2048
    N = P["n"]; TEND = 19 - N
    tx = lambda k: k if k < N else 10 + k - N
    last = lambda it: it[1] if it[0] == "w" else tx(it[1])
    lord = P["lord"]
    if lord is None:
        lord = [(kd, k) for k in range(N) for kd in "xwu"] + [(kd, k) for k in range(N, 10) for kd in "xw"] + [("u", k) for k in range(N, 10)]
        if N == 5: lord.remove(("u", 5)); lord.insert(lord.index(("x", 9)), ("u", 5))
    else: lord = [(t[0], int(t[1:])) for t in lord.split()]
    assert sorted(lord) == sorted((kd, k) for kd in "xwu" for k in range(10))
    SLOT = {}; EV = {}; avail = list(range(1, 10)); todo = list(lord); occ = {}
    for ev in range(-2, TEND + 1):
        avail += [SLOT[it] for it in SLOT if last(it) == ev]
        while todo and avail and not (ev == -2 and len(SLOT) >= P["init"]):
            it = todo.pop(0)
            late = last(it) >= 10
            win = {"x": P["xb"], "w": P["wb"], "u": P["ub"]}[it[0]] // 16384
            sl = min(avail, key=lambda q: (late and q == 1, not win <= q < win + 4, -q if late else q))
            avail.remove(sl); SLOT[it] = sl; EV[it] = ev; occ[sl] = last(it)
    assert not todo
    SS = P["ss"] or [[t] for t in range(N - 1)] + [[N - 1, N]] + [[t + 1] for t in range(N, 9)] + [[]]
    assert sorted(sum(SS, [])) == list(range(10)) and not SS[9]
    for t in range(10):
        for k in SS[t]: assert EV[("x", k)] <= t - 2 and t <= last(("x", k)), (t, k)
        for it in [("x", t), ("w", t)] + ([("u", t)] if t < N else []): assert EV[it] <= t - 2, it
    assert EV[("u", N)] <= 8
    S1LAST = max(occ[1], 10)
    dead = sorted(range(2, 10), key=lambda q: occ[q])
    W2S, CSS = dead[0], dead[1]
    assert occ[CSS] <= TEND - 3
    if P["show"]: print({ev: [f"{k}{i}@{SLOT[(k, i)]}" for (k, i) in lord if EV[(k, i)] == ev] for ev in sorted(set(EV.values()))}, occ, W2S, CSS)
    ST = P["st"]; SC = " sc1"
    G0 = P["G0"]
    A.begin(name)
    E = "L_f"
    def MK(tag):
        if P["marks"] and tag in P["marks"]: A(f"; MARK {P['marks'][tag]}")
    hd = sum(v << (4 * i) for i, v in enumerate(HD))
    GT = ""
    if P["gtab"]:
        t = sum(v << (4 * i) for i, v in enumerate(P["gtab"]))
        GT = f"s_lshl_b32 s15, s15, 2\ns_mov_b32 s16, {hex(t & 0xffffffff)}\ns_mov_b32 s17, {hex(t >> 32)}\ns_lshr_b64 s[16:17], s[16:17], s15\ns_and_b32 s15, s16, 15"
    CP = ""
    if P["cpf"]:
        n0, n1 = P["cpf"]
        CP = f"""s_getpc_b64 s[42:43]
{E}_pc:
s_lshr_b32 s3, s2, 3
s_mul_i32 s3, s3, {n1}
v_mov_b32 v3, s3
v_cmp_gt_u32 vcc, {n0}, v0
v_cndmask_b32 v3, v3, 0, vcc
v_add_lshl_u32 v3, v3, v0, 7
v_min_u32 v3, {E}_end-{E}_pc, v3
v_mov_b32 v5, s43
v_add_co_u32 v4, vcc, s42, v3
v_addc_co_u32 v5, vcc, 0, v5, vcc
v_cmp_gt_u32 vcc, {n0 + n1}, v0
s_and_b64 exec, exec, vcc
s_cbranch_execz {E}_np0
global_load_dword v167, v[4:5], off
{E}_np0:
s_mov_b64 exec, -1"""
    A(f"""
s_cmp_ge_u32 s2, 256
s_cbranch_scc1 {E}_end
{CP}
s_load_dwordx4 s[4:7], s[0:1], 0
s_load_dwordx4 s[8:11], s[0:1], 32
s_load_dwordx2 s[12:13], s[0:1], 64
s_load_dwordx4 s[64:67], s[0:1], 48
v_lshrrev_b32 v1, 6, v0
v_and_b32 v2, 63, v0
s_and_b32 s40, s2, 7
s_lshr_b32 s41, s2, 3
v_readfirstlane_b32 s29, v1
s_and_b32 s14, s40, 1
s_lshl_b32 s14, s14, 3
s_and_b32 s15, s41, 7
s_add_u32 s14, s14, s15
s_lshr_b32 s15, s40, 1
s_lshl_b32 s15, s15, 2
s_lshr_b32 s16, s41, 3
s_add_u32 s15, s15, s16
{GT}
s_lshl_b32 s17, s15, 2
s_mov_b32 s18, {hex(hd & 0xffffffff)}
s_mov_b32 s19, {hex(hd >> 32)}
s_lshr_b64 s[18:19], s[18:19], s17
s_and_b32 s18, s18, 15
s_lshl_b32 s17, s15, 1
s_sub_u32 s19, s17, s18
s_mov_b32 s18, {sum(1 << g for g in H1)}
s_bitcmp1_b32 s18, s15
s_cselect_b32 s18, 1, 2
s_mov_b32 s46, {WS_BYTES}
s_mov_b32 s47, 0x20000
s_cmp_lt_u32 s29, 8
s_cbranch_scc1 {E}_comp
""")
    ra, rb = P["krot"]
    A(f"""
s_setprio {P['lprio']}
s_sub_u32 s29, s29, 8
s_mov_b32 s22, 2621440
s_mov_b32 s23, 0x20000
s_mov_b32 s27, 0x20000
s_mov_b32 s50, 2211840
s_mov_b32 s51, 0x20000
s_cmp_lt_u32 s15, 15
s_cselect_b32 s26, 2457600, 0
v_lshrrev_b32 v3, 3, v2
s_lshl_b32 s30, s29, 5
s_lshl_b32 s31, s14, 7
s_add_u32 s30, s30, s31
v_add_u32 v3, s30, v3
v_lshrrev_b32 v4, 4, v2
v_and_b32 v5, 7, v2
v_xor_b32 v6, v5, v4
v_xor_b32 v7, 4, v6
s_movk_i32 s32, 1280
v_mul_lo_u32 v3, v3, s32
v_lshl_add_u32 v10, v6, 4, v3
v_lshl_add_u32 v11, v7, 4, v3
v_add_u32 v11, 10240, v11
v_and_b32 v5, 15, v2
v_lshlrev_b32 v6, 2, v4
v_xor_b32 v5, v5, v6
s_lshl_b32 s30, s29, 4
v_add_u32 v4, s30, v4
v_mul_u32_u24 v6, 3840, v4
v_mul_u32_u24 v7, 3456, v4
s_lshl_b32 s31, s17, 7
s_lshl_b32 s33, s19, 7
v_lshl_add_u32 v6, v5, 4, v6
v_lshl_add_u32 v7, v5, 4, v7
v_add_u32 v12, s31, v6
v_add_u32 v44, s33, v7
s_lshl_b32 s33, s18, 3
v_mov_b32 v8, 0x7fffffff
v_cmp_gt_u32 vcc, s33, v5
s_lshr_b32 s35, s40, 1
s_mul_i32 s35, s35, {ra}
s_and_b32 s36, s40, 1
s_mul_i32 s36, s36, {rb}
s_add_u32 s35, s35, s36
s_bfe_u32 s36, s41, {0x10000 + P['kbit']}
s_mul_i32 s36, s36, {P['kpar']}
s_add_u32 s35, s35, s36
s_cmp_ge_u32 s35, 10
s_cselect_b32 s36, 10, 0
s_sub_u32 s35, s35, s36
""")
    for j in range(1, 4): A(f"v_add_u32 v{12+j}, {j*4*3840}, v12\nv_add_u32 v{44+j}, {j*4*3456}, v44")
    for j in range(4): A(f"v_cndmask_b32 v{44+j}, v8, v{44+j}, vcc")
    A(f"""
s_mul_i32 s36, s35, {64*3840}
s_mul_i32 s39, s35, {64*3456}
s_lshl_b32 s35, s35, 7
s_lshl_b32 s37, s29, 12
s_waitcnt lgkmcnt(0)
s_mov_b32 s20, s4
s_mov_b32 s21, s5
s_mov_b32 s24, s6
s_mov_b32 s25, s7
s_mov_b32 s48, s8
s_mov_b32 s49, s9
""")
    if P["nold"]: A("s_mov_b32 s22, 0\ns_mov_b32 s26, 0\ns_mov_b32 s50, 0")
    class VQ_:
        def __init__(s): s.q = []
        def op(s, tag, txt): A(txt); s.q.append(tag)
        def need(s, *tags):
            idx = max([i for i, t in enumerate(s.q) if t in tags], default=-1)
            if idx >= 0:
                A(f"s_waitcnt vmcnt({len(s.q) - 1 - idx})"); s.q = s.q[idx + 1:]
    LQ = VQ_()
    def ld(kind, st):
        base = SLOT[(kind, st)] * 16384
        o = []
        for j in range(4):
            if kind == "x": t = f"buffer_load_dwordx4 v{10+(j&1)}, s[20:23], s{35 if j < 2 else 30} offen lds"
            elif kind == "w": t = f"buffer_load_dwordx4 v{12+j}, s[24:27], s36 offen lds"
            else: t = f"buffer_load_dwordx4 v{44+j}, s[48:51], s39 offen lds"
            t = f"s_add_u32 m0, s37, {base + j*1024}\n" + t
            if kind == "x" and j == 0: t = "s_add_u32 s30, s35, 20480\n" + t
            if j == 3:
                r, d = {"x": (35, 128), "w": (36, 64*3840), "u": (39, 64*3456)}[kind]
                t += f"\ns_add_u32 s{r}, s{r}, {d}\ns_cmp_eq_u32 s{r}, {10*d}\ns_cselect_b32 s{r}, 0, s{r}"
            o.append(((kind, st), t))
        return o
    def issue_at(f, fill=(), sp=None):
        ps = sum([ld(*l) for l in lord if EV[l] == f], [])
        fill = list(fill); nf = max(len(ps) - 1, 1); per = (len(fill) + nf - 1) // nf
        if sp is not None: per = 0
        for i, (tag, t) in enumerate(ps):
            LQ.op(tag, t)
            if i >= 1 or len(ps) == 1:
                for o in fill[:per]: A(o)
                fill = fill[per:]
        if sp is not None and fill: fill = [f"s_setprio {sp}"] + fill + [f"s_setprio {P['lprio']}"]
        for o in fill: A(o)
    issue_at(-2)
    A(f"""
s_load_dwordx2 s[6:7], s[0:1], 16
v_mov_b32 v1, 0
v_lshrrev_b32 v0, 2, v2
v_cmp_eq_u32 vcc, {DONE // 16}, v0
v_cndmask_b32 v1, v1, 12, vcc
v_mov_b32 v0, 0x100
v_cmp_eq_u32 vcc, {RLY // 4}, v2
v_cndmask_b32 v1, v1, v0, vcc
v_lshlrev_b32 v7, 2, v2
ds_write_b32 v7, v1
v_and_b32 v1, 3, v2
v_lshlrev_b32 v1, 2, v1
s_lshl_b32 s30, s29, 2
v_mov_b32 v7, s30
""")
    A(f"""
s_mov_b32 s44, s12
s_mov_b32 s45, s13
s_mov_b32 s52, s10
s_mov_b32 s53, s11
s_mov_b32 s55, 0x20000
s_lshl_b32 s57, s29, 8
s_add_u32 s58, s57, s2
s_min_u32 s57, s58, 539
s_mul_i32 s59, s57, 13108
s_lshr_b32 s59, s59, 16
s_mul_i32 s60, s59, 5
s_sub_u32 s60, s57, s60
s_mul_i32 s61, s59, 20480
s_lshl_b32 s62, s60, 8
s_add_u32 s62, s62, s61
s_add_u32 s63, s62, 5120
v_lshrrev_b32 v3, 5, v2
v_and_b32 v4, 31, v2
v_mul_u32_u24 v5, 10240, v3
v_lshl_add_u32 v98, v4, 3, v5
s_cmp_ge_u32 s58, 540
s_cselect_b32 s54, 0, 2211840
s_mov_b32 s64, s12
s_mov_b32 s65, s13
s_mov_b32 s67, 0x20000
s_cselect_b32 s66, 0, {WS_BYTES}
v_lshrrev_b32 v5, 3, v4
v_and_b32 v6, 7, v2
v_lshlrev_b32 v5, 10, v5
v_lshl_add_u32 v5, v6, 6, v5
v_lshl_add_u32 v5, v3, 9, v5
s_add_u32 s34, s37, {W2S * 16384}
v_add_u32 v48, s34, v5
v_lshlrev_b32 v6, 4, v2
v_add_u32 v49, s34, v6
v_add_u32 v50, s37, v6
v_add_u32 v51, 65536, v50
v_add_u32 v52, 131072, v50
s_mov_b32 s56, 0xffff0000
v_and_b32 v53, 3, v2
v_lshrrev_b32 v54, 3, v2
v_lshl_add_u32 v54, v53, 3, v54
s_lshl_b32 s30, s29, 5
v_add_u32 v54, s30, v54
v_lshlrev_b32 v54, 2, v54
s_lshl_b32 s69, s60, 12
s_add_u32 s69, s69, s61
s_add_u32 s69, s69, {W2F}
s_mul_i32 s68, s60, 108
s_add_u32 s68, s68, s59
s_lshl_b32 s68, s68, 7
s_add_u32 s68, s68, {FW}
s_waitcnt lgkmcnt(0)
""")
    W2R = 100
    def w2loads():
        for j in range(8):
            LQ.op("w2", f"buffer_load_dwordx2 {vr(W2R+2*j,2)}, v98, s[52:55], s{62 + (j >> 2)} offen offset:{(j & 3) * 1280}")
    SD, SA, ST_ = 16, 32, 40
    for i in range(8): A(f"v_mov_b32 v{SA+i}, 0")
    def sreads(k, d):
        a = SLOT[("x", k)] * 16384
        return [f"ds_read_b128 {vr(d+4*j,4)}, v{50 + (a >> 16)} offset:{(a & 0xffff) + j*1024}" for j in range(4)]
    def sops(d):
        ops = []
        for i in range(4):
            for jp in range(2):
                for e, j in enumerate((2*jp, 2*jp+1)):
                    x = d + 4*j + i
                    ops += [f"v_lshlrev_b32 v{ST_+2*e}, 16, v{x}", f"v_and_b32 v{ST_+1+2*e}, s56, v{x}"]
                for q in range(2):
                    for e, j in enumerate((2*jp, 2*jp+1)):
                        u = ST_ + 2*e + q
                        ops += [f"v_add_f32 v{SA+2*j}, v{SA+2*j}, v{u}", f"v_fmac_f32 v{SA+1+2*j}, v{u}, v{u}"]
        return ops
    def sfin():
        o = []
        for m in ("quad_perm:[1,0,3,2]", "quad_perm:[2,3,0,1]", "row_half_mirror"):
            for i in range(8): o.append(f"v_add_f32_dpp v{SA+i}, v{SA+i}, v{SA+i} {m} row_mask:0xf bank_mask:0xf")
        for j in range(1, 4):
            o += [f"v_cmp_eq_u32 vcc, {j}, v53", f"v_cndmask_b32 v{SA}, v{SA}, v{SA+2*j}, vcc", f"v_cndmask_b32 v{SA+1}, v{SA+1}, v{SA+1+2*j}, vcc"]
        o += f"""s_mov_b32 s31, 0x3acccccd
s_mov_b32 s32, 0x3727c5ac
v_mul_f32 v{SA}, s31, v{SA}
v_mul_f32 v{SA+2}, v{SA}, v{SA}
v_fma_f32 v{SA+1}, v{SA+1}, s31, -v{SA+2}
v_max_f32 v{SA+1}, 0, v{SA+1}
v_cvt_pk_bf16_f32 v{SA+1}, 0, v{SA+1}
v_add_f32 v{SA+1}, s32, v{SA+1}
v_cvt_pk_bf16_f32 v{SA+1}, 0, v{SA+1}
v_sqrt_f32 v{SA+1}, v{SA+1}
ds_write_b32 v54, v{SA} offset:{XS}
s_nop 0
v_cvt_pk_bf16_f32 v{SA+1}, 0, v{SA+1}
v_rcp_f32 v{SA+1}, v{SA+1}
s_nop 0
ds_write_b32 v54, v{SA+1} offset:{RB}""".split("\n")
        return o
    lastS = max(t for t in range(10) if SS[t])
    def work(t):
        fill = []
        if not P["nostat"]:
            for i, k in enumerate(SS[t]):
                for o in sreads(k, SD if i == 0 else 56 + 16 * (i - 1)): A(o)
            for i, k in enumerate(SS[t]):
                fill += [f"s_waitcnt lgkmcnt({4 * (len(SS[t]) - 1 - i)})"] + sops(SD if i == 0 else 56 + 16 * (i - 1))
        if t == lastS + 1: fill += sfin() + ["s_waitcnt lgkmcnt(0)"]
        issue_at(t - 1, fill, P['sprio'][t >= N])
        if t == P["w2t"]:
            A("v_bfe_u32 v55, v2, 1, 4\nv_mul_u32_u24 v55, 1280, v55\nv_and_b32 v0, 1, v2\nv_lshl_add_u32 v55, v0, 7, v55")
            LQ.op("w2t", "buffer_load_dword v55, v55, s[52:55], s62 offen")
        if t == P["w2at"]: w2loads()
    for st in range(10):
        if st >= 1: work(st - 1)
        MK(f"i{st-1}")
        LQ.need(("x", st), ("w", st), *([("u", st)] if st < N else []), *[("x", k) for k in SS[st]])
        MK(f"a{st-1}")
        A("s_barrier")
        MK(f"s{st-1}")
    work(9)
    LQ.need(("u", N))
    A("s_barrier")
    MK("lA")
    npd = [0]
    def dwait(st):
        k = npd[0]; npd[0] += 1
        A(f"""
{E}_dw{k}:
ds_read_b32 v0, v1 offset:{DONE}
s_waitcnt lgkmcnt(0)
v_cmp_gt_u32 vcc, {st + 3}, v0
s_cbranch_vccz {E}_dx{k}
{"s_sleep " + str(P['dsl']) if P['dsl'] else ""}
s_branch {E}_dw{k}
{E}_dx{k}:
""")
    def land(t):
        LQ.need(("u", t - 10 + N))
        A(f"v_mov_b32 v0, {t}\nds_write_b32 v7, v0 offset:{LAND}")
        MK(f"L{t}")
    lastf = max(EV.values())
    nl = 11
    def lands(ev):
        nonlocal nl
        while nl <= TEND and EV[("u", nl - 10 + N)] <= ev:
            land(nl); nl += 1
    def pubwait():
        A(f"""
{E}_pbw:
ds_read_b32 v0, v1 offset:{PUB}
s_waitcnt lgkmcnt(0)
v_cmp_eq_u32 vcc, 0, v0
s_cbranch_vccz {E}_pbx
s_sleep {P['dsl']}
s_branch {E}_pbw
{E}_pbx:
""")
        MK("lP")
    for ev in range(9, max(lastf, 10) + 1):
        if ev == 10 and P["pgw"]: pubwait()
        if 10 <= ev <= lastf: dwait(ev); MK(f"D{ev}")
        issue_at(ev)
        if ev == max(lastf, 10) and P['w2at'] is None: w2loads()
        lands(ev)
    MK("lL")
    A("s_mov_b32 s30, 0x05040100\ns_mov_b32 s31, 0x07060302")
    LQ.need("w2")
    for c in range(4):
        for k in range(4): A(f"v_perm_b32 v{56+4*c+k}, v{W2R+2+4*k+(c>>1)}, v{W2R+4*k+(c>>1)}, s{30+(c&1)}")
    if occ[W2S] > max(lastf, 9): dwait(occ[W2S])
    for c in range(4): A(f"ds_write_b128 v48, {vr(56+4*c,4)} offset:{16*c}")
    for c in range(4): A(f"ds_read_b128 {vr(88+4*c,4)}, v49 offset:{1024*c}")
    A(f"s_branch {E}_ffn")

    def head_scalars():
        A(f"""
s_lshl_b32 s14, s40, 2
s_lshr_b32 s15, s41, 3
s_add_u32 s14, s14, s15
s_mul_i32 s16, s14, 5
s_add_u32 s16, s16, 1
s_lshr_b32 s16, s16, 1
s_lshl_b32 s16, s16, 9
s_add_u32 s16, s16, {QF}
s_movk_i32 s17, 1024
s_bitcmp1_b32 s14, 0
s_cselect_b32 s17, -504, s17
s_and_b32 s19, s41, 7
s_lshl_b32 s15, s19, 3
s_mul_i32 s19, s19, {8 * TS * P['rot']}
""")
    def poll_addr(dst, t0, t1):
        A(f"""
s_mul_i32 s{t0}, s14, 20
s_add_u32 s{t1}, s{t0}, 19
s_lshr_b32 s{t0}, s{t0}, 6
s_lshr_b32 s{t1}, s{t1}, 6
s_sub_u32 s{t1}, s{t1}, s{t0}
s_lshl_b32 s{t0}, s{t0}, 12
s_add_u32 s{t0}, s{t0}, {FQ}
s_lshl_b32 s{t1}, s{t1}, 12
v_mul_u32_u24 v{dst}, s{t1}, v3
v_lshl_add_u32 v{dst}, v4, 7, v{dst}
v_add_u32 v{dst}, s{t0}, v{dst}
""")
    A(f"""
{E}_comp:
v_lshrrev_b32 v3, 5, v2
v_and_b32 v4, 31, v2
s_and_b32 s52, s29, 1
s_lshr_b32 s53, s29, 1
s_lshl_b32 s30, s52, 1
s_xor_b32 s30, s30, s53
s_mov_b32 s56, 0x3f803f80
s_lshl_b32 s31, s30, 1
v_bfe_u32 v5, v2, 1, 3
v_xor_b32 v5, v5, v3
v_xor_b32 v5, s31, v5
s_lshl_b32 s31, s52, 13
s_add_u32 s31, s31, {P['xb']}
v_lshlrev_b32 v6, 7, v4
v_add_u32 v6, s31, v6
""")
    for pos in range(4):
        A(f"v_xor_b32 v7, {2*pos}, v5\nv_lshl_add_u32 v{16+pos}, v7, 4, v6")
    A(f"""
v_bfe_u32 v5, v2, 2, 2
v_lshl_add_u32 v6, v3, 3, v5
v_lshlrev_b32 v6, 8, v6
v_bfe_u32 v7, v2, 1, 1
v_lshl_add_u32 v6, v7, 3, v6
v_add_u32 v6, {P['wb']}, v6
v_bfe_u32 v7, v2, 4, 1
v_and_b32 v8, 1, v2
v_lshl_add_u32 v7, v7, 1, v8
s_and_b32 s55, s53, 1
s_lshl_b32 s31, s55, 3
v_add_u32 v7, s31, v7
v_lshlrev_b32 v5, 2, v5
v_xor_b32 v7, v7, v5
v_lshl_add_u32 v6, v7, 4, v6
v_xor_b32 v7, 64, v6
""")
    for pos in range(4):
        A(f"s_xor_b32 s31, s30, {pos}\ns_lshl_b32 s31, s31, 12")
        for t in range(2):
            A(f"v_add_u32 v{20+pos*2+t}, s31, v{6+t}")
    A("""
v_and_b32 v5, 15, v2
v_bfe_u32 v6, v2, 4, 1
v_cmp_eq_u32 vcc, v5, v6
v_mov_b32 v5, s56
""")
    for i in range(4): A(f"v_cndmask_b32 v{88+i}, 0, v5, vcc")
    A(f"""
s_lshl_b32 s31, s52, 8
v_lshl_add_u32 v48, v3, 4, s31
s_add_u32 s31, s31, {XS}
v_lshl_add_u32 v9, v4, 2, s31
v_add_u32 v12, {RB - XS}, v9
s_movk_i32 s32, {CSQ}
s_cmp_ge_u32 s29, 4
s_cselect_b32 s32, {CSS * 16384 - 8192}, s32
s_lshl_b32 s33, s29, 11
s_add_u32 s33, s33, s32
v_lshl_add_u32 v7, v2, 4, s33
s_lshl_b32 s33, s53, 12
s_add_u32 s33, s33, s32
v_lshl_add_u32 v8, v3, 11, s33
v_bfe_u32 v5, v2, 4, 1
v_lshl_add_u32 v8, v5, 4, v8
v_bfe_u32 v5, v2, 2, 2
v_lshl_add_u32 v8, v5, 8, v8
v_and_b32 v5, 3, v2
v_lshl_add_u32 v8, v5, 2, v8
v_lshlrev_b32 v5, 4, v2
s_waitcnt lgkmcnt(0)
s_mov_b32 s44, s12
s_mov_b32 s45, s13
s_mov_b32 s48, s64
s_mov_b32 s49, s65
s_mov_b32 s64, s66
s_mov_b32 s65, s67
s_mov_b32 s67, 0x20000
s_mov_b32 s66, 256
v_mov_b32 v49, 1
s_lshl_b32 s31, s15, 3
s_add_u32 s31, s31, s29
s_cmp_eq_u32 s31, {15 * 8}
s_cselect_b32 s42, 1, 0
s_cbranch_scc0 {E}_nclr
s_mul_i32 s31, s14, {140 * 128}
s_add_u32 s31, s31, {FL2}
v_mov_b32 v92, 0
v_mov_b32 v93, 0
v_mov_b32 v94, 0
v_mov_b32 v95, 0
""")
    for n in range(17):
        A(f"buffer_store_dwordx4 v[92:95], v5, s[44:47], s31 offen offset:{(n & 3) * 1024} sc1")
        if n & 3 == 3: A("s_add_u32 s31, s31, 4096")
    A(f"s_mov_b32 exec_hi, 0\nbuffer_store_dwordx4 v[92:95], v5, s[44:47], s31 offen offset:1024 sc1\ns_mov_b64 exec, -1\n{E}_nclr:")
    A("s_mov_b32 s43, s18\ns_mov_b32 s69, s19")
    A(f"""
s_lshl_b32 s39, s14, 2
s_lshl_b32 s31, s52, 1
s_add_u32 s39, s39, s31
s_lshr_b32 s30, s39, 1
s_mov_b32 s32, s12
s_mov_b32 s33, s13
s_mov_b32 s34, 0
s_mov_b32 s35, 0x20000
s_mov_b32 s8, 1.0
s_cmp_ge_u32 s29, 4
s_cbranch_scc1 {E}_ch
s_add_u32 s54, s17, s55
s_cmp_lt_u32 s54, 10
s_cselect_b32 s8, {f32bits(QSCALE)}, s8
s_cselect_b32 s31, 0, 10
s_cselect_b32 s10, 0, 4
s_cmp_ge_u32 s54, 20
s_cselect_b32 s31, 20, s31
s_cselect_b32 s10, 8, s10
s_cselect_b32 s9, 1, 0
s_sub_u32 s31, s54, s31
s_lshl_b32 s6, s31, 12
s_add_u32 s10, s10, s6
s_lshl_b32 s30, s30, 7
s_add_u32 s10, s10, s30
s_add_u32 s10, s10, {FQ}
s_mul_i32 s4, s39, {TS}
s_lshl_b32 s5, s54, 12
s_lshl_b32 s6, s31, 10
s_add_u32 s6, s6, {VOFF}
s_cmp_eq_u32 s9, 1
s_cselect_b32 s5, s6, s5
s_add_u32 s4, s4, s5
s_add_u32 s4, s4, {QF}
s_cmp_eq_u32 s9, 1
s_mov_b32 s5, {TS}
s_cselect_b32 s5, {2*SV}, s5
s_add_u32 s5, s5, s4
s_add_u32 s6, s4, {TS}
s_add_u32 s7, s5, {TS}
s_cmp_ge_u32 s54, 30
s_cselect_b32 s9, 3, s9
s_branch {E}_cj
{E}_ch:
s_add_u32 s54, s19, s55
s_mul_i32 s10, s30, 27
s_add_u32 s10, s10, s54
s_lshl_b32 s10, s10, 7
s_lshl_b32 s31, s54, 2
s_add_u32 s10, s10, {FH}
s_mul_i32 s4, s39, 108
s_add_u32 s4, s4, s31
s_lshl_b32 s4, s4, 10
s_add_u32 s4, s4, {HF}
s_add_u32 s5, s4, {108*1024}
s_mov_b32 s6, 0
s_mov_b32 s7, 0
s_cmp_lt_u32 s55, s18
s_cselect_b32 s9, 2, 3
s_cselect_b32 s34, {WS_BYTES}, 0
{E}_cj:
""")
    head_scalars()
    A(f"""
s_lshr_b32 s11, s15, 1
s_add_u32 s15, s15, s29
s_mul_i32 s20, s15, {TS}
s_add_u32 s20, s20, s16
s_add_u32 s18, s20, s17
s_add_u32 s21, s16, s19
s_add_u32 s21, s21, 40960
s_mul_i32 s60, s15, 40960
s_mul_i32 s61, s14, 1280
s_add_u32 s60, s60, s61
s_add_u32 s60, s60, {OF}
s_sub_u32 s3, s60, 3072
s_lshl_b32 s61, s15, {12 - LF}
s_lshr_b32 s27, s14, {LF}
s_lshl_b32 s27, s27, 7
s_add_u32 s61, s61, s27
s_and_b32 s27, s14, {(1 << LF) - 1}
s_lshl_b32 s27, s27, 2
s_add_u32 s61, s61, s27
s_add_u32 s61, s61, {FL2}
s_lshr_b32 s50, s40, 1
s_lshl_b32 s50, s50, 3
s_and_b32 s51, s41, 7
s_add_u32 s50, s50, s51
s_lshl_b32 s50, s50, 1
s_bfe_u32 s51, s41, 0x10003
s_lshr_b32 s52, s29, 2
s_xor_b32 s53, s51, s52
s_add_u32 s50, s50, s53
s_mul_i32 s54, s52, {P['bq']}
s_xor_b32 s54, s54, s29
s_and_b32 s54, s54, 3
s_lshl_b32 s56, s53, 2
s_add_u32 s56, s56, s54
s_lshl_b32 s56, s56, 3
s_and_b32 s55, s40, 1
s_lshl_b32 s55, s55, 1
s_lshr_b32 s58, s41, 4
s_add_u32 s55, s55, s58
s_mul_i32 s55, s55, 320
s_lshl_b32 s58, s51, 8
s_add_u32 s55, s55, s58
s_lshl_b32 s58, s54, 4
s_add_u32 s55, s55, s58
s_mul_i32 s57, s50, 40960
s_add_u32 s55, s55, s57
s_mul_i32 s59, s54, 10240
s_add_u32 s57, s57, s59
s_add_u32 s57, s57, {OF}
s_mul_i32 s58, s54, 30720
s_add_u32 s58, s58, {WO}
s_mul_i32 s59, s54, 5120
s_add_u32 s59, s59, {PR}
s_lshl_b32 s53, s51, 7
s_sub_u32 s53, 64, s53
s_mov_b32 s50, 2621440
s_mov_b32 s51, 0x20000
""")
    A(f"""
v_cmp_gt_u32 s[22:23], 20, v4
v_cmp_gt_u32 s[24:25], 32, v2
s_cmp_ge_u32 s29, 4
s_cbranch_scc1 {E}_hp
s_setprio {P['qprio']}
""")
    poll_addr(50, 30, 31)
    A(f"""
s_cmp_eq_u32 s9, 1
s_cbranch_scc1 {E}_vloop
""")
    D = P["D"]
    FB = [[56, 60, 64, 68], [72, 76, 80, 84]] if D == 1 else [[72, 76, 80, 84], [56, 60, 64, 68], [28, 32, 36, 164]]
    QL, RL, KL = 52, 14, 92
    def acc(ct, tt): return 96 + (ct * 2 + tt) * 16
    class Q:
        def __init__(s): s.q = []
        def op(s, tag, txt): A(txt); s.q.append(tag)
        def need(s, *tags):
            idx = max([i for i, t in enumerate(s.q) if t in tags], default=-1)
            if idx >= 0:
                A(f"s_waitcnt lgkmcnt({len(s.q) - 1 - idx})"); s.q = s.q[idx + 1:]
        def drain(s):
            if s.q: A("s_waitcnt lgkmcnt(0)"); s.q = []
    def rd(L, s0, p, i):
        s, pos = p >> 2, p & 3
        x0, x1, w0, w1 = FB[p % (D + 1)]
        isx = i in (0, 3)
        r = 16 + pos if isx else 20 + pos * 2 + (i >= 4)
        a = SLOT[("x" if isx else s0, s)] * 16384
        if not 0 <= a - L.cur[r] <= 49152:
            nb = a if a < L.cur[r] else a - 49152
            A(f"v_add_u32 v{r}, {(nb - L.cur[r]) & 0xffffffff}, v{r}"); L.cur[r] = nb
        o = a - L.cur[r]
        L.op((p, i), [f"ds_read_b128 {vr(x0,4)}, v{r} offset:{o}",
                      f"ds_read_b64_tr_b16 {vr(w0,2)}, v{r} offset:{o}",
                      f"ds_read_b64_tr_b16 {vr(w0+2,2)}, v{r} offset:{o+1024}",
                      f"ds_read_b128 {vr(x1,4)}, v{r} offset:{o+4096}",
                      f"ds_read_b64_tr_b16 {vr(w1,2)}, v{r} offset:{o}",
                      f"ds_read_b64_tr_b16 {vr(w1+2,2)}, v{r} offset:{o+1024}"][i])
    def prep():
        o = []
        for t in range(2):
            c = 10 + t; h = 56 + 4 * t
            o.append(f"""v_cvt_pk_bf16_f32 v{h+2}, 0, v{c}
v_cvt_pk_bf16_f32 v{64+2*t}, -v{160+t}, -v{160+t}
v_sub_f32 v{h+2}, v{c}, v{h+2}
v_cvt_pk_bf16_f32 v{65+2*t}, -v{160+t}, 0
v_cvt_pk_bf16_f32 v{h+3}, 0, v{h+2}
v_cvt_pk_bf16_f32 v{h}, v{c}, v{h+2}
v_sub_f32 v{h+3}, v{h+2}, v{h+3}
v_cvt_pk_bf16_f32 v{h+1}, v{h+3}, 0""".split("\n"))
        return [x for pr in zip(*o) for x in pr]
    def qloads():
        A(f"buffer_load_dwordx4 {vr(QL,4)}, v5, s[44:47], s20 offen{SC}")
        A(f"buffer_load_dwordx2 {vr(RL,2)}, v6, s[44:47], s18 offen{SC}")
        A(f"buffer_load_dwordx4 {vr(KL,4)}, v5, s[44:47], s21 offen{SC}")
    def idle():
        A(f"""
s_and_b32 s30, s41, 7
s_mul_i32 s30, s30, 80
s_and_b32 s28, s29, 3
s_mul_i32 s31, s28, 20
s_add_u32 s30, s30, s31
v_lshrrev_b32 v164, 1, v2
v_min_u32 v165, 19, v164
v_add_u32 v165, s30, v165
v_and_b32 v166, 1, v2
s_sub_u32 s30, s43, 1
v_min_u32 v1, s30, v166
v_add_u32 v1, s69, v1
v_lshlrev_b32 v1, 7, v1
s_movk_i32 s31, 3456
s_lshl_b32 s28, s28, 8
s_add_u32 s28, s28, s2
s_min_u32 s28, s28, 539
s_mul_i32 s30, s28, 13108
s_lshr_b32 s30, s30, 16
s_mul_i32 s27, s30, {20480 - 5*256}
s_lshl_b32 s28, s28, 8
s_add_u32 s27, s27, s28
v_and_b32 v13, 15, v164
v_mad_u32_u24 v164, v165, s31, v1
v_mul_u32_u24 v13, 1280, v13
v_lshl_add_u32 v13, v166, 7, v13
v_add_u32 v165, s27, v13
""")
        A("s_waitcnt lgkmcnt(0)")
        for st in range(N + 1, 10):
            if st == P["pf"]: A("global_load_dword v0, v164, s[36:37]")
            if st == P["pf2"]: A("global_load_dword v0, v165, s[38:39]")
            A("s_barrier")
    def loop(mode):
        vmode = mode == "v"; hw = mode == "h"; s0 = "u" if hw else "w"
        L = Q()
        L.cur = {r: P["xb"] if r < 20 else P["wb"] for r in range(16, 28)}
        A("s_barrier")
        MK("c0")
        stat = lambda: (L.op("st", "ds_read2_b32 v[160:161], v9 offset0:0 offset1:32"), L.op("st", "ds_read2_b32 v[162:163], v12 offset0:0 offset1:32"))
        for q in range(D):
            for i in range(6): rd(L, s0, q, i)
        def sync(p, s):
            L.need(*[(q, i) for q in range(p, p + D) for i in range(6)])
            if s < 10:
                MK(f"a{s}")
                A("s_barrier")
                MK(f"s{s}")
            else:
                A(f"v_mov_b32 v1, {s + 3}")
                L.op("dn", f"ds_write_b32 v50, v1")
                A(f"""
v_cmp_gt_u32 vcc, {s + 1}, v13
s_cbranch_vccz {E}_hk{s}
{E}_hl{s}:
ds_read_b32 v13, v48
s_waitcnt lgkmcnt(0)
v_cmp_gt_u32 vcc, {s + 1}, v13
s_cbranch_vccnz {E}_hl{s}
{E}_hk{s}:
""")
                if s + 1 >= P["qtry"]:
                    A(f"v_readlane_b32 s30, v13, 63\ns_and_b32 s30, s30, s68\ns_cbranch_scc0 {E}_hq{s}")
                    qloads()
                    A(f"s_mov_b32 s68, 0\n{E}_hq{s}:")
                MK(f"h{s}")
        CP_, CJ = P["csx"]
        for p in range(40):
            s, pos = p >> 2, p & 3
            hm = hw and s >= N
            if hw: s = tx(s)
            if hw and p == 4 * N:
                MK("hI")
                idle()
                A("s_barrier")
                MK("h9")
                for q in range(D):
                    for i in range(6): rd(L, s0, p + q, i)
                stat()
            b = FB[p % (D + 1)]
            bar = pos == 4 - D and p < 36
            sched = [[], [], [], []] if p + D > 39 or (hw and p < 4 * N <= p + D) else (P["schb"] if bar else P["sched"])
            if bar and P["bj"] < 0: sync(p, s)
            for j, (ct, tt) in enumerate(((0, 0), (0, 1), (1, 1), (1, 0))):
                L.need(*[(p, i) for i in ([0, 1, 2], [3], [4, 5], [])[j]])
                a = acc(ct, tt)
                c = "0" if p == 0 else vr(a, 16)
                w, x = vr(b[2 + ct], 4), vr(b[tt], 4)
                if vmode: A(f"v_mfma_f32_32x32x16_bf16 {vr(a,16)}, {x}, {w}, {c}")
                else: A(f"v_mfma_f32_32x32x16_bf16 {vr(a,16)}, {w}, {x}, {c}")
                if bar and P["bj"] == j: sync(p, s)
                if hm and pos == 3 - D and j == P["fj"] and p < 36: L.op("fl", "ds_read_b32 v13, v48")
                for i in sched[j]: rd(L, s0, p + D, i)
                if pos < 2 and j in (1, 3):
                    ct2 = j >> 1
                    c = "0" if p == 0 else vr(40 + 4 * ct2, 4)
                    A(f"v_mfma_f32_16x16x32_bf16 {vr(40+4*ct2,4)}, {vr(b[2+ct2],4)}, v[88:91], {c}")
                if p == P["cntp"] and j == 0 and mode == "q":
                    A(f"s_cmp_eq_u32 s42, 0\ns_cbranch_scc1 {E}_na\ns_waitcnt vmcnt(0)\ns_mov_b64 exec, 1\nbuffer_atomic_add v49, off, s[64:67], 0 offset:{CNT}\ns_mov_b64 exec, -1\n{E}_na:")
                if p == P["cntl"] and j == 0 and not hw:
                    A(f"buffer_load_dword v13, off, s[64:67], 0 offset:{CNT} sc1")
                if p == 38 and j == 0:
                    L.op("csw", f"ds_write_b128 v7, v[40:43]"); L.op("csw", f"ds_write_b128 v7, v[44:47] offset:1024")
                if p == CP_ and j == CJ:
                    if hm:
                        L.need("csw")
                        L.op("cf", f"ds_write_b32 v50, v49 offset:{CSF - DONE}")
                        A(f"""
{E}_hc:
ds_read_b32 v13, v51 offset:{CSF - DONE}
s_waitcnt lgkmcnt(0)
v_cmp_eq_u32 vcc, 0, v13
s_cbranch_vccnz {E}_hc
""")
                        L.q = []
                    else:
                        L.drain(); A("s_barrier")
                    L.op("st", f"ds_read_b32 v10, v8"); L.op("st", f"ds_read_b32 v11, v8 offset:1024")
                    if not hm: stat()
                if p == 39 and j == min(P["prp"]): L.need("st")
                if p == 39 and j in P["prp"]:
                    q_ = P["prp"].index(j); n_ = len(P["prp"])
                    for o in prep()[16 * q_ // n_: 16 * (q_ + 1) // n_]: A(o)
        MK("hA" if hw else "cA")
        for (ct, tt) in ((0, 0), (0, 1), (1, 1), (1, 0)):
            a = acc(ct, tt); w, x = vr(56 + 4 * ct, 2), vr(64 + 2 * tt, 2)
            if vmode: A(f"v_mfma_f32_32x32x8_bf16 {vr(a,16)}, {x}, {w}, {vr(a,16)}")
            else: A(f"v_mfma_f32_32x32x8_bf16 {vr(a,16)}, {w}, {x}, {vr(a,16)}")
    order = ((0, 0), (0, 1), (1, 1), (1, 0))
    loop("q")
    A(f"""
s_cmp_eq_u32 s9, 3
s_cbranch_scc1 {E}_pub
s_setprio {P['eprio']}
v_mul_f32 v162, s8, v162
v_mul_f32 v164, s8, v163
""")
    for (ct, tt) in order:
        a = acc(ct, tt)
        if P["pk"]:
            for k in range(8): A(f"v_pk_mul_f32 {vr(a+2*k,2)}, {vr(a+2*k,2)}, {vr(162+2*tt,2)} op_sel_hi:[1,0]")
        else:
            for k in range(16): A(f"v_mul_f32 v{a+k}, v{a+k}, v{162+2*tt}")
        for k in range(8): A(f"v_cvt_pk_bf16_f32 v{a+k}, v{a+2*k}, v{a+2*k+1}")
        for j in range(2): A(f"buffer_store_dwordx4 {vr(a+4*j,4)}, v5, s[44:47], s{4+tt} offen offset:{(ct*2+j)*1024}{ST}")
    A(f"s_branch {E}_pub")
    QM, QR, KM, KR, V0, V1 = 8, 12, 16, 20, 24, 28
    S = [32, 48]; O = 64; CB = 80
    FL = 120
    KB = [(KM, KR), (124, 128)]; VB = [V0, 132]
    def vsetup():
        A(f"""
v_and_b32 v{FL+1}, 3, v2
v_lshlrev_b32 v{FL+1}, 2, v{FL+1}
s_lshl_b32 s26, s29, 2
s_add_u32 s26, s26, 64
v_mov_b32 v{FL+2}, s26
v_mul_u32_u24 v7, 320, v3
v_lshl_add_u32 v7, v4, 4, v7
v_add_u32 v7, 5120, v7
v_lshlrev_b32 v6, 4, v4
v_mov_b32 v1, 0x3f803f80
v_cmp_eq_u32 vcc, 20, v4
v_mov_b32 v56, 0
""")
        for i in range(8): A(f"v_cndmask_b32 v{V0+i}, 0, v1, vcc")
    A(f"""
{E}_hp:
s_load_dwordx4 s[36:39], s[0:1], 32
s_setprio {P['hprio']}
s_sub_u32 s31, s29, 4
s_lshl_b32 s30, s31, 2
s_add_u32 s30, s30, {DONE}
v_mov_b32 v50, s30
v_xor_b32 v51, 4, v50
v_and_b32 v48, 7, v2
v_lshlrev_b32 v48, 2, v48
v_add_u32 v48, {LAND}, v48
v_mov_b32 v1, {RLY}
v_cmp_eq_u32 vcc, 63, v2
v_cndmask_b32 v48, v48, v1, vcc
v_lshlrev_b32 v6, 4, v4
s_lshr_b32 s30, s29, 1
s_lshl_b32 s68, 1, s30
s_waitcnt lgkmcnt(0)
""")
    loop("h")
    HP = {(0, 0): 104, (0, 1): 112, (1, 1): 144, (1, 0): 152}
    A(f"s_cmp_eq_u32 s9, 3\ns_cbranch_scc1 {E}_hd\nv_mov_b32 v164, v163")
    for (ct, tt) in order:
        a = acc(ct, tt); d = HP[(ct, tt)]
        for k in range(8): A(f"v_pk_mul_f32 {vr(a+2*k,2)}, {vr(a+2*k,2)}, {vr(162+2*tt,2)} op_sel_hi:[1,0]")
        for k in (range(7, -1, -1) if (ct, tt) == (0, 0) else range(8)): A(f"v_cvt_pk_bf16_f32 v{d+k}, v{a+2*k}, v{a+2*k+1}")
        for k in range(8): A(f"v_pk_max_i16 v{d+k}, v{d+k}, 0")
    A(f"{E}_hd:")
    vsetup()
    A(f"""
s_cmp_eq_u32 s68, 0
s_cbranch_scc1 {E}_at2
{E}_hw0:
ds_read_b32 v57, v56 offset:{RLY}
s_waitcnt lgkmcnt(0)
v_readfirstlane_b32 s30, v57
s_and_b32 s30, s30, s68
s_cbranch_scc1 {E}_hw1
s_sleep 1
s_branch {E}_hw0
{E}_hw1:
""")
    qloads()
    A(f"s_branch {E}_at2")
    A(f"{E}_vloop:")
    A(f"""
v_and_b32 v1, 19, v2
v_bfe_u32 v6, v2, 2, 1
v_lshl_add_u32 v1, v6, 3, v1
v_bfe_u32 v6, v2, 3, 1
v_lshl_add_u32 v1, v6, 2, v1
v_mul_u32_u24 v6, {SV}, v3
v_lshl_add_u32 v51, v1, 4, v6
""")
    loop("v")
    A(f"s_setprio {P['eprio']}")
    for tt in range(2):
        for q in range(4):
            A(f"ds_read_b128 {vr(16+16*tt+4*q,4)}, v48 offset:{RB + tt*128 + q*32}")
    for n, (ct, tt) in enumerate(order):
        a = acc(ct, tt)
        if n < 2: A(f"s_waitcnt lgkmcnt({4 - 4*n})")
        if P["pk"]:
            for k in range(8): A(f"v_pk_mul_f32 {vr(a+2*k,2)}, {vr(a+2*k,2)}, {vr(16+16*tt+2*k,2)}")
        else:
            for k in range(16): A(f"v_mul_f32 v{a+k}, v{a+k}, v{16+16*tt+k}")
        for k in range(8): A(f"v_cvt_pk_bf16_f32 v{a+k}, v{a+2*k}, v{a+2*k+1}")
        for j in range(2): A(f"buffer_store_dwordx4 {vr(a+4*j,4)}, v51, s[44:47], s{4+2*tt+j} offen offset:{ct*512}{ST}")
    DK, DR, DV, DW = 60, 61, 62, 63
    def dma_addr(t0, t1, t2, m1, m2):
        A(f"""
s_mul_i32 s{t0}, s29, {TS}
s_add_u32 s{t0}, s{t0}, s16
s_add_u32 s{t0}, s{t0}, 40960
v_add_u32 v{DK}, s{t0}, v5
s_add_u32 s{t0}, s{t0}, s17
v_lshrrev_b32 v8, 1, v2
v_and_b32 v9, 1, v2
v_lshlrev_b32 v9, 2, v9
v_lshl_add_u32 v8, v8, 4, v9
v_add_u32 v{DR}, s{t0}, v8
s_lshl_b32 s{m1}, s29, 10
s_lshl_b32 s{m2}, s29, 8
s_mul_i32 s{t0}, s14, 320
s_add_u32 s{t0}, s{t0}, {QF + VOFF}
s_lshl_b32 s{t1}, s29, 6
s_lshl_b32 s{t2}, s29, 4
s_add_u32 s{t2}, s{t2}, 256
""")
        def vaddr(dst, ci):
            A(f"""
v_mul_u32_u24 v8, 3277, v{ci}
v_lshrrev_b32 v8, 16, v8
v_mul_u32_u24 v9, 20, v8
v_sub_u32 v9, v{ci}, v9
v_lshrrev_b32 v10, 2, v8
v_and_b32 v8, 3, v8
v_mul_u32_u24 v10, {TS}, v10
v_mul_u32_u24 v8, {SV}, v8
v_lshl_add_u32 v9, v9, 4, s{t0}
v_add3_u32 v{dst}, v8, v9, v10
""")
        A(f"v_add_u32 v11, s{t1}, v2"); vaddr(DV, 11)
        A(f"v_lshrrev_b32 v11, 2, v2\nv_add_u32 v11, s{t2}, v11"); vaddr(DW, 11)
        A(f"v_and_b32 v11, 3, v2\nv_lshl_add_u32 v{DW}, v11, 2, v{DW}")
    def dma(G, m1, m2, so):
        b = G * 10240
        if G == 0: A(f"s_cmp_eq_u32 s29, 0\ns_cbranch_scc1 {E}_d0")
        A(f"s_add_u32 m0, s{m1}, {b}\nbuffer_load_dwordx4 v{DK}, s[44:47], {so} offen{P['dsc']} lds")
        if G == 0: A(f"{E}_d0:")
        A(f"s_add_u32 m0, s{m2}, {b+4096}\nbuffer_load_dword v{DR}, s[44:47], {so} offen{P['dsc']} lds")
        A(f"s_add_u32 m0, s{m1}, {b+5120}\nbuffer_load_dwordx4 v{DV}, s[44:47], {so} offen{P['dsc']} lds")
        A(f"s_add_u32 m0, s{m2}, {b+9216}\nbuffer_load_dword v{DW}, s[44:47], {so} offen{P['dsc']} lds")
    assert G0 == 2 and P["rot"] == 0
    PT = S1LAST + 3
    A(f"{E}_pub:")
    MK("cS")
    vsetup()
    dma_addr(30, 31, 26, 36, 37)
    A(f"""
s_lshl_b32 s26, s29, 2
v_mov_b32 v57, s26
v_mov_b32 v58, {PT}
s_mov_b32 s38, {4*TS}
ds_write_b32 v57, v58 offset:{PUB}
s_cmp_eq_u32 s9, 3
s_cbranch_scc1 {E}_pb2
s_mov_b32 s26, {P['spin']}
s_waitcnt vmcnt(0)
{E}_cw:
v_readfirstlane_b32 s30, v13
s_cmp_ge_u32 s30, 16
s_cbranch_scc1 {E}_cd
s_sub_u32 s26, s26, 1
s_cbranch_scc1 {E}_cd
s_sleep 2
buffer_load_dword v13, off, s[64:67], 0 offset:{CNT} sc1
s_waitcnt vmcnt(0)
s_branch {E}_cw
{E}_cd:
s_mov_b64 exec, 1
buffer_store_dword v49, off, s[44:47], s10 sc1
s_mov_b64 exec, -1
{E}_pb2:
s_setprio {P['qsp']}
""")
    MK("cF")
    A(f"""
s_cmp_lg_u32 s29, {P['pw']}
s_cbranch_scc1 {E}_at1
v_and_b32 v57, 7, v2
v_lshlrev_b32 v57, 2, v57
{E}_pq:
ds_read_b32 v58, v57 offset:{DONE}
s_waitcnt lgkmcnt(0)
s_sleep 1
v_cmp_gt_u32 vcc, {PT}, v58
s_cbranch_vccnz {E}_pq
s_mov_b32 s26, {P['spin']}
{"s_sleep " + str(P['qdel']) if P['qdel'] else ""}
{E}_qp:
buffer_load_dwordx4 v[52:55], v50, s[44:47], 0 offen sc1
s_waitcnt vmcnt(0)
v_min_u32 v53, v53, v54
v_cmp_ne_u32 s[30:31], 0, v52
v_cmp_ne_u32 s[42:43], 0, v53
s_and_b32 s30, s30, s31
s_and_b32 s42, s42, s43
s_lshr_b32 s30, s30, s11
s_sub_u32 s26, s26, 1
s_cselect_b32 s30, -1, s30
s_cselect_b32 s42, -1, s42
s_cselect_b32 s26, 0, s26
s_bitcmp1_b32 s42, 0
s_cselect_b32 s31, 15, 0
s_and_b32 s30, s30, s31
s_or_b32 s30, s30, 0x100
v_mov_b32 v52, s30
v_mov_b32 v53, s42
ds_write_b64 v56, v[52:53] offset:{RLY}
s_and_b32 s42, s42, 15
s_lshl_b32 s42, s42, 4
s_or_b32 s30, s30, s42
s_cmp_eq_u32 s30, 0x1ff
s_cbranch_scc1 {E}_at1
s_sleep {P['qsl']}
s_branch {E}_qp
{E}_at1:
s_lshr_b32 s26, s29, 1
s_mov_b32 s27, 11
{E}_qw:
ds_read_b64 v[58:59], v56 offset:{RLY}
s_waitcnt lgkmcnt(0)
v_readfirstlane_b32 s30, v58
v_readfirstlane_b32 s31, v59
s_lshr_b32 s30, s30, s26
s_and_b32 s30, s30, 1
s_lshr_b32 s28, s31, 1
s_and_b32 s31, s31, s28
s_and_b32 s31, s31, 5
s_lshl_b32 s31, s31, 1
s_or_b32 s30, s30, s31
s_and_b32 s30, s30, s27
s_cbranch_scc1 {E}_qa
s_sleep {P['rws']}
s_branch {E}_qw
{E}_qa:
s_bitcmp1_b32 s30, 1
s_cbranch_scc0 {E}_qb
""")
    dma(0, 36, 37, "0")
    A(f"{E}_qb:\ns_bitcmp1_b32 s30, 0\ns_cbranch_scc0 {E}_qc")
    qloads()
    MK("cQ")
    A(f"{E}_qc:\ns_bitcmp1_b32 s30, 3\ns_cbranch_scc0 {E}_qd")
    dma(1, 36, 37, "s38")
    A(f"""
{E}_qd:
s_andn2_b32 s27, s27, s30
s_cbranch_scc1 {E}_qw
{E}_at2:
v_cmp_eq_u32 vcc, 20, v4
v_lshlrev_b32 v57, 3, v4
""")
    for i in range(8): A(f"v_cndmask_b32 v{VB[1]+i}, 0, v1, vcc")
    for i in range(4): A(f"v_mov_b32 v{164+i}, -1")
    A("v_add_u32 v6, 4096, v57")
    MK("cW")
    A("s_waitcnt vmcnt(0)")
    for i in range(4): A(f"v_mov_b32 v{QM+i}, v{QL+i}\nv_mov_b32 v{KM+i}, v{KL+i}")
    A(f"v_cndmask_b32 v{QR}, 0, v{RL}, s[24:25]\nv_cndmask_b32 v{QR+1}, 0, v{RL+1}, s[24:25]")
    A("s_barrier")
    MK("cB")
    def kread(o, km=None, kr=None):
        if km is None: km, kr = KB[o & 1]
        g, i = o >> 2, o & 3
        A(f"ds_read_b128 {vr(km,4)}, v5 offset:{g*10240+i*1024}\nds_read_b64 {vr(kr,2)}, v6 offset:{g*10240+i*256}")
    def vread(o):
        g, i = o >> 2, o & 3; b = g * 10240 + i * 1280
        A(f"s_mov_b64 exec, s[22:23]\nds_read_b128 {vr(VB[o&1],4)}, v7 offset:{b}\nds_read_b128 {vr(VB[o&1]+4,4)}, v7 offset:{b+640}\ns_mov_b64 exec, -1")
    A(f"ds_read_b64 {vr(KR,2)}, v6")
    for t in range(1, NP): kread(t, CB + 4 * t, 96 + 2 * t)
    PD = [S[0], S[1], O, S[0]]
    def pmax(t):
        for k in range(8):
            if t == 0 and k == 0: A(f"v_max_f32 v1, v{PD[t]}, v{PD[t]+1}")
            else: A(f"v_max3_f32 v1, v1, v{PD[t]+2*k}, v{PD[t]+2*k+1}")
    for t in range(NP):
        if t == 3: pmax(0)
        A(f"s_waitcnt lgkmcnt({2*(NP-1-t)})")
        km, kr = (KM, KR) if t == 0 else (CB + 4 * t, 96 + 2 * t)
        A(f"v_mfma_f32_32x32x16_bf16 {vr(PD[t],16)}, {vr(km,4)}, {vr(QM,4)}, 0")
        A(f"v_mfma_f32_32x32x8_bf16 {vr(PD[t],16)}, {vr(kr,2)}, {vr(QR,2)}, {vr(PD[t],16)}")
    for t in range(1, NP): pmax(t)
    A(f"""
v_mov_b32 v14, v1
s_mov_b32 s26, {f32bits(P['offs'])}
v_permlane32_swap_b32 v1, v14
v_max_f32 v1, v1, v14
v_add_f32 v1, s26, v1
""")
    for i in range(16): A(f"v_sub_f32 v{CB+i}, 0, v1")
    for i in range(16): A(f"v_mov_b32 v{O+i}, 0")
    def M1(t): A(f"v_mfma_f32_32x32x16_bf16 {vr(S[t&1],16)}, {vr(KB[t&1][0],4)}, {vr(QM,4)}, {vr(CB,16)}")
    def M2(t): A(f"v_mfma_f32_32x32x8_bf16 {vr(S[t&1],16)}, {vr(KB[t&1][1],2)}, {vr(QR,2)}, {vr(S[t&1],16)}")
    def Ex(t, *idx):
        for i in idx: A(f"v_exp_f32 v{S[t&1]+i}, v{S[t&1]+i}")
    def Cv(t, *idx):
        for k in idx:
            d = S[t & 1] + (k & 3) + 8 * (k >> 2)
            A(f"v_cvt_pk_bf16_f32 v{d}, v{S[t&1]+2*k}, v{S[t&1]+2*k+1}")
    MK("c1")
    A("s_waitcnt lgkmcnt(0)")
    kread(1); vread(0); M1(0); M2(0); kread(2); vread(1)
    W = 6
    Ex(0, *range(P["npre"]))
    def tile(t, hook=None):
        pr = P["prios"]
        if pr and (t == 0 or pr[t % len(pr)] != pr[(t - 1) % len(pr)]): A(f"s_setprio {pr[t % len(pr)]}")
        for tok in P["order"].split():
            if tok == "M1": A(f"s_waitcnt lgkmcnt({W})"); M1(t + 1)
            elif tok == "M2": M2(t + 1)
            elif tok == "M3": A(f"s_waitcnt lgkmcnt({W})\nv_mfma_f32_32x32x16_bf16 {vr(O,16)}, {vr(VB[t&1],4)}, {vr(S[t&1],4)}, {vr(O,16)}")
            elif tok == "M4": A(f"v_mfma_f32_32x32x16_bf16 {vr(O,16)}, {vr(VB[t&1]+4,4)}, {vr(S[t&1]+8,4)}, {vr(O,16)}")
            elif tok == "K":
                if hook: hook(t, 0)
                kread(t + 3)
                if hook: hook(t, 1)
            elif tok == "V":
                vread(t + 2)
                if hook: hook(t, 2)
            elif tok[0] == "E": Ex(t, int(tok[1:]))
            elif tok[0] == "N": Ex(t + 1, int(tok[1:]))
            elif tok[0] == "C": Cv(t, int(tok[1:]))
            else: raise ValueError(tok)
    adv = "v_add_u32 v5, 20480, v5\nv_add_u32 v6, 20480, v6\nv_add_u32 v7, 20480, v7"
    npoll = [0]
    def check(thr):
        k = npoll[0]; npoll[0] += 1
        A(f"""
s_waitcnt lgkmcnt(2)
v_cmp_gt_u32 vcc, {thr}, v{FL}
s_cbranch_vccz {E}_ok{k}
{E}_poll{k}:
s_sleep 1
ds_read_b32 v{FL}, v{FL+1}
s_waitcnt lgkmcnt(0)
v_cmp_gt_u32 vcc, {thr}, v{FL}
s_cbranch_vccnz {E}_poll{k}
{E}_ok{k}:
""")
    rdflag = f"ds_read_b32 v{FL}, v{FL+1}"
    hstores = [(ct, tt, j) for (ct, tt) in order for j in range(2)]
    hflag = f"s_waitcnt vmcnt(0)\ns_mov_b64 exec, 1\nbuffer_store_dword v{FL+2}, off, s[32:35], s10 sc1\ns_mov_b64 exec, -1"
    def hook0(t, ph):
        if ph == 1 and t in (4, 7): A(rdflag)
        if ph == 0 and t == 5: check(F_G1)
        if ph in (1, 2):
            mine = [n for n in range(8) if P["hst"][n] == t]
            for n in mine[ph - 1::2] if not P["noh"] else []:
                ct, tt, j = hstores[n]
                A(f"buffer_store_dwordx4 {vr(HP[(ct,tt)]+4*j,4)}, v5, s[32:35], s{4+tt} offen offset:{(ct*2+j)*1024}{ST}")
        if ph == 1 and t == P["ofp"] and not P["noof"]:
            A(f"buffer_store_dwordx4 v[164:167], v5, s[44:47], s60 offen sc1\nbuffer_store_dwordx2 v[164:165], v6, s[44:47], s3 offen sc1")
        if ph == 2 and t == 3: MK("t3")
        if ph == 2 and P["hfl"] == (0, t): MK("t7"); A(hflag); MK("cH")
    for t in range(8): tile(t, hook0)
    A(adv)
    A(f"s_mov_b32 s27, 1\ns_mov_b32 s28, {F_G5}\nv_mov_b32 v{FL+3}, 1\n{E}_loop:")
    def hook1(t, ph):
        if ph == 0 and t == 0: check("s28")
        if ph == 1 and t == 0: A(f"s_mov_b32 s28, {F_ALL}")
        if ph == 1 and t in (0, 4): A(f"v_add_u32 v{FL+3}, 1, v{FL+3}\nds_write_b32 v{FL+2}, v{FL+3}")
        if ph == 1 and t == 7: A(rdflag)
        if ph == 2 and P["hfl"][0] > 0 and P["hfl"][1] == t:
            A(f"s_cmp_lg_u32 s27, {P['hfl'][0]}\ns_cbranch_scc1 {E}_nf\n{hflag}\n{E}_nf:")
        if ph == 1 and t == P["hint"][1]:
            A(f"""
s_cmp_lg_u32 s27, {P["hint"][0]}
s_cbranch_scc1 {E}_nh
s_waitcnt vmcnt(0)
s_mov_b64 exec, 1
buffer_store_dword v{FL+2}, off, s[44:47], s61{P['hsc']}
s_mov_b64 exec, -1
{E}_nh:
""")
    for t in range(8): tile(t, hook1)
    A(adv)
    A(f"s_add_u32 s27, s27, 1\ns_cmp_lt_u32 s27, 8\ns_cbranch_scc1 {E}_loop")
    MK("c3")
    A(f"v_mov_b32 v{FL+3}, 16\nds_write_b32 v{FL+2}, v{FL+3}\nv_mov_b32 v1, 0\ns_movk_i32 s26, 0x207")
    for i in range(12): A(f"v_fma_f32 v1, v{O+i}, 0, v1")
    A(f"""
v_cmp_class_f32 vcc, v1, s26
s_cbranch_vccnz {E}_fb
{E}_epi:
v_mov_b32 v10, 0
ds_read_b64 v[12:13], v10 offset:{MSK}
v_mov_b32 v14, v{O+8}
v_mov_b32 v15, v{O+8}
v_lshlrev_b32 v5, 4, v2
v_permlane32_swap_b32 v14, v15
v_rcp_f32 v14, v15
v_lshlrev_b32 v6, 3, v4
v_mov_b32 v11, v{FL+1}
""")
    for k in range(6): A(f"v_pk_mul_f32 {vr(O+2*k,2)}, {vr(O+2*k,2)}, v[14:15] op_sel_hi:[1,0]")
    for k in range(6): A(f"v_cvt_pk_bf16_f32 v{O+k}, v{O+2*k}, v{O+2*k+1}")
    OSC = P["osc"]; LSC = P["lsc"]
    VW, VR, OR_, OA, SP = 6, 7, 8, 9, 15
    A(f"""
buffer_store_dwordx4 {vr(O,4)}, v5, s[44:47], s60 offen{OSC}
s_mov_b64 exec, s[24:25]
buffer_store_dwordx2 {vr(O+4,2)}, v6, s[44:47], s60 offen offset:1024{OSC}
s_mov_b64 exec, -1
s_setprio 0
""")
    MK("c4")
    A(f"""
v_mul_u32_u24 v14, 2560, v3
s_add_u32 s28, s57, 5120
s_waitcnt lgkmcnt(0)
v_readfirstlane_b32 s30, v12
v_readfirstlane_b32 s31, v13
v_lshl_add_u32 v{OR_}, v4, 3, v14
s_lshr_b64 s[30:31], s[30:31], s56
s_mov_b32 s63, s30
""")
    OB = 16; AC = 56
    def load(k):
        if k < 8: A(f"buffer_load_dwordx4 {vr(OB+4*k,4)}, v5, s[44:47], s{57 if k < 4 else 28} offen offset:{1280*(k&3)}{LSC}")
        else:
            for e in range(2): A(f"buffer_load_dwordx2 {vr(OB+4*k+2*e,2)}, v{OR_}, s[44:47], s{57 if k == 8 else 28} offen offset:{1024+1280*e}{LSC}")
    for k in range(8):
        A(f"s_mov_b32 s64, {k}\ns_bitcmp1_b32 s63, {k}\ns_cbranch_scc0 {E}_su")
        load(k)
    load(8); load(9)
    A(f"s_mov_b32 s64, 9\n{E}_su:")
    def issue_rest(T):
        A(f"s_cmp_eq_u32 s64, 9\ns_cbranch_scc1 {E}_id{T}")
        for k in range(8):
            L = f"{E}_is{T}{k}"
            A(f"""
s_cmp_gt_u32 s64, {k}
s_cbranch_scc1 {L}n
s_bitcmp1_b32 s63, {k}
s_cbranch_scc1 {L}g
{L}p:
ds_read_b64 v[0:1], v10 offset:{MSK}
s_waitcnt lgkmcnt(0)
v_readfirstlane_b32 s30, v0
v_readfirstlane_b32 s31, v1
s_lshr_b64 s[30:31], s[30:31], s56
s_mov_b32 s63, s30
s_bitcmp1_b32 s30, {k}
s_cbranch_scc1 {L}g
s_sleep 1
s_branch {L}p
{L}g:
""")
            load(k)
            A(f"{L}n:")
        load(8); load(9)
        A(f"{E}_id{T}:"); MK("c6")
    A(f"""
ds_read_b32 v1, v11
v_mul_u32_u24 v12, 1280, v4
v_bfe_u32 v13, v2, 2, 2
v_and_b32 v7, 3, v2
v_lshl_add_u32 v{OA}, v3, 3, v12
v_lshlrev_b32 v13, 6, v13
v_lshl_add_u32 v13, v7, 3, v13
v_bfe_u32 v12, v2, 4, 1
v_lshl_add_u32 v13, v12, 5, v13
v_add_u32 v13, s58, v13
v_lshl_add_u32 v{VW}, v3, 8, v13
v_add_u32 v{VR}, v14, v13
s_sub_u32 s26, s54, 1
v_sub_u32 v14, s26, v2
v_and_b32 v14, 3, v14
s_lshl_b32 s26, s52, 4
s_add_u32 s26, s26, {SENT}
v_lshl_add_u32 v{SP}, v14, 2, s26
s_lshl_b32 s27, s54, 2
s_add_u32 s27, s27, s26
s_mov_b32 s62, {P['spin']}
v_add_u32 v12, s59, v5
s_lshl_b32 s30, s54, 2
v_mov_b32 v13, s30
""")
    nw_ = [0]
    def lwait(thr, ar=11):
        k = nw_[0]; nw_[0] += 1
        A(f"""
{E}_lw{k}:
s_waitcnt lgkmcnt(0)
v_cmp_gt_u32 vcc, {thr}, v1
s_cbranch_vccz {E}_lwd{k}
s_sleep {P['psl']}
ds_read_b32 v1, v{ar}
s_branch {E}_lw{k}
{E}_lwd{k}:
""")
    def perq4(tag, body):
        for q in range(4):
            if q < 3: A(f"s_cmp_lg_u32 s54, {q}\ns_cbranch_scc1 {E}_{tag}{q+1}")
            body(q)
            if q < 3: A(f"s_branch {E}_{tag}d\n{E}_{tag}{q+1}:")
        A(f"{E}_{tag}d:")
    lwait(F_WO)
    A(f"s_cmp_lg_u32 s52, 0\ns_cbranch_scc1 {E}_tB")
    for ty, nb in ((0, 3), (1, 2)):
        T = "AB"[ty]
        if ty: A(f"{E}_tB:")
        WB = AC + 16 * nb
        nbuf = min(10, (168 - WB) // (4 * nb))
        q = []
        def need(tag):
            idx = max([i for i, t in enumerate(q) if t == tag], default=-1)
            if idx >= 0:
                A(f"s_waitcnt lgkmcnt({min(len(q) - 1 - idx, 15)})"); del q[:idx + 1]
        later = lambda k: (7 - k + 4) if k < 8 else (2 if k == 8 else 0)
        def wr(k, lo=0, hi=99):
            b = WB + (k % nbuf) * 4 * nb
            for u in range(max(lo, 0), min(hi, nb)):
                if k < 8: a = VW; o1 = u * 10240 + k * 1280; o2 = o1 + 512
                else: a = VR; o1 = u * 10240 + (k - 8) * 5120 + 1024; o2 = o1 + 1280
                A(f"ds_read_b64_tr_b16 {vr(b+4*u,2)}, v{a} offset:{o1}"); q.append((k, u))
                A(f"ds_read_b64_tr_b16 {vr(b+4*u+2,2)}, v{a} offset:{o2}"); q.append((k, u))
        for k in range(nbuf): wr(k)
        if ty == 0:
            for j in range(4): A(f"s_sub_u32 s30, {j+3}, s54\ns_and_b32 s30, s30, 3\ns_mul_i32 s30, s30, 3072\ns_add_u32 s{32+j}, s30, s58\ns_add_u32 s{32+j}, s{32+j}, 20480")
            for r in range(3): A(f"s_sub_u32 s30, s54, {r+1}\ns_and_b32 s30, s30, 3\ns_mul_i32 s30, s30, 30720\ns_add_u32 s{36+r}, s30, {WO + 20480 + r*3072}")
        else:
            A(f"s_lshl_b32 s31, s54, 12\ns_add_u32 s31, s31, {FREE - 2048}")
            for j in range(4): A(f"s_sub_u32 s30, {j+3}, s54\ns_and_b32 s30, s30, 3\ns_lshl_b32 s{32+j}, s30, 11\ns_add_u32 s{32+j}, s{32+j}, s31\ns_cmp_eq_u32 s30, 0\ns_cselect_b32 s{32+j}, s59, s{32+j}")
            for r in range(3):
                A(f"s_sub_u32 s30, s54, {r+1}\ns_and_b32 s30, s30, 3\ns_mul_i32 s30, s30, {5120 if r == 0 else 4096}\ns_add_u32 s{36+r}, s30, {PR if r == 0 else FREE + (r-1)*2048}")
        for k in range(16 * nb): A(f"v_mov_b32 v{AC+k}, 0")
        issue_rest(T)
        A("ds_read_b32 v1, v13")
        lwait(F_FX, 13)
        q.clear()
        perq4(f"fx{T}", lambda qq: [A(f"ds_read_b128 {vr(AC+16*t+4*qq,4)}, v12 offset:{(2048 if ty == 0 else 0) + t*1024}") for t in range(nb)])
        A("s_waitcnt lgkmcnt(0)")
        for k in range(10):
            A(f"s_waitcnt vmcnt({later(k)})")
            o = OB + 4 * k
            A(f"""
{E}_ck{T}{k}:
v_max3_u32 v1, v{o}, v{o+1}, v{o+2}
v_max_u32 v1, v1, v{o+3}
v_cmp_eq_u32 vcc, -1, v1
s_cbranch_vccnz {E}_rt{T}{k}
{E}_bk{T}{k}:
""")
            b = WB + (k % nbuf) * 4 * nb
            nx = k + nbuf
            for u in range(nb):
                need((k, u))
                A(f"v_mfma_f32_32x32x16_bf16 {vr(AC+16*u,16)}, {vr(b+4*u,4)}, {vr(o,4)}, {vr(AC+16*u,16)}")
                if nx < 10 and u >= 1: wr(nx, u - 1, u)
            if nx < 10: wr(nx, nb - 1, nb)
        MK("c8")
        for j in range(4): A(f"v_add_u32 v{16+j}, s{32+j}, v5")
        for r in range(3): A(f"v_add_u32 v{20+r}, s{36+r}, v5")
        A("v_mov_b32 v13, s27\ns_mov_b32 s63, 7")
        for j in range(4):
            A(f"s_cmp_eq_u32 s54, {j}\ns_cbranch_scc1 {E}_ns{T}{j}")
            for t in range(nb): A(f"ds_write_b128 v{16+j}, {vr(AC+16*t+4*j,4)} offset:{t*1024}")
            A(f"{E}_ns{T}{j}:")
        A(f"""
s_waitcnt lgkmcnt(0)
ds_write_b32 v13, v13
{E}_sp{T}:
ds_read_b32 v1, v{SP}
s_waitcnt lgkmcnt(0)
v_cmp_ne_u32 vcc, 0, v1
s_and_b32 s30, vcc_lo, s63
""")
        for r in range(3):
            A(f"s_bitcmp1_b32 s30, {r}\ns_cbranch_scc0 {E}_nr{T}{r}")
            for t in range(nb): A(f"ds_read_b128 {vr(WB+4*(3*t+r),4)}, v{20+r} offset:{t*1024}")
            A(f"{E}_nr{T}{r}:")
        A(f"""
s_andn2_b32 s63, s63, s30
s_cbranch_scc1 {E}_sp{T}
s_waitcnt lgkmcnt(0)
""")
        MK("c9")
        def fin(qq):
            for t in range(nb):
                a = AC + 16 * t + 4 * qq; r = WB + 12 * t
                for k in range(4): A(f"v_add_f32 v{a+k}, v{a+k}, v{r+k}\nv_add_f32 v{r+4+k}, v{r+4+k}, v{r+8+k}")
                for k in range(4): A(f"v_add_f32 v{a+k}, v{a+k}, v{r+4+k}")
                A(f"v_cvt_pk_bf16_f32 v{a}, v{a}, v{a+1}\nv_cvt_pk_bf16_f32 v{a+1}, v{a+2}, v{a+3}")
                A(f"buffer_store_dwordx2 {vr(a,2)}, v{OA}, s[48:51], s55 offen")
                if t < nb - 1: A("s_add_u32 s55, s55, s53")
            A("s_endpgm")
        for qq in range(4):
            if qq < 3: A(f"s_cmp_lg_u32 s54, {qq}\ns_cbranch_scc1 {E}_fn{T}{qq+1}")
            fin(qq)
            if qq < 3: A(f"{E}_fn{T}{qq+1}:")
        for k in range(10):
            A(f"""
{E}_rt{T}{k}:
s_sub_u32 s62, s62, 1
s_cbranch_scc1 {E}_bk{T}{k}
""")
            if P["rtsl"]: A(f"s_sleep {P['rtsl']}")
            for kk in range(k, 10): load(kk)
            A(f"s_waitcnt vmcnt({later(k)})\ns_branch {E}_ck{T}{k}")
    A(f"""
{E}_fb:
s_waitcnt lgkmcnt(0)
v_lshlrev_b32 v5, 4, v2
v_lshlrev_b32 v6, 4, v4
v_mul_u32_u24 v7, {SV}, v3
v_lshl_add_u32 v7, v4, 4, v7
v_add_u32 v15, {2*SV}, v7
v_mov_b32 v1, 0xff800000
s_add_u32 s18, s16, 40960
s_mov_b32 s26, s18
s_mov_b32 s27, 64
{E}_fb1:
s_add_u32 s30, s26, s17
buffer_load_dwordx4 {vr(KM,4)}, v5, s[44:47], s26 offen{SC}
buffer_load_dwordx2 {vr(KR,2)}, v6, s[44:47], s30 offen{SC}
s_waitcnt vmcnt(0)
v_mfma_f32_32x32x16_bf16 {vr(S[0],16)}, {vr(KM,4)}, {vr(QM,4)}, 0
v_mfma_f32_32x32x8_bf16 {vr(S[0],16)}, {vr(KR,2)}, {vr(QR,2)}, {vr(S[0],16)}
""")
    for k in range(8): A(f"v_max3_f32 v1, v1, v{S[0]+2*k}, v{S[0]+2*k+1}")
    A(f"""
s_add_u32 s26, s26, {TS}
s_sub_u32 s27, s27, 1
s_cmp_lg_u32 s27, 0
s_cbranch_scc1 {E}_fb1
v_mov_b32 v14, v1
v_permlane32_swap_b32 v1, v14
v_max_f32 v1, v1, v14
""")
    for i in range(16): A(f"v_sub_f32 v{CB+i}, 0, v1\nv_mov_b32 v{O+i}, 0")
    A(f"""
s_mov_b32 s26, s18
s_mul_i32 s28, s14, 320
s_add_u32 s28, s28, {QF + VOFF}
s_mov_b32 s27, 64
{E}_fb2:
s_add_u32 s30, s26, s17
buffer_load_dwordx4 {vr(KM,4)}, v5, s[44:47], s26 offen{SC}
buffer_load_dwordx2 {vr(KR,2)}, v6, s[44:47], s30 offen{SC}
s_mov_b64 exec, s[22:23]
buffer_load_dwordx4 {vr(V0,4)}, v7, s[44:47], s28 offen{SC}
buffer_load_dwordx4 {vr(V1,4)}, v15, s[44:47], s28 offen{SC}
s_mov_b64 exec, -1
s_waitcnt vmcnt(0)
""")
    M1(0); M2(0)
    Ex(0, *range(16)); Cv(0, *range(8))
    A(f"""
v_mfma_f32_32x32x16_bf16 {vr(O,16)}, {vr(V0,4)}, {vr(S[0],4)}, {vr(O,16)}
v_mfma_f32_32x32x16_bf16 {vr(O,16)}, {vr(V1,4)}, {vr(S[0]+8,4)}, {vr(O,16)}
s_add_u32 s26, s26, {TS}
s_add_u32 s28, s28, {TS}
s_sub_u32 s27, s27, 1
s_cmp_lg_u32 s27, 0
s_cbranch_scc1 {E}_fb2
s_nop 15
s_branch {E}_epi
""")
    A(f"{E}_ffn:")
    head_scalars()
    A("v_lshlrev_b32 v5, 4, v2")
    PA = 64
    poll_addr(PA, 30, 31)
    dma_addr(20, 21, 22, 17, 18)
    A(f"s_mov_b32 s19, {G0*4*TS}")
    WA, FX, FP, XA = 76, 79, 84, 85
    HA, WFA = 65, 66
    A(f"""
v_lshrrev_b32 v{FP}, {LF}, v2
v_and_b32 v16, {(1 << LF) - 1}, v2
v_lshlrev_b32 v{FP}, 7, v{FP}
v_lshl_add_u32 v{FP}, v16, 2, v{FP}
v_mov_b32 v16, {108*128}
s_lshr_b32 s14, s40, 1
s_lshl_b32 s14, s14, 3
s_and_b32 s24, s41, 7
s_add_u32 s14, s14, s24
s_lshl_b32 s56, s14, {13 - LF}
s_add_u32 s56, s56, {FL2}
s_mul_i32 s30, s14, {27*128}
s_add_u32 s30, s30, {FH}
v_min_u32 v{HA}, 26, v4
v_lshl_add_u32 v{HA}, v{HA}, 7, s30
s_lshl_b32 s14, s14, 1
s_bfe_u32 s25, s41, 0x10003
s_xor_b32 s15, s25, 1
s_add_u32 s15, s15, s14
s_add_u32 s14, s14, s25
s_and_b32 s27, s40, 1
s_lshl_b32 s27, s27, 1
s_lshr_b32 s16, s41, 4
s_add_u32 s27, s27, s16
s_mul_i32 s30, s27, 108
s_add_u32 s30, s30, s29
s_lshl_b32 s30, s30, 7
s_add_u32 s30, s30, {FW}
v_min_u32 v{WFA}, 26, v4
v_lshl_add_u32 v{WFA}, v{WFA}, 9, s30
v_mad_u32_u24 v{WFA}, v3, v16, v{WFA}
s_and_b32 s24, s41, 15
s_mul_i32 s24, s24, 27
s_lshr_b32 s24, s24, 4
s_mul_i32 s24, s24, {P['frot']}
s_add_u32 s20, s17, {HF}
s_mul_i32 s23, s29, 20480
s_mul_i32 s28, s27, 5120
s_add_u32 s23, s23, s28
s_add_u32 s23, s23, {W2F}
s_add_u32 s22, s20, {27*4096}
s_lshl_b32 s16, s24, 12
s_add_u32 s16, s16, s20
s_mul_i32 s26, s24, 81920
s_add_u32 s26, s26, s23
s_mul_i32 s30, s14, {108*1024}
s_mul_i32 s31, s15, {108*1024}
v_add_u32 v8, s30, v5
v_add_u32 v9, s31, v5
s_lshl_b32 s30, s25, 12
s_lshl_b32 s31, s25, 11
s_add_u32 s31, s31, 1024
v_add_u32 v10, s30, v5
v_add_u32 v11, s31, v5
v_add_u32 v12, 2048, v5
v_mov_b32 v7, s29
v_lshlrev_b32 v7, 2, v7
v_and_b32 v1, 7, v2
v_lshlrev_b32 v1, 2, v1
v_and_b32 v15, 12, v1
v_mul_u32_u24 v{XA}, 1280, v4
v_lshl_add_u32 v{XA}, v3, 3, v{XA}
s_mul_i32 s52, s27, 320
s_lshl_b32 s53, s29, 4
s_add_u32 s53, s53, s52
s_mul_i32 s54, s14, 40960
s_mul_i32 s55, s15, 40960
s_add_u32 s54, s54, s53
s_add_u32 s55, s55, s53
s_lshl_b32 s57, s25, 8
s_lshl_b32 s58, s25, 7
s_add_u32 s52, s52, s57
s_sub_u32 s59, 64, s58
s_add_u32 s58, s58, 64
s_add_u32 s30, s55, s57
s_add_u32 s31, s55, s58
s_add_u32 s32, s54, s57
s_add_u32 s33, s54, s58
s_add_u32 s34, s54, 128
s_sub_u32 s54, s29, 1
s_add_u32 s53, s59, 204800
s_mul_i32 s53, s53, s54
s_add_u32 s52, s52, s53
s_mul_i32 s53, s54, 40960
s_add_u32 s53, s53, {WO}
v_lshrrev_b32 v16, 2, v2
v_and_b32 v17, 3, v2
v_mul_u32_u24 v16, 1280, v16
v_lshl_add_u32 v{WA}, v17, 4, v16
s_mul_i32 s54, s29, 5120
s_add_u32 s54, s54, {PR}
v_add_u32 v{FX}, s54, v5
s_sub_u32 s60, s59, 184320
s_lshl_b32 s61, s59, 1
s_sub_u32 s61, 20480, s61
s_cmp_eq_u32 s29, 3
s_cselect_b32 s54, 9, 0
s_cselect_b32 s55, 10, 0
s_cselect_b32 s63, 11, 0
s_cselect_b32 s3, 12, 0
s_cselect_b32 s62, 13, 0
s_cselect_b32 s57, s61, s60
s_cmp_eq_u32 s29, 2
s_cselect_b32 s62, 9, s62
s_cselect_b32 s58, s61, s60
s_cmp_eq_u32 s29, 1
s_cselect_b32 s59, s61, s60
v_mov_b32 v6, {RLY}
s_mov_b32 s10, {P['spin']}
s_mov_b32 s8, 0
""")
    MK("lS")
    A(f"s_waitcnt lgkmcnt(0)\ns_barrier\nds_read_b32 v0, v6 offset:4")
    MK("lB")
    C1 = P["c1"]
    def flag(v): A(f"v_mov_b32 v0, {v}\nds_write_b32 v7, v0")
    A("s_waitcnt lgkmcnt(0)\nv_readfirstlane_b32 s8, v0")
    def gwait(G):
        m = (3 << (2 * G)) & 0xffffffff
        A(f"""
{E}_gw{G}:
s_and_b32 s9, s8, {hex(m)}
s_cmp_eq_u32 s9, {hex(m)}
s_cbranch_scc1 {E}_gg{G}
buffer_load_dwordx4 v[68:71], v{PA}, s[44:47], 0 offen sc1
s_waitcnt vmcnt(0)
v_min_u32 v69, v69, v70
v_cmp_ne_u32 s[8:9], 0, v69
s_and_b32 s8, s8, s9
s_sub_u32 s10, s10, 1
s_cselect_b32 s8, -1, s8
s_cselect_b32 s10, 0, s10
s_branch {E}_gw{G}
{E}_gg{G}:
""")
    nst = 0
    for G in range(G0, 16):
        gwait(G); dma(G, 17, 18, "s19")
        if G < 15: A(f"s_add_u32 s19, s19, {4*TS}")
        if G == P["w2g"]:
            if P["now2"]: A("s_mov_b32 s9, s66\ns_mov_b32 s66, 0")
            for c in range(4): A(f"buffer_store_dwordx4 {vr(88+4*c,4)}, v5, s[64:67], s69 offen offset:{1024*c}{ST}")
            if P["now2"]: A("s_mov_b32 s66, s9")
        if G == 2 + P["c0"]:
            n = 4 * P["c0"] + (4 if 2 <= P["w2g"] <= G else 0)
            A(f"s_waitcnt vmcnt({n})"); flag(F_G1)
        if G == 5 + C1:
            n = 4 * C1 + (4 if 5 <= P["w2g"] <= G else 0)
            A(f"s_waitcnt vmcnt({n})"); flag(F_G5); MK("l4")
    A(f"""
s_waitcnt vmcnt({4 * (15 - P["w2g"])})
v_mov_b32 v0, 1
s_mov_b64 exec, 1
buffer_store_dword v0, off, s[64:67], s68 sc1
s_mov_b64 exec, -1
""")
    if P["hgate"]:
        A("s_waitcnt vmcnt(1)"); flag(F_ALL)
        A(f"""
{E}_hq:
ds_read_b32 v0, v1 offset:64
s_waitcnt lgkmcnt(0)
v_cmp_gt_u32 vcc, {P['hgate']}, v0
s_cbranch_vccz {E}_hw
s_sleep 4
s_branch {E}_hq
""")
    A(f"""
{E}_hw:
buffer_load_dword v68, v{HA}, s[44:47], 0 offen sc1
buffer_load_dword v69, v{WFA}, s[44:47], 0 offen sc1
s_waitcnt vmcnt(2)
""")
    flag(F_ALL)
    A(f"""
s_waitcnt vmcnt(0)
v_min_u32 v68, v68, v69
v_cmp_eq_u32 s[8:9], 0, v68
s_or_b32 s8, s8, s9
s_and_b32 s8, s8, 0x7ffffff
s_cbranch_scc0 {E}_hg
s_sub_u32 s10, s10, 1
s_cselect_b32 s10, 0, s10
s_cbranch_scc1 {E}_hg
s_sleep {P['hsl']}
s_branch {E}_hw
{E}_hg:
""")
    MK("lH")
    ACC = 88
    class VQ_:
        def __init__(s): s.q = []
        def op(s, tag, txt): A(txt); s.q.append(tag)
        def need(s, *tags):
            idx = max([i for i, t in enumerate(s.q) if t in tags], default=-1)
            if idx >= 0:
                A(f"s_waitcnt vmcnt({len(s.q) - 1 - idx})"); s.q = s.q[idx + 1:]
    VQ = VQ_()
    addr = {0: (9, 16), 1: (10, 26), 2: (11, 26), 3: (12, 26), 4: (8, 16)}
    def fl(i, j):
        b = 16 + 20 * (i % 3)
        VQ.op((i, j), f"buffer_load_dwordx4 {vr(b+4*j,4)}, v{addr[j][0]}, s[44:47], s{addr[j][1]} offen{P['fsc']}")
        if j == 4: A("s_add_u32 s16, s16, 4096\ns_add_u32 s26, s26, 81920\ns_cmp_eq_u32 s16, s22\ns_cselect_b32 s16, s20, s16\ns_cselect_b32 s26, s23, s26")
    for i in range(3):
        for j in range(5): fl(i, j)
    A(f"s_setprio {P['prio_ffn']}")
    blk = [(0, 1), (0, 2), (4, 1), (4, 2), (4, 3)]
    after = {1: [0], 2: [1], 3: [2], 4: [3, 4]}
    for i in range(27):
        b = 16 + 20 * (i % 3)
        for t, (hj, wj) in enumerate(blk):
            VQ.need((i, hj), (i, wj))
            c = "0" if i == 0 else vr(ACC + 16 * t, 16)
            A(f"v_mfma_f32_32x32x16_bf16 {vr(ACC+16*t,16)}, {vr(b+4*wj,4)}, {vr(b+4*hj,4)}, {c}")
            if i + 3 < 27:
                for j in after.get(t, []): fl(i + 3, j)
    RED = 2560
    MK("l2")
    A(f"s_setprio {P['prio_red']}")
    for q in range(4):
        A(f"s_sub_u32 s16, s29, {q+1}\ns_and_b32 s16, s16, 3\ns_mul_i32 s16, s16, 5120\ns_add_u32 s16, s16, {RED + q*15360}\nv_add_u32 v{8+q}, s16, v5")
    A(f"""
s_mul_i32 s17, s29, 15360
s_add_u32 s17, s17, {RED}
v_add_u32 v12, s17, v5
s_mov_b32 s48, s4
s_mov_b32 s49, s5
s_mov_b32 s50, 2621440
s_mov_b32 s51, 0x20000
s_mov_b32 s36, 0xffff0000
""")
    npw = [0]
    def pwait(reg, off, thr, sl=2):
        k = npw[0]; npw[0] += 1
        A(f"""
{E}_pw{k}:
ds_read_b32 v0, v{reg} offset:{off}
s_waitcnt lgkmcnt(0)
v_cmp_gt_u32 vcc, {thr}, v0
s_cbranch_vccz {E}_pwd{k}
s_sleep {sl}
s_branch {E}_pw{k}
{E}_pwd{k}:
""")
    pwait(1, 64, 2 * P["T1"], 4)
    for q in range(4):
        A(f"s_cmp_eq_u32 s29, {q}\ns_cbranch_scc1 {E}_nx{q}")
        for t in range(5): A(f"ds_write_b128 v{8+q}, {vr(ACC+16*t+4*q,4)} offset:{t*1024}")
        A(f"{E}_nx{q}:")
    flag(F_RW)
    pwait(15, 0, F_RW, 1)
    for t in range(5):
        for jj in range(3):
            A(f"ds_read_b128 {vr(16+12*t+4*jj,4)}, v12 offset:{jj * 5120 + t * 1024}")
    def perq(tag, body):
        for q in range(4):
            if q < 3: A(f"s_cmp_lg_u32 s29, {q}\ns_cbranch_scc1 {E}_{tag}{q+1}")
            body(q)
            if q < 3: A(f"s_branch {E}_{tag}d\n{E}_{tag}{q+1}:")
        A(f"{E}_{tag}d:")
    xr = lambda q, t: ACC + 16 * t + 4 * ((q + 1) & 3)
    perq("x", lambda q: [A(f"buffer_load_dwordx2 {vr(xr(q,t),2)}, v{XA}, s[48:51], s{30+t} offen") for t in range(5)])
    A("s_waitcnt lgkmcnt(0)"); flag(F_RR)
    MK("l7")
    A(f"""
s_setprio 3
s_mov_b32 s48, s6
s_mov_b32 s49, s7
s_mov_b32 s50, 819200
""")
    def fin(q):
        for t in range(5):
            b = 16 + 12 * t; o = ACC + 16 * t + 4 * q; x = xr(q, t)
            for k in range(4): A(f"v_add_f32 v{b+k}, v{b+k}, v{o+k}")
            for k in range(2): A(f"v_lshlrev_b32 v{o+2*k}, 16, v{x+k}\nv_and_b32 v{o+2*k+1}, s36, v{x+k}")
            for k in range(4): A(f"v_add_f32 v{b+4+k}, v{b+4+k}, v{b+8+k}")
            for k in range(4): A(f"v_add3_f32 v{b+k}, v{b+k}, v{b+4+k}, v{o+k}" if False else f"v_add_f32 v{b+k}, v{b+k}, v{b+4+k}")
            for k in range(4): A(f"v_add_f32 v{b+k}, v{b+k}, v{o+k}")
    def adds(n):
        A(f"s_setprio {P['prio_add']}\ns_waitcnt vmcnt({n})"); perq("fin", fin); A("s_setprio 3")
    A(f"s_cmp_eq_u32 s29, 0\ns_cbranch_scc1 {E}_nd")
    pwait(15, 0, F_RR, 1)
    for m in range(40):
        if m in (0, 9, 19, 29, 39): pwait(1, 64, {0: "s54", 9: "s55", 19: "s63", 29: "s3", 39: "s62"}[m], P['wsl'])
        A(f"s_add_u32 m0, s53, {m*1024}\nbuffer_load_dwordx4 v{WA}, s[48:51], s52 offen lds")
        if m % 10 < 9: A("s_add_u32 s52, s52, 20480")
        elif m < 39: A(f"s_add_u32 s52, s52, s{57 + m // 10}")
    MK("l8")
    A(f"s_waitcnt vmcnt(0)\n{E}_nd:"); flag(F_WO)
    A(f"s_cmp_eq_u32 s29, 0\ns_cbranch_scc1 {E}_pl")
    adds(0)
    def fxw():
        for t in range(5): A(f"ds_write_b128 v{FX}, {vr(16+12*t,4)} offset:{t*1024}")
        flag(F_FX)
    pwait(1, 64, 16, P['rsl'])
    fxw()
    A(f"s_waitcnt lgkmcnt(0)\ns_endpgm\n{E}_pl:")
    PV = 80
    A(f"s_waitcnt vmcnt(0)\nv_mov_b32 v{PV}, 0\nv_mov_b32 v6, 0\ns_mov_b32 s57, {P['spin']}\ns_mov_b32 s58, 0\ns_mov_b32 s59, 0")
    if P["pgate"]: pwait(1, 64, P["pgate"], P['wsl'])
    A(f"""
{E}_rp:
s_sub_u32 s59, s59, 1
s_cbranch_scc0 {E}_np
s_mov_b32 s59, {P['pper']}
s_waitcnt vmcnt({P['pd'] - 1})
buffer_load_dword v{PV}, v{FP}, s[44:47], s56 offen{P['psc']}
{E}_np:
ds_read_b32 v0, v1 offset:64
v_cmp_ne_u32 s[60:61], 0, v{PV}
s_sub_u32 s57, s57, 1
s_cselect_b64 s[60:61], -1, s[60:61]
s_cselect_b32 s57, 0, s57
v_mov_b32 v8, s60
v_mov_b32 v9, s61
ds_write_b64 v6, v[8:9] offset:{MSK}
s_cmp_lg_u32 s58, 0
s_cbranch_scc1 {E}_rr
s_waitcnt lgkmcnt(1)
v_cmp_gt_u32 vcc, 16, v0
s_cbranch_vccnz {E}_rs
""")
    fin(0); fxw()
    A(f"""
s_mov_b32 s58, 1
{E}_rr:
s_cmp_eq_u64 s[60:61], -1
s_cbranch_scc1 {E}_go
{E}_rs:
s_sleep {P['rsl']}
s_branch {E}_rp
{E}_go:
s_waitcnt vmcnt(0) lgkmcnt(0)
{E}_end:
s_endpgm
""")
    A.end(name, 168, 72)
```

```python
from gen import *
build5("h_kf.s")
build5("h_a.s", P=dict(pk=0, w2t=3, pgw=1), mod=kh)
build5("h_b.s", P=dict(pk=0, w2t=3, pgw=1, qprio=0, hprio=0), mod=kh)
build5("h_c.s", P=dict(pk=0, n=6, w2t=3, pgw=1), mod=kh)
build5("h_d.s", P=dict(pk=0), mod=kh)
```

```python
import sys, json
from asmlib import *
from k1 import gen_k1
from k2 import gen_k2
from k3 import gen_k3
import k2f, k1n, k2n, k2g, kf, kg, kh
NAME = "parallel_sum__softmax_full_mha__dense_activation_relu__prompt"
PROF = 0x2000000
RT = [None]
def add_prof(lines):
    out = []; k = -1; name = None
    for ln in lines:
        t = ln.strip()
        if t.endswith("_kernel:"):
            k += 1; name = t[:-1]
            out += [ln, "    s_memrealtime s[88:89]", "    s_memtime s[90:91]", "    v_lshrrev_b32 v1, 6, v0", "    s_nop 1", "    v_readfirstlane_b32 s98, v1", "    s_waitcnt lgkmcnt(0)"] + [f"    s_mov_b32 s{r}, s90" for r in list(range(70, 80)) + [80, 82, 84, 86]]
        elif t == "s_endpgm":
            out.append(f"    s_branch L_prof_{name}")
        elif t.startswith("; HMARK"):
            i = int(t.split()[2]); out += ["    s_memrealtime s[96:97]", "    s_waitcnt lgkmcnt(0)", f"    s_mov_b32 s{70+i-4}, s96"]
        elif t.startswith("; CMARK"):
            i = int(t.split()[2]); out += ["    s_cmp_eq_u64 s[60:61], -1", "    s_cbranch_scc0 L_cm", f"    s_cmp_lg_u32 s{70+i-4}, s90", "    s_cbranch_scc1 L_cm", "    s_memrealtime s[96:97]", "    s_waitcnt lgkmcnt(0)", f"    s_mov_b32 s{70+i-4}, s96", "L_cm:"]
        elif t.startswith("; VAL"):
            i = int(t.split()[2]); out.append(f"    s_mov_b32 s{70+i-4}, {t.split()[3]}")
        elif t.startswith("; MARK"):
            i = int(t.split()[2])
            if RT[0] is not None and k == RT[0]:
                out += ["    s_memrealtime s[96:97]", "    s_waitcnt lgkmcnt(0)", f"    s_mov_b32 s{80+2*i if i < 4 else 70+i-4}, s96"]
                continue
            if i < 4: out += [f"    s_memtime s[{80+2*i}:{81+2*i}]", "    s_waitcnt lgkmcnt(0)"]
            else: out += ["    s_memtime s[96:97]", "    s_waitcnt lgkmcnt(0)", f"    s_mov_b32 s{70+i-4}, s96"]
        elif t.startswith(".section .rodata"):
            out += [f"L_prof_{name}:"] + ["    " + x for x in f"""s_mov_b64 exec, -1
s_memrealtime s[92:93]
s_memtime s[94:95]
s_load_dwordx2 s[96:97], s[0:1], 64
s_lshl_b32 s99, s2, 4
s_add_u32 s99, s99, s98
s_add_u32 s99, s99, {k*8192}
s_lshl_b32 s99, s99, 7
s_add_u32 s99, s99, {PROF}
s_waitcnt lgkmcnt(0)
v_mov_b32 v1, s99
v_mov_b32 v4, s88
v_mov_b32 v5, s92
v_mov_b32 v6, s90
v_mov_b32 v7, s94
v_mov_b32 v8, s80
v_mov_b32 v9, s82
v_mov_b32 v10, s84
v_mov_b32 v11, s86
v_cmp_eq_u32 vcc, 0, v2
s_and_b64 exec, exec, vcc
s_cmp_ge_u32 s2, 256
s_cbranch_scc1 L_profe_{name}
global_store_dwordx4 v1, v[4:7], s[96:97]
global_store_dwordx4 v1, v[8:11], s[96:97] offset:16
v_mov_b32 v12, s70
v_mov_b32 v13, s71
v_mov_b32 v14, s72
v_mov_b32 v15, s73
v_mov_b32 v16, s74
v_mov_b32 v17, s75
v_mov_b32 v18, s76
v_mov_b32 v19, s77
v_mov_b32 v20, s78
v_mov_b32 v21, s79
global_store_dwordx4 v1, v[12:15], s[96:97] offset:32
global_store_dwordx4 v1, v[16:19], s[96:97] offset:48
global_store_dwordx2 v1, v[20:21], s[96:97] offset:64
s_and_b32 s99, s2, 0x1f
s_lshr_b32 s100, s2, 5
s_cmp_lg_u32 s99, s100
s_cbranch_scc1 L_profe_{name}
s_cmp_lg_u32 s98, {[7,7,3][k]}
s_cbranch_scc1 L_profe_{name}
s_load_dwordx2 s[96:97], s[0:1], 56
v_mov_b32 v1, 0
v_not_b32 v4, v4
v_sub_u32 v7, v7, v6
v_sub_u32 v8, v8, v6
v_sub_u32 v9, v9, v6
v_sub_u32 v10, v10, v6
v_sub_u32 v11, v11, v6
s_waitcnt lgkmcnt(0)
global_atomic_umax v1, v4, s[96:97]
global_atomic_umax v1, v5, s[96:97] offset:4
global_atomic_umax v1, v7, s[96:97] offset:8
global_atomic_umax v1, v8, s[96:97] offset:12
global_atomic_umax v1, v9, s[96:97] offset:16
global_atomic_umax v1, v10, s[96:97] offset:20
global_atomic_umax v1, v11, s[96:97] offset:24
s_cmp_lg_u32 s2, {0 if k == 2 else 999}
s_cbranch_scc1 L_profe_{name}
global_load_dwordx4 v[4:7], v1, s[96:97] offset:-1024
global_load_dwordx4 v[8:11], v1, s[96:97] offset:-512
global_load_dword v7, v1, s[96:97] offset:-1008
s_waitcnt vmcnt(0)
global_store_dwordx4 v1, v[4:7], s[96:97] offset:32
global_store_dwordx4 v1, v[8:11], s[96:97] offset:48
L_profe_{name}:
s_endpgm""".split("\n")] + [ln]
        elif t.startswith(".amdhsa_next_free_sgpr"):
            out.append(".amdhsa_next_free_sgpr 102")
        else: out.append(ln)
    return out
def add_tl(lines):
    out = []; k = -1; name = None
    for ln in lines:
        t = ln.strip()
        if t.endswith("_kernel:"):
            k += 1; name = t[:-1]
            out += [ln, "    s_memrealtime s[88:89]", "    s_memtime s[90:91]", "    v_lshrrev_b32 v1, 6, v0", "    s_nop 1", "    v_readfirstlane_b32 s98, v1"]
        elif t == "s_endpgm":
            out.append(f"    s_branch L_prof_{name}")
        elif t.startswith(".section .rodata"):
            o2 = 512 if k == 0 else -512
            out += [f"L_prof_{name}:"] + ["    " + x for x in f"""s_mov_b64 exec, -1
s_memrealtime s[92:93]
s_memtime s[94:95]
s_load_dwordx2 s[96:97], s[0:1], 56
s_cmp_ge_u32 s2, 256
s_cbranch_scc1 L_profe_{name}
s_cmp_lg_u32 s98, 7
s_cbranch_scc1 L_profe_{name}
s_lshr_b32 s99, s2, 3
s_and_b32 s99, s99, 15
s_cmp_lg_u32 s99, 5
s_cbranch_scc1 L_profe_{name}
s_waitcnt lgkmcnt(0)
v_mov_b32 v1, 0
v_mov_b32 v4, s88
v_mov_b32 v5, s92
v_mov_b32 v6, s90
v_mov_b32 v7, s94
v_not_b32 v8, v4
v_sub_u32 v7, v7, v6
v_cmp_eq_u32 vcc, 0, v2
s_and_b64 exec, exec, vcc
global_atomic_umax v1, v8, s[96:97] offset:{k*16}
global_atomic_umax v1, v5, s[96:97] offset:{k*16+4}
global_atomic_umax v1, v7, s[96:97] offset:{k*16+8}
global_atomic_umax v1, v8, s[96:97] offset:{o2+k*16}
global_atomic_umax v1, v5, s[96:97] offset:{o2+k*16+4}
global_atomic_umax v1, v7, s[96:97] offset:{o2+k*16+8}
L_profe_{name}:
s_endpgm""".split("\n")] + [ln]
        elif t.startswith(".amdhsa_next_free_sgpr"):
            out.append(".amdhsa_next_free_sgpr 102")
        else: out.append(ln)
    return out
def build2(path, P1=None, P2=None, prof=False):
    A = Asm()
    hdr = """; LN + MHA + ReLU-FFN parallel block, two launches (generated by a hand-written python emitter)
; @launch kernel=k1_kernel grid=(256,1,1) block=(768,1,1) lds=147456
; @launch kernel=k2_kernel grid=(256,1,1) block=(768,1,1) lds=163840
"""
    gen_k1(A, P=P1); k2f.gen_k2(A, P=P2)
    if prof: A.lines = add_prof(A.lines)
    open(path, "w").write(hdr + HEADER + A.text())
def build3(path, P1=None, P2=None, prof=False):
    A = Asm()
    hdr = """; LN + MHA + ReLU-FFN parallel block, two launches (generated by a hand-written python emitter)
; @launch kernel=k1_kernel grid=(256,1,1) block=(768,1,1) lds=163840
; @launch kernel=k2_kernel grid=(256,1,1) block=(768,1,1) lds=163840
"""
    k1n.gen_k1(A, P=P1); k2n.gen_k2(A, P=P2)
    if prof == "lite": A.lines = add_prof([l for l in A.lines if not l.strip().startswith(("; MARK", "; HMARK", "; CMARK", "; VAL"))])
    elif prof == "tl": A.lines = add_tl(A.lines)
    elif prof: A.lines = add_prof(A.lines)
    open(path, "w").write(hdr + HEADER + A.text())
def build4(path, P1=None, P2=None, prof=False):
    A = Asm()
    hdr = """; LN + MHA + ReLU-FFN parallel block, two launches (generated by a hand-written python emitter)
; @launch kernel=k1_kernel grid=(256,1,1) block=(768,1,1) lds=163840
; @launch kernel=k2_kernel grid=(256,1,1) block=(768,1,1) lds=163840
"""
    k1n.gen_k1(A, P=P1); k2g.gen_k2(A, P=P2)
    if prof == "lite": A.lines = add_prof([l for l in A.lines if not l.strip().startswith(("; MARK", "; HMARK", "; CMARK", "; VAL"))])
    elif prof == "tl": A.lines = add_tl(A.lines)
    elif prof: A.lines = add_prof(A.lines)
    open(path, "w").write(hdr + HEADER + A.text())
MA = dict(c0=0, cA=1, cS=2, cF=3, cQ=4, cB=5, c1=6, cH=7, c3=8, c4=9, c6=10, c8=11, c9=12, lA=1, lS=2, lG=4, lB=5, l4=6, lH=7, l2=8, l7=9, l8=10)
def build5(path, P=None, prof=False, aslist=True, mod=None):
    A = Asm()
    P = dict(P or {})
    kn = "fused_kernel" if aslist else NAME + "_kernel"
    hdr = "; LN + MHA + ReLU-FFN parallel block, one persistent launch (generated by a hand-written python emitter)\n"
    hdr += f"; @launch {'kernel=fused_kernel ' if aslist else ''}grid=(256,1,1) block=(768,1,1) lds=163840\n"
    if prof is True: P.setdefault("marks", MA)
    (mod or kf).gen_f(A, kn, P=P)
    if prof: A.lines = add_prof(A.lines)
    open(path, "w").write(hdr + HEADER + A.text())
def build(path, P1=None, P2=None, P3=None, extra="", prof=False):
    A = Asm()
    hdr = """; LN + MHA + ReLU-FFN parallel block, three launches (generated by a hand-written python emitter)
; @launch kernel=k1_kernel grid=(256,1,1) block=(768,1,1) lds=147456
; @launch kernel=k2_kernel grid=(256,1,1) block=(768,1,1) lds=163840
; @launch kernel=k3_kernel grid=(256,1,1) block=(256,1,1) lds=102400
""" + extra
    gen_k1(A, P=P1); gen_k2(A, P=P2); gen_k3(A, P=P3)
    if prof: A.lines = add_prof(A.lines)
    open(path, "w").write(hdr + HEADER + A.text())
if __name__ == "__main__":
    build5(f"cdna_kernels/{NAME}.s", mod=kh)
    build5("cur6.s", mod=kh)
    build5("chk6.s", P=dict(spin=3000), mod=kh)
```

```python
from asmlib import *
from layout import *

NP = 4
DEF = dict(cpf=None, kpar=0, kbit=0, krot=(1, 4), st=" sc1", lprio=3, gtab=None, cntp=8, eprio=3,
           offs=96.0, T1=4, prio_ffn=0, prio_red=1, prio_add=0, c1=3, prios=(3, 2, 1, 0), rot=0, frot=1,
           order="M1 E8 E9 C0 C1 E10 E11 M2 K C2 C3 E12 E13 E14 E15 M3 C4 C5 N0 N1 C6 C7 N2 N3 M4 V N4 N5 N6 N7", npre=8,
           osc=" sc1", lsc=" sc1", psl=2, spin=300000, rsl=1, wsl=8, G0=2, hint=(7, 4), bq=2, pgate=13, rtsl=0, pd=1, pper=12,
           psc=' sc1', hsc=' sc1', qsl=1, hst=(0, 0, 1, 1, 2, 2, 3, 3), ofp=5, hfl=(0, 7), w2g=5, marks=None, hsl=2, noh=0, noof=0, now2=0, dsc=' sc1', fsc=' sc1', qdel=0, hgate=2,
           n=5, init=6, lord=None, ss=None, qtry=99, cntl=32, qprio=1, hprio=1, pw=3, sched=((0, 1), (2, 3), (4, 5), ()), pk=0,
           pf=None, pf2=None, dsl=1, qsp=0, rws=2, nold=0, nostat=0, D=2, bj=0, fj=0, schb=((0, 1), (2, 3), (4, 5), ()), csx=(38, 1),
           c0=3, xb=81920, wb=16384, ub=16384, show=0, sprio=(None, None), prp=(0, 1, 2), pgw=1, w2t=3, w2at=None, hpre=0, ofi=3, hpk=1, spf=(6, 4), hcb=0, hskip=0, ldel=0, gthr=None, hs1=None, w2f=None, wot=None, bal=0, balp=(1, 3), balo=0, hnb=None, dbghw=0, yl=None, tla=0, tlb=0, tlm=3, kvd=None, kvp=0)
WO = 1024; PR = 143360; MSK = 96; SENT = 128; FREE = 123904
LAND = 160; DONE = 176; PUB = 192; CSF = 208; RLY = 224; BAL = 240
F_G1, F_G5, F_ALL, F_RW, F_RR, F_WO, F_FX = 1, 2, 3, 4, 5, 6, 7
LF = 2
HD = [0, 0, 0, 1, 2, 2, 2, 3, 4, 4, 4, 4, 5, 5, 5, 5]
H1 = (2, 3, 6, 7, 11)

def gen_f(A, name, P=None):
    P = dict(DEF, **(P or {}))
    XS = 1024; RB = 1536; CSQ = 2048
    N = P["n"]; TEND = 19 - N
    tx = lambda k: k if k < N else 10 + k - N
    last = lambda it: it[1] if it[0] == "w" else tx(it[1])
    lord = P["lord"]
    if lord is None:
        lord = [(kd, k) for k in range(N) for kd in "xwu"] + [(kd, k) for k in range(N, 10) for kd in "xw"] + [("u", k) for k in range(N, 10)]
        if N == 5: lord.remove(("u", 5)); lord.insert(lord.index(("x", 9)), ("u", 5))
    else: lord = [(t[0], int(t[1:])) for t in lord.split()]
    assert sorted(lord) == sorted((kd, k) for kd in "xwu" for k in range(10))
    SLOT = {}; EV = {}; avail = list(range(1, 10)); todo = list(lord); occ = {}
    for ev in range(-2, TEND + 1):
        avail += [SLOT[it] for it in SLOT if last(it) == ev]
        while todo and avail and not (ev == -2 and len(SLOT) >= P["init"]):
            it = todo.pop(0)
            late = last(it) >= 10
            win = {"x": P["xb"], "w": P["wb"], "u": P["ub"]}[it[0]] // 16384
            sl = min(avail, key=lambda q: (late and q == 1, not win <= q < win + 4, -q if late else q))
            avail.remove(sl); SLOT[it] = sl; EV[it] = ev; occ[sl] = last(it)
    assert not todo
    SS = P["ss"] or [[t] for t in range(N - 1)] + [[N - 1, N]] + [[t + 1] for t in range(N, 9)] + [[]]
    assert sorted(sum(SS, [])) == list(range(10)) and not SS[9]
    for t in range(10):
        for k in SS[t]: assert EV[("x", k)] <= t - 2 and t <= last(("x", k)), (t, k)
        for it in [("x", t), ("w", t)] + ([("u", t)] if t < N else []): assert EV[it] <= t - 2, it
    assert EV[("u", N)] <= 8
    S1LAST = max(occ[1], 10)
    dead = sorted(range(2, 10), key=lambda q: occ[q])
    W2S, CSS = dead[0], dead[1]
    assert occ[CSS] <= TEND - 3
    if P["show"]: print({ev: [f"{k}{i}@{SLOT[(k, i)]}" for (k, i) in lord if EV[(k, i)] == ev] for ev in sorted(set(EV.values()))}, occ, W2S, CSS)
    ST = P["st"]; SC = " sc1"
    G0 = P["G0"]
    A.begin(name)
    E = "L_f"
    def MK(tag):
        if P["marks"] and tag in P["marks"]: A(f"; MARK {P['marks'][tag]}")
    hd = sum(v << (4 * i) for i, v in enumerate(HD))
    GT = ""
    if P["gtab"]:
        t = sum(v << (4 * i) for i, v in enumerate(P["gtab"]))
        GT = f"s_lshl_b32 s15, s15, 2\ns_mov_b32 s16, {hex(t & 0xffffffff)}\ns_mov_b32 s17, {hex(t >> 32)}\ns_lshr_b64 s[16:17], s[16:17], s15\ns_and_b32 s15, s16, 15"
    CP = ""
    if P["cpf"]:
        n0, n1 = P["cpf"]
        CP = f"""s_getpc_b64 s[42:43]
{E}_pc:
s_lshr_b32 s3, s2, 3
s_mul_i32 s3, s3, {n1}
v_mov_b32 v3, s3
v_cmp_gt_u32 vcc, {n0}, v0
v_cndmask_b32 v3, v3, 0, vcc
v_add_lshl_u32 v3, v3, v0, 7
v_min_u32 v3, {E}_end-{E}_pc, v3
v_mov_b32 v5, s43
v_add_co_u32 v4, vcc, s42, v3
v_addc_co_u32 v5, vcc, 0, v5, vcc
v_cmp_gt_u32 vcc, {n0 + n1}, v0
s_and_b64 exec, exec, vcc
s_cbranch_execz {E}_np0
global_load_dword v167, v[4:5], off
{E}_np0:
s_mov_b64 exec, -1"""
    COMMON = f"""
s_and_b32 s14, s40, 1
s_lshl_b32 s14, s14, 3
s_and_b32 s15, s41, 7
s_add_u32 s14, s14, s15
s_lshr_b32 s15, s40, 1
s_lshl_b32 s15, s15, 2
s_lshr_b32 s16, s41, 3
s_add_u32 s15, s15, s16
{GT}
s_lshl_b32 s17, s15, 2
s_mov_b32 s18, {hex(hd & 0xffffffff)}
s_mov_b32 s19, {hex(hd >> 32)}
s_lshr_b64 s[18:19], s[18:19], s17
s_and_b32 s18, s18, 15
s_lshl_b32 s17, s15, 1
s_sub_u32 s19, s17, s18
s_mov_b32 s18, {sum(1 << g for g in H1)}
s_bitcmp1_b32 s18, s15
s_cselect_b32 s18, 1, 2
s_mov_b32 s46, {WS_BYTES}
s_mov_b32 s47, 0x20000
"""
    A(f"""
s_cmp_ge_u32 s2, 256
s_cbranch_scc1 {E}_end
{CP}
v_lshrrev_b32 v1, 6, v0
s_load_dwordx2 s[12:13], s[0:1], 64
v_readfirstlane_b32 s29, v1
v_and_b32 v2, 63, v0
s_and_b32 s40, s2, 7
s_lshr_b32 s41, s2, 3
s_cmp_lt_u32 s29, 8
s_cbranch_scc1 {E}_comp
s_load_dwordx4 s[4:7], s[0:1], 0
s_load_dwordx4 s[8:11], s[0:1], 32
""")
    A(COMMON)
    if P["dbghw"]: A("s_getreg_b32 s79, hwreg(HW_REG_HW_ID)")
    ra, rb = P["krot"]
    A(f"""
s_setprio {P['lprio']}
s_sub_u32 s29, s29, 8
s_mov_b32 s22, 2621440
s_mov_b32 s23, 0x20000
s_mov_b32 s27, 0x20000
s_mov_b32 s50, 2211840
s_mov_b32 s51, 0x20000
s_cmp_lt_u32 s15, 15
s_cselect_b32 s26, 2457600, 0
v_lshrrev_b32 v3, 3, v2
s_lshl_b32 s30, s29, 5
s_lshl_b32 s31, s14, 7
s_add_u32 s30, s30, s31
v_add_u32 v3, s30, v3
v_lshrrev_b32 v4, 4, v2
v_and_b32 v5, 7, v2
v_xor_b32 v6, v5, v4
v_xor_b32 v7, 4, v6
s_movk_i32 s32, 1280
v_mul_lo_u32 v3, v3, s32
v_lshl_add_u32 v10, v6, 4, v3
v_lshl_add_u32 v11, v7, 4, v3
v_add_u32 v11, 10240, v11
v_and_b32 v5, 15, v2
v_lshlrev_b32 v6, 2, v4
v_xor_b32 v5, v5, v6
s_lshl_b32 s30, s29, 4
v_add_u32 v4, s30, v4
v_mul_u32_u24 v6, 3840, v4
v_mul_u32_u24 v7, 3456, v4
s_lshl_b32 s31, s17, 7
s_lshl_b32 s33, s19, 7
v_lshl_add_u32 v6, v5, 4, v6
v_lshl_add_u32 v7, v5, 4, v7
v_add_u32 v12, s31, v6
v_add_u32 v44, s33, v7
s_lshl_b32 s33, s18, 3
v_mov_b32 v8, 0x7fffffff
v_cmp_gt_u32 vcc, s33, v5
s_lshr_b32 s35, s40, 1
s_mul_i32 s35, s35, {ra}
s_and_b32 s36, s40, 1
s_mul_i32 s36, s36, {rb}
s_add_u32 s35, s35, s36
s_bfe_u32 s36, s41, {0x10000 + P['kbit']}
s_mul_i32 s36, s36, {P['kpar']}
s_add_u32 s35, s35, s36
s_cmp_ge_u32 s35, 10
s_cselect_b32 s36, 10, 0
s_sub_u32 s35, s35, s36
""")
    for j in range(1, 4): A(f"v_add_u32 v{12+j}, {j*4*3840}, v12\nv_add_u32 v{44+j}, {j*4*3456}, v44")
    for j in range(4): A(f"v_cndmask_b32 v{44+j}, v8, v{44+j}, vcc")
    A(f"""
s_mul_i32 s36, s35, {64*3840}
s_mul_i32 s39, s35, {64*3456}
s_lshl_b32 s35, s35, 7
s_lshl_b32 s37, s29, 12
{"; MARK " + str(P["marks"]["lJ"]) if P["marks"] and "lJ" in P["marks"] else ""}
s_waitcnt lgkmcnt(0)
{"; MARK " + str(P["marks"]["lK"]) if P["marks"] and "lK" in P["marks"] else ""}
s_mov_b32 s20, s4
s_mov_b32 s21, s5
s_mov_b32 s24, s6
s_mov_b32 s25, s7
s_mov_b32 s48, s8
s_mov_b32 s49, s9
""")
    if P["nold"]: A("s_mov_b32 s22, 0\ns_mov_b32 s26, 0\ns_mov_b32 s50, 0")
    class VQ_:
        def __init__(s): s.q = []
        def op(s, tag, txt): A(txt); s.q.append(tag)
        def need(s, *tags):
            idx = max([i for i, t in enumerate(s.q) if t in tags], default=-1)
            if idx >= 0:
                A(f"s_waitcnt vmcnt({len(s.q) - 1 - idx})"); s.q = s.q[idx + 1:]
    LQ = VQ_()
    def ld(kind, st):
        base = SLOT[(kind, st)] * 16384
        o = []
        for j in range(4):
            if kind == "x": t = f"buffer_load_dwordx4 v{10+(j&1)}, s[20:23], s{35 if j < 2 else 30} offen lds"
            elif kind == "w": t = f"buffer_load_dwordx4 v{12+j}, s[24:27], s36 offen lds"
            else: t = f"buffer_load_dwordx4 v{44+j}, s[48:51], s39 offen lds"
            t = f"s_add_u32 m0, s37, {base + j*1024}\n" + t
            if kind == "x" and j == 0: t = "s_add_u32 s30, s35, 20480\n" + t
            if j == 3:
                r, d = {"x": (35, 128), "w": (36, 64*3840), "u": (39, 64*3456)}[kind]
                t += f"\ns_add_u32 s{r}, s{r}, {d}\ns_cmp_eq_u32 s{r}, {10*d}\ns_cselect_b32 s{r}, 0, s{r}"
            o.append(((kind, st), t))
        return o
    def issue_at(f, fill=(), sp=None):
        ps = sum([ld(*l) for l in lord if EV[l] == f], [])
        fill = list(fill); nf = max(len(ps) - 1, 1); per = (len(fill) + nf - 1) // nf
        if sp is not None: per = 0
        for i, (tag, t) in enumerate(ps):
            LQ.op(tag, t)
            if i >= 1 or len(ps) == 1:
                for o in fill[:per]: A(o)
                fill = fill[per:]
        if sp is not None and fill: fill = [f"s_setprio {sp}"] + fill + [f"s_setprio {P['lprio']}"]
        for o in fill: A(o)
    issue_at(-2)
    MK("lI")
    A(f"""
s_load_dwordx2 s[6:7], s[0:1], 16
v_mov_b32 v1, 0
v_lshrrev_b32 v0, 2, v2
v_cmp_eq_u32 vcc, {DONE // 16}, v0
v_cndmask_b32 v1, v1, 12, vcc
v_mov_b32 v0, 0x100
v_cmp_eq_u32 vcc, {RLY // 4}, v2
v_cndmask_b32 v1, v1, v0, vcc
v_lshlrev_b32 v7, 2, v2
ds_write_b32 v7, v1
v_and_b32 v1, 3, v2
v_lshlrev_b32 v1, 2, v1
s_lshl_b32 s30, s29, 2
v_mov_b32 v7, s30
""")
    A(f"""
s_mov_b32 s44, s12
s_mov_b32 s45, s13
s_mov_b32 s52, s10
s_mov_b32 s53, s11
s_mov_b32 s55, 0x20000
s_lshl_b32 s57, s29, 8
s_add_u32 s58, s57, s2
s_min_u32 s57, s58, 539
s_mul_i32 s59, s57, 13108
s_lshr_b32 s59, s59, 16
s_mul_i32 s60, s59, 5
s_sub_u32 s60, s57, s60
s_mul_i32 s61, s59, 20480
s_lshl_b32 s62, s60, 8
s_add_u32 s62, s62, s61
s_add_u32 s63, s62, 5120
v_lshrrev_b32 v3, 5, v2
v_and_b32 v4, 31, v2
v_mul_u32_u24 v5, 10240, v3
v_lshl_add_u32 v98, v4, 3, v5
s_cmp_ge_u32 s58, 540
s_cselect_b32 s54, 0, 2211840
s_mov_b32 s64, s12
s_mov_b32 s65, s13
s_mov_b32 s67, 0x20000
s_cselect_b32 s66, 0, {WS_BYTES}
v_lshrrev_b32 v5, 3, v4
v_and_b32 v6, 7, v2
v_lshlrev_b32 v5, 10, v5
v_lshl_add_u32 v5, v6, 6, v5
v_lshl_add_u32 v5, v3, 9, v5
s_add_u32 s34, s37, {W2S * 16384}
v_add_u32 v48, s34, v5
v_lshlrev_b32 v6, 4, v2
v_add_u32 v49, s34, v6
v_add_u32 v50, s37, v6
v_add_u32 v51, 65536, v50
v_add_u32 v52, 131072, v50
s_mov_b32 s56, 0xffff0000
v_and_b32 v53, 3, v2
v_lshrrev_b32 v54, 3, v2
v_lshl_add_u32 v54, v53, 3, v54
s_lshl_b32 s30, s29, 5
v_add_u32 v54, s30, v54
v_lshlrev_b32 v54, 2, v54
s_lshl_b32 s69, s60, 12
s_add_u32 s69, s69, s61
s_add_u32 s69, s69, {W2F}
s_mul_i32 s68, s60, 108
s_add_u32 s68, s68, s59
s_lshl_b32 s68, s68, 7
s_add_u32 s68, s68, {FW}
s_waitcnt lgkmcnt(0)
""")
    W2R = 100
    def w2loads():
        for j in range(8):
            LQ.op("w2", f"buffer_load_dwordx2 {vr(W2R+2*j,2)}, v98, s[52:55], s{62 + (j >> 2)} offen offset:{(j & 3) * 1280}")
    SD, SA, ST_ = 16, 32, 40
    for i in range(8): A(f"v_mov_b32 v{SA+i}, 0")
    def sreads(k, d):
        a = SLOT[("x", k)] * 16384
        return [f"ds_read_b128 {vr(d+4*j,4)}, v{50 + (a >> 16)} offset:{(a & 0xffff) + j*1024}" for j in range(4)]
    def sops(d):
        ops = []
        for i in range(4):
            for jp in range(2):
                for e, j in enumerate((2*jp, 2*jp+1)):
                    x = d + 4*j + i
                    ops += [f"v_lshlrev_b32 v{ST_+2*e}, 16, v{x}", f"v_and_b32 v{ST_+1+2*e}, s56, v{x}"]
                for q in range(2):
                    for e, j in enumerate((2*jp, 2*jp+1)):
                        u = ST_ + 2*e + q
                        ops += [f"v_add_f32 v{SA+2*j}, v{SA+2*j}, v{u}", f"v_fmac_f32 v{SA+1+2*j}, v{u}, v{u}"]
        return ops
    def sfin():
        o = []
        for m in ("quad_perm:[1,0,3,2]", "quad_perm:[2,3,0,1]", "row_half_mirror"):
            for i in range(8): o.append(f"v_add_f32_dpp v{SA+i}, v{SA+i}, v{SA+i} {m} row_mask:0xf bank_mask:0xf")
        for j in range(1, 4):
            o += [f"v_cmp_eq_u32 vcc, {j}, v53", f"v_cndmask_b32 v{SA}, v{SA}, v{SA+2*j}, vcc", f"v_cndmask_b32 v{SA+1}, v{SA+1}, v{SA+1+2*j}, vcc"]
        o += f"""s_mov_b32 s31, 0x3acccccd
s_mov_b32 s32, 0x3727c5ac
v_mul_f32 v{SA}, s31, v{SA}
v_mul_f32 v{SA+2}, v{SA}, v{SA}
v_fma_f32 v{SA+1}, v{SA+1}, s31, -v{SA+2}
v_max_f32 v{SA+1}, 0, v{SA+1}
v_cvt_pk_bf16_f32 v{SA+1}, 0, v{SA+1}
v_add_f32 v{SA+1}, s32, v{SA+1}
v_cvt_pk_bf16_f32 v{SA+1}, 0, v{SA+1}
v_sqrt_f32 v{SA+1}, v{SA+1}
ds_write_b32 v54, v{SA} offset:{XS}
s_nop 0
v_cvt_pk_bf16_f32 v{SA+1}, 0, v{SA+1}
v_rcp_f32 v{SA+1}, v{SA+1}
s_nop 0
ds_write_b32 v54, v{SA+1} offset:{RB}""".split("\n")
        return o
    lastS = max(t for t in range(10) if SS[t])
    def work(t):
        fill = []
        if not P["nostat"]:
            for i, k in enumerate(SS[t]):
                for o in sreads(k, SD if i == 0 else 56 + 16 * (i - 1)): A(o)
            for i, k in enumerate(SS[t]):
                fill += [f"s_waitcnt lgkmcnt({4 * (len(SS[t]) - 1 - i)})"] + sops(SD if i == 0 else 56 + 16 * (i - 1))
        if t == lastS + 1: fill += sfin() + ["s_waitcnt lgkmcnt(0)"]
        issue_at(t - 1, fill, P['sprio'][t >= N])
        if t == P["w2t"]:
            A("v_bfe_u32 v55, v2, 1, 4\nv_mul_u32_u24 v55, 1280, v55\nv_and_b32 v0, 1, v2\nv_lshl_add_u32 v55, v0, 7, v55")
            LQ.op("w2t", "buffer_load_dword v55, v55, s[52:55], s62 offen")
        if t == P["w2at"]: w2loads()
    for st in range(10):
        if st >= 1: work(st - 1)
        MK(f"i{st-1}")
        LQ.need(("x", st), ("w", st), *([("u", st)] if st < N else []), *[("x", k) for k in SS[st]])
        MK(f"a{st-1}")
        A("s_barrier")
        MK(f"s{st-1}")
    work(9)
    LQ.need(("u", N))
    A("s_barrier")
    MK("lA")
    npd = [0]
    def dwait(st):
        k = npd[0]; npd[0] += 1
        A(f"""
{E}_dw{k}:
ds_read_b32 v0, v1 offset:{DONE}
s_waitcnt lgkmcnt(0)
v_cmp_gt_u32 vcc, {st + 3}, v0
s_cbranch_vccz {E}_dx{k}
{"s_sleep " + str(P['dsl']) if P['dsl'] else ""}
s_branch {E}_dw{k}
{E}_dx{k}:
""")
    def land(t):
        LQ.need(("u", t - 10 + N))
        A(f"v_mov_b32 v0, {t}\nds_write_b32 v7, v0 offset:{LAND}")
        MK(f"L{t}")
    lastf = max(EV.values())
    nl = 11
    def lands(ev):
        nonlocal nl
        while nl <= TEND and EV[("u", nl - 10 + N)] <= ev:
            land(nl); nl += 1
    def pubwait():
        A(f"""
{E}_pbw:
ds_read_b32 v0, v1 offset:{PUB}
s_waitcnt lgkmcnt(0)
v_cmp_eq_u32 vcc, 0, v0
s_cbranch_vccz {E}_pbx
s_sleep {P['dsl']}
s_branch {E}_pbw
{E}_pbx:
""")
        MK("lP")
    for ev in range(9, max(lastf, 10) + 1):
        if ev == 10 and P["pgw"]: pubwait()
        if 10 <= ev <= lastf: dwait(ev); MK(f"D{ev}")
        issue_at(ev)
        if ev == max(lastf, 10) and P['w2at'] is None: w2loads()
        lands(ev)
    MK("lL")
    A("s_mov_b32 s30, 0x05040100\ns_mov_b32 s31, 0x07060302")
    LQ.need("w2")
    for c in range(4):
        for k in range(4): A(f"v_perm_b32 v{56+4*c+k}, v{W2R+2+4*k+(c>>1)}, v{W2R+4*k+(c>>1)}, s{30+(c&1)}")
    if occ[W2S] > max(lastf, 9): dwait(occ[W2S])
    for c in range(4): A(f"ds_write_b128 v48, {vr(56+4*c,4)} offset:{16*c}")
    for c in range(4): A(f"ds_read_b128 {vr(88+4*c,4)}, v49 offset:{1024*c}")
    A(f"s_branch {E}_ffn")

    def head_scalars():
        A(f"""
s_lshl_b32 s14, s40, 2
s_lshr_b32 s15, s41, 3
s_add_u32 s14, s14, s15
s_mul_i32 s16, s14, 5
s_add_u32 s16, s16, 1
s_lshr_b32 s16, s16, 1
s_lshl_b32 s16, s16, 9
s_add_u32 s16, s16, {QF}
s_movk_i32 s17, 1024
s_bitcmp1_b32 s14, 0
s_cselect_b32 s17, -504, s17
s_and_b32 s19, s41, 7
s_lshl_b32 s15, s19, 3
s_mul_i32 s19, s19, {8 * TS * P['rot']}
""")
    def poll_addr(dst, t0, t1):
        A(f"""
s_mul_i32 s{t0}, s14, 20
s_add_u32 s{t1}, s{t0}, 19
s_lshr_b32 s{t0}, s{t0}, 6
s_lshr_b32 s{t1}, s{t1}, 6
s_sub_u32 s{t1}, s{t1}, s{t0}
s_lshl_b32 s{t0}, s{t0}, 12
s_add_u32 s{t0}, s{t0}, {FQ}
s_lshl_b32 s{t1}, s{t1}, 12
v_mul_u32_u24 v{dst}, s{t1}, v3
v_lshl_add_u32 v{dst}, v4, 7, v{dst}
v_add_u32 v{dst}, s{t0}, v{dst}
""")
    A(f"{E}_comp:\ns_load_dwordx4 s[64:67], s[0:1], 48")
    if P["dbghw"]: A("s_getreg_b32 s79, hwreg(HW_REG_HW_ID)")
    if P["tla"]:
        A(f"""
s_cmp_ge_u32 s29, 4
s_cbranch_scc1 {E}_nt
s_load_dwordx4 s[4:7], s[0:1], 0
s_load_dwordx4 s[8:11], s[0:1], 32
s_bitcmp1_b32 s29, 1
s_waitcnt lgkmcnt(0)
s_cselect_b64 s[4:5], s[8:9], s[4:5]
s_cselect_b64 s[6:7], s[10:11], s[6:7]
s_bitcmp1_b32 s29, 0
s_cselect_b64 s[4:5], s[6:7], s[4:5]
s_mov_b32 s3, 0x200000
s_cmp_ge_u32 s29, {P["tla"]}
s_cbranch_scc1 {E}_nu
s_load_dword s63, s[4:5], 0
s_load_dword s63, s[4:5], s3
s_branch {E}_nu
{E}_nt:
""")
    if P["spf"]:
        sh, nj = P["spf"]
        lw = 2 if P["tla"] else 3
        if P["tla"]: nj *= 2
        A(f"""
s_getpc_b64 s[42:43]
{E}_pc:
s_lshl_b32 s3, s41, {lw}
s_and_b32 s62, s29, {(1 << lw) - 1}
s_add_u32 s3, s3, s62
s_lshl_b32 s3, s3, {sh}
s_sub_u32 s42, s42, {E}_pc-{name}
s_subb_u32 s43, s43, 0
""")
        for j in range(nj):
            A(f"s_min_u32 s62, s3, {E}_end-{name}\ns_load_dword s63, s[42:43], s62")
            if j < nj - 1: A(f"s_add_u32 s3, s3, {(32 << lw) << sh}")
    if P["tla"]: A(f"{E}_nu:")
    A(COMMON)
    A(f"""
v_lshrrev_b32 v3, 5, v2
v_and_b32 v4, 31, v2
s_and_b32 s52, s29, 1
s_lshr_b32 s53, s29, 1
s_lshl_b32 s30, s52, 1
s_xor_b32 s30, s30, s53
s_mov_b32 s56, 0x3f803f80
s_lshl_b32 s31, s30, 1
v_bfe_u32 v5, v2, 1, 3
v_xor_b32 v5, v5, v3
v_xor_b32 v5, s31, v5
s_lshl_b32 s31, s52, 13
s_add_u32 s31, s31, {P['xb']}
v_lshlrev_b32 v6, 7, v4
v_add_u32 v6, s31, v6
""")
    for pos in range(4):
        A(f"v_xor_b32 v7, {2*pos}, v5\nv_lshl_add_u32 v{16+pos}, v7, 4, v6")
    A(f"""
v_bfe_u32 v5, v2, 2, 2
v_lshl_add_u32 v6, v3, 3, v5
v_lshlrev_b32 v6, 8, v6
v_bfe_u32 v7, v2, 1, 1
v_lshl_add_u32 v6, v7, 3, v6
v_add_u32 v6, {P['wb']}, v6
v_bfe_u32 v7, v2, 4, 1
v_and_b32 v8, 1, v2
v_lshl_add_u32 v7, v7, 1, v8
s_and_b32 s55, s53, 1
s_lshl_b32 s31, s55, 3
v_add_u32 v7, s31, v7
v_lshlrev_b32 v5, 2, v5
v_xor_b32 v7, v7, v5
v_lshl_add_u32 v6, v7, 4, v6
v_xor_b32 v7, 64, v6
""")
    for pos in range(4):
        A(f"s_xor_b32 s31, s30, {pos}\ns_lshl_b32 s31, s31, 12")
        for t in range(2):
            A(f"v_add_u32 v{20+pos*2+t}, s31, v{6+t}")
    A("""
v_and_b32 v5, 15, v2
v_bfe_u32 v6, v2, 4, 1
v_cmp_eq_u32 vcc, v5, v6
v_mov_b32 v5, s56
""")
    for i in range(4): A(f"v_cndmask_b32 v{88+i}, 0, v5, vcc")
    A(f"""
s_lshl_b32 s31, s52, 8
v_lshl_add_u32 v48, v3, 4, s31
s_add_u32 s31, s31, {XS}
v_lshl_add_u32 v9, v4, 2, s31
v_add_u32 v12, {RB - XS}, v9
s_movk_i32 s32, {CSQ}
s_cmp_ge_u32 s29, 4
s_cselect_b32 s32, {CSS * 16384 - 8192}, s32
s_lshl_b32 s33, s29, 11
s_add_u32 s33, s33, s32
v_lshl_add_u32 v7, v2, 4, s33
s_lshl_b32 s33, s53, 12
s_add_u32 s33, s33, s32
v_lshl_add_u32 v8, v3, 11, s33
v_bfe_u32 v5, v2, 4, 1
v_lshl_add_u32 v8, v5, 4, v8
v_bfe_u32 v5, v2, 2, 2
v_lshl_add_u32 v8, v5, 8, v8
v_and_b32 v5, 3, v2
v_lshl_add_u32 v8, v5, 2, v8
v_lshlrev_b32 v5, 4, v2
s_lshl_b32 s31, s15, 3
s_add_u32 s31, s31, s29
s_cmp_eq_u32 s31, {15 * 8}
s_cselect_b32 s42, 1, 0
s_mul_i32 s62, s14, {140 * 128}
s_add_u32 s62, s62, {FL2}
""")
    def kdep():
        A(f"""
s_waitcnt lgkmcnt(0)
s_mov_b32 s44, s12
s_mov_b32 s32, s12
s_mov_b32 s33, s13
s_mov_b32 s45, s13
s_mov_b32 s48, s64
s_mov_b32 s49, s65
s_mov_b32 s64, s66
s_mov_b32 s65, s67
s_mov_b32 s67, 0x20000
s_mov_b32 s66, 256
v_mov_b32 v49, 1
s_cmp_eq_u32 s42, 0
s_cbranch_scc1 {E}_nclr
s_mov_b32 s31, s62
v_mov_b32 v92, 0
v_mov_b32 v93, 0
v_mov_b32 v94, 0
v_mov_b32 v95, 0
""")
        for n in range(17):
            A(f"buffer_store_dwordx4 v[92:95], v5, s[44:47], s31 offen offset:{(n & 3) * 1024} sc1")
            if n & 3 == 3: A("s_add_u32 s31, s31, 4096")
        A(f"s_mov_b32 exec_hi, 0\nbuffer_store_dwordx4 v[92:95], v5, s[44:47], s31 offen offset:1024 sc1\ns_mov_b64 exec, -1\n{E}_nclr:")
    if not P["spf"]: kdep()
    A("s_mov_b32 s43, s18\ns_mov_b32 s69, s19")
    KVD = ""
    if P["kvd"]:
        d0, d1, dm = P["kvd"]
        KVD = f"s_sub_u32 s68, s14, 2\ns_cselect_b32 s31, 0, 99\ns_mul_i32 s68, s68, {d1}\ns_add_u32 s68, s68, {d0}\ns_min_u32 s68, s68, {dm}\ns_cmp_lt_u32 s54, 10\ns_cselect_b32 s31, 0, s31\ns_min_u32 s68, s68, s31"
    def kvdelay(tag):
        if P["kvd"]: A(f"{E}_kd{tag}:\ns_sub_u32 s68, s68, 1\ns_cbranch_scc1 {E}_ke{tag}\ns_sleep 4\ns_branch {E}_kd{tag}\n{E}_ke{tag}:")
    A(f"""
s_lshl_b32 s39, s14, 2
s_lshl_b32 s31, s52, 1
s_add_u32 s39, s39, s31
s_lshr_b32 s30, s39, 1
s_mov_b32 s34, 0
s_mov_b32 s35, 0x20000
s_mov_b32 s8, 1.0
s_cmp_ge_u32 s29, 4
s_cbranch_scc1 {E}_ch
s_add_u32 s54, s17, s55
s_cmp_lt_u32 s54, 10
s_cselect_b32 s8, {f32bits(QSCALE)}, s8
s_cselect_b32 s31, 0, 10
s_cselect_b32 s10, 0, 4
s_cmp_ge_u32 s54, 20
s_cselect_b32 s31, 20, s31
s_cselect_b32 s10, 8, s10
s_cselect_b32 s9, 1, 0
s_sub_u32 s31, s54, s31
s_lshl_b32 s6, s31, 12
s_add_u32 s10, s10, s6
s_lshl_b32 s30, s30, 7
s_add_u32 s10, s10, s30
s_add_u32 s10, s10, {FQ}
s_mul_i32 s4, s39, {TS}
s_lshl_b32 s5, s54, 12
s_lshl_b32 s6, s31, 10
s_add_u32 s6, s6, {VOFF}
s_cmp_eq_u32 s9, 1
s_cselect_b32 s5, s6, s5
s_add_u32 s4, s4, s5
s_add_u32 s4, s4, {QF}
s_cmp_eq_u32 s9, 1
s_mov_b32 s5, {TS}
s_cselect_b32 s5, {2*SV}, s5
s_add_u32 s5, s5, s4
s_add_u32 s6, s4, {TS}
s_add_u32 s7, s5, {TS}
s_cmp_ge_u32 s54, 30
s_cselect_b32 s9, 3, s9
{KVD}
s_branch {E}_cj
{E}_ch:
s_add_u32 s54, s19, s55
s_mul_i32 s10, s30, 27
s_add_u32 s10, s10, s54
s_lshl_b32 s10, s10, 7
s_lshl_b32 s31, s54, 2
s_add_u32 s10, s10, {FH}
s_mul_i32 s4, s39, 108
s_add_u32 s4, s4, s31
s_lshl_b32 s4, s4, 10
s_add_u32 s4, s4, {HF}
s_add_u32 s5, s4, {108*1024}
s_mov_b32 s6, 0
s_mov_b32 s7, 0
s_cmp_lt_u32 s55, s18
s_cselect_b32 s9, 2, 3
s_cselect_b32 s34, {WS_BYTES}, 0
{E}_cj:
""")
    head_scalars()
    A(f"""
s_lshr_b32 s11, s15, 1
s_add_u32 s15, s15, s29
s_mul_i32 s20, s15, {TS}
s_add_u32 s20, s20, s16
s_add_u32 s18, s20, s17
s_add_u32 s21, s16, s19
s_add_u32 s21, s21, 40960
s_mul_i32 s60, s15, 40960
s_mul_i32 s61, s14, 1280
s_add_u32 s60, s60, s61
s_add_u32 s60, s60, {OF}
s_sub_u32 s3, s60, 3072
s_lshl_b32 s61, s15, {12 - LF}
s_lshr_b32 s27, s14, {LF}
s_lshl_b32 s27, s27, 7
s_add_u32 s61, s61, s27
s_and_b32 s27, s14, {(1 << LF) - 1}
s_lshl_b32 s27, s27, 2
s_add_u32 s61, s61, s27
s_add_u32 s61, s61, {FL2}
s_lshr_b32 s50, s40, 1
s_lshl_b32 s50, s50, 3
s_and_b32 s51, s41, 7
s_add_u32 s50, s50, s51
s_lshl_b32 s50, s50, 1
s_bfe_u32 s51, s41, 0x10003
s_lshr_b32 s52, s29, 2
s_xor_b32 s53, s51, s52
s_add_u32 s50, s50, s53
s_mul_i32 s54, s52, {P['bq']}
s_xor_b32 s54, s54, s29
s_and_b32 s54, s54, 3
s_lshl_b32 s56, s53, 2
s_add_u32 s56, s56, s54
s_lshl_b32 s56, s56, 3
s_and_b32 s55, s40, 1
s_lshl_b32 s55, s55, 1
s_lshr_b32 s58, s41, 4
s_add_u32 s55, s55, s58
s_mul_i32 s55, s55, 320
s_lshl_b32 s58, s51, 8
s_add_u32 s55, s55, s58
s_lshl_b32 s58, s54, 4
s_add_u32 s55, s55, s58
s_mul_i32 s57, s50, 40960
s_add_u32 s55, s55, s57
s_mul_i32 s59, s54, 10240
s_add_u32 s57, s57, s59
s_add_u32 s57, s57, {OF}
s_mul_i32 s58, s54, 30720
s_add_u32 s58, s58, {WO}
s_mul_i32 s59, s54, 5120
s_add_u32 s59, s59, {PR}
s_lshl_b32 s53, s51, 7
s_sub_u32 s53, 64, s53
s_mov_b32 s50, 2621440
s_mov_b32 s51, 0x20000
""")
    MK("cJ")
    if P["spf"]: kdep()
    MK("cK")
    A(f"""
v_cmp_gt_u32 s[22:23], 20, v4
v_cmp_gt_u32 s[24:25], 32, v2
s_cmp_ge_u32 s29, 4
s_cbranch_scc1 {E}_hp
s_setprio {P['qprio']}
""")
    poll_addr(50, 30, 31)
    A(f"""
s_cmp_eq_u32 s9, 1
s_cbranch_scc1 {E}_vloop
""")
    D = P["D"]
    FB = [[56, 60, 64, 68], [72, 76, 80, 84]] if D == 1 else [[72, 76, 80, 84], [56, 60, 64, 68], [28, 32, 36, 164]]
    QL, RL, KL = 52, 14, 92
    def acc(ct, tt): return 96 + (ct * 2 + tt) * 16
    class Q:
        def __init__(s): s.q = []
        def op(s, tag, txt): A(txt); s.q.append(tag)
        def need(s, *tags):
            idx = max([i for i, t in enumerate(s.q) if t in tags], default=-1)
            if idx >= 0:
                A(f"s_waitcnt lgkmcnt({len(s.q) - 1 - idx})"); s.q = s.q[idx + 1:]
        def drain(s):
            if s.q: A("s_waitcnt lgkmcnt(0)"); s.q = []
    def rd(L, s0, p, i):
        s, pos = p >> 2, p & 3
        x0, x1, w0, w1 = FB[p % (D + 1)]
        isx = i in (0, 3)
        r = 16 + pos if isx else 20 + pos * 2 + (i >= 4)
        a = SLOT[("x" if isx else s0, s)] * 16384
        if not 0 <= a - L.cur[r] <= 49152:
            nb = a if a < L.cur[r] else a - 49152
            A(f"v_add_u32 v{r}, {(nb - L.cur[r]) & 0xffffffff}, v{r}"); L.cur[r] = nb
        o = a - L.cur[r]
        L.op((p, i), [f"ds_read_b128 {vr(x0,4)}, v{r} offset:{o}",
                      f"ds_read_b64_tr_b16 {vr(w0,2)}, v{r} offset:{o}",
                      f"ds_read_b64_tr_b16 {vr(w0+2,2)}, v{r} offset:{o+1024}",
                      f"ds_read_b128 {vr(x1,4)}, v{r} offset:{o+4096}",
                      f"ds_read_b64_tr_b16 {vr(w1,2)}, v{r} offset:{o}",
                      f"ds_read_b64_tr_b16 {vr(w1+2,2)}, v{r} offset:{o+1024}"][i])
    def prep():
        o = []
        for t in range(2):
            c = 10 + t; h = 56 + 4 * t
            o.append(f"""v_cvt_pk_bf16_f32 v{h+2}, 0, v{c}
v_cvt_pk_bf16_f32 v{64+2*t}, -v{160+t}, -v{160+t}
v_sub_f32 v{h+2}, v{c}, v{h+2}
v_cvt_pk_bf16_f32 v{65+2*t}, -v{160+t}, 0
v_cvt_pk_bf16_f32 v{h+3}, 0, v{h+2}
v_cvt_pk_bf16_f32 v{h}, v{c}, v{h+2}
v_sub_f32 v{h+3}, v{h+2}, v{h+3}
v_cvt_pk_bf16_f32 v{h+1}, v{h+3}, 0""".split("\n"))
        return [x for pr in zip(*o) for x in pr]
    def qloads():
        A(f"buffer_load_dwordx4 {vr(QL,4)}, v5, s[44:47], s20 offen{SC}")
        A(f"buffer_load_dwordx2 {vr(RL,2)}, v6, s[44:47], s18 offen{SC}")
        A(f"buffer_load_dwordx4 {vr(KL,4)}, v5, s[44:47], s21 offen{SC}")
    def idle():
        if P["pf"] or P["pf2"]: A(f"""
s_and_b32 s30, s41, 7
s_mul_i32 s30, s30, 80
s_and_b32 s28, s29, 3
s_mul_i32 s31, s28, 20
s_add_u32 s30, s30, s31
v_lshrrev_b32 v164, 1, v2
v_min_u32 v165, 19, v164
v_add_u32 v165, s30, v165
v_and_b32 v166, 1, v2
s_sub_u32 s30, s43, 1
v_min_u32 v1, s30, v166
v_add_u32 v1, s69, v1
v_lshlrev_b32 v1, 7, v1
s_movk_i32 s31, 3456
s_lshl_b32 s28, s28, 8
s_add_u32 s28, s28, s2
s_min_u32 s28, s28, 539
s_mul_i32 s30, s28, 13108
s_lshr_b32 s30, s30, 16
s_mul_i32 s27, s30, {20480 - 5*256}
s_lshl_b32 s28, s28, 8
s_add_u32 s27, s27, s28
v_and_b32 v13, 15, v164
v_mad_u32_u24 v164, v165, s31, v1
v_mul_u32_u24 v13, 1280, v13
v_lshl_add_u32 v13, v166, 7, v13
v_add_u32 v165, s27, v13
""")
        A("s_waitcnt lgkmcnt(0)")
        if P["tlb"]:
            A(f"""
s_and_b32 s30, s41, {P["tlm"]}
s_cbranch_scc1 {E}_ntb
s_and_b32 s28, s29, 3
s_lshl_b32 s30, s28, 21
s_add_u32 s30, s30, 123392
""")
            for j in range(4):
                A(f"s_min_u32 s31, s30, {WS_BYTES - 128}\ns_load_dword s63, s[44:45], s31\ns_add_u32 s30, s30, {4 << 21}")
            A(f"""
s_and_b32 s28, s28, 1
s_lshl_b32 s28, s28, 21
s_load_dword s63, s[48:49], s28
s_load_dword s63, s[36:37], 0
{E}_ntb:
""")
        for st in range(N + 1, 10):
            if st == P["pf"]: A("global_load_dword v0, v164, s[36:37]")
            if st == P["pf2"]: A("global_load_dword v0, v165, s[38:39]")
            A("s_barrier")
    def loop(mode):
        vmode = mode == "v"; hw = mode == "h"; s0 = "u" if hw else "w"
        L = Q()
        L.cur = {r: P["xb"] if r < 20 else P["wb"] for r in range(16, 28)}
        A("s_barrier")
        MK("c0")
        stat = lambda: (L.op("st", "ds_read2_b32 v[160:161], v9 offset0:0 offset1:32"), L.op("st", "ds_read2_b32 v[162:163], v12 offset0:0 offset1:32"))
        for q in range(D):
            for i in range(6): rd(L, s0, q, i)
        def sync(p, s):
            L.need(*[(q, i) for q in range(p, p + D) for i in range(6)])
            if s < 10:
                MK(f"a{s}")
                A("s_barrier")
                MK(f"s{s}")
            else:
                A(f"v_mov_b32 v1, {s + 3}")
                L.op("dn", f"ds_write_b32 v50, v1")
                A(f"""
v_cmp_gt_u32 vcc, {s + 1}, v13
s_cbranch_vccz {E}_hk{s}
{E}_hl{s}:
ds_read_b32 v13, v48
s_waitcnt lgkmcnt(0)
v_cmp_gt_u32 vcc, {s + 1}, v13
s_cbranch_vccnz {E}_hl{s}
{E}_hk{s}:
""")
                if s + 1 >= P["qtry"]:
                    A(f"v_readlane_b32 s30, v13, 63\ns_and_b32 s30, s30, s68\ns_cbranch_scc0 {E}_hq{s}")
                    qloads()
                    A(f"s_mov_b32 s68, 0\n{E}_hq{s}:")
                MK(f"h{s}")
        CP_, CJ = P["csx"]
        for p in range(40):
            s, pos = p >> 2, p & 3
            hm = hw and s >= N
            if hw: s = tx(s)
            if hw and p == 4 * N:
                MK("hI")
                idle()
                A("s_barrier")
                MK("h9")
                for q in range(D):
                    for i in range(6): rd(L, s0, p + q, i)
                stat()
            b = FB[p % (D + 1)]
            bar = pos == 4 - D and p < 36
            sched = [[], [], [], []] if p + D > 39 or (hw and p < 4 * N <= p + D) else (P["schb"] if bar else P["sched"])
            if bar and P["bj"] < 0: sync(p, s)
            for j, (ct, tt) in enumerate(((0, 0), (0, 1), (1, 1), (1, 0))):
                L.need(*[(p, i) for i in ([0, 1, 2], [3], [4, 5], [])[j]])
                a = acc(ct, tt)
                c = "0" if p == 0 else vr(a, 16)
                w, x = vr(b[2 + ct], 4), vr(b[tt], 4)
                if vmode: A(f"v_mfma_f32_32x32x16_bf16 {vr(a,16)}, {x}, {w}, {c}")
                else: A(f"v_mfma_f32_32x32x16_bf16 {vr(a,16)}, {w}, {x}, {c}")
                if bar and P["bj"] == j: sync(p, s)
                if hm and pos == 3 - D and j == P["fj"] and p < 36: L.op("fl", "ds_read_b32 v13, v48")
                for i in sched[j]: rd(L, s0, p + D, i)
                if pos < 2 and j in (1, 3):
                    ct2 = j >> 1
                    c = "0" if p == 0 else vr(40 + 4 * ct2, 4)
                    A(f"v_mfma_f32_16x16x32_bf16 {vr(40+4*ct2,4)}, {vr(b[2+ct2],4)}, v[88:91], {c}")
                if p == P["cntp"] and j == 0 and mode == "q":
                    A(f"s_cmp_eq_u32 s42, 0\ns_cbranch_scc1 {E}_na\ns_waitcnt vmcnt(0)\ns_mov_b64 exec, 1\nbuffer_atomic_add v49, off, s[64:67], 0 offset:{CNT}\ns_mov_b64 exec, -1\n{E}_na:")
                if p == P["cntl"] and j == 0 and not hw:
                    A(f"buffer_load_dword v13, off, s[64:67], 0 offset:{CNT} sc1")
                if p == 38 and j == 0:
                    L.op("csw", f"ds_write_b128 v7, v[40:43]"); L.op("csw", f"ds_write_b128 v7, v[44:47] offset:1024")
                if p == CP_ and j == CJ:
                    if hm:
                        L.need("csw")
                        L.op("cf", f"ds_write_b32 v50, v49 offset:{CSF - DONE}")
                        A(f"""
{E}_hc:
ds_read_b32 v13, v51 offset:{CSF - DONE}
s_waitcnt lgkmcnt(0)
v_cmp_eq_u32 vcc, 0, v13
s_cbranch_vccnz {E}_hc
""")
                        L.q = []
                    else:
                        L.drain(); A("s_barrier")
                    L.op("st", f"ds_read_b32 v10, v8"); L.op("st", f"ds_read_b32 v11, v8 offset:1024")
                    if not hm: stat()
                if p == 39 and j == min(P["prp"]): L.need("st")
                if p == 39 and j in P["prp"]:
                    q_ = P["prp"].index(j); n_ = len(P["prp"])
                    for o in prep()[16 * q_ // n_: 16 * (q_ + 1) // n_]: A(o)
        MK("hA" if hw else "cA")
        for (ct, tt) in ((0, 0), (0, 1), (1, 1), (1, 0)):
            a = acc(ct, tt); w, x = vr(56 + 4 * ct, 2), vr(64 + 2 * tt, 2)
            if vmode: A(f"v_mfma_f32_32x32x8_bf16 {vr(a,16)}, {x}, {w}, {vr(a,16)}")
            else: A(f"v_mfma_f32_32x32x8_bf16 {vr(a,16)}, {w}, {x}, {vr(a,16)}")
    order = ((0, 0), (0, 1), (1, 1), (1, 0))
    loop("q")
    A(f"""
s_cmp_eq_u32 s9, 3
s_cbranch_scc1 {E}_pub
s_setprio {P['eprio']}
v_mul_f32 v162, s8, v162
v_mul_f32 v164, s8, v163
""")
    if not P["kvp"]: kvdelay("q")
    late = []
    for (ct, tt) in order:
        a = acc(ct, tt)
        if P["pk"]:
            for k in range(8): A(f"v_pk_mul_f32 {vr(a+2*k,2)}, {vr(a+2*k,2)}, {vr(162+2*tt,2)} op_sel_hi:[1,0]")
        else:
            for k in range(16): A(f"v_mul_f32 v{a+k}, v{a+k}, v{162+2*tt}")
        for k in range(8): A(f"v_cvt_pk_bf16_f32 v{a+k}, v{a+2*k}, v{a+2*k+1}")
        for j in range(2): A(f"buffer_store_dwordx4 {vr(a+4*j,4)}, v5, s[44:47], s{4+tt} offen offset:{(ct*2+j)*1024}{ST}")
    A(f"s_branch {E}_pub")
    QM, QR, KM, KR, V0, V1 = 8, 12, 16, 20, 24, 28
    S = [32, 48]; O = 64; CB = 80
    FL = 120
    KB = [(KM, KR), (124, 128)]; VB = [V0, 132]
    def vsetup():
        A(f"""
v_and_b32 v{FL+1}, 3, v2
v_lshlrev_b32 v{FL+1}, 2, v{FL+1}
s_lshl_b32 s26, s29, 2
s_add_u32 s26, s26, 64
v_mov_b32 v{FL+2}, s26
v_mul_u32_u24 v7, 320, v3
v_lshl_add_u32 v7, v4, 4, v7
v_add_u32 v7, 5120, v7
v_lshlrev_b32 v6, 4, v4
v_mov_b32 v1, 0x3f803f80
v_cmp_eq_u32 vcc, 20, v4
v_mov_b32 v56, 0
""")
        for i in range(8): A(f"v_cndmask_b32 v{V0+i}, 0, v1, vcc")
    A(f"""
{E}_hp:
s_load_dwordx4 s[36:39], s[0:1], {16 if P["tlb"] else 32}
s_setprio {P['hprio']}
s_sub_u32 s31, s29, 4
s_lshl_b32 s30, s31, 2
s_add_u32 s30, s30, {DONE}
v_mov_b32 v50, s30
v_xor_b32 v51, 4, v50
v_and_b32 v48, 7, v2
v_lshlrev_b32 v48, 2, v48
v_add_u32 v48, {LAND}, v48
v_mov_b32 v1, {RLY}
v_cmp_eq_u32 vcc, 63, v2
v_cndmask_b32 v48, v48, v1, vcc
v_lshlrev_b32 v6, 4, v4
s_lshr_b32 s30, s29, 1
s_lshl_b32 s68, 1, s30
s_waitcnt lgkmcnt(0)
""")
    loop("h")
    HP = {(0, 0): 104, (0, 1): 112, (1, 1): 144, (1, 0): 152}
    A(f"s_cmp_eq_u32 s9, 3\ns_cbranch_scc1 {E}_hd\nv_mov_b32 v164, v163")
    for (ct, tt) in order:
        a = acc(ct, tt); d = HP[(ct, tt)]
        for k in range(8): A(f"v_pk_mul_f32 {vr(a+2*k,2)}, {vr(a+2*k,2)}, {vr(162+2*tt,2)} op_sel_hi:[1,0]")
        for k in (range(7, -1, -1) if (ct, tt) == (0, 0) else range(8)): A(f"v_cvt_pk_bf16_f32 v{d+k}, v{a+2*k}, v{a+2*k+1}")
        for k in range(8): A(f"v_pk_max_i16 v{d+k}, v{d+k}, 0")
        for j in range(2):
            if 2 * order.index((ct, tt)) + j < P["hpre"]:
                A(f"buffer_store_dwordx4 {vr(d+4*j,4)}, v5, s[32:35], s{4+tt} offen offset:{(ct*2+j)*1024}{ST}")
    A(f"{E}_hd:")
    vsetup()
    A(f"""
s_cmp_eq_u32 s68, 0
s_cbranch_scc1 {E}_at2
{E}_hw0:
ds_read_b32 v57, v56 offset:{RLY}
s_waitcnt lgkmcnt(0)
v_readfirstlane_b32 s30, v57
s_and_b32 s30, s30, s68
s_cbranch_scc1 {E}_hw1
s_sleep 1
s_branch {E}_hw0
{E}_hw1:
""")
    qloads()
    A(f"s_branch {E}_at2")
    A(f"{E}_vloop:")
    A(f"""
v_and_b32 v1, 19, v2
v_bfe_u32 v6, v2, 2, 1
v_lshl_add_u32 v1, v6, 3, v1
v_bfe_u32 v6, v2, 3, 1
v_lshl_add_u32 v1, v6, 2, v1
v_mul_u32_u24 v6, {SV}, v3
v_lshl_add_u32 v51, v1, 4, v6
""")
    loop("v")
    A(f"s_setprio {P['eprio']}")
    kvdelay("v")
    for tt in range(2):
        for q in range(4):
            A(f"ds_read_b128 {vr(16+16*tt+4*q,4)}, v48 offset:{RB + tt*128 + q*32}")
    for n, (ct, tt) in enumerate(order):
        a = acc(ct, tt)
        if n < 2: A(f"s_waitcnt lgkmcnt({4 - 4*n})")
        if P["pk"]:
            for k in range(8): A(f"v_pk_mul_f32 {vr(a+2*k,2)}, {vr(a+2*k,2)}, {vr(16+16*tt+2*k,2)}")
        else:
            for k in range(16): A(f"v_mul_f32 v{a+k}, v{a+k}, v{16+16*tt+k}")
        for k in range(8): A(f"v_cvt_pk_bf16_f32 v{a+k}, v{a+2*k}, v{a+2*k+1}")
        for j in range(2): A(f"buffer_store_dwordx4 {vr(a+4*j,4)}, v51, s[44:47], s{4+2*tt+j} offen offset:{ct*512}{ST}")
    DK, DR, DV, DW = 60, 61, 62, 63
    def dma_addr(t0, t1, t2, m1, m2):
        A(f"""
s_mul_i32 s{t0}, s29, {TS}
s_add_u32 s{t0}, s{t0}, s16
s_add_u32 s{t0}, s{t0}, 40960
v_add_u32 v{DK}, s{t0}, v5
s_add_u32 s{t0}, s{t0}, s17
v_lshrrev_b32 v8, 1, v2
v_and_b32 v9, 1, v2
v_lshlrev_b32 v9, 2, v9
v_lshl_add_u32 v8, v8, 4, v9
v_add_u32 v{DR}, s{t0}, v8
s_lshl_b32 s{m1}, s29, 10
s_lshl_b32 s{m2}, s29, 8
s_mul_i32 s{t0}, s14, 320
s_add_u32 s{t0}, s{t0}, {QF + VOFF}
s_lshl_b32 s{t1}, s29, 6
s_lshl_b32 s{t2}, s29, 4
s_add_u32 s{t2}, s{t2}, 256
""")
        def vaddr(dst, ci):
            A(f"""
v_mul_u32_u24 v8, 3277, v{ci}
v_lshrrev_b32 v8, 16, v8
v_mul_u32_u24 v9, 20, v8
v_sub_u32 v9, v{ci}, v9
v_lshrrev_b32 v10, 2, v8
v_and_b32 v8, 3, v8
v_mul_u32_u24 v10, {TS}, v10
v_mul_u32_u24 v8, {SV}, v8
v_lshl_add_u32 v9, v9, 4, s{t0}
v_add3_u32 v{dst}, v8, v9, v10
""")
        A(f"v_add_u32 v11, s{t1}, v2"); vaddr(DV, 11)
        A(f"v_lshrrev_b32 v11, 2, v2\nv_add_u32 v11, s{t2}, v11"); vaddr(DW, 11)
        A(f"v_and_b32 v11, 3, v2\nv_lshl_add_u32 v{DW}, v11, 2, v{DW}")
    def dma(G, m1, m2, so):
        b = G * 10240
        if G == 0: A(f"s_cmp_eq_u32 s29, 0\ns_cbranch_scc1 {E}_d0")
        A(f"s_add_u32 m0, s{m1}, {b}\nbuffer_load_dwordx4 v{DK}, s[44:47], {so} offen{P['dsc']} lds")
        if G == 0: A(f"{E}_d0:")
        A(f"s_add_u32 m0, s{m2}, {b+4096}\nbuffer_load_dword v{DR}, s[44:47], {so} offen{P['dsc']} lds")
        A(f"s_add_u32 m0, s{m1}, {b+5120}\nbuffer_load_dwordx4 v{DV}, s[44:47], {so} offen{P['dsc']} lds")
        A(f"s_add_u32 m0, s{m2}, {b+9216}\nbuffer_load_dword v{DW}, s[44:47], {so} offen{P['dsc']} lds")
    assert G0 == 2 and P["rot"] == 0
    PT = S1LAST + 3
    A(f"{E}_pub:")
    MK("cS")
    vsetup()
    dma_addr(30, 31, 26, 36, 37)
    A(f"""
s_lshl_b32 s26, s29, 2
v_mov_b32 v57, s26
v_mov_b32 v58, {PT}
s_mov_b32 s38, {4*TS}
ds_write_b32 v57, v58 offset:{PUB}
s_cmp_eq_u32 s9, 3
s_cbranch_scc1 {E}_pb2
s_mov_b32 s26, {P['spin']}
s_waitcnt vmcnt(0)
{E}_cw:
v_readfirstlane_b32 s30, v13
s_cmp_ge_u32 s30, 16
s_cbranch_scc1 {E}_cd
s_sub_u32 s26, s26, 1
s_cbranch_scc1 {E}_cd
s_sleep 2
buffer_load_dword v13, off, s[64:67], 0 offset:{CNT} sc1
s_waitcnt vmcnt(0)
s_branch {E}_cw
{E}_cd:
s_mov_b64 exec, 1
buffer_store_dword v49, off, s[44:47], s10 sc1
s_mov_b64 exec, -1
{E}_pb2:
s_setprio {P['qsp']}
""")
    MK("cF")
    A(f"""
s_cmp_lg_u32 s29, {P['pw']}
s_cbranch_scc1 {E}_at1
v_and_b32 v57, 7, v2
v_lshlrev_b32 v57, 2, v57
{E}_pq:
ds_read_b32 v58, v57 offset:{DONE}
s_waitcnt lgkmcnt(0)
s_sleep 1
v_cmp_gt_u32 vcc, {PT}, v58
s_cbranch_vccnz {E}_pq
s_mov_b32 s26, {P['spin']}
{"s_sleep " + str(P['qdel']) if P['qdel'] else ""}
{E}_qp:
buffer_load_dwordx4 v[52:55], v50, s[44:47], 0 offen sc1
s_waitcnt vmcnt(0)
v_min_u32 v53, v53, v54
v_cmp_ne_u32 s[30:31], 0, v52
v_cmp_ne_u32 s[42:43], 0, v53
s_and_b32 s30, s30, s31
s_and_b32 s42, s42, s43
s_lshr_b32 s30, s30, s11
s_sub_u32 s26, s26, 1
s_cselect_b32 s30, -1, s30
s_cselect_b32 s42, -1, s42
s_cselect_b32 s26, 0, s26
s_bitcmp1_b32 s42, 0
s_cselect_b32 s31, 15, 0
s_and_b32 s30, s30, s31
s_or_b32 s30, s30, 0x100
v_mov_b32 v52, s30
v_mov_b32 v53, s42
ds_write_b64 v56, v[52:53] offset:{RLY}
s_and_b32 s42, s42, 15
s_lshl_b32 s42, s42, 4
s_or_b32 s30, s30, s42
s_cmp_eq_u32 s30, 0x1ff
s_cbranch_scc1 {E}_at1
s_sleep {P['qsl']}
s_branch {E}_qp
{E}_at1:
s_lshr_b32 s26, s29, 1
s_mov_b32 s27, 11
{E}_qw:
ds_read_b64 v[58:59], v56 offset:{RLY}
s_waitcnt lgkmcnt(0)
v_readfirstlane_b32 s30, v58
v_readfirstlane_b32 s31, v59
s_lshr_b32 s30, s30, s26
s_and_b32 s30, s30, 1
s_lshr_b32 s28, s31, 1
s_and_b32 s31, s31, s28
s_and_b32 s31, s31, 5
s_lshl_b32 s31, s31, 1
s_or_b32 s30, s30, s31
s_and_b32 s30, s30, s27
s_cbranch_scc1 {E}_qa
s_sleep {P['rws']}
s_branch {E}_qw
{E}_qa:
s_bitcmp1_b32 s30, 1
s_cbranch_scc0 {E}_qb
""")
    dma(0, 36, 37, "0")
    A(f"{E}_qb:\ns_bitcmp1_b32 s30, 0\ns_cbranch_scc0 {E}_qc")
    qloads()
    MK("cQ")
    A(f"{E}_qc:\ns_bitcmp1_b32 s30, 3\ns_cbranch_scc0 {E}_qd")
    dma(1, 36, 37, "s38")
    A(f"""
{E}_qd:
s_andn2_b32 s27, s27, s30
s_cbranch_scc1 {E}_qw
{E}_at2:
v_cmp_eq_u32 vcc, 20, v4
v_lshlrev_b32 v57, 3, v4
""")
    for i in range(8): A(f"v_cndmask_b32 v{VB[1]+i}, 0, v1, vcc")
    for i in range(4): A(f"v_mov_b32 v{164+i}, -1")
    A("v_add_u32 v6, 4096, v57")
    MK("cW")
    A("s_waitcnt vmcnt(0)")
    for i in range(4): A(f"v_mov_b32 v{QM+i}, v{QL+i}\nv_mov_b32 v{KM+i}, v{KL+i}")
    A(f"v_cndmask_b32 v{QR}, 0, v{RL}, s[24:25]\nv_cndmask_b32 v{QR+1}, 0, v{RL+1}, s[24:25]")
    A("s_barrier")
    MK("cB")
    hstores = [(ct, tt, j) for (ct, tt) in order for j in range(2)]
    def hstore(n):
        ct, tt, j = hstores[n]
        A(f"buffer_store_dwordx4 {vr(HP[(ct,tt)]+4*j,4)}, v{HA_}, s[32:35], s{4+tt} offen offset:{(ct*2+j)*1024}{ST}")
    HA_ = 5
    if P["hcb"]:
        A(f"s_cmp_eq_u32 s34, 0\ns_cbranch_scc1 {E}_nhc")
        for n in range(P["hpre"], P["hpre"] + P["hcb"]): hstore(n)
        A(f"{E}_nhc:")
        MK("cC")
    def kread(o, km=None, kr=None):
        if km is None: km, kr = KB[o & 1]
        g, i = o >> 2, o & 3
        A(f"ds_read_b128 {vr(km,4)}, v5 offset:{g*10240+i*1024}\nds_read_b64 {vr(kr,2)}, v6 offset:{g*10240+i*256}")
    def vread(o):
        g, i = o >> 2, o & 3; b = g * 10240 + i * 1280
        A(f"s_mov_b64 exec, s[22:23]\nds_read_b128 {vr(VB[o&1],4)}, v7 offset:{b}\nds_read_b128 {vr(VB[o&1]+4,4)}, v7 offset:{b+640}\ns_mov_b64 exec, -1")
    A(f"ds_read_b64 {vr(KR,2)}, v6")
    for t in range(1, NP): kread(t, CB + 4 * t, 96 + 2 * t)
    PD = [S[0], S[1], O, S[0]]
    def pmax(t):
        for k in range(8):
            if t == 0 and k == 0: A(f"v_max_f32 v1, v{PD[t]}, v{PD[t]+1}")
            else: A(f"v_max3_f32 v1, v1, v{PD[t]+2*k}, v{PD[t]+2*k+1}")
    for t in range(NP):
        if t == 3: pmax(0)
        A(f"s_waitcnt lgkmcnt({2*(NP-1-t)})")
        km, kr = (KM, KR) if t == 0 else (CB + 4 * t, 96 + 2 * t)
        A(f"v_mfma_f32_32x32x16_bf16 {vr(PD[t],16)}, {vr(km,4)}, {vr(QM,4)}, 0")
        A(f"v_mfma_f32_32x32x8_bf16 {vr(PD[t],16)}, {vr(kr,2)}, {vr(QR,2)}, {vr(PD[t],16)}")
    for t in range(1, NP): pmax(t)
    A(f"""
v_mov_b32 v14, v1
s_mov_b32 s26, {f32bits(P['offs'])}
v_permlane32_swap_b32 v1, v14
v_max_f32 v1, v1, v14
v_add_f32 v1, s26, v1
""")
    for i in range(16): A(f"v_sub_f32 v{CB+i}, 0, v1")
    for i in range(16): A(f"v_mov_b32 v{O+i}, 0")
    def M1(t): A(f"v_mfma_f32_32x32x16_bf16 {vr(S[t&1],16)}, {vr(KB[t&1][0],4)}, {vr(QM,4)}, {vr(CB,16)}")
    def M2(t): A(f"v_mfma_f32_32x32x8_bf16 {vr(S[t&1],16)}, {vr(KB[t&1][1],2)}, {vr(QR,2)}, {vr(S[t&1],16)}")
    def Ex(t, *idx):
        for i in idx: A(f"v_exp_f32 v{S[t&1]+i}, v{S[t&1]+i}")
    def Cv(t, *idx):
        for k in idx:
            d = S[t & 1] + (k & 3) + 8 * (k >> 2)
            A(f"v_cvt_pk_bf16_f32 v{d}, v{S[t&1]+2*k}, v{S[t&1]+2*k+1}")
    if P["bal"]:
        A(f"""
v_xor_b32 v22, 16, v{FL+2}
v_mov_b32 v{FL+3}, 0
v_mov_b32 v15, 0
s_setprio {P['balp'][0]}
""")
    if P["yl"]: A(f"v_xor_b32 v22, 16, v{FL+2}\nv_mov_b32 v{FL+3}, 0")
    YL = []
    def yield_(t, waited):
        if not waited: A("s_waitcnt lgkmcnt(2)")
        A(f"v_cmp_lt_u32 vcc, v15, v{FL+3}\ns_cbranch_vccnz {E}_yl{t}\n{E}_yb{t}:")
        YL.append(f"""
{E}_yl{t}:
s_sleep {P['yl'][1]}
ds_read_b32 v15, v22
s_waitcnt lgkmcnt(0)
v_cmp_lt_u32 vcc, v15, v{FL+3}
s_cbranch_vccnz {E}_yl{t}
s_sleep {P['yl'][0]}
s_branch {E}_yb{t}
""")
    if P["hnb"]: A("s_cmp_eq_u32 s34, 0\ns_cselect_b32 s9, 1, 0")
    nbal = [0]
    def balance(t, first):
        if P["bal"] and t % 4 == 2 and not (first and t == 2):
            k = nbal[0]; nbal[0] += 1
            A(f"""
v_cmp_ge_u32 vcc, v15, v{FL+3}
s_setprio {P['balp'][0]}
s_cbranch_vccz {E}_bl{k}
s_setprio {P['balp'][1]}
{E}_bl{k}:
""")
    progress = f"v_add_u32 v{FL+3}, 1, v{FL+3}\nds_write_b32 v{FL+2}, v{FL+3}" + ("\nds_read_b32 v15, v22" if P["bal"] else "")
    MK("c1")
    A("s_waitcnt lgkmcnt(0)")
    kread(1); vread(0); M1(0); M2(0); kread(2); vread(1)
    W = 6
    Ex(0, *range(P["npre"]))
    def tile(t, hook=None):
        pr = P["prios"] if not P["bal"] else None
        if pr and (t == 0 or pr[t % len(pr)] != pr[(t - 1) % len(pr)]): A(f"s_setprio {pr[t % len(pr)]}")
        for tok in P["order"].split():
            if tok == "M1": A(f"s_waitcnt lgkmcnt({W})"); M1(t + 1); balance(t, hook is hook0)
            elif tok == "M2": M2(t + 1)
            elif tok == "M3": A(f"s_waitcnt lgkmcnt({W})\nv_mfma_f32_32x32x16_bf16 {vr(O,16)}, {vr(VB[t&1],4)}, {vr(S[t&1],4)}, {vr(O,16)}")
            elif tok == "M4": A(f"v_mfma_f32_32x32x16_bf16 {vr(O,16)}, {vr(VB[t&1]+4,4)}, {vr(S[t&1]+8,4)}, {vr(O,16)}")
            elif tok == "K":
                if hook: hook(t, 0)
                kread(t + 3)
                if hook: hook(t, 1)
            elif tok == "V":
                vread(t + 2)
                if hook: hook(t, 2)
            elif tok[0] == "E": Ex(t, int(tok[1:]))
            elif tok[0] == "N": Ex(t + 1, int(tok[1:]))
            elif tok[0] == "C": Cv(t, int(tok[1:]))
            else: raise ValueError(tok)
    adv = "v_add_u32 v5, 20480, v5\nv_add_u32 v6, 20480, v6\nv_add_u32 v7, 20480, v7"
    npoll = [0]
    def check(thr):
        k = npoll[0]; npoll[0] += 1
        A(f"""
s_waitcnt lgkmcnt(2)
v_cmp_gt_u32 vcc, {thr}, v{FL}
s_cbranch_vccz {E}_ok{k}
{E}_poll{k}:
s_sleep 1
ds_read_b32 v{FL}, v{FL+1}
s_waitcnt lgkmcnt(0)
v_cmp_gt_u32 vcc, {thr}, v{FL}
s_cbranch_vccnz {E}_poll{k}
{E}_ok{k}:
""")
    rdflag = f"ds_read_b32 v{FL}, v{FL+1}"
    hflag = f"s_waitcnt vmcnt(0)\ns_mov_b64 exec, 1\nbuffer_store_dword v{FL+2}, off, s[32:35], s10 sc1\ns_mov_b64 exec, -1"
    if P["hnb"]:
        hst_ = f"s_waitcnt vmcnt(0)\ns_mov_b64 exec, 1\nbuffer_store_dword v{FL+2}, off, s[32:35], s10 sc1\ns_mov_b64 exec, -1\ns_mov_b32 s9, 1"
        hpeek = lambda t: f"s_getreg_b32 s30, hwreg(HW_REG_IB_STS, 0, 4)\ns_or_b32 s30, s30, s9\ns_cbranch_scc1 {E}_hp{t}\n{hst_}\n{E}_hp{t}:"
        hflag = f"s_cmp_lg_u32 s9, 0\ns_cbranch_scc1 {E}_hpl\n{hst_}\n{E}_hpl:"
    def hook0(t, ph):
        if ph == 1 and t in (4, 7): A(rdflag)
        if ph == 1 and t == 4 and (P["bal"] or P["yl"]): A(progress)
        if ph == 1 and t == 7 and P["yl"]: A("ds_read_b32 v15, v22")
        if ph == 0 and t == 5: check(F_G1)
        if ph in (1, 2):
            mine = [n for n in range(P["hpre"] + P["hcb"], 8) if P["hst"][n] == t]
            for n in mine[ph - 1::2] if not P["noh"] else []:
                if P["hskip"]: A(f"s_cmp_eq_u32 s34, 0\ns_cbranch_scc1 {E}_hs{n}")
                hstore(n)
                if P["hskip"]: A(f"{E}_hs{n}:")
        if ph == 1 and t == P["ofp"] and not P["noof"] and not P["ofi"]:
            A(f"buffer_store_dwordx4 v[164:167], v5, s[44:47], s60 offen sc1\nbuffer_store_dwordx2 v[164:165], v6, s[44:47], s3 offen sc1")
        if ph == 2 and t == 3: MK("t3")
        if ph == 2 and P["hnb"] and t in P["hnb"]: A(hpeek(t))
        if ph == 2 and P["hfl"] == (0, t): MK("t7"); A(hflag); MK("cH")
    for t in range(8): tile(t, hook0)
    A(adv)
    if max(P["hst"]) >= 8:
        HA_ = 14
        A("s_cmp_eq_u32 s34, 0\ns_cselect_b32 s26, 0, 1\nv_lshlrev_b32 v14, 4, v2")
    A(f"s_mov_b32 s27, 1\ns_mov_b32 s28, {F_G5}\nv_mov_b32 v{FL+3}, 1\n{E}_loop:")
    def hook1(t, ph):
        if ph == 0 and t == 0 and P["marks"]:
            for k in range(1, 8):
                if f"I{k}" in P["marks"]: A(f"s_cmp_lg_u32 s27, {k}\ns_cbranch_scc1 {E}_mi{k}"); MK(f"I{k}"); A(f"{E}_mi{k}:")
        if ph == 0 and t == 0: check("s28")
        if ph == 0 and t in (0, 4) and P["yl"]: yield_(t, t == 0)
        if ph == 1 and t in (3, 7) and P["yl"]: A("ds_read_b32 v15, v22")
        if ph == 1 and t == 0: A(f"s_mov_b32 s28, {F_ALL}")
        if ph == 1 and t in (0, 4): A(progress)
        if ph == 1 and t == 7: A(rdflag)
        if ph in (1, 2):
            mine = [n for n in range(P["hpre"] + P["hcb"], 8) if P["hst"][n] == t + 8]
            for n in mine[ph - 1::2]:
                A(f"s_cmp_lg_u32 s27, s26\ns_cbranch_scc1 {E}_hs{n}")
                hstore(n)
                A(f"{E}_hs{n}:")
        if ph == 1 and P["ofi"] and t == P["ofp"]:
            A(f"s_cmp_lg_u32 s27, {P['ofi']}\ns_cbranch_scc1 {E}_no\nv_lshlrev_b32 v1, 4, v2\nv_lshlrev_b32 v0, 3, v4\nbuffer_store_dwordx4 v[164:167], v1, s[44:47], s60 offen sc1\nbuffer_store_dwordx2 v[164:165], v0, s[44:47], s60 offen offset:1024 sc1\n{E}_no:")
        if ph == 2 and P["hfl"][0] > 0 and P["hfl"][1] == t:
            A(f"s_cmp_lg_u32 s27, {P['hfl'][0]}\ns_cbranch_scc1 {E}_nf\n{hflag}\n{E}_nf:")
        if ph == 1 and t == P["hint"][1]:
            A(f"""
s_cmp_lg_u32 s27, {P["hint"][0]}
s_cbranch_scc1 {E}_nh
s_waitcnt vmcnt(0)
s_mov_b64 exec, 1
buffer_store_dword v{FL+2}, off, s[44:47], s61{P['hsc']}
s_mov_b64 exec, -1
{E}_nh:
""")
    for t in range(8): tile(t, hook1)
    A(adv)
    A(f"s_add_u32 s27, s27, 1\ns_cmp_lt_u32 s27, 8\ns_cbranch_scc1 {E}_loop")
    MK("c3")
    A(f"v_mov_b32 v{FL+3}, 16\nds_write_b32 v{FL+2}, v{FL+3}\nv_mov_b32 v1, 0\ns_movk_i32 s26, 0x207")
    for i in range(12): A(f"v_fma_f32 v1, v{O+i}, 0, v1")
    A(f"""
v_cmp_class_f32 vcc, v1, s26
s_cbranch_vccnz {E}_fb
{E}_epi:
v_mov_b32 v10, 0
ds_read_b64 v[12:13], v10 offset:{MSK}
v_mov_b32 v14, v{O+8}
v_mov_b32 v15, v{O+8}
v_lshlrev_b32 v5, 4, v2
v_permlane32_swap_b32 v14, v15
v_rcp_f32 v14, v15
v_lshlrev_b32 v6, 3, v4
v_mov_b32 v11, v{FL+1}
""")
    for k in range(6): A(f"v_pk_mul_f32 {vr(O+2*k,2)}, {vr(O+2*k,2)}, v[14:15] op_sel_hi:[1,0]")
    for k in range(6): A(f"v_cvt_pk_bf16_f32 v{O+k}, v{O+2*k}, v{O+2*k+1}")
    OSC = P["osc"]; LSC = P["lsc"]
    VW, VR, OR_, OA, SP = 6, 7, 8, 9, 15
    A(f"""
buffer_store_dwordx4 {vr(O,4)}, v5, s[44:47], s60 offen{OSC}
s_mov_b64 exec, s[24:25]
buffer_store_dwordx2 {vr(O+4,2)}, v6, s[44:47], s60 offen offset:1024{OSC}
s_mov_b64 exec, -1
s_setprio 0
""")
    MK("c4")
    A(f"""
v_mul_u32_u24 v14, 2560, v3
s_add_u32 s28, s57, 5120
s_waitcnt lgkmcnt(0)
v_readfirstlane_b32 s30, v12
v_readfirstlane_b32 s31, v13
v_lshl_add_u32 v{OR_}, v4, 3, v14
s_lshr_b64 s[30:31], s[30:31], s56
s_mov_b32 s63, s30
""")
    OB = 16; AC = 56
    def load(k):
        if k < 8: A(f"buffer_load_dwordx4 {vr(OB+4*k,4)}, v5, s[44:47], s{57 if k < 4 else 28} offen offset:{1280*(k&3)}{LSC}")
        else:
            for e in range(2): A(f"buffer_load_dwordx2 {vr(OB+4*k+2*e,2)}, v{OR_}, s[44:47], s{57 if k == 8 else 28} offen offset:{1024+1280*e}{LSC}")
    for k in range(8):
        A(f"s_mov_b32 s64, {k}\ns_bitcmp1_b32 s63, {k}\ns_cbranch_scc0 {E}_su")
        load(k)
    load(8); load(9)
    A(f"s_mov_b32 s64, 9\n{E}_su:")
    def issue_rest(T):
        A(f"s_cmp_eq_u32 s64, 9\ns_cbranch_scc1 {E}_id{T}")
        for k in range(8):
            L = f"{E}_is{T}{k}"
            A(f"""
s_cmp_gt_u32 s64, {k}
s_cbranch_scc1 {L}n
s_bitcmp1_b32 s63, {k}
s_cbranch_scc1 {L}g
{L}p:
ds_read_b64 v[0:1], v10 offset:{MSK}
s_waitcnt lgkmcnt(0)
v_readfirstlane_b32 s30, v0
v_readfirstlane_b32 s31, v1
s_lshr_b64 s[30:31], s[30:31], s56
s_mov_b32 s63, s30
s_bitcmp1_b32 s30, {k}
s_cbranch_scc1 {L}g
s_sleep 1
s_branch {L}p
{L}g:
""")
            load(k)
            A(f"{L}n:")
        load(8); load(9)
        A(f"{E}_id{T}:"); MK("c6")
    A(f"""
ds_read_b32 v1, v11
v_mul_u32_u24 v12, 1280, v4
v_bfe_u32 v13, v2, 2, 2
v_and_b32 v7, 3, v2
v_lshl_add_u32 v{OA}, v3, 3, v12
v_lshlrev_b32 v13, 6, v13
v_lshl_add_u32 v13, v7, 3, v13
v_bfe_u32 v12, v2, 4, 1
v_lshl_add_u32 v13, v12, 5, v13
v_add_u32 v13, s58, v13
v_lshl_add_u32 v{VW}, v3, 8, v13
v_add_u32 v{VR}, v14, v13
s_sub_u32 s26, s54, 1
v_sub_u32 v14, s26, v2
v_and_b32 v14, 3, v14
s_lshl_b32 s26, s52, 4
s_add_u32 s26, s26, {SENT}
v_lshl_add_u32 v{SP}, v14, 2, s26
s_lshl_b32 s27, s54, 2
s_add_u32 s27, s27, s26
s_mov_b32 s62, {P['spin']}
v_add_u32 v12, s59, v5
s_lshl_b32 s30, s54, 2
v_mov_b32 v13, s30
""")
    nw_ = [0]
    def lwait(thr, ar=11):
        k = nw_[0]; nw_[0] += 1
        A(f"""
{E}_lw{k}:
s_waitcnt lgkmcnt(0)
v_cmp_gt_u32 vcc, {thr}, v1
s_cbranch_vccz {E}_lwd{k}
s_sleep {P['psl']}
ds_read_b32 v1, v{ar}
s_branch {E}_lw{k}
{E}_lwd{k}:
""")
    def perq4(tag, body):
        for q in range(4):
            if q < 3: A(f"s_cmp_lg_u32 s54, {q}\ns_cbranch_scc1 {E}_{tag}{q+1}")
            body(q)
            if q < 3: A(f"s_branch {E}_{tag}d\n{E}_{tag}{q+1}:")
        A(f"{E}_{tag}d:")
    lwait(F_WO)
    MK("c5")
    A(f"s_cmp_lg_u32 s52, 0\ns_cbranch_scc1 {E}_tB")
    for ty, nb in ((0, 3), (1, 2)):
        T = "AB"[ty]
        if ty: A(f"{E}_tB:")
        WB = AC + 16 * nb
        nbuf = min(10, (168 - WB) // (4 * nb))
        q = []
        def need(tag):
            idx = max([i for i, t in enumerate(q) if t == tag], default=-1)
            if idx >= 0:
                A(f"s_waitcnt lgkmcnt({min(len(q) - 1 - idx, 15)})"); del q[:idx + 1]
        later = lambda k: (7 - k + 4) if k < 8 else (2 if k == 8 else 0)
        def wr(k, lo=0, hi=99):
            b = WB + (k % nbuf) * 4 * nb
            for u in range(max(lo, 0), min(hi, nb)):
                if k < 8: a = VW; o1 = u * 10240 + k * 1280; o2 = o1 + 512
                else: a = VR; o1 = u * 10240 + (k - 8) * 5120 + 1024; o2 = o1 + 1280
                A(f"ds_read_b64_tr_b16 {vr(b+4*u,2)}, v{a} offset:{o1}"); q.append((k, u))
                A(f"ds_read_b64_tr_b16 {vr(b+4*u+2,2)}, v{a} offset:{o2}"); q.append((k, u))
        for k in range(nbuf): wr(k)
        if ty == 0:
            for j in range(4): A(f"s_sub_u32 s30, {j+3}, s54\ns_and_b32 s30, s30, 3\ns_mul_i32 s30, s30, 3072\ns_add_u32 s{32+j}, s30, s58\ns_add_u32 s{32+j}, s{32+j}, 20480")
            for r in range(3): A(f"s_sub_u32 s30, s54, {r+1}\ns_and_b32 s30, s30, 3\ns_mul_i32 s30, s30, 30720\ns_add_u32 s{36+r}, s30, {WO + 20480 + r*3072}")
        else:
            A(f"s_lshl_b32 s31, s54, 12\ns_add_u32 s31, s31, {FREE - 2048}")
            for j in range(4): A(f"s_sub_u32 s30, {j+3}, s54\ns_and_b32 s30, s30, 3\ns_lshl_b32 s{32+j}, s30, 11\ns_add_u32 s{32+j}, s{32+j}, s31\ns_cmp_eq_u32 s30, 0\ns_cselect_b32 s{32+j}, s59, s{32+j}")
            for r in range(3):
                A(f"s_sub_u32 s30, s54, {r+1}\ns_and_b32 s30, s30, 3\ns_mul_i32 s30, s30, {5120 if r == 0 else 4096}\ns_add_u32 s{36+r}, s30, {PR if r == 0 else FREE + (r-1)*2048}")
        for k in range(16 * nb): A(f"v_mov_b32 v{AC+k}, 0")
        issue_rest(T)
        A("ds_read_b32 v1, v13")
        lwait(F_FX, 13)
        MK("c7")
        q.clear()
        perq4(f"fx{T}", lambda qq: [A(f"ds_read_b128 {vr(AC+16*t+4*qq,4)}, v12 offset:{(2048 if ty == 0 else 0) + t*1024}") for t in range(nb)])
        A("s_waitcnt lgkmcnt(0)")
        for k in range(10):
            A(f"s_waitcnt vmcnt({later(k)})")
            o = OB + 4 * k
            A(f"""
{E}_ck{T}{k}:
v_max3_u32 v1, v{o}, v{o+1}, v{o+2}
v_max_u32 v1, v1, v{o+3}
v_cmp_eq_u32 vcc, -1, v1
s_cbranch_vccnz {E}_rt{T}{k}
{E}_bk{T}{k}:
""")
            b = WB + (k % nbuf) * 4 * nb
            nx = k + nbuf
            for u in range(nb):
                need((k, u))
                A(f"v_mfma_f32_32x32x16_bf16 {vr(AC+16*u,16)}, {vr(b+4*u,4)}, {vr(o,4)}, {vr(AC+16*u,16)}")
                if nx < 10 and u >= 1: wr(nx, u - 1, u)
            if nx < 10: wr(nx, nb - 1, nb)
        MK("c8")
        for j in range(4): A(f"v_add_u32 v{16+j}, s{32+j}, v5")
        for r in range(3): A(f"v_add_u32 v{20+r}, s{36+r}, v5")
        A("v_mov_b32 v13, s27\ns_mov_b32 s63, 7")
        for j in range(4):
            A(f"s_cmp_eq_u32 s54, {j}\ns_cbranch_scc1 {E}_ns{T}{j}")
            for t in range(nb): A(f"ds_write_b128 v{16+j}, {vr(AC+16*t+4*j,4)} offset:{t*1024}")
            A(f"{E}_ns{T}{j}:")
        A(f"""
s_waitcnt lgkmcnt(0)
ds_write_b32 v13, v13
{E}_sp{T}:
ds_read_b32 v1, v{SP}
s_waitcnt lgkmcnt(0)
v_cmp_ne_u32 vcc, 0, v1
s_and_b32 s30, vcc_lo, s63
""")
        for r in range(3):
            A(f"s_bitcmp1_b32 s30, {r}\ns_cbranch_scc0 {E}_nr{T}{r}")
            for t in range(nb): A(f"ds_read_b128 {vr(WB+4*(3*t+r),4)}, v{20+r} offset:{t*1024}")
            A(f"{E}_nr{T}{r}:")
        A(f"""
s_andn2_b32 s63, s63, s30
s_cbranch_scc1 {E}_sp{T}
s_waitcnt lgkmcnt(0)
""")
        MK("c9")
        def fin(qq):
            for t in range(nb):
                a = AC + 16 * t + 4 * qq; r = WB + 12 * t
                for k in range(4): A(f"v_add_f32 v{a+k}, v{a+k}, v{r+k}\nv_add_f32 v{r+4+k}, v{r+4+k}, v{r+8+k}")
                for k in range(4): A(f"v_add_f32 v{a+k}, v{a+k}, v{r+4+k}")
                A(f"v_cvt_pk_bf16_f32 v{a}, v{a}, v{a+1}\nv_cvt_pk_bf16_f32 v{a+1}, v{a+2}, v{a+3}")
                A(f"buffer_store_dwordx2 {vr(a,2)}, v{OA}, s[48:51], s55 offen")
                if t < nb - 1: A("s_add_u32 s55, s55, s53")
            A("s_endpgm")
        for qq in range(4):
            if qq < 3: A(f"s_cmp_lg_u32 s54, {qq}\ns_cbranch_scc1 {E}_fn{T}{qq+1}")
            fin(qq)
            if qq < 3: A(f"{E}_fn{T}{qq+1}:")
        for k in range(10):
            A(f"""
{E}_rt{T}{k}:
s_sub_u32 s62, s62, 1
s_cbranch_scc1 {E}_bk{T}{k}
""")
            if P["rtsl"]: A(f"s_sleep {P['rtsl']}")
            for kk in range(k, 10): load(kk)
            A(f"s_waitcnt vmcnt({later(k)})\ns_branch {E}_ck{T}{k}")
    for y in YL: A(y)
    A(f"""
{E}_fb:
s_waitcnt lgkmcnt(0)
v_lshlrev_b32 v5, 4, v2
v_lshlrev_b32 v6, 4, v4
v_mul_u32_u24 v7, {SV}, v3
v_lshl_add_u32 v7, v4, 4, v7
v_add_u32 v15, {2*SV}, v7
v_mov_b32 v1, 0xff800000
s_add_u32 s18, s16, 40960
s_mov_b32 s26, s18
s_mov_b32 s27, 64
{E}_fb1:
s_add_u32 s30, s26, s17
buffer_load_dwordx4 {vr(KM,4)}, v5, s[44:47], s26 offen{SC}
buffer_load_dwordx2 {vr(KR,2)}, v6, s[44:47], s30 offen{SC}
s_waitcnt vmcnt(0)
v_mfma_f32_32x32x16_bf16 {vr(S[0],16)}, {vr(KM,4)}, {vr(QM,4)}, 0
v_mfma_f32_32x32x8_bf16 {vr(S[0],16)}, {vr(KR,2)}, {vr(QR,2)}, {vr(S[0],16)}
""")
    for k in range(8): A(f"v_max3_f32 v1, v1, v{S[0]+2*k}, v{S[0]+2*k+1}")
    A(f"""
s_add_u32 s26, s26, {TS}
s_sub_u32 s27, s27, 1
s_cmp_lg_u32 s27, 0
s_cbranch_scc1 {E}_fb1
v_mov_b32 v14, v1
v_permlane32_swap_b32 v1, v14
v_max_f32 v1, v1, v14
""")
    for i in range(16): A(f"v_sub_f32 v{CB+i}, 0, v1\nv_mov_b32 v{O+i}, 0")
    A(f"""
s_mov_b32 s26, s18
s_mul_i32 s28, s14, 320
s_add_u32 s28, s28, {QF + VOFF}
s_mov_b32 s27, 64
{E}_fb2:
s_add_u32 s30, s26, s17
buffer_load_dwordx4 {vr(KM,4)}, v5, s[44:47], s26 offen{SC}
buffer_load_dwordx2 {vr(KR,2)}, v6, s[44:47], s30 offen{SC}
s_mov_b64 exec, s[22:23]
buffer_load_dwordx4 {vr(V0,4)}, v7, s[44:47], s28 offen{SC}
buffer_load_dwordx4 {vr(V1,4)}, v15, s[44:47], s28 offen{SC}
s_mov_b64 exec, -1
s_waitcnt vmcnt(0)
""")
    M1(0); M2(0)
    Ex(0, *range(16)); Cv(0, *range(8))
    A(f"""
v_mfma_f32_32x32x16_bf16 {vr(O,16)}, {vr(V0,4)}, {vr(S[0],4)}, {vr(O,16)}
v_mfma_f32_32x32x16_bf16 {vr(O,16)}, {vr(V1,4)}, {vr(S[0]+8,4)}, {vr(O,16)}
s_add_u32 s26, s26, {TS}
s_add_u32 s28, s28, {TS}
s_sub_u32 s27, s27, 1
s_cmp_lg_u32 s27, 0
s_cbranch_scc1 {E}_fb2
s_nop 15
s_branch {E}_epi
""")
    A(f"{E}_ffn:")
    head_scalars()
    A("v_lshlrev_b32 v5, 4, v2")
    PA = 64
    poll_addr(PA, 30, 31)
    dma_addr(20, 21, 22, 17, 18)
    A(f"s_mov_b32 s19, {G0*4*TS}")
    WA, FX, FP, XA = 76, 79, 84, 85
    HA, WFA = 65, 66
    A(f"""
v_lshrrev_b32 v{FP}, {LF}, v2
v_and_b32 v16, {(1 << LF) - 1}, v2
v_lshlrev_b32 v{FP}, 7, v{FP}
v_lshl_add_u32 v{FP}, v16, 2, v{FP}
v_mov_b32 v16, {108*128}
s_lshr_b32 s14, s40, 1
s_lshl_b32 s14, s14, 3
s_and_b32 s24, s41, 7
s_add_u32 s14, s14, s24
s_lshl_b32 s56, s14, {13 - LF}
s_add_u32 s56, s56, {FL2}
s_mul_i32 s30, s14, {27*128}
s_add_u32 s30, s30, {FH}
v_min_u32 v{HA}, 26, v4
v_lshl_add_u32 v{HA}, v{HA}, 7, s30
s_lshl_b32 s14, s14, 1
s_bfe_u32 s25, s41, 0x10003
s_xor_b32 s15, s25, 1
s_add_u32 s15, s15, s14
s_add_u32 s14, s14, s25
s_and_b32 s27, s40, 1
s_lshl_b32 s27, s27, 1
s_lshr_b32 s16, s41, 4
s_add_u32 s27, s27, s16
s_mul_i32 s30, s27, 108
s_add_u32 s30, s30, s29
s_lshl_b32 s30, s30, 7
s_add_u32 s30, s30, {FW}
v_min_u32 v{WFA}, 26, v4
v_lshl_add_u32 v{WFA}, v{WFA}, 9, s30
v_mad_u32_u24 v{WFA}, v3, v16, v{WFA}
s_and_b32 s24, s41, 15
s_mul_i32 s24, s24, 27
s_lshr_b32 s24, s24, 4
s_mul_i32 s24, s24, {P['frot']}
s_add_u32 s20, s17, {HF}
s_mul_i32 s23, s29, 20480
s_mul_i32 s28, s27, 5120
s_add_u32 s23, s23, s28
s_add_u32 s23, s23, {W2F}
s_add_u32 s22, s20, {27*4096}
s_lshl_b32 s16, s24, 12
s_add_u32 s16, s16, s20
s_mul_i32 s26, s24, 81920
s_add_u32 s26, s26, s23
s_mul_i32 s30, s14, {108*1024}
s_mul_i32 s31, s15, {108*1024}
v_add_u32 v8, s30, v5
v_add_u32 v9, s31, v5
s_lshl_b32 s30, s25, 12
s_lshl_b32 s31, s25, 11
s_add_u32 s31, s31, 1024
v_add_u32 v10, s30, v5
v_add_u32 v11, s31, v5
v_add_u32 v12, 2048, v5
v_mov_b32 v7, s29
v_lshlrev_b32 v7, 2, v7
v_and_b32 v1, 7, v2
v_lshlrev_b32 v1, 2, v1
v_and_b32 v15, 12, v1
v_mul_u32_u24 v{XA}, 1280, v4
v_lshl_add_u32 v{XA}, v3, 3, v{XA}
s_mul_i32 s52, s27, 320
s_lshl_b32 s53, s29, 4
s_add_u32 s53, s53, s52
s_mul_i32 s54, s14, 40960
s_mul_i32 s55, s15, 40960
s_add_u32 s54, s54, s53
s_add_u32 s55, s55, s53
s_lshl_b32 s57, s25, 8
s_lshl_b32 s58, s25, 7
s_add_u32 s52, s52, s57
s_sub_u32 s59, 64, s58
s_add_u32 s58, s58, 64
s_add_u32 s30, s55, s57
s_add_u32 s31, s55, s58
s_add_u32 s32, s54, s57
s_add_u32 s33, s54, s58
s_add_u32 s34, s54, 128
s_sub_u32 s54, s29, 1
s_add_u32 s53, s59, 204800
s_mul_i32 s53, s53, s54
s_add_u32 s52, s52, s53
s_mul_i32 s53, s54, 40960
s_add_u32 s53, s53, {WO}
v_lshrrev_b32 v16, 2, v2
v_and_b32 v17, 3, v2
v_mul_u32_u24 v16, 1280, v16
v_lshl_add_u32 v{WA}, v17, 4, v16
s_mul_i32 s54, s29, 5120
s_add_u32 s54, s54, {PR}
v_add_u32 v{FX}, s54, v5
s_sub_u32 s60, s59, 184320
s_lshl_b32 s61, s59, 1
s_sub_u32 s61, 20480, s61
s_cmp_eq_u32 s29, 3
s_cselect_b32 s54, 9, 0
s_cselect_b32 s55, 10, 0
s_cselect_b32 s63, 11, 0
s_cselect_b32 s3, 12, 0
s_cselect_b32 s62, 13, 0
s_cselect_b32 s57, s61, s60
s_cmp_eq_u32 s29, 2
s_cselect_b32 s62, 9, s62
s_cselect_b32 s58, s61, s60
s_cmp_eq_u32 s29, 1
s_cselect_b32 s59, s61, s60
v_mov_b32 v6, {RLY}
s_mov_b32 s10, {P['spin']}
s_mov_b32 s8, 0
""")
    MK("lS")
    A("s_waitcnt lgkmcnt(0)")
    if P["w2g"] < G0:
        for c in range(4): A(f"buffer_store_dwordx4 {vr(88+4*c,4)}, v5, s[64:67], s69 offen offset:{1024*c}{ST}")
    A(f"s_barrier\nds_read_b32 v0, v6 offset:4")
    MK("lB")
    C1 = P["c1"]
    def flag(v): A(f"v_mov_b32 v0, {v}\nds_write_b32 v7, v0")
    A("s_waitcnt lgkmcnt(0)\nv_readfirstlane_b32 s8, v0")
    if P["ldel"]: A(f"s_sleep {P['ldel']}")
    def gwait(G):
        m = (3 << (2 * G)) & 0xffffffff
        A(f"""
{E}_gw{G}:
s_and_b32 s9, s8, {hex(m)}
s_cmp_eq_u32 s9, {hex(m)}
s_cbranch_scc1 {E}_gg{G}
buffer_load_dwordx4 v[68:71], v{PA}, s[44:47], 0 offen sc1
s_waitcnt vmcnt(0)
v_min_u32 v69, v69, v70
v_cmp_ne_u32 s[8:9], 0, v69
s_and_b32 s8, s8, s9
s_sub_u32 s10, s10, 1
s_cselect_b32 s8, -1, s8
s_cselect_b32 s10, 0, s10
s_branch {E}_gw{G}
{E}_gg{G}:
""")
    W2G = P["w2g"]; W2FL = P["w2f"] if P["w2f"] is not None else 15
    GQ = VQ_()
    w2flag = "v_mov_b32 v0, 1\ns_mov_b64 exec, 1\nbuffer_store_dword v0, off, s[64:67], s68 sc1\ns_mov_b64 exec, -1"
    if W2G < G0:
        GQ.q = ["w2"] * 4
    for G in range(G0, 16):
        gwait(G); dma(G, 17, 18, "s19"); GQ.q += [G] * 4
        if G < 15: A(f"s_add_u32 s19, s19, {4*TS}")
        if G == W2G:
            for c in range(4): GQ.op("w2", f"buffer_store_dwordx4 {vr(88+4*c,4)}, v5, s[64:67], s69 offen offset:{1024*c}{ST}")
        if G == 2 + P["c0"]: GQ.need(2); flag(F_G1)
        if G == 5 + C1: GQ.need(5); flag(F_G5); MK("l4")
        if G == W2FL: GQ.need("w2"); GQ.op("wf", w2flag)
        if P["gthr"] and G >= P["gthr"][0] and G < 15: GQ.need(G - P["gthr"][1])
    assert W2FL >= W2G
    if P["wot"]:
        A(f"""
s_lshl_b32 s8, s41, 2
s_add_u32 s8, s8, s29
s_lshl_b32 s8, s8, 6
v_add_u32 v68, s8, v2
v_min_u32 v68, 6399, v68
v_mul_u32_u24 v69, 6554, v68
v_lshrrev_b32 v69, 16, v69
v_mul_u32_u24 v70, {1280 - 640}, v69
v_lshl_add_u32 v68, v68, 6, v70
s_and_b32 s8, s40, 1
s_mul_i32 s8, s8, 640
s_mov_b32 s48, s6
s_mov_b32 s49, s7
s_mov_b32 s50, 819200
s_mov_b32 s51, 0x20000
""")
        GQ.op("wot", "buffer_load_dword v70, v68, s[48:51], s8 offen")
    NAFT = len(GQ.q) - 1 - max(i for i, t in enumerate(GQ.q) if t == 15)
    if P["hgate"]:
        A(f"s_waitcnt vmcnt({NAFT})"); flag(F_ALL); MK("lF")
        A(f"""
{E}_hq:
ds_read_b32 v0, v1 offset:64
s_waitcnt lgkmcnt(0)
v_cmp_gt_u32 vcc, {P['hgate']}, v0
s_cbranch_vccz {E}_hw
s_sleep 4
s_branch {E}_hq
""")
    A(f"""
{E}_hw:
buffer_load_dword v68, v{HA}, s[44:47], 0 offen sc1
buffer_load_dword v69, v{WFA}, s[44:47], 0 offen sc1
s_waitcnt vmcnt(2)
""")
    flag(F_ALL)
    A(f"""
s_waitcnt vmcnt(0)
v_min_u32 v68, v68, v69
v_cmp_eq_u32 s[8:9], 0, v68
s_or_b32 s8, s8, s9
s_and_b32 s8, s8, 0x7ffffff
s_cbranch_scc0 {E}_hg
s_sub_u32 s10, s10, 1
s_cselect_b32 s10, 0, s10
s_cbranch_scc1 {E}_hg
s_sleep {P['hsl']}
s_branch {E}_hw
{E}_hg:
""")
    MK("lH")
    ACC = 88
    class VQ_:
        def __init__(s): s.q = []
        def op(s, tag, txt): A(txt); s.q.append(tag)
        def need(s, *tags):
            idx = max([i for i, t in enumerate(s.q) if t in tags], default=-1)
            if idx >= 0:
                A(f"s_waitcnt vmcnt({len(s.q) - 1 - idx})"); s.q = s.q[idx + 1:]
    VQ = VQ_()
    addr = {0: (9, 16), 1: (10, 26), 2: (11, 26), 3: (12, 26), 4: (8, 16)}
    def fl(i, j):
        b = 16 + 20 * (i % 3)
        VQ.op((i, j), f"buffer_load_dwordx4 {vr(b+4*j,4)}, v{addr[j][0]}, s[44:47], s{addr[j][1]} offen{P['fsc']}")
        if j == 4: A("s_add_u32 s16, s16, 4096\ns_add_u32 s26, s26, 81920\ns_cmp_eq_u32 s16, s22\ns_cselect_b32 s16, s20, s16\ns_cselect_b32 s26, s23, s26")
    for i in range(3):
        for j in range(5): fl(i, j)
    A(f"s_setprio {P['prio_ffn']}")
    blk = [(0, 1), (0, 2), (4, 1), (4, 2), (4, 3)]
    after = {1: [0], 2: [1], 3: [2], 4: [3, 4]}
    for i in range(27):
        b = 16 + 20 * (i % 3)
        for t, (hj, wj) in enumerate(blk):
            VQ.need((i, hj), (i, wj))
            c = "0" if i == 0 else vr(ACC + 16 * t, 16)
            A(f"v_mfma_f32_32x32x16_bf16 {vr(ACC+16*t,16)}, {vr(b+4*wj,4)}, {vr(b+4*hj,4)}, {c}")
            if i + 3 < 27:
                for j in after.get(t, []): fl(i + 3, j)
    RED = 2560
    MK("l2")
    A(f"s_setprio {P['prio_red']}")
    for q in range(4):
        A(f"s_sub_u32 s16, s29, {q+1}\ns_and_b32 s16, s16, 3\ns_mul_i32 s16, s16, 5120\ns_add_u32 s16, s16, {RED + q*15360}\nv_add_u32 v{8+q}, s16, v5")
    A(f"""
s_mul_i32 s17, s29, 15360
s_add_u32 s17, s17, {RED}
v_add_u32 v12, s17, v5
s_mov_b32 s48, s4
s_mov_b32 s49, s5
s_mov_b32 s50, 2621440
s_mov_b32 s51, 0x20000
s_mov_b32 s36, 0xffff0000
""")
    npw = [0]
    def pwait(reg, off, thr, sl=2):
        k = npw[0]; npw[0] += 1
        A(f"""
{E}_pw{k}:
ds_read_b32 v0, v{reg} offset:{off}
s_waitcnt lgkmcnt(0)
v_cmp_gt_u32 vcc, {thr}, v0
s_cbranch_vccz {E}_pwd{k}
s_sleep {sl}
s_branch {E}_pw{k}
{E}_pwd{k}:
""")
    pwait(1, 64, 2 * P["T1"], 4)
    for q in range(4):
        A(f"s_cmp_eq_u32 s29, {q}\ns_cbranch_scc1 {E}_nx{q}")
        for t in range(5): A(f"ds_write_b128 v{8+q}, {vr(ACC+16*t+4*q,4)} offset:{t*1024}")
        A(f"{E}_nx{q}:")
    flag(F_RW)
    pwait(15, 0, F_RW, 1)
    for t in range(5):
        for jj in range(3):
            A(f"ds_read_b128 {vr(16+12*t+4*jj,4)}, v12 offset:{jj * 5120 + t * 1024}")
    def perq(tag, body):
        for q in range(4):
            if q < 3: A(f"s_cmp_lg_u32 s29, {q}\ns_cbranch_scc1 {E}_{tag}{q+1}")
            body(q)
            if q < 3: A(f"s_branch {E}_{tag}d\n{E}_{tag}{q+1}:")
        A(f"{E}_{tag}d:")
    xr = lambda q, t: ACC + 16 * t + 4 * ((q + 1) & 3)
    perq("x", lambda q: [A(f"buffer_load_dwordx2 {vr(xr(q,t),2)}, v{XA}, s[48:51], s{30+t} offen") for t in range(5)])
    A("s_waitcnt lgkmcnt(0)"); flag(F_RR)
    MK("l7")
    A(f"""
s_setprio 3
s_mov_b32 s48, s6
s_mov_b32 s49, s7
s_mov_b32 s50, 819200
""")
    def fin(q):
        for t in range(5):
            b = 16 + 12 * t; o = ACC + 16 * t + 4 * q; x = xr(q, t)
            for k in range(4): A(f"v_add_f32 v{b+k}, v{b+k}, v{o+k}")
            for k in range(2): A(f"v_lshlrev_b32 v{o+2*k}, 16, v{x+k}\nv_and_b32 v{o+2*k+1}, s36, v{x+k}")
            for k in range(4): A(f"v_add_f32 v{b+4+k}, v{b+4+k}, v{b+8+k}")
            for k in range(4): A(f"v_add3_f32 v{b+k}, v{b+k}, v{b+4+k}, v{o+k}" if False else f"v_add_f32 v{b+k}, v{b+k}, v{b+4+k}")
            for k in range(4): A(f"v_add_f32 v{b+k}, v{b+k}, v{o+k}")
    def adds(n):
        A(f"s_setprio {P['prio_add']}\ns_waitcnt vmcnt({n})"); perq("fin", fin); A("s_setprio 3")
    A(f"s_cmp_eq_u32 s29, 0\ns_cbranch_scc1 {E}_nd")
    pwait(15, 0, F_RR, 1)
    for m in range(40):
        if m in (0, 9, 19, 29, 39): pwait(1, 64, {0: "s54", 9: "s55", 19: "s63", 29: "s3", 39: "s62"}[m], P['wsl'])
        A(f"s_add_u32 m0, s53, {m*1024}\nbuffer_load_dwordx4 v{WA}, s[48:51], s52 offen lds")
        if m % 10 < 9: A("s_add_u32 s52, s52, 20480")
        elif m < 39: A(f"s_add_u32 s52, s52, s{57 + m // 10}")
    MK("l8")
    A(f"s_waitcnt vmcnt(0)\n{E}_nd:"); flag(F_WO)
    MK("l9")
    A(f"s_cmp_eq_u32 s29, 0\ns_cbranch_scc1 {E}_pl")
    adds(0)
    def fxw():
        for t in range(5): A(f"ds_write_b128 v{FX}, {vr(16+12*t,4)} offset:{t*1024}")
        flag(F_FX)
    pwait(1, 64, 16, P['rsl'])
    fxw()
    A(f"s_waitcnt lgkmcnt(0)\ns_endpgm\n{E}_pl:")
    PV = 80
    A(f"s_waitcnt vmcnt(0)\nv_mov_b32 v{PV}, 0\nv_mov_b32 v6, 0\ns_mov_b32 s57, {P['spin']}\ns_mov_b32 s58, 0\ns_mov_b32 s59, 0")
    if P["pgate"]: pwait(1, 64, P["pgate"], P['wsl'])
    A(f"""
{E}_rp:
s_sub_u32 s59, s59, 1
s_cbranch_scc0 {E}_np
s_mov_b32 s59, {P['pper']}
s_waitcnt vmcnt({P['pd'] - 1})
buffer_load_dword v{PV}, v{FP}, s[44:47], s56 offen{P['psc']}
{E}_np:
ds_read_b32 v0, v1 offset:64
v_cmp_ne_u32 s[60:61], 0, v{PV}
s_sub_u32 s57, s57, 1
s_cselect_b64 s[60:61], -1, s[60:61]
s_cselect_b32 s57, 0, s57
v_mov_b32 v8, s60
v_mov_b32 v9, s61
ds_write_b64 v6, v[8:9] offset:{MSK}
s_cmp_lg_u32 s58, 0
s_cbranch_scc1 {E}_rr
s_waitcnt lgkmcnt(1)
v_cmp_gt_u32 vcc, 16, v0
s_cbranch_vccnz {E}_rs
""")
    fin(0); fxw()
    A(f"""
s_mov_b32 s58, 1
{E}_rr:
s_cmp_eq_u64 s[60:61], -1
s_cbranch_scc1 {E}_go
{E}_rs:
s_sleep {P['rsl']}
s_branch {E}_rp
{E}_go:
s_waitcnt vmcnt(0) lgkmcnt(0)
{E}_end:
s_endpgm
""")
    A.end(name, 168, 72)
```

```python
from gen import *
D = dict(hcb=8, ldel=6, w2g=-1, w2f=2, wot=1, hnb=(2,4,6), hfl=(1,1))
build5("c_D.s", P=dict(D, spin=3000), mod=kh)
build5("h_D.s", P=dict(D), mod=kh)
build5("h_E.s", P=dict(D, kvd=(2,1,6)), mod=kh)
```

```python
import sys, json
from asmlib import *
from k1 import gen_k1
from k2 import gen_k2
from k3 import gen_k3
import k2f, k1n, k2n, k2g, kf, kg, kh
NAME = "parallel_sum__softmax_full_mha__dense_activation_relu__prompt"
PROF = 0x2000000
RT = [None]
def add_prof(lines):
    out = []; k = -1; name = None
    for ln in lines:
        t = ln.strip()
        if t.endswith("_kernel:"):
            k += 1; name = t[:-1]
            out += [ln, "    s_memrealtime s[88:89]", "    s_memtime s[90:91]", "    v_lshrrev_b32 v1, 6, v0", "    s_nop 1", "    v_readfirstlane_b32 s98, v1", "    s_waitcnt lgkmcnt(0)"] + [f"    s_mov_b32 s{r}, s90" for r in list(range(70, 80)) + [80, 82, 84, 86]]
        elif t == "s_endpgm":
            out.append(f"    s_branch L_prof_{name}")
        elif t.startswith("; HMARK"):
            i = int(t.split()[2]); out += ["    s_memrealtime s[96:97]", "    s_waitcnt lgkmcnt(0)", f"    s_mov_b32 s{70+i-4}, s96"]
        elif t.startswith("; CMARK"):
            i = int(t.split()[2]); out += ["    s_cmp_eq_u64 s[60:61], -1", "    s_cbranch_scc0 L_cm", f"    s_cmp_lg_u32 s{70+i-4}, s90", "    s_cbranch_scc1 L_cm", "    s_memrealtime s[96:97]", "    s_waitcnt lgkmcnt(0)", f"    s_mov_b32 s{70+i-4}, s96", "L_cm:"]
        elif t.startswith("; VAL"):
            i = int(t.split()[2]); out.append(f"    s_mov_b32 s{70+i-4}, {t.split()[3]}")
        elif t.startswith("; MARK"):
            i = int(t.split()[2])
            if RT[0] is not None and k == RT[0]:
                out += ["    s_memrealtime s[96:97]", "    s_waitcnt lgkmcnt(0)", f"    s_mov_b32 s{80+2*i if i < 4 else 70+i-4}, s96"]
                continue
            if i < 4: out += [f"    s_memtime s[{80+2*i}:{81+2*i}]", "    s_waitcnt lgkmcnt(0)"]
            else: out += ["    s_memtime s[96:97]", "    s_waitcnt lgkmcnt(0)", f"    s_mov_b32 s{70+i-4}, s96"]
        elif t.startswith(".section .rodata"):
            out += [f"L_prof_{name}:"] + ["    " + x for x in f"""s_mov_b64 exec, -1
s_memrealtime s[92:93]
s_memtime s[94:95]
s_load_dwordx2 s[96:97], s[0:1], 64
s_lshl_b32 s99, s2, 4
s_add_u32 s99, s99, s98
s_add_u32 s99, s99, {k*8192}
s_lshl_b32 s99, s99, 7
s_add_u32 s99, s99, {PROF}
s_waitcnt lgkmcnt(0)
v_mov_b32 v1, s99
v_mov_b32 v4, s88
v_mov_b32 v5, s92
v_mov_b32 v6, s90
v_mov_b32 v7, s94
v_mov_b32 v8, s80
v_mov_b32 v9, s82
v_mov_b32 v10, s84
v_mov_b32 v11, s86
v_cmp_eq_u32 vcc, 0, v2
s_and_b64 exec, exec, vcc
s_cmp_ge_u32 s2, 256
s_cbranch_scc1 L_profe_{name}
global_store_dwordx4 v1, v[4:7], s[96:97]
global_store_dwordx4 v1, v[8:11], s[96:97] offset:16
v_mov_b32 v12, s70
v_mov_b32 v13, s71
v_mov_b32 v14, s72
v_mov_b32 v15, s73
v_mov_b32 v16, s74
v_mov_b32 v17, s75
v_mov_b32 v18, s76
v_mov_b32 v19, s77
v_mov_b32 v20, s78
v_mov_b32 v21, s79
global_store_dwordx4 v1, v[12:15], s[96:97] offset:32
global_store_dwordx4 v1, v[16:19], s[96:97] offset:48
global_store_dwordx2 v1, v[20:21], s[96:97] offset:64
s_and_b32 s99, s2, 0x1f
s_lshr_b32 s100, s2, 5
s_cmp_lg_u32 s99, s100
s_cbranch_scc1 L_profe_{name}
s_cmp_lg_u32 s98, {[7,7,3][k]}
s_cbranch_scc1 L_profe_{name}
s_load_dwordx2 s[96:97], s[0:1], 56
v_mov_b32 v1, 0
v_not_b32 v4, v4
v_sub_u32 v7, v7, v6
v_sub_u32 v8, v8, v6
v_sub_u32 v9, v9, v6
v_sub_u32 v10, v10, v6
v_sub_u32 v11, v11, v6
s_waitcnt lgkmcnt(0)
global_atomic_umax v1, v4, s[96:97]
global_atomic_umax v1, v5, s[96:97] offset:4
global_atomic_umax v1, v7, s[96:97] offset:8
global_atomic_umax v1, v8, s[96:97] offset:12
global_atomic_umax v1, v9, s[96:97] offset:16
global_atomic_umax v1, v10, s[96:97] offset:20
global_atomic_umax v1, v11, s[96:97] offset:24
s_cmp_lg_u32 s2, {0 if k == 2 else 999}
s_cbranch_scc1 L_profe_{name}
global_load_dwordx4 v[4:7], v1, s[96:97] offset:-1024
global_load_dwordx4 v[8:11], v1, s[96:97] offset:-512
global_load_dword v7, v1, s[96:97] offset:-1008
s_waitcnt vmcnt(0)
global_store_dwordx4 v1, v[4:7], s[96:97] offset:32
global_store_dwordx4 v1, v[8:11], s[96:97] offset:48
L_profe_{name}:
s_endpgm""".split("\n")] + [ln]
        elif t.startswith(".amdhsa_next_free_sgpr"):
            out.append(".amdhsa_next_free_sgpr 102")
        else: out.append(ln)
    return out
def add_tl(lines):
    out = []; k = -1; name = None
    for ln in lines:
        t = ln.strip()
        if t.endswith("_kernel:"):
            k += 1; name = t[:-1]
            out += [ln, "    s_memrealtime s[88:89]", "    s_memtime s[90:91]", "    v_lshrrev_b32 v1, 6, v0", "    s_nop 1", "    v_readfirstlane_b32 s98, v1"]
        elif t == "s_endpgm":
            out.append(f"    s_branch L_prof_{name}")
        elif t.startswith(".section .rodata"):
            o2 = 512 if k == 0 else -512
            out += [f"L_prof_{name}:"] + ["    " + x for x in f"""s_mov_b64 exec, -1
s_memrealtime s[92:93]
s_memtime s[94:95]
s_load_dwordx2 s[96:97], s[0:1], 56
s_cmp_ge_u32 s2, 256
s_cbranch_scc1 L_profe_{name}
s_cmp_lg_u32 s98, 7
s_cbranch_scc1 L_profe_{name}
s_lshr_b32 s99, s2, 3
s_and_b32 s99, s99, 15
s_cmp_lg_u32 s99, 5
s_cbranch_scc1 L_profe_{name}
s_waitcnt lgkmcnt(0)
v_mov_b32 v1, 0
v_mov_b32 v4, s88
v_mov_b32 v5, s92
v_mov_b32 v6, s90
v_mov_b32 v7, s94
v_not_b32 v8, v4
v_sub_u32 v7, v7, v6
v_cmp_eq_u32 vcc, 0, v2
s_and_b64 exec, exec, vcc
global_atomic_umax v1, v8, s[96:97] offset:{k*16}
global_atomic_umax v1, v5, s[96:97] offset:{k*16+4}
global_atomic_umax v1, v7, s[96:97] offset:{k*16+8}
global_atomic_umax v1, v8, s[96:97] offset:{o2+k*16}
global_atomic_umax v1, v5, s[96:97] offset:{o2+k*16+4}
global_atomic_umax v1, v7, s[96:97] offset:{o2+k*16+8}
L_profe_{name}:
s_endpgm""".split("\n")] + [ln]
        elif t.startswith(".amdhsa_next_free_sgpr"):
            out.append(".amdhsa_next_free_sgpr 102")
        else: out.append(ln)
    return out
def add_dbg(lines, mode):
    out = []; name = None
    R = [80, 82, 84, 86] + list(range(70, 80))
    for ln in lines:
        t = ln.strip()
        if t.endswith("_kernel:"):
            name = t[:-1]
            out += [ln, "    s_memrealtime s[88:89]", "    v_lshrrev_b32 v1, 6, v0", "    s_nop 1", "    v_readfirstlane_b32 s98, v1", "    s_waitcnt lgkmcnt(0)"] + [f"    s_mov_b32 s{r}, s88" for r in R]
        elif t == "s_endpgm": out.append(f"    s_branch L_prof_{name}")
        elif t.startswith("; MARK"):
            i = int(t.split()[2]); out += ["    s_memrealtime s[96:97]", "    s_waitcnt lgkmcnt(0)", f"    s_mov_b32 s{R[i]}, s96"]
        elif t.startswith(".section .rodata"):
            o = ["s_mov_b64 exec, -1", "s_memrealtime s[92:93]", "s_load_dwordx2 s[96:97], s[0:1], 56", "s_cmp_ge_u32 s2, 256", f"s_cbranch_scc1 L_profe_{name}",
                 "s_cmp_ge_u32 s98, 4", f"s_cbranch_scc1 L_profe_{name}", "s_waitcnt lgkmcnt(0)", "v_mov_b32 v4, 0", "v_mbcnt_lo_u32_b32 v1, -1, 0", "v_lshlrev_b32 v1, 2, v1"]
            for i, r in enumerate([88] + R + [92]):
                if mode == "max": o += ["s_not_b32 s99, s88" if i == 0 else f"s_mov_b32 s99, s{r}"]
                else: o += ["s_mov_b32 s99, 1" if i == 0 else f"s_sub_u32 s99, s{r}, s88"]
                o += [f"v_writelane_b32 v4, s99, {i}"]
            o += ["s_mov_b64 exec, 0xffff", f"global_atomic_{'umax' if mode == 'max' else 'add'} v1, v4, s[96:97]"]
            out += [f"L_prof_{name}:"] + ["    " + x for x in o] + [f"L_profe_{name}:", "    s_waitcnt lgkmcnt(0)", "    s_endpgm", ln]
        elif t.startswith(".amdhsa_next_free_sgpr"): out.append(".amdhsa_next_free_sgpr 102")
        else: out.append(ln)
    return out
def build2(path, P1=None, P2=None, prof=False):
    A = Asm()
    hdr = """; LN + MHA + ReLU-FFN parallel block, two launches (generated by a hand-written python emitter)
; @launch kernel=k1_kernel grid=(256,1,1) block=(768,1,1) lds=147456
; @launch kernel=k2_kernel grid=(256,1,1) block=(768,1,1) lds=163840
"""
    gen_k1(A, P=P1); k2f.gen_k2(A, P=P2)
    if prof: A.lines = add_prof(A.lines)
    open(path, "w").write(hdr + HEADER + A.text())
def build3(path, P1=None, P2=None, prof=False):
    A = Asm()
    hdr = """; LN + MHA + ReLU-FFN parallel block, two launches (generated by a hand-written python emitter)
; @launch kernel=k1_kernel grid=(256,1,1) block=(768,1,1) lds=163840
; @launch kernel=k2_kernel grid=(256,1,1) block=(768,1,1) lds=163840
"""
    k1n.gen_k1(A, P=P1); k2n.gen_k2(A, P=P2)
    if prof == "lite": A.lines = add_prof([l for l in A.lines if not l.strip().startswith(("; MARK", "; HMARK", "; CMARK", "; VAL"))])
    elif prof == "tl": A.lines = add_tl(A.lines)
    elif prof: A.lines = add_prof(A.lines)
    open(path, "w").write(hdr + HEADER + A.text())
def build4(path, P1=None, P2=None, prof=False):
    A = Asm()
    hdr = """; LN + MHA + ReLU-FFN parallel block, two launches (generated by a hand-written python emitter)
; @launch kernel=k1_kernel grid=(256,1,1) block=(768,1,1) lds=163840
; @launch kernel=k2_kernel grid=(256,1,1) block=(768,1,1) lds=163840
"""
    k1n.gen_k1(A, P=P1); k2g.gen_k2(A, P=P2)
    if prof == "lite": A.lines = add_prof([l for l in A.lines if not l.strip().startswith(("; MARK", "; HMARK", "; CMARK", "; VAL"))])
    elif prof == "tl": A.lines = add_tl(A.lines)
    elif prof: A.lines = add_prof(A.lines)
    open(path, "w").write(hdr + HEADER + A.text())
MA = dict(c0=0, cA=1, cS=2, cF=3, cQ=4, cB=5, c1=6, cH=7, c3=8, c4=9, c6=10, c8=11, c9=12, lA=1, lS=2, lG=4, lB=5, l4=6, lH=7, l2=8, l7=9, l8=10)
def build5(path, P=None, prof=False, aslist=True, mod=None):
    A = Asm()
    P = dict(P or {})
    kn = "fused_kernel" if aslist else NAME + "_kernel"
    hdr = "; LN + MHA + ReLU-FFN parallel block, one persistent launch (generated by a hand-written python emitter)\n"
    hdr += f"; @launch {'kernel=fused_kernel ' if aslist else ''}grid=(256,1,1) block=(768,1,1) lds=163840\n"
    if prof is True: P.setdefault("marks", MA)
    (mod or kf).gen_f(A, kn, P=P)
    if prof in ("max", "sum"): A.lines = add_dbg(A.lines, prof)
    elif prof: A.lines = add_prof(A.lines)
    open(path, "w").write(hdr + HEADER + A.text())
def build(path, P1=None, P2=None, P3=None, extra="", prof=False):
    A = Asm()
    hdr = """; LN + MHA + ReLU-FFN parallel block, three launches (generated by a hand-written python emitter)
; @launch kernel=k1_kernel grid=(256,1,1) block=(768,1,1) lds=147456
; @launch kernel=k2_kernel grid=(256,1,1) block=(768,1,1) lds=163840
; @launch kernel=k3_kernel grid=(256,1,1) block=(256,1,1) lds=102400
""" + extra
    gen_k1(A, P=P1); gen_k2(A, P=P2); gen_k3(A, P=P3)
    if prof: A.lines = add_prof(A.lines)
    open(path, "w").write(hdr + HEADER + A.text())
if __name__ == "__main__":
    build5(f"cdna_kernels/{NAME}.s", mod=kh)
    build5("cur6.s", mod=kh)
    build5("chk6.s", P=dict(spin=3000), mod=kh)
```

```python
from asmlib import *
from layout import *

NP = 4
DEF = dict(cpf=None, kpar=0, kbit=0, krot=(1, 4), st=" sc1", lprio=3, gtab=None, cntp=8, eprio=3,
           offs=96.0, T1=4, prio_ffn=0, prio_red=1, prio_add=0, c1=3, prios=(3, 2, 1, 0), rot=0, frot=1,
           order="M1 E8 E9 C0 C1 E10 E11 M2 K C2 C3 E12 E13 E14 E15 M3 C4 C5 N0 N1 C6 C7 N2 N3 M4 V N4 N5 N6 N7", npre=8,
           osc=" sc1", lsc=" sc1", psl=2, spin=300000, rsl=1, wsl=8, G0=2, hint=(7, 4), bq=2, pgate=13, rtsl=0, pd=1, pper=12,
           psc=' sc1', hsc=' sc1', qsl=0, hst=(0, 0, 1, 1, 2, 2, 3, 3), ofp=5, hfl=(1, 1), w2g=-1, marks=None, hsl=2, noh=0, noof=0, now2=0, dsc=' sc1', fsc=' sc1', qdel=0, hgate=2,
           n=5, init=6, lord=None, ss=None, qtry=99, cntl=32, qprio=1, hprio=1, pw=3, sched=((0, 1), (2, 3), (4, 5), ()), pk=0,
           pf=None, pf2=None, dsl=1, qsp=0, rws=2, nold=0, nostat=0, D=2, bj=0, fj=0, schb=((0, 1), (2, 3), (4, 5), ()), csx=(38, 1),
           c0=3, xb=81920, wb=16384, ub=16384, show=0, sprio=(None, None), prp=(0, 1, 2), pgw=1, w2t=6, w2at=None, hpre=0, ofi=3, hpk=1, spf=(6, 4), hcb=8, hskip=0, ldel=12, gthr=None, hs1=None, w2f=2, wot=1, bal=0, balp=(1, 3), balo=0, hnb=(2, 4, 6), dbghw=0, yl=None, tla=0, tlb=0, tlm=3, kvd=None, kvp=0, hcw=0, wb2=0, wb2d=0, usc='', otl=0, rotq=1, pfin=1, hl0=0, pmask=0, padp=None, mbx=0, dyn=0, dsl2=2, dper=5, lsc0=(' sc1', ' sc1'), l2p=0, l2u=1, l2k=2, l2h=1, l2d=5, l2m=3, sdot=(), hsx=0, hsp=None, hsf=8, xsw=0, pal=None, qp2=0, qmk=1, gsh=0, gsl=1)
WO = 1024; PR = 143360; MSK = 96; SENT = 128; FREE = 123904
LAND = 160; DONE = 176; PUB = 192; CSF = 208; RLY = 224; BAL = 240
F_G1, F_G5, F_ALL, F_RW, F_RR, F_WO, F_FX = 1, 2, 3, 4, 5, 6, 7
LF = 2
HD = [0, 0, 0, 1, 2, 2, 2, 3, 4, 4, 4, 4, 5, 5, 5, 5]
H1 = (2, 3, 6, 7, 11)

def gen_f(A, name, P=None):
    P = dict(DEF, **(P or {}))
    XS = 1024; RB = 1536; CSQ = 2048
    N = P["n"]; TEND = 19 - N
    tx = lambda k: k if k < N else 10 + k - N
    last = lambda it: it[1] if it[0] == "w" else tx(it[1])
    lord = P["lord"]
    if lord is None:
        lord = [(kd, k) for k in range(N) for kd in "xwu"] + [(kd, k) for k in range(N, 10) for kd in "xw"] + [("u", k) for k in range(N, 10)]
        if N == 5: lord.remove(("u", 5)); lord.insert(lord.index(("x", 9)), ("u", 5))
    else: lord = [(t[0], int(t[1:])) for t in lord.split()]
    assert sorted(lord) == sorted((kd, k) for kd in "xwu" for k in range(10))
    SLOT = {}; EV = {}; avail = list(range(1, 10)); todo = list(lord); occ = {}
    for ev in range(-2, TEND + 1):
        avail += [SLOT[it] for it in SLOT if last(it) == ev]
        while todo and avail and not (ev == -2 and len(SLOT) >= P["init"]):
            it = todo.pop(0)
            late = last(it) >= 10
            win = {"x": P["xb"], "w": P["wb"], "u": P["ub"]}[it[0]] // 16384
            sl = min(avail, key=lambda q: (late and q == 1, not win <= q < win + 4, -q if late else q))
            avail.remove(sl); SLOT[it] = sl; EV[it] = ev; occ[sl] = last(it)
    assert not todo
    SS = P["ss"] or [[t] for t in range(N - 1)] + [[N - 1, N]] + [[t + 1] for t in range(N, 9)] + [[]]
    assert sorted(sum(SS, [])) == list(range(10)) and not SS[9]
    for t in range(10):
        for k in SS[t]: assert EV[("x", k)] <= t - 2 and t <= last(("x", k)), (t, k)
        for it in [("x", t), ("w", t)] + ([("u", t)] if t < N else []): assert EV[it] <= t - 2, it
    assert EV[("u", N)] <= 8
    S1LAST = max(occ[1], 10)
    dead = sorted(range(2, 10), key=lambda q: occ[q])
    W2S, CSS = dead[0], dead[1]
    assert occ[CSS] <= TEND - 3
    if P["show"]: print({ev: [f"{k}{i}@{SLOT[(k, i)]}" for (k, i) in lord if EV[(k, i)] == ev] for ev in sorted(set(EV.values()))}, occ, W2S, CSS)
    ST = P["st"]; SC = " sc1"
    G0 = P["G0"]
    A.begin(name)
    E = "L_f"
    def MK(tag):
        if P["marks"] and tag in P["marks"]: A(f"; MARK {P['marks'][tag]}")
    hd = sum(v << (4 * i) for i, v in enumerate(HD))
    GT = ""
    if P["gtab"]:
        t = sum(v << (4 * i) for i, v in enumerate(P["gtab"]))
        GT = f"s_lshl_b32 s15, s15, 2\ns_mov_b32 s16, {hex(t & 0xffffffff)}\ns_mov_b32 s17, {hex(t >> 32)}\ns_lshr_b64 s[16:17], s[16:17], s15\ns_and_b32 s15, s16, 15"
    CP = ""
    if P["cpf"]:
        n0, n1 = P["cpf"]
        CP = f"""s_getpc_b64 s[42:43]
{E}_pc:
s_lshr_b32 s3, s2, 3
s_mul_i32 s3, s3, {n1}
v_mov_b32 v3, s3
v_cmp_gt_u32 vcc, {n0}, v0
v_cndmask_b32 v3, v3, 0, vcc
v_add_lshl_u32 v3, v3, v0, 7
v_min_u32 v3, {E}_end-{E}_pc, v3
v_mov_b32 v5, s43
v_add_co_u32 v4, vcc, s42, v3
v_addc_co_u32 v5, vcc, 0, v5, vcc
v_cmp_gt_u32 vcc, {n0 + n1}, v0
s_and_b64 exec, exec, vcc
s_cbranch_execz {E}_np0
global_load_dword v167, v[4:5], off
{E}_np0:
s_mov_b64 exec, -1"""
    COMMON = f"""
s_and_b32 s14, s40, 1
s_lshl_b32 s14, s14, 3
s_and_b32 s15, s41, 7
s_add_u32 s14, s14, s15
s_lshr_b32 s15, s40, 1
s_lshl_b32 s15, s15, 2
s_lshr_b32 s16, s41, 3
s_add_u32 s15, s15, s16
{GT}
s_lshl_b32 s17, s15, 2
s_mov_b32 s18, {hex(hd & 0xffffffff)}
s_mov_b32 s19, {hex(hd >> 32)}
s_lshr_b64 s[18:19], s[18:19], s17
s_and_b32 s18, s18, 15
s_lshl_b32 s17, s15, 1
s_sub_u32 s19, s17, s18
s_mov_b32 s18, {sum(1 << g for g in H1)}
s_bitcmp1_b32 s18, s15
s_cselect_b32 s18, 1, 2
s_mov_b32 s46, {WS_BYTES}
s_mov_b32 s47, 0x20000
"""
    A(f"""
s_cmp_ge_u32 s2, 256
s_cbranch_scc1 {E}_end
{CP}
v_lshrrev_b32 v1, 6, v0
s_load_dwordx2 s[12:13], s[0:1], 64
v_readfirstlane_b32 s29, v1
v_and_b32 v2, 63, v0
s_and_b32 s40, s2, 7
{"s_xor_b32 s40, s40, " + str(P["xsw"]) if P["xsw"] else ""}
s_lshr_b32 s41, s2, 3
s_cmp_lt_u32 s29, 8
s_cbranch_scc1 {E}_comp
s_load_dwordx4 s[4:7], s[0:1], 0
s_load_dwordx4 s[8:11], s[0:1], 32
""")
    A(COMMON)
    if P["dbghw"]: A("s_getreg_b32 s79, hwreg(HW_REG_HW_ID)")
    ra, rb = P["krot"]
    A(f"""
s_setprio {P['lprio']}
s_sub_u32 s29, s29, 8
s_mov_b32 s22, 2621440
s_mov_b32 s23, 0x20000
s_mov_b32 s27, 0x20000
s_mov_b32 s50, 2211840
s_mov_b32 s51, 0x20000
s_cmp_lt_u32 s15, 15
s_cselect_b32 s26, 2457600, 0
v_lshrrev_b32 v3, 3, v2
s_lshl_b32 s30, s29, 5
s_lshl_b32 s31, s14, 7
s_add_u32 s30, s30, s31
v_add_u32 v3, s30, v3
v_lshrrev_b32 v4, 4, v2
v_and_b32 v5, 7, v2
v_xor_b32 v6, v5, v4
v_xor_b32 v7, 4, v6
s_movk_i32 s32, 1280
v_mul_lo_u32 v3, v3, s32
v_lshl_add_u32 v10, v6, 4, v3
v_lshl_add_u32 v11, v7, 4, v3
v_add_u32 v11, 10240, v11
v_and_b32 v5, 15, v2
v_lshlrev_b32 v6, 2, v4
v_xor_b32 v5, v5, v6
s_lshl_b32 s30, s29, 4
v_add_u32 v4, s30, v4
v_mul_u32_u24 v6, 3840, v4
v_mul_u32_u24 v7, 3456, v4
s_lshl_b32 s31, s17, 7
s_lshl_b32 s33, s19, 7
v_lshl_add_u32 v6, v5, 4, v6
v_lshl_add_u32 v7, v5, 4, v7
v_add_u32 v12, s31, v6
v_add_u32 v44, s33, v7
s_lshl_b32 s33, s18, 3
v_mov_b32 v8, 0x7fffffff
v_cmp_gt_u32 vcc, s33, v5
s_lshr_b32 s35, s40, 1
s_mul_i32 s35, s35, {ra}
s_and_b32 s36, s40, 1
s_mul_i32 s36, s36, {rb}
s_add_u32 s35, s35, s36
s_bfe_u32 s36, s41, {0x10000 + P['kbit']}
s_mul_i32 s36, s36, {P['kpar']}
s_add_u32 s35, s35, s36
s_cmp_ge_u32 s35, 10
s_cselect_b32 s36, 10, 0
s_sub_u32 s35, s35, s36
""")
    for _ in range((3 * ra + rb + P['kpar']) // 10 - 1): A("s_cmp_ge_u32 s35, 10\ns_cselect_b32 s36, 10, 0\ns_sub_u32 s35, s35, s36")
    for j in range(1, 4): A(f"v_add_u32 v{12+j}, {j*4*3840}, v12\nv_add_u32 v{44+j}, {j*4*3456}, v44")
    for j in range(4): A(f"v_cndmask_b32 v{44+j}, v8, v{44+j}, vcc")
    A(f"""
s_mul_i32 s36, s35, {64*3840}
s_mul_i32 s39, s35, {64*3456}
s_lshl_b32 s35, s35, 7
s_lshl_b32 s37, s29, 12
{"; MARK " + str(P["marks"]["lJ"]) if P["marks"] and "lJ" in P["marks"] else ""}
s_waitcnt lgkmcnt(0)
{"; MARK " + str(P["marks"]["lK"]) if P["marks"] and "lK" in P["marks"] else ""}
s_mov_b32 s20, s4
s_mov_b32 s21, s5
s_mov_b32 s24, s6
s_mov_b32 s25, s7
s_mov_b32 s48, s8
s_mov_b32 s49, s9
""")
    if P["nold"]: A("s_mov_b32 s22, 0\ns_mov_b32 s26, 0\ns_mov_b32 s50, 0")
    class VQ_:
        def __init__(s): s.q = []
        def op(s, tag, txt): A(txt); s.q.append(tag)
        def need(s, *tags):
            idx = max([i for i, t in enumerate(s.q) if t in tags], default=-1)
            if idx >= 0:
                A(f"s_waitcnt vmcnt({len(s.q) - 1 - idx})"); s.q = s.q[idx + 1:]
    LQ = VQ_()
    def ld(kind, st):
        base = SLOT[(kind, st)] * 16384
        o = []
        for j in range(4):
            if kind == "x": t = f"buffer_load_dwordx4 v{10+(j&1)}, s[20:23], s{35 if j < 2 else 30} offen lds"
            elif kind == "w": t = f"buffer_load_dwordx4 v{12+j}, s[24:27], s36 offen lds"
            else: t = f"buffer_load_dwordx4 v{44+j}, s[48:51], s39 offen lds"
            t = f"s_add_u32 m0, s37, {base + j*1024}\n" + t
            if kind == "x" and j == 0: t = "s_add_u32 s30, s35, 20480\n" + t
            if j == 3:
                r, d = {"x": (35, 128), "w": (36, 64*3840), "u": (39, 64*3456)}[kind]
                t += f"\ns_add_u32 s{r}, s{r}, {d}\ns_cmp_eq_u32 s{r}, {10*d}\ns_cselect_b32 s{r}, 0, s{r}"
            o.append(((kind, st), t))
        return o
    def issue_at(f, fill=(), sp=None):
        ps = sum([ld(*l) for l in lord if EV[l] == f], [])
        fill = list(fill); nf = max(len(ps) - 1, 1); per = (len(fill) + nf - 1) // nf
        if sp is not None: per = 0
        for i, (tag, t) in enumerate(ps):
            LQ.op(tag, t)
            if i >= 1 or len(ps) == 1:
                for o in fill[:per]: A(o)
                fill = fill[per:]
        if sp is not None and fill: fill = [f"s_setprio {sp}"] + fill + [f"s_setprio {P['lprio']}"]
        for o in fill: A(o)
    issue_at(-2)
    MK("lI")
    A(f"""
s_load_dwordx2 s[6:7], s[0:1], 16
v_mov_b32 v1, 0
v_lshrrev_b32 v0, 2, v2
v_cmp_eq_u32 vcc, {DONE // 16}, v0
v_cndmask_b32 v1, v1, 12, vcc
v_mov_b32 v0, 0x100
v_cmp_eq_u32 vcc, {RLY // 4}, v2
v_cndmask_b32 v1, v1, v0, vcc
v_lshlrev_b32 v7, 2, v2
ds_write_b32 v7, v1
v_and_b32 v1, 3, v2
v_lshlrev_b32 v1, 2, v1
s_lshl_b32 s30, s29, 2
v_mov_b32 v7, s30
""")
    A(f"""
s_mov_b32 s44, s12
s_mov_b32 s45, s13
s_mov_b32 s52, s10
s_mov_b32 s53, s11
s_mov_b32 s55, 0x20000
s_lshl_b32 s57, s29, 8
s_add_u32 s58, s57, s2
s_min_u32 s57, s58, 539
s_mul_i32 s59, s57, 13108
s_lshr_b32 s59, s59, 16
s_mul_i32 s60, s59, 5
s_sub_u32 s60, s57, s60
s_mul_i32 s61, s59, 20480
s_lshl_b32 s62, s60, 8
s_add_u32 s62, s62, s61
s_add_u32 s63, s62, 5120
v_lshrrev_b32 v3, 5, v2
v_and_b32 v4, 31, v2
v_mul_u32_u24 v5, 10240, v3
v_lshl_add_u32 v98, v4, 3, v5
s_cmp_ge_u32 s58, 540
s_cselect_b32 s54, 0, 2211840
s_mov_b32 s64, s12
s_mov_b32 s65, s13
s_mov_b32 s67, 0x20000
s_cselect_b32 s66, 0, {WS_BYTES}
v_lshrrev_b32 v5, 3, v4
v_and_b32 v6, 7, v2
v_lshlrev_b32 v5, 10, v5
v_lshl_add_u32 v5, v6, 6, v5
v_lshl_add_u32 v5, v3, 9, v5
s_add_u32 s34, s37, {W2S * 16384}
v_add_u32 v48, s34, v5
v_lshlrev_b32 v6, 4, v2
v_add_u32 v49, s34, v6
v_add_u32 v50, s37, v6
v_add_u32 v51, 65536, v50
v_add_u32 v52, 131072, v50
s_mov_b32 s56, 0xffff0000
v_and_b32 v53, 3, v2
v_lshrrev_b32 v54, 3, v2
v_lshl_add_u32 v54, v53, 3, v54
s_lshl_b32 s30, s29, 5
v_add_u32 v54, s30, v54
v_lshlrev_b32 v54, 2, v54
s_lshl_b32 s69, s60, 12
s_add_u32 s69, s69, s61
s_add_u32 s69, s69, {W2F}
s_mul_i32 s68, s60, 108
s_add_u32 s68, s68, s59
s_lshl_b32 s68, s68, 7
s_add_u32 s68, s68, {FW}
s_waitcnt lgkmcnt(0)
""")
    W2R = 100
    def w2loads():
        for j in range(8):
            LQ.op("w2", f"buffer_load_dwordx2 {vr(W2R+2*j,2)}, v98, s[52:55], s{62 + (j >> 2)} offen offset:{(j & 3) * 1280}")
    SD, SA, ST_ = 16, 32, 40
    for i in range(8): A(f"v_mov_b32 v{SA+i}, 0")
    def sreads(k, d, ar=50):
        a = SLOT[("x", k)] * 16384
        return [f"ds_read_b128 {vr(d+4*j,4)}, v{ar + (a >> 16)} offset:{(a & 0xffff) + j*1024}" for j in range(4)]
    if P["sdot"]: A("v_mov_b32 v72, 0x3f803f80")
    def sops(d, t=-1, SA=SA, ST_=ST_, msk="s56"):
        ops = []
        if t in P["sdot"]:
            for i in range(4):
                for j in range(4):
                    x = d + 4*j + i
                    ops += [f"v_dot2c_f32_bf16 v{SA+2*j}, v{x}, v72", f"v_dot2c_f32_bf16 v{SA+1+2*j}, v{x}, v{x}"]
            return ops
        for i in range(4):
            for jp in range(2):
                for e, j in enumerate((2*jp, 2*jp+1)):
                    x = d + 4*j + i
                    ops += [f"v_lshlrev_b32 v{ST_+2*e}, 16, v{x}", f"v_and_b32 v{ST_+1+2*e}, {msk}, v{x}"]
                for q in range(2):
                    for e, j in enumerate((2*jp, 2*jp+1)):
                        u = ST_ + 2*e + q
                        ops += [f"v_add_f32 v{SA+2*j}, v{SA+2*j}, v{u}", f"v_fmac_f32 v{SA+1+2*j}, v{u}, v{u}"]
        return ops
    def sred(SA=SA, q=53):
        o = []
        for m in ("quad_perm:[1,0,3,2]", "quad_perm:[2,3,0,1]", "row_half_mirror"):
            for i in range(8): o.append(f"v_add_f32_dpp v{SA+i}, v{SA+i}, v{SA+i} {m} row_mask:0xf bank_mask:0xf")
        for j in range(1, 4):
            o += [f"v_cmp_eq_u32 vcc, {j}, v{q}", f"v_cndmask_b32 v{SA}, v{SA}, v{SA+2*j}, vcc", f"v_cndmask_b32 v{SA+1}, v{SA+1}, v{SA+1+2*j}, vcc"]
        return o
    def sfin(SA=SA, ad=54, t0=31, t1=32):
        return f"""s_mov_b32 s{t0}, 0x3acccccd
s_mov_b32 s{t1}, 0x3727c5ac
v_mul_f32 v{SA}, s{t0}, v{SA}
v_mul_f32 v{SA+2}, v{SA}, v{SA}
v_fma_f32 v{SA+1}, v{SA+1}, s{t0}, -v{SA+2}
v_max_f32 v{SA+1}, 0, v{SA+1}
v_cvt_pk_bf16_f32 v{SA+1}, 0, v{SA+1}
v_add_f32 v{SA+1}, s{t1}, v{SA+1}
v_cvt_pk_bf16_f32 v{SA+1}, 0, v{SA+1}
v_sqrt_f32 v{SA+1}, v{SA+1}
ds_write_b32 v{ad}, v{SA} offset:{XS}
s_nop 0
v_cvt_pk_bf16_f32 v{SA+1}, 0, v{SA+1}
v_rcp_f32 v{SA+1}, v{SA+1}
s_nop 0
ds_write_b32 v{ad}, v{SA+1} offset:{RB}""".split("\n")
    PS = 10240
    lastS = max(t for t in range(10) if SS[t])
    def work(t):
        fill = []
        if not P["nostat"] and not (P["hsx"] and t >= P["hsx"]):
            for i, k in enumerate(SS[t]):
                for o in sreads(k, SD if i == 0 else 56 + 16 * (i - 1)): A(o)
            for i, k in enumerate(SS[t]):
                fill += [f"s_waitcnt lgkmcnt({4 * (len(SS[t]) - 1 - i)})"] + sops(SD if i == 0 else 56 + 16 * (i - 1), t)
        if P["hsx"]:
            if t == P["hsx"]: fill += sred() + [f"ds_write_b32 v54, v{SA} offset:{PS}", f"ds_write_b32 v54, v{SA+1} offset:{PS+512}", "s_waitcnt lgkmcnt(0)"]
        elif t == lastS + 1: fill += sred() + sfin() + ["s_waitcnt lgkmcnt(0)"]
        issue_at(t - 1, fill, P['sprio'][t >= N])
        if t == P["w2t"]:
            A("v_bfe_u32 v55, v2, 1, 4\nv_mul_u32_u24 v55, 1280, v55\nv_and_b32 v0, 1, v2\nv_lshl_add_u32 v55, v0, 7, v55")
            LQ.op("w2t", "buffer_load_dword v55, v55, s[52:55], s62 offen")
        if t == P["w2at"]: w2loads()
    for st in range(10):
        if st >= 1: work(st - 1)
        MK(f"i{st-1}")
        LQ.need(("x", st), ("w", st), *([("u", st)] if st < N else []), *[("x", k) for k in SS[st]])
        MK(f"a{st-1}")
        A("s_barrier")
        MK(f"s{st-1}")
    work(9)
    LQ.need(("u", N))
    A("s_barrier")
    MK("lA")
    npd = [0]
    def dwait(st):
        k = npd[0]; npd[0] += 1
        A(f"""
{E}_dw{k}:
ds_read_b32 v0, v1 offset:{DONE}
s_waitcnt lgkmcnt(0)
v_cmp_gt_u32 vcc, {st + 3}, v0
s_cbranch_vccz {E}_dx{k}
{"s_sleep " + str(P['dsl']) if P['dsl'] else ""}
s_branch {E}_dw{k}
{E}_dx{k}:
""")
    def land(t):
        LQ.need(("u", t - 10 + N))
        A(f"v_mov_b32 v0, {t}\nds_write_b32 v7, v0 offset:{LAND}")
        MK(f"L{t}")
    lastf = max(EV.values())
    nl = 11
    def lands(ev):
        nonlocal nl
        while nl <= TEND and EV[("u", nl - 10 + N)] <= ev:
            land(nl); nl += 1
    def pubwait():
        A(f"""
{E}_pbw:
ds_read_b32 v0, v1 offset:{PUB}
s_waitcnt lgkmcnt(0)
v_cmp_eq_u32 vcc, 0, v0
s_cbranch_vccz {E}_pbx
s_sleep {P['dsl']}
s_branch {E}_pbw
{E}_pbx:
""")
        MK("lP")
    for ev in range(9, max(lastf, 10) + 1):
        if ev == 10 and P["pgw"]: pubwait()
        if 10 <= ev <= lastf: dwait(ev); MK(f"D{ev}")
        issue_at(ev)
        if ev == max(lastf, 10) and P['w2at'] is None: w2loads()
        lands(ev)
    MK("lL")
    A("s_mov_b32 s30, 0x05040100\ns_mov_b32 s31, 0x07060302")
    LQ.need("w2")
    for c in range(4):
        for k in range(4): A(f"v_perm_b32 v{56+4*c+k}, v{W2R+2+4*k+(c>>1)}, v{W2R+4*k+(c>>1)}, s{30+(c&1)}")
    if occ[W2S] > max(lastf, 9): dwait(occ[W2S])
    for c in range(4): A(f"ds_write_b128 v48, {vr(56+4*c,4)} offset:{16*c}")
    for c in range(4): A(f"ds_read_b128 {vr(88+4*c,4)}, v49 offset:{1024*c}")
    A(f"s_branch {E}_ffn")

    def head_scalars():
        A(f"""
s_lshl_b32 s14, s40, 2
s_lshr_b32 s15, s41, 3
s_add_u32 s14, s14, s15
s_mul_i32 s16, s14, 5
s_add_u32 s16, s16, 1
s_lshr_b32 s16, s16, 1
s_lshl_b32 s16, s16, 9
s_add_u32 s16, s16, {QF}
s_movk_i32 s17, 1024
s_bitcmp1_b32 s14, 0
s_cselect_b32 s17, -504, s17
s_and_b32 s19, s41, 7
s_lshl_b32 s15, s19, 3
s_mul_i32 s19, s19, {8 * TS * P['rot']}
""")
    def poll_addr(dst, t0, t1):
        A(f"""
s_mul_i32 s{t0}, s14, 20
s_add_u32 s{t1}, s{t0}, 19
s_lshr_b32 s{t0}, s{t0}, 6
s_lshr_b32 s{t1}, s{t1}, 6
s_sub_u32 s{t1}, s{t1}, s{t0}
s_lshl_b32 s{t0}, s{t0}, 12
s_add_u32 s{t0}, s{t0}, {FQ}
s_lshl_b32 s{t1}, s{t1}, 12
v_mul_u32_u24 v{dst}, s{t1}, v3
v_lshl_add_u32 v{dst}, v4, 7, v{dst}
v_add_u32 v{dst}, s{t0}, v{dst}
""")
    A(f"{E}_comp:\ns_load_dwordx4 s[64:67], s[0:1], 48")
    if P["dbghw"]: A("s_getreg_b32 s79, hwreg(HW_REG_HW_ID)")
    if P["tla"]:
        A(f"""
s_cmp_ge_u32 s29, 4
s_cbranch_scc1 {E}_nt
s_load_dwordx4 s[4:7], s[0:1], 0
s_load_dwordx4 s[8:11], s[0:1], 32
s_bitcmp1_b32 s29, 1
s_waitcnt lgkmcnt(0)
s_cselect_b64 s[4:5], s[8:9], s[4:5]
s_cselect_b64 s[6:7], s[10:11], s[6:7]
s_bitcmp1_b32 s29, 0
s_cselect_b64 s[4:5], s[6:7], s[4:5]
s_mov_b32 s3, 0x200000
s_cmp_ge_u32 s29, {P["tla"]}
s_cbranch_scc1 {E}_nu
s_load_dword s63, s[4:5], 0
s_load_dword s63, s[4:5], s3
s_branch {E}_nu
{E}_nt:
""")
    def l2pre():
        A(COMMON)
        A(f"""
s_lshr_b32 s20, s40, 1
s_mul_i32 s20, s20, {ra}
s_and_b32 s21, s40, 1
s_mul_i32 s21, s21, {rb}
s_add_u32 s20, s20, s21
s_add_u32 s20, s20, s29
s_add_u32 s20, s20, {P['l2k']}
s_cmp_ge_u32 s20, 10
s_cselect_b32 s21, 10, 0
s_sub_u32 s20, s20, s21
s_cmp_ge_u32 s20, 10
s_cselect_b32 s21, 10, 0
s_sub_u32 s20, s20, s21
s_lshl_b32 s21, s14, 2
s_lshr_b32 s22, s41, 3
s_add_u32 s21, s21, s22
s_mul_i32 s21, s21, {32 * 1280}
s_lshl_b32 s22, s20, 7
s_add_u32 s21, s21, s22
v_mul_u32_u24 v6, 1280, v2
v_add_u32 v6, s21, v6
s_lshl_b32 s20, s20, 3
s_and_b32 s21, s41, 7
s_add_u32 s20, s20, s21
s_lshl_b32 s20, s20, 3
v_bfe_u32 v3, v2, 1, 3
v_add_u32 v3, s20, v3
v_and_b32 v4, 1, v2
s_min_u32 s21, s17, 28
v_add_lshl_u32 v7, v4, s21, 7
v_mul_u32_u24 v8, 3840, v3
v_add_u32 v7, v7, v8
s_sub_u32 s21, s18, 1
v_min_u32 v4, s21, v4
v_add_lshl_u32 v4, v4, s19, 7
v_mul_u32_u24 v8, 3456, v3
v_add_u32 v8, v4, v8
s_waitcnt lgkmcnt(0)
""")
        if P["l2p"] == 3:
            A(f"""
v_mov_b32 v3, s5
v_mov_b32 v4, s7
v_mov_b32 v53, s9
v_add_co_u32 v6, vcc, s4, v6
v_addc_co_u32 v3, vcc, 0, v3, vcc
v_add_co_u32 v7, vcc, s6, v7
v_addc_co_u32 v4, vcc, 0, v4, vcc
v_add_co_u32 v52, vcc, s8, v8
v_addc_co_u32 v53, vcc, 0, v53, vcc
""")
            if P["l2u"]: A("v_cmp_gt_u32 vcc, 48, v2")
            else: A(f"s_cmp_ge_u32 s29, {N - P['l2k']}\ns_cselect_b32 s21, 64, 48\nv_cmp_gt_u32 vcc, s21, v2")
            A("""
v_cndmask_b32 v52, v52, v7, vcc
v_cndmask_b32 v53, v53, v4, vcc
v_cmp_gt_u32 vcc, 32, v2
v_cndmask_b32 v52, v52, v6, vcc
v_cndmask_b32 v53, v53, v3, vcc
""")
            return
        A(f"""
s_mov_b32 exec_hi, 0
global_load_dword v52, v6, s[4:5]
{"global_load_dword v52, v6, s[4:5] offset:64" if P["l2h"] else ""}
s_mov_b64 exec, 0xffff
global_load_dword v52, v7, s[6:7]
{"global_load_dword v52, v7, s[6:7] offset:64" if P["l2h"] else ""}
""")
        if not P["l2u"]: A(f"s_cmp_ge_u32 s29, {N - P['l2k']}\ns_cbranch_scc1 {E}_l2e")
        A(f"""
global_load_dword v52, v8, s[8:9]
{"global_load_dword v52, v8, s[8:9] offset:64" if P["l2h"] else ""}
{E}_l2e:
s_mov_b64 exec, -1
""")
    if P["l2p"]: A("s_load_dwordx4 s[4:7], s[0:1], 0\ns_load_dwordx2 s[8:9], s[0:1], 32")
    if P["l2p"] in (1, 3): l2pre()
    if P["spf"]:
        sh, nj = P["spf"]
        lw = 2 if P["tla"] else 3
        if P["tla"]: nj *= 2
        A(f"""
s_getpc_b64 s[42:43]
{E}_pc:
s_lshl_b32 s3, s41, {lw}
s_and_b32 s62, s29, {(1 << lw) - 1}
s_add_u32 s3, s3, s62
s_lshl_b32 s3, s3, {sh}
s_sub_u32 s42, s42, {E}_pc-{name}
s_subb_u32 s43, s43, 0
""")
        for j in range(nj):
            A(f"s_min_u32 s62, s3, {E}_end-{name}\ns_load_dword s63, s[42:43], s62")
            if j < nj - 1: A(f"s_add_u32 s3, s3, {(32 << lw) << sh}")
    if P["tla"]: A(f"{E}_nu:")
    if P["l2p"] == 2: l2pre()
    if not P["l2p"]: A(COMMON)
    A(f"""
v_lshrrev_b32 v3, 5, v2
v_and_b32 v4, 31, v2
s_and_b32 s52, s29, 1
s_lshr_b32 s53, s29, 1
s_lshl_b32 s30, s52, 1
s_xor_b32 s30, s30, s53
s_mov_b32 s56, 0x3f803f80
s_lshl_b32 s31, s30, 1
v_bfe_u32 v5, v2, 1, 3
v_xor_b32 v5, v5, v3
v_xor_b32 v5, s31, v5
s_lshl_b32 s31, s52, 13
s_add_u32 s31, s31, {P['xb']}
v_lshlrev_b32 v6, 7, v4
v_add_u32 v6, s31, v6
""")
    for pos in range(4):
        A(f"v_xor_b32 v7, {2*pos}, v5\nv_lshl_add_u32 v{16+pos}, v7, 4, v6")
    A(f"""
v_bfe_u32 v5, v2, 2, 2
v_lshl_add_u32 v6, v3, 3, v5
v_lshlrev_b32 v6, 8, v6
v_bfe_u32 v7, v2, 1, 1
v_lshl_add_u32 v6, v7, 3, v6
v_add_u32 v6, {P['wb']}, v6
v_bfe_u32 v7, v2, 4, 1
v_and_b32 v8, 1, v2
v_lshl_add_u32 v7, v7, 1, v8
s_and_b32 s55, s53, 1
s_lshl_b32 s31, s55, 3
v_add_u32 v7, s31, v7
v_lshlrev_b32 v5, 2, v5
v_xor_b32 v7, v7, v5
v_lshl_add_u32 v6, v7, 4, v6
v_xor_b32 v7, 64, v6
""")
    for pos in range(4):
        A(f"s_xor_b32 s31, s30, {pos}\ns_lshl_b32 s31, s31, 12")
        for t in range(2):
            A(f"v_add_u32 v{20+pos*2+t}, s31, v{6+t}")
    A("""
v_and_b32 v5, 15, v2
v_bfe_u32 v6, v2, 4, 1
v_cmp_eq_u32 vcc, v5, v6
v_mov_b32 v5, s56
""")
    for i in range(4): A(f"v_cndmask_b32 v{88+i}, 0, v5, vcc")
    A(f"""
s_lshl_b32 s31, s52, 8
v_lshl_add_u32 v48, v3, 4, s31
s_add_u32 s31, s31, {XS}
v_lshl_add_u32 v9, v4, 2, s31
v_add_u32 v12, {RB - XS}, v9
s_movk_i32 s32, {CSQ}
s_cmp_ge_u32 s29, 4
s_cselect_b32 s32, {CSS * 16384 - 8192}, s32
s_lshl_b32 s33, s29, 11
s_add_u32 s33, s33, s32
v_lshl_add_u32 v7, v2, 4, s33
s_lshl_b32 s33, s53, 12
s_add_u32 s33, s33, s32
v_lshl_add_u32 v8, v3, 11, s33
v_bfe_u32 v5, v2, 4, 1
v_lshl_add_u32 v8, v5, 4, v8
v_bfe_u32 v5, v2, 2, 2
v_lshl_add_u32 v8, v5, 8, v8
v_and_b32 v5, 3, v2
v_lshl_add_u32 v8, v5, 2, v8
v_lshlrev_b32 v5, 4, v2
s_lshl_b32 s31, s15, 3
s_add_u32 s31, s31, s29
s_cmp_eq_u32 s31, {15 * 8}
s_cselect_b32 s42, 1, 0
s_mul_i32 s62, s14, {140 * 128}
s_add_u32 s62, s62, {FL2}
""")
    def kdep():
        A(f"""
s_waitcnt lgkmcnt(0)
s_mov_b32 s44, s12
s_mov_b32 s32, s12
s_mov_b32 s33, s13
s_mov_b32 s45, s13
s_mov_b32 s48, s64
s_mov_b32 s49, s65
s_mov_b32 s64, s66
s_mov_b32 s65, s67
s_mov_b32 s67, 0x20000
s_mov_b32 s66, 256
v_mov_b32 v49, 1
s_cmp_eq_u32 s42, 0
s_cbranch_scc1 {E}_nclr
s_mov_b32 s31, s62
v_mov_b32 v92, 0
v_mov_b32 v93, 0
v_mov_b32 v94, 0
v_mov_b32 v95, 0
""")
        for n in range(17):
            A(f"buffer_store_dwordx4 v[92:95], v5, s[44:47], s31 offen offset:{(n & 3) * 1024} sc1")
            if n & 3 == 3: A("s_add_u32 s31, s31, 4096")
        if P["hl0"]:
            A(f"v_lshlrev_b32 v96, 7, v2\ns_and_b32 s30, s40, 1\ns_lshl_b32 s30, s30, 3\ns_and_b32 s28, s41, 7\ns_add_u32 s30, s30, s28\ns_lshl_b32 s30, s30, 14\ns_add_u32 s30, s30, {FL2 + 0x50000}\nbuffer_store_dword v92, v96, s[44:47], s30 offen sc1\ns_add_u32 s30, s30, 8192\nbuffer_store_dword v92, v96, s[44:47], s30 offen sc1")
        A(f"s_mov_b32 exec_hi, 0\nbuffer_store_dwordx4 v[92:95], v5, s[44:47], s31 offen offset:1024 sc1\ns_mov_b64 exec, -1\n{E}_nclr:")
    if not P["spf"]: kdep()
    A("s_mov_b32 s43, s18\ns_mov_b32 s69, s19")
    KVD = ""
    if P["kvd"]:
        d0, d1, dm = P["kvd"]
        KVD = f"s_sub_u32 s68, s14, 2\ns_cselect_b32 s31, 0, 99\ns_mul_i32 s68, s68, {d1}\ns_add_u32 s68, s68, {d0}\ns_min_u32 s68, s68, {dm}\ns_cmp_lt_u32 s54, 10\ns_cselect_b32 s31, 0, s31\ns_min_u32 s68, s68, s31"
    def kvdelay(tag):
        if P["kvd"]: A(f"{E}_kd{tag}:\ns_sub_u32 s68, s68, 1\ns_cbranch_scc1 {E}_ke{tag}\ns_sleep 4\ns_branch {E}_kd{tag}\n{E}_ke{tag}:")
    A(f"""
s_lshl_b32 s39, s14, 2
s_lshl_b32 s31, s52, 1
s_add_u32 s39, s39, s31
s_lshr_b32 s30, s39, 1
s_mov_b32 s34, 0
s_mov_b32 s35, 0x20000
s_mov_b32 s8, 1.0
s_cmp_ge_u32 s29, 4
s_cbranch_scc1 {E}_ch
s_add_u32 s54, s17, s55
s_cmp_lt_u32 s54, 10
s_cselect_b32 s8, {f32bits(QSCALE)}, s8
s_cselect_b32 s31, 0, 10
s_cselect_b32 s10, 0, 4
s_cmp_ge_u32 s54, 20
s_cselect_b32 s31, 20, s31
s_cselect_b32 s10, 8, s10
s_cselect_b32 s9, 1, 0
s_sub_u32 s31, s54, s31
s_lshl_b32 s6, s31, 12
s_add_u32 s10, s10, s6
s_lshl_b32 s30, s30, 7
s_add_u32 s10, s10, s30
s_add_u32 s10, s10, {FQ}
s_mul_i32 s4, s39, {TS}
s_lshl_b32 s5, s54, 12
s_lshl_b32 s6, s31, 10
s_add_u32 s6, s6, {VOFF}
s_cmp_eq_u32 s9, 1
s_cselect_b32 s5, s6, s5
s_add_u32 s4, s4, s5
s_add_u32 s4, s4, {QF}
s_cmp_eq_u32 s9, 1
s_mov_b32 s5, {TS}
s_cselect_b32 s5, {2*SV}, s5
s_add_u32 s5, s5, s4
s_add_u32 s6, s4, {TS}
s_add_u32 s7, s5, {TS}
s_cmp_ge_u32 s54, 30
s_cselect_b32 s9, 3, s9
{KVD}
s_branch {E}_cj
{E}_ch:
s_add_u32 s54, s19, s55
s_mul_i32 s10, s30, 27
s_add_u32 s10, s10, s54
s_lshl_b32 s10, s10, 7
s_lshl_b32 s31, s54, 2
s_add_u32 s10, s10, {FH}
s_mul_i32 s4, s39, 108
s_add_u32 s4, s4, s31
s_lshl_b32 s4, s4, 10
s_add_u32 s4, s4, {HF}
s_add_u32 s5, s4, {108*1024}
s_mov_b32 s6, 0
s_mov_b32 s7, 0
s_cmp_lt_u32 s55, s18
s_cselect_b32 s9, 2, 3
s_cselect_b32 s34, {WS_BYTES}, 0
{E}_cj:
""")
    head_scalars()
    HADR = f"s_lshl_b32 s61, s15, {12 - LF}\ns_lshr_b32 s27, s14, {LF}\ns_lshl_b32 s27, s27, 7\ns_add_u32 s61, s61, s27\ns_and_b32 s27, s14, {(1 << LF) - 1}\ns_lshl_b32 s27, s27, 2\ns_add_u32 s61, s61, s27"
    HB0 = 0x50000
    if P["hl0"]: HADR = f"s_lshl_b32 s61, s15, 5\ns_add_u32 s61, s61, s14\ns_lshl_b32 s61, s61, 7\ns_add_u32 s61, s61, {HB0}"
    if P["mbx"]:
        HADR = "s_lshr_b32 s61, s15, 1\ns_lshl_b32 s61, s61, 11\ns_and_b32 s27, s15, 1\ns_lshl_b32 s27, s27, 7\ns_add_u32 s61, s61, s27\ns_lshl_b32 s27, s14, 2\ns_add_u32 s61, s61, s27"
    A(f"""
s_lshr_b32 s11, s15, 1
s_add_u32 s15, s15, s29
s_mul_i32 s20, s15, {TS}
s_add_u32 s20, s20, s16
s_add_u32 s18, s20, s17
s_add_u32 s21, s16, s19
s_add_u32 s21, s21, 40960
s_mul_i32 s60, s15, 40960
s_mul_i32 s61, s14, 1280
s_add_u32 s60, s60, s61
s_add_u32 s60, s60, {OF}
s_sub_u32 s3, s60, 3072
{HADR}
s_add_u32 s61, s61, {FL2}
s_lshr_b32 s50, s40, 1
s_lshl_b32 s50, s50, 3
s_and_b32 s51, s41, 7
s_add_u32 s50, s50, s51
s_lshl_b32 s50, s50, 1
s_bfe_u32 s51, s41, 0x10003
s_lshr_b32 s52, s29, 2
s_xor_b32 s53, s51, s52
s_add_u32 s50, s50, s53
s_mul_i32 s54, s52, {P['bq']}
s_xor_b32 s54, s54, s29
s_and_b32 s54, s54, 3
s_lshl_b32 s56, s53, 2
s_add_u32 s56, s56, s54
s_lshl_b32 s56, s56, 3
s_and_b32 s55, s40, 1
s_lshl_b32 s55, s55, 1
s_lshr_b32 s58, s41, 4
s_add_u32 s55, s55, s58
s_mul_i32 s55, s55, 320
s_lshl_b32 s58, s51, 8
s_add_u32 s55, s55, s58
s_lshl_b32 s58, s54, 4
s_add_u32 s55, s55, s58
s_mul_i32 s57, s50, 40960
s_add_u32 s55, s55, s57
s_mul_i32 s59, s54, 10240
s_add_u32 s57, s57, s59
s_add_u32 s57, s57, {OF}
s_mul_i32 s58, s54, 30720
s_add_u32 s58, s58, {WO}
s_mul_i32 s59, s54, 5120
s_add_u32 s59, s59, {PR}
s_lshl_b32 s53, s51, 7
s_sub_u32 s53, 64, s53
s_mov_b32 s50, 2621440
s_mov_b32 s51, 0x20000
""")
    MK("cJ")
    if P["spf"]: kdep()
    MK("cK")
    A(f"""
v_cmp_gt_u32 s[22:23], 20, v4
v_cmp_gt_u32 s[24:25], 32, v2
s_cmp_ge_u32 s29, 4
s_cbranch_scc1 {E}_hp
s_setprio {P['qprio']}
""")
    poll_addr(50, 30, 31)
    A(f"""
s_cmp_eq_u32 s9, 1
s_cbranch_scc1 {E}_vloop
""")
    D = P["D"]
    FB = [[56, 60, 64, 68], [72, 76, 80, 84]] if D == 1 else [[72, 76, 80, 84], [56, 60, 64, 68], [28, 32, 36, 164]]
    QL, RL, KL = 52, 14, 92
    def acc(ct, tt): return 96 + (ct * 2 + tt) * 16
    class Q:
        def __init__(s): s.q = []
        def op(s, tag, txt): A(txt); s.q.append(tag)
        def need(s, *tags):
            idx = max([i for i, t in enumerate(s.q) if t in tags], default=-1)
            if idx >= 0:
                A(f"s_waitcnt lgkmcnt({len(s.q) - 1 - idx})"); s.q = s.q[idx + 1:]
        def drain(s):
            if s.q: A("s_waitcnt lgkmcnt(0)"); s.q = []
    def rd(L, s0, p, i):
        s, pos = p >> 2, p & 3
        x0, x1, w0, w1 = FB[p % (D + 1)]
        isx = i in (0, 3)
        r = 16 + pos if isx else 20 + pos * 2 + (i >= 4)
        a = SLOT[("x" if isx else s0, s)] * 16384
        if not 0 <= a - L.cur[r] <= 49152:
            nb = a if a < L.cur[r] else a - 49152
            A(f"v_add_u32 v{r}, {(nb - L.cur[r]) & 0xffffffff}, v{r}"); L.cur[r] = nb
        o = a - L.cur[r]
        L.op((p, i), [f"ds_read_b128 {vr(x0,4)}, v{r} offset:{o}",
                      f"ds_read_b64_tr_b16 {vr(w0,2)}, v{r} offset:{o}",
                      f"ds_read_b64_tr_b16 {vr(w0+2,2)}, v{r} offset:{o+1024}",
                      f"ds_read_b128 {vr(x1,4)}, v{r} offset:{o+4096}",
                      f"ds_read_b64_tr_b16 {vr(w1,2)}, v{r} offset:{o}",
                      f"ds_read_b64_tr_b16 {vr(w1+2,2)}, v{r} offset:{o+1024}"][i])
    def prep():
        o = []
        for t in range(2):
            c = 10 + t; h = 56 + 4 * t
            o.append(f"""v_cvt_pk_bf16_f32 v{h+2}, 0, v{c}
v_cvt_pk_bf16_f32 v{64+2*t}, -v{160+t}, -v{160+t}
v_sub_f32 v{h+2}, v{c}, v{h+2}
v_cvt_pk_bf16_f32 v{65+2*t}, -v{160+t}, 0
v_cvt_pk_bf16_f32 v{h+3}, 0, v{h+2}
v_cvt_pk_bf16_f32 v{h}, v{c}, v{h+2}
v_sub_f32 v{h+3}, v{h+2}, v{h+3}
v_cvt_pk_bf16_f32 v{h+1}, v{h+3}, 0""".split("\n"))
        return [x for pr in zip(*o) for x in pr]
    def qloads():
        A(f"buffer_load_dwordx4 {vr(QL,4)}, v5, s[44:47], s20 offen{SC}")
        A(f"buffer_load_dwordx2 {vr(RL,2)}, v6, s[44:47], s18 offen{SC}")
        A(f"buffer_load_dwordx4 {vr(KL,4)}, v5, s[44:47], s21 offen{SC}")
    def idle():
        if P["pf"] or P["pf2"]: A(f"""
s_and_b32 s30, s41, 7
s_mul_i32 s30, s30, 80
s_and_b32 s28, s29, 3
s_mul_i32 s31, s28, 20
s_add_u32 s30, s30, s31
v_lshrrev_b32 v164, 1, v2
v_min_u32 v165, 19, v164
v_add_u32 v165, s30, v165
v_and_b32 v166, 1, v2
s_sub_u32 s30, s43, 1
v_min_u32 v1, s30, v166
v_add_u32 v1, s69, v1
v_lshlrev_b32 v1, 7, v1
s_movk_i32 s31, 3456
s_lshl_b32 s28, s28, 8
s_add_u32 s28, s28, s2
s_min_u32 s28, s28, 539
s_mul_i32 s30, s28, 13108
s_lshr_b32 s30, s30, 16
s_mul_i32 s27, s30, {20480 - 5*256}
s_lshl_b32 s28, s28, 8
s_add_u32 s27, s27, s28
v_and_b32 v13, 15, v164
v_mad_u32_u24 v164, v165, s31, v1
v_mul_u32_u24 v13, 1280, v13
v_lshl_add_u32 v13, v166, 7, v13
v_add_u32 v165, s27, v13
""")
        A("s_waitcnt lgkmcnt(0)")
        if P["tlb"]:
            A(f"""
s_and_b32 s30, s41, {P["tlm"]}
s_cbranch_scc1 {E}_ntb
s_and_b32 s28, s29, 3
s_lshl_b32 s30, s28, 21
s_add_u32 s30, s30, 123392
""")
            for j in range(4):
                A(f"s_min_u32 s31, s30, {WS_BYTES - 128}\ns_load_dword s63, s[44:45], s31\ns_add_u32 s30, s30, {4 << 21}")
            A(f"""
s_and_b32 s28, s28, 1
s_lshl_b32 s28, s28, 21
s_load_dword s63, s[48:49], s28
s_load_dword s63, s[36:37], 0
{E}_ntb:
""")
        if P["hsx"]:
            assert not P["pf"] and not P["pf2"]
            if P["hsp"] is not None: A(f"s_setprio {P['hsp']}")
            A(f"""
s_sub_u32 s30, s29, 4
s_lshl_b32 s31, s30, 12
v_lshlrev_b32 v164, 4, v2
v_add_u32 v164, s31, v164
v_add_u32 v165, 65536, v164
v_add_u32 v166, 131072, v164
""")
            assert N <= P["hsx"] < P["hsf"]
            for st in range(N, 10):
                SH = SS[st] if st >= P["hsx"] else []
                for i, k in enumerate(SH):
                    for o in sreads(k, (72, 56)[i], 164): A(o)
                if st == N:
                    A(f"""
v_and_b32 v36, 3, v2
v_lshrrev_b32 v167, 3, v2
v_lshl_add_u32 v167, v36, 3, v167
s_lshl_b32 s30, s30, 5
v_add_lshl_u32 v167, v167, s30, 2
""")
                    for i in range(8): A(f"v_mov_b32 v{28+i}, 0")
                if st == P["hsf"]: A(f"ds_read_b32 v13, v167 offset:{PS}\nds_read_b32 v1, v167 offset:{PS+512}")
                for i, k in enumerate(SH):
                    A(f"s_waitcnt lgkmcnt({4 * (len(SH) - 1 - i) + 2 * (st == P['hsf'])})")
                    for o in sops((72, 56)[i], -1, 28, 36, "0xffff0000"): A(o)
                if st == P["hsf"]:
                    A("v_and_b32 v36, 3, v2")
                    for o in sred(28, 36): A(o)
                    A("s_waitcnt lgkmcnt(0)\nv_add_f32 v28, v28, v13\nv_add_f32 v29, v29, v1")
                    for o in sfin(28, 167, 30, 31): A(o)
                    A("s_waitcnt lgkmcnt(0)")
                if st < 9: A("s_barrier")
            if P["hsp"] is not None: A(f"s_setprio {P['hprio']}")
            return
        for st in range(N + 1, 10):
            if st == P["pf"]: A("global_load_dword v0, v164, s[36:37]")
            if st == P["pf2"]: A("global_load_dword v0, v165, s[38:39]")
            A("s_barrier")
    def loop(mode):
        vmode = mode == "v"; hw = mode == "h"; s0 = "u" if hw else "w"
        L = Q()
        L.cur = {r: P["xb"] if r < 20 else P["wb"] for r in range(16, 28)}
        A("s_barrier")
        MK("c0")
        stat = lambda: (L.op("st", "ds_read2_b32 v[160:161], v9 offset0:0 offset1:32"), L.op("st", "ds_read2_b32 v[162:163], v12 offset0:0 offset1:32"))
        for q in range(D):
            for i in range(6): rd(L, s0, q, i)
        def sync(p, s):
            L.need(*[(q, i) for q in range(p, p + D) for i in range(6)])
            if s < 10:
                MK(f"a{s}")
                A("s_barrier")
                MK(f"s{s}")
            else:
                A(f"v_mov_b32 v1, {s + 3}")
                L.op("dn", f"ds_write_b32 v50, v1")
                A(f"""
v_cmp_gt_u32 vcc, {s + 1}, v13
s_cbranch_vccz {E}_hk{s}
{E}_hl{s}:
ds_read_b32 v13, v48
s_waitcnt lgkmcnt(0)
v_cmp_gt_u32 vcc, {s + 1}, v13
s_cbranch_vccnz {E}_hl{s}
{E}_hk{s}:
""")
                if s + 1 >= P["qtry"]:
                    A(f"v_readlane_b32 s30, v13, 63\ns_and_b32 s30, s30, s68\ns_cbranch_scc0 {E}_hq{s}")
                    qloads()
                    A(f"s_mov_b32 s68, 0\n{E}_hq{s}:")
                MK(f"h{s}")
        CP_, CJ = P["csx"]
        for p in range(40):
            s, pos = p >> 2, p & 3
            hm = hw and s >= N
            if hw: s = tx(s)
            if hw and p == 4 * N:
                MK("hI")
                idle()
                A("s_barrier")
                MK("h9")
                for q in range(D):
                    for i in range(6): rd(L, s0, p + q, i)
                stat()
            b = FB[p % (D + 1)]
            bar = pos == 4 - D and p < 36
            sched = [[], [], [], []] if p + D > 39 or (hw and p < 4 * N <= p + D) else (P["schb"] if bar else P["sched"])
            if bar and P["bj"] < 0: sync(p, s)
            for j, (ct, tt) in enumerate(((0, 0), (0, 1), (1, 1), (1, 0))):
                L.need(*[(p, i) for i in ([0, 1, 2], [3], [4, 5], [])[j]])
                a = acc(ct, tt)
                c = "0" if p == 0 else vr(a, 16)
                w, x = vr(b[2 + ct], 4), vr(b[tt], 4)
                if vmode: A(f"v_mfma_f32_32x32x16_bf16 {vr(a,16)}, {x}, {w}, {c}")
                else: A(f"v_mfma_f32_32x32x16_bf16 {vr(a,16)}, {w}, {x}, {c}")
                if bar and P["bj"] == j: sync(p, s)
                if hm and pos == 3 - D and j == P["fj"] and p < 36: L.op("fl", "ds_read_b32 v13, v48")
                for i in sched[j]: rd(L, s0, p + D, i)
                if pos < 2 and j in (1, 3):
                    ct2 = j >> 1
                    c = "0" if p == 0 else vr(40 + 4 * ct2, 4)
                    A(f"v_mfma_f32_16x16x32_bf16 {vr(40+4*ct2,4)}, {vr(b[2+ct2],4)}, v[88:91], {c}")
                if P["l2p"] == 3 and pos == 0 and j == 1 and p < 4 * N:
                    ws = [w for w in (range(4, 8) if hw else range(4)) if w + P["l2k"] >= P["l2m"] and w + P["l2k"] < 10 and max(0, min(w + P["l2k"] - P["l2d"], N - 1)) == p >> 2]
                    if ws:
                        A(f"s_sub_u32 s30, s29, {ws[0]}\ns_cmp_gt_u32 s30, {ws[-1] - ws[0]}\ns_cbranch_scc1 {E}_l2{mode}{p}\nglobal_load_dword v54, v[52:53], off")
                        if P["l2h"]: A("global_load_dword v55, v[52:53], off offset:64")
                        A(f"{E}_l2{mode}{p}:")
                if P["pal"] and not hw and j == 2 and p >= P["pal"][1] and (p - P["pal"][1]) % P["pal"][2] == 0:
                    kd, p0, dp, per = P["pal"]
                    n0 = (p - p0) // dp * per
                    if n0 < 8:
                        A(f"s_cmp_eq_u32 s9, 3\ns_cbranch_scc1 {E}_pa{mode}{p}")
                        for n in range(n0, min(n0 + per, 8)):
                            ad = f"v51, s[44:47], s{4 + (n & 3)} offen offset:{(n >> 2) * 512}" if vmode else f"v5, s[44:47], s{4 + (n & 1)} offen offset:{(n >> 1) * 1024}"
                            A(f"buffer_store_dwordx4 v[88:91], {ad}{ST}" if kd == "s" else f"buffer_load_dword v52, {ad} sc1")
                        A(f"{E}_pa{mode}{p}:")
                if p == P["cntp"] and j == 0 and mode == "q":
                    A(f"s_cmp_eq_u32 s42, 0\ns_cbranch_scc1 {E}_na\ns_waitcnt vmcnt(0)\ns_mov_b64 exec, 1\nbuffer_atomic_add v49, off, s[64:67], 0 offset:{CNT}\ns_mov_b64 exec, -1\n{E}_na:")
                if p == P["cntl"] and j == 0 and not hw:
                    A(f"buffer_load_dword v13, off, s[64:67], 0 offset:{CNT} sc1")
                if p == 38 and j == 0:
                    L.op("csw", f"ds_write_b128 v7, v[40:43]"); L.op("csw", f"ds_write_b128 v7, v[44:47] offset:1024")
                if p == CP_ and j == CJ:
                    if hm:
                        L.need("csw")
                        L.op("cf", f"ds_write_b32 v50, v49 offset:{CSF - DONE}")
                        A(f"""
{E}_hc:
ds_read_b32 v13, v51 offset:{CSF - DONE}
s_waitcnt lgkmcnt(0)
v_cmp_eq_u32 vcc, 0, v13
s_cbranch_vccnz {E}_hc
""")
                        L.q = []
                    else:
                        L.drain(); A("s_barrier")
                    L.op("st", f"ds_read_b32 v10, v8"); L.op("st", f"ds_read_b32 v11, v8 offset:1024")
                    if not hm: stat()
                if p == 39 and j == min(P["prp"]): L.need("st")
                if p == 39 and j in P["prp"]:
                    q_ = P["prp"].index(j); n_ = len(P["prp"])
                    for o in prep()[16 * q_ // n_: 16 * (q_ + 1) // n_]: A(o)
        MK("hA" if hw else "cA")
        if P["pal"] and not hw: A("s_waitcnt vmcnt(0)")
        for (ct, tt) in ((0, 0), (0, 1), (1, 1), (1, 0)):
            a = acc(ct, tt); w, x = vr(56 + 4 * ct, 2), vr(64 + 2 * tt, 2)
            if vmode: A(f"v_mfma_f32_32x32x8_bf16 {vr(a,16)}, {x}, {w}, {vr(a,16)}")
            else: A(f"v_mfma_f32_32x32x8_bf16 {vr(a,16)}, {w}, {x}, {vr(a,16)}")
    order = ((0, 0), (0, 1), (1, 1), (1, 0))
    loop("q")
    A(f"""
s_cmp_eq_u32 s9, 3
s_cbranch_scc1 {E}_pub
s_setprio {P['eprio']}
v_mul_f32 v162, s8, v162
v_mul_f32 v164, s8, v163
""")
    if not P["kvp"]: kvdelay("q")
    late = []
    for (ct, tt) in order:
        a = acc(ct, tt)
        if P["pk"]:
            for k in range(8): A(f"v_pk_mul_f32 {vr(a+2*k,2)}, {vr(a+2*k,2)}, {vr(162+2*tt,2)} op_sel_hi:[1,0]")
        else:
            for k in range(16): A(f"v_mul_f32 v{a+k}, v{a+k}, v{162+2*tt}")
        for k in range(8): A(f"v_cvt_pk_bf16_f32 v{a+k}, v{a+2*k}, v{a+2*k+1}")
        for j in range(2): A(f"buffer_store_dwordx4 {vr(a+4*j,4)}, v5, s[44:47], s{4+tt} offen offset:{(ct*2+j)*1024}{ST}")
    A(f"s_branch {E}_pub")
    QM, QR, KM, KR, V0, V1 = 8, 12, 16, 20, 24, 28
    S = [32, 48]; O = 64; CB = 80
    FL = 120
    KB = [(KM, KR), (124, 128)]; VB = [V0, 132]
    def vsetup():
        A(f"""
v_and_b32 v{FL+1}, 3, v2
v_lshlrev_b32 v{FL+1}, 2, v{FL+1}
s_lshl_b32 s26, s29, 2
s_add_u32 s26, s26, 64
v_mov_b32 v{FL+2}, s26
v_mul_u32_u24 v7, 320, v3
v_lshl_add_u32 v7, v4, 4, v7
v_add_u32 v7, 5120, v7
v_lshlrev_b32 v6, 4, v4
v_mov_b32 v1, 0x3f803f80
v_cmp_eq_u32 vcc, 20, v4
v_mov_b32 v56, 0
""")
        for i in range(8): A(f"v_cndmask_b32 v{V0+i}, 0, v1, vcc")
    A(f"""
{E}_hp:
s_load_dwordx4 s[36:39], s[0:1], {16 if P["tlb"] else 32}
s_setprio {P['hprio']}
s_sub_u32 s31, s29, 4
s_lshl_b32 s30, s31, 2
s_add_u32 s30, s30, {DONE}
v_mov_b32 v50, s30
v_xor_b32 v51, 4, v50
v_and_b32 v48, 7, v2
v_lshlrev_b32 v48, 2, v48
v_add_u32 v48, {LAND}, v48
v_mov_b32 v1, {RLY}
v_cmp_eq_u32 vcc, 63, v2
v_cndmask_b32 v48, v48, v1, vcc
v_lshlrev_b32 v6, 4, v4
s_lshr_b32 s30, s29, 1
s_lshl_b32 s68, 1, s30
s_waitcnt lgkmcnt(0)
""")
    loop("h")
    HP = {(0, 0): 104, (0, 1): 112, (1, 1): 144, (1, 0): 152}
    A(f"s_cmp_eq_u32 s9, 3\ns_cbranch_scc1 {E}_hd\nv_mov_b32 v164, v163")
    for (ct, tt) in order:
        a = acc(ct, tt); d = HP[(ct, tt)]
        for k in range(8): A(f"v_pk_mul_f32 {vr(a+2*k,2)}, {vr(a+2*k,2)}, {vr(162+2*tt,2)} op_sel_hi:[1,0]")
        for k in (range(7, -1, -1) if (ct, tt) == (0, 0) else range(8)): A(f"v_cvt_pk_bf16_f32 v{d+k}, v{a+2*k}, v{a+2*k+1}")
        for k in range(8): A(f"v_pk_max_i16 v{d+k}, v{d+k}, 0")
        for j in range(2):
            if 2 * order.index((ct, tt)) + j < P["hpre"]:
                A(f"buffer_store_dwordx4 {vr(d+4*j,4)}, v5, s[32:35], s{4+tt} offen offset:{(ct*2+j)*1024}{ST}")
    A(f"{E}_hd:")
    vsetup()
    A(f"""
s_cmp_eq_u32 s68, 0
s_cbranch_scc1 {E}_at2
{E}_hw0:
ds_read_b32 v57, v56 offset:{RLY}
s_waitcnt lgkmcnt(0)
v_readfirstlane_b32 s30, v57
s_and_b32 s30, s30, s68
s_cbranch_scc1 {E}_hw1
s_sleep 1
s_branch {E}_hw0
{E}_hw1:
""")
    qloads()
    A(f"s_branch {E}_at2")
    A(f"{E}_vloop:")
    A(f"""
v_and_b32 v1, 19, v2
v_bfe_u32 v6, v2, 2, 1
v_lshl_add_u32 v1, v6, 3, v1
v_bfe_u32 v6, v2, 3, 1
v_lshl_add_u32 v1, v6, 2, v1
v_mul_u32_u24 v6, {SV}, v3
v_lshl_add_u32 v51, v1, 4, v6
""")
    loop("v")
    A(f"s_setprio {P['eprio']}")
    kvdelay("v")
    for tt in range(2):
        for q in range(4):
            A(f"ds_read_b128 {vr(16+16*tt+4*q,4)}, v48 offset:{RB + tt*128 + q*32}")
    for n, (ct, tt) in enumerate(order):
        a = acc(ct, tt)
        if n < 2: A(f"s_waitcnt lgkmcnt({4 - 4*n})")
        if P["pk"]:
            for k in range(8): A(f"v_pk_mul_f32 {vr(a+2*k,2)}, {vr(a+2*k,2)}, {vr(16+16*tt+2*k,2)}")
        else:
            for k in range(16): A(f"v_mul_f32 v{a+k}, v{a+k}, v{16+16*tt+k}")
        for k in range(8): A(f"v_cvt_pk_bf16_f32 v{a+k}, v{a+2*k}, v{a+2*k+1}")
        for j in range(2): A(f"buffer_store_dwordx4 {vr(a+4*j,4)}, v51, s[44:47], s{4+2*tt+j} offen offset:{ct*512}{ST}")
    DK, DR, DV, DW = 60, 61, 62, 63
    def dma_addr(t0, t1, t2, m1, m2):
        A(f"""
s_mul_i32 s{t0}, s29, {TS}
s_add_u32 s{t0}, s{t0}, s16
s_add_u32 s{t0}, s{t0}, 40960
v_add_u32 v{DK}, s{t0}, v5
s_add_u32 s{t0}, s{t0}, s17
v_lshrrev_b32 v8, 1, v2
v_and_b32 v9, 1, v2
v_lshlrev_b32 v9, 2, v9
v_lshl_add_u32 v8, v8, 4, v9
v_add_u32 v{DR}, s{t0}, v8
s_lshl_b32 s{m1}, s29, 10
s_lshl_b32 s{m2}, s29, 8
s_mul_i32 s{t0}, s14, 320
s_add_u32 s{t0}, s{t0}, {QF + VOFF}
s_lshl_b32 s{t1}, s29, 6
s_lshl_b32 s{t2}, s29, 4
s_add_u32 s{t2}, s{t2}, 256
""")
        def vaddr(dst, ci):
            A(f"""
v_mul_u32_u24 v8, 3277, v{ci}
v_lshrrev_b32 v8, 16, v8
v_mul_u32_u24 v9, 20, v8
v_sub_u32 v9, v{ci}, v9
v_lshrrev_b32 v10, 2, v8
v_and_b32 v8, 3, v8
v_mul_u32_u24 v10, {TS}, v10
v_mul_u32_u24 v8, {SV}, v8
v_lshl_add_u32 v9, v9, 4, s{t0}
v_add3_u32 v{dst}, v8, v9, v10
""")
        A(f"v_add_u32 v11, s{t1}, v2"); vaddr(DV, 11)
        A(f"v_lshrrev_b32 v11, 2, v2\nv_add_u32 v11, s{t2}, v11"); vaddr(DW, 11)
        A(f"v_and_b32 v11, 3, v2\nv_lshl_add_u32 v{DW}, v11, 2, v{DW}")
    def dma(G, m1, m2, so):
        b = G * 10240
        if G == 0: A(f"s_cmp_eq_u32 s29, 0\ns_cbranch_scc1 {E}_d0")
        A(f"s_add_u32 m0, s{m1}, {b}\nbuffer_load_dwordx4 v{DK}, s[44:47], {so} offen{P['dsc']} lds")
        if G == 0: A(f"{E}_d0:")
        A(f"s_add_u32 m0, s{m2}, {b+4096}\nbuffer_load_dword v{DR}, s[44:47], {so} offen{P['dsc']} lds")
        A(f"s_add_u32 m0, s{m1}, {b+5120}\nbuffer_load_dwordx4 v{DV}, s[44:47], {so} offen{P['dsc']} lds")
        A(f"s_add_u32 m0, s{m2}, {b+9216}\nbuffer_load_dword v{DW}, s[44:47], {so} offen{P['dsc']} lds")
    assert G0 == 2 and P["rot"] == 0
    PT = S1LAST + 3
    A(f"{E}_pub:")
    MK("cS")
    vsetup()
    dma_addr(30, 31, 26, 36, 37)
    A(f"""
s_lshl_b32 s26, s29, 2
v_mov_b32 v57, s26
v_mov_b32 v58, {PT}
s_mov_b32 s38, {4*TS}
ds_write_b32 v57, v58 offset:{PUB}
s_cmp_eq_u32 s9, 3
s_cbranch_scc1 {E}_pb2
s_mov_b32 s26, {P['spin']}
s_waitcnt vmcnt(0)
{E}_cw:
v_readfirstlane_b32 s30, v13
s_cmp_ge_u32 s30, 16
s_cbranch_scc1 {E}_cd
s_sub_u32 s26, s26, 1
s_cbranch_scc1 {E}_cd
s_sleep 2
buffer_load_dword v13, off, s[64:67], 0 offset:{CNT} sc1
s_waitcnt vmcnt(0)
s_branch {E}_cw
{E}_cd:
s_mov_b64 exec, 1
buffer_store_dword v49, off, s[44:47], s10 sc1
s_mov_b64 exec, -1
{E}_pb2:
s_setprio {P['qsp']}
""")
    MK("cF")
    A(f"""
s_cmp_lg_u32 s29, {P['pw']}
s_cbranch_scc1 {E}_at1
v_and_b32 v57, 7, v2
v_lshlrev_b32 v57, 2, v57
{E}_pq:
ds_read_b32 v58, v57 offset:{DONE}
s_waitcnt lgkmcnt(0)
s_sleep 1
v_cmp_gt_u32 vcc, {PT}, v58
s_cbranch_vccnz {E}_pq
s_mov_b32 s26, {P['spin']}
{"s_sleep " + str(P['qdel']) if P['qdel'] else ""}
""")
    def qcore(r):
        A(f"""
v_min_u32 v{r+1}, v{r+1}, v{r+2}
v_cmp_ne_u32 s[30:31], 0, v{r}
v_cmp_ne_u32 s[42:43], 0, v{r+1}
s_and_b32 s30, s30, s31
s_and_b32 s42, s42, s43
s_lshr_b32 s30, s30, s11
s_sub_u32 s26, s26, 1
s_cselect_b32 s30, -1, s30
s_cselect_b32 s42, -1, s42
s_cselect_b32 s26, 0, s26
s_bitcmp1_b32 s42, 0
s_cselect_b32 s31, 15, 0
s_and_b32 s30, s30, s31
s_or_b32 s30, s30, 0x100
v_mov_b32 v{r}, s30
v_mov_b32 v{r+1}, s42
ds_write_b64 v56, v[{r}:{r+1}] offset:{RLY}
s_and_b32 s42, s42, 15
s_lshl_b32 s42, s42, 4
s_or_b32 s30, s30, s42
s_cmp_eq_u32 s30, 0x1ff
s_cbranch_scc1 {E}_at1
""")
    if P["qmk"]:
        A("s_lshl_b32 s30, 15, s11\ns_or_b32 s30, s30, 15\ns_mov_b32 exec_lo, s30\ns_mov_b32 exec_hi, s30")
    if P["qp2"]:
        A(f"""
buffer_load_dwordx4 v[52:55], v50, s[44:47], 0 offen sc1
s_sleep {P['qp2']}
{E}_qp:
buffer_load_dwordx4 v[40:43], v50, s[44:47], 0 offen sc1
s_waitcnt vmcnt(1)
""")
        qcore(52)
        A(f"buffer_load_dwordx4 v[52:55], v50, s[44:47], 0 offen sc1\ns_waitcnt vmcnt(1)")
        qcore(40)
        A(f"s_branch {E}_qp")
    else:
        A(f"{E}_qp:\nbuffer_load_dwordx4 v[52:55], v50, s[44:47], 0 offen sc1\ns_waitcnt vmcnt(0)")
        qcore(52)
        A(f"s_sleep {P['qsl']}\ns_branch {E}_qp")
    A(f"""
{E}_at1:
{"s_mov_b64 exec, -1" if P["qmk"] else ""}
s_lshr_b32 s26, s29, 1
s_mov_b32 s27, 11
{E}_qw:
ds_read_b64 v[58:59], v56 offset:{RLY}
s_waitcnt lgkmcnt(0)
v_readfirstlane_b32 s30, v58
v_readfirstlane_b32 s31, v59
s_lshr_b32 s30, s30, s26
s_and_b32 s30, s30, 1
s_lshr_b32 s28, s31, 1
s_and_b32 s31, s31, s28
s_and_b32 s31, s31, 5
s_lshl_b32 s31, s31, 1
s_or_b32 s30, s30, s31
s_and_b32 s30, s30, s27
s_cbranch_scc1 {E}_qa
s_sleep {P['rws']}
s_branch {E}_qw
{E}_qa:
s_bitcmp1_b32 s30, 1
s_cbranch_scc0 {E}_qb
""")
    dma(0, 36, 37, "0")
    A(f"{E}_qb:\ns_bitcmp1_b32 s30, 0\ns_cbranch_scc0 {E}_qc")
    qloads()
    MK("cQ")
    A(f"{E}_qc:\ns_bitcmp1_b32 s30, 3\ns_cbranch_scc0 {E}_qd")
    dma(1, 36, 37, "s38")
    A(f"""
{E}_qd:
s_andn2_b32 s27, s27, s30
s_cbranch_scc1 {E}_qw
{E}_at2:
v_cmp_eq_u32 vcc, 20, v4
v_lshlrev_b32 v57, 3, v4
""")
    for i in range(8): A(f"v_cndmask_b32 v{VB[1]+i}, 0, v1, vcc")
    for i in range(4): A(f"v_mov_b32 v{164+i}, -1")
    A("v_add_u32 v6, 4096, v57")
    MK("cW")
    hstores = [(ct, tt, j) for (ct, tt) in order for j in range(2)]
    def hstore(n):
        ct, tt, j = hstores[n]
        A(f"buffer_store_dwordx4 {vr(HP[(ct,tt)]+4*j,4)}, v{HA_}, s[32:35], s{4+tt} offen offset:{(ct*2+j)*1024}{ST}")
    HA_ = 5
    if P["hcw"]:
        A(f"s_cmp_eq_u32 s34, 0\ns_cbranch_scc1 {E}_nhw")
        for n in range(P["hcw"]): hstore(n)
        MK("cV")
        A(f"s_waitcnt vmcnt({P['hcw']})\ns_branch {E}_nhx\n{E}_nhw:")
    A(f"s_waitcnt vmcnt(0)\n{E}_nhx:")
    for i in range(4): A(f"v_mov_b32 v{QM+i}, v{QL+i}\nv_mov_b32 v{KM+i}, v{KL+i}")
    A(f"v_cndmask_b32 v{QR}, 0, v{RL}, s[24:25]\nv_cndmask_b32 v{QR+1}, 0, v{RL+1}, s[24:25]")
    A("s_barrier")
    MK("cB")
    if P["hcb"]:
        A(f"s_cmp_eq_u32 s34, 0\ns_cbranch_scc1 {E}_nhc")
        for n in range(P["hpre"] + P["hcw"], P["hpre"] + P["hcb"]): hstore(n)
        A(f"{E}_nhc:")
        MK("cC")
    def kread(o, km=None, kr=None):
        if km is None: km, kr = KB[o & 1]
        g, i = o >> 2, o & 3
        A(f"ds_read_b128 {vr(km,4)}, v5 offset:{g*10240+i*1024}\nds_read_b64 {vr(kr,2)}, v6 offset:{g*10240+i*256}")
    def vread(o):
        g, i = o >> 2, o & 3; b = g * 10240 + i * 1280
        A(f"s_mov_b64 exec, s[22:23]\nds_read_b128 {vr(VB[o&1],4)}, v7 offset:{b}\nds_read_b128 {vr(VB[o&1]+4,4)}, v7 offset:{b+640}\ns_mov_b64 exec, -1")
    A(f"ds_read_b64 {vr(KR,2)}, v6")
    for t in range(1, NP): kread(t, CB + 4 * t, 96 + 2 * t)
    PD = [S[0], S[1], O, S[0]]
    def pmax(t):
        for k in range(8):
            if t == 0 and k == 0: A(f"v_max_f32 v1, v{PD[t]}, v{PD[t]+1}")
            else: A(f"v_max3_f32 v1, v1, v{PD[t]+2*k}, v{PD[t]+2*k+1}")
    for t in range(NP):
        if t == 3: pmax(0)
        A(f"s_waitcnt lgkmcnt({2*(NP-1-t)})")
        km, kr = (KM, KR) if t == 0 else (CB + 4 * t, 96 + 2 * t)
        A(f"v_mfma_f32_32x32x16_bf16 {vr(PD[t],16)}, {vr(km,4)}, {vr(QM,4)}, 0")
        A(f"v_mfma_f32_32x32x8_bf16 {vr(PD[t],16)}, {vr(kr,2)}, {vr(QR,2)}, {vr(PD[t],16)}")
    for t in range(1, NP): pmax(t)
    A(f"""
v_mov_b32 v14, v1
s_mov_b32 s26, {f32bits(P['offs'])}
v_permlane32_swap_b32 v1, v14
v_max_f32 v1, v1, v14
v_add_f32 v1, s26, v1
""")
    for i in range(16): A(f"v_sub_f32 v{CB+i}, 0, v1")
    for i in range(16): A(f"v_mov_b32 v{O+i}, 0")
    def M1(t): A(f"v_mfma_f32_32x32x16_bf16 {vr(S[t&1],16)}, {vr(KB[t&1][0],4)}, {vr(QM,4)}, {vr(CB,16)}")
    def M2(t): A(f"v_mfma_f32_32x32x8_bf16 {vr(S[t&1],16)}, {vr(KB[t&1][1],2)}, {vr(QR,2)}, {vr(S[t&1],16)}")
    def Ex(t, *idx):
        for i in idx: A(f"v_exp_f32 v{S[t&1]+i}, v{S[t&1]+i}")
    def Cv(t, *idx):
        for k in idx:
            d = S[t & 1] + (k & 3) + 8 * (k >> 2)
            A(f"v_cvt_pk_bf16_f32 v{d}, v{S[t&1]+2*k}, v{S[t&1]+2*k+1}")
    if P["bal"]:
        A(f"""
v_xor_b32 v22, 16, v{FL+2}
v_mov_b32 v{FL+3}, 0
v_mov_b32 v15, 0
s_setprio {P['balp'][0]}
""")
    if P["yl"]: A(f"v_xor_b32 v22, 16, v{FL+2}\nv_mov_b32 v{FL+3}, 0")
    YL = []
    def yield_(t, waited):
        if not waited: A("s_waitcnt lgkmcnt(2)")
        A(f"v_cmp_lt_u32 vcc, v15, v{FL+3}\ns_cbranch_vccnz {E}_yl{t}\n{E}_yb{t}:")
        YL.append(f"""
{E}_yl{t}:
s_sleep {P['yl'][1]}
ds_read_b32 v15, v22
s_waitcnt lgkmcnt(0)
v_cmp_lt_u32 vcc, v15, v{FL+3}
s_cbranch_vccnz {E}_yl{t}
s_sleep {P['yl'][0]}
s_branch {E}_yb{t}
""")
    if P["hnb"]: A("s_cmp_eq_u32 s34, 0\ns_cselect_b32 s9, 1, 0")
    nbal = [0]
    def balance(t, first):
        if P["bal"] and t % 4 == 2 and not (first and t == 2):
            k = nbal[0]; nbal[0] += 1
            A(f"""
v_cmp_ge_u32 vcc, v15, v{FL+3}
s_setprio {P['balp'][0]}
s_cbranch_vccz {E}_bl{k}
s_setprio {P['balp'][1]}
{E}_bl{k}:
""")
    progress = f"v_add_u32 v{FL+3}, 1, v{FL+3}\nds_write_b32 v{FL+2}, v{FL+3}" + ("\nds_read_b32 v15, v22" if P["bal"] else "")
    MK("c1")
    A("s_waitcnt lgkmcnt(0)")
    kread(1); vread(0); M1(0); M2(0); kread(2); vread(1)
    W = 6
    Ex(0, *range(P["npre"]))
    def tile(t, hook=None):
        pr = P["prios"] if not P["bal"] else None
        if pr and (t == 0 or pr[t % len(pr)] != pr[(t - 1) % len(pr)]): A(f"s_setprio {pr[t % len(pr)]}")
        for tok in P["order"].split():
            if tok == "M1": A(f"s_waitcnt lgkmcnt({W})"); M1(t + 1); balance(t, hook is hook0)
            elif tok == "M2": M2(t + 1)
            elif tok == "M3": A(f"s_waitcnt lgkmcnt({W})\nv_mfma_f32_32x32x16_bf16 {vr(O,16)}, {vr(VB[t&1],4)}, {vr(S[t&1],4)}, {vr(O,16)}")
            elif tok == "M4": A(f"v_mfma_f32_32x32x16_bf16 {vr(O,16)}, {vr(VB[t&1]+4,4)}, {vr(S[t&1]+8,4)}, {vr(O,16)}")
            elif tok == "K":
                if hook: hook(t, 0)
                kread(t + 3)
                if hook: hook(t, 1)
            elif tok == "V":
                vread(t + 2)
                if hook: hook(t, 2)
            elif tok[0] == "E": Ex(t, int(tok[1:]))
            elif tok[0] == "N": Ex(t + 1, int(tok[1:]))
            elif tok[0] == "C": Cv(t, int(tok[1:]))
            else: raise ValueError(tok)
    adv = "v_add_u32 v5, 20480, v5\nv_add_u32 v6, 20480, v6\nv_add_u32 v7, 20480, v7"
    npoll = [0]
    def check(thr):
        k = npoll[0]; npoll[0] += 1
        A(f"""
s_waitcnt lgkmcnt(2)
v_cmp_gt_u32 vcc, {thr}, v{FL}
s_cbranch_vccz {E}_ok{k}
{E}_poll{k}:
s_sleep 1
ds_read_b32 v{FL}, v{FL+1}
s_waitcnt lgkmcnt(0)
v_cmp_gt_u32 vcc, {thr}, v{FL}
s_cbranch_vccnz {E}_poll{k}
{E}_ok{k}:
""")
    rdflag = f"ds_read_b32 v{FL}, v{FL+1}"
    hflag = f"s_waitcnt vmcnt(0)\ns_mov_b64 exec, 1\nbuffer_store_dword v{FL+2}, off, s[32:35], s10 sc1\ns_mov_b64 exec, -1"
    if P["hnb"]:
        hst_ = f"s_waitcnt vmcnt(0)\ns_mov_b64 exec, 1\nbuffer_store_dword v{FL+2}, off, s[32:35], s10 sc1\ns_mov_b64 exec, -1\ns_mov_b32 s9, 1"
        hpeek = lambda t: f"s_getreg_b32 s30, hwreg(HW_REG_IB_STS, 0, 4)\ns_or_b32 s30, s30, s9\ns_cbranch_scc1 {E}_hp{t}\n{hst_}\n{E}_hp{t}:"
        hflag = f"s_cmp_lg_u32 s9, 0\ns_cbranch_scc1 {E}_hpl\n{hst_}\n{E}_hpl:"
    def hook0(t, ph):
        if ph == 1 and t in (4, 7): A(rdflag)
        if ph == 1 and t == 4 and (P["bal"] or P["yl"]): A(progress)
        if ph == 1 and t == 7 and P["yl"]: A("ds_read_b32 v15, v22")
        if ph == 0 and t == 5: check(F_G1)
        if ph in (1, 2):
            mine = [n for n in range(P["hpre"] + P["hcb"], 8) if P["hst"][n] == t]
            for n in mine[ph - 1::2] if not P["noh"] else []:
                if P["hskip"]: A(f"s_cmp_eq_u32 s34, 0\ns_cbranch_scc1 {E}_hs{n}")
                hstore(n)
                if P["hskip"]: A(f"{E}_hs{n}:")
        if ph == 1 and t == P["ofp"] and not P["noof"] and not P["ofi"]:
            A(f"buffer_store_dwordx4 v[164:167], v5, s[44:47], s60 offen sc1\nbuffer_store_dwordx2 v[164:165], v6, s[44:47], s3 offen sc1")
        if ph == 2 and t == 3: MK("t3")
        if ph == 2 and P["hnb"] and t in P["hnb"]: A(hpeek(t))
        if ph == 2 and P["hfl"] == (0, t): MK("t7"); A(hflag); MK("cH")
    for t in range(8): tile(t, hook0)
    A(adv)
    if max(P["hst"]) >= 8:
        HA_ = 14
        A("s_cmp_eq_u32 s34, 0\ns_cselect_b32 s26, 0, 1\nv_lshlrev_b32 v14, 4, v2")
    A(f"s_mov_b32 s27, 1\ns_mov_b32 s28, {F_G5}\nv_mov_b32 v{FL+3}, 1\n{E}_loop:")
    def hook1(t, ph):
        if ph == 0 and t == 0 and P["marks"]:
            for k in range(1, 8):
                if f"I{k}" in P["marks"]: A(f"s_cmp_lg_u32 s27, {k}\ns_cbranch_scc1 {E}_mi{k}"); MK(f"I{k}"); A(f"{E}_mi{k}:")
        if ph == 0 and t == 0: check("s28")
        if ph == 0 and t in (0, 4) and P["yl"]: yield_(t, t == 0)
        if ph == 1 and t in (3, 7) and P["yl"]: A("ds_read_b32 v15, v22")
        if ph == 1 and t == 0: A(f"s_mov_b32 s28, {F_ALL}")
        if ph == 1 and t in (0, 4): A(progress)
        if ph == 1 and t == 7: A(rdflag)
        if ph in (1, 2):
            mine = [n for n in range(P["hpre"] + P["hcb"], 8) if P["hst"][n] == t + 8]
            for n in mine[ph - 1::2]:
                A(f"s_cmp_lg_u32 s27, s26\ns_cbranch_scc1 {E}_hs{n}")
                hstore(n)
                A(f"{E}_hs{n}:")
        if ph == 1 and P["ofi"] and t == P["ofp"]:
            A(f"s_cmp_lg_u32 s27, {P['ofi']}\ns_cbranch_scc1 {E}_no\nv_lshlrev_b32 v1, 4, v2\nv_lshlrev_b32 v0, 3, v4\nbuffer_store_dwordx4 v[164:167], v1, s[44:47], s60 offen sc1\nbuffer_store_dwordx2 v[164:165], v0, s[44:47], s60 offen offset:1024 sc1\n{E}_no:")
        if ph == 2 and P["hfl"][0] > 0 and P["hfl"][1] == t:
            A(f"s_cmp_lg_u32 s27, {P['hfl'][0]}\ns_cbranch_scc1 {E}_nf\n{hflag}\n{E}_nf:")
        if ph == 1 and t == P["hint"][1]:
            A(f"""
s_cmp_lg_u32 s27, {P["hint"][0]}
s_cbranch_scc1 {E}_nh
s_waitcnt vmcnt(0)
{"v_lshlrev_b32 v15, 8, v2" if P["mbx"] else ""}
s_mov_b64 exec, {0xff if P["mbx"] else 1}
buffer_store_dword v{FL+2}, {"v15" if P["mbx"] else "off"}, s[44:47], s61{" offen" if P["mbx"] else ""}{P['hsc']}
s_mov_b64 exec, -1
{"; MARK " + str(P["marks"]["ch"]) if P["marks"] and "ch" in P["marks"] else ""}
{"s_waitcnt vmcnt(0)" + chr(10) + "; MARK " + str(P["marks"]["ci"]) if P["marks"] and "ci" in P["marks"] else ""}
{E}_nh:
""")
    for t in range(8): tile(t, hook1)
    A(adv)
    A(f"s_add_u32 s27, s27, 1\ns_cmp_lt_u32 s27, 8\ns_cbranch_scc1 {E}_loop")
    MK("c3")
    A(f"v_mov_b32 v{FL+3}, 16\nds_write_b32 v{FL+2}, v{FL+3}\nv_mov_b32 v1, 0\ns_movk_i32 s26, 0x207")
    for i in range(12): A(f"v_fma_f32 v1, v{O+i}, 0, v1")
    A(f"""
v_cmp_class_f32 vcc, v1, s26
s_cbranch_vccnz {E}_fb
{E}_epi:
v_mov_b32 v10, 0
ds_read_b64 v[12:13], v10 offset:{MSK}
v_mov_b32 v14, v{O+8}
v_mov_b32 v15, v{O+8}
v_lshlrev_b32 v5, 4, v2
v_permlane32_swap_b32 v14, v15
v_rcp_f32 v14, v15
v_lshlrev_b32 v6, 3, v4
v_mov_b32 v11, v{FL+1}
""")
    for k in range(6): A(f"v_pk_mul_f32 {vr(O+2*k,2)}, {vr(O+2*k,2)}, v[14:15] op_sel_hi:[1,0]")
    for k in range(6): A(f"v_cvt_pk_bf16_f32 v{O+k}, v{O+2*k}, v{O+2*k+1}")
    OSC = P["osc"]; LSC = P["lsc"]
    VW, VR, OR_, OA, SP = 6, 7, 8, 9, 15
    A(f"""
buffer_store_dwordx4 {vr(O,4)}, v5, s[44:47], s60 offen{OSC}
s_mov_b64 exec, s[24:25]
buffer_store_dwordx2 {vr(O+4,2)}, v6, s[44:47], s60 offen offset:1024{OSC}
s_mov_b64 exec, -1
s_setprio 0
""")
    MK("c4")
    if P["marks"] and "cj" in P["marks"]: A("s_waitcnt vmcnt(0)"); MK("cj")
    A(f"""
v_mul_u32_u24 v14, 2560, v3
s_add_u32 s28, s57, 5120
s_waitcnt lgkmcnt(0)
v_readfirstlane_b32 s30, v12
v_readfirstlane_b32 s31, v13
v_lshl_add_u32 v{OR_}, v4, 3, v14
s_lshr_b64 s[30:31], s[30:31], s56
s_mov_b32 s63, s30
""")
    OB = 16; AC = 56
    def load(k, LSC=P["lsc"]):
        if k < 8: A(f"buffer_load_dwordx4 {vr(OB+4*k,4)}, v5, s[44:47], s{57 if k < 4 else 28} offen offset:{1280*(k&3)}{LSC}")
        else:
            for e in range(2): A(f"buffer_load_dwordx2 {vr(OB+4*k+2*e,2)}, v{OR_}, s[44:47], s{57 if k == 8 else 28} offen offset:{1024+1280*e}{LSC}")
    L0, L1 = P["lsc0"]
    EXT = "s_and_b32 s63, s30, 0xff\ns_and_b32 s31, s30, 15\ns_cmp_eq_u32 s31, 15\ns_cselect_b32 s31, 0x100, 0\ns_cmp_ge_u32 s63, 0xf0\ns_cselect_b32 s30, 0x200, 0\ns_or_b32 s63, s63, s31\ns_or_b32 s63, s63, s30"
    if P["dyn"]:
        A(EXT + "\ns_mov_b32 s64, s63\ns_movk_i32 s65, 0x3ff")
        for k in range(10):
            A(f"v_mov_b64 {vr(OB+4*k,2)}, -1\nv_mov_b64 {vr(OB+4*k+2,2)}, -1\ns_bitcmp1_b32 s63, {k}\ns_cbranch_scc0 {E}_su{k}")
            load(k)
            A(f"{E}_su{k}:")
    else:
        for k in range(8):
            A(f"s_mov_b32 s64, {k}\ns_bitcmp1_b32 s63, {k}\ns_cbranch_scc0 {E}_su")
            load(k, L0)
        load(8, L0); load(9, L0)
        A(f"s_mov_b32 s64, 9\n{E}_su:")
    def issue_rest(T):
        A(f"s_cmp_eq_u32 s64, 9\ns_cbranch_scc1 {E}_id{T}")
        for k in range(8):
            L = f"{E}_is{T}{k}"
            A(f"""
s_cmp_gt_u32 s64, {k}
s_cbranch_scc1 {L}n
s_bitcmp1_b32 s63, {k}
s_cbranch_scc1 {L}g
{L}p:
ds_read_b64 v[0:1], v10 offset:{MSK}
s_waitcnt lgkmcnt(0)
v_readfirstlane_b32 s30, v0
v_readfirstlane_b32 s31, v1
s_lshr_b64 s[30:31], s[30:31], s56
s_mov_b32 s63, s30
s_bitcmp1_b32 s30, {k}
s_cbranch_scc1 {L}g
s_sleep 1
s_branch {L}p
{L}g:
""")
            load(k, L1)
            A(f"{L}n:")
        load(8, L1); load(9, L1)
        A(f"{E}_id{T}:"); MK("c6")
    RQ = "v_lshl_add_u32 v13, v12, 5, v13"
    if P["rotq"]:
        RQ = "v_lshlrev_b32 v7, 3, v7\nv_sub_u32 v13, v13, v7\nv_lshl_add_u32 v7, v12, 5, v7\ns_lshl_b32 s30, s54, 4\nv_add_u32 v7, s30, v7\nv_and_b32 v7, 63, v7\nv_add_u32 v13, v13, v7"
    A(f"""
ds_read_b32 v1, v11
v_mul_u32_u24 v12, 1280, v4
v_bfe_u32 v13, v2, 2, 2
v_and_b32 v7, 3, v2
v_lshl_add_u32 v{OA}, v3, 3, v12
v_lshlrev_b32 v13, 6, v13
v_lshl_add_u32 v13, v7, 3, v13
v_bfe_u32 v12, v2, 4, 1
{RQ}
v_add_u32 v13, s58, v13
v_lshl_add_u32 v{VW}, v3, 8, v13
v_add_u32 v{VR}, v14, v13
s_sub_u32 s26, s54, 1
v_sub_u32 v14, s26, v2
v_and_b32 v14, 3, v14
s_lshl_b32 s26, s52, 4
s_add_u32 s26, s26, {SENT}
v_lshl_add_u32 v{SP}, v14, 2, s26
s_lshl_b32 s27, s54, 2
s_add_u32 s27, s27, s26
s_mov_b32 s62, {P['spin']}
v_add_u32 v12, s59, v5
s_lshl_b32 s30, s54, 2
v_mov_b32 v13, s30
""")
    nw_ = [0]
    def lwait(thr, ar=11):
        k = nw_[0]; nw_[0] += 1
        A(f"""
{E}_lw{k}:
s_waitcnt lgkmcnt(0)
v_cmp_gt_u32 vcc, {thr}, v1
s_cbranch_vccz {E}_lwd{k}
s_sleep {P['psl']}
ds_read_b32 v1, v{ar}
s_branch {E}_lw{k}
{E}_lwd{k}:
""")
    def perq4(tag, body):
        for q in range(4):
            if q < 3: A(f"s_cmp_lg_u32 s54, {q}\ns_cbranch_scc1 {E}_{tag}{q+1}")
            body(q)
            if q < 3: A(f"s_branch {E}_{tag}d\n{E}_{tag}{q+1}:")
        A(f"{E}_{tag}d:")
    def chk(k, tmp=14):
        o = OB + 4 * k
        A(f"v_max3_u32 v{tmp}, v{o}, v{o+1}, v{o+2}\nv_max_u32 v{tmp}, v{tmp}, v{o+3}\nv_cmp_eq_u32 vcc, -1, v{tmp}")
    RDM = "v_readfirstlane_b32 s30, v0\nv_readfirstlane_b32 s31, v1\ns_lshr_b64 s[30:31], s[30:31], s56\n" + EXT
    def dwaitf(thr, ar, tag):
        A(f"""
ds_read_b32 v3, v{ar}
ds_read_b64 v[0:1], v10 offset:{MSK}
{E}_dw{tag}:
s_waitcnt lgkmcnt(0)
v_cmp_gt_u32 vcc, {thr}, v3
s_cbranch_vccz {E}_dd{tag}
{RDM}
s_andn2_b32 s30, s63, s64
s_mov_b32 s64, s63
s_sub_u32 s67, s67, 1
s_cselect_b32 s30, s63, s30
s_cselect_b32 s67, {P['dper']}, s67
ds_read_b32 v3, v{ar}
ds_read_b64 v[0:1], v10 offset:{MSK}
s_cmp_eq_u32 s30, 0
s_cbranch_scc1 {E}_dz{tag}
""")
        for k in range(10):
            A(f"s_bitcmp1_b32 s30, {k}\ns_cbranch_scc0 {E}_dn{tag}{k}")
            chk(k)
            A(f"s_cbranch_vccz {E}_dn{tag}{k}")
            load(k)
            A(f"{E}_dn{tag}{k}:")
        A(f"{E}_dz{tag}:\ns_sleep {P['psl']}\ns_branch {E}_dw{tag}\n{E}_dd{tag}:")
    if P["dyn"]:
        A(f"s_mov_b32 s67, {P['dper']}"); dwaitf(F_WO, 11, "o")
    else: lwait(F_WO)
    MK("c5")
    A(f"s_cmp_lg_u32 s52, 0\ns_cbranch_scc1 {E}_tB")
    for ty, nb in ((0, 3), (1, 2)):
        T = "AB"[ty]
        if ty: A(f"{E}_tB:")
        WB = AC + 16 * nb
        nbuf = min(10, (168 - WB) // (4 * nb))
        q = []
        def need(tag):
            idx = max([i for i, t in enumerate(q) if t == tag], default=-1)
            if idx >= 0:
                A(f"s_waitcnt lgkmcnt({min(len(q) - 1 - idx, 15)})"); del q[:idx + 1]
        later = lambda k: (7 - k + 4) if k < 8 else (2 if k == 8 else 0)
        SLT = {0: 0, 1: 1, 2: 2, 3: 3, 8: 4, 4: 0, 5: 1, 6: 2, 7: 3, 9: 4}
        slot = (lambda k: SLT[k]) if P["dyn"] and nbuf < 10 else (lambda k: k % nbuf)
        def wr(k, lo=0, hi=99):
            b = WB + slot(k) * 4 * nb
            for u in range(max(lo, 0), min(hi, nb)):
                if k < 8: a = VW; o1 = u * 10240 + k * 1280; o2 = o1 + 512
                else: a = VR; o1 = u * 10240 + (k - 8) * 5120 + 1024; o2 = o1 + 1280
                A(f"ds_read_b64_tr_b16 {vr(b+4*u,2)}, v{a} offset:{o1}"); q.append((k, u))
                A(f"ds_read_b64_tr_b16 {vr(b+4*u+2,2)}, v{a} offset:{o2}"); q.append((k, u))
        for k in ((0, 1, 2, 3, 8) if P["dyn"] and nbuf < 10 else range(nbuf)): wr(k)
        if P["rotq"]:
            if ty == 0:
                A("s_add_u32 s32, s58, 20480")
                for r in range(3): A(f"s_sub_u32 s30, s54, {r+1}\ns_and_b32 s30, s30, 3\ns_mul_i32 s30, s30, 30720\ns_add_u32 s{36+r}, s30, {WO + 20480 + r*3072}")
            else:
                A(f"s_lshl_b32 s32, s54, 12\ns_add_u32 s32, s32, {FREE}")
                for r in range(3):
                    A(f"s_sub_u32 s30, s54, {r+1}\ns_and_b32 s30, s30, 3\ns_mul_i32 s30, s30, {5120 if r == 0 else 4096}\ns_add_u32 s{36+r}, s30, {PR if r == 0 else FREE + (r-1)*2048}")
            A("s_add_u32 s33, s55, s53\ns_add_u32 s34, s33, s53\ns_mov_b32 s35, 0")
        elif ty == 0:
            for j in range(4): A(f"s_sub_u32 s30, {j+3}, s54\ns_and_b32 s30, s30, 3\ns_mul_i32 s30, s30, 3072\ns_add_u32 s{32+j}, s30, s58\ns_add_u32 s{32+j}, s{32+j}, 20480")
            for r in range(3): A(f"s_sub_u32 s30, s54, {r+1}\ns_and_b32 s30, s30, 3\ns_mul_i32 s30, s30, 30720\ns_add_u32 s{36+r}, s30, {WO + 20480 + r*3072}")
        else:
            A(f"s_lshl_b32 s31, s54, 12\ns_add_u32 s31, s31, {FREE - 2048}")
            for j in range(4): A(f"s_sub_u32 s30, {j+3}, s54\ns_and_b32 s30, s30, 3\ns_lshl_b32 s{32+j}, s30, 11\ns_add_u32 s{32+j}, s{32+j}, s31\ns_cmp_eq_u32 s30, 0\ns_cselect_b32 s{32+j}, s59, s{32+j}")
            for r in range(3):
                A(f"s_sub_u32 s30, s54, {r+1}\ns_and_b32 s30, s30, 3\ns_mul_i32 s30, s30, {5120 if r == 0 else 4096}\ns_add_u32 s{36+r}, s30, {PR if r == 0 else FREE + (r-1)*2048}")
        for k in range(16 * nb): A(f"v_mov_b32 v{AC+k}, 0")
        if P["dyn"]: dwaitf(F_FX, 13, "x" + T)
        else:
            issue_rest(T)
            A("ds_read_b32 v1, v13")
            lwait(F_FX, 13)
        MK("c7")
        q.clear()
        fxr = lambda qq: [A(f"ds_read_b128 {vr(AC+16*t+4*qq,4)}, v12 offset:{(2048 if ty == 0 else 0) + t*1024}") for t in range(nb)]
        if P["rotq"]: fxr(0)
        else: perq4(f"fx{T}", fxr)
        if P["dyn"]:
            def mm(k, nx=None):
                b = WB + slot(k) * 4 * nb; o = OB + 4 * k
                for u in range(nb):
                    A(f"v_mfma_f32_32x32x16_bf16 {vr(AC+16*u,16)}, {vr(b+4*u,4)}, {vr(o,4)}, {vr(AC+16*u,16)}")
                    if nx is not None and u >= 1: wr(nx, u - 1, u)
                if nx is not None: wr(nx, nb - 1, nb)
            A(f"""
{RDM}
s_andn2_b32 s30, s63, s64
s_mov_b32 s64, s63
s_waitcnt lgkmcnt(0)
s_branch {E}_yi{T}
{E}_yl{T}:
s_and_b32 s66, s64, s65
""")
            if nbuf < 10:
                PA = ((0, 4), (1, 5), (2, 6), (3, 7), (8, 9))
                for a, b in PA:
                    A(f"s_bitcmp1_b32 s66, {a}\ns_cbranch_scc0 {E}_ya{T}{a}")
                    chk(a)
                    A(f"s_cbranch_vccnz {E}_ya{T}{a}\ns_bitset0_b32 s65, {a}")
                    mm(a, b)
                    A(f"{E}_ya{T}{a}:")
                for a, b in PA:
                    A(f"s_bitcmp1_b32 s66, {b}\ns_cbranch_scc0 {E}_yb{T}{b}")
                    chk(b)
                    A(f"s_cbranch_vccz {E}_yc{T}{b}\ns_bitset0_b32 s66, {b}\ns_branch {E}_yb{T}{b}\n{E}_yc{T}{b}:\ns_bitcmp1_b32 s65, {a}\ns_cbranch_scc0 {E}_yb{T}{b}")
                    wr(b)
                    A(f"{E}_yb{T}{b}:")
                A(f"s_waitcnt lgkmcnt(0)\ns_and_b32 s30, s66, 0x2f0\ns_cbranch_scc0 {E}_ye{T}")
                for a, b in PA:
                    A(f"s_bitcmp1_b32 s66, {b}\ns_cbranch_scc0 {E}_yd{T}{b}\ns_bitset0_b32 s65, {b}")
                    mm(b)
                    A(f"s_bitcmp1_b32 s65, {a}\ns_cbranch_scc0 {E}_yd{T}{b}")
                    wr(a)
                    A(f"{E}_yd{T}{b}:")
                A(f"{E}_ye{T}:")
            else:
                for k in (0, 1, 2, 3, 8, 4, 5, 6, 7, 9):
                    A(f"s_bitcmp1_b32 s66, {k}\ns_cbranch_scc0 {E}_ya{T}{k}")
                    chk(k)
                    A(f"s_cbranch_vccnz {E}_ya{T}{k}\ns_bitset0_b32 s65, {k}")
                    mm(k)
                    A(f"{E}_ya{T}{k}:")
                A("s_waitcnt lgkmcnt(0)")
            A(f"""
s_cmp_eq_u32 s65, 0
s_cbranch_scc1 {E}_yz{T}
s_sub_u32 s62, s62, 1
s_cbranch_scc1 {E}_yz{T}
{RDM}
s_mov_b32 s64, s63
s_and_b32 s30, s63, s65
s_waitcnt lgkmcnt(0)
{E}_yi{T}:
ds_read_b64 v[0:1], v10 offset:{MSK}
""")
            for k in range(10):
                A(f"s_bitcmp1_b32 s30, {k}\ns_cbranch_scc0 {E}_yj{T}{k}")
                load(k)
                A(f"{E}_yj{T}{k}:")
            A(f"s_cmp_eq_u32 s62, {P['spin']}\ns_cbranch_scc1 {E}_yl{T}\ns_sleep {P['dsl2']}\ns_branch {E}_yl{T}\n{E}_yz{T}:\ns_waitcnt lgkmcnt(0)")
        else: A("s_waitcnt lgkmcnt(0)")
        for k in range(10 if not P["dyn"] else 0):
            A(f"s_waitcnt vmcnt({later(k)})")
            o = OB + 4 * k
            A(f"""
{E}_ck{T}{k}:
v_max3_u32 v1, v{o}, v{o+1}, v{o+2}
v_max_u32 v1, v1, v{o+3}
v_cmp_eq_u32 vcc, -1, v1
s_cbranch_vccnz {E}_rt{T}{k}
{E}_bk{T}{k}:
""")
            b = WB + (k % nbuf) * 4 * nb
            nx = k + nbuf
            for u in range(nb):
                need((k, u))
                A(f"v_mfma_f32_32x32x16_bf16 {vr(AC+16*u,16)}, {vr(b+4*u,4)}, {vr(o,4)}, {vr(AC+16*u,16)}")
                if nx < 10 and u >= 1: wr(nx, u - 1, u)
            if nx < 10: wr(nx, nb - 1, nb)
        MK("c8")
        XR = 140 if P["dyn"] else 16
        for j in range(1 if P["rotq"] else 4): A(f"v_add_u32 v{XR+j}, s{32+j}, v5")
        for r in range(3): A(f"v_add_u32 v{XR+4+r}, s{36+r}, v5")
        A("v_mov_b32 v13, s27\ns_mov_b32 s63, 7")
        if P["rotq"]:
            for t in range(nb):
                for j in range(1, 4):
                    if ty == 0: a, o = XR, (j - 1) * 3072 + t * 1024
                    elif j == 1: a, o = 12, t * 1024
                    else: a, o = XR, (j - 2) * 2048 + t * 1024
                    A(f"ds_write_b128 v{a}, {vr(AC+16*t+4*j,4)} offset:{o}")
        for j in range(4 if not P["rotq"] else 0):
            A(f"s_cmp_eq_u32 s54, {j}\ns_cbranch_scc1 {E}_ns{T}{j}")
            for t in range(nb): A(f"ds_write_b128 v{XR+j}, {vr(AC+16*t+4*j,4)} offset:{t*1024}")
            A(f"{E}_ns{T}{j}:")
        A(f"""
s_waitcnt lgkmcnt(0)
ds_write_b32 v13, v13
{E}_sp{T}:
ds_read_b32 v1, v{SP}
s_waitcnt lgkmcnt(0)
v_cmp_ne_u32 vcc, 0, v1
s_and_b32 s30, vcc_lo, s63
""")
        for r in range(3):
            A(f"s_bitcmp1_b32 s30, {r}\ns_cbranch_scc0 {E}_nr{T}{r}")
            for t in range(nb): A(f"ds_read_b128 {vr(WB+4*(3*t+r),4)}, v{XR+4+r} offset:{t*1024}")
            A(f"{E}_nr{T}{r}:")
        if P["rotq"] > 1:
            A(f"""
s_andn2_b32 s63, s63, s30
s_cbranch_scc0 {E}_sq{T}
s_cmp_lg_u32 s35, 0
s_cbranch_scc1 {E}_sp{T}
s_mov_b32 s35, 1
s_mov_b64 exec, 0
s_branch {E}_fi{T}
{E}_fo{T}:
s_mov_b64 exec, -1
s_branch {E}_sp{T}
{E}_sq{T}:
s_waitcnt lgkmcnt(0)
""")
            MK("c9")
            A(f"{E}_fi{T}:")
        else:
            A(f"""
s_andn2_b32 s63, s63, s30
s_cbranch_scc1 {E}_sp{T}
s_waitcnt lgkmcnt(0)
""")
            MK("c9")
        def fin(qq):
            for t in range(nb):
                a = AC + 16 * t + 4 * qq; r = WB + 12 * t
                for k in range(4): A(f"v_add_f32 v{a+k}, v{a+k}, v{r+k}\nv_add_f32 v{r+4+k}, v{r+4+k}, v{r+8+k}")
                for k in range(4): A(f"v_add_f32 v{a+k}, v{a+k}, v{r+4+k}")
                A(f"v_cvt_pk_bf16_f32 v{a}, v{a}, v{a+1}\nv_cvt_pk_bf16_f32 v{a+1}, v{a+2}, v{a+3}")
                A(f"buffer_store_dwordx2 {vr(a,2)}, v{OA}, s[48:51], s{(55, 33, 34)[t] if P['rotq'] else 55} offen{P['usc']}")
                if t < nb - 1 and not P["rotq"]: A("s_add_u32 s55, s55, s53")
            if P["rotq"] > 1: A(f"s_cbranch_execz {E}_fo{T}")
            if P["wb2"] & 1 and ty == 0: A(f"s_cmp_lg_u32 s54, 0\ns_cbranch_scc1 {E}_nwb\ns_waitcnt vmcnt(0)\nbuffer_wbl2 sc1\n{E}_nwb:")
            if P["wb2"] & 4: A(f"s_waitcnt vmcnt(0)\nbuffer_wbl2 sc1")
            A("s_endpgm")
        if P["rotq"]: fin(0)
        for qq in range(4 if not P["rotq"] else 0):
            if qq < 3: A(f"s_cmp_lg_u32 s54, {qq}\ns_cbranch_scc1 {E}_fn{T}{qq+1}")
            fin(qq)
            if qq < 3: A(f"{E}_fn{T}{qq+1}:")
        for k in range(10 if not P["dyn"] else 0):
            A(f"""
{E}_rt{T}{k}:
s_sub_u32 s62, s62, 1
s_cbranch_scc1 {E}_bk{T}{k}
""")
            if P["rtsl"]: A(f"s_sleep {P['rtsl']}")
            for kk in range(k, 10): load(kk)
            A(f"s_waitcnt vmcnt({later(k)})\ns_branch {E}_ck{T}{k}")
    for y in YL: A(y)
    A(f"""
{E}_fb:
s_waitcnt lgkmcnt(0)
v_lshlrev_b32 v5, 4, v2
v_lshlrev_b32 v6, 4, v4
v_mul_u32_u24 v7, {SV}, v3
v_lshl_add_u32 v7, v4, 4, v7
v_add_u32 v15, {2*SV}, v7
v_mov_b32 v1, 0xff800000
s_add_u32 s18, s16, 40960
s_mov_b32 s26, s18
s_mov_b32 s27, 64
{E}_fb1:
s_add_u32 s30, s26, s17
buffer_load_dwordx4 {vr(KM,4)}, v5, s[44:47], s26 offen{SC}
buffer_load_dwordx2 {vr(KR,2)}, v6, s[44:47], s30 offen{SC}
s_waitcnt vmcnt(0)
v_mfma_f32_32x32x16_bf16 {vr(S[0],16)}, {vr(KM,4)}, {vr(QM,4)}, 0
v_mfma_f32_32x32x8_bf16 {vr(S[0],16)}, {vr(KR,2)}, {vr(QR,2)}, {vr(S[0],16)}
""")
    for k in range(8): A(f"v_max3_f32 v1, v1, v{S[0]+2*k}, v{S[0]+2*k+1}")
    A(f"""
s_add_u32 s26, s26, {TS}
s_sub_u32 s27, s27, 1
s_cmp_lg_u32 s27, 0
s_cbranch_scc1 {E}_fb1
v_mov_b32 v14, v1
v_permlane32_swap_b32 v1, v14
v_max_f32 v1, v1, v14
""")
    for i in range(16): A(f"v_sub_f32 v{CB+i}, 0, v1\nv_mov_b32 v{O+i}, 0")
    A(f"""
s_mov_b32 s26, s18
s_mul_i32 s28, s14, 320
s_add_u32 s28, s28, {QF + VOFF}
s_mov_b32 s27, 64
{E}_fb2:
s_add_u32 s30, s26, s17
buffer_load_dwordx4 {vr(KM,4)}, v5, s[44:47], s26 offen{SC}
buffer_load_dwordx2 {vr(KR,2)}, v6, s[44:47], s30 offen{SC}
s_mov_b64 exec, s[22:23]
buffer_load_dwordx4 {vr(V0,4)}, v7, s[44:47], s28 offen{SC}
buffer_load_dwordx4 {vr(V1,4)}, v15, s[44:47], s28 offen{SC}
s_mov_b64 exec, -1
s_waitcnt vmcnt(0)
""")
    M1(0); M2(0)
    Ex(0, *range(16)); Cv(0, *range(8))
    A(f"""
v_mfma_f32_32x32x16_bf16 {vr(O,16)}, {vr(V0,4)}, {vr(S[0],4)}, {vr(O,16)}
v_mfma_f32_32x32x16_bf16 {vr(O,16)}, {vr(V1,4)}, {vr(S[0]+8,4)}, {vr(O,16)}
s_add_u32 s26, s26, {TS}
s_add_u32 s28, s28, {TS}
s_sub_u32 s27, s27, 1
s_cmp_lg_u32 s27, 0
s_cbranch_scc1 {E}_fb2
s_nop 15
s_branch {E}_epi
""")
    A(f"{E}_ffn:")
    head_scalars()
    A("v_lshlrev_b32 v5, 4, v2")
    PA = 64
    poll_addr(PA, 30, 31)
    dma_addr(20, 21, 22, 17, 18)
    A(f"s_mov_b32 s19, {G0*4*TS}")
    WA, FX, FP, XA = 76, 79, 84, 85
    HA, WFA = 65, 66
    MB = ""
    if P["hl0"]: MB = f"s_lshl_b32 s56, s14, 13\ns_add_u32 s56, s56, {FL2 + 0x50000}\nv_lshlrev_b32 v{FP}, 7, v2"
    if P["mbx"]:
        assert LF == 2
        MB = f"s_and_b32 s30, s40, 1\ns_lshl_b32 s30, s30, 2\ns_lshr_b32 s31, s41, 3\ns_add_u32 s30, s30, s31\ns_lshl_b32 s30, s30, 8\ns_add_u32 s56, s56, s30\nv_lshlrev_b32 v{FP}, 2, v2"
    A(f"""
v_lshrrev_b32 v{FP}, {LF}, v2
v_and_b32 v16, {(1 << LF) - 1}, v2
v_lshlrev_b32 v{FP}, 7, v{FP}
v_lshl_add_u32 v{FP}, v16, 2, v{FP}
v_mov_b32 v16, {108*128}
s_lshr_b32 s14, s40, 1
s_lshl_b32 s14, s14, 3
s_and_b32 s24, s41, 7
s_add_u32 s14, s14, s24
s_lshl_b32 s56, s14, {13 - LF}
s_add_u32 s56, s56, {FL2}
{MB}
s_mul_i32 s30, s14, {27*128}
s_add_u32 s30, s30, {FH}
v_min_u32 v{HA}, 26, v4
v_lshl_add_u32 v{HA}, v{HA}, 7, s30
s_lshl_b32 s14, s14, 1
s_bfe_u32 s25, s41, 0x10003
s_xor_b32 s15, s25, 1
s_add_u32 s15, s15, s14
s_add_u32 s14, s14, s25
s_and_b32 s27, s40, 1
s_lshl_b32 s27, s27, 1
s_lshr_b32 s16, s41, 4
s_add_u32 s27, s27, s16
s_mul_i32 s30, s27, 108
s_add_u32 s30, s30, s29
s_lshl_b32 s30, s30, 7
s_add_u32 s30, s30, {FW}
v_min_u32 v{WFA}, 26, v4
v_lshl_add_u32 v{WFA}, v{WFA}, 9, s30
v_mad_u32_u24 v{WFA}, v3, v16, v{WFA}
s_and_b32 s24, s41, 15
s_mul_i32 s24, s24, 27
s_lshr_b32 s24, s24, 4
s_mul_i32 s24, s24, {P['frot']}
s_add_u32 s20, s17, {HF}
s_mul_i32 s23, s29, 20480
s_mul_i32 s28, s27, 5120
s_add_u32 s23, s23, s28
s_add_u32 s23, s23, {W2F}
s_add_u32 s22, s20, {27*4096}
s_lshl_b32 s16, s24, 12
s_add_u32 s16, s16, s20
s_mul_i32 s26, s24, 81920
s_add_u32 s26, s26, s23
s_mul_i32 s30, s14, {108*1024}
s_mul_i32 s31, s15, {108*1024}
v_add_u32 v8, s30, v5
v_add_u32 v9, s31, v5
s_lshl_b32 s30, s25, 12
s_lshl_b32 s31, s25, 11
s_add_u32 s31, s31, 1024
v_add_u32 v10, s30, v5
v_add_u32 v11, s31, v5
v_add_u32 v12, 2048, v5
v_mov_b32 v7, s29
v_lshlrev_b32 v7, 2, v7
v_and_b32 v1, 7, v2
v_lshlrev_b32 v1, 2, v1
v_and_b32 v15, 12, v1
v_mul_u32_u24 v{XA}, 1280, v4
v_lshl_add_u32 v{XA}, v3, 3, v{XA}
s_mul_i32 s52, s27, 320
s_lshl_b32 s53, s29, 4
s_add_u32 s53, s53, s52
s_mul_i32 s54, s14, 40960
s_mul_i32 s55, s15, 40960
s_add_u32 s54, s54, s53
s_add_u32 s55, s55, s53
s_lshl_b32 s57, s25, 8
s_lshl_b32 s58, s25, 7
s_add_u32 s52, s52, s57
s_sub_u32 s59, 64, s58
s_add_u32 s58, s58, 64
s_add_u32 s30, s55, s57
s_add_u32 s31, s55, s58
s_add_u32 s32, s54, s57
s_add_u32 s33, s54, s58
s_add_u32 s34, s54, 128
s_sub_u32 s54, s29, 1
s_add_u32 s53, s59, 204800
s_mul_i32 s53, s53, s54
s_add_u32 s52, s52, s53
s_mul_i32 s53, s54, 40960
s_add_u32 s53, s53, {WO}
v_lshrrev_b32 v16, 2, v2
v_and_b32 v17, 3, v2
v_mul_u32_u24 v16, 1280, v16
v_lshl_add_u32 v{WA}, v17, 4, v16
s_mul_i32 s54, s29, 5120
s_add_u32 s54, s54, {PR}
v_add_u32 v{FX}, s54, v5
s_sub_u32 s60, s59, 184320
s_lshl_b32 s61, s59, 1
s_sub_u32 s61, 20480, s61
s_cmp_eq_u32 s29, 3
s_cselect_b32 s54, 9, 0
s_cselect_b32 s55, 10, 0
s_cselect_b32 s63, 11, 0
s_cselect_b32 s3, 12, 0
s_cselect_b32 s62, 13, 0
s_cselect_b32 s57, s61, s60
s_cmp_eq_u32 s29, 2
s_cselect_b32 s62, 9, s62
s_cselect_b32 s58, s61, s60
s_cmp_eq_u32 s29, 1
s_cselect_b32 s59, s61, s60
v_mov_b32 v6, {RLY}
s_mov_b32 s10, {P['spin']}
s_mov_b32 s8, 0
""")
    MK("lS")
    A("s_waitcnt lgkmcnt(0)")
    if P["w2g"] < G0:
        for c in range(4): A(f"buffer_store_dwordx4 {vr(88+4*c,4)}, v5, s[64:67], s69 offen offset:{1024*c}{ST}")
    A(f"s_barrier\nds_read_b32 v0, v6 offset:4")
    MK("lB")
    C1 = P["c1"]
    def flag(v): A(f"v_mov_b32 v0, {v}\nds_write_b32 v7, v0")
    A("s_waitcnt lgkmcnt(0)\nv_readfirstlane_b32 s8, v0")
    if P["ldel"]: A(f"s_sleep {P['ldel']}")
    def gwait(G):
        m = (3 << (2 * G)) & 0xffffffff
        if P["gsh"]:
            A(f"""
{E}_gw{G}:
s_and_b32 s9, s8, {hex(m)}
s_cmp_eq_u32 s9, {hex(m)}
s_cbranch_scc1 {E}_gg{G}
{"s_lshl_b32 s9, 0x11111111, s29" if P["gsh"] == 1 else "s_mov_b32 s9, -1"}
s_andn2_b32 s9, s9, s8
s_cbranch_scc0 {E}_gr{G}
s_mov_b32 exec_lo, s9
s_mov_b32 exec_hi, s9
buffer_load_dwordx4 v[68:71], v{PA}, s[44:47], 0 offen sc1
s_waitcnt vmcnt(0)
v_min_u32 v69, v69, v70
v_cmp_ne_u32 vcc, 0, v69
s_mov_b64 exec, -1
s_and_b32 s9, vcc_lo, vcc_hi
v_mov_b32 v68, s9
ds_or_b32 v6, v68 offset:4
{E}_gr{G}:
{"s_sleep " + str(P["gsl"]) if P["gsl"] else ""}
ds_read_b32 v68, v6 offset:4
s_waitcnt lgkmcnt(0)
v_readfirstlane_b32 s8, v68
s_sub_u32 s10, s10, 1
s_cselect_b32 s8, -1, s8
s_cselect_b32 s10, 0, s10
s_branch {E}_gw{G}
{E}_gg{G}:
""")
            return
        A(f"""
{E}_gw{G}:
s_and_b32 s9, s8, {hex(m)}
s_cmp_eq_u32 s9, {hex(m)}
s_cbranch_scc1 {E}_gg{G}
buffer_load_dwordx4 v[68:71], v{PA}, s[44:47], 0 offen sc1
s_waitcnt vmcnt(0)
v_min_u32 v69, v69, v70
v_cmp_ne_u32 s[8:9], 0, v69
s_and_b32 s8, s8, s9
s_sub_u32 s10, s10, 1
s_cselect_b32 s8, -1, s8
s_cselect_b32 s10, 0, s10
s_branch {E}_gw{G}
{E}_gg{G}:
""")
    W2G = P["w2g"]; W2FL = P["w2f"] if P["w2f"] is not None else 15
    GQ = VQ_()
    w2flag = "v_mov_b32 v0, 1\ns_mov_b64 exec, 1\nbuffer_store_dword v0, off, s[64:67], s68 sc1\ns_mov_b64 exec, -1"
    if W2G < G0:
        GQ.q = ["w2"] * 4
    for G in range(G0, 16):
        gwait(G); dma(G, 17, 18, "s19"); GQ.q += [G] * 4
        if G < 15: A(f"s_add_u32 s19, s19, {4*TS}")
        if G == W2G:
            for c in range(4): GQ.op("w2", f"buffer_store_dwordx4 {vr(88+4*c,4)}, v5, s[64:67], s69 offen offset:{1024*c}{ST}")
        if G == 2 + P["c0"]: GQ.need(2); flag(F_G1)
        if G == 5 + C1: GQ.need(5); flag(F_G5); MK("l4")
        if G == W2FL: GQ.need("w2"); GQ.op("wf", w2flag)
        if P["gthr"] and G >= P["gthr"][0] and G < 15: GQ.need(G - P["gthr"][1])
    assert W2FL >= W2G
    if P["wot"]:
        A(f"""
s_lshl_b32 s8, s41, 2
s_add_u32 s8, s8, s29
s_lshl_b32 s8, s8, 6
v_add_u32 v68, s8, v2
v_min_u32 v68, 6399, v68
v_mul_u32_u24 v69, 6554, v68
v_lshrrev_b32 v69, 16, v69
v_mul_u32_u24 v70, {1280 - 640}, v69
v_lshl_add_u32 v68, v68, 6, v70
s_and_b32 s8, s40, 1
s_mul_i32 s8, s8, 640
s_mov_b32 s48, s6
s_mov_b32 s49, s7
s_mov_b32 s50, 819200
s_mov_b32 s51, 0x20000
""")
        GQ.op("wot", "buffer_load_dword v70, v68, s[48:51], s8 offen")
    NAFT = len(GQ.q) - 1 - max(i for i, t in enumerate(GQ.q) if t == 15)
    if P["hgate"]:
        A(f"s_waitcnt vmcnt({NAFT})"); flag(F_ALL); MK("lF")
        A(f"""
{E}_hq:
ds_read_b32 v0, v1 offset:64
s_waitcnt lgkmcnt(0)
v_cmp_gt_u32 vcc, {P['hgate']}, v0
s_cbranch_vccz {E}_hw
s_sleep 4
s_branch {E}_hq
""")
    A(f"""
{E}_hw:
buffer_load_dword v68, v{HA}, s[44:47], 0 offen sc1
buffer_load_dword v69, v{WFA}, s[44:47], 0 offen sc1
s_waitcnt vmcnt(2)
""")
    flag(F_ALL)
    A(f"""
s_waitcnt vmcnt(0)
v_min_u32 v68, v68, v69
v_cmp_eq_u32 s[8:9], 0, v68
s_or_b32 s8, s8, s9
s_and_b32 s8, s8, 0x7ffffff
s_cbranch_scc0 {E}_hg
s_sub_u32 s10, s10, 1
s_cselect_b32 s10, 0, s10
s_cbranch_scc1 {E}_hg
s_sleep {P['hsl']}
s_branch {E}_hw
{E}_hg:
""")
    MK("lH")
    ACC = 88
    class VQ_:
        def __init__(s): s.q = []
        def op(s, tag, txt): A(txt); s.q.append(tag)
        def need(s, *tags):
            idx = max([i for i, t in enumerate(s.q) if t in tags], default=-1)
            if idx >= 0:
                A(f"s_waitcnt vmcnt({len(s.q) - 1 - idx})"); s.q = s.q[idx + 1:]
    VQ = VQ_()
    addr = {0: (9, 16), 1: (10, 26), 2: (11, 26), 3: (12, 26), 4: (8, 16)}
    def fl(i, j):
        b = 16 + 20 * (i % 3)
        VQ.op((i, j), f"buffer_load_dwordx4 {vr(b+4*j,4)}, v{addr[j][0]}, s[44:47], s{addr[j][1]} offen{P['fsc']}")
        if j == 4: A("s_add_u32 s16, s16, 4096\ns_add_u32 s26, s26, 81920\ns_cmp_eq_u32 s16, s22\ns_cselect_b32 s16, s20, s16\ns_cselect_b32 s26, s23, s26")
    for i in range(3):
        for j in range(5): fl(i, j)
    A(f"s_setprio {P['prio_ffn']}")
    blk = [(0, 1), (0, 2), (4, 1), (4, 2), (4, 3)]
    after = {1: [0], 2: [1], 3: [2], 4: [3, 4]}
    for i in range(27):
        b = 16 + 20 * (i % 3)
        for t, (hj, wj) in enumerate(blk):
            VQ.need((i, hj), (i, wj))
            c = "0" if i == 0 else vr(ACC + 16 * t, 16)
            A(f"v_mfma_f32_32x32x16_bf16 {vr(ACC+16*t,16)}, {vr(b+4*wj,4)}, {vr(b+4*hj,4)}, {c}")
            if i + 3 < 27:
                for j in after.get(t, []): fl(i + 3, j)
    RED = 2560
    MK("l2")
    if P["otl"]: A("s_load_dwordx2 s[20:21], s[0:1], 48\ns_mov_b32 s22, 2621440\ns_mov_b32 s23, 0x20000")
    A(f"s_setprio {P['prio_red']}")
    for q in range(4):
        A(f"s_sub_u32 s16, s29, {q+1}\ns_and_b32 s16, s16, 3\ns_mul_i32 s16, s16, 5120\ns_add_u32 s16, s16, {RED + q*15360}\nv_add_u32 v{8+q}, s16, v5")
    A(f"""
s_mul_i32 s17, s29, 15360
s_add_u32 s17, s17, {RED}
v_add_u32 v12, s17, v5
s_mov_b32 s48, s4
s_mov_b32 s49, s5
s_mov_b32 s50, 2621440
s_mov_b32 s51, 0x20000
s_mov_b32 s36, 0xffff0000
""")
    npw = [0]
    def pwait(reg, off, thr, sl=2):
        k = npw[0]; npw[0] += 1
        A(f"""
{E}_pw{k}:
ds_read_b32 v0, v{reg} offset:{off}
s_waitcnt lgkmcnt(0)
v_cmp_gt_u32 vcc, {thr}, v0
s_cbranch_vccz {E}_pwd{k}
s_sleep {sl}
s_branch {E}_pw{k}
{E}_pwd{k}:
""")
    pwait(1, 64, 2 * P["T1"], 4)
    for q in range(4):
        A(f"s_cmp_eq_u32 s29, {q}\ns_cbranch_scc1 {E}_nx{q}")
        for t in range(5): A(f"ds_write_b128 v{8+q}, {vr(ACC+16*t+4*q,4)} offset:{t*1024}")
        A(f"{E}_nx{q}:")
    flag(F_RW)
    pwait(15, 0, F_RW, 1)
    for t in range(5):
        for jj in range(3):
            A(f"ds_read_b128 {vr(16+12*t+4*jj,4)}, v12 offset:{jj * 5120 + t * 1024}")
    def perq(tag, body):
        for q in range(4):
            if q < 3: A(f"s_cmp_lg_u32 s29, {q}\ns_cbranch_scc1 {E}_{tag}{q+1}")
            body(q)
            if q < 3: A(f"s_branch {E}_{tag}d\n{E}_{tag}{q+1}:")
        A(f"{E}_{tag}d:")
    xr = lambda q, t: ACC + 16 * t + 4 * ((q + 1) & 3)
    perq("x", lambda q: [A(f"buffer_load_dwordx2 {vr(xr(q,t),2)}, v{XA}, s[48:51], s{30+t} offen") for t in range(5)])
    A("s_waitcnt lgkmcnt(0)"); flag(F_RR)
    MK("l7")
    A(f"""
s_setprio 3
s_mov_b32 s48, s6
s_mov_b32 s49, s7
s_mov_b32 s50, 819200
""")
    def fin(q):
        for t in range(5):
            b = 16 + 12 * t; o = ACC + 16 * t + 4 * q; x = xr(q, t)
            for k in range(4): A(f"v_add_f32 v{b+k}, v{b+k}, v{o+k}")
            for k in range(2): A(f"v_lshlrev_b32 v{o+2*k}, 16, v{x+k}\nv_and_b32 v{o+2*k+1}, s36, v{x+k}")
            for k in range(4): A(f"v_add_f32 v{b+4+k}, v{b+4+k}, v{b+8+k}")
            for k in range(4): A(f"v_add3_f32 v{b+k}, v{b+k}, v{b+4+k}, v{o+k}" if False else f"v_add_f32 v{b+k}, v{b+k}, v{b+4+k}")
            for k in range(4): A(f"v_add_f32 v{b+k}, v{b+k}, v{o+k}")
    def adds(n):
        A(f"s_setprio {P['prio_add']}\ns_waitcnt vmcnt({n})"); perq("fin", fin); A("s_setprio 3")
    A(f"s_cmp_eq_u32 s29, 0\ns_cbranch_scc1 {E}_nd")
    pwait(15, 0, F_RR, 1)
    for m in range(40):
        if m in (0, 9, 19, 29, 39): pwait(1, 64, {0: "s54", 9: "s55", 19: "s63", 29: "s3", 39: "s62"}[m], P['wsl'])
        A(f"s_add_u32 m0, s53, {m*1024}\nbuffer_load_dwordx4 v{WA}, s[48:51], s52 offen lds")
        if m % 10 < 9: A("s_add_u32 s52, s52, 20480")
        elif m < 39: A(f"s_add_u32 s52, s52, s{57 + m // 10}")
    MK("l8")
    A(f"s_waitcnt vmcnt(0)\n{E}_nd:"); flag(F_WO)
    MK("l9")
    if P["otl"]:
        A(f"buffer_load_dword v81, v{XA}, s[20:23], s30 offen\nbuffer_load_dword v82, v{XA}, s[20:23], s32 offen")
    A(f"s_cmp_eq_u32 s29, 0\ns_cbranch_scc1 {E}_pl")
    adds(0)
    def fxw():
        for t in range(5): A(f"ds_write_b128 v{FX}, {vr(16+12*t,4)} offset:{t*1024}")
        flag(F_FX)
    pwait(1, 64, 16, P['rsl'])
    fxw()
    A(f"s_waitcnt lgkmcnt(0)\ns_endpgm\n{E}_pl:")
    PV = 80
    A(f"s_waitcnt vmcnt(0)\nv_mov_b32 v{PV}, 0\nv_mov_b32 v6, 0\ns_mov_b32 s57, {P['spin']}\ns_mov_b32 s58, 0\ns_mov_b32 s59, 0")
    PADP = f"s_mov_b32 s59, {P['pper']}"
    if P["padp"]:
        A("s_mov_b64 s[60:61], 0")
        PADP = f"s_bcnt0_i32_b64 s59, s[60:61]\ns_lshr_b32 s59, s59, {P['padp'][0]}\ns_max_u32 s59, s59, {P['padp'][1]}\ns_min_u32 s59, s59, {P['pper']}"
    if P["pfin"]: A(f"s_setprio {P['prio_add']}"); fin(0); A("s_setprio 3")
    if P["pgate"]: pwait(1, 64, P["pgate"], P['wsl'])
    A(f"""
{E}_rp:
s_sub_u32 s59, s59, 1
s_cbranch_scc0 {E}_np
{PADP}
s_waitcnt vmcnt({P['pd'] - 1})
{"v_cmp_eq_u32 vcc, 0, v" + str(PV) + chr(10) + "s_mov_b64 exec, vcc" if P["pmask"] else ""}
buffer_load_dword v{PV}, v{FP}, s[44:47], s56 offen{P['psc']}
{"s_mov_b64 exec, -1" if P["pmask"] else ""}
{E}_np:
ds_read_b32 v0, v1 offset:64
v_cmp_ne_u32 s[60:61], 0, v{PV}
s_sub_u32 s57, s57, 1
s_cselect_b64 s[60:61], -1, s[60:61]
s_cselect_b32 s57, 0, s57
v_mov_b32 v8, s60
v_mov_b32 v9, s61
ds_write_b64 v6, v[8:9] offset:{MSK}
s_cmp_lg_u32 s58, 0
s_cbranch_scc1 {E}_rr
s_waitcnt lgkmcnt(1)
v_cmp_gt_u32 vcc, 16, v0
s_cbranch_vccnz {E}_rs
""")
    if not P["pfin"]: fin(0)
    fxw()
    A(f"""
s_mov_b32 s58, 1
{E}_rr:
s_cmp_eq_u64 s[60:61], -1
s_cbranch_scc1 {E}_go
{E}_rs:
s_sleep {P['rsl']}
s_branch {E}_rp
{E}_go:
s_waitcnt vmcnt(0) lgkmcnt(0)
{"s_sleep " + str(P["wb2d"]) + chr(10) + "buffer_wbl2 sc1" if P["wb2"] & 2 else ""}
{E}_end:
s_endpgm
""")
    A.end(name, 168, 72)
```

```python
import gen
from gen import *
gen.RT[0] = 0
M = {"c0":0, "cA":1, "lA":1, "cS":2, "cF":3, "cQ":4, "cB":5, "lB":5, "c1":6, "l4":6, "hA":7, "lF":7, "I1":8, "lH":8, "c3":9, "l9":10, "c8":11, "c6":13}
B = dict(spin=3000, marks=M)
V = dict(a=dict(), b=dict(w2g=2, w2f=5), c=dict(w2g=5, w2f=9), d=dict(w2t=None, pf2=7), e=dict(krot=(1, 5)), f=dict(hcb=4, hst=(0, 0, 0, 0, 0, 0, 1, 1)), g=dict(pgw=0), h=dict(w2t=5), i=dict(qdel=4))
for k, v in V.items(): build5(f"t_{k}.s", P=dict(B, **v), prof=True, mod=kh)
gen.RT[0] = None
for k, v in V.items():
    build5(f"u_{k}.s", P=v, mod=kh)
    build5(f"k_{k}.s", P=dict(v, spin=3000), mod=kh)
```

```python
from asmlib import *
from layout import *

NP = 4
DEF = dict(cpf=None, kpar=0, kbit=0, krot=(1, 4), st=" sc1", lprio=3, gtab=None, cntp=8, eprio=3,
           offs=96.0, T1=4, prio_ffn=0, prio_red=1, prio_add=0, c1=3, prios=(3, 2, 1, 0), rot=0, frot=1,
           order="M1 E8 E9 C0 C1 E10 E11 M2 K C2 C3 E12 E13 E14 E15 M3 C4 C5 N0 N1 C6 C7 N2 N3 M4 V N4 N5 N6 N7", npre=8,
           osc=" sc1", lsc=" sc1", psl=2, spin=300000, rsl=1, wsl=8, G0=2, hint=(7, 4), bq=2, pgate=13, rtsl=0, pd=1, pper=12,
           psc=' sc1', hsc=' sc1', qsl=1, hst=(0, 0, 1, 1, 2, 2, 3, 3), ofp=5, hfl=(1, 1), w2g=-1, marks=None, hsl=2, noh=0, noof=0, now2=0, dsc=' sc1', fsc=' sc1', qdel=0, hgate=2,
           n=5, init=6, lord=None, ss=None, qtry=99, cntl=32, qprio=1, hprio=1, pw=3, sched=((0, 1), (2, 3), (4, 5), ()), pk=0,
           pf=None, pf2=None, dsl=1, qsp=0, rws=2, nold=0, nostat=0, D=2, bj=0, fj=0, schb=((0, 1), (2, 3), (4, 5), ()), csx=(38, 1),
           c0=3, xb=81920, wb=16384, ub=16384, show=0, sprio=(None, None), prp=(0, 1, 2), pgw=1, w2t=3, w2at=None, hpre=0, ofi=3, hpk=1, spf=(6, 4), hcb=8, hskip=0, ldel=6, gthr=None, hs1=None, w2f=2, wot=1, bal=0, balp=(1, 3), balo=0, hnb=(2, 4, 6), dbghw=0, yl=None, tla=0, tlb=0, tlm=3, kvd=None, kvp=0, hcw=0, wb2=0, wb2d=0, usc='', otl=0, rotq=0, pfin=0, hl0=0, pmask=0, padp=None, mbx=0, dyn=0, dsl2=2, dper=5, lsc0=(' sc1', ' sc1'))
WO = 1024; PR = 143360; MSK = 96; SENT = 128; FREE = 123904
LAND = 160; DONE = 176; PUB = 192; CSF = 208; RLY = 224; BAL = 240
F_G1, F_G5, F_ALL, F_RW, F_RR, F_WO, F_FX = 1, 2, 3, 4, 5, 6, 7
LF = 2
HD = [0, 0, 0, 1, 2, 2, 2, 3, 4, 4, 4, 4, 5, 5, 5, 5]
H1 = (2, 3, 6, 7, 11)

def gen_f(A, name, P=None):
    P = dict(DEF, **(P or {}))
    XS = 1024; RB = 1536; CSQ = 2048
    N = P["n"]; TEND = 19 - N
    tx = lambda k: k if k < N else 10 + k - N
    last = lambda it: it[1] if it[0] == "w" else tx(it[1])
    lord = P["lord"]
    if lord is None:
        lord = [(kd, k) for k in range(N) for kd in "xwu"] + [(kd, k) for k in range(N, 10) for kd in "xw"] + [("u", k) for k in range(N, 10)]
        if N == 5: lord.remove(("u", 5)); lord.insert(lord.index(("x", 9)), ("u", 5))
    else: lord = [(t[0], int(t[1:])) for t in lord.split()]
    assert sorted(lord) == sorted((kd, k) for kd in "xwu" for k in range(10))
    SLOT = {}; EV = {}; avail = list(range(1, 10)); todo = list(lord); occ = {}
    for ev in range(-2, TEND + 1):
        avail += [SLOT[it] for it in SLOT if last(it) == ev]
        while todo and avail and not (ev == -2 and len(SLOT) >= P["init"]):
            it = todo.pop(0)
            late = last(it) >= 10
            win = {"x": P["xb"], "w": P["wb"], "u": P["ub"]}[it[0]] // 16384
            sl = min(avail, key=lambda q: (late and q == 1, not win <= q < win + 4, -q if late else q))
            avail.remove(sl); SLOT[it] = sl; EV[it] = ev; occ[sl] = last(it)
    assert not todo
    SS = P["ss"] or [[t] for t in range(N - 1)] + [[N - 1, N]] + [[t + 1] for t in range(N, 9)] + [[]]
    assert sorted(sum(SS, [])) == list(range(10)) and not SS[9]
    for t in range(10):
        for k in SS[t]: assert EV[("x", k)] <= t - 2 and t <= last(("x", k)), (t, k)
        for it in [("x", t), ("w", t)] + ([("u", t)] if t < N else []): assert EV[it] <= t - 2, it
    assert EV[("u", N)] <= 8
    S1LAST = max(occ[1], 10)
    dead = sorted(range(2, 10), key=lambda q: occ[q])
    W2S, CSS = dead[0], dead[1]
    assert occ[CSS] <= TEND - 3
    if P["show"]: print({ev: [f"{k}{i}@{SLOT[(k, i)]}" for (k, i) in lord if EV[(k, i)] == ev] for ev in sorted(set(EV.values()))}, occ, W2S, CSS)
    ST = P["st"]; SC = " sc1"
    G0 = P["G0"]
    A.begin(name)
    E = "L_f"
    def MK(tag):
        if P["marks"] and tag in P["marks"]: A(f"; MARK {P['marks'][tag]}")
    hd = sum(v << (4 * i) for i, v in enumerate(HD))
    GT = ""
    if P["gtab"]:
        t = sum(v << (4 * i) for i, v in enumerate(P["gtab"]))
        GT = f"s_lshl_b32 s15, s15, 2\ns_mov_b32 s16, {hex(t & 0xffffffff)}\ns_mov_b32 s17, {hex(t >> 32)}\ns_lshr_b64 s[16:17], s[16:17], s15\ns_and_b32 s15, s16, 15"
    CP = ""
    if P["cpf"]:
        n0, n1 = P["cpf"]
        CP = f"""s_getpc_b64 s[42:43]
{E}_pc:
s_lshr_b32 s3, s2, 3
s_mul_i32 s3, s3, {n1}
v_mov_b32 v3, s3
v_cmp_gt_u32 vcc, {n0}, v0
v_cndmask_b32 v3, v3, 0, vcc
v_add_lshl_u32 v3, v3, v0, 7
v_min_u32 v3, {E}_end-{E}_pc, v3
v_mov_b32 v5, s43
v_add_co_u32 v4, vcc, s42, v3
v_addc_co_u32 v5, vcc, 0, v5, vcc
v_cmp_gt_u32 vcc, {n0 + n1}, v0
s_and_b64 exec, exec, vcc
s_cbranch_execz {E}_np0
global_load_dword v167, v[4:5], off
{E}_np0:
s_mov_b64 exec, -1"""
    COMMON = f"""
s_and_b32 s14, s40, 1
s_lshl_b32 s14, s14, 3
s_and_b32 s15, s41, 7
s_add_u32 s14, s14, s15
s_lshr_b32 s15, s40, 1
s_lshl_b32 s15, s15, 2
s_lshr_b32 s16, s41, 3
s_add_u32 s15, s15, s16
{GT}
s_lshl_b32 s17, s15, 2
s_mov_b32 s18, {hex(hd & 0xffffffff)}
s_mov_b32 s19, {hex(hd >> 32)}
s_lshr_b64 s[18:19], s[18:19], s17
s_and_b32 s18, s18, 15
s_lshl_b32 s17, s15, 1
s_sub_u32 s19, s17, s18
s_mov_b32 s18, {sum(1 << g for g in H1)}
s_bitcmp1_b32 s18, s15
s_cselect_b32 s18, 1, 2
s_mov_b32 s46, {WS_BYTES}
s_mov_b32 s47, 0x20000
"""
    A(f"""
s_cmp_ge_u32 s2, 256
s_cbranch_scc1 {E}_end
{CP}
v_lshrrev_b32 v1, 6, v0
s_load_dwordx2 s[12:13], s[0:1], 64
v_readfirstlane_b32 s29, v1
v_and_b32 v2, 63, v0
s_and_b32 s40, s2, 7
s_lshr_b32 s41, s2, 3
s_cmp_lt_u32 s29, 8
s_cbranch_scc1 {E}_comp
s_load_dwordx4 s[4:7], s[0:1], 0
s_load_dwordx4 s[8:11], s[0:1], 32
""")
    A(COMMON)
    if P["dbghw"]: A("s_getreg_b32 s79, hwreg(HW_REG_HW_ID)")
    ra, rb = P["krot"]
    A(f"""
s_setprio {P['lprio']}
s_sub_u32 s29, s29, 8
s_mov_b32 s22, 2621440
s_mov_b32 s23, 0x20000
s_mov_b32 s27, 0x20000
s_mov_b32 s50, 2211840
s_mov_b32 s51, 0x20000
s_cmp_lt_u32 s15, 15
s_cselect_b32 s26, 2457600, 0
v_lshrrev_b32 v3, 3, v2
s_lshl_b32 s30, s29, 5
s_lshl_b32 s31, s14, 7
s_add_u32 s30, s30, s31
v_add_u32 v3, s30, v3
v_lshrrev_b32 v4, 4, v2
v_and_b32 v5, 7, v2
v_xor_b32 v6, v5, v4
v_xor_b32 v7, 4, v6
s_movk_i32 s32, 1280
v_mul_lo_u32 v3, v3, s32
v_lshl_add_u32 v10, v6, 4, v3
v_lshl_add_u32 v11, v7, 4, v3
v_add_u32 v11, 10240, v11
v_and_b32 v5, 15, v2
v_lshlrev_b32 v6, 2, v4
v_xor_b32 v5, v5, v6
s_lshl_b32 s30, s29, 4
v_add_u32 v4, s30, v4
v_mul_u32_u24 v6, 3840, v4
v_mul_u32_u24 v7, 3456, v4
s_lshl_b32 s31, s17, 7
s_lshl_b32 s33, s19, 7
v_lshl_add_u32 v6, v5, 4, v6
v_lshl_add_u32 v7, v5, 4, v7
v_add_u32 v12, s31, v6
v_add_u32 v44, s33, v7
s_lshl_b32 s33, s18, 3
v_mov_b32 v8, 0x7fffffff
v_cmp_gt_u32 vcc, s33, v5
s_lshr_b32 s35, s40, 1
s_mul_i32 s35, s35, {ra}
s_and_b32 s36, s40, 1
s_mul_i32 s36, s36, {rb}
s_add_u32 s35, s35, s36
s_bfe_u32 s36, s41, {0x10000 + P['kbit']}
s_mul_i32 s36, s36, {P['kpar']}
s_add_u32 s35, s35, s36
s_cmp_ge_u32 s35, 10
s_cselect_b32 s36, 10, 0
s_sub_u32 s35, s35, s36
""")
    for j in range(1, 4): A(f"v_add_u32 v{12+j}, {j*4*3840}, v12\nv_add_u32 v{44+j}, {j*4*3456}, v44")
    for j in range(4): A(f"v_cndmask_b32 v{44+j}, v8, v{44+j}, vcc")
    A(f"""
s_mul_i32 s36, s35, {64*3840}
s_mul_i32 s39, s35, {64*3456}
s_lshl_b32 s35, s35, 7
s_lshl_b32 s37, s29, 12
{"; MARK " + str(P["marks"]["lJ"]) if P["marks"] and "lJ" in P["marks"] else ""}
s_waitcnt lgkmcnt(0)
{"; MARK " + str(P["marks"]["lK"]) if P["marks"] and "lK" in P["marks"] else ""}
s_mov_b32 s20, s4
s_mov_b32 s21, s5
s_mov_b32 s24, s6
s_mov_b32 s25, s7
s_mov_b32 s48, s8
s_mov_b32 s49, s9
""")
    if P["nold"]: A("s_mov_b32 s22, 0\ns_mov_b32 s26, 0\ns_mov_b32 s50, 0")
    class VQ_:
        def __init__(s): s.q = []
        def op(s, tag, txt): A(txt); s.q.append(tag)
        def need(s, *tags):
            idx = max([i for i, t in enumerate(s.q) if t in tags], default=-1)
            if idx >= 0:
                A(f"s_waitcnt vmcnt({len(s.q) - 1 - idx})"); s.q = s.q[idx + 1:]
    LQ = VQ_()
    def ld(kind, st):
        base = SLOT[(kind, st)] * 16384
        o = []
        for j in range(4):
            if kind == "x": t = f"buffer_load_dwordx4 v{10+(j&1)}, s[20:23], s{35 if j < 2 else 30} offen lds"
            elif kind == "w": t = f"buffer_load_dwordx4 v{12+j}, s[24:27], s36 offen lds"
            else: t = f"buffer_load_dwordx4 v{44+j}, s[48:51], s39 offen lds"
            t = f"s_add_u32 m0, s37, {base + j*1024}\n" + t
            if kind == "x" and j == 0: t = "s_add_u32 s30, s35, 20480\n" + t
            if j == 3:
                r, d = {"x": (35, 128), "w": (36, 64*3840), "u": (39, 64*3456)}[kind]
                t += f"\ns_add_u32 s{r}, s{r}, {d}\ns_cmp_eq_u32 s{r}, {10*d}\ns_cselect_b32 s{r}, 0, s{r}"
            o.append(((kind, st), t))
        return o
    def issue_at(f, fill=(), sp=None):
        ps = sum([ld(*l) for l in lord if EV[l] == f], [])
        fill = list(fill); nf = max(len(ps) - 1, 1); per = (len(fill) + nf - 1) // nf
        if sp is not None: per = 0
        for i, (tag, t) in enumerate(ps):
            LQ.op(tag, t)
            if i >= 1 or len(ps) == 1:
                for o in fill[:per]: A(o)
                fill = fill[per:]
        if sp is not None and fill: fill = [f"s_setprio {sp}"] + fill + [f"s_setprio {P['lprio']}"]
        for o in fill: A(o)
    issue_at(-2)
    MK("lI")
    A(f"""
s_load_dwordx2 s[6:7], s[0:1], 16
v_mov_b32 v1, 0
v_lshrrev_b32 v0, 2, v2
v_cmp_eq_u32 vcc, {DONE // 16}, v0
v_cndmask_b32 v1, v1, 12, vcc
v_mov_b32 v0, 0x100
v_cmp_eq_u32 vcc, {RLY // 4}, v2
v_cndmask_b32 v1, v1, v0, vcc
v_lshlrev_b32 v7, 2, v2
ds_write_b32 v7, v1
v_and_b32 v1, 3, v2
v_lshlrev_b32 v1, 2, v1
s_lshl_b32 s30, s29, 2
v_mov_b32 v7, s30
""")
    A(f"""
s_mov_b32 s44, s12
s_mov_b32 s45, s13
s_mov_b32 s52, s10
s_mov_b32 s53, s11
s_mov_b32 s55, 0x20000
s_lshl_b32 s57, s29, 8
s_add_u32 s58, s57, s2
s_min_u32 s57, s58, 539
s_mul_i32 s59, s57, 13108
s_lshr_b32 s59, s59, 16
s_mul_i32 s60, s59, 5
s_sub_u32 s60, s57, s60
s_mul_i32 s61, s59, 20480
s_lshl_b32 s62, s60, 8
s_add_u32 s62, s62, s61
s_add_u32 s63, s62, 5120
v_lshrrev_b32 v3, 5, v2
v_and_b32 v4, 31, v2
v_mul_u32_u24 v5, 10240, v3
v_lshl_add_u32 v98, v4, 3, v5
s_cmp_ge_u32 s58, 540
s_cselect_b32 s54, 0, 2211840
s_mov_b32 s64, s12
s_mov_b32 s65, s13
s_mov_b32 s67, 0x20000
s_cselect_b32 s66, 0, {WS_BYTES}
v_lshrrev_b32 v5, 3, v4
v_and_b32 v6, 7, v2
v_lshlrev_b32 v5, 10, v5
v_lshl_add_u32 v5, v6, 6, v5
v_lshl_add_u32 v5, v3, 9, v5
s_add_u32 s34, s37, {W2S * 16384}
v_add_u32 v48, s34, v5
v_lshlrev_b32 v6, 4, v2
v_add_u32 v49, s34, v6
v_add_u32 v50, s37, v6
v_add_u32 v51, 65536, v50
v_add_u32 v52, 131072, v50
s_mov_b32 s56, 0xffff0000
v_and_b32 v53, 3, v2
v_lshrrev_b32 v54, 3, v2
v_lshl_add_u32 v54, v53, 3, v54
s_lshl_b32 s30, s29, 5
v_add_u32 v54, s30, v54
v_lshlrev_b32 v54, 2, v54
s_lshl_b32 s69, s60, 12
s_add_u32 s69, s69, s61
s_add_u32 s69, s69, {W2F}
s_mul_i32 s68, s60, 108
s_add_u32 s68, s68, s59
s_lshl_b32 s68, s68, 7
s_add_u32 s68, s68, {FW}
s_waitcnt lgkmcnt(0)
""")
    W2R = 100
    def w2loads():
        for j in range(8):
            LQ.op("w2", f"buffer_load_dwordx2 {vr(W2R+2*j,2)}, v98, s[52:55], s{62 + (j >> 2)} offen offset:{(j & 3) * 1280}")
    SD, SA, ST_ = 16, 32, 40
    for i in range(8): A(f"v_mov_b32 v{SA+i}, 0")
    def sreads(k, d):
        a = SLOT[("x", k)] * 16384
        return [f"ds_read_b128 {vr(d+4*j,4)}, v{50 + (a >> 16)} offset:{(a & 0xffff) + j*1024}" for j in range(4)]
    def sops(d):
        ops = []
        for i in range(4):
            for jp in range(2):
                for e, j in enumerate((2*jp, 2*jp+1)):
                    x = d + 4*j + i
                    ops += [f"v_lshlrev_b32 v{ST_+2*e}, 16, v{x}", f"v_and_b32 v{ST_+1+2*e}, s56, v{x}"]
                for q in range(2):
                    for e, j in enumerate((2*jp, 2*jp+1)):
                        u = ST_ + 2*e + q
                        ops += [f"v_add_f32 v{SA+2*j}, v{SA+2*j}, v{u}", f"v_fmac_f32 v{SA+1+2*j}, v{u}, v{u}"]
        return ops
    def sfin():
        o = []
        for m in ("quad_perm:[1,0,3,2]", "quad_perm:[2,3,0,1]", "row_half_mirror"):
            for i in range(8): o.append(f"v_add_f32_dpp v{SA+i}, v{SA+i}, v{SA+i} {m} row_mask:0xf bank_mask:0xf")
        for j in range(1, 4):
            o += [f"v_cmp_eq_u32 vcc, {j}, v53", f"v_cndmask_b32 v{SA}, v{SA}, v{SA+2*j}, vcc", f"v_cndmask_b32 v{SA+1}, v{SA+1}, v{SA+1+2*j}, vcc"]
        o += f"""s_mov_b32 s31, 0x3acccccd
s_mov_b32 s32, 0x3727c5ac
v_mul_f32 v{SA}, s31, v{SA}
v_mul_f32 v{SA+2}, v{SA}, v{SA}
v_fma_f32 v{SA+1}, v{SA+1}, s31, -v{SA+2}
v_max_f32 v{SA+1}, 0, v{SA+1}
v_cvt_pk_bf16_f32 v{SA+1}, 0, v{SA+1}
v_add_f32 v{SA+1}, s32, v{SA+1}
v_cvt_pk_bf16_f32 v{SA+1}, 0, v{SA+1}
v_sqrt_f32 v{SA+1}, v{SA+1}
ds_write_b32 v54, v{SA} offset:{XS}
s_nop 0
v_cvt_pk_bf16_f32 v{SA+1}, 0, v{SA+1}
v_rcp_f32 v{SA+1}, v{SA+1}
s_nop 0
ds_write_b32 v54, v{SA+1} offset:{RB}""".split("\n")
        return o
    lastS = max(t for t in range(10) if SS[t])
    def work(t):
        fill = []
        if not P["nostat"]:
            for i, k in enumerate(SS[t]):
                for o in sreads(k, SD if i == 0 else 56 + 16 * (i - 1)): A(o)
            for i, k in enumerate(SS[t]):
                fill += [f"s_waitcnt lgkmcnt({4 * (len(SS[t]) - 1 - i)})"] + sops(SD if i == 0 else 56 + 16 * (i - 1))
        if t == lastS + 1: fill += sfin() + ["s_waitcnt lgkmcnt(0)"]
        issue_at(t - 1, fill, P['sprio'][t >= N])
        if t == P["w2t"]:
            A("v_bfe_u32 v55, v2, 1, 4\nv_mul_u32_u24 v55, 1280, v55\nv_and_b32 v0, 1, v2\nv_lshl_add_u32 v55, v0, 7, v55")
            LQ.op("w2t", "buffer_load_dword v55, v55, s[52:55], s62 offen")
        if t == P["w2at"]: w2loads()
    for st in range(10):
        if st >= 1: work(st - 1)
        MK(f"i{st-1}")
        LQ.need(("x", st), ("w", st), *([("u", st)] if st < N else []), *[("x", k) for k in SS[st]])
        MK(f"a{st-1}")
        A("s_barrier")
        MK(f"s{st-1}")
    work(9)
    LQ.need(("u", N))
    A("s_barrier")
    MK("lA")
    npd = [0]
    def dwait(st):
        k = npd[0]; npd[0] += 1
        A(f"""
{E}_dw{k}:
ds_read_b32 v0, v1 offset:{DONE}
s_waitcnt lgkmcnt(0)
v_cmp_gt_u32 vcc, {st + 3}, v0
s_cbranch_vccz {E}_dx{k}
{"s_sleep " + str(P['dsl']) if P['dsl'] else ""}
s_branch {E}_dw{k}
{E}_dx{k}:
""")
    def land(t):
        LQ.need(("u", t - 10 + N))
        A(f"v_mov_b32 v0, {t}\nds_write_b32 v7, v0 offset:{LAND}")
        MK(f"L{t}")
    lastf = max(EV.values())
    nl = 11
    def lands(ev):
        nonlocal nl
        while nl <= TEND and EV[("u", nl - 10 + N)] <= ev:
            land(nl); nl += 1
    def pubwait():
        A(f"""
{E}_pbw:
ds_read_b32 v0, v1 offset:{PUB}
s_waitcnt lgkmcnt(0)
v_cmp_eq_u32 vcc, 0, v0
s_cbranch_vccz {E}_pbx
s_sleep {P['dsl']}
s_branch {E}_pbw
{E}_pbx:
""")
        MK("lP")
    for ev in range(9, max(lastf, 10) + 1):
        if ev == 10 and P["pgw"]: pubwait()
        if 10 <= ev <= lastf: dwait(ev); MK(f"D{ev}")
        issue_at(ev)
        if ev == max(lastf, 10) and P['w2at'] is None: w2loads()
        lands(ev)
    MK("lL")
    A("s_mov_b32 s30, 0x05040100\ns_mov_b32 s31, 0x07060302")
    LQ.need("w2")
    for c in range(4):
        for k in range(4): A(f"v_perm_b32 v{56+4*c+k}, v{W2R+2+4*k+(c>>1)}, v{W2R+4*k+(c>>1)}, s{30+(c&1)}")
    if occ[W2S] > max(lastf, 9): dwait(occ[W2S])
    for c in range(4): A(f"ds_write_b128 v48, {vr(56+4*c,4)} offset:{16*c}")
    for c in range(4): A(f"ds_read_b128 {vr(88+4*c,4)}, v49 offset:{1024*c}")
    A(f"s_branch {E}_ffn")

    def head_scalars():
        A(f"""
s_lshl_b32 s14, s40, 2
s_lshr_b32 s15, s41, 3
s_add_u32 s14, s14, s15
s_mul_i32 s16, s14, 5
s_add_u32 s16, s16, 1
s_lshr_b32 s16, s16, 1
s_lshl_b32 s16, s16, 9
s_add_u32 s16, s16, {QF}
s_movk_i32 s17, 1024
s_bitcmp1_b32 s14, 0
s_cselect_b32 s17, -504, s17
s_and_b32 s19, s41, 7
s_lshl_b32 s15, s19, 3
s_mul_i32 s19, s19, {8 * TS * P['rot']}
""")
    def poll_addr(dst, t0, t1):
        A(f"""
s_mul_i32 s{t0}, s14, 20
s_add_u32 s{t1}, s{t0}, 19
s_lshr_b32 s{t0}, s{t0}, 6
s_lshr_b32 s{t1}, s{t1}, 6
s_sub_u32 s{t1}, s{t1}, s{t0}
s_lshl_b32 s{t0}, s{t0}, 12
s_add_u32 s{t0}, s{t0}, {FQ}
s_lshl_b32 s{t1}, s{t1}, 12
v_mul_u32_u24 v{dst}, s{t1}, v3
v_lshl_add_u32 v{dst}, v4, 7, v{dst}
v_add_u32 v{dst}, s{t0}, v{dst}
""")
    A(f"{E}_comp:\ns_load_dwordx4 s[64:67], s[0:1], 48")
    if P["dbghw"]: A("s_getreg_b32 s79, hwreg(HW_REG_HW_ID)")
    if P["tla"]:
        A(f"""
s_cmp_ge_u32 s29, 4
s_cbranch_scc1 {E}_nt
s_load_dwordx4 s[4:7], s[0:1], 0
s_load_dwordx4 s[8:11], s[0:1], 32
s_bitcmp1_b32 s29, 1
s_waitcnt lgkmcnt(0)
s_cselect_b64 s[4:5], s[8:9], s[4:5]
s_cselect_b64 s[6:7], s[10:11], s[6:7]
s_bitcmp1_b32 s29, 0
s_cselect_b64 s[4:5], s[6:7], s[4:5]
s_mov_b32 s3, 0x200000
s_cmp_ge_u32 s29, {P["tla"]}
s_cbranch_scc1 {E}_nu
s_load_dword s63, s[4:5], 0
s_load_dword s63, s[4:5], s3
s_branch {E}_nu
{E}_nt:
""")
    if P["spf"]:
        sh, nj = P["spf"]
        lw = 2 if P["tla"] else 3
        if P["tla"]: nj *= 2
        A(f"""
s_getpc_b64 s[42:43]
{E}_pc:
s_lshl_b32 s3, s41, {lw}
s_and_b32 s62, s29, {(1 << lw) - 1}
s_add_u32 s3, s3, s62
s_lshl_b32 s3, s3, {sh}
s_sub_u32 s42, s42, {E}_pc-{name}
s_subb_u32 s43, s43, 0
""")
        for j in range(nj):
            A(f"s_min_u32 s62, s3, {E}_end-{name}\ns_load_dword s63, s[42:43], s62")
            if j < nj - 1: A(f"s_add_u32 s3, s3, {(32 << lw) << sh}")
    if P["tla"]: A(f"{E}_nu:")
    A(COMMON)
    A(f"""
v_lshrrev_b32 v3, 5, v2
v_and_b32 v4, 31, v2
s_and_b32 s52, s29, 1
s_lshr_b32 s53, s29, 1
s_lshl_b32 s30, s52, 1
s_xor_b32 s30, s30, s53
s_mov_b32 s56, 0x3f803f80
s_lshl_b32 s31, s30, 1
v_bfe_u32 v5, v2, 1, 3
v_xor_b32 v5, v5, v3
v_xor_b32 v5, s31, v5
s_lshl_b32 s31, s52, 13
s_add_u32 s31, s31, {P['xb']}
v_lshlrev_b32 v6, 7, v4
v_add_u32 v6, s31, v6
""")
    for pos in range(4):
        A(f"v_xor_b32 v7, {2*pos}, v5\nv_lshl_add_u32 v{16+pos}, v7, 4, v6")
    A(f"""
v_bfe_u32 v5, v2, 2, 2
v_lshl_add_u32 v6, v3, 3, v5
v_lshlrev_b32 v6, 8, v6
v_bfe_u32 v7, v2, 1, 1
v_lshl_add_u32 v6, v7, 3, v6
v_add_u32 v6, {P['wb']}, v6
v_bfe_u32 v7, v2, 4, 1
v_and_b32 v8, 1, v2
v_lshl_add_u32 v7, v7, 1, v8
s_and_b32 s55, s53, 1
s_lshl_b32 s31, s55, 3
v_add_u32 v7, s31, v7
v_lshlrev_b32 v5, 2, v5
v_xor_b32 v7, v7, v5
v_lshl_add_u32 v6, v7, 4, v6
v_xor_b32 v7, 64, v6
""")
    for pos in range(4):
        A(f"s_xor_b32 s31, s30, {pos}\ns_lshl_b32 s31, s31, 12")
        for t in range(2):
            A(f"v_add_u32 v{20+pos*2+t}, s31, v{6+t}")
    A("""
v_and_b32 v5, 15, v2
v_bfe_u32 v6, v2, 4, 1
v_cmp_eq_u32 vcc, v5, v6
v_mov_b32 v5, s56
""")
    for i in range(4): A(f"v_cndmask_b32 v{88+i}, 0, v5, vcc")
    A(f"""
s_lshl_b32 s31, s52, 8
v_lshl_add_u32 v48, v3, 4, s31
s_add_u32 s31, s31, {XS}
v_lshl_add_u32 v9, v4, 2, s31
v_add_u32 v12, {RB - XS}, v9
s_movk_i32 s32, {CSQ}
s_cmp_ge_u32 s29, 4
s_cselect_b32 s32, {CSS * 16384 - 8192}, s32
s_lshl_b32 s33, s29, 11
s_add_u32 s33, s33, s32
v_lshl_add_u32 v7, v2, 4, s33
s_lshl_b32 s33, s53, 12
s_add_u32 s33, s33, s32
v_lshl_add_u32 v8, v3, 11, s33
v_bfe_u32 v5, v2, 4, 1
v_lshl_add_u32 v8, v5, 4, v8
v_bfe_u32 v5, v2, 2, 2
v_lshl_add_u32 v8, v5, 8, v8
v_and_b32 v5, 3, v2
v_lshl_add_u32 v8, v5, 2, v8
v_lshlrev_b32 v5, 4, v2
s_lshl_b32 s31, s15, 3
s_add_u32 s31, s31, s29
s_cmp_eq_u32 s31, {15 * 8}
s_cselect_b32 s42, 1, 0
s_mul_i32 s62, s14, {140 * 128}
s_add_u32 s62, s62, {FL2}
""")
    def kdep():
        A(f"""
s_waitcnt lgkmcnt(0)
s_mov_b32 s44, s12
s_mov_b32 s32, s12
s_mov_b32 s33, s13
s_mov_b32 s45, s13
s_mov_b32 s48, s64
s_mov_b32 s49, s65
s_mov_b32 s64, s66
s_mov_b32 s65, s67
s_mov_b32 s67, 0x20000
s_mov_b32 s66, 256
v_mov_b32 v49, 1
s_cmp_eq_u32 s42, 0
s_cbranch_scc1 {E}_nclr
s_mov_b32 s31, s62
v_mov_b32 v92, 0
v_mov_b32 v93, 0
v_mov_b32 v94, 0
v_mov_b32 v95, 0
""")
        for n in range(17):
            A(f"buffer_store_dwordx4 v[92:95], v5, s[44:47], s31 offen offset:{(n & 3) * 1024} sc1")
            if n & 3 == 3: A("s_add_u32 s31, s31, 4096")
        if P["hl0"]:
            A(f"v_lshlrev_b32 v96, 7, v2\ns_and_b32 s30, s40, 1\ns_lshl_b32 s30, s30, 3\ns_and_b32 s28, s41, 7\ns_add_u32 s30, s30, s28\ns_lshl_b32 s30, s30, 14\ns_add_u32 s30, s30, {FL2 + 0x50000}\nbuffer_store_dword v92, v96, s[44:47], s30 offen sc1\ns_add_u32 s30, s30, 8192\nbuffer_store_dword v92, v96, s[44:47], s30 offen sc1")
        A(f"s_mov_b32 exec_hi, 0\nbuffer_store_dwordx4 v[92:95], v5, s[44:47], s31 offen offset:1024 sc1\ns_mov_b64 exec, -1\n{E}_nclr:")
    if not P["spf"]: kdep()
    A("s_mov_b32 s43, s18\ns_mov_b32 s69, s19")
    KVD = ""
    if P["kvd"]:
        d0, d1, dm = P["kvd"]
        KVD = f"s_sub_u32 s68, s14, 2\ns_cselect_b32 s31, 0, 99\ns_mul_i32 s68, s68, {d1}\ns_add_u32 s68, s68, {d0}\ns_min_u32 s68, s68, {dm}\ns_cmp_lt_u32 s54, 10\ns_cselect_b32 s31, 0, s31\ns_min_u32 s68, s68, s31"
    def kvdelay(tag):
        if P["kvd"]: A(f"{E}_kd{tag}:\ns_sub_u32 s68, s68, 1\ns_cbranch_scc1 {E}_ke{tag}\ns_sleep 4\ns_branch {E}_kd{tag}\n{E}_ke{tag}:")
    A(f"""
s_lshl_b32 s39, s14, 2
s_lshl_b32 s31, s52, 1
s_add_u32 s39, s39, s31
s_lshr_b32 s30, s39, 1
s_mov_b32 s34, 0
s_mov_b32 s35, 0x20000
s_mov_b32 s8, 1.0
s_cmp_ge_u32 s29, 4
s_cbranch_scc1 {E}_ch
s_add_u32 s54, s17, s55
s_cmp_lt_u32 s54, 10
s_cselect_b32 s8, {f32bits(QSCALE)}, s8
s_cselect_b32 s31, 0, 10
s_cselect_b32 s10, 0, 4
s_cmp_ge_u32 s54, 20
s_cselect_b32 s31, 20, s31
s_cselect_b32 s10, 8, s10
s_cselect_b32 s9, 1, 0
s_sub_u32 s31, s54, s31
s_lshl_b32 s6, s31, 12
s_add_u32 s10, s10, s6
s_lshl_b32 s30, s30, 7
s_add_u32 s10, s10, s30
s_add_u32 s10, s10, {FQ}
s_mul_i32 s4, s39, {TS}
s_lshl_b32 s5, s54, 12
s_lshl_b32 s6, s31, 10
s_add_u32 s6, s6, {VOFF}
s_cmp_eq_u32 s9, 1
s_cselect_b32 s5, s6, s5
s_add_u32 s4, s4, s5
s_add_u32 s4, s4, {QF}
s_cmp_eq_u32 s9, 1
s_mov_b32 s5, {TS}
s_cselect_b32 s5, {2*SV}, s5
s_add_u32 s5, s5, s4
s_add_u32 s6, s4, {TS}
s_add_u32 s7, s5, {TS}
s_cmp_ge_u32 s54, 30
s_cselect_b32 s9, 3, s9
{KVD}
s_branch {E}_cj
{E}_ch:
s_add_u32 s54, s19, s55
s_mul_i32 s10, s30, 27
s_add_u32 s10, s10, s54
s_lshl_b32 s10, s10, 7
s_lshl_b32 s31, s54, 2
s_add_u32 s10, s10, {FH}
s_mul_i32 s4, s39, 108
s_add_u32 s4, s4, s31
s_lshl_b32 s4, s4, 10
s_add_u32 s4, s4, {HF}
s_add_u32 s5, s4, {108*1024}
s_mov_b32 s6, 0
s_mov_b32 s7, 0
s_cmp_lt_u32 s55, s18
s_cselect_b32 s9, 2, 3
s_cselect_b32 s34, {WS_BYTES}, 0
{E}_cj:
""")
    head_scalars()
    HADR = f"s_lshl_b32 s61, s15, {12 - LF}\ns_lshr_b32 s27, s14, {LF}\ns_lshl_b32 s27, s27, 7\ns_add_u32 s61, s61, s27\ns_and_b32 s27, s14, {(1 << LF) - 1}\ns_lshl_b32 s27, s27, 2\ns_add_u32 s61, s61, s27"
    HB0 = 0x50000
    if P["hl0"]: HADR = f"s_lshl_b32 s61, s15, 5\ns_add_u32 s61, s61, s14\ns_lshl_b32 s61, s61, 7\ns_add_u32 s61, s61, {HB0}"
    if P["mbx"]:
        HADR = "s_lshr_b32 s61, s15, 1\ns_lshl_b32 s61, s61, 11\ns_and_b32 s27, s15, 1\ns_lshl_b32 s27, s27, 7\ns_add_u32 s61, s61, s27\ns_lshl_b32 s27, s14, 2\ns_add_u32 s61, s61, s27"
    A(f"""
s_lshr_b32 s11, s15, 1
s_add_u32 s15, s15, s29
s_mul_i32 s20, s15, {TS}
s_add_u32 s20, s20, s16
s_add_u32 s18, s20, s17
s_add_u32 s21, s16, s19
s_add_u32 s21, s21, 40960
s_mul_i32 s60, s15, 40960
s_mul_i32 s61, s14, 1280
s_add_u32 s60, s60, s61
s_add_u32 s60, s60, {OF}
s_sub_u32 s3, s60, 3072
{HADR}
s_add_u32 s61, s61, {FL2}
s_lshr_b32 s50, s40, 1
s_lshl_b32 s50, s50, 3
s_and_b32 s51, s41, 7
s_add_u32 s50, s50, s51
s_lshl_b32 s50, s50, 1
s_bfe_u32 s51, s41, 0x10003
s_lshr_b32 s52, s29, 2
s_xor_b32 s53, s51, s52
s_add_u32 s50, s50, s53
s_mul_i32 s54, s52, {P['bq']}
s_xor_b32 s54, s54, s29
s_and_b32 s54, s54, 3
s_lshl_b32 s56, s53, 2
s_add_u32 s56, s56, s54
s_lshl_b32 s56, s56, 3
s_and_b32 s55, s40, 1
s_lshl_b32 s55, s55, 1
s_lshr_b32 s58, s41, 4
s_add_u32 s55, s55, s58
s_mul_i32 s55, s55, 320
s_lshl_b32 s58, s51, 8
s_add_u32 s55, s55, s58
s_lshl_b32 s58, s54, 4
s_add_u32 s55, s55, s58
s_mul_i32 s57, s50, 40960
s_add_u32 s55, s55, s57
s_mul_i32 s59, s54, 10240
s_add_u32 s57, s57, s59
s_add_u32 s57, s57, {OF}
s_mul_i32 s58, s54, 30720
s_add_u32 s58, s58, {WO}
s_mul_i32 s59, s54, 5120
s_add_u32 s59, s59, {PR}
s_lshl_b32 s53, s51, 7
s_sub_u32 s53, 64, s53
s_mov_b32 s50, 2621440
s_mov_b32 s51, 0x20000
""")
    MK("cJ")
    if P["spf"]: kdep()
    MK("cK")
    A(f"""
v_cmp_gt_u32 s[22:23], 20, v4
v_cmp_gt_u32 s[24:25], 32, v2
s_cmp_ge_u32 s29, 4
s_cbranch_scc1 {E}_hp
s_setprio {P['qprio']}
""")
    poll_addr(50, 30, 31)
    A(f"""
s_cmp_eq_u32 s9, 1
s_cbranch_scc1 {E}_vloop
""")
    D = P["D"]
    FB = [[56, 60, 64, 68], [72, 76, 80, 84]] if D == 1 else [[72, 76, 80, 84], [56, 60, 64, 68], [28, 32, 36, 164]]
    QL, RL, KL = 52, 14, 92
    def acc(ct, tt): return 96 + (ct * 2 + tt) * 16
    class Q:
        def __init__(s): s.q = []
        def op(s, tag, txt): A(txt); s.q.append(tag)
        def need(s, *tags):
            idx = max([i for i, t in enumerate(s.q) if t in tags], default=-1)
            if idx >= 0:
                A(f"s_waitcnt lgkmcnt({len(s.q) - 1 - idx})"); s.q = s.q[idx + 1:]
        def drain(s):
            if s.q: A("s_waitcnt lgkmcnt(0)"); s.q = []
    def rd(L, s0, p, i):
        s, pos = p >> 2, p & 3
        x0, x1, w0, w1 = FB[p % (D + 1)]
        isx = i in (0, 3)
        r = 16 + pos if isx else 20 + pos * 2 + (i >= 4)
        a = SLOT[("x" if isx else s0, s)] * 16384
        if not 0 <= a - L.cur[r] <= 49152:
            nb = a if a < L.cur[r] else a - 49152
            A(f"v_add_u32 v{r}, {(nb - L.cur[r]) & 0xffffffff}, v{r}"); L.cur[r] = nb
        o = a - L.cur[r]
        L.op((p, i), [f"ds_read_b128 {vr(x0,4)}, v{r} offset:{o}",
                      f"ds_read_b64_tr_b16 {vr(w0,2)}, v{r} offset:{o}",
                      f"ds_read_b64_tr_b16 {vr(w0+2,2)}, v{r} offset:{o+1024}",
                      f"ds_read_b128 {vr(x1,4)}, v{r} offset:{o+4096}",
                      f"ds_read_b64_tr_b16 {vr(w1,2)}, v{r} offset:{o}",
                      f"ds_read_b64_tr_b16 {vr(w1+2,2)}, v{r} offset:{o+1024}"][i])
    def prep():
        o = []
        for t in range(2):
            c = 10 + t; h = 56 + 4 * t
            o.append(f"""v_cvt_pk_bf16_f32 v{h+2}, 0, v{c}
v_cvt_pk_bf16_f32 v{64+2*t}, -v{160+t}, -v{160+t}
v_sub_f32 v{h+2}, v{c}, v{h+2}
v_cvt_pk_bf16_f32 v{65+2*t}, -v{160+t}, 0
v_cvt_pk_bf16_f32 v{h+3}, 0, v{h+2}
v_cvt_pk_bf16_f32 v{h}, v{c}, v{h+2}
v_sub_f32 v{h+3}, v{h+2}, v{h+3}
v_cvt_pk_bf16_f32 v{h+1}, v{h+3}, 0""".split("\n"))
        return [x for pr in zip(*o) for x in pr]
    def qloads():
        A(f"buffer_load_dwordx4 {vr(QL,4)}, v5, s[44:47], s20 offen{SC}")
        A(f"buffer_load_dwordx2 {vr(RL,2)}, v6, s[44:47], s18 offen{SC}")
        A(f"buffer_load_dwordx4 {vr(KL,4)}, v5, s[44:47], s21 offen{SC}")
    def idle():
        if P["pf"] or P["pf2"]: A(f"""
s_and_b32 s30, s41, 7
s_mul_i32 s30, s30, 80
s_and_b32 s28, s29, 3
s_mul_i32 s31, s28, 20
s_add_u32 s30, s30, s31
v_lshrrev_b32 v164, 1, v2
v_min_u32 v165, 19, v164
v_add_u32 v165, s30, v165
v_and_b32 v166, 1, v2
s_sub_u32 s30, s43, 1
v_min_u32 v1, s30, v166
v_add_u32 v1, s69, v1
v_lshlrev_b32 v1, 7, v1
s_movk_i32 s31, 3456
s_lshl_b32 s28, s28, 8
s_add_u32 s28, s28, s2
s_min_u32 s28, s28, 539
s_mul_i32 s30, s28, 13108
s_lshr_b32 s30, s30, 16
s_mul_i32 s27, s30, {20480 - 5*256}
s_lshl_b32 s28, s28, 8
s_add_u32 s27, s27, s28
v_and_b32 v13, 15, v164
v_mad_u32_u24 v164, v165, s31, v1
v_mul_u32_u24 v13, 1280, v13
v_lshl_add_u32 v13, v166, 7, v13
v_add_u32 v165, s27, v13
""")
        A("s_waitcnt lgkmcnt(0)")
        if P["tlb"]:
            A(f"""
s_and_b32 s30, s41, {P["tlm"]}
s_cbranch_scc1 {E}_ntb
s_and_b32 s28, s29, 3
s_lshl_b32 s30, s28, 21
s_add_u32 s30, s30, 123392
""")
            for j in range(4):
                A(f"s_min_u32 s31, s30, {WS_BYTES - 128}\ns_load_dword s63, s[44:45], s31\ns_add_u32 s30, s30, {4 << 21}")
            A(f"""
s_and_b32 s28, s28, 1
s_lshl_b32 s28, s28, 21
s_load_dword s63, s[48:49], s28
s_load_dword s63, s[36:37], 0
{E}_ntb:
""")
        for st in range(N + 1, 10):
            if st == P["pf"]: A("global_load_dword v0, v164, s[36:37]")
            if st == P["pf2"]: A("global_load_dword v0, v165, s[38:39]")
            A("s_barrier")
    def loop(mode):
        vmode = mode == "v"; hw = mode == "h"; s0 = "u" if hw else "w"
        L = Q()
        L.cur = {r: P["xb"] if r < 20 else P["wb"] for r in range(16, 28)}
        A("s_barrier")
        MK("c0")
        stat = lambda: (L.op("st", "ds_read2_b32 v[160:161], v9 offset0:0 offset1:32"), L.op("st", "ds_read2_b32 v[162:163], v12 offset0:0 offset1:32"))
        for q in range(D):
            for i in range(6): rd(L, s0, q, i)
        def sync(p, s):
            L.need(*[(q, i) for q in range(p, p + D) for i in range(6)])
            if s < 10:
                MK(f"a{s}")
                A("s_barrier")
                MK(f"s{s}")
            else:
                A(f"v_mov_b32 v1, {s + 3}")
                L.op("dn", f"ds_write_b32 v50, v1")
                A(f"""
v_cmp_gt_u32 vcc, {s + 1}, v13
s_cbranch_vccz {E}_hk{s}
{E}_hl{s}:
ds_read_b32 v13, v48
s_waitcnt lgkmcnt(0)
v_cmp_gt_u32 vcc, {s + 1}, v13
s_cbranch_vccnz {E}_hl{s}
{E}_hk{s}:
""")
                if s + 1 >= P["qtry"]:
                    A(f"v_readlane_b32 s30, v13, 63\ns_and_b32 s30, s30, s68\ns_cbranch_scc0 {E}_hq{s}")
                    qloads()
                    A(f"s_mov_b32 s68, 0\n{E}_hq{s}:")
                MK(f"h{s}")
        CP_, CJ = P["csx"]
        for p in range(40):
            s, pos = p >> 2, p & 3
            hm = hw and s >= N
            if hw: s = tx(s)
            if hw and p == 4 * N:
                MK("hI")
                idle()
                A("s_barrier")
                MK("h9")
                for q in range(D):
                    for i in range(6): rd(L, s0, p + q, i)
                stat()
            b = FB[p % (D + 1)]
            bar = pos == 4 - D and p < 36
            sched = [[], [], [], []] if p + D > 39 or (hw and p < 4 * N <= p + D) else (P["schb"] if bar else P["sched"])
            if bar and P["bj"] < 0: sync(p, s)
            for j, (ct, tt) in enumerate(((0, 0), (0, 1), (1, 1), (1, 0))):
                L.need(*[(p, i) for i in ([0, 1, 2], [3], [4, 5], [])[j]])
                a = acc(ct, tt)
                c = "0" if p == 0 else vr(a, 16)
                w, x = vr(b[2 + ct], 4), vr(b[tt], 4)
                if vmode: A(f"v_mfma_f32_32x32x16_bf16 {vr(a,16)}, {x}, {w}, {c}")
                else: A(f"v_mfma_f32_32x32x16_bf16 {vr(a,16)}, {w}, {x}, {c}")
                if bar and P["bj"] == j: sync(p, s)
                if hm and pos == 3 - D and j == P["fj"] and p < 36: L.op("fl", "ds_read_b32 v13, v48")
                for i in sched[j]: rd(L, s0, p + D, i)
                if pos < 2 and j in (1, 3):
                    ct2 = j >> 1
                    c = "0" if p == 0 else vr(40 + 4 * ct2, 4)
                    A(f"v_mfma_f32_16x16x32_bf16 {vr(40+4*ct2,4)}, {vr(b[2+ct2],4)}, v[88:91], {c}")
                if p == P["cntp"] and j == 0 and mode == "q":
                    A(f"s_cmp_eq_u32 s42, 0\ns_cbranch_scc1 {E}_na\ns_waitcnt vmcnt(0)\ns_mov_b64 exec, 1\nbuffer_atomic_add v49, off, s[64:67], 0 offset:{CNT}\ns_mov_b64 exec, -1\n{E}_na:")
                if p == P["cntl"] and j == 0 and not hw:
                    A(f"buffer_load_dword v13, off, s[64:67], 0 offset:{CNT} sc1")
                if p == 38 and j == 0:
                    L.op("csw", f"ds_write_b128 v7, v[40:43]"); L.op("csw", f"ds_write_b128 v7, v[44:47] offset:1024")
                if p == CP_ and j == CJ:
                    if hm:
                        L.need("csw")
                        L.op("cf", f"ds_write_b32 v50, v49 offset:{CSF - DONE}")
                        A(f"""
{E}_hc:
ds_read_b32 v13, v51 offset:{CSF - DONE}
s_waitcnt lgkmcnt(0)
v_cmp_eq_u32 vcc, 0, v13
s_cbranch_vccnz {E}_hc
""")
                        L.q = []
                    else:
                        L.drain(); A("s_barrier")
                    L.op("st", f"ds_read_b32 v10, v8"); L.op("st", f"ds_read_b32 v11, v8 offset:1024")
                    if not hm: stat()
                if p == 39 and j == min(P["prp"]): L.need("st")
                if p == 39 and j in P["prp"]:
                    q_ = P["prp"].index(j); n_ = len(P["prp"])
                    for o in prep()[16 * q_ // n_: 16 * (q_ + 1) // n_]: A(o)
        MK("hA" if hw else "cA")
        for (ct, tt) in ((0, 0), (0, 1), (1, 1), (1, 0)):
            a = acc(ct, tt); w, x = vr(56 + 4 * ct, 2), vr(64 + 2 * tt, 2)
            if vmode: A(f"v_mfma_f32_32x32x8_bf16 {vr(a,16)}, {x}, {w}, {vr(a,16)}")
            else: A(f"v_mfma_f32_32x32x8_bf16 {vr(a,16)}, {w}, {x}, {vr(a,16)}")
    order = ((0, 0), (0, 1), (1, 1), (1, 0))
    loop("q")
    A(f"""
s_cmp_eq_u32 s9, 3
s_cbranch_scc1 {E}_pub
s_setprio {P['eprio']}
v_mul_f32 v162, s8, v162
v_mul_f32 v164, s8, v163
""")
    if not P["kvp"]: kvdelay("q")
    late = []
    for (ct, tt) in order:
        a = acc(ct, tt)
        if P["pk"]:
            for k in range(8): A(f"v_pk_mul_f32 {vr(a+2*k,2)}, {vr(a+2*k,2)}, {vr(162+2*tt,2)} op_sel_hi:[1,0]")
        else:
            for k in range(16): A(f"v_mul_f32 v{a+k}, v{a+k}, v{162+2*tt}")
        for k in range(8): A(f"v_cvt_pk_bf16_f32 v{a+k}, v{a+2*k}, v{a+2*k+1}")
        for j in range(2): A(f"buffer_store_dwordx4 {vr(a+4*j,4)}, v5, s[44:47], s{4+tt} offen offset:{(ct*2+j)*1024}{ST}")
    A(f"s_branch {E}_pub")
    QM, QR, KM, KR, V0, V1 = 8, 12, 16, 20, 24, 28
    S = [32, 48]; O = 64; CB = 80
    FL = 120
    KB = [(KM, KR), (124, 128)]; VB = [V0, 132]
    def vsetup():
        A(f"""
v_and_b32 v{FL+1}, 3, v2
v_lshlrev_b32 v{FL+1}, 2, v{FL+1}
s_lshl_b32 s26, s29, 2
s_add_u32 s26, s26, 64
v_mov_b32 v{FL+2}, s26
v_mul_u32_u24 v7, 320, v3
v_lshl_add_u32 v7, v4, 4, v7
v_add_u32 v7, 5120, v7
v_lshlrev_b32 v6, 4, v4
v_mov_b32 v1, 0x3f803f80
v_cmp_eq_u32 vcc, 20, v4
v_mov_b32 v56, 0
""")
        for i in range(8): A(f"v_cndmask_b32 v{V0+i}, 0, v1, vcc")
    A(f"""
{E}_hp:
s_load_dwordx4 s[36:39], s[0:1], {16 if P["tlb"] else 32}
s_setprio {P['hprio']}
s_sub_u32 s31, s29, 4
s_lshl_b32 s30, s31, 2
s_add_u32 s30, s30, {DONE}
v_mov_b32 v50, s30
v_xor_b32 v51, 4, v50
v_and_b32 v48, 7, v2
v_lshlrev_b32 v48, 2, v48
v_add_u32 v48, {LAND}, v48
v_mov_b32 v1, {RLY}
v_cmp_eq_u32 vcc, 63, v2
v_cndmask_b32 v48, v48, v1, vcc
v_lshlrev_b32 v6, 4, v4
s_lshr_b32 s30, s29, 1
s_lshl_b32 s68, 1, s30
s_waitcnt lgkmcnt(0)
""")
    loop("h")
    HP = {(0, 0): 104, (0, 1): 112, (1, 1): 144, (1, 0): 152}
    A(f"s_cmp_eq_u32 s9, 3\ns_cbranch_scc1 {E}_hd\nv_mov_b32 v164, v163")
    for (ct, tt) in order:
        a = acc(ct, tt); d = HP[(ct, tt)]
        for k in range(8): A(f"v_pk_mul_f32 {vr(a+2*k,2)}, {vr(a+2*k,2)}, {vr(162+2*tt,2)} op_sel_hi:[1,0]")
        for k in (range(7, -1, -1) if (ct, tt) == (0, 0) else range(8)): A(f"v_cvt_pk_bf16_f32 v{d+k}, v{a+2*k}, v{a+2*k+1}")
        for k in range(8): A(f"v_pk_max_i16 v{d+k}, v{d+k}, 0")
        for j in range(2):
            if 2 * order.index((ct, tt)) + j < P["hpre"]:
                A(f"buffer_store_dwordx4 {vr(d+4*j,4)}, v5, s[32:35], s{4+tt} offen offset:{(ct*2+j)*1024}{ST}")
    A(f"{E}_hd:")
    vsetup()
    A(f"""
s_cmp_eq_u32 s68, 0
s_cbranch_scc1 {E}_at2
{E}_hw0:
ds_read_b32 v57, v56 offset:{RLY}
s_waitcnt lgkmcnt(0)
v_readfirstlane_b32 s30, v57
s_and_b32 s30, s30, s68
s_cbranch_scc1 {E}_hw1
s_sleep 1
s_branch {E}_hw0
{E}_hw1:
""")
    qloads()
    A(f"s_branch {E}_at2")
    A(f"{E}_vloop:")
    A(f"""
v_and_b32 v1, 19, v2
v_bfe_u32 v6, v2, 2, 1
v_lshl_add_u32 v1, v6, 3, v1
v_bfe_u32 v6, v2, 3, 1
v_lshl_add_u32 v1, v6, 2, v1
v_mul_u32_u24 v6, {SV}, v3
v_lshl_add_u32 v51, v1, 4, v6
""")
    loop("v")
    A(f"s_setprio {P['eprio']}")
    kvdelay("v")
    for tt in range(2):
        for q in range(4):
            A(f"ds_read_b128 {vr(16+16*tt+4*q,4)}, v48 offset:{RB + tt*128 + q*32}")
    for n, (ct, tt) in enumerate(order):
        a = acc(ct, tt)
        if n < 2: A(f"s_waitcnt lgkmcnt({4 - 4*n})")
        if P["pk"]:
            for k in range(8): A(f"v_pk_mul_f32 {vr(a+2*k,2)}, {vr(a+2*k,2)}, {vr(16+16*tt+2*k,2)}")
        else:
            for k in range(16): A(f"v_mul_f32 v{a+k}, v{a+k}, v{16+16*tt+k}")
        for k in range(8): A(f"v_cvt_pk_bf16_f32 v{a+k}, v{a+2*k}, v{a+2*k+1}")
        for j in range(2): A(f"buffer_store_dwordx4 {vr(a+4*j,4)}, v51, s[44:47], s{4+2*tt+j} offen offset:{ct*512}{ST}")
    DK, DR, DV, DW = 60, 61, 62, 63
    def dma_addr(t0, t1, t2, m1, m2):
        A(f"""
s_mul_i32 s{t0}, s29, {TS}
s_add_u32 s{t0}, s{t0}, s16
s_add_u32 s{t0}, s{t0}, 40960
v_add_u32 v{DK}, s{t0}, v5
s_add_u32 s{t0}, s{t0}, s17
v_lshrrev_b32 v8, 1, v2
v_and_b32 v9, 1, v2
v_lshlrev_b32 v9, 2, v9
v_lshl_add_u32 v8, v8, 4, v9
v_add_u32 v{DR}, s{t0}, v8
s_lshl_b32 s{m1}, s29, 10
s_lshl_b32 s{m2}, s29, 8
s_mul_i32 s{t0}, s14, 320
s_add_u32 s{t0}, s{t0}, {QF + VOFF}
s_lshl_b32 s{t1}, s29, 6
s_lshl_b32 s{t2}, s29, 4
s_add_u32 s{t2}, s{t2}, 256
""")
        def vaddr(dst, ci):
            A(f"""
v_mul_u32_u24 v8, 3277, v{ci}
v_lshrrev_b32 v8, 16, v8
v_mul_u32_u24 v9, 20, v8
v_sub_u32 v9, v{ci}, v9
v_lshrrev_b32 v10, 2, v8
v_and_b32 v8, 3, v8
v_mul_u32_u24 v10, {TS}, v10
v_mul_u32_u24 v8, {SV}, v8
v_lshl_add_u32 v9, v9, 4, s{t0}
v_add3_u32 v{dst}, v8, v9, v10
""")
        A(f"v_add_u32 v11, s{t1}, v2"); vaddr(DV, 11)
        A(f"v_lshrrev_b32 v11, 2, v2\nv_add_u32 v11, s{t2}, v11"); vaddr(DW, 11)
        A(f"v_and_b32 v11, 3, v2\nv_lshl_add_u32 v{DW}, v11, 2, v{DW}")
    def dma(G, m1, m2, so):
        b = G * 10240
        if G == 0: A(f"s_cmp_eq_u32 s29, 0\ns_cbranch_scc1 {E}_d0")
        A(f"s_add_u32 m0, s{m1}, {b}\nbuffer_load_dwordx4 v{DK}, s[44:47], {so} offen{P['dsc']} lds")
        if G == 0: A(f"{E}_d0:")
        A(f"s_add_u32 m0, s{m2}, {b+4096}\nbuffer_load_dword v{DR}, s[44:47], {so} offen{P['dsc']} lds")
        A(f"s_add_u32 m0, s{m1}, {b+5120}\nbuffer_load_dwordx4 v{DV}, s[44:47], {so} offen{P['dsc']} lds")
        A(f"s_add_u32 m0, s{m2}, {b+9216}\nbuffer_load_dword v{DW}, s[44:47], {so} offen{P['dsc']} lds")
    assert G0 == 2 and P["rot"] == 0
    PT = S1LAST + 3
    A(f"{E}_pub:")
    MK("cS")
    vsetup()
    dma_addr(30, 31, 26, 36, 37)
    A(f"""
s_lshl_b32 s26, s29, 2
v_mov_b32 v57, s26
v_mov_b32 v58, {PT}
s_mov_b32 s38, {4*TS}
ds_write_b32 v57, v58 offset:{PUB}
s_cmp_eq_u32 s9, 3
s_cbranch_scc1 {E}_pb2
s_mov_b32 s26, {P['spin']}
s_waitcnt vmcnt(0)
{E}_cw:
v_readfirstlane_b32 s30, v13
s_cmp_ge_u32 s30, 16
s_cbranch_scc1 {E}_cd
s_sub_u32 s26, s26, 1
s_cbranch_scc1 {E}_cd
s_sleep 2
buffer_load_dword v13, off, s[64:67], 0 offset:{CNT} sc1
s_waitcnt vmcnt(0)
s_branch {E}_cw
{E}_cd:
s_mov_b64 exec, 1
buffer_store_dword v49, off, s[44:47], s10 sc1
s_mov_b64 exec, -1
{E}_pb2:
s_setprio {P['qsp']}
""")
    MK("cF")
    A(f"""
s_cmp_lg_u32 s29, {P['pw']}
s_cbranch_scc1 {E}_at1
v_and_b32 v57, 7, v2
v_lshlrev_b32 v57, 2, v57
{E}_pq:
ds_read_b32 v58, v57 offset:{DONE}
s_waitcnt lgkmcnt(0)
s_sleep 1
v_cmp_gt_u32 vcc, {PT}, v58
s_cbranch_vccnz {E}_pq
s_mov_b32 s26, {P['spin']}
{"s_sleep " + str(P['qdel']) if P['qdel'] else ""}
{E}_qp:
buffer_load_dwordx4 v[52:55], v50, s[44:47], 0 offen sc1
s_waitcnt vmcnt(0)
v_min_u32 v53, v53, v54
v_cmp_ne_u32 s[30:31], 0, v52
v_cmp_ne_u32 s[42:43], 0, v53
s_and_b32 s30, s30, s31
s_and_b32 s42, s42, s43
s_lshr_b32 s30, s30, s11
s_sub_u32 s26, s26, 1
s_cselect_b32 s30, -1, s30
s_cselect_b32 s42, -1, s42
s_cselect_b32 s26, 0, s26
s_bitcmp1_b32 s42, 0
s_cselect_b32 s31, 15, 0
s_and_b32 s30, s30, s31
s_or_b32 s30, s30, 0x100
v_mov_b32 v52, s30
v_mov_b32 v53, s42
ds_write_b64 v56, v[52:53] offset:{RLY}
s_and_b32 s42, s42, 15
s_lshl_b32 s42, s42, 4
s_or_b32 s30, s30, s42
s_cmp_eq_u32 s30, 0x1ff
s_cbranch_scc1 {E}_at1
s_sleep {P['qsl']}
s_branch {E}_qp
{E}_at1:
s_lshr_b32 s26, s29, 1
s_mov_b32 s27, 11
{E}_qw:
ds_read_b64 v[58:59], v56 offset:{RLY}
s_waitcnt lgkmcnt(0)
v_readfirstlane_b32 s30, v58
v_readfirstlane_b32 s31, v59
s_lshr_b32 s30, s30, s26
s_and_b32 s30, s30, 1
s_lshr_b32 s28, s31, 1
s_and_b32 s31, s31, s28
s_and_b32 s31, s31, 5
s_lshl_b32 s31, s31, 1
s_or_b32 s30, s30, s31
s_and_b32 s30, s30, s27
s_cbranch_scc1 {E}_qa
s_sleep {P['rws']}
s_branch {E}_qw
{E}_qa:
s_bitcmp1_b32 s30, 1
s_cbranch_scc0 {E}_qb
""")
    dma(0, 36, 37, "0")
    A(f"{E}_qb:\ns_bitcmp1_b32 s30, 0\ns_cbranch_scc0 {E}_qc")
    qloads()
    MK("cQ")
    A(f"{E}_qc:\ns_bitcmp1_b32 s30, 3\ns_cbranch_scc0 {E}_qd")
    dma(1, 36, 37, "s38")
    A(f"""
{E}_qd:
s_andn2_b32 s27, s27, s30
s_cbranch_scc1 {E}_qw
{E}_at2:
v_cmp_eq_u32 vcc, 20, v4
v_lshlrev_b32 v57, 3, v4
""")
    for i in range(8): A(f"v_cndmask_b32 v{VB[1]+i}, 0, v1, vcc")
    for i in range(4): A(f"v_mov_b32 v{164+i}, -1")
    A("v_add_u32 v6, 4096, v57")
    MK("cW")
    hstores = [(ct, tt, j) for (ct, tt) in order for j in range(2)]
    def hstore(n):
        ct, tt, j = hstores[n]
        A(f"buffer_store_dwordx4 {vr(HP[(ct,tt)]+4*j,4)}, v{HA_}, s[32:35], s{4+tt} offen offset:{(ct*2+j)*1024}{ST}")
    HA_ = 5
    if P["hcw"]:
        A(f"s_cmp_eq_u32 s34, 0\ns_cbranch_scc1 {E}_nhw")
        for n in range(P["hcw"]): hstore(n)
        MK("cV")
        A(f"s_waitcnt vmcnt({P['hcw']})\ns_branch {E}_nhx\n{E}_nhw:")
    A(f"s_waitcnt vmcnt(0)\n{E}_nhx:")
    for i in range(4): A(f"v_mov_b32 v{QM+i}, v{QL+i}\nv_mov_b32 v{KM+i}, v{KL+i}")
    A(f"v_cndmask_b32 v{QR}, 0, v{RL}, s[24:25]\nv_cndmask_b32 v{QR+1}, 0, v{RL+1}, s[24:25]")
    A("s_barrier")
    MK("cB")
    if P["hcb"]:
        A(f"s_cmp_eq_u32 s34, 0\ns_cbranch_scc1 {E}_nhc")
        for n in range(P["hpre"] + P["hcw"], P["hpre"] + P["hcb"]): hstore(n)
        A(f"{E}_nhc:")
        MK("cC")
    def kread(o, km=None, kr=None):
        if km is None: km, kr = KB[o & 1]
        g, i = o >> 2, o & 3
        A(f"ds_read_b128 {vr(km,4)}, v5 offset:{g*10240+i*1024}\nds_read_b64 {vr(kr,2)}, v6 offset:{g*10240+i*256}")
    def vread(o):
        g, i = o >> 2, o & 3; b = g * 10240 + i * 1280
        A(f"s_mov_b64 exec, s[22:23]\nds_read_b128 {vr(VB[o&1],4)}, v7 offset:{b}\nds_read_b128 {vr(VB[o&1]+4,4)}, v7 offset:{b+640}\ns_mov_b64 exec, -1")
    A(f"ds_read_b64 {vr(KR,2)}, v6")
    for t in range(1, NP): kread(t, CB + 4 * t, 96 + 2 * t)
    PD = [S[0], S[1], O, S[0]]
    def pmax(t):
        for k in range(8):
            if t == 0 and k == 0: A(f"v_max_f32 v1, v{PD[t]}, v{PD[t]+1}")
            else: A(f"v_max3_f32 v1, v1, v{PD[t]+2*k}, v{PD[t]+2*k+1}")
    for t in range(NP):
        if t == 3: pmax(0)
        A(f"s_waitcnt lgkmcnt({2*(NP-1-t)})")
        km, kr = (KM, KR) if t == 0 else (CB + 4 * t, 96 + 2 * t)
        A(f"v_mfma_f32_32x32x16_bf16 {vr(PD[t],16)}, {vr(km,4)}, {vr(QM,4)}, 0")
        A(f"v_mfma_f32_32x32x8_bf16 {vr(PD[t],16)}, {vr(kr,2)}, {vr(QR,2)}, {vr(PD[t],16)}")
    for t in range(1, NP): pmax(t)
    A(f"""
v_mov_b32 v14, v1
s_mov_b32 s26, {f32bits(P['offs'])}
v_permlane32_swap_b32 v1, v14
v_max_f32 v1, v1, v14
v_add_f32 v1, s26, v1
""")
    for i in range(16): A(f"v_sub_f32 v{CB+i}, 0, v1")
    for i in range(16): A(f"v_mov_b32 v{O+i}, 0")
    def M1(t): A(f"v_mfma_f32_32x32x16_bf16 {vr(S[t&1],16)}, {vr(KB[t&1][0],4)}, {vr(QM,4)}, {vr(CB,16)}")
    def M2(t): A(f"v_mfma_f32_32x32x8_bf16 {vr(S[t&1],16)}, {vr(KB[t&1][1],2)}, {vr(QR,2)}, {vr(S[t&1],16)}")
    def Ex(t, *idx):
        for i in idx: A(f"v_exp_f32 v{S[t&1]+i}, v{S[t&1]+i}")
    def Cv(t, *idx):
        for k in idx:
            d = S[t & 1] + (k & 3) + 8 * (k >> 2)
            A(f"v_cvt_pk_bf16_f32 v{d}, v{S[t&1]+2*k}, v{S[t&1]+2*k+1}")
    if P["bal"]:
        A(f"""
v_xor_b32 v22, 16, v{FL+2}
v_mov_b32 v{FL+3}, 0
v_mov_b32 v15, 0
s_setprio {P['balp'][0]}
""")
    if P["yl"]: A(f"v_xor_b32 v22, 16, v{FL+2}\nv_mov_b32 v{FL+3}, 0")
    YL = []
    def yield_(t, waited):
        if not waited: A("s_waitcnt lgkmcnt(2)")
        A(f"v_cmp_lt_u32 vcc, v15, v{FL+3}\ns_cbranch_vccnz {E}_yl{t}\n{E}_yb{t}:")
        YL.append(f"""
{E}_yl{t}:
s_sleep {P['yl'][1]}
ds_read_b32 v15, v22
s_waitcnt lgkmcnt(0)
v_cmp_lt_u32 vcc, v15, v{FL+3}
s_cbranch_vccnz {E}_yl{t}
s_sleep {P['yl'][0]}
s_branch {E}_yb{t}
""")
    if P["hnb"]: A("s_cmp_eq_u32 s34, 0\ns_cselect_b32 s9, 1, 0")
    nbal = [0]
    def balance(t, first):
        if P["bal"] and t % 4 == 2 and not (first and t == 2):
            k = nbal[0]; nbal[0] += 1
            A(f"""
v_cmp_ge_u32 vcc, v15, v{FL+3}
s_setprio {P['balp'][0]}
s_cbranch_vccz {E}_bl{k}
s_setprio {P['balp'][1]}
{E}_bl{k}:
""")
    progress = f"v_add_u32 v{FL+3}, 1, v{FL+3}\nds_write_b32 v{FL+2}, v{FL+3}" + ("\nds_read_b32 v15, v22" if P["bal"] else "")
    MK("c1")
    A("s_waitcnt lgkmcnt(0)")
    kread(1); vread(0); M1(0); M2(0); kread(2); vread(1)
    W = 6
    Ex(0, *range(P["npre"]))
    def tile(t, hook=None):
        pr = P["prios"] if not P["bal"] else None
        if pr and (t == 0 or pr[t % len(pr)] != pr[(t - 1) % len(pr)]): A(f"s_setprio {pr[t % len(pr)]}")
        for tok in P["order"].split():
            if tok == "M1": A(f"s_waitcnt lgkmcnt({W})"); M1(t + 1); balance(t, hook is hook0)
            elif tok == "M2": M2(t + 1)
            elif tok == "M3": A(f"s_waitcnt lgkmcnt({W})\nv_mfma_f32_32x32x16_bf16 {vr(O,16)}, {vr(VB[t&1],4)}, {vr(S[t&1],4)}, {vr(O,16)}")
            elif tok == "M4": A(f"v_mfma_f32_32x32x16_bf16 {vr(O,16)}, {vr(VB[t&1]+4,4)}, {vr(S[t&1]+8,4)}, {vr(O,16)}")
            elif tok == "K":
                if hook: hook(t, 0)
                kread(t + 3)
                if hook: hook(t, 1)
            elif tok == "V":
                vread(t + 2)
                if hook: hook(t, 2)
            elif tok[0] == "E": Ex(t, int(tok[1:]))
            elif tok[0] == "N": Ex(t + 1, int(tok[1:]))
            elif tok[0] == "C": Cv(t, int(tok[1:]))
            else: raise ValueError(tok)
    adv = "v_add_u32 v5, 20480, v5\nv_add_u32 v6, 20480, v6\nv_add_u32 v7, 20480, v7"
    npoll = [0]
    def check(thr):
        k = npoll[0]; npoll[0] += 1
        A(f"""
s_waitcnt lgkmcnt(2)
v_cmp_gt_u32 vcc, {thr}, v{FL}
s_cbranch_vccz {E}_ok{k}
{E}_poll{k}:
s_sleep 1
ds_read_b32 v{FL}, v{FL+1}
s_waitcnt lgkmcnt(0)
v_cmp_gt_u32 vcc, {thr}, v{FL}
s_cbranch_vccnz {E}_poll{k}
{E}_ok{k}:
""")
    rdflag = f"ds_read_b32 v{FL}, v{FL+1}"
    hflag = f"s_waitcnt vmcnt(0)\ns_mov_b64 exec, 1\nbuffer_store_dword v{FL+2}, off, s[32:35], s10 sc1\ns_mov_b64 exec, -1"
    if P["hnb"]:
        hst_ = f"s_waitcnt vmcnt(0)\ns_mov_b64 exec, 1\nbuffer_store_dword v{FL+2}, off, s[32:35], s10 sc1\ns_mov_b64 exec, -1\ns_mov_b32 s9, 1"
        hpeek = lambda t: f"s_getreg_b32 s30, hwreg(HW_REG_IB_STS, 0, 4)\ns_or_b32 s30, s30, s9\ns_cbranch_scc1 {E}_hp{t}\n{hst_}\n{E}_hp{t}:"
        hflag = f"s_cmp_lg_u32 s9, 0\ns_cbranch_scc1 {E}_hpl\n{hst_}\n{E}_hpl:"
    def hook0(t, ph):
        if ph == 1 and t in (4, 7): A(rdflag)
        if ph == 1 and t == 4 and (P["bal"] or P["yl"]): A(progress)
        if ph == 1 and t == 7 and P["yl"]: A("ds_read_b32 v15, v22")
        if ph == 0 and t == 5: check(F_G1)
        if ph in (1, 2):
            mine = [n for n in range(P["hpre"] + P["hcb"], 8) if P["hst"][n] == t]
            for n in mine[ph - 1::2] if not P["noh"] else []:
                if P["hskip"]: A(f"s_cmp_eq_u32 s34, 0\ns_cbranch_scc1 {E}_hs{n}")
                hstore(n)
                if P["hskip"]: A(f"{E}_hs{n}:")
        if ph == 1 and t == P["ofp"] and not P["noof"] and not P["ofi"]:
            A(f"buffer_store_dwordx4 v[164:167], v5, s[44:47], s60 offen sc1\nbuffer_store_dwordx2 v[164:165], v6, s[44:47], s3 offen sc1")
        if ph == 2 and t == 3: MK("t3")
        if ph == 2 and P["hnb"] and t in P["hnb"]: A(hpeek(t))
        if ph == 2 and P["hfl"] == (0, t): MK("t7"); A(hflag); MK("cH")
    for t in range(8): tile(t, hook0)
    A(adv)
    if max(P["hst"]) >= 8:
        HA_ = 14
        A("s_cmp_eq_u32 s34, 0\ns_cselect_b32 s26, 0, 1\nv_lshlrev_b32 v14, 4, v2")
    A(f"s_mov_b32 s27, 1\ns_mov_b32 s28, {F_G5}\nv_mov_b32 v{FL+3}, 1\n{E}_loop:")
    def hook1(t, ph):
        if ph == 0 and t == 0 and P["marks"]:
            for k in range(1, 8):
                if f"I{k}" in P["marks"]: A(f"s_cmp_lg_u32 s27, {k}\ns_cbranch_scc1 {E}_mi{k}"); MK(f"I{k}"); A(f"{E}_mi{k}:")
        if ph == 0 and t == 0: check("s28")
        if ph == 0 and t in (0, 4) and P["yl"]: yield_(t, t == 0)
        if ph == 1 and t in (3, 7) and P["yl"]: A("ds_read_b32 v15, v22")
        if ph == 1 and t == 0: A(f"s_mov_b32 s28, {F_ALL}")
        if ph == 1 and t in (0, 4): A(progress)
        if ph == 1 and t == 7: A(rdflag)
        if ph in (1, 2):
            mine = [n for n in range(P["hpre"] + P["hcb"], 8) if P["hst"][n] == t + 8]
            for n in mine[ph - 1::2]:
                A(f"s_cmp_lg_u32 s27, s26\ns_cbranch_scc1 {E}_hs{n}")
                hstore(n)
                A(f"{E}_hs{n}:")
        if ph == 1 and P["ofi"] and t == P["ofp"]:
            A(f"s_cmp_lg_u32 s27, {P['ofi']}\ns_cbranch_scc1 {E}_no\nv_lshlrev_b32 v1, 4, v2\nv_lshlrev_b32 v0, 3, v4\nbuffer_store_dwordx4 v[164:167], v1, s[44:47], s60 offen sc1\nbuffer_store_dwordx2 v[164:165], v0, s[44:47], s60 offen offset:1024 sc1\n{E}_no:")
        if ph == 2 and P["hfl"][0] > 0 and P["hfl"][1] == t:
            A(f"s_cmp_lg_u32 s27, {P['hfl'][0]}\ns_cbranch_scc1 {E}_nf\n{hflag}\n{E}_nf:")
        if ph == 1 and t == P["hint"][1]:
            A(f"""
s_cmp_lg_u32 s27, {P["hint"][0]}
s_cbranch_scc1 {E}_nh
s_waitcnt vmcnt(0)
{"v_lshlrev_b32 v15, 8, v2" if P["mbx"] else ""}
s_mov_b64 exec, {0xff if P["mbx"] else 1}
buffer_store_dword v{FL+2}, {"v15" if P["mbx"] else "off"}, s[44:47], s61{" offen" if P["mbx"] else ""}{P['hsc']}
s_mov_b64 exec, -1
{"; MARK " + str(P["marks"]["ch"]) if P["marks"] and "ch" in P["marks"] else ""}
{"s_waitcnt vmcnt(0)" + chr(10) + "; MARK " + str(P["marks"]["ci"]) if P["marks"] and "ci" in P["marks"] else ""}
{E}_nh:
""")
    for t in range(8): tile(t, hook1)
    A(adv)
    A(f"s_add_u32 s27, s27, 1\ns_cmp_lt_u32 s27, 8\ns_cbranch_scc1 {E}_loop")
    MK("c3")
    A(f"v_mov_b32 v{FL+3}, 16\nds_write_b32 v{FL+2}, v{FL+3}\nv_mov_b32 v1, 0\ns_movk_i32 s26, 0x207")
    for i in range(12): A(f"v_fma_f32 v1, v{O+i}, 0, v1")
    A(f"""
v_cmp_class_f32 vcc, v1, s26
s_cbranch_vccnz {E}_fb
{E}_epi:
v_mov_b32 v10, 0
ds_read_b64 v[12:13], v10 offset:{MSK}
v_mov_b32 v14, v{O+8}
v_mov_b32 v15, v{O+8}
v_lshlrev_b32 v5, 4, v2
v_permlane32_swap_b32 v14, v15
v_rcp_f32 v14, v15
v_lshlrev_b32 v6, 3, v4
v_mov_b32 v11, v{FL+1}
""")
    for k in range(6): A(f"v_pk_mul_f32 {vr(O+2*k,2)}, {vr(O+2*k,2)}, v[14:15] op_sel_hi:[1,0]")
    for k in range(6): A(f"v_cvt_pk_bf16_f32 v{O+k}, v{O+2*k}, v{O+2*k+1}")
    OSC = P["osc"]; LSC = P["lsc"]
    VW, VR, OR_, OA, SP = 6, 7, 8, 9, 15
    A(f"""
buffer_store_dwordx4 {vr(O,4)}, v5, s[44:47], s60 offen{OSC}
s_mov_b64 exec, s[24:25]
buffer_store_dwordx2 {vr(O+4,2)}, v6, s[44:47], s60 offen offset:1024{OSC}
s_mov_b64 exec, -1
s_setprio 0
""")
    MK("c4")
    if P["marks"] and "cj" in P["marks"]: A("s_waitcnt vmcnt(0)"); MK("cj")
    A(f"""
v_mul_u32_u24 v14, 2560, v3
s_add_u32 s28, s57, 5120
s_waitcnt lgkmcnt(0)
v_readfirstlane_b32 s30, v12
v_readfirstlane_b32 s31, v13
v_lshl_add_u32 v{OR_}, v4, 3, v14
s_lshr_b64 s[30:31], s[30:31], s56
s_mov_b32 s63, s30
""")
    OB = 16; AC = 56
    def load(k, LSC=P["lsc"]):
        if k < 8: A(f"buffer_load_dwordx4 {vr(OB+4*k,4)}, v5, s[44:47], s{57 if k < 4 else 28} offen offset:{1280*(k&3)}{LSC}")
        else:
            for e in range(2): A(f"buffer_load_dwordx2 {vr(OB+4*k+2*e,2)}, v{OR_}, s[44:47], s{57 if k == 8 else 28} offen offset:{1024+1280*e}{LSC}")
    L0, L1 = P["lsc0"]
    EXT = "s_and_b32 s63, s30, 0xff\ns_and_b32 s31, s30, 15\ns_cmp_eq_u32 s31, 15\ns_cselect_b32 s31, 0x100, 0\ns_cmp_ge_u32 s63, 0xf0\ns_cselect_b32 s30, 0x200, 0\ns_or_b32 s63, s63, s31\ns_or_b32 s63, s63, s30"
    if P["dyn"]:
        A(EXT + "\ns_mov_b32 s64, s63\ns_movk_i32 s65, 0x3ff")
        for k in range(10):
            A(f"v_mov_b64 {vr(OB+4*k,2)}, -1\nv_mov_b64 {vr(OB+4*k+2,2)}, -1\ns_bitcmp1_b32 s63, {k}\ns_cbranch_scc0 {E}_su{k}")
            load(k)
            A(f"{E}_su{k}:")
    else:
        for k in range(8):
            A(f"s_mov_b32 s64, {k}\ns_bitcmp1_b32 s63, {k}\ns_cbranch_scc0 {E}_su")
            load(k, L0)
        load(8, L0); load(9, L0)
        A(f"s_mov_b32 s64, 9\n{E}_su:")
    def issue_rest(T):
        A(f"s_cmp_eq_u32 s64, 9\ns_cbranch_scc1 {E}_id{T}")
        for k in range(8):
            L = f"{E}_is{T}{k}"
            A(f"""
s_cmp_gt_u32 s64, {k}
s_cbranch_scc1 {L}n
s_bitcmp1_b32 s63, {k}
s_cbranch_scc1 {L}g
{L}p:
ds_read_b64 v[0:1], v10 offset:{MSK}
s_waitcnt lgkmcnt(0)
v_readfirstlane_b32 s30, v0
v_readfirstlane_b32 s31, v1
s_lshr_b64 s[30:31], s[30:31], s56
s_mov_b32 s63, s30
s_bitcmp1_b32 s30, {k}
s_cbranch_scc1 {L}g
s_sleep 1
s_branch {L}p
{L}g:
""")
            load(k, L1)
            A(f"{L}n:")
        load(8, L1); load(9, L1)
        A(f"{E}_id{T}:"); MK("c6")
    RQ = "v_lshl_add_u32 v13, v12, 5, v13"
    if P["rotq"]:
        RQ = "v_lshlrev_b32 v7, 3, v7\nv_sub_u32 v13, v13, v7\nv_lshl_add_u32 v7, v12, 5, v7\ns_lshl_b32 s30, s54, 4\nv_add_u32 v7, s30, v7\nv_and_b32 v7, 63, v7\nv_add_u32 v13, v13, v7"
    A(f"""
ds_read_b32 v1, v11
v_mul_u32_u24 v12, 1280, v4
v_bfe_u32 v13, v2, 2, 2
v_and_b32 v7, 3, v2
v_lshl_add_u32 v{OA}, v3, 3, v12
v_lshlrev_b32 v13, 6, v13
v_lshl_add_u32 v13, v7, 3, v13
v_bfe_u32 v12, v2, 4, 1
{RQ}
v_add_u32 v13, s58, v13
v_lshl_add_u32 v{VW}, v3, 8, v13
v_add_u32 v{VR}, v14, v13
s_sub_u32 s26, s54, 1
v_sub_u32 v14, s26, v2
v_and_b32 v14, 3, v14
s_lshl_b32 s26, s52, 4
s_add_u32 s26, s26, {SENT}
v_lshl_add_u32 v{SP}, v14, 2, s26
s_lshl_b32 s27, s54, 2
s_add_u32 s27, s27, s26
s_mov_b32 s62, {P['spin']}
v_add_u32 v12, s59, v5
s_lshl_b32 s30, s54, 2
v_mov_b32 v13, s30
""")
    nw_ = [0]
    def lwait(thr, ar=11):
        k = nw_[0]; nw_[0] += 1
        A(f"""
{E}_lw{k}:
s_waitcnt lgkmcnt(0)
v_cmp_gt_u32 vcc, {thr}, v1
s_cbranch_vccz {E}_lwd{k}
s_sleep {P['psl']}
ds_read_b32 v1, v{ar}
s_branch {E}_lw{k}
{E}_lwd{k}:
""")
    def perq4(tag, body):
        for q in range(4):
            if q < 3: A(f"s_cmp_lg_u32 s54, {q}\ns_cbranch_scc1 {E}_{tag}{q+1}")
            body(q)
            if q < 3: A(f"s_branch {E}_{tag}d\n{E}_{tag}{q+1}:")
        A(f"{E}_{tag}d:")
    def chk(k, tmp=14):
        o = OB + 4 * k
        A(f"v_max3_u32 v{tmp}, v{o}, v{o+1}, v{o+2}\nv_max_u32 v{tmp}, v{tmp}, v{o+3}\nv_cmp_eq_u32 vcc, -1, v{tmp}")
    RDM = "v_readfirstlane_b32 s30, v0\nv_readfirstlane_b32 s31, v1\ns_lshr_b64 s[30:31], s[30:31], s56\n" + EXT
    def dwaitf(thr, ar, tag):
        A(f"""
ds_read_b32 v3, v{ar}
ds_read_b64 v[0:1], v10 offset:{MSK}
{E}_dw{tag}:
s_waitcnt lgkmcnt(0)
v_cmp_gt_u32 vcc, {thr}, v3
s_cbranch_vccz {E}_dd{tag}
{RDM}
s_andn2_b32 s30, s63, s64
s_mov_b32 s64, s63
s_sub_u32 s67, s67, 1
s_cselect_b32 s30, s63, s30
s_cselect_b32 s67, {P['dper']}, s67
ds_read_b32 v3, v{ar}
ds_read_b64 v[0:1], v10 offset:{MSK}
s_cmp_eq_u32 s30, 0
s_cbranch_scc1 {E}_dz{tag}
""")
        for k in range(10):
            A(f"s_bitcmp1_b32 s30, {k}\ns_cbranch_scc0 {E}_dn{tag}{k}")
            chk(k)
            A(f"s_cbranch_vccz {E}_dn{tag}{k}")
            load(k)
            A(f"{E}_dn{tag}{k}:")
        A(f"{E}_dz{tag}:\ns_sleep {P['psl']}\ns_branch {E}_dw{tag}\n{E}_dd{tag}:")
    if P["dyn"]:
        A(f"s_mov_b32 s67, {P['dper']}"); dwaitf(F_WO, 11, "o")
    else: lwait(F_WO)
    MK("c5")
    A(f"s_cmp_lg_u32 s52, 0\ns_cbranch_scc1 {E}_tB")
    for ty, nb in ((0, 3), (1, 2)):
        T = "AB"[ty]
        if ty: A(f"{E}_tB:")
        WB = AC + 16 * nb
        nbuf = min(10, (168 - WB) // (4 * nb))
        q = []
        def need(tag):
            idx = max([i for i, t in enumerate(q) if t == tag], default=-1)
            if idx >= 0:
                A(f"s_waitcnt lgkmcnt({min(len(q) - 1 - idx, 15)})"); del q[:idx + 1]
        later = lambda k: (7 - k + 4) if k < 8 else (2 if k == 8 else 0)
        SLT = {0: 0, 1: 1, 2: 2, 3: 3, 8: 4, 4: 0, 5: 1, 6: 2, 7: 3, 9: 4}
        slot = (lambda k: SLT[k]) if P["dyn"] and nbuf < 10 else (lambda k: k % nbuf)
        def wr(k, lo=0, hi=99):
            b = WB + slot(k) * 4 * nb
            for u in range(max(lo, 0), min(hi, nb)):
                if k < 8: a = VW; o1 = u * 10240 + k * 1280; o2 = o1 + 512
                else: a = VR; o1 = u * 10240 + (k - 8) * 5120 + 1024; o2 = o1 + 1280
                A(f"ds_read_b64_tr_b16 {vr(b+4*u,2)}, v{a} offset:{o1}"); q.append((k, u))
                A(f"ds_read_b64_tr_b16 {vr(b+4*u+2,2)}, v{a} offset:{o2}"); q.append((k, u))
        for k in ((0, 1, 2, 3, 8) if P["dyn"] and nbuf < 10 else range(nbuf)): wr(k)
        if P["rotq"]:
            if ty == 0:
                A("s_add_u32 s32, s58, 20480")
                for r in range(3): A(f"s_sub_u32 s30, s54, {r+1}\ns_and_b32 s30, s30, 3\ns_mul_i32 s30, s30, 30720\ns_add_u32 s{36+r}, s30, {WO + 20480 + r*3072}")
            else:
                A(f"s_lshl_b32 s32, s54, 12\ns_add_u32 s32, s32, {FREE}")
                for r in range(3):
                    A(f"s_sub_u32 s30, s54, {r+1}\ns_and_b32 s30, s30, 3\ns_mul_i32 s30, s30, {5120 if r == 0 else 4096}\ns_add_u32 s{36+r}, s30, {PR if r == 0 else FREE + (r-1)*2048}")
            A("s_add_u32 s33, s55, s53\ns_add_u32 s34, s33, s53\ns_mov_b32 s35, 0")
        elif ty == 0:
            for j in range(4): A(f"s_sub_u32 s30, {j+3}, s54\ns_and_b32 s30, s30, 3\ns_mul_i32 s30, s30, 3072\ns_add_u32 s{32+j}, s30, s58\ns_add_u32 s{32+j}, s{32+j}, 20480")
            for r in range(3): A(f"s_sub_u32 s30, s54, {r+1}\ns_and_b32 s30, s30, 3\ns_mul_i32 s30, s30, 30720\ns_add_u32 s{36+r}, s30, {WO + 20480 + r*3072}")
        else:
            A(f"s_lshl_b32 s31, s54, 12\ns_add_u32 s31, s31, {FREE - 2048}")
            for j in range(4): A(f"s_sub_u32 s30, {j+3}, s54\ns_and_b32 s30, s30, 3\ns_lshl_b32 s{32+j}, s30, 11\ns_add_u32 s{32+j}, s{32+j}, s31\ns_cmp_eq_u32 s30, 0\ns_cselect_b32 s{32+j}, s59, s{32+j}")
            for r in range(3):
                A(f"s_sub_u32 s30, s54, {r+1}\ns_and_b32 s30, s30, 3\ns_mul_i32 s30, s30, {5120 if r == 0 else 4096}\ns_add_u32 s{36+r}, s30, {PR if r == 0 else FREE + (r-1)*2048}")
        for k in range(16 * nb): A(f"v_mov_b32 v{AC+k}, 0")
        if P["dyn"]: dwaitf(F_FX, 13, "x" + T)
        else:
            issue_rest(T)
            A("ds_read_b32 v1, v13")
            lwait(F_FX, 13)
        MK("c7")
        q.clear()
        fxr = lambda qq: [A(f"ds_read_b128 {vr(AC+16*t+4*qq,4)}, v12 offset:{(2048 if ty == 0 else 0) + t*1024}") for t in range(nb)]
        if P["rotq"]: fxr(0)
        else: perq4(f"fx{T}", fxr)
        if P["dyn"]:
            def mm(k, nx=None):
                b = WB + slot(k) * 4 * nb; o = OB + 4 * k
                for u in range(nb):
                    A(f"v_mfma_f32_32x32x16_bf16 {vr(AC+16*u,16)}, {vr(b+4*u,4)}, {vr(o,4)}, {vr(AC+16*u,16)}")
                    if nx is not None and u >= 1: wr(nx, u - 1, u)
                if nx is not None: wr(nx, nb - 1, nb)
            A(f"""
{RDM}
s_andn2_b32 s30, s63, s64
s_mov_b32 s64, s63
s_waitcnt lgkmcnt(0)
s_branch {E}_yi{T}
{E}_yl{T}:
s_and_b32 s66, s64, s65
""")
            if nbuf < 10:
                PA = ((0, 4), (1, 5), (2, 6), (3, 7), (8, 9))
                for a, b in PA:
                    A(f"s_bitcmp1_b32 s66, {a}\ns_cbranch_scc0 {E}_ya{T}{a}")
                    chk(a)
                    A(f"s_cbranch_vccnz {E}_ya{T}{a}\ns_bitset0_b32 s65, {a}")
                    mm(a, b)
                    A(f"{E}_ya{T}{a}:")
                for a, b in PA:
                    A(f"s_bitcmp1_b32 s66, {b}\ns_cbranch_scc0 {E}_yb{T}{b}")
                    chk(b)
                    A(f"s_cbranch_vccz {E}_yc{T}{b}\ns_bitset0_b32 s66, {b}\ns_branch {E}_yb{T}{b}\n{E}_yc{T}{b}:\ns_bitcmp1_b32 s65, {a}\ns_cbranch_scc0 {E}_yb{T}{b}")
                    wr(b)
                    A(f"{E}_yb{T}{b}:")
                A(f"s_waitcnt lgkmcnt(0)\ns_and_b32 s30, s66, 0x2f0\ns_cbranch_scc0 {E}_ye{T}")
                for a, b in PA:
                    A(f"s_bitcmp1_b32 s66, {b}\ns_cbranch_scc0 {E}_yd{T}{b}\ns_bitset0_b32 s65, {b}")
                    mm(b)
                    A(f"s_bitcmp1_b32 s65, {a}\ns_cbranch_scc0 {E}_yd{T}{b}")
                    wr(a)
                    A(f"{E}_yd{T}{b}:")
                A(f"{E}_ye{T}:")
            else:
                for k in (0, 1, 2, 3, 8, 4, 5, 6, 7, 9):
                    A(f"s_bitcmp1_b32 s66, {k}\ns_cbranch_scc0 {E}_ya{T}{k}")
                    chk(k)
                    A(f"s_cbranch_vccnz {E}_ya{T}{k}\ns_bitset0_b32 s65, {k}")
                    mm(k)
                    A(f"{E}_ya{T}{k}:")
                A("s_waitcnt lgkmcnt(0)")
            A(f"""
s_cmp_eq_u32 s65, 0
s_cbranch_scc1 {E}_yz{T}
s_sub_u32 s62, s62, 1
s_cbranch_scc1 {E}_yz{T}
{RDM}
s_mov_b32 s64, s63
s_and_b32 s30, s63, s65
s_waitcnt lgkmcnt(0)
{E}_yi{T}:
ds_read_b64 v[0:1], v10 offset:{MSK}
""")
            for k in range(10):
                A(f"s_bitcmp1_b32 s30, {k}\ns_cbranch_scc0 {E}_yj{T}{k}")
                load(k)
                A(f"{E}_yj{T}{k}:")
            A(f"s_cmp_eq_u32 s62, {P['spin']}\ns_cbranch_scc1 {E}_yl{T}\ns_sleep {P['dsl2']}\ns_branch {E}_yl{T}\n{E}_yz{T}:\ns_waitcnt lgkmcnt(0)")
        else: A("s_waitcnt lgkmcnt(0)")
        for k in range(10 if not P["dyn"] else 0):
            A(f"s_waitcnt vmcnt({later(k)})")
            o = OB + 4 * k
            A(f"""
{E}_ck{T}{k}:
v_max3_u32 v1, v{o}, v{o+1}, v{o+2}
v_max_u32 v1, v1, v{o+3}
v_cmp_eq_u32 vcc, -1, v1
s_cbranch_vccnz {E}_rt{T}{k}
{E}_bk{T}{k}:
""")
            b = WB + (k % nbuf) * 4 * nb
            nx = k + nbuf
            for u in range(nb):
                need((k, u))
                A(f"v_mfma_f32_32x32x16_bf16 {vr(AC+16*u,16)}, {vr(b+4*u,4)}, {vr(o,4)}, {vr(AC+16*u,16)}")
                if nx < 10 and u >= 1: wr(nx, u - 1, u)
            if nx < 10: wr(nx, nb - 1, nb)
        MK("c8")
        XR = 140 if P["dyn"] else 16
        for j in range(1 if P["rotq"] else 4): A(f"v_add_u32 v{XR+j}, s{32+j}, v5")
        for r in range(3): A(f"v_add_u32 v{XR+4+r}, s{36+r}, v5")
        A("v_mov_b32 v13, s27\ns_mov_b32 s63, 7")
        if P["rotq"]:
            for t in range(nb):
                for j in range(1, 4):
                    if ty == 0: a, o = XR, (j - 1) * 3072 + t * 1024
                    elif j == 1: a, o = 12, t * 1024
                    else: a, o = XR, (j - 2) * 2048 + t * 1024
                    A(f"ds_write_b128 v{a}, {vr(AC+16*t+4*j,4)} offset:{o}")
        for j in range(4 if not P["rotq"] else 0):
            A(f"s_cmp_eq_u32 s54, {j}\ns_cbranch_scc1 {E}_ns{T}{j}")
            for t in range(nb): A(f"ds_write_b128 v{XR+j}, {vr(AC+16*t+4*j,4)} offset:{t*1024}")
            A(f"{E}_ns{T}{j}:")
        A(f"""
s_waitcnt lgkmcnt(0)
ds_write_b32 v13, v13
{E}_sp{T}:
ds_read_b32 v1, v{SP}
s_waitcnt lgkmcnt(0)
v_cmp_ne_u32 vcc, 0, v1
s_and_b32 s30, vcc_lo, s63
""")
        for r in range(3):
            A(f"s_bitcmp1_b32 s30, {r}\ns_cbranch_scc0 {E}_nr{T}{r}")
            for t in range(nb): A(f"ds_read_b128 {vr(WB+4*(3*t+r),4)}, v{XR+4+r} offset:{t*1024}")
            A(f"{E}_nr{T}{r}:")
        if P["rotq"] > 1:
            A(f"""
s_andn2_b32 s63, s63, s30
s_cbranch_scc0 {E}_sq{T}
s_cmp_lg_u32 s35, 0
s_cbranch_scc1 {E}_sp{T}
s_mov_b32 s35, 1
s_mov_b64 exec, 0
s_branch {E}_fi{T}
{E}_fo{T}:
s_mov_b64 exec, -1
s_branch {E}_sp{T}
{E}_sq{T}:
s_waitcnt lgkmcnt(0)
""")
            MK("c9")
            A(f"{E}_fi{T}:")
        else:
            A(f"""
s_andn2_b32 s63, s63, s30
s_cbranch_scc1 {E}_sp{T}
s_waitcnt lgkmcnt(0)
""")
            MK("c9")
        def fin(qq):
            for t in range(nb):
                a = AC + 16 * t + 4 * qq; r = WB + 12 * t
                for k in range(4): A(f"v_add_f32 v{a+k}, v{a+k}, v{r+k}\nv_add_f32 v{r+4+k}, v{r+4+k}, v{r+8+k}")
                for k in range(4): A(f"v_add_f32 v{a+k}, v{a+k}, v{r+4+k}")
                A(f"v_cvt_pk_bf16_f32 v{a}, v{a}, v{a+1}\nv_cvt_pk_bf16_f32 v{a+1}, v{a+2}, v{a+3}")
                A(f"buffer_store_dwordx2 {vr(a,2)}, v{OA}, s[48:51], s{(55, 33, 34)[t] if P['rotq'] else 55} offen{P['usc']}")
                if t < nb - 1 and not P["rotq"]: A("s_add_u32 s55, s55, s53")
            if P["rotq"] > 1: A(f"s_cbranch_execz {E}_fo{T}")
            if P["wb2"] & 1 and ty == 0: A(f"s_cmp_lg_u32 s54, 0\ns_cbranch_scc1 {E}_nwb\ns_waitcnt vmcnt(0)\nbuffer_wbl2 sc1\n{E}_nwb:")
            if P["wb2"] & 4: A(f"s_waitcnt vmcnt(0)\nbuffer_wbl2 sc1")
            A("s_endpgm")
        if P["rotq"]: fin(0)
        for qq in range(4 if not P["rotq"] else 0):
            if qq < 3: A(f"s_cmp_lg_u32 s54, {qq}\ns_cbranch_scc1 {E}_fn{T}{qq+1}")
            fin(qq)
            if qq < 3: A(f"{E}_fn{T}{qq+1}:")
        for k in range(10 if not P["dyn"] else 0):
            A(f"""
{E}_rt{T}{k}:
s_sub_u32 s62, s62, 1
s_cbranch_scc1 {E}_bk{T}{k}
""")
            if P["rtsl"]: A(f"s_sleep {P['rtsl']}")
            for kk in range(k, 10): load(kk)
            A(f"s_waitcnt vmcnt({later(k)})\ns_branch {E}_ck{T}{k}")
    for y in YL: A(y)
    A(f"""
{E}_fb:
s_waitcnt lgkmcnt(0)
v_lshlrev_b32 v5, 4, v2
v_lshlrev_b32 v6, 4, v4
v_mul_u32_u24 v7, {SV}, v3
v_lshl_add_u32 v7, v4, 4, v7
v_add_u32 v15, {2*SV}, v7
v_mov_b32 v1, 0xff800000
s_add_u32 s18, s16, 40960
s_mov_b32 s26, s18
s_mov_b32 s27, 64
{E}_fb1:
s_add_u32 s30, s26, s17
buffer_load_dwordx4 {vr(KM,4)}, v5, s[44:47], s26 offen{SC}
buffer_load_dwordx2 {vr(KR,2)}, v6, s[44:47], s30 offen{SC}
s_waitcnt vmcnt(0)
v_mfma_f32_32x32x16_bf16 {vr(S[0],16)}, {vr(KM,4)}, {vr(QM,4)}, 0
v_mfma_f32_32x32x8_bf16 {vr(S[0],16)}, {vr(KR,2)}, {vr(QR,2)}, {vr(S[0],16)}
""")
    for k in range(8): A(f"v_max3_f32 v1, v1, v{S[0]+2*k}, v{S[0]+2*k+1}")
    A(f"""
s_add_u32 s26, s26, {TS}
s_sub_u32 s27, s27, 1
s_cmp_lg_u32 s27, 0
s_cbranch_scc1 {E}_fb1
v_mov_b32 v14, v1
v_permlane32_swap_b32 v1, v14
v_max_f32 v1, v1, v14
""")
    for i in range(16): A(f"v_sub_f32 v{CB+i}, 0, v1\nv_mov_b32 v{O+i}, 0")
    A(f"""
s_mov_b32 s26, s18
s_mul_i32 s28, s14, 320
s_add_u32 s28, s28, {QF + VOFF}
s_mov_b32 s27, 64
{E}_fb2:
s_add_u32 s30, s26, s17
buffer_load_dwordx4 {vr(KM,4)}, v5, s[44:47], s26 offen{SC}
buffer_load_dwordx2 {vr(KR,2)}, v6, s[44:47], s30 offen{SC}
s_mov_b64 exec, s[22:23]
buffer_load_dwordx4 {vr(V0,4)}, v7, s[44:47], s28 offen{SC}
buffer_load_dwordx4 {vr(V1,4)}, v15, s[44:47], s28 offen{SC}
s_mov_b64 exec, -1
s_waitcnt vmcnt(0)
""")
    M1(0); M2(0)
    Ex(0, *range(16)); Cv(0, *range(8))
    A(f"""
v_mfma_f32_32x32x16_bf16 {vr(O,16)}, {vr(V0,4)}, {vr(S[0],4)}, {vr(O,16)}
v_mfma_f32_32x32x16_bf16 {vr(O,16)}, {vr(V1,4)}, {vr(S[0]+8,4)}, {vr(O,16)}
s_add_u32 s26, s26, {TS}
s_add_u32 s28, s28, {TS}
s_sub_u32 s27, s27, 1
s_cmp_lg_u32 s27, 0
s_cbranch_scc1 {E}_fb2
s_nop 15
s_branch {E}_epi
""")
    A(f"{E}_ffn:")
    head_scalars()
    A("v_lshlrev_b32 v5, 4, v2")
    PA = 64
    poll_addr(PA, 30, 31)
    dma_addr(20, 21, 22, 17, 18)
    A(f"s_mov_b32 s19, {G0*4*TS}")
    WA, FX, FP, XA = 76, 79, 84, 85
    HA, WFA = 65, 66
    MB = ""
    if P["hl0"]: MB = f"s_lshl_b32 s56, s14, 13\ns_add_u32 s56, s56, {FL2 + 0x50000}\nv_lshlrev_b32 v{FP}, 7, v2"
    if P["mbx"]:
        assert LF == 2
        MB = f"s_and_b32 s30, s40, 1\ns_lshl_b32 s30, s30, 2\ns_lshr_b32 s31, s41, 3\ns_add_u32 s30, s30, s31\ns_lshl_b32 s30, s30, 8\ns_add_u32 s56, s56, s30\nv_lshlrev_b32 v{FP}, 2, v2"
    A(f"""
v_lshrrev_b32 v{FP}, {LF}, v2
v_and_b32 v16, {(1 << LF) - 1}, v2
v_lshlrev_b32 v{FP}, 7, v{FP}
v_lshl_add_u32 v{FP}, v16, 2, v{FP}
v_mov_b32 v16, {108*128}
s_lshr_b32 s14, s40, 1
s_lshl_b32 s14, s14, 3
s_and_b32 s24, s41, 7
s_add_u32 s14, s14, s24
s_lshl_b32 s56, s14, {13 - LF}
s_add_u32 s56, s56, {FL2}
{MB}
s_mul_i32 s30, s14, {27*128}
s_add_u32 s30, s30, {FH}
v_min_u32 v{HA}, 26, v4
v_lshl_add_u32 v{HA}, v{HA}, 7, s30
s_lshl_b32 s14, s14, 1
s_bfe_u32 s25, s41, 0x10003
s_xor_b32 s15, s25, 1
s_add_u32 s15, s15, s14
s_add_u32 s14, s14, s25
s_and_b32 s27, s40, 1
s_lshl_b32 s27, s27, 1
s_lshr_b32 s16, s41, 4
s_add_u32 s27, s27, s16
s_mul_i32 s30, s27, 108
s_add_u32 s30, s30, s29
s_lshl_b32 s30, s30, 7
s_add_u32 s30, s30, {FW}
v_min_u32 v{WFA}, 26, v4
v_lshl_add_u32 v{WFA}, v{WFA}, 9, s30
v_mad_u32_u24 v{WFA}, v3, v16, v{WFA}
s_and_b32 s24, s41, 15
s_mul_i32 s24, s24, 27
s_lshr_b32 s24, s24, 4
s_mul_i32 s24, s24, {P['frot']}
s_add_u32 s20, s17, {HF}
s_mul_i32 s23, s29, 20480
s_mul_i32 s28, s27, 5120
s_add_u32 s23, s23, s28
s_add_u32 s23, s23, {W2F}
s_add_u32 s22, s20, {27*4096}
s_lshl_b32 s16, s24, 12
s_add_u32 s16, s16, s20
s_mul_i32 s26, s24, 81920
s_add_u32 s26, s26, s23
s_mul_i32 s30, s14, {108*1024}
s_mul_i32 s31, s15, {108*1024}
v_add_u32 v8, s30, v5
v_add_u32 v9, s31, v5
s_lshl_b32 s30, s25, 12
s_lshl_b32 s31, s25, 11
s_add_u32 s31, s31, 1024
v_add_u32 v10, s30, v5
v_add_u32 v11, s31, v5
v_add_u32 v12, 2048, v5
v_mov_b32 v7, s29
v_lshlrev_b32 v7, 2, v7
v_and_b32 v1, 7, v2
v_lshlrev_b32 v1, 2, v1
v_and_b32 v15, 12, v1
v_mul_u32_u24 v{XA}, 1280, v4
v_lshl_add_u32 v{XA}, v3, 3, v{XA}
s_mul_i32 s52, s27, 320
s_lshl_b32 s53, s29, 4
s_add_u32 s53, s53, s52
s_mul_i32 s54, s14, 40960
s_mul_i32 s55, s15, 40960
s_add_u32 s54, s54, s53
s_add_u32 s55, s55, s53
s_lshl_b32 s57, s25, 8
s_lshl_b32 s58, s25, 7
s_add_u32 s52, s52, s57
s_sub_u32 s59, 64, s58
s_add_u32 s58, s58, 64
s_add_u32 s30, s55, s57
s_add_u32 s31, s55, s58
s_add_u32 s32, s54, s57
s_add_u32 s33, s54, s58
s_add_u32 s34, s54, 128
s_sub_u32 s54, s29, 1
s_add_u32 s53, s59, 204800
s_mul_i32 s53, s53, s54
s_add_u32 s52, s52, s53
s_mul_i32 s53, s54, 40960
s_add_u32 s53, s53, {WO}
v_lshrrev_b32 v16, 2, v2
v_and_b32 v17, 3, v2
v_mul_u32_u24 v16, 1280, v16
v_lshl_add_u32 v{WA}, v17, 4, v16
s_mul_i32 s54, s29, 5120
s_add_u32 s54, s54, {PR}
v_add_u32 v{FX}, s54, v5
s_sub_u32 s60, s59, 184320
s_lshl_b32 s61, s59, 1
s_sub_u32 s61, 20480, s61
s_cmp_eq_u32 s29, 3
s_cselect_b32 s54, 9, 0
s_cselect_b32 s55, 10, 0
s_cselect_b32 s63, 11, 0
s_cselect_b32 s3, 12, 0
s_cselect_b32 s62, 13, 0
s_cselect_b32 s57, s61, s60
s_cmp_eq_u32 s29, 2
s_cselect_b32 s62, 9, s62
s_cselect_b32 s58, s61, s60
s_cmp_eq_u32 s29, 1
s_cselect_b32 s59, s61, s60
v_mov_b32 v6, {RLY}
s_mov_b32 s10, {P['spin']}
s_mov_b32 s8, 0
""")
    MK("lS")
    A("s_waitcnt lgkmcnt(0)")
    if P["w2g"] < G0:
        for c in range(4): A(f"buffer_store_dwordx4 {vr(88+4*c,4)}, v5, s[64:67], s69 offen offset:{1024*c}{ST}")
    A(f"s_barrier\nds_read_b32 v0, v6 offset:4")
    MK("lB")
    C1 = P["c1"]
    def flag(v): A(f"v_mov_b32 v0, {v}\nds_write_b32 v7, v0")
    A("s_waitcnt lgkmcnt(0)\nv_readfirstlane_b32 s8, v0")
    if P["ldel"]: A(f"s_sleep {P['ldel']}")
    def gwait(G):
        m = (3 << (2 * G)) & 0xffffffff
        A(f"""
{E}_gw{G}:
s_and_b32 s9, s8, {hex(m)}
s_cmp_eq_u32 s9, {hex(m)}
s_cbranch_scc1 {E}_gg{G}
buffer_load_dwordx4 v[68:71], v{PA}, s[44:47], 0 offen sc1
s_waitcnt vmcnt(0)
v_min_u32 v69, v69, v70
v_cmp_ne_u32 s[8:9], 0, v69
s_and_b32 s8, s8, s9
s_sub_u32 s10, s10, 1
s_cselect_b32 s8, -1, s8
s_cselect_b32 s10, 0, s10
s_branch {E}_gw{G}
{E}_gg{G}:
""")
    W2G = P["w2g"]; W2FL = P["w2f"] if P["w2f"] is not None else 15
    GQ = VQ_()
    w2flag = "v_mov_b32 v0, 1\ns_mov_b64 exec, 1\nbuffer_store_dword v0, off, s[64:67], s68 sc1\ns_mov_b64 exec, -1"
    if W2G < G0:
        GQ.q = ["w2"] * 4
    for G in range(G0, 16):
        gwait(G); dma(G, 17, 18, "s19"); GQ.q += [G] * 4
        if G < 15: A(f"s_add_u32 s19, s19, {4*TS}")
        if G == W2G:
            for c in range(4): GQ.op("w2", f"buffer_store_dwordx4 {vr(88+4*c,4)}, v5, s[64:67], s69 offen offset:{1024*c}{ST}")
        if G == 2 + P["c0"]: GQ.need(2); flag(F_G1)
        if G == 5 + C1: GQ.need(5); flag(F_G5); MK("l4")
        if G == W2FL: GQ.need("w2"); GQ.op("wf", w2flag)
        if P["gthr"] and G >= P["gthr"][0] and G < 15: GQ.need(G - P["gthr"][1])
    assert W2FL >= W2G
    if P["wot"]:
        A(f"""
s_lshl_b32 s8, s41, 2
s_add_u32 s8, s8, s29
s_lshl_b32 s8, s8, 6
v_add_u32 v68, s8, v2
v_min_u32 v68, 6399, v68
v_mul_u32_u24 v69, 6554, v68
v_lshrrev_b32 v69, 16, v69
v_mul_u32_u24 v70, {1280 - 640}, v69
v_lshl_add_u32 v68, v68, 6, v70
s_and_b32 s8, s40, 1
s_mul_i32 s8, s8, 640
s_mov_b32 s48, s6
s_mov_b32 s49, s7
s_mov_b32 s50, 819200
s_mov_b32 s51, 0x20000
""")
        GQ.op("wot", "buffer_load_dword v70, v68, s[48:51], s8 offen")
    NAFT = len(GQ.q) - 1 - max(i for i, t in enumerate(GQ.q) if t == 15)
    if P["hgate"]:
        A(f"s_waitcnt vmcnt({NAFT})"); flag(F_ALL); MK("lF")
        A(f"""
{E}_hq:
ds_read_b32 v0, v1 offset:64
s_waitcnt lgkmcnt(0)
v_cmp_gt_u32 vcc, {P['hgate']}, v0
s_cbranch_vccz {E}_hw
s_sleep 4
s_branch {E}_hq
""")
    A(f"""
{E}_hw:
buffer_load_dword v68, v{HA}, s[44:47], 0 offen sc1
buffer_load_dword v69, v{WFA}, s[44:47], 0 offen sc1
s_waitcnt vmcnt(2)
""")
    flag(F_ALL)
    A(f"""
s_waitcnt vmcnt(0)
v_min_u32 v68, v68, v69
v_cmp_eq_u32 s[8:9], 0, v68
s_or_b32 s8, s8, s9
s_and_b32 s8, s8, 0x7ffffff
s_cbranch_scc0 {E}_hg
s_sub_u32 s10, s10, 1
s_cselect_b32 s10, 0, s10
s_cbranch_scc1 {E}_hg
s_sleep {P['hsl']}
s_branch {E}_hw
{E}_hg:
""")
    MK("lH")
    ACC = 88
    class VQ_:
        def __init__(s): s.q = []
        def op(s, tag, txt): A(txt); s.q.append(tag)
        def need(s, *tags):
            idx = max([i for i, t in enumerate(s.q) if t in tags], default=-1)
            if idx >= 0:
                A(f"s_waitcnt vmcnt({len(s.q) - 1 - idx})"); s.q = s.q[idx + 1:]
    VQ = VQ_()
    addr = {0: (9, 16), 1: (10, 26), 2: (11, 26), 3: (12, 26), 4: (8, 16)}
    def fl(i, j):
        b = 16 + 20 * (i % 3)
        VQ.op((i, j), f"buffer_load_dwordx4 {vr(b+4*j,4)}, v{addr[j][0]}, s[44:47], s{addr[j][1]} offen{P['fsc']}")
        if j == 4: A("s_add_u32 s16, s16, 4096\ns_add_u32 s26, s26, 81920\ns_cmp_eq_u32 s16, s22\ns_cselect_b32 s16, s20, s16\ns_cselect_b32 s26, s23, s26")
    for i in range(3):
        for j in range(5): fl(i, j)
    A(f"s_setprio {P['prio_ffn']}")
    blk = [(0, 1), (0, 2), (4, 1), (4, 2), (4, 3)]
    after = {1: [0], 2: [1], 3: [2], 4: [3, 4]}
    for i in range(27):
        b = 16 + 20 * (i % 3)
        for t, (hj, wj) in enumerate(blk):
            VQ.need((i, hj), (i, wj))
            c = "0" if i == 0 else vr(ACC + 16 * t, 16)
            A(f"v_mfma_f32_32x32x16_bf16 {vr(ACC+16*t,16)}, {vr(b+4*wj,4)}, {vr(b+4*hj,4)}, {c}")
            if i + 3 < 27:
                for j in after.get(t, []): fl(i + 3, j)
    RED = 2560
    MK("l2")
    if P["otl"]: A("s_load_dwordx2 s[20:21], s[0:1], 48\ns_mov_b32 s22, 2621440\ns_mov_b32 s23, 0x20000")
    A(f"s_setprio {P['prio_red']}")
    for q in range(4):
        A(f"s_sub_u32 s16, s29, {q+1}\ns_and_b32 s16, s16, 3\ns_mul_i32 s16, s16, 5120\ns_add_u32 s16, s16, {RED + q*15360}\nv_add_u32 v{8+q}, s16, v5")
    A(f"""
s_mul_i32 s17, s29, 15360
s_add_u32 s17, s17, {RED}
v_add_u32 v12, s17, v5
s_mov_b32 s48, s4
s_mov_b32 s49, s5
s_mov_b32 s50, 2621440
s_mov_b32 s51, 0x20000
s_mov_b32 s36, 0xffff0000
""")
    npw = [0]
    def pwait(reg, off, thr, sl=2):
        k = npw[0]; npw[0] += 1
        A(f"""
{E}_pw{k}:
ds_read_b32 v0, v{reg} offset:{off}
s_waitcnt lgkmcnt(0)
v_cmp_gt_u32 vcc, {thr}, v0
s_cbranch_vccz {E}_pwd{k}
s_sleep {sl}
s_branch {E}_pw{k}
{E}_pwd{k}:
""")
    pwait(1, 64, 2 * P["T1"], 4)
    for q in range(4):
        A(f"s_cmp_eq_u32 s29, {q}\ns_cbranch_scc1 {E}_nx{q}")
        for t in range(5): A(f"ds_write_b128 v{8+q}, {vr(ACC+16*t+4*q,4)} offset:{t*1024}")
        A(f"{E}_nx{q}:")
    flag(F_RW)
    pwait(15, 0, F_RW, 1)
    for t in range(5):
        for jj in range(3):
            A(f"ds_read_b128 {vr(16+12*t+4*jj,4)}, v12 offset:{jj * 5120 + t * 1024}")
    def perq(tag, body):
        for q in range(4):
            if q < 3: A(f"s_cmp_lg_u32 s29, {q}\ns_cbranch_scc1 {E}_{tag}{q+1}")
            body(q)
            if q < 3: A(f"s_branch {E}_{tag}d\n{E}_{tag}{q+1}:")
        A(f"{E}_{tag}d:")
    xr = lambda q, t: ACC + 16 * t + 4 * ((q + 1) & 3)
    perq("x", lambda q: [A(f"buffer_load_dwordx2 {vr(xr(q,t),2)}, v{XA}, s[48:51], s{30+t} offen") for t in range(5)])
    A("s_waitcnt lgkmcnt(0)"); flag(F_RR)
    MK("l7")
    A(f"""
s_setprio 3
s_mov_b32 s48, s6
s_mov_b32 s49, s7
s_mov_b32 s50, 819200
""")
    def fin(q):
        for t in range(5):
            b = 16 + 12 * t; o = ACC + 16 * t + 4 * q; x = xr(q, t)
            for k in range(4): A(f"v_add_f32 v{b+k}, v{b+k}, v{o+k}")
            for k in range(2): A(f"v_lshlrev_b32 v{o+2*k}, 16, v{x+k}\nv_and_b32 v{o+2*k+1}, s36, v{x+k}")
            for k in range(4): A(f"v_add_f32 v{b+4+k}, v{b+4+k}, v{b+8+k}")
            for k in range(4): A(f"v_add3_f32 v{b+k}, v{b+k}, v{b+4+k}, v{o+k}" if False else f"v_add_f32 v{b+k}, v{b+k}, v{b+4+k}")
            for k in range(4): A(f"v_add_f32 v{b+k}, v{b+k}, v{o+k}")
    def adds(n):
        A(f"s_setprio {P['prio_add']}\ns_waitcnt vmcnt({n})"); perq("fin", fin); A("s_setprio 3")
    A(f"s_cmp_eq_u32 s29, 0\ns_cbranch_scc1 {E}_nd")
    pwait(15, 0, F_RR, 1)
    for m in range(40):
        if m in (0, 9, 19, 29, 39): pwait(1, 64, {0: "s54", 9: "s55", 19: "s63", 29: "s3", 39: "s62"}[m], P['wsl'])
        A(f"s_add_u32 m0, s53, {m*1024}\nbuffer_load_dwordx4 v{WA}, s[48:51], s52 offen lds")
        if m % 10 < 9: A("s_add_u32 s52, s52, 20480")
        elif m < 39: A(f"s_add_u32 s52, s52, s{57 + m // 10}")
    MK("l8")
    A(f"s_waitcnt vmcnt(0)\n{E}_nd:"); flag(F_WO)
    MK("l9")
    if P["otl"]:
        A(f"buffer_load_dword v81, v{XA}, s[20:23], s30 offen\nbuffer_load_dword v82, v{XA}, s[20:23], s32 offen")
    A(f"s_cmp_eq_u32 s29, 0\ns_cbranch_scc1 {E}_pl")
    adds(0)
    def fxw():
        for t in range(5): A(f"ds_write_b128 v{FX}, {vr(16+12*t,4)} offset:{t*1024}")
        flag(F_FX)
    pwait(1, 64, 16, P['rsl'])
    fxw()
    A(f"s_waitcnt lgkmcnt(0)\ns_endpgm\n{E}_pl:")
    PV = 80
    A(f"s_waitcnt vmcnt(0)\nv_mov_b32 v{PV}, 0\nv_mov_b32 v6, 0\ns_mov_b32 s57, {P['spin']}\ns_mov_b32 s58, 0\ns_mov_b32 s59, 0")
    PADP = f"s_mov_b32 s59, {P['pper']}"
    if P["padp"]:
        A("s_mov_b64 s[60:61], 0")
        PADP = f"s_bcnt0_i32_b64 s59, s[60:61]\ns_lshr_b32 s59, s59, {P['padp'][0]}\ns_max_u32 s59, s59, {P['padp'][1]}\ns_min_u32 s59, s59, {P['pper']}"
    if P["pfin"]: A(f"s_setprio {P['prio_add']}"); fin(0); A("s_setprio 3")
    if P["pgate"]: pwait(1, 64, P["pgate"], P['wsl'])
    A(f"""
{E}_rp:
s_sub_u32 s59, s59, 1
s_cbranch_scc0 {E}_np
{PADP}
s_waitcnt vmcnt({P['pd'] - 1})
{"v_cmp_eq_u32 vcc, 0, v" + str(PV) + chr(10) + "s_mov_b64 exec, vcc" if P["pmask"] else ""}
buffer_load_dword v{PV}, v{FP}, s[44:47], s56 offen{P['psc']}
{"s_mov_b64 exec, -1" if P["pmask"] else ""}
{E}_np:
ds_read_b32 v0, v1 offset:64
v_cmp_ne_u32 s[60:61], 0, v{PV}
s_sub_u32 s57, s57, 1
s_cselect_b64 s[60:61], -1, s[60:61]
s_cselect_b32 s57, 0, s57
v_mov_b32 v8, s60
v_mov_b32 v9, s61
ds_write_b64 v6, v[8:9] offset:{MSK}
s_cmp_lg_u32 s58, 0
s_cbranch_scc1 {E}_rr
s_waitcnt lgkmcnt(1)
v_cmp_gt_u32 vcc, 16, v0
s_cbranch_vccnz {E}_rs
""")
    if not P["pfin"]: fin(0)
    fxw()
    A(f"""
s_mov_b32 s58, 1
{E}_rr:
s_cmp_eq_u64 s[60:61], -1
s_cbranch_scc1 {E}_go
{E}_rs:
s_sleep {P['rsl']}
s_branch {E}_rp
{E}_go:
s_waitcnt vmcnt(0) lgkmcnt(0)
{"s_sleep " + str(P["wb2d"]) + chr(10) + "buffer_wbl2 sc1" if P["wb2"] & 2 else ""}
{E}_end:
s_endpgm
""")
    A.end(name, 168, 72)
```

```python
from gen import *
R = dict(pfin=1, rotq=1)
V = dict(a=dict(), b=R, c=dict(R, hcw=4), d=dict(R, hcw=2), e=dict(R, hint=(7, 3), lsc0=('', ' sc1')), f=dict(R, pmask=1, padp=(2, 2), pd=2, pper=12))
for k, v in V.items(): build5(f"h_{k}.s", P=v, mod=kh)
build5(f"c_y.s", P=dict(R, hcw=4, hint=(7, 3), lsc0=('', ' sc1'), pmask=1, padp=(2, 2), pd=2, pper=12, spin=3000), mod=kh)
```

```python
from asmlib import *
from layout import *

NP = 4
DEF = dict(cpf=None, kpar=0, kbit=0, krot=(1, 4), st=" sc1", lprio=3, gtab=None, cntp=8, eprio=3,
           offs=96.0, T1=4, prio_ffn=0, prio_red=1, prio_add=0, c1=3, prios=(3, 2, 1, 0), rot=0, frot=1,
           order="M1 E8 E9 C0 C1 E10 E11 M2 K C2 C3 E12 E13 E14 E15 M3 C4 C5 N0 N1 C6 C7 N2 N3 M4 V N4 N5 N6 N7", npre=8,
           osc=" sc1", lsc=" sc1", psl=2, spin=300000, rsl=1, wsl=8, G0=2, hint=(7, 4), bq=2, pgate=13, rtsl=0, pd=1, pper=12,
           psc=' sc1', hsc=' sc1', qsl=0, hst=(0, 0, 1, 1, 2, 2, 3, 3), ofp=5, hfl=(1, 1), w2g=-1, marks=None, hsl=2, noh=0, noof=0, now2=0, dsc=' sc1', fsc=' sc1', qdel=0, hgate=2,
           n=5, init=6, lord=None, ss=None, qtry=99, cntl=32, qprio=1, hprio=1, pw=3, sched=((0, 1), (2, 3), (4, 5), ()), pk=0,
           pf=None, pf2=None, dsl=1, qsp=0, rws=2, nold=0, nostat=0, D=2, bj=0, fj=0, schb=((0, 1), (2, 3), (4, 5), ()), csx=(38, 1),
           c0=3, xb=81920, wb=16384, ub=16384, show=0, sprio=(None, None), prp=(0, 1, 2), pgw=1, w2t=3, w2at=None, hpre=0, ofi=3, hpk=1, spf=(6, 4), hcb=8, hskip=0, ldel=6, gthr=None, hs1=None, w2f=2, wot=1, bal=0, balp=(1, 3), balo=0, hnb=(2, 4, 6), dbghw=0, yl=None, tla=0, tlb=0, tlm=3, kvd=None, kvp=0, hcw=0, wb2=0, wb2d=0, usc='', otl=0, rotq=1, pfin=1, hl0=0, pmask=0, padp=None, mbx=0, dyn=0, dsl2=2, dper=5, lsc0=(' sc1', ' sc1'), l2p=0, l2u=1, l2k=2, l2h=1, l2d=5, l2m=3, sdot=(), hsx=0, hsp=None, hsf=8, xsw=0, pal=None, qp2=0, qmk=1, gsh=0, gsl=1)
WO = 1024; PR = 143360; MSK = 96; SENT = 128; FREE = 123904
LAND = 160; DONE = 176; PUB = 192; CSF = 208; RLY = 224; BAL = 240
F_G1, F_G5, F_ALL, F_RW, F_RR, F_WO, F_FX = 1, 2, 3, 4, 5, 6, 7
LF = 2
HD = [0, 0, 0, 1, 2, 2, 2, 3, 4, 4, 4, 4, 5, 5, 5, 5]
H1 = (2, 3, 6, 7, 11)

def gen_f(A, name, P=None):
    P = dict(DEF, **(P or {}))
    XS = 1024; RB = 1536; CSQ = 2048
    N = P["n"]; TEND = 19 - N
    tx = lambda k: k if k < N else 10 + k - N
    last = lambda it: it[1] if it[0] == "w" else tx(it[1])
    lord = P["lord"]
    if lord is None:
        lord = [(kd, k) for k in range(N) for kd in "xwu"] + [(kd, k) for k in range(N, 10) for kd in "xw"] + [("u", k) for k in range(N, 10)]
        if N == 5: lord.remove(("u", 5)); lord.insert(lord.index(("x", 9)), ("u", 5))
    else: lord = [(t[0], int(t[1:])) for t in lord.split()]
    assert sorted(lord) == sorted((kd, k) for kd in "xwu" for k in range(10))
    SLOT = {}; EV = {}; avail = list(range(1, 10)); todo = list(lord); occ = {}
    for ev in range(-2, TEND + 1):
        avail += [SLOT[it] for it in SLOT if last(it) == ev]
        while todo and avail and not (ev == -2 and len(SLOT) >= P["init"]):
            it = todo.pop(0)
            late = last(it) >= 10
            win = {"x": P["xb"], "w": P["wb"], "u": P["ub"]}[it[0]] // 16384
            sl = min(avail, key=lambda q: (late and q == 1, not win <= q < win + 4, -q if late else q))
            avail.remove(sl); SLOT[it] = sl; EV[it] = ev; occ[sl] = last(it)
    assert not todo
    SS = P["ss"] or [[t] for t in range(N - 1)] + [[N - 1, N]] + [[t + 1] for t in range(N, 9)] + [[]]
    assert sorted(sum(SS, [])) == list(range(10)) and not SS[9]
    for t in range(10):
        for k in SS[t]: assert EV[("x", k)] <= t - 2 and t <= last(("x", k)), (t, k)
        for it in [("x", t), ("w", t)] + ([("u", t)] if t < N else []): assert EV[it] <= t - 2, it
    assert EV[("u", N)] <= 8
    S1LAST = max(occ[1], 10)
    dead = sorted(range(2, 10), key=lambda q: occ[q])
    W2S, CSS = dead[0], dead[1]
    assert occ[CSS] <= TEND - 3
    if P["show"]: print({ev: [f"{k}{i}@{SLOT[(k, i)]}" for (k, i) in lord if EV[(k, i)] == ev] for ev in sorted(set(EV.values()))}, occ, W2S, CSS)
    ST = P["st"]; SC = " sc1"
    G0 = P["G0"]
    A.begin(name)
    E = "L_f"
    def MK(tag):
        if P["marks"] and tag in P["marks"]: A(f"; MARK {P['marks'][tag]}")
    hd = sum(v << (4 * i) for i, v in enumerate(HD))
    GT = ""
    if P["gtab"]:
        t = sum(v << (4 * i) for i, v in enumerate(P["gtab"]))
        GT = f"s_lshl_b32 s15, s15, 2\ns_mov_b32 s16, {hex(t & 0xffffffff)}\ns_mov_b32 s17, {hex(t >> 32)}\ns_lshr_b64 s[16:17], s[16:17], s15\ns_and_b32 s15, s16, 15"
    CP = ""
    if P["cpf"]:
        n0, n1 = P["cpf"]
        CP = f"""s_getpc_b64 s[42:43]
{E}_pc:
s_lshr_b32 s3, s2, 3
s_mul_i32 s3, s3, {n1}
v_mov_b32 v3, s3
v_cmp_gt_u32 vcc, {n0}, v0
v_cndmask_b32 v3, v3, 0, vcc
v_add_lshl_u32 v3, v3, v0, 7
v_min_u32 v3, {E}_end-{E}_pc, v3
v_mov_b32 v5, s43
v_add_co_u32 v4, vcc, s42, v3
v_addc_co_u32 v5, vcc, 0, v5, vcc
v_cmp_gt_u32 vcc, {n0 + n1}, v0
s_and_b64 exec, exec, vcc
s_cbranch_execz {E}_np0
global_load_dword v167, v[4:5], off
{E}_np0:
s_mov_b64 exec, -1"""
    COMMON = f"""
s_and_b32 s14, s40, 1
s_lshl_b32 s14, s14, 3
s_and_b32 s15, s41, 7
s_add_u32 s14, s14, s15
s_lshr_b32 s15, s40, 1
s_lshl_b32 s15, s15, 2
s_lshr_b32 s16, s41, 3
s_add_u32 s15, s15, s16
{GT}
s_lshl_b32 s17, s15, 2
s_mov_b32 s18, {hex(hd & 0xffffffff)}
s_mov_b32 s19, {hex(hd >> 32)}
s_lshr_b64 s[18:19], s[18:19], s17
s_and_b32 s18, s18, 15
s_lshl_b32 s17, s15, 1
s_sub_u32 s19, s17, s18
s_mov_b32 s18, {sum(1 << g for g in H1)}
s_bitcmp1_b32 s18, s15
s_cselect_b32 s18, 1, 2
s_mov_b32 s46, {WS_BYTES}
s_mov_b32 s47, 0x20000
"""
    A(f"""
s_cmp_ge_u32 s2, 256
s_cbranch_scc1 {E}_end
{CP}
v_lshrrev_b32 v1, 6, v0
s_load_dwordx2 s[12:13], s[0:1], 64
v_readfirstlane_b32 s29, v1
v_and_b32 v2, 63, v0
s_and_b32 s40, s2, 7
{"s_xor_b32 s40, s40, " + str(P["xsw"]) if P["xsw"] else ""}
s_lshr_b32 s41, s2, 3
s_cmp_lt_u32 s29, 8
s_cbranch_scc1 {E}_comp
s_load_dwordx4 s[4:7], s[0:1], 0
s_load_dwordx4 s[8:11], s[0:1], 32
""")
    A(COMMON)
    if P["dbghw"]: A("s_getreg_b32 s79, hwreg(HW_REG_HW_ID)")
    ra, rb = P["krot"]
    A(f"""
s_setprio {P['lprio']}
s_sub_u32 s29, s29, 8
s_mov_b32 s22, 2621440
s_mov_b32 s23, 0x20000
s_mov_b32 s27, 0x20000
s_mov_b32 s50, 2211840
s_mov_b32 s51, 0x20000
s_cmp_lt_u32 s15, 15
s_cselect_b32 s26, 2457600, 0
v_lshrrev_b32 v3, 3, v2
s_lshl_b32 s30, s29, 5
s_lshl_b32 s31, s14, 7
s_add_u32 s30, s30, s31
v_add_u32 v3, s30, v3
v_lshrrev_b32 v4, 4, v2
v_and_b32 v5, 7, v2
v_xor_b32 v6, v5, v4
v_xor_b32 v7, 4, v6
s_movk_i32 s32, 1280
v_mul_lo_u32 v3, v3, s32
v_lshl_add_u32 v10, v6, 4, v3
v_lshl_add_u32 v11, v7, 4, v3
v_add_u32 v11, 10240, v11
v_and_b32 v5, 15, v2
v_lshlrev_b32 v6, 2, v4
v_xor_b32 v5, v5, v6
s_lshl_b32 s30, s29, 4
v_add_u32 v4, s30, v4
v_mul_u32_u24 v6, 3840, v4
v_mul_u32_u24 v7, 3456, v4
s_lshl_b32 s31, s17, 7
s_lshl_b32 s33, s19, 7
v_lshl_add_u32 v6, v5, 4, v6
v_lshl_add_u32 v7, v5, 4, v7
v_add_u32 v12, s31, v6
v_add_u32 v44, s33, v7
s_lshl_b32 s33, s18, 3
v_mov_b32 v8, 0x7fffffff
v_cmp_gt_u32 vcc, s33, v5
s_lshr_b32 s35, s40, 1
s_mul_i32 s35, s35, {ra}
s_and_b32 s36, s40, 1
s_mul_i32 s36, s36, {rb}
s_add_u32 s35, s35, s36
s_bfe_u32 s36, s41, {0x10000 + P['kbit']}
s_mul_i32 s36, s36, {P['kpar']}
s_add_u32 s35, s35, s36
s_cmp_ge_u32 s35, 10
s_cselect_b32 s36, 10, 0
s_sub_u32 s35, s35, s36
""")
    for _ in range((3 * ra + rb + P['kpar']) // 10 - 1): A("s_cmp_ge_u32 s35, 10\ns_cselect_b32 s36, 10, 0\ns_sub_u32 s35, s35, s36")
    for j in range(1, 4): A(f"v_add_u32 v{12+j}, {j*4*3840}, v12\nv_add_u32 v{44+j}, {j*4*3456}, v44")
    for j in range(4): A(f"v_cndmask_b32 v{44+j}, v8, v{44+j}, vcc")
    A(f"""
s_mul_i32 s36, s35, {64*3840}
s_mul_i32 s39, s35, {64*3456}
s_lshl_b32 s35, s35, 7
s_lshl_b32 s37, s29, 12
{"; MARK " + str(P["marks"]["lJ"]) if P["marks"] and "lJ" in P["marks"] else ""}
s_waitcnt lgkmcnt(0)
{"; MARK " + str(P["marks"]["lK"]) if P["marks"] and "lK" in P["marks"] else ""}
s_mov_b32 s20, s4
s_mov_b32 s21, s5
s_mov_b32 s24, s6
s_mov_b32 s25, s7
s_mov_b32 s48, s8
s_mov_b32 s49, s9
""")
    if P["nold"]: A("s_mov_b32 s22, 0\ns_mov_b32 s26, 0\ns_mov_b32 s50, 0")
    class VQ_:
        def __init__(s): s.q = []
        def op(s, tag, txt): A(txt); s.q.append(tag)
        def need(s, *tags):
            idx = max([i for i, t in enumerate(s.q) if t in tags], default=-1)
            if idx >= 0:
                A(f"s_waitcnt vmcnt({len(s.q) - 1 - idx})"); s.q = s.q[idx + 1:]
    LQ = VQ_()
    def ld(kind, st):
        base = SLOT[(kind, st)] * 16384
        o = []
        for j in range(4):
            if kind == "x": t = f"buffer_load_dwordx4 v{10+(j&1)}, s[20:23], s{35 if j < 2 else 30} offen lds"
            elif kind == "w": t = f"buffer_load_dwordx4 v{12+j}, s[24:27], s36 offen lds"
            else: t = f"buffer_load_dwordx4 v{44+j}, s[48:51], s39 offen lds"
            t = f"s_add_u32 m0, s37, {base + j*1024}\n" + t
            if kind == "x" and j == 0: t = "s_add_u32 s30, s35, 20480\n" + t
            if j == 3:
                r, d = {"x": (35, 128), "w": (36, 64*3840), "u": (39, 64*3456)}[kind]
                t += f"\ns_add_u32 s{r}, s{r}, {d}\ns_cmp_eq_u32 s{r}, {10*d}\ns_cselect_b32 s{r}, 0, s{r}"
            o.append(((kind, st), t))
        return o
    def issue_at(f, fill=(), sp=None):
        ps = sum([ld(*l) for l in lord if EV[l] == f], [])
        fill = list(fill); nf = max(len(ps) - 1, 1); per = (len(fill) + nf - 1) // nf
        if sp is not None: per = 0
        for i, (tag, t) in enumerate(ps):
            LQ.op(tag, t)
            if i >= 1 or len(ps) == 1:
                for o in fill[:per]: A(o)
                fill = fill[per:]
        if sp is not None and fill: fill = [f"s_setprio {sp}"] + fill + [f"s_setprio {P['lprio']}"]
        for o in fill: A(o)
    issue_at(-2)
    MK("lI")
    A(f"""
s_load_dwordx2 s[6:7], s[0:1], 16
v_mov_b32 v1, 0
v_lshrrev_b32 v0, 2, v2
v_cmp_eq_u32 vcc, {DONE // 16}, v0
v_cndmask_b32 v1, v1, 12, vcc
v_mov_b32 v0, 0x100
v_cmp_eq_u32 vcc, {RLY // 4}, v2
v_cndmask_b32 v1, v1, v0, vcc
v_lshlrev_b32 v7, 2, v2
ds_write_b32 v7, v1
v_and_b32 v1, 3, v2
v_lshlrev_b32 v1, 2, v1
s_lshl_b32 s30, s29, 2
v_mov_b32 v7, s30
""")
    A(f"""
s_mov_b32 s44, s12
s_mov_b32 s45, s13
s_mov_b32 s52, s10
s_mov_b32 s53, s11
s_mov_b32 s55, 0x20000
s_lshl_b32 s57, s29, 8
s_add_u32 s58, s57, s2
s_min_u32 s57, s58, 539
s_mul_i32 s59, s57, 13108
s_lshr_b32 s59, s59, 16
s_mul_i32 s60, s59, 5
s_sub_u32 s60, s57, s60
s_mul_i32 s61, s59, 20480
s_lshl_b32 s62, s60, 8
s_add_u32 s62, s62, s61
s_add_u32 s63, s62, 5120
v_lshrrev_b32 v3, 5, v2
v_and_b32 v4, 31, v2
v_mul_u32_u24 v5, 10240, v3
v_lshl_add_u32 v98, v4, 3, v5
s_cmp_ge_u32 s58, 540
s_cselect_b32 s54, 0, 2211840
s_mov_b32 s64, s12
s_mov_b32 s65, s13
s_mov_b32 s67, 0x20000
s_cselect_b32 s66, 0, {WS_BYTES}
v_lshrrev_b32 v5, 3, v4
v_and_b32 v6, 7, v2
v_lshlrev_b32 v5, 10, v5
v_lshl_add_u32 v5, v6, 6, v5
v_lshl_add_u32 v5, v3, 9, v5
s_add_u32 s34, s37, {W2S * 16384}
v_add_u32 v48, s34, v5
v_lshlrev_b32 v6, 4, v2
v_add_u32 v49, s34, v6
v_add_u32 v50, s37, v6
v_add_u32 v51, 65536, v50
v_add_u32 v52, 131072, v50
s_mov_b32 s56, 0xffff0000
v_and_b32 v53, 3, v2
v_lshrrev_b32 v54, 3, v2
v_lshl_add_u32 v54, v53, 3, v54
s_lshl_b32 s30, s29, 5
v_add_u32 v54, s30, v54
v_lshlrev_b32 v54, 2, v54
s_lshl_b32 s69, s60, 12
s_add_u32 s69, s69, s61
s_add_u32 s69, s69, {W2F}
s_mul_i32 s68, s60, 108
s_add_u32 s68, s68, s59
s_lshl_b32 s68, s68, 7
s_add_u32 s68, s68, {FW}
s_waitcnt lgkmcnt(0)
""")
    W2R = 100
    def w2loads():
        for j in range(8):
            LQ.op("w2", f"buffer_load_dwordx2 {vr(W2R+2*j,2)}, v98, s[52:55], s{62 + (j >> 2)} offen offset:{(j & 3) * 1280}")
    SD, SA, ST_ = 16, 32, 40
    for i in range(8): A(f"v_mov_b32 v{SA+i}, 0")
    def sreads(k, d, ar=50):
        a = SLOT[("x", k)] * 16384
        return [f"ds_read_b128 {vr(d+4*j,4)}, v{ar + (a >> 16)} offset:{(a & 0xffff) + j*1024}" for j in range(4)]
    if P["sdot"]: A("v_mov_b32 v72, 0x3f803f80")
    def sops(d, t=-1, SA=SA, ST_=ST_, msk="s56"):
        ops = []
        if t in P["sdot"]:
            for i in range(4):
                for j in range(4):
                    x = d + 4*j + i
                    ops += [f"v_dot2c_f32_bf16 v{SA+2*j}, v{x}, v72", f"v_dot2c_f32_bf16 v{SA+1+2*j}, v{x}, v{x}"]
            return ops
        for i in range(4):
            for jp in range(2):
                for e, j in enumerate((2*jp, 2*jp+1)):
                    x = d + 4*j + i
                    ops += [f"v_lshlrev_b32 v{ST_+2*e}, 16, v{x}", f"v_and_b32 v{ST_+1+2*e}, {msk}, v{x}"]
                for q in range(2):
                    for e, j in enumerate((2*jp, 2*jp+1)):
                        u = ST_ + 2*e + q
                        ops += [f"v_add_f32 v{SA+2*j}, v{SA+2*j}, v{u}", f"v_fmac_f32 v{SA+1+2*j}, v{u}, v{u}"]
        return ops
    def sred(SA=SA, q=53):
        o = []
        for m in ("quad_perm:[1,0,3,2]", "quad_perm:[2,3,0,1]", "row_half_mirror"):
            for i in range(8): o.append(f"v_add_f32_dpp v{SA+i}, v{SA+i}, v{SA+i} {m} row_mask:0xf bank_mask:0xf")
        for j in range(1, 4):
            o += [f"v_cmp_eq_u32 vcc, {j}, v{q}", f"v_cndmask_b32 v{SA}, v{SA}, v{SA+2*j}, vcc", f"v_cndmask_b32 v{SA+1}, v{SA+1}, v{SA+1+2*j}, vcc"]
        return o
    def sfin(SA=SA, ad=54, t0=31, t1=32):
        return f"""s_mov_b32 s{t0}, 0x3acccccd
s_mov_b32 s{t1}, 0x3727c5ac
v_mul_f32 v{SA}, s{t0}, v{SA}
v_mul_f32 v{SA+2}, v{SA}, v{SA}
v_fma_f32 v{SA+1}, v{SA+1}, s{t0}, -v{SA+2}
v_max_f32 v{SA+1}, 0, v{SA+1}
v_cvt_pk_bf16_f32 v{SA+1}, 0, v{SA+1}
v_add_f32 v{SA+1}, s{t1}, v{SA+1}
v_cvt_pk_bf16_f32 v{SA+1}, 0, v{SA+1}
v_sqrt_f32 v{SA+1}, v{SA+1}
ds_write_b32 v{ad}, v{SA} offset:{XS}
s_nop 0
v_cvt_pk_bf16_f32 v{SA+1}, 0, v{SA+1}
v_rcp_f32 v{SA+1}, v{SA+1}
s_nop 0
ds_write_b32 v{ad}, v{SA+1} offset:{RB}""".split("\n")
    PS = 10240
    lastS = max(t for t in range(10) if SS[t])
    def work(t):
        fill = []
        if not P["nostat"] and not (P["hsx"] and t >= P["hsx"]):
            for i, k in enumerate(SS[t]):
                for o in sreads(k, SD if i == 0 else 56 + 16 * (i - 1)): A(o)
            for i, k in enumerate(SS[t]):
                fill += [f"s_waitcnt lgkmcnt({4 * (len(SS[t]) - 1 - i)})"] + sops(SD if i == 0 else 56 + 16 * (i - 1), t)
        if P["hsx"]:
            if t == P["hsx"]: fill += sred() + [f"ds_write_b32 v54, v{SA} offset:{PS}", f"ds_write_b32 v54, v{SA+1} offset:{PS+512}", "s_waitcnt lgkmcnt(0)"]
        elif t == lastS + 1: fill += sred() + sfin() + ["s_waitcnt lgkmcnt(0)"]
        issue_at(t - 1, fill, P['sprio'][t >= N])
        if t == P["w2t"]:
            A("v_bfe_u32 v55, v2, 1, 4\nv_mul_u32_u24 v55, 1280, v55\nv_and_b32 v0, 1, v2\nv_lshl_add_u32 v55, v0, 7, v55")
            LQ.op("w2t", "buffer_load_dword v55, v55, s[52:55], s62 offen")
        if t == P["w2at"]: w2loads()
    for st in range(10):
        if st >= 1: work(st - 1)
        MK(f"i{st-1}")
        LQ.need(("x", st), ("w", st), *([("u", st)] if st < N else []), *[("x", k) for k in SS[st]])
        MK(f"a{st-1}")
        A("s_barrier")
        MK(f"s{st-1}")
    work(9)
    LQ.need(("u", N))
    A("s_barrier")
    MK("lA")
    npd = [0]
    def dwait(st):
        k = npd[0]; npd[0] += 1
        A(f"""
{E}_dw{k}:
ds_read_b32 v0, v1 offset:{DONE}
s_waitcnt lgkmcnt(0)
v_cmp_gt_u32 vcc, {st + 3}, v0
s_cbranch_vccz {E}_dx{k}
{"s_sleep " + str(P['dsl']) if P['dsl'] else ""}
s_branch {E}_dw{k}
{E}_dx{k}:
""")
    def land(t):
        LQ.need(("u", t - 10 + N))
        A(f"v_mov_b32 v0, {t}\nds_write_b32 v7, v0 offset:{LAND}")
        MK(f"L{t}")
    lastf = max(EV.values())
    nl = 11
    def lands(ev):
        nonlocal nl
        while nl <= TEND and EV[("u", nl - 10 + N)] <= ev:
            land(nl); nl += 1
    def pubwait():
        A(f"""
{E}_pbw:
ds_read_b32 v0, v1 offset:{PUB}
s_waitcnt lgkmcnt(0)
v_cmp_eq_u32 vcc, 0, v0
s_cbranch_vccz {E}_pbx
s_sleep {P['dsl']}
s_branch {E}_pbw
{E}_pbx:
""")
        MK("lP")
    for ev in range(9, max(lastf, 10) + 1):
        if ev == 10 and P["pgw"]: pubwait()
        if 10 <= ev <= lastf: dwait(ev); MK(f"D{ev}")
        issue_at(ev)
        if ev == max(lastf, 10) and P['w2at'] is None: w2loads()
        lands(ev)
    MK("lL")
    A("s_mov_b32 s30, 0x05040100\ns_mov_b32 s31, 0x07060302")
    LQ.need("w2")
    for c in range(4):
        for k in range(4): A(f"v_perm_b32 v{56+4*c+k}, v{W2R+2+4*k+(c>>1)}, v{W2R+4*k+(c>>1)}, s{30+(c&1)}")
    if occ[W2S] > max(lastf, 9): dwait(occ[W2S])
    for c in range(4): A(f"ds_write_b128 v48, {vr(56+4*c,4)} offset:{16*c}")
    for c in range(4): A(f"ds_read_b128 {vr(88+4*c,4)}, v49 offset:{1024*c}")
    A(f"s_branch {E}_ffn")

    def head_scalars():
        A(f"""
s_lshl_b32 s14, s40, 2
s_lshr_b32 s15, s41, 3
s_add_u32 s14, s14, s15
s_mul_i32 s16, s14, 5
s_add_u32 s16, s16, 1
s_lshr_b32 s16, s16, 1
s_lshl_b32 s16, s16, 9
s_add_u32 s16, s16, {QF}
s_movk_i32 s17, 1024
s_bitcmp1_b32 s14, 0
s_cselect_b32 s17, -504, s17
s_and_b32 s19, s41, 7
s_lshl_b32 s15, s19, 3
s_mul_i32 s19, s19, {8 * TS * P['rot']}
""")
    def poll_addr(dst, t0, t1):
        A(f"""
s_mul_i32 s{t0}, s14, 20
s_add_u32 s{t1}, s{t0}, 19
s_lshr_b32 s{t0}, s{t0}, 6
s_lshr_b32 s{t1}, s{t1}, 6
s_sub_u32 s{t1}, s{t1}, s{t0}
s_lshl_b32 s{t0}, s{t0}, 12
s_add_u32 s{t0}, s{t0}, {FQ}
s_lshl_b32 s{t1}, s{t1}, 12
v_mul_u32_u24 v{dst}, s{t1}, v3
v_lshl_add_u32 v{dst}, v4, 7, v{dst}
v_add_u32 v{dst}, s{t0}, v{dst}
""")
    A(f"{E}_comp:\ns_load_dwordx4 s[64:67], s[0:1], 48")
    if P["dbghw"]: A("s_getreg_b32 s79, hwreg(HW_REG_HW_ID)")
    if P["tla"]:
        A(f"""
s_cmp_ge_u32 s29, 4
s_cbranch_scc1 {E}_nt
s_load_dwordx4 s[4:7], s[0:1], 0
s_load_dwordx4 s[8:11], s[0:1], 32
s_bitcmp1_b32 s29, 1
s_waitcnt lgkmcnt(0)
s_cselect_b64 s[4:5], s[8:9], s[4:5]
s_cselect_b64 s[6:7], s[10:11], s[6:7]
s_bitcmp1_b32 s29, 0
s_cselect_b64 s[4:5], s[6:7], s[4:5]
s_mov_b32 s3, 0x200000
s_cmp_ge_u32 s29, {P["tla"]}
s_cbranch_scc1 {E}_nu
s_load_dword s63, s[4:5], 0
s_load_dword s63, s[4:5], s3
s_branch {E}_nu
{E}_nt:
""")
    def l2pre():
        A(COMMON)
        A(f"""
s_lshr_b32 s20, s40, 1
s_mul_i32 s20, s20, {ra}
s_and_b32 s21, s40, 1
s_mul_i32 s21, s21, {rb}
s_add_u32 s20, s20, s21
s_add_u32 s20, s20, s29
s_add_u32 s20, s20, {P['l2k']}
s_cmp_ge_u32 s20, 10
s_cselect_b32 s21, 10, 0
s_sub_u32 s20, s20, s21
s_cmp_ge_u32 s20, 10
s_cselect_b32 s21, 10, 0
s_sub_u32 s20, s20, s21
s_lshl_b32 s21, s14, 2
s_lshr_b32 s22, s41, 3
s_add_u32 s21, s21, s22
s_mul_i32 s21, s21, {32 * 1280}
s_lshl_b32 s22, s20, 7
s_add_u32 s21, s21, s22
v_mul_u32_u24 v6, 1280, v2
v_add_u32 v6, s21, v6
s_lshl_b32 s20, s20, 3
s_and_b32 s21, s41, 7
s_add_u32 s20, s20, s21
s_lshl_b32 s20, s20, 3
v_bfe_u32 v3, v2, 1, 3
v_add_u32 v3, s20, v3
v_and_b32 v4, 1, v2
s_min_u32 s21, s17, 28
v_add_lshl_u32 v7, v4, s21, 7
v_mul_u32_u24 v8, 3840, v3
v_add_u32 v7, v7, v8
s_sub_u32 s21, s18, 1
v_min_u32 v4, s21, v4
v_add_lshl_u32 v4, v4, s19, 7
v_mul_u32_u24 v8, 3456, v3
v_add_u32 v8, v4, v8
s_waitcnt lgkmcnt(0)
""")
        if P["l2p"] == 3:
            A(f"""
v_mov_b32 v3, s5
v_mov_b32 v4, s7
v_mov_b32 v53, s9
v_add_co_u32 v6, vcc, s4, v6
v_addc_co_u32 v3, vcc, 0, v3, vcc
v_add_co_u32 v7, vcc, s6, v7
v_addc_co_u32 v4, vcc, 0, v4, vcc
v_add_co_u32 v52, vcc, s8, v8
v_addc_co_u32 v53, vcc, 0, v53, vcc
""")
            if P["l2u"]: A("v_cmp_gt_u32 vcc, 48, v2")
            else: A(f"s_cmp_ge_u32 s29, {N - P['l2k']}\ns_cselect_b32 s21, 64, 48\nv_cmp_gt_u32 vcc, s21, v2")
            A("""
v_cndmask_b32 v52, v52, v7, vcc
v_cndmask_b32 v53, v53, v4, vcc
v_cmp_gt_u32 vcc, 32, v2
v_cndmask_b32 v52, v52, v6, vcc
v_cndmask_b32 v53, v53, v3, vcc
""")
            return
        A(f"""
s_mov_b32 exec_hi, 0
global_load_dword v52, v6, s[4:5]
{"global_load_dword v52, v6, s[4:5] offset:64" if P["l2h"] else ""}
s_mov_b64 exec, 0xffff
global_load_dword v52, v7, s[6:7]
{"global_load_dword v52, v7, s[6:7] offset:64" if P["l2h"] else ""}
""")
        if not P["l2u"]: A(f"s_cmp_ge_u32 s29, {N - P['l2k']}\ns_cbranch_scc1 {E}_l2e")
        A(f"""
global_load_dword v52, v8, s[8:9]
{"global_load_dword v52, v8, s[8:9] offset:64" if P["l2h"] else ""}
{E}_l2e:
s_mov_b64 exec, -1
""")
    if P["l2p"]: A("s_load_dwordx4 s[4:7], s[0:1], 0\ns_load_dwordx2 s[8:9], s[0:1], 32")
    if P["l2p"] in (1, 3): l2pre()
    if P["spf"]:
        sh, nj = P["spf"]
        lw = 2 if P["tla"] else 3
        if P["tla"]: nj *= 2
        A(f"""
s_getpc_b64 s[42:43]
{E}_pc:
s_lshl_b32 s3, s41, {lw}
s_and_b32 s62, s29, {(1 << lw) - 1}
s_add_u32 s3, s3, s62
s_lshl_b32 s3, s3, {sh}
s_sub_u32 s42, s42, {E}_pc-{name}
s_subb_u32 s43, s43, 0
""")
        for j in range(nj):
            A(f"s_min_u32 s62, s3, {E}_end-{name}\ns_load_dword s63, s[42:43], s62")
            if j < nj - 1: A(f"s_add_u32 s3, s3, {(32 << lw) << sh}")
    if P["tla"]: A(f"{E}_nu:")
    if P["l2p"] == 2: l2pre()
    if not P["l2p"]: A(COMMON)
    A(f"""
v_lshrrev_b32 v3, 5, v2
v_and_b32 v4, 31, v2
s_and_b32 s52, s29, 1
s_lshr_b32 s53, s29, 1
s_lshl_b32 s30, s52, 1
s_xor_b32 s30, s30, s53
s_mov_b32 s56, 0x3f803f80
s_lshl_b32 s31, s30, 1
v_bfe_u32 v5, v2, 1, 3
v_xor_b32 v5, v5, v3
v_xor_b32 v5, s31, v5
s_lshl_b32 s31, s52, 13
s_add_u32 s31, s31, {P['xb']}
v_lshlrev_b32 v6, 7, v4
v_add_u32 v6, s31, v6
""")
    for pos in range(4):
        A(f"v_xor_b32 v7, {2*pos}, v5\nv_lshl_add_u32 v{16+pos}, v7, 4, v6")
    A(f"""
v_bfe_u32 v5, v2, 2, 2
v_lshl_add_u32 v6, v3, 3, v5
v_lshlrev_b32 v6, 8, v6
v_bfe_u32 v7, v2, 1, 1
v_lshl_add_u32 v6, v7, 3, v6
v_add_u32 v6, {P['wb']}, v6
v_bfe_u32 v7, v2, 4, 1
v_and_b32 v8, 1, v2
v_lshl_add_u32 v7, v7, 1, v8
s_and_b32 s55, s53, 1
s_lshl_b32 s31, s55, 3
v_add_u32 v7, s31, v7
v_lshlrev_b32 v5, 2, v5
v_xor_b32 v7, v7, v5
v_lshl_add_u32 v6, v7, 4, v6
v_xor_b32 v7, 64, v6
""")
    for pos in range(4):
        A(f"s_xor_b32 s31, s30, {pos}\ns_lshl_b32 s31, s31, 12")
        for t in range(2):
            A(f"v_add_u32 v{20+pos*2+t}, s31, v{6+t}")
    A("""
v_and_b32 v5, 15, v2
v_bfe_u32 v6, v2, 4, 1
v_cmp_eq_u32 vcc, v5, v6
v_mov_b32 v5, s56
""")
    for i in range(4): A(f"v_cndmask_b32 v{88+i}, 0, v5, vcc")
    A(f"""
s_lshl_b32 s31, s52, 8
v_lshl_add_u32 v48, v3, 4, s31
s_add_u32 s31, s31, {XS}
v_lshl_add_u32 v9, v4, 2, s31
v_add_u32 v12, {RB - XS}, v9
s_movk_i32 s32, {CSQ}
s_cmp_ge_u32 s29, 4
s_cselect_b32 s32, {CSS * 16384 - 8192}, s32
s_lshl_b32 s33, s29, 11
s_add_u32 s33, s33, s32
v_lshl_add_u32 v7, v2, 4, s33
s_lshl_b32 s33, s53, 12
s_add_u32 s33, s33, s32
v_lshl_add_u32 v8, v3, 11, s33
v_bfe_u32 v5, v2, 4, 1
v_lshl_add_u32 v8, v5, 4, v8
v_bfe_u32 v5, v2, 2, 2
v_lshl_add_u32 v8, v5, 8, v8
v_and_b32 v5, 3, v2
v_lshl_add_u32 v8, v5, 2, v8
v_lshlrev_b32 v5, 4, v2
s_lshl_b32 s31, s15, 3
s_add_u32 s31, s31, s29
s_cmp_eq_u32 s31, {15 * 8}
s_cselect_b32 s42, 1, 0
s_mul_i32 s62, s14, {140 * 128}
s_add_u32 s62, s62, {FL2}
""")
    def kdep():
        A(f"""
s_waitcnt lgkmcnt(0)
s_mov_b32 s44, s12
s_mov_b32 s32, s12
s_mov_b32 s33, s13
s_mov_b32 s45, s13
s_mov_b32 s48, s64
s_mov_b32 s49, s65
s_mov_b32 s64, s66
s_mov_b32 s65, s67
s_mov_b32 s67, 0x20000
s_mov_b32 s66, 256
v_mov_b32 v49, 1
s_cmp_eq_u32 s42, 0
s_cbranch_scc1 {E}_nclr
s_mov_b32 s31, s62
v_mov_b32 v92, 0
v_mov_b32 v93, 0
v_mov_b32 v94, 0
v_mov_b32 v95, 0
""")
        for n in range(17):
            A(f"buffer_store_dwordx4 v[92:95], v5, s[44:47], s31 offen offset:{(n & 3) * 1024} sc1")
            if n & 3 == 3: A("s_add_u32 s31, s31, 4096")
        if P["hl0"]:
            A(f"v_lshlrev_b32 v96, 7, v2\ns_and_b32 s30, s40, 1\ns_lshl_b32 s30, s30, 3\ns_and_b32 s28, s41, 7\ns_add_u32 s30, s30, s28\ns_lshl_b32 s30, s30, 14\ns_add_u32 s30, s30, {FL2 + 0x50000}\nbuffer_store_dword v92, v96, s[44:47], s30 offen sc1\ns_add_u32 s30, s30, 8192\nbuffer_store_dword v92, v96, s[44:47], s30 offen sc1")
        A(f"s_mov_b32 exec_hi, 0\nbuffer_store_dwordx4 v[92:95], v5, s[44:47], s31 offen offset:1024 sc1\ns_mov_b64 exec, -1\n{E}_nclr:")
    if not P["spf"]: kdep()
    A("s_mov_b32 s43, s18\ns_mov_b32 s69, s19")
    KVD = ""
    if P["kvd"]:
        d0, d1, dm = P["kvd"]
        KVD = f"s_sub_u32 s68, s14, 2\ns_cselect_b32 s31, 0, 99\ns_mul_i32 s68, s68, {d1}\ns_add_u32 s68, s68, {d0}\ns_min_u32 s68, s68, {dm}\ns_cmp_lt_u32 s54, 10\ns_cselect_b32 s31, 0, s31\ns_min_u32 s68, s68, s31"
    def kvdelay(tag):
        if P["kvd"]: A(f"{E}_kd{tag}:\ns_sub_u32 s68, s68, 1\ns_cbranch_scc1 {E}_ke{tag}\ns_sleep 4\ns_branch {E}_kd{tag}\n{E}_ke{tag}:")
    A(f"""
s_lshl_b32 s39, s14, 2
s_lshl_b32 s31, s52, 1
s_add_u32 s39, s39, s31
s_lshr_b32 s30, s39, 1
s_mov_b32 s34, 0
s_mov_b32 s35, 0x20000
s_mov_b32 s8, 1.0
s_cmp_ge_u32 s29, 4
s_cbranch_scc1 {E}_ch
s_add_u32 s54, s17, s55
s_cmp_lt_u32 s54, 10
s_cselect_b32 s8, {f32bits(QSCALE)}, s8
s_cselect_b32 s31, 0, 10
s_cselect_b32 s10, 0, 4
s_cmp_ge_u32 s54, 20
s_cselect_b32 s31, 20, s31
s_cselect_b32 s10, 8, s10
s_cselect_b32 s9, 1, 0
s_sub_u32 s31, s54, s31
s_lshl_b32 s6, s31, 12
s_add_u32 s10, s10, s6
s_lshl_b32 s30, s30, 7
s_add_u32 s10, s10, s30
s_add_u32 s10, s10, {FQ}
s_mul_i32 s4, s39, {TS}
s_lshl_b32 s5, s54, 12
s_lshl_b32 s6, s31, 10
s_add_u32 s6, s6, {VOFF}
s_cmp_eq_u32 s9, 1
s_cselect_b32 s5, s6, s5
s_add_u32 s4, s4, s5
s_add_u32 s4, s4, {QF}
s_cmp_eq_u32 s9, 1
s_mov_b32 s5, {TS}
s_cselect_b32 s5, {2*SV}, s5
s_add_u32 s5, s5, s4
s_add_u32 s6, s4, {TS}
s_add_u32 s7, s5, {TS}
s_cmp_ge_u32 s54, 30
s_cselect_b32 s9, 3, s9
{KVD}
s_branch {E}_cj
{E}_ch:
s_add_u32 s54, s19, s55
s_mul_i32 s10, s30, 27
s_add_u32 s10, s10, s54
s_lshl_b32 s10, s10, 7
s_lshl_b32 s31, s54, 2
s_add_u32 s10, s10, {FH}
s_mul_i32 s4, s39, 108
s_add_u32 s4, s4, s31
s_lshl_b32 s4, s4, 10
s_add_u32 s4, s4, {HF}
s_add_u32 s5, s4, {108*1024}
s_mov_b32 s6, 0
s_mov_b32 s7, 0
s_cmp_lt_u32 s55, s18
s_cselect_b32 s9, 2, 3
s_cselect_b32 s34, {WS_BYTES}, 0
{E}_cj:
""")
    head_scalars()
    HADR = f"s_lshl_b32 s61, s15, {12 - LF}\ns_lshr_b32 s27, s14, {LF}\ns_lshl_b32 s27, s27, 7\ns_add_u32 s61, s61, s27\ns_and_b32 s27, s14, {(1 << LF) - 1}\ns_lshl_b32 s27, s27, 2\ns_add_u32 s61, s61, s27"
    HB0 = 0x50000
    if P["hl0"]: HADR = f"s_lshl_b32 s61, s15, 5\ns_add_u32 s61, s61, s14\ns_lshl_b32 s61, s61, 7\ns_add_u32 s61, s61, {HB0}"
    if P["mbx"]:
        HADR = "s_lshr_b32 s61, s15, 1\ns_lshl_b32 s61, s61, 11\ns_and_b32 s27, s15, 1\ns_lshl_b32 s27, s27, 7\ns_add_u32 s61, s61, s27\ns_lshl_b32 s27, s14, 2\ns_add_u32 s61, s61, s27"
    A(f"""
s_lshr_b32 s11, s15, 1
s_add_u32 s15, s15, s29
s_mul_i32 s20, s15, {TS}
s_add_u32 s20, s20, s16
s_add_u32 s18, s20, s17
s_add_u32 s21, s16, s19
s_add_u32 s21, s21, 40960
s_mul_i32 s60, s15, 40960
s_mul_i32 s61, s14, 1280
s_add_u32 s60, s60, s61
s_add_u32 s60, s60, {OF}
s_sub_u32 s3, s60, 3072
{HADR}
s_add_u32 s61, s61, {FL2}
s_lshr_b32 s50, s40, 1
s_lshl_b32 s50, s50, 3
s_and_b32 s51, s41, 7
s_add_u32 s50, s50, s51
s_lshl_b32 s50, s50, 1
s_bfe_u32 s51, s41, 0x10003
s_lshr_b32 s52, s29, 2
s_xor_b32 s53, s51, s52
s_add_u32 s50, s50, s53
s_mul_i32 s54, s52, {P['bq']}
s_xor_b32 s54, s54, s29
s_and_b32 s54, s54, 3
s_lshl_b32 s56, s53, 2
s_add_u32 s56, s56, s54
s_lshl_b32 s56, s56, 3
s_and_b32 s55, s40, 1
s_lshl_b32 s55, s55, 1
s_lshr_b32 s58, s41, 4
s_add_u32 s55, s55, s58
s_mul_i32 s55, s55, 320
s_lshl_b32 s58, s51, 8
s_add_u32 s55, s55, s58
s_lshl_b32 s58, s54, 4
s_add_u32 s55, s55, s58
s_mul_i32 s57, s50, 40960
s_add_u32 s55, s55, s57
s_mul_i32 s59, s54, 10240
s_add_u32 s57, s57, s59
s_add_u32 s57, s57, {OF}
s_mul_i32 s58, s54, 30720
s_add_u32 s58, s58, {WO}
s_mul_i32 s59, s54, 5120
s_add_u32 s59, s59, {PR}
s_lshl_b32 s53, s51, 7
s_sub_u32 s53, 64, s53
s_mov_b32 s50, 2621440
s_mov_b32 s51, 0x20000
""")
    MK("cJ")
    if P["spf"]: kdep()
    MK("cK")
    A(f"""
v_cmp_gt_u32 s[22:23], 20, v4
v_cmp_gt_u32 s[24:25], 32, v2
s_cmp_ge_u32 s29, 4
s_cbranch_scc1 {E}_hp
s_setprio {P['qprio']}
""")
    poll_addr(50, 30, 31)
    A(f"""
s_cmp_eq_u32 s9, 1
s_cbranch_scc1 {E}_vloop
""")
    D = P["D"]
    FB = [[56, 60, 64, 68], [72, 76, 80, 84]] if D == 1 else [[72, 76, 80, 84], [56, 60, 64, 68], [28, 32, 36, 164]]
    QL, RL, KL = 52, 14, 92
    def acc(ct, tt): return 96 + (ct * 2 + tt) * 16
    class Q:
        def __init__(s): s.q = []
        def op(s, tag, txt): A(txt); s.q.append(tag)
        def need(s, *tags):
            idx = max([i for i, t in enumerate(s.q) if t in tags], default=-1)
            if idx >= 0:
                A(f"s_waitcnt lgkmcnt({len(s.q) - 1 - idx})"); s.q = s.q[idx + 1:]
        def drain(s):
            if s.q: A("s_waitcnt lgkmcnt(0)"); s.q = []
    def rd(L, s0, p, i):
        s, pos = p >> 2, p & 3
        x0, x1, w0, w1 = FB[p % (D + 1)]
        isx = i in (0, 3)
        r = 16 + pos if isx else 20 + pos * 2 + (i >= 4)
        a = SLOT[("x" if isx else s0, s)] * 16384
        if not 0 <= a - L.cur[r] <= 49152:
            nb = a if a < L.cur[r] else a - 49152
            A(f"v_add_u32 v{r}, {(nb - L.cur[r]) & 0xffffffff}, v{r}"); L.cur[r] = nb
        o = a - L.cur[r]
        L.op((p, i), [f"ds_read_b128 {vr(x0,4)}, v{r} offset:{o}",
                      f"ds_read_b64_tr_b16 {vr(w0,2)}, v{r} offset:{o}",
                      f"ds_read_b64_tr_b16 {vr(w0+2,2)}, v{r} offset:{o+1024}",
                      f"ds_read_b128 {vr(x1,4)}, v{r} offset:{o+4096}",
                      f"ds_read_b64_tr_b16 {vr(w1,2)}, v{r} offset:{o}",
                      f"ds_read_b64_tr_b16 {vr(w1+2,2)}, v{r} offset:{o+1024}"][i])
    def prep():
        o = []
        for t in range(2):
            c = 10 + t; h = 56 + 4 * t
            o.append(f"""v_cvt_pk_bf16_f32 v{h+2}, 0, v{c}
v_cvt_pk_bf16_f32 v{64+2*t}, -v{160+t}, -v{160+t}
v_sub_f32 v{h+2}, v{c}, v{h+2}
v_cvt_pk_bf16_f32 v{65+2*t}, -v{160+t}, 0
v_cvt_pk_bf16_f32 v{h+3}, 0, v{h+2}
v_cvt_pk_bf16_f32 v{h}, v{c}, v{h+2}
v_sub_f32 v{h+3}, v{h+2}, v{h+3}
v_cvt_pk_bf16_f32 v{h+1}, v{h+3}, 0""".split("\n"))
        return [x for pr in zip(*o) for x in pr]
    def qloads():
        A(f"buffer_load_dwordx4 {vr(QL,4)}, v5, s[44:47], s20 offen{SC}")
        A(f"buffer_load_dwordx2 {vr(RL,2)}, v6, s[44:47], s18 offen{SC}")
        A(f"buffer_load_dwordx4 {vr(KL,4)}, v5, s[44:47], s21 offen{SC}")
    def idle():
        if P["pf"] or P["pf2"]: A(f"""
s_and_b32 s30, s41, 7
s_mul_i32 s30, s30, 80
s_and_b32 s28, s29, 3
s_mul_i32 s31, s28, 20
s_add_u32 s30, s30, s31
v_lshrrev_b32 v164, 1, v2
v_min_u32 v165, 19, v164
v_add_u32 v165, s30, v165
v_and_b32 v166, 1, v2
s_sub_u32 s30, s43, 1
v_min_u32 v1, s30, v166
v_add_u32 v1, s69, v1
v_lshlrev_b32 v1, 7, v1
s_movk_i32 s31, 3456
s_lshl_b32 s28, s28, 8
s_add_u32 s28, s28, s2
s_min_u32 s28, s28, 539
s_mul_i32 s30, s28, 13108
s_lshr_b32 s30, s30, 16
s_mul_i32 s27, s30, {20480 - 5*256}
s_lshl_b32 s28, s28, 8
s_add_u32 s27, s27, s28
v_and_b32 v13, 15, v164
v_mad_u32_u24 v164, v165, s31, v1
v_mul_u32_u24 v13, 1280, v13
v_lshl_add_u32 v13, v166, 7, v13
v_add_u32 v165, s27, v13
""")
        A("s_waitcnt lgkmcnt(0)")
        if P["tlb"]:
            A(f"""
s_and_b32 s30, s41, {P["tlm"]}
s_cbranch_scc1 {E}_ntb
s_and_b32 s28, s29, 3
s_lshl_b32 s30, s28, 21
s_add_u32 s30, s30, 123392
""")
            for j in range(4):
                A(f"s_min_u32 s31, s30, {WS_BYTES - 128}\ns_load_dword s63, s[44:45], s31\ns_add_u32 s30, s30, {4 << 21}")
            A(f"""
s_and_b32 s28, s28, 1
s_lshl_b32 s28, s28, 21
s_load_dword s63, s[48:49], s28
s_load_dword s63, s[36:37], 0
{E}_ntb:
""")
        if P["hsx"]:
            assert not P["pf"] and not P["pf2"]
            if P["hsp"] is not None: A(f"s_setprio {P['hsp']}")
            A(f"""
s_sub_u32 s30, s29, 4
s_lshl_b32 s31, s30, 12
v_lshlrev_b32 v164, 4, v2
v_add_u32 v164, s31, v164
v_add_u32 v165, 65536, v164
v_add_u32 v166, 131072, v164
""")
            assert N <= P["hsx"] < P["hsf"]
            for st in range(N, 10):
                SH = SS[st] if st >= P["hsx"] else []
                for i, k in enumerate(SH):
                    for o in sreads(k, (72, 56)[i], 164): A(o)
                if st == N:
                    A(f"""
v_and_b32 v36, 3, v2
v_lshrrev_b32 v167, 3, v2
v_lshl_add_u32 v167, v36, 3, v167
s_lshl_b32 s30, s30, 5
v_add_lshl_u32 v167, v167, s30, 2
""")
                    for i in range(8): A(f"v_mov_b32 v{28+i}, 0")
                if st == P["hsf"]: A(f"ds_read_b32 v13, v167 offset:{PS}\nds_read_b32 v1, v167 offset:{PS+512}")
                for i, k in enumerate(SH):
                    A(f"s_waitcnt lgkmcnt({4 * (len(SH) - 1 - i) + 2 * (st == P['hsf'])})")
                    for o in sops((72, 56)[i], -1, 28, 36, "0xffff0000"): A(o)
                if st == P["hsf"]:
                    A("v_and_b32 v36, 3, v2")
                    for o in sred(28, 36): A(o)
                    A("s_waitcnt lgkmcnt(0)\nv_add_f32 v28, v28, v13\nv_add_f32 v29, v29, v1")
                    for o in sfin(28, 167, 30, 31): A(o)
                    A("s_waitcnt lgkmcnt(0)")
                if st < 9: A("s_barrier")
            if P["hsp"] is not None: A(f"s_setprio {P['hprio']}")
            return
        for st in range(N + 1, 10):
            if st == P["pf"]: A("global_load_dword v0, v164, s[36:37]")
            if st == P["pf2"]: A("global_load_dword v0, v165, s[38:39]")
            A("s_barrier")
    def loop(mode):
        vmode = mode == "v"; hw = mode == "h"; s0 = "u" if hw else "w"
        L = Q()
        L.cur = {r: P["xb"] if r < 20 else P["wb"] for r in range(16, 28)}
        A("s_barrier")
        MK("c0")
        stat = lambda: (L.op("st", "ds_read2_b32 v[160:161], v9 offset0:0 offset1:32"), L.op("st", "ds_read2_b32 v[162:163], v12 offset0:0 offset1:32"))
        for q in range(D):
            for i in range(6): rd(L, s0, q, i)
        def sync(p, s):
            L.need(*[(q, i) for q in range(p, p + D) for i in range(6)])
            if s < 10:
                MK(f"a{s}")
                A("s_barrier")
                MK(f"s{s}")
            else:
                A(f"v_mov_b32 v1, {s + 3}")
                L.op("dn", f"ds_write_b32 v50, v1")
                A(f"""
v_cmp_gt_u32 vcc, {s + 1}, v13
s_cbranch_vccz {E}_hk{s}
{E}_hl{s}:
ds_read_b32 v13, v48
s_waitcnt lgkmcnt(0)
v_cmp_gt_u32 vcc, {s + 1}, v13
s_cbranch_vccnz {E}_hl{s}
{E}_hk{s}:
""")
                if s + 1 >= P["qtry"]:
                    A(f"v_readlane_b32 s30, v13, 63\ns_and_b32 s30, s30, s68\ns_cbranch_scc0 {E}_hq{s}")
                    qloads()
                    A(f"s_mov_b32 s68, 0\n{E}_hq{s}:")
                MK(f"h{s}")
        CP_, CJ = P["csx"]
        for p in range(40):
            s, pos = p >> 2, p & 3
            hm = hw and s >= N
            if hw: s = tx(s)
            if hw and p == 4 * N:
                MK("hI")
                idle()
                A("s_barrier")
                MK("h9")
                for q in range(D):
                    for i in range(6): rd(L, s0, p + q, i)
                stat()
            b = FB[p % (D + 1)]
            bar = pos == 4 - D and p < 36
            sched = [[], [], [], []] if p + D > 39 or (hw and p < 4 * N <= p + D) else (P["schb"] if bar else P["sched"])
            if bar and P["bj"] < 0: sync(p, s)
            for j, (ct, tt) in enumerate(((0, 0), (0, 1), (1, 1), (1, 0))):
                L.need(*[(p, i) for i in ([0, 1, 2], [3], [4, 5], [])[j]])
                a = acc(ct, tt)
                c = "0" if p == 0 else vr(a, 16)
                w, x = vr(b[2 + ct], 4), vr(b[tt], 4)
                if vmode: A(f"v_mfma_f32_32x32x16_bf16 {vr(a,16)}, {x}, {w}, {c}")
                else: A(f"v_mfma_f32_32x32x16_bf16 {vr(a,16)}, {w}, {x}, {c}")
                if bar and P["bj"] == j: sync(p, s)
                if hm and pos == 3 - D and j == P["fj"] and p < 36: L.op("fl", "ds_read_b32 v13, v48")
                for i in sched[j]: rd(L, s0, p + D, i)
                if pos < 2 and j in (1, 3):
                    ct2 = j >> 1
                    c = "0" if p == 0 else vr(40 + 4 * ct2, 4)
                    A(f"v_mfma_f32_16x16x32_bf16 {vr(40+4*ct2,4)}, {vr(b[2+ct2],4)}, v[88:91], {c}")
                if P["l2p"] == 3 and pos == 0 and j == 1 and p < 4 * N:
                    ws = [w for w in (range(4, 8) if hw else range(4)) if w + P["l2k"] >= P["l2m"] and w + P["l2k"] < 10 and max(0, min(w + P["l2k"] - P["l2d"], N - 1)) == p >> 2]
                    if ws:
                        A(f"s_sub_u32 s30, s29, {ws[0]}\ns_cmp_gt_u32 s30, {ws[-1] - ws[0]}\ns_cbranch_scc1 {E}_l2{mode}{p}\nglobal_load_dword v54, v[52:53], off")
                        if P["l2h"]: A("global_load_dword v55, v[52:53], off offset:64")
                        A(f"{E}_l2{mode}{p}:")
                if P["pal"] and not hw and j == 2 and p >= P["pal"][1] and (p - P["pal"][1]) % P["pal"][2] == 0:
                    kd, p0, dp, per = P["pal"]
                    n0 = (p - p0) // dp * per
                    if n0 < 8:
                        A(f"s_cmp_eq_u32 s9, 3\ns_cbranch_scc1 {E}_pa{mode}{p}")
                        for n in range(n0, min(n0 + per, 8)):
                            ad = f"v51, s[44:47], s{4 + (n & 3)} offen offset:{(n >> 2) * 512}" if vmode else f"v5, s[44:47], s{4 + (n & 1)} offen offset:{(n >> 1) * 1024}"
                            A(f"buffer_store_dwordx4 v[88:91], {ad}{ST}" if kd == "s" else f"buffer_load_dword v52, {ad} sc1")
                        A(f"{E}_pa{mode}{p}:")
                if p == P["cntp"] and j == 0 and mode == "q":
                    A(f"s_cmp_eq_u32 s42, 0\ns_cbranch_scc1 {E}_na\ns_waitcnt vmcnt(0)\ns_mov_b64 exec, 1\nbuffer_atomic_add v49, off, s[64:67], 0 offset:{CNT}\ns_mov_b64 exec, -1\n{E}_na:")
                if p == P["cntl"] and j == 0 and not hw:
                    A(f"buffer_load_dword v13, off, s[64:67], 0 offset:{CNT} sc1")
                if p == 38 and j == 0:
                    L.op("csw", f"ds_write_b128 v7, v[40:43]"); L.op("csw", f"ds_write_b128 v7, v[44:47] offset:1024")
                if p == CP_ and j == CJ:
                    if hm:
                        L.need("csw")
                        L.op("cf", f"ds_write_b32 v50, v49 offset:{CSF - DONE}")
                        A(f"""
{E}_hc:
ds_read_b32 v13, v51 offset:{CSF - DONE}
s_waitcnt lgkmcnt(0)
v_cmp_eq_u32 vcc, 0, v13
s_cbranch_vccnz {E}_hc
""")
                        L.q = []
                    else:
                        L.drain(); A("s_barrier")
                    L.op("st", f"ds_read_b32 v10, v8"); L.op("st", f"ds_read_b32 v11, v8 offset:1024")
                    if not hm: stat()
                if p == 39 and j == min(P["prp"]): L.need("st")
                if p == 39 and j in P["prp"]:
                    q_ = P["prp"].index(j); n_ = len(P["prp"])
                    for o in prep()[16 * q_ // n_: 16 * (q_ + 1) // n_]: A(o)
        MK("hA" if hw else "cA")
        if P["pal"] and not hw: A("s_waitcnt vmcnt(0)")
        for (ct, tt) in ((0, 0), (0, 1), (1, 1), (1, 0)):
            a = acc(ct, tt); w, x = vr(56 + 4 * ct, 2), vr(64 + 2 * tt, 2)
            if vmode: A(f"v_mfma_f32_32x32x8_bf16 {vr(a,16)}, {x}, {w}, {vr(a,16)}")
            else: A(f"v_mfma_f32_32x32x8_bf16 {vr(a,16)}, {w}, {x}, {vr(a,16)}")
    order = ((0, 0), (0, 1), (1, 1), (1, 0))
    loop("q")
    A(f"""
s_cmp_eq_u32 s9, 3
s_cbranch_scc1 {E}_pub
s_setprio {P['eprio']}
v_mul_f32 v162, s8, v162
v_mul_f32 v164, s8, v163
""")
    if not P["kvp"]: kvdelay("q")
    late = []
    for (ct, tt) in order:
        a = acc(ct, tt)
        if P["pk"]:
            for k in range(8): A(f"v_pk_mul_f32 {vr(a+2*k,2)}, {vr(a+2*k,2)}, {vr(162+2*tt,2)} op_sel_hi:[1,0]")
        else:
            for k in range(16): A(f"v_mul_f32 v{a+k}, v{a+k}, v{162+2*tt}")
        for k in range(8): A(f"v_cvt_pk_bf16_f32 v{a+k}, v{a+2*k}, v{a+2*k+1}")
        for j in range(2): A(f"buffer_store_dwordx4 {vr(a+4*j,4)}, v5, s[44:47], s{4+tt} offen offset:{(ct*2+j)*1024}{ST}")
    A(f"s_branch {E}_pub")
    QM, QR, KM, KR, V0, V1 = 8, 12, 16, 20, 24, 28
    S = [32, 48]; O = 64; CB = 80
    FL = 120
    KB = [(KM, KR), (124, 128)]; VB = [V0, 132]
    def vsetup():
        A(f"""
v_and_b32 v{FL+1}, 3, v2
v_lshlrev_b32 v{FL+1}, 2, v{FL+1}
s_lshl_b32 s26, s29, 2
s_add_u32 s26, s26, 64
v_mov_b32 v{FL+2}, s26
v_mul_u32_u24 v7, 320, v3
v_lshl_add_u32 v7, v4, 4, v7
v_add_u32 v7, 5120, v7
v_lshlrev_b32 v6, 4, v4
v_mov_b32 v1, 0x3f803f80
v_cmp_eq_u32 vcc, 20, v4
v_mov_b32 v56, 0
""")
        for i in range(8): A(f"v_cndmask_b32 v{V0+i}, 0, v1, vcc")
    A(f"""
{E}_hp:
s_load_dwordx4 s[36:39], s[0:1], {16 if P["tlb"] else 32}
s_setprio {P['hprio']}
s_sub_u32 s31, s29, 4
s_lshl_b32 s30, s31, 2
s_add_u32 s30, s30, {DONE}
v_mov_b32 v50, s30
v_xor_b32 v51, 4, v50
v_and_b32 v48, 7, v2
v_lshlrev_b32 v48, 2, v48
v_add_u32 v48, {LAND}, v48
v_mov_b32 v1, {RLY}
v_cmp_eq_u32 vcc, 63, v2
v_cndmask_b32 v48, v48, v1, vcc
v_lshlrev_b32 v6, 4, v4
s_lshr_b32 s30, s29, 1
s_lshl_b32 s68, 1, s30
s_waitcnt lgkmcnt(0)
""")
    loop("h")
    HP = {(0, 0): 104, (0, 1): 112, (1, 1): 144, (1, 0): 152}
    A(f"s_cmp_eq_u32 s9, 3\ns_cbranch_scc1 {E}_hd\nv_mov_b32 v164, v163")
    for (ct, tt) in order:
        a = acc(ct, tt); d = HP[(ct, tt)]
        for k in range(8): A(f"v_pk_mul_f32 {vr(a+2*k,2)}, {vr(a+2*k,2)}, {vr(162+2*tt,2)} op_sel_hi:[1,0]")
        for k in (range(7, -1, -1) if (ct, tt) == (0, 0) else range(8)): A(f"v_cvt_pk_bf16_f32 v{d+k}, v{a+2*k}, v{a+2*k+1}")
        for k in range(8): A(f"v_pk_max_i16 v{d+k}, v{d+k}, 0")
        for j in range(2):
            if 2 * order.index((ct, tt)) + j < P["hpre"]:
                A(f"buffer_store_dwordx4 {vr(d+4*j,4)}, v5, s[32:35], s{4+tt} offen offset:{(ct*2+j)*1024}{ST}")
    A(f"{E}_hd:")
    vsetup()
    A(f"""
s_cmp_eq_u32 s68, 0
s_cbranch_scc1 {E}_at2
{E}_hw0:
ds_read_b32 v57, v56 offset:{RLY}
s_waitcnt lgkmcnt(0)
v_readfirstlane_b32 s30, v57
s_and_b32 s30, s30, s68
s_cbranch_scc1 {E}_hw1
s_sleep 1
s_branch {E}_hw0
{E}_hw1:
""")
    qloads()
    A(f"s_branch {E}_at2")
    A(f"{E}_vloop:")
    A(f"""
v_and_b32 v1, 19, v2
v_bfe_u32 v6, v2, 2, 1
v_lshl_add_u32 v1, v6, 3, v1
v_bfe_u32 v6, v2, 3, 1
v_lshl_add_u32 v1, v6, 2, v1
v_mul_u32_u24 v6, {SV}, v3
v_lshl_add_u32 v51, v1, 4, v6
""")
    loop("v")
    A(f"s_setprio {P['eprio']}")
    kvdelay("v")
    for tt in range(2):
        for q in range(4):
            A(f"ds_read_b128 {vr(16+16*tt+4*q,4)}, v48 offset:{RB + tt*128 + q*32}")
    for n, (ct, tt) in enumerate(order):
        a = acc(ct, tt)
        if n < 2: A(f"s_waitcnt lgkmcnt({4 - 4*n})")
        if P["pk"]:
            for k in range(8): A(f"v_pk_mul_f32 {vr(a+2*k,2)}, {vr(a+2*k,2)}, {vr(16+16*tt+2*k,2)}")
        else:
            for k in range(16): A(f"v_mul_f32 v{a+k}, v{a+k}, v{16+16*tt+k}")
        for k in range(8): A(f"v_cvt_pk_bf16_f32 v{a+k}, v{a+2*k}, v{a+2*k+1}")
        for j in range(2): A(f"buffer_store_dwordx4 {vr(a+4*j,4)}, v51, s[44:47], s{4+2*tt+j} offen offset:{ct*512}{ST}")
    DK, DR, DV, DW = 60, 61, 62, 63
    def dma_addr(t0, t1, t2, m1, m2):
        A(f"""
s_mul_i32 s{t0}, s29, {TS}
s_add_u32 s{t0}, s{t0}, s16
s_add_u32 s{t0}, s{t0}, 40960
v_add_u32 v{DK}, s{t0}, v5
s_add_u32 s{t0}, s{t0}, s17
v_lshrrev_b32 v8, 1, v2
v_and_b32 v9, 1, v2
v_lshlrev_b32 v9, 2, v9
v_lshl_add_u32 v8, v8, 4, v9
v_add_u32 v{DR}, s{t0}, v8
s_lshl_b32 s{m1}, s29, 10
s_lshl_b32 s{m2}, s29, 8
s_mul_i32 s{t0}, s14, 320
s_add_u32 s{t0}, s{t0}, {QF + VOFF}
s_lshl_b32 s{t1}, s29, 6
s_lshl_b32 s{t2}, s29, 4
s_add_u32 s{t2}, s{t2}, 256
""")
        def vaddr(dst, ci):
            A(f"""
v_mul_u32_u24 v8, 3277, v{ci}
v_lshrrev_b32 v8, 16, v8
v_mul_u32_u24 v9, 20, v8
v_sub_u32 v9, v{ci}, v9
v_lshrrev_b32 v10, 2, v8
v_and_b32 v8, 3, v8
v_mul_u32_u24 v10, {TS}, v10
v_mul_u32_u24 v8, {SV}, v8
v_lshl_add_u32 v9, v9, 4, s{t0}
v_add3_u32 v{dst}, v8, v9, v10
""")
        A(f"v_add_u32 v11, s{t1}, v2"); vaddr(DV, 11)
        A(f"v_lshrrev_b32 v11, 2, v2\nv_add_u32 v11, s{t2}, v11"); vaddr(DW, 11)
        A(f"v_and_b32 v11, 3, v2\nv_lshl_add_u32 v{DW}, v11, 2, v{DW}")
    def dma(G, m1, m2, so):
        b = G * 10240
        if G == 0: A(f"s_cmp_eq_u32 s29, 0\ns_cbranch_scc1 {E}_d0")
        A(f"s_add_u32 m0, s{m1}, {b}\nbuffer_load_dwordx4 v{DK}, s[44:47], {so} offen{P['dsc']} lds")
        if G == 0: A(f"{E}_d0:")
        A(f"s_add_u32 m0, s{m2}, {b+4096}\nbuffer_load_dword v{DR}, s[44:47], {so} offen{P['dsc']} lds")
        A(f"s_add_u32 m0, s{m1}, {b+5120}\nbuffer_load_dwordx4 v{DV}, s[44:47], {so} offen{P['dsc']} lds")
        A(f"s_add_u32 m0, s{m2}, {b+9216}\nbuffer_load_dword v{DW}, s[44:47], {so} offen{P['dsc']} lds")
    assert G0 == 2 and P["rot"] == 0
    PT = S1LAST + 3
    A(f"{E}_pub:")
    MK("cS")
    vsetup()
    dma_addr(30, 31, 26, 36, 37)
    A(f"""
s_lshl_b32 s26, s29, 2
v_mov_b32 v57, s26
v_mov_b32 v58, {PT}
s_mov_b32 s38, {4*TS}
ds_write_b32 v57, v58 offset:{PUB}
s_cmp_eq_u32 s9, 3
s_cbranch_scc1 {E}_pb2
s_mov_b32 s26, {P['spin']}
s_waitcnt vmcnt(0)
{E}_cw:
v_readfirstlane_b32 s30, v13
s_cmp_ge_u32 s30, 16
s_cbranch_scc1 {E}_cd
s_sub_u32 s26, s26, 1
s_cbranch_scc1 {E}_cd
s_sleep 2
buffer_load_dword v13, off, s[64:67], 0 offset:{CNT} sc1
s_waitcnt vmcnt(0)
s_branch {E}_cw
{E}_cd:
s_mov_b64 exec, 1
buffer_store_dword v49, off, s[44:47], s10 sc1
s_mov_b64 exec, -1
{E}_pb2:
s_setprio {P['qsp']}
""")
    MK("cF")
    A(f"""
s_cmp_lg_u32 s29, {P['pw']}
s_cbranch_scc1 {E}_at1
v_and_b32 v57, 7, v2
v_lshlrev_b32 v57, 2, v57
{E}_pq:
ds_read_b32 v58, v57 offset:{DONE}
s_waitcnt lgkmcnt(0)
s_sleep 1
v_cmp_gt_u32 vcc, {PT}, v58
s_cbranch_vccnz {E}_pq
s_mov_b32 s26, {P['spin']}
{"s_sleep " + str(P['qdel']) if P['qdel'] else ""}
""")
    def qcore(r):
        A(f"""
v_min_u32 v{r+1}, v{r+1}, v{r+2}
v_cmp_ne_u32 s[30:31], 0, v{r}
v_cmp_ne_u32 s[42:43], 0, v{r+1}
s_and_b32 s30, s30, s31
s_and_b32 s42, s42, s43
s_lshr_b32 s30, s30, s11
s_sub_u32 s26, s26, 1
s_cselect_b32 s30, -1, s30
s_cselect_b32 s42, -1, s42
s_cselect_b32 s26, 0, s26
s_bitcmp1_b32 s42, 0
s_cselect_b32 s31, 15, 0
s_and_b32 s30, s30, s31
s_or_b32 s30, s30, 0x100
v_mov_b32 v{r}, s30
v_mov_b32 v{r+1}, s42
ds_write_b64 v56, v[{r}:{r+1}] offset:{RLY}
s_and_b32 s42, s42, 15
s_lshl_b32 s42, s42, 4
s_or_b32 s30, s30, s42
s_cmp_eq_u32 s30, 0x1ff
s_cbranch_scc1 {E}_at1
""")
    if P["qmk"]:
        A("s_lshl_b32 s30, 15, s11\ns_or_b32 s30, s30, 15\ns_mov_b32 exec_lo, s30\ns_mov_b32 exec_hi, s30")
    if P["qp2"]:
        A(f"""
buffer_load_dwordx4 v[52:55], v50, s[44:47], 0 offen sc1
s_sleep {P['qp2']}
{E}_qp:
buffer_load_dwordx4 v[40:43], v50, s[44:47], 0 offen sc1
s_waitcnt vmcnt(1)
""")
        qcore(52)
        A(f"buffer_load_dwordx4 v[52:55], v50, s[44:47], 0 offen sc1\ns_waitcnt vmcnt(1)")
        qcore(40)
        A(f"s_branch {E}_qp")
    else:
        A(f"{E}_qp:\nbuffer_load_dwordx4 v[52:55], v50, s[44:47], 0 offen sc1\ns_waitcnt vmcnt(0)")
        qcore(52)
        A(f"s_sleep {P['qsl']}\ns_branch {E}_qp")
    A(f"""
{E}_at1:
{"s_mov_b64 exec, -1" if P["qmk"] else ""}
s_lshr_b32 s26, s29, 1
s_mov_b32 s27, 11
{E}_qw:
ds_read_b64 v[58:59], v56 offset:{RLY}
s_waitcnt lgkmcnt(0)
v_readfirstlane_b32 s30, v58
v_readfirstlane_b32 s31, v59
s_lshr_b32 s30, s30, s26
s_and_b32 s30, s30, 1
s_lshr_b32 s28, s31, 1
s_and_b32 s31, s31, s28
s_and_b32 s31, s31, 5
s_lshl_b32 s31, s31, 1
s_or_b32 s30, s30, s31
s_and_b32 s30, s30, s27
s_cbranch_scc1 {E}_qa
s_sleep {P['rws']}
s_branch {E}_qw
{E}_qa:
s_bitcmp1_b32 s30, 1
s_cbranch_scc0 {E}_qb
""")
    dma(0, 36, 37, "0")
    A(f"{E}_qb:\ns_bitcmp1_b32 s30, 0\ns_cbranch_scc0 {E}_qc")
    qloads()
    MK("cQ")
    A(f"{E}_qc:\ns_bitcmp1_b32 s30, 3\ns_cbranch_scc0 {E}_qd")
    dma(1, 36, 37, "s38")
    A(f"""
{E}_qd:
s_andn2_b32 s27, s27, s30
s_cbranch_scc1 {E}_qw
{E}_at2:
v_cmp_eq_u32 vcc, 20, v4
v_lshlrev_b32 v57, 3, v4
""")
    for i in range(8): A(f"v_cndmask_b32 v{VB[1]+i}, 0, v1, vcc")
    for i in range(4): A(f"v_mov_b32 v{164+i}, -1")
    A("v_add_u32 v6, 4096, v57")
    MK("cW")
    hstores = [(ct, tt, j) for (ct, tt) in order for j in range(2)]
    def hstore(n):
        ct, tt, j = hstores[n]
        A(f"buffer_store_dwordx4 {vr(HP[(ct,tt)]+4*j,4)}, v{HA_}, s[32:35], s{4+tt} offen offset:{(ct*2+j)*1024}{ST}")
    HA_ = 5
    if P["hcw"]:
        A(f"s_cmp_eq_u32 s34, 0\ns_cbranch_scc1 {E}_nhw")
        for n in range(P["hcw"]): hstore(n)
        MK("cV")
        A(f"s_waitcnt vmcnt({P['hcw']})\ns_branch {E}_nhx\n{E}_nhw:")
    A(f"s_waitcnt vmcnt(0)\n{E}_nhx:")
    for i in range(4): A(f"v_mov_b32 v{QM+i}, v{QL+i}\nv_mov_b32 v{KM+i}, v{KL+i}")
    A(f"v_cndmask_b32 v{QR}, 0, v{RL}, s[24:25]\nv_cndmask_b32 v{QR+1}, 0, v{RL+1}, s[24:25]")
    A("s_barrier")
    MK("cB")
    if P["hcb"]:
        A(f"s_cmp_eq_u32 s34, 0\ns_cbranch_scc1 {E}_nhc")
        for n in range(P["hpre"] + P["hcw"], P["hpre"] + P["hcb"]): hstore(n)
        A(f"{E}_nhc:")
        MK("cC")
    def kread(o, km=None, kr=None):
        if km is None: km, kr = KB[o & 1]
        g, i = o >> 2, o & 3
        A(f"ds_read_b128 {vr(km,4)}, v5 offset:{g*10240+i*1024}\nds_read_b64 {vr(kr,2)}, v6 offset:{g*10240+i*256}")
    def vread(o):
        g, i = o >> 2, o & 3; b = g * 10240 + i * 1280
        A(f"s_mov_b64 exec, s[22:23]\nds_read_b128 {vr(VB[o&1],4)}, v7 offset:{b}\nds_read_b128 {vr(VB[o&1]+4,4)}, v7 offset:{b+640}\ns_mov_b64 exec, -1")
    A(f"ds_read_b64 {vr(KR,2)}, v6")
    for t in range(1, NP): kread(t, CB + 4 * t, 96 + 2 * t)
    PD = [S[0], S[1], O, S[0]]
    def pmax(t):
        for k in range(8):
            if t == 0 and k == 0: A(f"v_max_f32 v1, v{PD[t]}, v{PD[t]+1}")
            else: A(f"v_max3_f32 v1, v1, v{PD[t]+2*k}, v{PD[t]+2*k+1}")
    for t in range(NP):
        if t == 3: pmax(0)
        A(f"s_waitcnt lgkmcnt({2*(NP-1-t)})")
        km, kr = (KM, KR) if t == 0 else (CB + 4 * t, 96 + 2 * t)
        A(f"v_mfma_f32_32x32x16_bf16 {vr(PD[t],16)}, {vr(km,4)}, {vr(QM,4)}, 0")
        A(f"v_mfma_f32_32x32x8_bf16 {vr(PD[t],16)}, {vr(kr,2)}, {vr(QR,2)}, {vr(PD[t],16)}")
    for t in range(1, NP): pmax(t)
    A(f"""
v_mov_b32 v14, v1
s_mov_b32 s26, {f32bits(P['offs'])}
v_permlane32_swap_b32 v1, v14
v_max_f32 v1, v1, v14
v_add_f32 v1, s26, v1
""")
    for i in range(16): A(f"v_sub_f32 v{CB+i}, 0, v1")
    for i in range(16): A(f"v_mov_b32 v{O+i}, 0")
    def M1(t): A(f"v_mfma_f32_32x32x16_bf16 {vr(S[t&1],16)}, {vr(KB[t&1][0],4)}, {vr(QM,4)}, {vr(CB,16)}")
    def M2(t): A(f"v_mfma_f32_32x32x8_bf16 {vr(S[t&1],16)}, {vr(KB[t&1][1],2)}, {vr(QR,2)}, {vr(S[t&1],16)}")
    def Ex(t, *idx):
        for i in idx: A(f"v_exp_f32 v{S[t&1]+i}, v{S[t&1]+i}")
    def Cv(t, *idx):
        for k in idx:
            d = S[t & 1] + (k & 3) + 8 * (k >> 2)
            A(f"v_cvt_pk_bf16_f32 v{d}, v{S[t&1]+2*k}, v{S[t&1]+2*k+1}")
    if P["bal"]:
        A(f"""
v_xor_b32 v22, 16, v{FL+2}
v_mov_b32 v{FL+3}, 0
v_mov_b32 v15, 0
s_setprio {P['balp'][0]}
""")
    if P["yl"]: A(f"v_xor_b32 v22, 16, v{FL+2}\nv_mov_b32 v{FL+3}, 0")
    YL = []
    def yield_(t, waited):
        if not waited: A("s_waitcnt lgkmcnt(2)")
        A(f"v_cmp_lt_u32 vcc, v15, v{FL+3}\ns_cbranch_vccnz {E}_yl{t}\n{E}_yb{t}:")
        YL.append(f"""
{E}_yl{t}:
s_sleep {P['yl'][1]}
ds_read_b32 v15, v22
s_waitcnt lgkmcnt(0)
v_cmp_lt_u32 vcc, v15, v{FL+3}
s_cbranch_vccnz {E}_yl{t}
s_sleep {P['yl'][0]}
s_branch {E}_yb{t}
""")
    if P["hnb"]: A("s_cmp_eq_u32 s34, 0\ns_cselect_b32 s9, 1, 0")
    nbal = [0]
    def balance(t, first):
        if P["bal"] and t % 4 == 2 and not (first and t == 2):
            k = nbal[0]; nbal[0] += 1
            A(f"""
v_cmp_ge_u32 vcc, v15, v{FL+3}
s_setprio {P['balp'][0]}
s_cbranch_vccz {E}_bl{k}
s_setprio {P['balp'][1]}
{E}_bl{k}:
""")
    progress = f"v_add_u32 v{FL+3}, 1, v{FL+3}\nds_write_b32 v{FL+2}, v{FL+3}" + ("\nds_read_b32 v15, v22" if P["bal"] else "")
    MK("c1")
    A("s_waitcnt lgkmcnt(0)")
    kread(1); vread(0); M1(0); M2(0); kread(2); vread(1)
    W = 6
    Ex(0, *range(P["npre"]))
    def tile(t, hook=None):
        pr = P["prios"] if not P["bal"] else None
        if pr and (t == 0 or pr[t % len(pr)] != pr[(t - 1) % len(pr)]): A(f"s_setprio {pr[t % len(pr)]}")
        for tok in P["order"].split():
            if tok == "M1": A(f"s_waitcnt lgkmcnt({W})"); M1(t + 1); balance(t, hook is hook0)
            elif tok == "M2": M2(t + 1)
            elif tok == "M3": A(f"s_waitcnt lgkmcnt({W})\nv_mfma_f32_32x32x16_bf16 {vr(O,16)}, {vr(VB[t&1],4)}, {vr(S[t&1],4)}, {vr(O,16)}")
            elif tok == "M4": A(f"v_mfma_f32_32x32x16_bf16 {vr(O,16)}, {vr(VB[t&1]+4,4)}, {vr(S[t&1]+8,4)}, {vr(O,16)}")
            elif tok == "K":
                if hook: hook(t, 0)
                kread(t + 3)
                if hook: hook(t, 1)
            elif tok == "V":
                vread(t + 2)
                if hook: hook(t, 2)
            elif tok[0] == "E": Ex(t, int(tok[1:]))
            elif tok[0] == "N": Ex(t + 1, int(tok[1:]))
            elif tok[0] == "C": Cv(t, int(tok[1:]))
            else: raise ValueError(tok)
    adv = "v_add_u32 v5, 20480, v5\nv_add_u32 v6, 20480, v6\nv_add_u32 v7, 20480, v7"
    npoll = [0]
    def check(thr):
        k = npoll[0]; npoll[0] += 1
        A(f"""
s_waitcnt lgkmcnt(2)
v_cmp_gt_u32 vcc, {thr}, v{FL}
s_cbranch_vccz {E}_ok{k}
{E}_poll{k}:
s_sleep 1
ds_read_b32 v{FL}, v{FL+1}
s_waitcnt lgkmcnt(0)
v_cmp_gt_u32 vcc, {thr}, v{FL}
s_cbranch_vccnz {E}_poll{k}
{E}_ok{k}:
""")
    rdflag = f"ds_read_b32 v{FL}, v{FL+1}"
    hflag = f"s_waitcnt vmcnt(0)\ns_mov_b64 exec, 1\nbuffer_store_dword v{FL+2}, off, s[32:35], s10 sc1\ns_mov_b64 exec, -1"
    if P["hnb"]:
        hst_ = f"s_waitcnt vmcnt(0)\ns_mov_b64 exec, 1\nbuffer_store_dword v{FL+2}, off, s[32:35], s10 sc1\ns_mov_b64 exec, -1\ns_mov_b32 s9, 1"
        hpeek = lambda t: f"s_getreg_b32 s30, hwreg(HW_REG_IB_STS, 0, 4)\ns_or_b32 s30, s30, s9\ns_cbranch_scc1 {E}_hp{t}\n{hst_}\n{E}_hp{t}:"
        hflag = f"s_cmp_lg_u32 s9, 0\ns_cbranch_scc1 {E}_hpl\n{hst_}\n{E}_hpl:"
    def hook0(t, ph):
        if ph == 1 and t in (4, 7): A(rdflag)
        if ph == 1 and t == 4 and (P["bal"] or P["yl"]): A(progress)
        if ph == 1 and t == 7 and P["yl"]: A("ds_read_b32 v15, v22")
        if ph == 0 and t == 5: check(F_G1)
        if ph in (1, 2):
            mine = [n for n in range(P["hpre"] + P["hcb"], 8) if P["hst"][n] == t]
            for n in mine[ph - 1::2] if not P["noh"] else []:
                if P["hskip"]: A(f"s_cmp_eq_u32 s34, 0\ns_cbranch_scc1 {E}_hs{n}")
                hstore(n)
                if P["hskip"]: A(f"{E}_hs{n}:")
        if ph == 1 and t == P["ofp"] and not P["noof"] and not P["ofi"]:
            A(f"buffer_store_dwordx4 v[164:167], v5, s[44:47], s60 offen sc1\nbuffer_store_dwordx2 v[164:165], v6, s[44:47], s3 offen sc1")
        if ph == 2 and t == 3: MK("t3")
        if ph == 2 and P["hnb"] and t in P["hnb"]: A(hpeek(t))
        if ph == 2 and P["hfl"] == (0, t): MK("t7"); A(hflag); MK("cH")
    for t in range(8): tile(t, hook0)
    A(adv)
    if max(P["hst"]) >= 8:
        HA_ = 14
        A("s_cmp_eq_u32 s34, 0\ns_cselect_b32 s26, 0, 1\nv_lshlrev_b32 v14, 4, v2")
    A(f"s_mov_b32 s27, 1\ns_mov_b32 s28, {F_G5}\nv_mov_b32 v{FL+3}, 1\n{E}_loop:")
    def hook1(t, ph):
        if ph == 0 and t == 0 and P["marks"]:
            for k in range(1, 8):
                if f"I{k}" in P["marks"]: A(f"s_cmp_lg_u32 s27, {k}\ns_cbranch_scc1 {E}_mi{k}"); MK(f"I{k}"); A(f"{E}_mi{k}:")
        if ph == 0 and t == 0: check("s28")
        if ph == 0 and t in (0, 4) and P["yl"]: yield_(t, t == 0)
        if ph == 1 and t in (3, 7) and P["yl"]: A("ds_read_b32 v15, v22")
        if ph == 1 and t == 0: A(f"s_mov_b32 s28, {F_ALL}")
        if ph == 1 and t in (0, 4): A(progress)
        if ph == 1 and t == 7: A(rdflag)
        if ph in (1, 2):
            mine = [n for n in range(P["hpre"] + P["hcb"], 8) if P["hst"][n] == t + 8]
            for n in mine[ph - 1::2]:
                A(f"s_cmp_lg_u32 s27, s26\ns_cbranch_scc1 {E}_hs{n}")
                hstore(n)
                A(f"{E}_hs{n}:")
        if ph == 1 and P["ofi"] and t == P["ofp"]:
            A(f"s_cmp_lg_u32 s27, {P['ofi']}\ns_cbranch_scc1 {E}_no\nv_lshlrev_b32 v1, 4, v2\nv_lshlrev_b32 v0, 3, v4\nbuffer_store_dwordx4 v[164:167], v1, s[44:47], s60 offen sc1\nbuffer_store_dwordx2 v[164:165], v0, s[44:47], s60 offen offset:1024 sc1\n{E}_no:")
        if ph == 2 and P["hfl"][0] > 0 and P["hfl"][1] == t:
            A(f"s_cmp_lg_u32 s27, {P['hfl'][0]}\ns_cbranch_scc1 {E}_nf\n{hflag}\n{E}_nf:")
        if ph == 1 and t == P["hint"][1]:
            A(f"""
s_cmp_lg_u32 s27, {P["hint"][0]}
s_cbranch_scc1 {E}_nh
s_waitcnt vmcnt(0)
{"v_lshlrev_b32 v15, 8, v2" if P["mbx"] else ""}
s_mov_b64 exec, {0xff if P["mbx"] else 1}
buffer_store_dword v{FL+2}, {"v15" if P["mbx"] else "off"}, s[44:47], s61{" offen" if P["mbx"] else ""}{P['hsc']}
s_mov_b64 exec, -1
{"; MARK " + str(P["marks"]["ch"]) if P["marks"] and "ch" in P["marks"] else ""}
{"s_waitcnt vmcnt(0)" + chr(10) + "; MARK " + str(P["marks"]["ci"]) if P["marks"] and "ci" in P["marks"] else ""}
{E}_nh:
""")
    for t in range(8): tile(t, hook1)
    A(adv)
    A(f"s_add_u32 s27, s27, 1\ns_cmp_lt_u32 s27, 8\ns_cbranch_scc1 {E}_loop")
    MK("c3")
    A(f"v_mov_b32 v{FL+3}, 16\nds_write_b32 v{FL+2}, v{FL+3}\nv_mov_b32 v1, 0\ns_movk_i32 s26, 0x207")
    for i in range(12): A(f"v_fma_f32 v1, v{O+i}, 0, v1")
    A(f"""
v_cmp_class_f32 vcc, v1, s26
s_cbranch_vccnz {E}_fb
{E}_epi:
v_mov_b32 v10, 0
ds_read_b64 v[12:13], v10 offset:{MSK}
v_mov_b32 v14, v{O+8}
v_mov_b32 v15, v{O+8}
v_lshlrev_b32 v5, 4, v2
v_permlane32_swap_b32 v14, v15
v_rcp_f32 v14, v15
v_lshlrev_b32 v6, 3, v4
v_mov_b32 v11, v{FL+1}
""")
    for k in range(6): A(f"v_pk_mul_f32 {vr(O+2*k,2)}, {vr(O+2*k,2)}, v[14:15] op_sel_hi:[1,0]")
    for k in range(6): A(f"v_cvt_pk_bf16_f32 v{O+k}, v{O+2*k}, v{O+2*k+1}")
    OSC = P["osc"]; LSC = P["lsc"]
    VW, VR, OR_, OA, SP = 6, 7, 8, 9, 15
    A(f"""
buffer_store_dwordx4 {vr(O,4)}, v5, s[44:47], s60 offen{OSC}
s_mov_b64 exec, s[24:25]
buffer_store_dwordx2 {vr(O+4,2)}, v6, s[44:47], s60 offen offset:1024{OSC}
s_mov_b64 exec, -1
s_setprio 0
""")
    MK("c4")
    if P["marks"] and "cj" in P["marks"]: A("s_waitcnt vmcnt(0)"); MK("cj")
    A(f"""
v_mul_u32_u24 v14, 2560, v3
s_add_u32 s28, s57, 5120
s_waitcnt lgkmcnt(0)
v_readfirstlane_b32 s30, v12
v_readfirstlane_b32 s31, v13
v_lshl_add_u32 v{OR_}, v4, 3, v14
s_lshr_b64 s[30:31], s[30:31], s56
s_mov_b32 s63, s30
""")
    OB = 16; AC = 56
    def load(k, LSC=P["lsc"]):
        if k < 8: A(f"buffer_load_dwordx4 {vr(OB+4*k,4)}, v5, s[44:47], s{57 if k < 4 else 28} offen offset:{1280*(k&3)}{LSC}")
        else:
            for e in range(2): A(f"buffer_load_dwordx2 {vr(OB+4*k+2*e,2)}, v{OR_}, s[44:47], s{57 if k == 8 else 28} offen offset:{1024+1280*e}{LSC}")
    L0, L1 = P["lsc0"]
    EXT = "s_and_b32 s63, s30, 0xff\ns_and_b32 s31, s30, 15\ns_cmp_eq_u32 s31, 15\ns_cselect_b32 s31, 0x100, 0\ns_cmp_ge_u32 s63, 0xf0\ns_cselect_b32 s30, 0x200, 0\ns_or_b32 s63, s63, s31\ns_or_b32 s63, s63, s30"
    if P["dyn"]:
        A(EXT + "\ns_mov_b32 s64, s63\ns_movk_i32 s65, 0x3ff")
        for k in range(10):
            A(f"v_mov_b64 {vr(OB+4*k,2)}, -1\nv_mov_b64 {vr(OB+4*k+2,2)}, -1\ns_bitcmp1_b32 s63, {k}\ns_cbranch_scc0 {E}_su{k}")
            load(k)
            A(f"{E}_su{k}:")
    else:
        for k in range(8):
            A(f"s_mov_b32 s64, {k}\ns_bitcmp1_b32 s63, {k}\ns_cbranch_scc0 {E}_su")
            load(k, L0)
        load(8, L0); load(9, L0)
        A(f"s_mov_b32 s64, 9\n{E}_su:")
    def issue_rest(T):
        A(f"s_cmp_eq_u32 s64, 9\ns_cbranch_scc1 {E}_id{T}")
        for k in range(8):
            L = f"{E}_is{T}{k}"
            A(f"""
s_cmp_gt_u32 s64, {k}
s_cbranch_scc1 {L}n
s_bitcmp1_b32 s63, {k}
s_cbranch_scc1 {L}g
{L}p:
ds_read_b64 v[0:1], v10 offset:{MSK}
s_waitcnt lgkmcnt(0)
v_readfirstlane_b32 s30, v0
v_readfirstlane_b32 s31, v1
s_lshr_b64 s[30:31], s[30:31], s56
s_mov_b32 s63, s30
s_bitcmp1_b32 s30, {k}
s_cbranch_scc1 {L}g
s_sleep 1
s_branch {L}p
{L}g:
""")
            load(k, L1)
            A(f"{L}n:")
        load(8, L1); load(9, L1)
        A(f"{E}_id{T}:"); MK("c6")
    RQ = "v_lshl_add_u32 v13, v12, 5, v13"
    if P["rotq"]:
        RQ = "v_lshlrev_b32 v7, 3, v7\nv_sub_u32 v13, v13, v7\nv_lshl_add_u32 v7, v12, 5, v7\ns_lshl_b32 s30, s54, 4\nv_add_u32 v7, s30, v7\nv_and_b32 v7, 63, v7\nv_add_u32 v13, v13, v7"
    A(f"""
ds_read_b32 v1, v11
v_mul_u32_u24 v12, 1280, v4
v_bfe_u32 v13, v2, 2, 2
v_and_b32 v7, 3, v2
v_lshl_add_u32 v{OA}, v3, 3, v12
v_lshlrev_b32 v13, 6, v13
v_lshl_add_u32 v13, v7, 3, v13
v_bfe_u32 v12, v2, 4, 1
{RQ}
v_add_u32 v13, s58, v13
v_lshl_add_u32 v{VW}, v3, 8, v13
v_add_u32 v{VR}, v14, v13
s_sub_u32 s26, s54, 1
v_sub_u32 v14, s26, v2
v_and_b32 v14, 3, v14
s_lshl_b32 s26, s52, 4
s_add_u32 s26, s26, {SENT}
v_lshl_add_u32 v{SP}, v14, 2, s26
s_lshl_b32 s27, s54, 2
s_add_u32 s27, s27, s26
s_mov_b32 s62, {P['spin']}
v_add_u32 v12, s59, v5
s_lshl_b32 s30, s54, 2
v_mov_b32 v13, s30
""")
    nw_ = [0]
    def lwait(thr, ar=11):
        k = nw_[0]; nw_[0] += 1
        A(f"""
{E}_lw{k}:
s_waitcnt lgkmcnt(0)
v_cmp_gt_u32 vcc, {thr}, v1
s_cbranch_vccz {E}_lwd{k}
s_sleep {P['psl']}
ds_read_b32 v1, v{ar}
s_branch {E}_lw{k}
{E}_lwd{k}:
""")
    def perq4(tag, body):
        for q in range(4):
            if q < 3: A(f"s_cmp_lg_u32 s54, {q}\ns_cbranch_scc1 {E}_{tag}{q+1}")
            body(q)
            if q < 3: A(f"s_branch {E}_{tag}d\n{E}_{tag}{q+1}:")
        A(f"{E}_{tag}d:")
    def chk(k, tmp=14):
        o = OB + 4 * k
        A(f"v_max3_u32 v{tmp}, v{o}, v{o+1}, v{o+2}\nv_max_u32 v{tmp}, v{tmp}, v{o+3}\nv_cmp_eq_u32 vcc, -1, v{tmp}")
    RDM = "v_readfirstlane_b32 s30, v0\nv_readfirstlane_b32 s31, v1\ns_lshr_b64 s[30:31], s[30:31], s56\n" + EXT
    def dwaitf(thr, ar, tag):
        A(f"""
ds_read_b32 v3, v{ar}
ds_read_b64 v[0:1], v10 offset:{MSK}
{E}_dw{tag}:
s_waitcnt lgkmcnt(0)
v_cmp_gt_u32 vcc, {thr}, v3
s_cbranch_vccz {E}_dd{tag}
{RDM}
s_andn2_b32 s30, s63, s64
s_mov_b32 s64, s63
s_sub_u32 s67, s67, 1
s_cselect_b32 s30, s63, s30
s_cselect_b32 s67, {P['dper']}, s67
ds_read_b32 v3, v{ar}
ds_read_b64 v[0:1], v10 offset:{MSK}
s_cmp_eq_u32 s30, 0
s_cbranch_scc1 {E}_dz{tag}
""")
        for k in range(10):
            A(f"s_bitcmp1_b32 s30, {k}\ns_cbranch_scc0 {E}_dn{tag}{k}")
            chk(k)
            A(f"s_cbranch_vccz {E}_dn{tag}{k}")
            load(k)
            A(f"{E}_dn{tag}{k}:")
        A(f"{E}_dz{tag}:\ns_sleep {P['psl']}\ns_branch {E}_dw{tag}\n{E}_dd{tag}:")
    if P["dyn"]:
        A(f"s_mov_b32 s67, {P['dper']}"); dwaitf(F_WO, 11, "o")
    else: lwait(F_WO)
    MK("c5")
    A(f"s_cmp_lg_u32 s52, 0\ns_cbranch_scc1 {E}_tB")
    for ty, nb in ((0, 3), (1, 2)):
        T = "AB"[ty]
        if ty: A(f"{E}_tB:")
        WB = AC + 16 * nb
        nbuf = min(10, (168 - WB) // (4 * nb))
        q = []
        def need(tag):
            idx = max([i for i, t in enumerate(q) if t == tag], default=-1)
            if idx >= 0:
                A(f"s_waitcnt lgkmcnt({min(len(q) - 1 - idx, 15)})"); del q[:idx + 1]
        later = lambda k: (7 - k + 4) if k < 8 else (2 if k == 8 else 0)
        SLT = {0: 0, 1: 1, 2: 2, 3: 3, 8: 4, 4: 0, 5: 1, 6: 2, 7: 3, 9: 4}
        slot = (lambda k: SLT[k]) if P["dyn"] and nbuf < 10 else (lambda k: k % nbuf)
        def wr(k, lo=0, hi=99):
            b = WB + slot(k) * 4 * nb
            for u in range(max(lo, 0), min(hi, nb)):
                if k < 8: a = VW; o1 = u * 10240 + k * 1280; o2 = o1 + 512
                else: a = VR; o1 = u * 10240 + (k - 8) * 5120 + 1024; o2 = o1 + 1280
                A(f"ds_read_b64_tr_b16 {vr(b+4*u,2)}, v{a} offset:{o1}"); q.append((k, u))
                A(f"ds_read_b64_tr_b16 {vr(b+4*u+2,2)}, v{a} offset:{o2}"); q.append((k, u))
        for k in ((0, 1, 2, 3, 8) if P["dyn"] and nbuf < 10 else range(nbuf)): wr(k)
        if P["rotq"]:
            if ty == 0:
                A("s_add_u32 s32, s58, 20480")
                for r in range(3): A(f"s_sub_u32 s30, s54, {r+1}\ns_and_b32 s30, s30, 3\ns_mul_i32 s30, s30, 30720\ns_add_u32 s{36+r}, s30, {WO + 20480 + r*3072}")
            else:
                A(f"s_lshl_b32 s32, s54, 12\ns_add_u32 s32, s32, {FREE}")
                for r in range(3):
                    A(f"s_sub_u32 s30, s54, {r+1}\ns_and_b32 s30, s30, 3\ns_mul_i32 s30, s30, {5120 if r == 0 else 4096}\ns_add_u32 s{36+r}, s30, {PR if r == 0 else FREE + (r-1)*2048}")
            A("s_add_u32 s33, s55, s53\ns_add_u32 s34, s33, s53\ns_mov_b32 s35, 0")
        elif ty == 0:
            for j in range(4): A(f"s_sub_u32 s30, {j+3}, s54\ns_and_b32 s30, s30, 3\ns_mul_i32 s30, s30, 3072\ns_add_u32 s{32+j}, s30, s58\ns_add_u32 s{32+j}, s{32+j}, 20480")
            for r in range(3): A(f"s_sub_u32 s30, s54, {r+1}\ns_and_b32 s30, s30, 3\ns_mul_i32 s30, s30, 30720\ns_add_u32 s{36+r}, s30, {WO + 20480 + r*3072}")
        else:
            A(f"s_lshl_b32 s31, s54, 12\ns_add_u32 s31, s31, {FREE - 2048}")
            for j in range(4): A(f"s_sub_u32 s30, {j+3}, s54\ns_and_b32 s30, s30, 3\ns_lshl_b32 s{32+j}, s30, 11\ns_add_u32 s{32+j}, s{32+j}, s31\ns_cmp_eq_u32 s30, 0\ns_cselect_b32 s{32+j}, s59, s{32+j}")
            for r in range(3):
                A(f"s_sub_u32 s30, s54, {r+1}\ns_and_b32 s30, s30, 3\ns_mul_i32 s30, s30, {5120 if r == 0 else 4096}\ns_add_u32 s{36+r}, s30, {PR if r == 0 else FREE + (r-1)*2048}")
        for k in range(16 * nb): A(f"v_mov_b32 v{AC+k}, 0")
        if P["dyn"]: dwaitf(F_FX, 13, "x" + T)
        else:
            issue_rest(T)
            A("ds_read_b32 v1, v13")
            lwait(F_FX, 13)
        MK("c7")
        q.clear()
        fxr = lambda qq: [A(f"ds_read_b128 {vr(AC+16*t+4*qq,4)}, v12 offset:{(2048 if ty == 0 else 0) + t*1024}") for t in range(nb)]
        if P["rotq"]: fxr(0)
        else: perq4(f"fx{T}", fxr)
        if P["dyn"]:
            def mm(k, nx=None):
                b = WB + slot(k) * 4 * nb; o = OB + 4 * k
                for u in range(nb):
                    A(f"v_mfma_f32_32x32x16_bf16 {vr(AC+16*u,16)}, {vr(b+4*u,4)}, {vr(o,4)}, {vr(AC+16*u,16)}")
                    if nx is not None and u >= 1: wr(nx, u - 1, u)
                if nx is not None: wr(nx, nb - 1, nb)
            A(f"""
{RDM}
s_andn2_b32 s30, s63, s64
s_mov_b32 s64, s63
s_waitcnt lgkmcnt(0)
s_branch {E}_yi{T}
{E}_yl{T}:
s_and_b32 s66, s64, s65
""")
            if nbuf < 10:
                PA = ((0, 4), (1, 5), (2, 6), (3, 7), (8, 9))
                for a, b in PA:
                    A(f"s_bitcmp1_b32 s66, {a}\ns_cbranch_scc0 {E}_ya{T}{a}")
                    chk(a)
                    A(f"s_cbranch_vccnz {E}_ya{T}{a}\ns_bitset0_b32 s65, {a}")
                    mm(a, b)
                    A(f"{E}_ya{T}{a}:")
                for a, b in PA:
                    A(f"s_bitcmp1_b32 s66, {b}\ns_cbranch_scc0 {E}_yb{T}{b}")
                    chk(b)
                    A(f"s_cbranch_vccz {E}_yc{T}{b}\ns_bitset0_b32 s66, {b}\ns_branch {E}_yb{T}{b}\n{E}_yc{T}{b}:\ns_bitcmp1_b32 s65, {a}\ns_cbranch_scc0 {E}_yb{T}{b}")
                    wr(b)
                    A(f"{E}_yb{T}{b}:")
                A(f"s_waitcnt lgkmcnt(0)\ns_and_b32 s30, s66, 0x2f0\ns_cbranch_scc0 {E}_ye{T}")
                for a, b in PA:
                    A(f"s_bitcmp1_b32 s66, {b}\ns_cbranch_scc0 {E}_yd{T}{b}\ns_bitset0_b32 s65, {b}")
                    mm(b)
                    A(f"s_bitcmp1_b32 s65, {a}\ns_cbranch_scc0 {E}_yd{T}{b}")
                    wr(a)
                    A(f"{E}_yd{T}{b}:")
                A(f"{E}_ye{T}:")
            else:
                for k in (0, 1, 2, 3, 8, 4, 5, 6, 7, 9):
                    A(f"s_bitcmp1_b32 s66, {k}\ns_cbranch_scc0 {E}_ya{T}{k}")
                    chk(k)
                    A(f"s_cbranch_vccnz {E}_ya{T}{k}\ns_bitset0_b32 s65, {k}")
                    mm(k)
                    A(f"{E}_ya{T}{k}:")
                A("s_waitcnt lgkmcnt(0)")
            A(f"""
s_cmp_eq_u32 s65, 0
s_cbranch_scc1 {E}_yz{T}
s_sub_u32 s62, s62, 1
s_cbranch_scc1 {E}_yz{T}
{RDM}
s_mov_b32 s64, s63
s_and_b32 s30, s63, s65
s_waitcnt lgkmcnt(0)
{E}_yi{T}:
ds_read_b64 v[0:1], v10 offset:{MSK}
""")
            for k in range(10):
                A(f"s_bitcmp1_b32 s30, {k}\ns_cbranch_scc0 {E}_yj{T}{k}")
                load(k)
                A(f"{E}_yj{T}{k}:")
            A(f"s_cmp_eq_u32 s62, {P['spin']}\ns_cbranch_scc1 {E}_yl{T}\ns_sleep {P['dsl2']}\ns_branch {E}_yl{T}\n{E}_yz{T}:\ns_waitcnt lgkmcnt(0)")
        else: A("s_waitcnt lgkmcnt(0)")
        for k in range(10 if not P["dyn"] else 0):
            A(f"s_waitcnt vmcnt({later(k)})")
            o = OB + 4 * k
            A(f"""
{E}_ck{T}{k}:
v_max3_u32 v1, v{o}, v{o+1}, v{o+2}
v_max_u32 v1, v1, v{o+3}
v_cmp_eq_u32 vcc, -1, v1
s_cbranch_vccnz {E}_rt{T}{k}
{E}_bk{T}{k}:
""")
            b = WB + (k % nbuf) * 4 * nb
            nx = k + nbuf
            for u in range(nb):
                need((k, u))
                A(f"v_mfma_f32_32x32x16_bf16 {vr(AC+16*u,16)}, {vr(b+4*u,4)}, {vr(o,4)}, {vr(AC+16*u,16)}")
                if nx < 10 and u >= 1: wr(nx, u - 1, u)
            if nx < 10: wr(nx, nb - 1, nb)
        MK("c8")
        XR = 140 if P["dyn"] else 16
        for j in range(1 if P["rotq"] else 4): A(f"v_add_u32 v{XR+j}, s{32+j}, v5")
        for r in range(3): A(f"v_add_u32 v{XR+4+r}, s{36+r}, v5")
        A("v_mov_b32 v13, s27\ns_mov_b32 s63, 7")
        if P["rotq"]:
            for t in range(nb):
                for j in range(1, 4):
                    if ty == 0: a, o = XR, (j - 1) * 3072 + t * 1024
                    elif j == 1: a, o = 12, t * 1024
                    else: a, o = XR, (j - 2) * 2048 + t * 1024
                    A(f"ds_write_b128 v{a}, {vr(AC+16*t+4*j,4)} offset:{o}")
        for j in range(4 if not P["rotq"] else 0):
            A(f"s_cmp_eq_u32 s54, {j}\ns_cbranch_scc1 {E}_ns{T}{j}")
            for t in range(nb): A(f"ds_write_b128 v{XR+j}, {vr(AC+16*t+4*j,4)} offset:{t*1024}")
            A(f"{E}_ns{T}{j}:")
        A(f"""
s_waitcnt lgkmcnt(0)
ds_write_b32 v13, v13
{E}_sp{T}:
ds_read_b32 v1, v{SP}
s_waitcnt lgkmcnt(0)
v_cmp_ne_u32 vcc, 0, v1
s_and_b32 s30, vcc_lo, s63
""")
        for r in range(3):
            A(f"s_bitcmp1_b32 s30, {r}\ns_cbranch_scc0 {E}_nr{T}{r}")
            for t in range(nb): A(f"ds_read_b128 {vr(WB+4*(3*t+r),4)}, v{XR+4+r} offset:{t*1024}")
            A(f"{E}_nr{T}{r}:")
        if P["rotq"] > 1:
            A(f"""
s_andn2_b32 s63, s63, s30
s_cbranch_scc0 {E}_sq{T}
s_cmp_lg_u32 s35, 0
s_cbranch_scc1 {E}_sp{T}
s_mov_b32 s35, 1
s_mov_b64 exec, 0
s_branch {E}_fi{T}
{E}_fo{T}:
s_mov_b64 exec, -1
s_branch {E}_sp{T}
{E}_sq{T}:
s_waitcnt lgkmcnt(0)
""")
            MK("c9")
            A(f"{E}_fi{T}:")
        else:
            A(f"""
s_andn2_b32 s63, s63, s30
s_cbranch_scc1 {E}_sp{T}
s_waitcnt lgkmcnt(0)
""")
            MK("c9")
        def fin(qq):
            for t in range(nb):
                a = AC + 16 * t + 4 * qq; r = WB + 12 * t
                for k in range(4): A(f"v_add_f32 v{a+k}, v{a+k}, v{r+k}\nv_add_f32 v{r+4+k}, v{r+4+k}, v{r+8+k}")
                for k in range(4): A(f"v_add_f32 v{a+k}, v{a+k}, v{r+4+k}")
                A(f"v_cvt_pk_bf16_f32 v{a}, v{a}, v{a+1}\nv_cvt_pk_bf16_f32 v{a+1}, v{a+2}, v{a+3}")
                A(f"buffer_store_dwordx2 {vr(a,2)}, v{OA}, s[48:51], s{(55, 33, 34)[t] if P['rotq'] else 55} offen{P['usc']}")
                if t < nb - 1 and not P["rotq"]: A("s_add_u32 s55, s55, s53")
            if P["rotq"] > 1: A(f"s_cbranch_execz {E}_fo{T}")
            if P["wb2"] & 1 and ty == 0: A(f"s_cmp_lg_u32 s54, 0\ns_cbranch_scc1 {E}_nwb\ns_waitcnt vmcnt(0)\nbuffer_wbl2 sc1\n{E}_nwb:")
            if P["wb2"] & 4: A(f"s_waitcnt vmcnt(0)\nbuffer_wbl2 sc1")
            A("s_endpgm")
        if P["rotq"]: fin(0)
        for qq in range(4 if not P["rotq"] else 0):
            if qq < 3: A(f"s_cmp_lg_u32 s54, {qq}\ns_cbranch_scc1 {E}_fn{T}{qq+1}")
            fin(qq)
            if qq < 3: A(f"{E}_fn{T}{qq+1}:")
        for k in range(10 if not P["dyn"] else 0):
            A(f"""
{E}_rt{T}{k}:
s_sub_u32 s62, s62, 1
s_cbranch_scc1 {E}_bk{T}{k}
""")
            if P["rtsl"]: A(f"s_sleep {P['rtsl']}")
            for kk in range(k, 10): load(kk)
            A(f"s_waitcnt vmcnt({later(k)})\ns_branch {E}_ck{T}{k}")
    for y in YL: A(y)
    A(f"""
{E}_fb:
s_waitcnt lgkmcnt(0)
v_lshlrev_b32 v5, 4, v2
v_lshlrev_b32 v6, 4, v4
v_mul_u32_u24 v7, {SV}, v3
v_lshl_add_u32 v7, v4, 4, v7
v_add_u32 v15, {2*SV}, v7
v_mov_b32 v1, 0xff800000
s_add_u32 s18, s16, 40960
s_mov_b32 s26, s18
s_mov_b32 s27, 64
{E}_fb1:
s_add_u32 s30, s26, s17
buffer_load_dwordx4 {vr(KM,4)}, v5, s[44:47], s26 offen{SC}
buffer_load_dwordx2 {vr(KR,2)}, v6, s[44:47], s30 offen{SC}
s_waitcnt vmcnt(0)
v_mfma_f32_32x32x16_bf16 {vr(S[0],16)}, {vr(KM,4)}, {vr(QM,4)}, 0
v_mfma_f32_32x32x8_bf16 {vr(S[0],16)}, {vr(KR,2)}, {vr(QR,2)}, {vr(S[0],16)}
""")
    for k in range(8): A(f"v_max3_f32 v1, v1, v{S[0]+2*k}, v{S[0]+2*k+1}")
    A(f"""
s_add_u32 s26, s26, {TS}
s_sub_u32 s27, s27, 1
s_cmp_lg_u32 s27, 0
s_cbranch_scc1 {E}_fb1
v_mov_b32 v14, v1
v_permlane32_swap_b32 v1, v14
v_max_f32 v1, v1, v14
""")
    for i in range(16): A(f"v_sub_f32 v{CB+i}, 0, v1\nv_mov_b32 v{O+i}, 0")
    A(f"""
s_mov_b32 s26, s18
s_mul_i32 s28, s14, 320
s_add_u32 s28, s28, {QF + VOFF}
s_mov_b32 s27, 64
{E}_fb2:
s_add_u32 s30, s26, s17
buffer_load_dwordx4 {vr(KM,4)}, v5, s[44:47], s26 offen{SC}
buffer_load_dwordx2 {vr(KR,2)}, v6, s[44:47], s30 offen{SC}
s_mov_b64 exec, s[22:23]
buffer_load_dwordx4 {vr(V0,4)}, v7, s[44:47], s28 offen{SC}
buffer_load_dwordx4 {vr(V1,4)}, v15, s[44:47], s28 offen{SC}
s_mov_b64 exec, -1
s_waitcnt vmcnt(0)
""")
    M1(0); M2(0)
    Ex(0, *range(16)); Cv(0, *range(8))
    A(f"""
v_mfma_f32_32x32x16_bf16 {vr(O,16)}, {vr(V0,4)}, {vr(S[0],4)}, {vr(O,16)}
v_mfma_f32_32x32x16_bf16 {vr(O,16)}, {vr(V1,4)}, {vr(S[0]+8,4)}, {vr(O,16)}
s_add_u32 s26, s26, {TS}
s_add_u32 s28, s28, {TS}
s_sub_u32 s27, s27, 1
s_cmp_lg_u32 s27, 0
s_cbranch_scc1 {E}_fb2
s_nop 15
s_branch {E}_epi
""")
    A(f"{E}_ffn:")
    head_scalars()
    A("v_lshlrev_b32 v5, 4, v2")
    PA = 64
    poll_addr(PA, 30, 31)
    dma_addr(20, 21, 22, 17, 18)
    A(f"s_mov_b32 s19, {G0*4*TS}")
    WA, FX, FP, XA = 76, 79, 84, 85
    HA, WFA = 65, 66
    MB = ""
    if P["hl0"]: MB = f"s_lshl_b32 s56, s14, 13\ns_add_u32 s56, s56, {FL2 + 0x50000}\nv_lshlrev_b32 v{FP}, 7, v2"
    if P["mbx"]:
        assert LF == 2
        MB = f"s_and_b32 s30, s40, 1\ns_lshl_b32 s30, s30, 2\ns_lshr_b32 s31, s41, 3\ns_add_u32 s30, s30, s31\ns_lshl_b32 s30, s30, 8\ns_add_u32 s56, s56, s30\nv_lshlrev_b32 v{FP}, 2, v2"
    A(f"""
v_lshrrev_b32 v{FP}, {LF}, v2
v_and_b32 v16, {(1 << LF) - 1}, v2
v_lshlrev_b32 v{FP}, 7, v{FP}
v_lshl_add_u32 v{FP}, v16, 2, v{FP}
v_mov_b32 v16, {108*128}
s_lshr_b32 s14, s40, 1
s_lshl_b32 s14, s14, 3
s_and_b32 s24, s41, 7
s_add_u32 s14, s14, s24
s_lshl_b32 s56, s14, {13 - LF}
s_add_u32 s56, s56, {FL2}
{MB}
s_mul_i32 s30, s14, {27*128}
s_add_u32 s30, s30, {FH}
v_min_u32 v{HA}, 26, v4
v_lshl_add_u32 v{HA}, v{HA}, 7, s30
s_lshl_b32 s14, s14, 1
s_bfe_u32 s25, s41, 0x10003
s_xor_b32 s15, s25, 1
s_add_u32 s15, s15, s14
s_add_u32 s14, s14, s25
s_and_b32 s27, s40, 1
s_lshl_b32 s27, s27, 1
s_lshr_b32 s16, s41, 4
s_add_u32 s27, s27, s16
s_mul_i32 s30, s27, 108
s_add_u32 s30, s30, s29
s_lshl_b32 s30, s30, 7
s_add_u32 s30, s30, {FW}
v_min_u32 v{WFA}, 26, v4
v_lshl_add_u32 v{WFA}, v{WFA}, 9, s30
v_mad_u32_u24 v{WFA}, v3, v16, v{WFA}
s_and_b32 s24, s41, 15
s_mul_i32 s24, s24, 27
s_lshr_b32 s24, s24, 4
s_mul_i32 s24, s24, {P['frot']}
s_add_u32 s20, s17, {HF}
s_mul_i32 s23, s29, 20480
s_mul_i32 s28, s27, 5120
s_add_u32 s23, s23, s28
s_add_u32 s23, s23, {W2F}
s_add_u32 s22, s20, {27*4096}
s_lshl_b32 s16, s24, 12
s_add_u32 s16, s16, s20
s_mul_i32 s26, s24, 81920
s_add_u32 s26, s26, s23
s_mul_i32 s30, s14, {108*1024}
s_mul_i32 s31, s15, {108*1024}
v_add_u32 v8, s30, v5
v_add_u32 v9, s31, v5
s_lshl_b32 s30, s25, 12
s_lshl_b32 s31, s25, 11
s_add_u32 s31, s31, 1024
v_add_u32 v10, s30, v5
v_add_u32 v11, s31, v5
v_add_u32 v12, 2048, v5
v_mov_b32 v7, s29
v_lshlrev_b32 v7, 2, v7
v_and_b32 v1, 7, v2
v_lshlrev_b32 v1, 2, v1
v_and_b32 v15, 12, v1
v_mul_u32_u24 v{XA}, 1280, v4
v_lshl_add_u32 v{XA}, v3, 3, v{XA}
s_mul_i32 s52, s27, 320
s_lshl_b32 s53, s29, 4
s_add_u32 s53, s53, s52
s_mul_i32 s54, s14, 40960
s_mul_i32 s55, s15, 40960
s_add_u32 s54, s54, s53
s_add_u32 s55, s55, s53
s_lshl_b32 s57, s25, 8
s_lshl_b32 s58, s25, 7
s_add_u32 s52, s52, s57
s_sub_u32 s59, 64, s58
s_add_u32 s58, s58, 64
s_add_u32 s30, s55, s57
s_add_u32 s31, s55, s58
s_add_u32 s32, s54, s57
s_add_u32 s33, s54, s58
s_add_u32 s34, s54, 128
s_sub_u32 s54, s29, 1
s_add_u32 s53, s59, 204800
s_mul_i32 s53, s53, s54
s_add_u32 s52, s52, s53
s_mul_i32 s53, s54, 40960
s_add_u32 s53, s53, {WO}
v_lshrrev_b32 v16, 2, v2
v_and_b32 v17, 3, v2
v_mul_u32_u24 v16, 1280, v16
v_lshl_add_u32 v{WA}, v17, 4, v16
s_mul_i32 s54, s29, 5120
s_add_u32 s54, s54, {PR}
v_add_u32 v{FX}, s54, v5
s_sub_u32 s60, s59, 184320
s_lshl_b32 s61, s59, 1
s_sub_u32 s61, 20480, s61
s_cmp_eq_u32 s29, 3
s_cselect_b32 s54, 9, 0
s_cselect_b32 s55, 10, 0
s_cselect_b32 s63, 11, 0
s_cselect_b32 s3, 12, 0
s_cselect_b32 s62, 13, 0
s_cselect_b32 s57, s61, s60
s_cmp_eq_u32 s29, 2
s_cselect_b32 s62, 9, s62
s_cselect_b32 s58, s61, s60
s_cmp_eq_u32 s29, 1
s_cselect_b32 s59, s61, s60
v_mov_b32 v6, {RLY}
s_mov_b32 s10, {P['spin']}
s_mov_b32 s8, 0
""")
    MK("lS")
    A("s_waitcnt lgkmcnt(0)")
    if P["w2g"] < G0:
        for c in range(4): A(f"buffer_store_dwordx4 {vr(88+4*c,4)}, v5, s[64:67], s69 offen offset:{1024*c}{ST}")
    A(f"s_barrier\nds_read_b32 v0, v6 offset:4")
    MK("lB")
    C1 = P["c1"]
    def flag(v): A(f"v_mov_b32 v0, {v}\nds_write_b32 v7, v0")
    A("s_waitcnt lgkmcnt(0)\nv_readfirstlane_b32 s8, v0")
    if P["ldel"]: A(f"s_sleep {P['ldel']}")
    def gwait(G):
        m = (3 << (2 * G)) & 0xffffffff
        if P["gsh"]:
            A(f"""
{E}_gw{G}:
s_and_b32 s9, s8, {hex(m)}
s_cmp_eq_u32 s9, {hex(m)}
s_cbranch_scc1 {E}_gg{G}
{"s_lshl_b32 s9, 0x11111111, s29" if P["gsh"] == 1 else "s_mov_b32 s9, -1"}
s_andn2_b32 s9, s9, s8
s_cbranch_scc0 {E}_gr{G}
s_mov_b32 exec_lo, s9
s_mov_b32 exec_hi, s9
buffer_load_dwordx4 v[68:71], v{PA}, s[44:47], 0 offen sc1
s_waitcnt vmcnt(0)
v_min_u32 v69, v69, v70
v_cmp_ne_u32 vcc, 0, v69
s_mov_b64 exec, -1
s_and_b32 s9, vcc_lo, vcc_hi
v_mov_b32 v68, s9
ds_or_b32 v6, v68 offset:4
{E}_gr{G}:
{"s_sleep " + str(P["gsl"]) if P["gsl"] else ""}
ds_read_b32 v68, v6 offset:4
s_waitcnt lgkmcnt(0)
v_readfirstlane_b32 s8, v68
s_sub_u32 s10, s10, 1
s_cselect_b32 s8, -1, s8
s_cselect_b32 s10, 0, s10
s_branch {E}_gw{G}
{E}_gg{G}:
""")
            return
        A(f"""
{E}_gw{G}:
s_and_b32 s9, s8, {hex(m)}
s_cmp_eq_u32 s9, {hex(m)}
s_cbranch_scc1 {E}_gg{G}
buffer_load_dwordx4 v[68:71], v{PA}, s[44:47], 0 offen sc1
s_waitcnt vmcnt(0)
v_min_u32 v69, v69, v70
v_cmp_ne_u32 s[8:9], 0, v69
s_and_b32 s8, s8, s9
s_sub_u32 s10, s10, 1
s_cselect_b32 s8, -1, s8
s_cselect_b32 s10, 0, s10
s_branch {E}_gw{G}
{E}_gg{G}:
""")
    W2G = P["w2g"]; W2FL = P["w2f"] if P["w2f"] is not None else 15
    GQ = VQ_()
    w2flag = "v_mov_b32 v0, 1\ns_mov_b64 exec, 1\nbuffer_store_dword v0, off, s[64:67], s68 sc1\ns_mov_b64 exec, -1"
    if W2G < G0:
        GQ.q = ["w2"] * 4
    for G in range(G0, 16):
        gwait(G); dma(G, 17, 18, "s19"); GQ.q += [G] * 4
        if G < 15: A(f"s_add_u32 s19, s19, {4*TS}")
        if G == W2G:
            for c in range(4): GQ.op("w2", f"buffer_store_dwordx4 {vr(88+4*c,4)}, v5, s[64:67], s69 offen offset:{1024*c}{ST}")
        if G == 2 + P["c0"]: GQ.need(2); flag(F_G1)
        if G == 5 + C1: GQ.need(5); flag(F_G5); MK("l4")
        if G == W2FL: GQ.need("w2"); GQ.op("wf", w2flag)
        if P["gthr"] and G >= P["gthr"][0] and G < 15: GQ.need(G - P["gthr"][1])
    assert W2FL >= W2G
    if P["wot"]:
        A(f"""
s_lshl_b32 s8, s41, 2
s_add_u32 s8, s8, s29
s_lshl_b32 s8, s8, 6
v_add_u32 v68, s8, v2
v_min_u32 v68, 6399, v68
v_mul_u32_u24 v69, 6554, v68
v_lshrrev_b32 v69, 16, v69
v_mul_u32_u24 v70, {1280 - 640}, v69
v_lshl_add_u32 v68, v68, 6, v70
s_and_b32 s8, s40, 1
s_mul_i32 s8, s8, 640
s_mov_b32 s48, s6
s_mov_b32 s49, s7
s_mov_b32 s50, 819200
s_mov_b32 s51, 0x20000
""")
        GQ.op("wot", "buffer_load_dword v70, v68, s[48:51], s8 offen")
    NAFT = len(GQ.q) - 1 - max(i for i, t in enumerate(GQ.q) if t == 15)
    if P["hgate"]:
        A(f"s_waitcnt vmcnt({NAFT})"); flag(F_ALL); MK("lF")
        A(f"""
{E}_hq:
ds_read_b32 v0, v1 offset:64
s_waitcnt lgkmcnt(0)
v_cmp_gt_u32 vcc, {P['hgate']}, v0
s_cbranch_vccz {E}_hw
s_sleep 4
s_branch {E}_hq
""")
    A(f"""
{E}_hw:
buffer_load_dword v68, v{HA}, s[44:47], 0 offen sc1
buffer_load_dword v69, v{WFA}, s[44:47], 0 offen sc1
s_waitcnt vmcnt(2)
""")
    flag(F_ALL)
    A(f"""
s_waitcnt vmcnt(0)
v_min_u32 v68, v68, v69
v_cmp_eq_u32 s[8:9], 0, v68
s_or_b32 s8, s8, s9
s_and_b32 s8, s8, 0x7ffffff
s_cbranch_scc0 {E}_hg
s_sub_u32 s10, s10, 1
s_cselect_b32 s10, 0, s10
s_cbranch_scc1 {E}_hg
s_sleep {P['hsl']}
s_branch {E}_hw
{E}_hg:
""")
    MK("lH")
    ACC = 88
    class VQ_:
        def __init__(s): s.q = []
        def op(s, tag, txt): A(txt); s.q.append(tag)
        def need(s, *tags):
            idx = max([i for i, t in enumerate(s.q) if t in tags], default=-1)
            if idx >= 0:
                A(f"s_waitcnt vmcnt({len(s.q) - 1 - idx})"); s.q = s.q[idx + 1:]
    VQ = VQ_()
    addr = {0: (9, 16), 1: (10, 26), 2: (11, 26), 3: (12, 26), 4: (8, 16)}
    def fl(i, j):
        b = 16 + 20 * (i % 3)
        VQ.op((i, j), f"buffer_load_dwordx4 {vr(b+4*j,4)}, v{addr[j][0]}, s[44:47], s{addr[j][1]} offen{P['fsc']}")
        if j == 4: A("s_add_u32 s16, s16, 4096\ns_add_u32 s26, s26, 81920\ns_cmp_eq_u32 s16, s22\ns_cselect_b32 s16, s20, s16\ns_cselect_b32 s26, s23, s26")
    for i in range(3):
        for j in range(5): fl(i, j)
    A(f"s_setprio {P['prio_ffn']}")
    blk = [(0, 1), (0, 2), (4, 1), (4, 2), (4, 3)]
    after = {1: [0], 2: [1], 3: [2], 4: [3, 4]}
    for i in range(27):
        b = 16 + 20 * (i % 3)
        for t, (hj, wj) in enumerate(blk):
            VQ.need((i, hj), (i, wj))
            c = "0" if i == 0 else vr(ACC + 16 * t, 16)
            A(f"v_mfma_f32_32x32x16_bf16 {vr(ACC+16*t,16)}, {vr(b+4*wj,4)}, {vr(b+4*hj,4)}, {c}")
            if i + 3 < 27:
                for j in after.get(t, []): fl(i + 3, j)
    RED = 2560
    MK("l2")
    if P["otl"]: A("s_load_dwordx2 s[20:21], s[0:1], 48\ns_mov_b32 s22, 2621440\ns_mov_b32 s23, 0x20000")
    A(f"s_setprio {P['prio_red']}")
    for q in range(4):
        A(f"s_sub_u32 s16, s29, {q+1}\ns_and_b32 s16, s16, 3\ns_mul_i32 s16, s16, 5120\ns_add_u32 s16, s16, {RED + q*15360}\nv_add_u32 v{8+q}, s16, v5")
    A(f"""
s_mul_i32 s17, s29, 15360
s_add_u32 s17, s17, {RED}
v_add_u32 v12, s17, v5
s_mov_b32 s48, s4
s_mov_b32 s49, s5
s_mov_b32 s50, 2621440
s_mov_b32 s51, 0x20000
s_mov_b32 s36, 0xffff0000
""")
    npw = [0]
    def pwait(reg, off, thr, sl=2):
        k = npw[0]; npw[0] += 1
        A(f"""
{E}_pw{k}:
ds_read_b32 v0, v{reg} offset:{off}
s_waitcnt lgkmcnt(0)
v_cmp_gt_u32 vcc, {thr}, v0
s_cbranch_vccz {E}_pwd{k}
s_sleep {sl}
s_branch {E}_pw{k}
{E}_pwd{k}:
""")
    pwait(1, 64, 2 * P["T1"], 4)
    for q in range(4):
        A(f"s_cmp_eq_u32 s29, {q}\ns_cbranch_scc1 {E}_nx{q}")
        for t in range(5): A(f"ds_write_b128 v{8+q}, {vr(ACC+16*t+4*q,4)} offset:{t*1024}")
        A(f"{E}_nx{q}:")
    flag(F_RW)
    pwait(15, 0, F_RW, 1)
    for t in range(5):
        for jj in range(3):
            A(f"ds_read_b128 {vr(16+12*t+4*jj,4)}, v12 offset:{jj * 5120 + t * 1024}")
    def perq(tag, body):
        for q in range(4):
            if q < 3: A(f"s_cmp_lg_u32 s29, {q}\ns_cbranch_scc1 {E}_{tag}{q+1}")
            body(q)
            if q < 3: A(f"s_branch {E}_{tag}d\n{E}_{tag}{q+1}:")
        A(f"{E}_{tag}d:")
    xr = lambda q, t: ACC + 16 * t + 4 * ((q + 1) & 3)
    perq("x", lambda q: [A(f"buffer_load_dwordx2 {vr(xr(q,t),2)}, v{XA}, s[48:51], s{30+t} offen") for t in range(5)])
    A("s_waitcnt lgkmcnt(0)"); flag(F_RR)
    MK("l7")
    A(f"""
s_setprio 3
s_mov_b32 s48, s6
s_mov_b32 s49, s7
s_mov_b32 s50, 819200
""")
    def fin(q):
        for t in range(5):
            b = 16 + 12 * t; o = ACC + 16 * t + 4 * q; x = xr(q, t)
            for k in range(4): A(f"v_add_f32 v{b+k}, v{b+k}, v{o+k}")
            for k in range(2): A(f"v_lshlrev_b32 v{o+2*k}, 16, v{x+k}\nv_and_b32 v{o+2*k+1}, s36, v{x+k}")
            for k in range(4): A(f"v_add_f32 v{b+4+k}, v{b+4+k}, v{b+8+k}")
            for k in range(4): A(f"v_add3_f32 v{b+k}, v{b+k}, v{b+4+k}, v{o+k}" if False else f"v_add_f32 v{b+k}, v{b+k}, v{b+4+k}")
            for k in range(4): A(f"v_add_f32 v{b+k}, v{b+k}, v{o+k}")
    def adds(n):
        A(f"s_setprio {P['prio_add']}\ns_waitcnt vmcnt({n})"); perq("fin", fin); A("s_setprio 3")
    A(f"s_cmp_eq_u32 s29, 0\ns_cbranch_scc1 {E}_nd")
    pwait(15, 0, F_RR, 1)
    for m in range(40):
        if m in (0, 9, 19, 29, 39): pwait(1, 64, {0: "s54", 9: "s55", 19: "s63", 29: "s3", 39: "s62"}[m], P['wsl'])
        A(f"s_add_u32 m0, s53, {m*1024}\nbuffer_load_dwordx4 v{WA}, s[48:51], s52 offen lds")
        if m % 10 < 9: A("s_add_u32 s52, s52, 20480")
        elif m < 39: A(f"s_add_u32 s52, s52, s{57 + m // 10}")
    MK("l8")
    A(f"s_waitcnt vmcnt(0)\n{E}_nd:"); flag(F_WO)
    MK("l9")
    if P["otl"]:
        A(f"buffer_load_dword v81, v{XA}, s[20:23], s30 offen\nbuffer_load_dword v82, v{XA}, s[20:23], s32 offen")
    A(f"s_cmp_eq_u32 s29, 0\ns_cbranch_scc1 {E}_pl")
    adds(0)
    def fxw():
        for t in range(5): A(f"ds_write_b128 v{FX}, {vr(16+12*t,4)} offset:{t*1024}")
        flag(F_FX)
    pwait(1, 64, 16, P['rsl'])
    fxw()
    A(f"s_waitcnt lgkmcnt(0)\ns_endpgm\n{E}_pl:")
    PV = 80
    A(f"s_waitcnt vmcnt(0)\nv_mov_b32 v{PV}, 0\nv_mov_b32 v6, 0\ns_mov_b32 s57, {P['spin']}\ns_mov_b32 s58, 0\ns_mov_b32 s59, 0")
    PADP = f"s_mov_b32 s59, {P['pper']}"
    if P["padp"]:
        A("s_mov_b64 s[60:61], 0")
        PADP = f"s_bcnt0_i32_b64 s59, s[60:61]\ns_lshr_b32 s59, s59, {P['padp'][0]}\ns_max_u32 s59, s59, {P['padp'][1]}\ns_min_u32 s59, s59, {P['pper']}"
    if P["pfin"]: A(f"s_setprio {P['prio_add']}"); fin(0); A("s_setprio 3")
    if P["pgate"]: pwait(1, 64, P["pgate"], P['wsl'])
    A(f"""
{E}_rp:
s_sub_u32 s59, s59, 1
s_cbranch_scc0 {E}_np
{PADP}
s_waitcnt vmcnt({P['pd'] - 1})
{"v_cmp_eq_u32 vcc, 0, v" + str(PV) + chr(10) + "s_mov_b64 exec, vcc" if P["pmask"] else ""}
buffer_load_dword v{PV}, v{FP}, s[44:47], s56 offen{P['psc']}
{"s_mov_b64 exec, -1" if P["pmask"] else ""}
{E}_np:
ds_read_b32 v0, v1 offset:64
v_cmp_ne_u32 s[60:61], 0, v{PV}
s_sub_u32 s57, s57, 1
s_cselect_b64 s[60:61], -1, s[60:61]
s_cselect_b32 s57, 0, s57
v_mov_b32 v8, s60
v_mov_b32 v9, s61
ds_write_b64 v6, v[8:9] offset:{MSK}
s_cmp_lg_u32 s58, 0
s_cbranch_scc1 {E}_rr
s_waitcnt lgkmcnt(1)
v_cmp_gt_u32 vcc, 16, v0
s_cbranch_vccnz {E}_rs
""")
    if not P["pfin"]: fin(0)
    fxw()
    A(f"""
s_mov_b32 s58, 1
{E}_rr:
s_cmp_eq_u64 s[60:61], -1
s_cbranch_scc1 {E}_go
{E}_rs:
s_sleep {P['rsl']}
s_branch {E}_rp
{E}_go:
s_waitcnt vmcnt(0) lgkmcnt(0)
{"s_sleep " + str(P["wb2d"]) + chr(10) + "buffer_wbl2 sc1" if P["wb2"] & 2 else ""}
{E}_end:
s_endpgm
""")
    A.end(name, 168, 72)
```
